```python
import torch

def _softmax(x, axis=-1):
    return torch.softmax(x, dim=axis)
def _gelu(x):
    return torch.nn.functional.gelu(x, approximate="tanh")
def _silu(x):
    return torch.nn.functional.silu(x)
def _sigmoid(x):
    return torch.sigmoid(x)
def _layernorm(x, axis=-1, eps=1e-5):
    m = x.mean(dim=axis, keepdim=True)
    v = x.var(dim=axis, keepdim=True, unbiased=False)
    return (x - m) / torch.sqrt(v + eps)
def _scatter_add(tgt, idx, src, axis=0):
    return tgt.clone().index_add_(axis, idx, src)
def _segment_sum(src, seg, n):
    out = torch.zeros((n,) + src.shape[1:], dtype=src.dtype)
    return out.index_add_(0, seg, src)
def _pad(x, pw):
    flat = tuple(v for pair in reversed(pw) for v in pair)
    return torch.nn.functional.pad(x, flat)

kernel_name = 'sequential_preLN__sliding_block_cached__dense_activation_mish__decode'

def setup_inputs():

    _w = (lambda a: (lambda t: t.to(torch.bfloat16) if t.is_floating_point() else t)(torch.as_tensor(a)))
    def _A_setup():
        B, Sq, D = 1, 1, 448
        Hq, Hkv, Sk, Dh = 16, 8, 8192, 256
        assert Hq % Hkv == 0, (Hq, Hkv)
        return {
            "x": _w((lambda *s: torch.randn(*s, dtype=torch.bfloat16) * 0.05)(B, Sq, D)),
            "k_cache": _w((lambda *s: torch.randn(*s, dtype=torch.bfloat16) * 1.6)(B, Hkv, Sk, Dh)),
            "v_cache": _w((lambda *s: torch.randn(*s, dtype=torch.bfloat16) * 0.4)(B, Hkv, Sk, Dh)),
            "wq": _w((lambda *s: torch.randn(*s, dtype=torch.bfloat16) * 1.6)(D, Hq * Dh) * (D ** -0.5)),
            "wo": _w((lambda *s: torch.randn(*s, dtype=torch.bfloat16) * 0.4)(Hq * Dh, D) * ((Hq * Dh) ** -0.5)),
        }
    _A_in = _A_setup()

    def _B_setup():
        B, S, D, F = 1, 1, 448, 1792
        return {
            "x": _w((lambda *s: torch.randn(*s, dtype=torch.bfloat16) * 0.05)(B, S, D)),
            "w1": _w((lambda *s: torch.randn(*s, dtype=torch.bfloat16) * 0.8)(D, F) * (D ** -0.5)),
            "b1": _w((lambda *s: torch.randn(*s, dtype=torch.bfloat16) * 0.2)(F)),
            "w2": _w((lambda *s: torch.randn(*s, dtype=torch.bfloat16) * 0.1)(F, D) * (F ** -0.5)),
        }
    _B_in = _B_setup()

    return {
        "A_x": _A_in["x"],
        "A_k_cache": _A_in["k_cache"],
        "A_v_cache": _A_in["v_cache"],
        "A_wq": _A_in["wq"],
        "A_wo": _A_in["wo"],
        "B_x": _B_in["x"],
        "B_w1": _B_in["w1"],
        "B_b1": _B_in["b1"],
        "B_w2": _B_in["w2"],
    }

def reference(A_x, A_k_cache, A_v_cache, A_wq, A_wo, B_x, B_w1, B_b1, B_w2):
    def _A_ref(x, k_cache, v_cache, wq, wo):
        B, Sq, D = x.shape
        Hq, Dh = 16, 256
        Hkv, Sk = k_cache.shape[1], k_cache.shape[2]
        W = min(4096, max(256, Sk // 4))
        rep = Hq // Hkv
        q = (lambda x, *d: x.permute(*d))((x @ wq).reshape(B, Sq, Hq, Dh), 0, 2, 1, 3)
        k = (lambda x, n, axis: torch.repeat_interleave(x, n, dim=axis))(k_cache[:, :, Sk - W:, :], rep, axis=1)
        v = (lambda x, n, axis: torch.repeat_interleave(x, n, dim=axis))(v_cache[:, :, Sk - W:, :], rep, axis=1)
        scores = torch.einsum("bhqd,bhkd->bhqk", q, k) * (Dh ** -0.5)
        p = _softmax(scores, axis=-1)
        o = torch.einsum("bhqk,bhkd->bhqd", p, v)
        return (lambda x, *d: x.permute(*d))(o, 0, 2, 1, 3).reshape(B, Sq, Hq * Dh) @ wo

    def _B_ref(x, w1, b1, w2):
        h = torch.einsum("bsd,df->bsf", x, w1) + b1
        sp = torch.log1p(torch.exp(-torch.abs(h))) + torch.where(h > 0, h, torch.zeros_like(h))
        act = h * torch.tanh(sp)
        return torch.einsum("bsf,fd->bsd", act, w2)

    x = A_x
    h = x + _A_ref(_layernorm(x, axis=-1), A_k_cache, A_v_cache, A_wq, A_wo)
    h2 = h + _B_ref(_layernorm(h, axis=-1), B_w1, B_b1, B_w2)
    return h2
```

```python
import re

_REG = re.compile(r'^(-|abs\(|\|)?([vsa])(\d+)\)?\|?$')
_RNG = re.compile(r'^([vsa])\[(\d+):(\d+)\]$')

def regs_of(op):
    op = op.strip()
    if op in ('vcc',):
        return {('s', 'vcc')}
    if op in ('exec',):
        return {('s', 'exec')}
    if op == 'm0':
        return {('s', 'm0')}
    m = _RNG.match(op)
    if m:
        return {(m.group(1), i) for i in range(int(m.group(2)), int(m.group(3)) + 1)}
    o = op
    o = o.replace('-', '').replace('abs(', '').replace(')', '').replace('|', '')
    m = re.match(r'^([vsa])(\d+)$', o)
    if m:
        return {(m.group(1), int(m.group(2)))}
    return set()

TRANS = ('v_exp_f32', 'v_log_f32', 'v_rcp_f32', 'v_rsq_f32', 'v_sqrt_f32', 'v_sin_f32', 'v_cos_f32')

class Ins:
    __slots__ = ('text', 'op', 'kind', 'w', 'r', 'slots', 'A', 'B', 'C', 'D', 'dpp', 'storedata', 'lanesel', 'sread')

def split_ops(s):
    out, depth, cur = [], 0, ''
    for ch in s:
        if ch in '[(':
            depth += 1
        if ch in '])':
            depth -= 1
        if ch == ',' and depth == 0:
            out.append(cur.strip()); cur = ''
        else:
            cur += ch
    if cur.strip():
        out.append(cur.strip())
    return out

def parse(text):
    ins = Ins()
    ins.text = text
    t = text.split(';')[0].strip()
    parts = t.split(None, 1)
    op = parts[0]
    rest = parts[1] if len(parts) > 1 else ''
    ins.op = op
    ins.slots = 1
    ins.w, ins.r = set(), set()
    ins.A = ins.B = ins.C = ins.D = None
    ins.dpp = False
    ins.storedata = set()
    ins.lanesel = set()
    ins.sread = set()
    ops = split_ops(rest)
    mods = ''
    if ops:
        sp = ops[-1].split(None, 1)
        if len(sp) > 1:
            ops[-1] = sp[0]; mods = sp[1]
    if op == 's_nop':
        ins.kind = 'nop'; ins.slots = int(ops[0], 0) + 1
        return ins
    if op.startswith('v_mfma'):
        ins.kind = 'sgemm' if op.endswith('_f32') and ('x4_f32' in op or 'x2_f32' in op) else 'xdl'
        ins.D, ins.A, ins.B, ins.C = [regs_of(o) for o in ops[:4]]
        ins.w = set(ins.D); ins.r = ins.A | ins.B | ins.C
        return ins
    if op.startswith('v_'):
        ins.kind = 'valu'
        if 'quad_perm' in mods or 'row_' in mods or 'wave_' in mods or op.endswith('_dpp'):
            ins.dpp = True
        if op.startswith('v_permlane') and 'swap' in op:
            ins.w = regs_of(ops[0]) | regs_of(ops[1]); ins.r = set(ins.w)
            return ins
        ins.w = regs_of(ops[0])
        srcs = ops[1:]
        if op.startswith(('v_add_co', 'v_sub_co', 'v_addc_co', 'v_subb_co')):
            ins.w |= regs_of(ops[1]); srcs = ops[2:]
        for o in srcs:
            ins.r |= regs_of(o)
        if op.startswith(('v_fmac', 'v_writelane')) or ins.dpp:
            ins.r |= regs_of(ops[0])
        if op.startswith('v_cndmask') and len(ops) == 3:
            ins.r |= {('s', 'vcc')}
        if op.startswith(('v_readlane', 'v_writelane')):
            ins.lanesel = regs_of(ops[2])
        ins.sread = {x for x in ins.r if x[0] == 's'}
        return ins
    if op.startswith(('buffer_', 'global_', 'flat_')):
        ins.kind = 'vmem'
        allr = set()
        lds = re.search(r'\blds\b', mods) is not None or '_lds_' in op
        if 'load' in op and not lds:
            ins.w = regs_of(ops[0])
            for o in ops[1:]:
                ins.r |= regs_of(o)
        else:
            for o in ops:
                ins.r |= regs_of(o)
            if 'store' in op and ('x3' in op or 'x4' in op):
                ins.storedata = regs_of(ops[0]) if op.startswith('buffer_') else regs_of(ops[1])
            if lds:
                ins.r |= {('s', 'm0')}
        ins.sread = {x for x in ins.r if x[0] == 's'}
        return ins
    if op.startswith('ds_'):
        ins.kind = 'ds'
        if op.startswith(('ds_read', 'ds_bpermute', 'ds_permute', 'ds_swizzle')):
            ins.w = regs_of(ops[0])
            for o in ops[1:]:
                ins.r |= regs_of(o)
        else:
            for o in ops:
                ins.r |= regs_of(o)
        return ins
    if op.startswith('s_'):
        ins.kind = 'salu'
        if op.startswith(('s_cmp', 's_cbranch', 's_branch', 's_waitcnt', 's_barrier', 's_endpgm', 's_sleep', 's_setprio', 's_bitcmp')):
            for o in ops:
                ins.r |= regs_of(o)
        else:
            if ops:
                ins.w = regs_of(ops[0])
            for o in ops[1:]:
                ins.r |= regs_of(o)
            if 'saveexec' in op:
                ins.w |= {('s', 'exec')}
        return ins
    raise ValueError('cannot parse: ' + text)

def need(p, c):
    n = 0
    vw = {x for x in p.w if x[0] in 'va'}
    sw = {x for x in p.w if x[0] == 's'}
    if p.kind == 'valu':
        if c.kind in ('xdl', 'sgemm') and vw & c.r:
            n = max(n, 2)
        if c.kind == 'valu':
            if c.dpp and vw & c.r:
                n = max(n, 2)
            if c.op.startswith('v_permlane') and vw & c.r:
                n = max(n, 2)
            if p.op.replace('_e32', '').replace('_e64', '') in TRANS and vw & c.r:
                n = max(n, 1)
            if c.op.startswith(('v_readlane', 'v_readfirstlane')) and vw & c.r:
                n = max(n, 1)
            if sw & c.sread:
                n = max(n, 2)
            if sw & c.lanesel:
                n = max(n, 4)
        if c.kind == 'vmem' and sw & c.sread:
            n = max(n, 5)
        if p.op.replace('_e32', '').replace('_e64', '') in TRANS and c.kind in ('vmem', 'ds') and vw & c.r:
            n = max(n, 1)
    if p.kind in ('xdl', 'sgemm'):
        passes = 4 if p.kind == 'xdl' else 8
        if p.kind == 'xdl' and '32x32' in p.op:
            passes = 8
        if p.kind == 'xdl':
            t_c_ovl = {4: 6, 8: 10}[passes]; t_ab = {4: 8, 8: 12}[passes]; t_v = {4: 8, 8: 12}[passes]
        else:
            t_c_ovl = {8: 8, 16: 16}[passes]; t_ab = {8: 10, 16: 18}[passes]; t_v = {8: 10, 16: 18}[passes]
        if c.kind in ('xdl', 'sgemm'):
            if p.D & (c.A | c.B):
                n = max(n, t_ab)
            if p.D & c.C:
                if c.C == p.D and c.op == p.op:
                    pass
                else:
                    n = max(n, t_c_ovl)
            if p.D & c.D and not (c.C == p.D and c.op == p.op):
                n = max(n, t_v)
        else:
            if p.D & (c.r | c.w):
                n = max(n, t_v)
            if p.kind == 'xdl' and c.kind == 'valu' and p.C & c.w:
                n = max(n, {4: 3, 8: 7}[passes])
    if p.kind == 'vmem' and p.storedata:
        if p.storedata & c.w:
            n = max(n, 2)
    if p.kind == 'salu' and ('s', 'm0') in p.w and c.kind == 'vmem' and ('s', 'm0') in c.r:
        n = max(n, 1)
    return n

class Asm:
    def __init__(self):
        self.lines = []
        self.hist = []
        self.nlab = 0

    def raw(self, text):
        self.lines.append(text)

    def comment(self, c):
        self.lines.append('    ; ' + c)

    def label(self, name, barrier=True):
        self.lines.append(name + ':')

    def newlabel(self, base='L'):
        self.nlab += 1
        return '%s_%d' % (base, self.nlab)

    def flush(self, n=None):
        self.hist = []

    def __call__(self, text):
        ins = parse(text)
        dist = 0
        req = 0
        for p in reversed(self.hist):
            if dist > 20:
                break
            n = need(p, ins)
            if n - dist > req:
                req = n - dist
            dist += p.slots
        if ins.op.startswith(('s_cbranch', 's_branch')):
            dist = 0
            for p in reversed(self.hist):
                if dist > 20:
                    break
                worst = 0
                if p.kind == 'xdl': worst = 12 if '32x32' in p.op else 8
                elif p.kind == 'sgemm': worst = 10
                elif p.kind == 'valu': worst = 5 if any(x[0] == 's' for x in p.w) and not p.op.startswith('v_cmp') else 2
                elif p.kind == 'vmem' and p.storedata: worst = 2
                if worst - dist - 1 > req:
                    req = worst - dist - 1
                dist += p.slots
        while req > 0:
            k = min(req, 16)
            nop = parse('s_nop %d' % (k - 1))
            self.lines.append('    s_nop %d' % (k - 1))
            self.hist.append(nop)
            req -= k
        self.lines.append('    ' + text)
        self.hist.append(ins)
        if len(self.hist) > 40:
            self.hist = self.hist[-40:]

    def text(self):
        return '\n'.join(self.lines) + '\n'
```

```python
import sys
from asmlib import Asm
NAME = "sequential_preLN__sliding_block_cached__dense_activation_mish__decode"

class Cfg:
    stamps = False
    nt = True
    cons_major = True
    lds_bytes = 32768
    timeout = 200000
for arg in sys.argv[2:]:
    k, v = arg.split('=')
    setattr(Cfg, k, type(getattr(Cfg, k))(int(v)))

NT = " nt" if Cfg.nt else ""
EPOCH = 0x0
E1 = 0x1000
E3B = 0x5000
E2 = 0x10000
E3A = 0x90000
E4 = 0x110000
STAMP = 0x200000
WS_SIZE = 0x300000
if Cfg.cons_major:
    SG, SP = 4096, 16
else:
    SG, SP = 16, 2048
L_WQ = 0
L_W1 = 14336
L_Q = 21504
L_O = 22528
L_ML = 30720
assert L_ML + 2048 <= Cfg.lds_bytes

LOG2E = 1.4426950408889634
import struct
def f32(x):
    return "0x%08x" % struct.unpack('<I', struct.pack('<f', x))[0]

a = Asm()
a.raw("; @launch grid=(256,1,1) block=(320,1,1) lds=%d" % Cfg.lds_bytes)
a.raw('.amdgcn_target "amdgcn-amd-amdhsa--gfx950"\n.text\n.globl %s_kernel\n.p2align 8\n.type %s_kernel,@function\n%s_kernel:' % (NAME, NAME, NAME))

DPPM = " row_mask:0xf bank_mask:0xf"
nstamp = [0]
def stamp(i):
    if Cfg.stamps:
        a("s_memrealtime s[%d:%d]" % (64 + 2 * i, 65 + 2 * i))

def srd(dst, ptr, nbytes):
    a("s_mov_b32 s%d, s%d" % (dst, ptr))
    a("s_and_b32 s%d, s%d, 0xffff" % (dst + 1, ptr + 1))
    a("s_mov_b32 s%d, %d" % (dst + 2, nbytes))
    a("s_mov_b32 s%d, 0x20000" % (dst + 3))

def setexec(mask):
    if mask == -1:
        a("s_mov_b64 exec, -1")
    else:
        a("s_mov_b32 exec_lo, 0x%08x" % (mask & 0xffffffff))
        a("s_mov_b32 exec_hi, 0x%08x" % (mask >> 32))

def setmask(s, mask):
    a("s_mov_b32 s%d, 0x%08x" % (s, mask & 0xffffffff))
    a("s_mov_b32 s%d, 0x%08x" % (s + 1, mask >> 32))

def bfly(op, v, t, which):
    a("v_mov_b32 v%d, v%d" % (t, v))
    a("v_permlane%d_swap_b32 v%d, v%d" % (which, v, t))
    a("%s v%d, v%d, v%d" % (op, v, v, t))

def bf16r(dst, src):
    a("v_cvt_pk_bf16_f32 v%d, v%d, v%d" % (dst, src, src))
    a("v_and_b32 v%d, 0xffff0000, v%d" % (dst, dst))

def timeout_branch(loop):
    a("s_sub_u32 s62, s62, 1")
    a("s_cbranch_scc1 L_end")
    a("s_branch %s" % loop)

S_ODD = 56
S_B1 = 58
S_HI = 60

def layernorm(d, out, valid, T):
    f = [T + k for k in range(8)]
    e = [T + 8 + k for k in range(8)]
    s1, s2, t1, t2 = T + 16, T + 17, T + 18, T + 19
    for k in range(4):
        a("v_lshlrev_b32 v%d, 16, v%d" % (f[2 * k], d[k]))
        a("v_and_b32 v%d, 0xffff0000, v%d" % (f[2 * k + 1], d[k]))
    a("v_mov_b32 v%d, 0" % s1)
    a("v_mov_b32 v%d, 0" % s2)
    a("v_readlane_b32 s63, v%d, 0" % f[0])
    for k in range(4):
        a("v_mov_b32 v%d, 0" % (out + k))
    setexec(valid)
    for k in range(8):
        a("v_subrev_f32 v%d, s63, v%d" % (e[k], f[k]))
    a("v_add_f32 v%d, v%d, v%d" % (s1, e[0], e[1]))
    a("v_mul_f32 v%d, v%d, v%d" % (s2, e[0], e[0]))
    a("v_add_f32 v%d, v%d, v%d" % (t1, e[2], e[3]))
    a("v_mul_f32 v%d, v%d, v%d" % (t2, e[1], e[1]))
    for k in range(4, 8):
        a("v_add_f32 v%d, v%d, v%d" % (s1 if k % 2 == 0 else t1, s1 if k % 2 == 0 else t1, e[k]))
    for k in range(2, 8):
        a("v_fmac_f32 v%d, v%d, v%d" % (s2 if k % 2 == 0 else t2, e[k], e[k]))
    a("v_add_f32 v%d, v%d, v%d" % (s1, s1, t1))
    a("v_add_f32 v%d, v%d, v%d" % (s2, s2, t2))
    setexec(-1)
    for r in (8, 4, 2, 1):
        a("v_add_f32_dpp v%d, v%d, v%d row_ror:%d%s" % (s1, s1, s1, r, DPPM))
        a("v_add_f32_dpp v%d, v%d, v%d row_ror:%d%s" % (s2, s2, s2, r, DPPM))
    for which in (16, 32):
        a("v_mov_b32 v%d, v%d" % (t1, s1))
        a("v_mov_b32 v%d, v%d" % (t2, s2))
        a("v_permlane%d_swap_b32 v%d, v%d" % (which, s1, t1))
        a("v_permlane%d_swap_b32 v%d, v%d" % (which, s2, t2))
        a("v_add_f32 v%d, v%d, v%d" % (s1, s1, t1))
        a("v_add_f32 v%d, v%d, v%d" % (s2, s2, t2))
    a("v_mul_f32 v%d, %s, v%d" % (s1, f32(1.0 / 448), s1))
    a("v_mul_f32 v%d, %s, v%d" % (s2, f32(1.0 / 448), s2))
    a("v_fma_f32 v%d, -v%d, v%d, v%d" % (s2, s1, s1, s2))
    a("v_add_f32 v%d, s63, v%d" % (s1, s1))
    a("v_max_f32 v%d, 0, v%d" % (s2, s2))
    a("v_cvt_pk_bf16_f32 v%d, v%d, v%d" % (t1, s1, s2))
    a("v_and_b32 v%d, 0xffff0000, v%d" % (s2, t1))
    a("v_lshlrev_b32 v%d, 16, v%d" % (s1, t1))
    a("v_add_f32 v%d, %s, v%d" % (s2, f32(1e-5), s2))
    for k in range(8):
        a("v_sub_f32 v%d, v%d, v%d" % (e[k], f[k], s1))
    bf16r(s2, s2)
    a("v_sqrt_f32 v%d, v%d" % (s2, s2))
    for k in range(4):
        a("v_cvt_pk_bf16_f32 v%d, v%d, v%d" % (f[k], e[2 * k], e[2 * k + 1]))
    bf16r(s2, s2)
    a("v_rcp_f32 v%d, v%d" % (s2, s2))
    for k in range(4):
        a("v_lshlrev_b32 v%d, 16, v%d" % (e[2 * k], f[k]))
        a("v_and_b32 v%d, 0xffff0000, v%d" % (e[2 * k + 1], f[k]))
    for k in range(8):
        a("v_mul_f32 v%d, v%d, v%d" % (e[k], e[k], s2))
    setexec(valid)
    for k in range(4):
        a("v_cvt_pk_bf16_f32 v%d, v%d, v%d" % (out + k, e[2 * k], e[2 * k + 1]))
    setexec(-1)

def quad_transpose_reduce(v, dst, T):
    k0, g0, k1, g1 = T, T + 1, T + 2, T + 3
    a("v_cndmask_b32 v%d, v%d, v%d, s[%d:%d]" % (g0, v[1], v[0], S_ODD, S_ODD + 1))
    a("v_cndmask_b32 v%d, v%d, v%d, s[%d:%d]" % (g1, v[3], v[2], S_ODD, S_ODD + 1))
    a("v_cndmask_b32 v%d, v%d, v%d, s[%d:%d]" % (k0, v[0], v[1], S_ODD, S_ODD + 1))
    a("v_cndmask_b32 v%d, v%d, v%d, s[%d:%d]" % (k1, v[2], v[3], S_ODD, S_ODD + 1))
    a("v_add_f32_dpp v%d, v%d, v%d quad_perm:[1,0,3,2]%s" % (k0, g0, k0, DPPM))
    a("v_add_f32_dpp v%d, v%d, v%d quad_perm:[1,0,3,2]%s" % (k1, g1, k1, DPPM))
    a("v_cndmask_b32 v%d, v%d, v%d, s[%d:%d]" % (g0, k1, k0, S_B1, S_B1 + 1))
    a("v_cndmask_b32 v%d, v%d, v%d, s[%d:%d]" % (dst, k0, k1, S_B1, S_B1 + 1))
    a("v_add_f32_dpp v%d, v%d, v%d quad_perm:[2,3,0,1]%s" % (dst, g0, dst, DPPM))

V_I16, V_GRP, V_LANE = 1, 2, 3
V_K, V_V, V_WO, V_W2, V_QF, V_W1F = 32, 64, 96, 112, 120, 152
V_M, V_T = 180, 184
V_TA, V_TB, V_T8, V_ONE = 188, 189, 190, 191
V_B1, V_X = 192, 193
V_H = 197
V_ACC = 204
V_G = 224
TMP = 4

if Cfg.stamps:
    for i in range(16):
        a("s_mov_b64 s[%d:%d], 0" % (64 + 2 * i, 65 + 2 * i))
stamp(0)
a("s_load_dwordx16 s[4:19], s[0:1], 0")
a("s_load_dwordx8 s[20:27], s[0:1], 64")
a("s_cmp_ge_u32 s2, 256")
a("s_cbranch_scc1 L_exit")
a("v_lshrrev_b32 v4, 6, v0")
a("v_and_b32 v%d, 63, v0" % V_LANE)
a("v_and_b32 v%d, 15, v0" % V_I16)
a("v_bfe_u32 v%d, v0, 4, 2" % V_GRP)
a("v_readfirstlane_b32 s34, v4")
a("s_and_b32 s32, s2, 7")
a("s_lshr_b32 s33, s2, 3")
a("s_mul_i32 s35, s32, 28")
a("s_add_u32 s35, s35, s33")
a("s_mov_b32 s62, %d" % Cfg.timeout)
setmask(S_ODD, 0xAAAAAAAAAAAAAAAA)
setmask(S_B1, 0xCCCCCCCCCCCCCCCC)
setmask(S_HI, 0xFFFFFFFF00000000)
a("v_mov_b32 v%d, 1.0" % V_ONE)
a("s_waitcnt lgkmcnt(0)")
a("s_load_dwordx4 s[28:31], s[26:27], %d" % EPOCH)
srd(36, 26, WS_SIZE)
a("s_cmp_eq_u32 s34, 4")
a("s_cbranch_scc1 L_aux")

def make_tags():
    a("s_waitcnt lgkmcnt(0)")
    for k in range(4):
        a("s_add_u32 s%d, s%d, 1" % (28 + k, 28 + k))
    for k in range(4):
        a("s_and_b32 s63, s%d, 0xfff" % (28 + k))
        a("v_mov_b32 v%d, s63" % (V_T + k))
    a("v_mov_b32 v%d, s30" % V_TA)
    a("v_mov_b32 v%d, s31" % V_TB)
    a("s_and_b32 s63, s30, 0xff")
    a("v_mov_b32 v%d, s63" % V_T8)

srd(40, 6, 33554432)
srd(44, 8, 33554432)
a("s_lshl_b32 s48, s32, 22")
a("s_lshl_b32 s49, s33, 15")
a("s_add_u32 s48, s48, s49")
a("s_lshl_b32 s49, s34, 13")
a("s_add_u32 s48, s48, s49")
a("s_add_u32 s48, s48, %d" % (6144 * 512))
a("v_lshlrev_b32 v4, 9, v%d" % V_I16)
a("v_lshl_add_u32 v4, v%d, 4, v4" % V_GRP)
a("v_lshlrev_b32 v5, 11, v%d" % V_GRP)
a("v_lshl_add_u32 v5, v%d, 4, v5" % V_I16)
for s in range(8):
    a("buffer_load_dwordx4 v[%d:%d], v4, s[40:43], s48 offen offset:%d%s" % (V_K + 4 * s, V_K + 4 * s + 3, 64 * s, NT))
for r in range(4):
    for h in range(2):
        n = 2 * r + h
        a("buffer_load_dwordx4 v[%d:%d], v5, s[44:47], s48 offen offset:%d%s" % (V_V + 4 * n, V_V + 4 * n + 3, 512 * r + 256 * h, NT))
srd(40, 12, 4096 * 896)
srd(44, 20, 1792 * 896)
a("s_lshl_b32 s48, s32, 9")
a("s_bfe_u32 s49, s33, 0x10001")
a("s_lshl_b32 s49, s49, 8")
a("s_add_u32 s48, s48, s49")
a("s_lshr_b32 s49, s33, 4")
a("s_lshl_b32 s49, s49, 7")
a("s_add_u32 s48, s48, s49")
a("s_bfe_u32 s49, s33, 0x20002")
a("s_lshl_b32 s49, s49, 5")
a("s_add_u32 s48, s48, s49")
a("s_and_b32 s49, s33, 1")
a("s_lshl_b32 s49, s49, 2")
a("s_add_u32 s48, s48, s49")
a("s_mul_i32 s48, s48, 896")
a("s_lshl_b32 s49, s34, 8")
a("s_add_u32 s48, s48, s49")
a("s_add_u32 s50, s48, 7168")
a("s_add_u32 s51, s48, %d" % (2 * 7168))
a("s_add_u32 s52, s48, %d" % (3 * 7168))
a("s_mul_i32 s53, s35, %d" % (8 * 896))
a("s_add_u32 s53, s53, s49")
a("v_mul_u32_u24 v4, 896, v%d" % V_GRP)
a("v_lshl_add_u32 v4, v%d, 4, v4" % V_I16)
a("v_and_b32 v6, 1, v%d" % V_GRP)
a("v_lshlrev_b32 v6, 2, v6")
a("v_and_b32 v7, 2, v%d" % V_GRP)
a("v_add_u32 v6, v6, v7")
a("v_mul_u32_u24 v5, 896, v6")
a("v_lshl_add_u32 v5, v%d, 4, v5" % V_I16)
a("s_cmp_lg_u32 s34, 3")
a("s_cbranch_scc1 L_nomask")
setexec(0x00FF00FF00FF00FF)
a.label("L_nomask")
for q, so in enumerate((48, 50, 51, 52)):
    a("buffer_load_dwordx4 v[%d:%d], v4, s[40:43], s%d offen%s" % (V_WO + 4 * q, V_WO + 4 * q + 3, so, NT))
a("s_cmp_ge_u32 s33, 28")
a("s_cbranch_scc1 L_now2")
for q in range(2):
    a("buffer_load_dwordx4 v[%d:%d], v5, s[44:47], s53 offen offset:%d%s" % (V_W2 + 4 * q, V_W2 + 4 * q + 3, 896 * q, NT))
setexec(-1)
srd(44, 18, 1792 * 2)
a("v_and_b32 v7, 1, v%d" % V_I16)
a("v_add_u32 v6, v6, v7")
a("v_lshlrev_b32 v6, 1, v6")
a("s_lshl_b32 s53, s35, 4")
a("buffer_load_ushort v%d, v6, s[44:47], s53 offen" % V_B1)
a("s_branch L_pre2")
a.label("L_now2")
setexec(-1)
a("s_sub_u32 s54, s2, 224")
a("s_lshl_b32 s54, s54, 2")
a("s_add_u32 s54, s54, s34")
a("s_andn2_b32 s55, s54, 7")
a("s_lshl_b32 s55, s55, 2")
a("s_and_b32 s53, s54, 7")
a("s_add_u32 s55, s55, s53")
a("s_lshl_b32 s55, s55, 1")
srd(44, 4, 896)
a("v_mov_b32 v6, 0")
for r in range(4):
    a("buffer_load_ushort v%d, v6, s[44:47], s55 offen offset:%d" % (V_X + r, 16 * r))
a.label("L_pre2")
stamp(1)
a("v_and_b32 v6, 1, v%d" % V_I16)
a("v_lshlrev_b32 v6, 4, v6")
a("v_mov_b32 v7, 0xffff")
a("v_lshlrev_b32 v7, v6, v7")
a("v_bfe_u32 v6, v%d, 1, 2" % V_I16)
for rho in range(4):
    a("v_cmp_eq_u32 vcc, %d, v6" % rho)
    a("v_cndmask_b32 v%d, 0, v7, vcc" % (V_M + rho))
make_tags()
a("v_lshrrev_b32 v6, 3, v%d" % V_I16)
a("v_lshlrev_b32 v6, 9, v6")
a("v_lshl_add_u32 v6, v%d, 4, v6" % V_GRP)
a("v_bfe_u32 v7, v%d, 1, 1" % V_I16)
a("v_mul_u32_u24 v7, %d, v7" % (224 * 16))
a("v_lshl_add_u32 v7, v%d, 5, v7" % V_GRP)
a("v_lshrrev_b32 v8, 2, v%d" % V_I16)
a("v_lshl_add_u32 v7, v8, 7, v7")
a("v_and_b32 v8, 1, v%d" % V_I16)
a("v_lshl_add_u32 v7, v8, 3, v7")
a("s_barrier")
stamp(2)
for s in range(8):
    a("ds_read_b128 v[%d:%d], v6 offset:%d" % (V_QF + 4 * s, V_QF + 4 * s + 3, L_Q + 64 * s))
a("s_waitcnt vmcnt(%d) lgkmcnt(0)" % 15)
S = V_ACC
for s in range(8):
    a("v_mfma_f32_16x16x32_bf16 v[%d:%d], v[%d:%d], v[%d:%d], %s" % (S, S + 3, V_K + 4 * s, V_K + 4 * s + 3, V_QF + 4 * s, V_QF + 4 * s + 3, "0" if s == 0 else "v[%d:%d]" % (S, S + 3)))
for m in range(7):
    for u in range(2):
        a("ds_read_b64_tr_b16 v[%d:%d], v7 offset:%d" % (V_W1F + 4 * m + 2 * u, V_W1F + 4 * m + 2 * u + 1, L_W1 + 512 * m + 16 * u))
a("v_cvt_pk_bf16_f32 v8, v%d, v%d" % (S, S + 1))
a("v_cvt_pk_bf16_f32 v9, v%d, v%d" % (S + 2, S + 3))
a("v_lshlrev_b32 v10, 16, v8")
a("v_and_b32 v11, 0xffff0000, v8")
a("v_lshlrev_b32 v12, 16, v9")
a("v_and_b32 v13, 0xffff0000, v9")
a("v_max3_f32 v14, v10, v11, v12")
a("v_max_f32 v14, v14, v13")
bfly("v_max_f32", 14, 15, 16)
bfly("v_max_f32", 14, 15, 32)
a("s_mov_b32 s63, %s" % f32(0.0625 * LOG2E))
a("v_mul_f32 v14, s63, v14")
for r in range(4):
    a("v_fma_f32 v%d, v%d, s63, -v14" % (10 + r, 10 + r))
for r in range(4):
    a("v_exp_f32 v%d, v%d" % (10 + r, 10 + r))
for r in range(4):
    a("v_cvt_pk_bf16_f32 v%d, v%d, v%d" % (16 + r, 10 + r, 10 + r))
O = V_ACC + 4
BB = V_QF
for r in range(4):
    for rho in range(4):
        a("v_and_b32 v%d, v%d, v%d" % (BB + 4 * r + rho, 16 + r, V_M + rho))
a("v_add_f32 v15, v10, v11")
a("v_add_f32 v20, v12, v13")
a("v_add_f32 v15, v15, v20")
for r in range(4):
    a("s_waitcnt vmcnt(%d)" % (7 + 8 - 2 * (r + 1)))
    for h in range(2):
        n = 2 * r + h
        a("v_mfma_f32_16x16x32_bf16 v[%d:%d], v[%d:%d], v[%d:%d], %s" % (O + 4 * h, O + 4 * h + 3, V_V + 4 * n, V_V + 4 * n + 3, BB + 4 * r, BB + 4 * r + 3, "0" if r == 0 else "v[%d:%d]" % (O + 4 * h, O + 4 * h + 3)))
    if r == 0:
        bfly("v_add_f32", 15, 20, 16)
    if r == 1:
        bfly("v_add_f32", 15, 20, 32)
a("s_lshl_b32 s63, s34, 11")
a("v_lshl_add_u32 v8, v%d, 4, s63" % V_LANE)
a("s_lshl_b32 s63, s34, 9")
a("v_lshl_add_u32 v9, v%d, 3, s63" % V_LANE)
a("ds_write_b64 v9, v[14:15] offset:%d" % L_ML)
a("ds_write_b128 v8, v[%d:%d] offset:%d" % (O, O + 3, L_O))
a("ds_write_b128 v8, v[%d:%d] offset:%d" % (O + 4, O + 7, L_O + 1024))
a("s_waitcnt lgkmcnt(0)")
a("s_barrier")
stamp(3)
a("s_cmp_ge_u32 s34, 2")
a("s_cbranch_scc1 L_e2")
a("s_lshl_b32 s63, s34, 10")
a("v_lshl_add_u32 v8, v%d, 4, s63" % V_LANE)
a("v_lshlrev_b32 v9, 3, v%d" % V_LANE)
for w in range(4):
    a("ds_read_b64 v[%d:%d], v9 offset:%d" % (10 + 2 * w, 11 + 2 * w, L_ML + 512 * w))
for w in range(4):
    a("ds_read_b128 v[%d:%d], v8 offset:%d" % (V_G + 4 * w, V_G + 4 * w + 3, L_O + 2048 * w))
a("s_waitcnt lgkmcnt(4)" if not Cfg.stamps else "s_waitcnt lgkmcnt(0)")
a("v_max3_f32 v18, v10, v12, v14")
a("v_max_f32 v18, v18, v16")
for w in range(4):
    a("v_sub_f32 v%d, v%d, v18" % (10 + 2 * w, 10 + 2 * w))
for w in range(4):
    a("v_exp_f32 v%d, v%d" % (10 + 2 * w, 10 + 2 * w))
a("v_mul_f32 v19, v10, v11")
for w in range(1, 4):
    a("v_fmac_f32 v19, v%d, v%d" % (10 + 2 * w, 11 + 2 * w))
a("v_rcp_f32 v20, v19")
a("v_log_f32 v21, v19")
a("s_waitcnt lgkmcnt(0)")
for r in range(4):
    a("v_mul_f32 v%d, v10, v%d" % (24 + r, V_G + r))
for w in range(1, 4):
    for r in range(4):
        a("v_fmac_f32 v%d, v%d, v%d" % (24 + r, 10 + 2 * w, V_G + 4 * w + r))
a("v_add_f32 v21, v21, v18")
for r in range(4):
    a("v_mul_f32 v%d, v%d, v20" % (24 + r, 24 + r))
a("v_cvt_pk_bf16_f32 v28, v24, v25")
a("v_cvt_pk_bf16_f32 v29, v26, v27")
a("s_movk_i32 s63, 0xff")
a("v_bfi_b32 v30, s63, v%d, v21" % V_T8)
a("v_mov_b32 v31, v%d" % V_TB)
a("s_lshl_b32 s48, s32, 5")
a("s_add_u32 s48, s48, s33")
a("s_lshl_b32 s48, s48, 11")
a("s_add_u32 s48, s48, %d" % E2)
a("buffer_store_dwordx4 v[28:31], v8, s[36:39], s48 offen sc1")
a.label("L_e2")
stamp(4)
a("v_and_b32 v8, 3, v%d" % V_LANE)
a("v_lshl_add_u32 v8, v%d, 2, v8" % V_GRP)
a("v_lshlrev_b32 v8, 11, v8")
a("v_bfe_u32 v9, v%d, 2, 2" % V_LANE)
a("v_lshl_add_u32 v8, v9, 4, v8")
a("s_lshl_b32 s48, s32, 16")
a("s_lshl_b32 s49, s33, 6")
a("s_add_u32 s48, s48, s49")
a("s_add_u32 s48, s48, %d" % E2)
a("s_add_u32 s49, s48, %d" % (16 * 2048))
a.label("L_e2poll")
a("buffer_load_dwordx4 v[%d:%d], v8, s[36:39], s48 offen sc1" % (V_G, V_G + 3))
a("buffer_load_dwordx4 v[%d:%d], v8, s[36:39], s49 offen sc1" % (V_G + 4, V_G + 7))
a("s_waitcnt vmcnt(0)")
a("v_xor_b32 v10, v%d, v%d" % (V_G + 2, V_T8))
a("v_xor_b32 v11, v%d, v%d" % (V_G + 6, V_T8))
a("v_xor_b32 v12, v%d, v%d" % (V_G + 3, V_TB))
a("v_xor_b32 v13, v%d, v%d" % (V_G + 7, V_TB))
a("v_or_b32 v14, v10, v11")
a("v_and_b32 v14, 0xff, v14")
a("v_or3_b32 v14, v14, v12, v13")
a("v_cmp_ne_u32 vcc, 0, v14")
a("s_cbranch_vccz L_e2ok")
timeout_branch("L_e2poll")
a.label("L_e2ok")
stamp(5)
a("v_max_f32 v14, v10, v11")
a("v_max_f32_dpp v14, v14, v14 quad_perm:[1,0,3,2]%s" % DPPM)
a("v_max_f32_dpp v14, v14, v14 quad_perm:[2,3,0,1]%s" % DPPM)
bfly("v_max_f32", 14, 15, 16)
bfly("v_max_f32", 14, 15, 32)
a("v_sub_f32 v10, v10, v14")
a("v_sub_f32 v11, v11, v14")
a("v_exp_f32 v10, v10")
a("v_exp_f32 v11, v11")
for t in range(2):
    a("v_lshlrev_b32 v%d, 16, v%d" % (16 + 4 * t, V_G + 4 * t))
    a("v_and_b32 v%d, 0xffff0000, v%d" % (17 + 4 * t, V_G + 4 * t))
    a("v_lshlrev_b32 v%d, 16, v%d" % (18 + 4 * t, V_G + 4 * t + 1))
    a("v_and_b32 v%d, 0xffff0000, v%d" % (19 + 4 * t, V_G + 4 * t + 1))
a("v_add_f32 v12, v10, v11")
for r in range(4):
    a("v_mul_f32 v%d, v%d, v10" % (16 + r, 16 + r))
a("v_add_f32_dpp v12, v12, v12 quad_perm:[1,0,3,2]%s" % DPPM)
for r in range(4):
    a("v_fmac_f32 v%d, v%d, v11" % (16 + r, 20 + r))
a("v_add_f32_dpp v12, v12, v12 quad_perm:[2,3,0,1]%s" % DPPM)
quad_transpose_reduce([16, 17, 18, 19], 13, 24)
a("v_mfma_f32_16x16x4_f32 v[%d:%d], v12, v%d, 0" % (V_ACC + 4, V_ACC + 7, V_ONE))
a("v_mfma_f32_16x16x4_f32 v[%d:%d], v13, v%d, 0" % (V_ACC, V_ACC + 3, V_ONE))
a("v_rcp_f32 v12, v%d" % (V_ACC + 4))
for r in range(4):
    a("v_mul_f32 v%d, v%d, v12" % (16 + r, V_ACC + r))
for r in range(4):
    a("v_cvt_pk_bf16_f32 v%d, v%d, v%d" % (16 + r, 16 + r, 16 + r))
for q in range(4):
    for rho in range(4):
        a("v_and_b32 v%d, v%d, v%d" % (BB + 4 * q + rho, 16 + q, V_M + rho))
A2 = V_ACC + 8
for q in range(4):
    a("v_mfma_f32_16x16x32_bf16 v[%d:%d], v[%d:%d], v[%d:%d], %s" % (A2, A2 + 3, V_WO + 4 * q, V_WO + 4 * q + 3, BB + 4 * q, BB + 4 * q + 3, "0" if q == 0 else "v[%d:%d]" % (A2, A2 + 3)))
a("v_lshl_add_u32 v8, v%d, 3, v%d" % (V_GRP, V_I16))
a("s_lshl_b32 s63, s34, 5")
a("v_add_u32 v8, s63, v8")
a("v_mul_u32_u24 v%d, %d, v8" % (V_H + 4, SG))
V_PUB = V_H + 4
a("s_mul_i32 s48, s2, %d" % SP)
a("s_add_u32 s49, s48, %d" % E3A)
a("s_movk_i32 s63, 0xfff")
def publish(acc, soff):
    for r in range(4):
        a("v_bfi_b32 v%d, s63, v%d, v%d" % (28 + r, V_T + r, acc + r))
    lab = a.newlabel("L_pm")
    setexec(0x00FF00FF00FF00FF)
    a("s_cmp_lg_u32 s34, 3")
    a("s_cbranch_scc1 %s" % lab)
    a("s_mov_b32 exec_hi, 0")
    a.label(lab)
    a("buffer_store_dwordx4 v[28:31], v%d, s[36:39], s%d offen sc1" % (V_PUB, soff))
    setexec(-1)
publish(A2, 49)
stamp(6)
a("s_cmp_ge_u32 s33, 28")
a("s_cbranch_scc1 L_red")

a("v_lshrrev_b32 v8, 3, v%d" % V_I16)
a("v_sub_u32 v8, v%d, v8" % V_I16)
a("v_min_u32 v8, 13, v8")
a("v_lshlrev_b32 v8, 7, v8")
a("v_lshl_add_u32 v8, v%d, 5, v8" % V_GRP)
a("s_mov_b32 s50, %d" % E3B)
a("v_lshlrev_b32 v%d, 16, v%d" % (V_B1, V_B1))
a.label("L_e3bpoll")
a("buffer_load_dwordx4 v[%d:%d], v8, s[36:39], s50 offen sc1" % (V_G, V_G + 3))
a("buffer_load_dwordx4 v[%d:%d], v8, s[36:39], s50 offen offset:16 sc1" % (V_G + 4, V_G + 7))
a("s_waitcnt vmcnt(0)")
a("v_xor_b32 v10, v%d, v%d" % (V_G + 2, V_TA))
a("v_xor_b32 v11, v%d, v%d" % (V_G + 6, V_TA))
a("v_xor_b32 v12, v%d, v%d" % (V_G + 3, V_TB))
a("v_xor_b32 v13, v%d, v%d" % (V_G + 7, V_TB))
a("v_or_b32 v14, v10, v11")
a("v_or3_b32 v14, v14, v12, v13")
a("v_cmp_ne_u32 vcc, 0, v14")
a("s_cbranch_vccz L_e3bok")
timeout_branch("L_e3bpoll")
a.label("L_e3bok")
stamp(7)
AF = V_G + 8
layernorm([V_G, V_G + 1, V_G + 4, V_G + 5], AF, 0x7F7F7F7F7F7F7F7F, 8)
D1 = V_K
for m in range(7):
    a("v_mfma_f32_16x16x32_bf16 v[%d:%d], v[%d:%d], v[%d:%d], 0" % (D1 + 4 * m, D1 + 4 * m + 3, AF, AF + 3, V_W1F + 4 * m, V_W1F + 4 * m + 3))
a("v_mov_b32 v8, 0")
setexec(0x0000FF00000000FF)
a("v_add_f32 v8, v%d, v%d" % (D1 + 0, D1 + 4 + 1))
a("v_add_f32 v9, v%d, v%d" % (D1 + 8 + 2, D1 + 12 + 3))
a("v_add_f32 v8, v8, v9")
setexec(0xFF00000000FF0000)
a("v_add_f32 v8, v%d, v%d" % (D1 + 16, D1 + 20 + 1))
a("v_add_f32 v8, v8, v%d" % (D1 + 24 + 2))
setexec(-1)
a("v_add_f32_dpp v8, v8, v8 row_ror:8%s" % DPPM)
a("v_mfma_f32_16x16x4_f32 v[%d:%d], v8, v%d, 0" % (V_ACC, V_ACC + 3, V_ONE))
a("v_cndmask_b32 v8, v%d, v%d, s[%d:%d]" % (V_ACC, V_ACC + 1, S_ODD, S_ODD + 1))
a("v_cndmask_b32 v9, v%d, v%d, s[%d:%d]" % (V_ACC + 2, V_ACC + 3, S_ODD, S_ODD + 1))
a("v_cndmask_b32 v8, v8, v9, s[%d:%d]" % (S_HI, S_HI + 1))
bf16r(8, 8)
a("v_add_f32 v8, v8, v%d" % V_B1)
bf16r(8, 8)
a("v_mul_f32 v9, %s, abs(v8)" % "s63") if False else None
a("s_mov_b32 s63, %s" % f32(-LOG2E))
a("v_mul_f32 v9, s63, abs(v8)")
a("v_exp_f32 v9, v9")
bf16r(9, 9)
a("v_add_f32 v10, 1.0, v9")
a("v_add_f32 v11, -1.0, v10")
a("v_log_f32 v12, v10")
a("v_rcp_f32 v13, v11")
a("v_cmp_eq_f32 vcc, 0, v11")
a("v_mul_f32 v12, %s, v12" % f32(0.6931471805599453))
a("v_mul_f32 v13, v13, v9")
a("v_mul_f32 v12, v12, v13")
a("v_cndmask_b32 v12, v12, v9, vcc")
bf16r(12, 12)
a("v_max_f32 v13, 0, v8")
a("v_add_f32 v12, v12, v13")
bf16r(12, 12)
a("v_mul_f32 v13, %s, v12" % f32(-2.0 * LOG2E))
a("v_exp_f32 v13, v13")
a("v_mul_f32 v16, v12, v12")
a("v_add_f32 v14, 1.0, v13")
a("v_sub_f32 v15, 1.0, v13")
a("v_rcp_f32 v14, v14")
a("v_mul_f32 v16, %s, v16" % f32(-1.0 / 3.0))
a("v_cmp_gt_f32 vcc, %s, v12" % f32(2.0 ** -6))
a("v_fma_f32 v16, v16, v12, v12")
a("v_mul_f32 v14, v14, v15")
a("v_cndmask_b32 v14, v14, v16, vcc")
bf16r(14, 14)
a("v_mul_f32 v14, v14, v8")
a("v_cvt_pk_bf16_f32 v14, v14, v14")
for q in range(2):
    for rho in range(4):
        a("v_and_b32_dpp v%d, v14, v%d quad_perm:[%d,%d,%d,%d]%s" % (BB + 4 * q + rho, V_M + rho, q, q, 2 + q, 2 + q, DPPM))
for q in range(2):
    a("v_mfma_f32_16x16x32_bf16 v[%d:%d], v[%d:%d], v[%d:%d], %s" % (A2, A2 + 3, V_W2 + 4 * q, V_W2 + 4 * q + 3, BB + 4 * q, BB + 4 * q + 3, "0" if q == 0 else "v[%d:%d]" % (A2, A2 + 3)))
a("s_add_u32 s49, s48, %d" % E4)
a("s_movk_i32 s63, 0xfff")
publish(A2, 49)
stamp(8)
a("s_branch L_end")

a.label("L_red")
a("s_cmp_ge_u32 s54, 112")
a("s_cbranch_scc1 L_end")
a("v_mul_u32_u24 v8, %d, v%d" % (SP, V_LANE))
a("s_mul_i32 s50, s54, %d" % SG)
for r in range(4):
    a("v_lshlrev_b32 v%d, 16, v%d" % (V_X + r, V_X + r))
def reduce_gather(base, nprod, lab):
    for t in range(4):
        a("s_add_u32 s%d, s50, %d" % (40 + t, base + 64 * t * SP))
    last = nprod - 192
    if last < 64:
        for r in range(4):
            a("v_mov_b32 v%d, v%d" % (V_G + 12 + r, V_T + r))
    a.label(lab)
    for t in range(4):
        if t == 3 and last < 64:
            setexec((1 << last) - 1)
        a("buffer_load_dwordx4 v[%d:%d], v8, s[36:39], s%d offen sc1" % (V_G + 4 * t, V_G + 4 * t + 3, 40 + t))
    if last < 64:
        setexec(-1)
    a("s_waitcnt vmcnt(0)")
    for t in range(4):
        for r in range(4):
            a("v_xor_b32 v%d, v%d, v%d" % (12 + 4 * t + r, V_G + 4 * t + r, V_T + r))
    a("v_or3_b32 v9, v12, v13, v14")
    a("v_or3_b32 v10, v15, v16, v17")
    a("v_or3_b32 v11, v18, v19, v20")
    a("v_or3_b32 v9, v9, v21, v22")
    a("v_or3_b32 v10, v10, v23, v24")
    a("v_or3_b32 v11, v11, v25, v26")
    a("v_or3_b32 v9, v9, v10, v27")
    a("v_or_b32 v9, v9, v11")
    a("v_and_b32 v9, 0xfff, v9")
    a("v_cmp_ne_u32 vcc, 0, v9")
    a("s_cbranch_vccz %s_ok" % lab)
    timeout_branch(lab)
    a.label(lab + "_ok")
    for r in range(4):
        a("v_add_f32 v%d, v%d, v%d" % (12 + r, 12 + r, 16 + r))
        a("v_add_f32 v%d, v%d, v%d" % (20 + r, 20 + r, 24 + r))
    for r in range(4):
        a("v_add_f32 v%d, v%d, v%d" % (12 + r, 12 + r, 20 + r))
    quad_transpose_reduce([12, 13, 14, 15], 9, 16)
    a("v_add_f32_dpp v9, v9, v9 row_ror:4%s" % DPPM)
    a("v_add_f32_dpp v9, v9, v9 row_ror:8%s" % DPPM)
    a("v_mfma_f32_16x16x4_f32 v[%d:%d], v9, v%d, 0" % (V_ACC, V_ACC + 3, V_ONE))
    a("v_cvt_pk_bf16_f32 v10, v%d, v%d" % (V_ACC, V_ACC + 1))
    a("v_cvt_pk_bf16_f32 v11, v%d, v%d" % (V_ACC + 2, V_ACC + 3))
    a("v_lshlrev_b32 v12, 16, v10")
    a("v_and_b32 v13, 0xffff0000, v10")
    a("v_lshlrev_b32 v14, 16, v11")
    a("v_and_b32 v15, 0xffff0000, v11")
reduce_gather(E3A, 256, "L_e3apoll")
stamp(7)
for r in range(4):
    a("v_add_f32 v%d, v%d, v%d" % (12 + r, 12 + r, V_X + r))
a("v_cvt_pk_bf16_f32 v28, v12, v13")
a("v_cvt_pk_bf16_f32 v29, v14, v15")
a("v_mov_b32 v30, v%d" % V_TA)
a("v_mov_b32 v31, v%d" % V_TB)
a("s_lshl_b32 s51, s54, 4")
a("s_add_u32 s51, s51, %d" % E3B)
a("v_mov_b32 v9, 0")
setexec(1)
a("buffer_store_dwordx4 v[28:31], v9, s[36:39], s51 offen sc1")
setexec(-1)
stamp(8)
a("v_lshlrev_b32 v%d, 16, v28" % (V_H))
a("v_and_b32 v%d, 0xffff0000, v28" % (V_H + 1))
a("v_lshlrev_b32 v%d, 16, v29" % (V_H + 2))
a("v_and_b32 v%d, 0xffff0000, v29" % (V_H + 3))
reduce_gather(E4, 224, "L_e4poll")
stamp(9)
for r in range(4):
    a("v_add_f32 v%d, v%d, v%d" % (12 + r, 12 + r, V_H + r))
a("v_cvt_pk_bf16_f32 v10, v12, v13")
a("v_cvt_pk_bf16_f32 v11, v14, v15")
srd(44, 22, 896)
a("v_mov_b32 v9, 0")
setexec(1)
a("buffer_store_short v10, v9, s[44:47], s55 offen")
a("buffer_store_short_d16_hi v10, v9, s[44:47], s55 offen offset:16")
a("buffer_store_short v11, v9, s[44:47], s55 offen offset:32")
a("buffer_store_short_d16_hi v11, v9, s[44:47], s55 offen offset:48")
a("s_cmp_lg_u32 s54, 0")
a("s_cbranch_scc1 L_noep")
for k in range(4):
    a("v_mov_b32 v%d, s%d" % (12 + k, 28 + k))
a("buffer_store_dwordx4 v[12:15], v9, s[36:39], 0 offen offset:%d" % EPOCH)
a.label("L_noep")
setexec(-1)
stamp(10)
a("s_branch L_end")

a.label("L_aux")
a.flush()
srd(40, 10, 448 * 8192)
srd(44, 4, 896)
srd(48, 16, 448 * 3584)
a("v_lshlrev_b32 v4, 6, v%d" % V_I16)
a("v_lshl_add_u32 v4, v%d, 4, v4" % V_GRP)
a("buffer_load_dwordx4 v[%d:%d], v4, s[44:47], 0 offen" % (V_G, V_G + 3))
a("v_lshrrev_b32 v5, 1, v%d" % V_LANE)
a("v_lshlrev_b32 v5, 13, v5")
a("v_and_b32 v6, 1, v%d" % V_LANE)
a("v_lshl_add_u32 v5, v6, 4, v5")
a("s_lshl_b32 s52, s32, 10")
a("s_lshl_b32 s53, s33, 5")
a("s_add_u32 s52, s52, s53")
for t in range(14):
    a("s_movk_i32 m0, %d" % (L_WQ + 1024 * t))
    a("buffer_load_dwordx4 v5, s[40:43], s52 offen%s lds" % NT)
    if t < 13:
        a("s_add_u32 s52, s52, %d" % (32 * 8192))
a("s_cmp_ge_u32 s33, 28")
a("s_cbranch_scc1 L_now1")
a("v_mul_u32_u24 v6, 3584, v%d" % V_LANE)
a("s_lshl_b32 s52, s35, 4")
for t in range(7):
    a("s_movk_i32 m0, %d" % (L_W1 + 1024 * t))
    a("buffer_load_dwordx4 v6, s[48:51], s52 offen%s lds" % NT)
    if t < 6:
        a("s_add_u32 s52, s52, %d" % (64 * 3584))
a("s_waitcnt vmcnt(21)")
a("s_branch L_w1done")
a.label("L_now1")
a("s_waitcnt vmcnt(14)")
a.label("L_w1done")
stamp(1)
make_tags()
AF = V_G + 8
layernorm([V_G, V_G + 1, V_G + 2, V_G + 3], AF, 0x3FFF3FFF3FFF3FFF, 8)
a("v_lshlrev_b32 v4, 8, v%d" % V_GRP)
a("v_lshrrev_b32 v5, 2, v%d" % V_I16)
a("v_lshl_add_u32 v4, v5, 5, v4")
a("v_and_b32 v5, 3, v%d" % V_I16)
a("v_lshl_add_u32 v4, v5, 3, v4")
a("s_cmp_ge_u32 s33, 28")
a("s_cbranch_scc1 L_wqw0")
a("s_waitcnt vmcnt(7)")
a("s_branch L_wqw1")
a.label("L_wqw0")
a("s_waitcnt vmcnt(0)")
a.label("L_wqw1")
stamp(2)
WF = 32
DQ = 96
for s in range(14):
    for h in range(2):
        a("ds_read_b64_tr_b16 v[%d:%d], v4 offset:%d" % (WF + 4 * s + 2 * h, WF + 4 * s + 2 * h + 1, L_WQ + 1024 * s + 128 * h))
a("s_waitcnt lgkmcnt(0)")
for s in range(14):
    a("v_mfma_f32_16x16x32_bf16 v[%d:%d], v[%d:%d], v[%d:%d], 0" % (DQ + 4 * s, DQ + 4 * s + 3, AF, AF + 3, WF + 4 * s, WF + 4 * s + 3))
for G in range(4):
    setexec(0xFFFF << (16 * G))
    b = DQ + 16 * G
    a("v_add_f32 v8, v%d, v%d" % (b, b + 5))
    if G < 3:
        a("v_add_f32 v9, v%d, v%d" % (b + 10, b + 15))
        a("v_add_f32 v8, v8, v9")
setexec(-1)
a("v_mfma_f32_16x16x4_f32 v[%d:%d], v8, v%d, 0" % (V_ACC, V_ACC + 3, V_ONE))
a("v_cvt_pk_bf16_f32 v28, v%d, v%d" % (V_ACC, V_ACC + 1))
a("v_cvt_pk_bf16_f32 v29, v%d, v%d" % (V_ACC + 2, V_ACC + 3))
a("v_mov_b32 v30, v%d" % V_TA)
a("v_mov_b32 v31, v%d" % V_TB)
a("s_lshl_b32 s52, s32, 11")
a("s_add_u32 s52, s52, %d" % E1)
a("s_lshl_b32 s53, s33, 6")
a("s_add_u32 s53, s53, s52")
a("v_lshlrev_b32 v9, 4, v%d" % V_GRP)
setexec(0x0001000100010001)
a("buffer_store_dwordx4 v[28:31], v9, s[36:39], s53 offen sc1")
setexec(-1)
stamp(3)
a("v_lshlrev_b32 v8, 4, v%d" % V_LANE)
a("v_lshlrev_b32 v9, 3, v%d" % V_LANE)
a.label("L_e1poll")
a("buffer_load_dwordx4 v[%d:%d], v8, s[36:39], s52 offen sc1" % (V_G, V_G + 3))
a("buffer_load_dwordx4 v[%d:%d], v8, s[36:39], s52 offen offset:1024 sc1" % (V_G + 4, V_G + 7))
a("s_waitcnt vmcnt(0)")
a("v_xor_b32 v10, v%d, v%d" % (V_G + 2, V_TA))
a("v_xor_b32 v11, v%d, v%d" % (V_G + 6, V_TA))
a("v_xor_b32 v12, v%d, v%d" % (V_G + 3, V_TB))
a("v_xor_b32 v13, v%d, v%d" % (V_G + 7, V_TB))
a("v_or_b32 v14, v10, v11")
a("v_or3_b32 v14, v14, v12, v13")
a("v_cmp_ne_u32 vcc, 0, v14")
a("s_cbranch_vccz L_e1ok")
timeout_branch("L_e1poll")
a.label("L_e1ok")
a("ds_write_b64 v9, v[%d:%d] offset:%d" % (V_G, V_G + 1, L_Q))
a("ds_write_b64 v9, v[%d:%d] offset:%d" % (V_G + 4, V_G + 5, L_Q + 512))
a("s_waitcnt lgkmcnt(0)")
stamp(4)
a("s_barrier")
a.label("L_end")
if Cfg.stamps:
    setexec(-1)
    stamp(15)
    a("s_waitcnt lgkmcnt(0)")
    a("s_lshl_b32 s48, s2, 3")
    a("s_add_u32 s48, s48, s34")
    a("s_lshl_b32 s48, s48, 6")
    a("s_add_u32 s48, s48, %d" % STAMP)
    a("v_mov_b32 v9, 0")
    setexec(1)
    for i in range(16):
        a("v_mov_b32 v10, s%d" % (64 + 2 * i))
        a("buffer_store_dword v10, v9, s[36:39], s48 offen offset:%d" % (4 * i))
a.label("L_exit")
a("s_endpgm")
a.raw('''.section .rodata,"a"
.p2align 6
.amdhsa_kernel %s_kernel
  .amdhsa_next_free_vgpr 240
  .amdhsa_next_free_sgpr 96
  .amdhsa_accum_offset 240
  .amdhsa_group_segment_fixed_size 0
  .amdhsa_kernarg_size 96
  .amdhsa_user_sgpr_count 2
  .amdhsa_user_sgpr_kernarg_segment_ptr 1
  .amdhsa_system_sgpr_workgroup_id_x 1
  .amdhsa_float_denorm_mode_32 3
.end_amdhsa_kernel''' % NAME)
open(sys.argv[1], "w").write(a.text())
```

```python
import sys, struct
from asmlib import Asm
NAME = "sequential_preLN__sliding_block_cached__dense_activation_mish__decode"

class Cfg:
    stamps = False
    nt = True
    ntw = True
    lds_bytes = 32768
    timeout = 200000
    depth = 8
    ss = 128
    forceB = False
    xsleep = 0
    pretouch = True
for arg in sys.argv[2:]:
    k, v = arg.split('=')
    setattr(Cfg, k, type(getattr(Cfg, k))(int(v)))

NT = " nt" if Cfg.nt else ""
NTW = " nt" if Cfg.ntw else ""
EPOCH = 0x0
E3X = 0x1000
E1 = 0x10000
E2 = 0x20000
E3A = 0xA0000
BOFF = 0x120000
E4 = 0x240000
STAMP = 0x300000
WS_SIZE = 0x400000
L_WQ = 0
L_W1 = 14336
L_Q = 21504
L_O = 22528
L_ML = 30720
assert L_ML + 2048 <= Cfg.lds_bytes

LOG2E = 1.4426950408889634
def f32(x):
    return "0x%08x" % struct.unpack('<I', struct.pack('<f', x))[0]

a = Asm()
a.raw("; @launch grid=(256,1,1) block=(320,1,1) lds=%d" % Cfg.lds_bytes)
a.raw('.amdgcn_target "amdgcn-amd-amdhsa--gfx950"\n.text\n.globl %s_kernel\n.p2align 8\n.type %s_kernel,@function\n%s_kernel:' % (NAME, NAME, NAME))

DPPM = " row_mask:0xf bank_mask:0xf"
def stamp(i):
    if Cfg.stamps:
        a("s_memrealtime s[%d:%d]" % (64 + 2 * i, 65 + 2 * i))

def srd(dst, ptr, nbytes):
    a("s_mov_b32 s%d, s%d" % (dst, ptr))
    a("s_and_b32 s%d, s%d, 0xffff" % (dst + 1, ptr + 1))
    a("s_mov_b32 s%d, %d" % (dst + 2, nbytes))
    a("s_mov_b32 s%d, 0x20000" % (dst + 3))

def setexec(mask):
    if mask == -1:
        a("s_mov_b64 exec, -1")
    else:
        a("s_mov_b32 exec_lo, 0x%08x" % (mask & 0xffffffff))
        a("s_mov_b32 exec_hi, 0x%08x" % (mask >> 32))

def setmask(s, mask):
    a("s_mov_b32 s%d, 0x%08x" % (s, mask & 0xffffffff))
    a("s_mov_b32 s%d, 0x%08x" % (s + 1, mask >> 32))

def bfly(op, v, t, which):
    a("v_mov_b32 v%d, v%d" % (t, v))
    a("v_permlane%d_swap_b32 v%d, v%d" % (which, v, t))
    a("%s v%d, v%d, v%d" % (op, v, v, t))

def bf16r(dst, src):
    a("v_cvt_pk_bf16_f32 v%d, v%d, v%d" % (dst, src, src))
    a("v_and_b32 v%d, 0xffff0000, v%d" % (dst, dst))

S_ODD, S_B1, S_HI = 56, 58, 60
S_TO = 62
S_SEL = 3

def retry(loop, dual):
    a("s_sub_u32 s%d, s%d, 1" % (S_TO, S_TO))
    a("s_cbranch_scc1 L_end")
    if dual and not Cfg.forceB:
        a("s_and_b32 s63, s%d, 15" % S_TO)
        a("s_cmp_eq_u32 s63, 0")
        a("s_cselect_b32 s%d, %d, 0" % (S_SEL, BOFF))
    a("s_branch %s" % loop)

def sel_init():
    a("s_mov_b32 s%d, %d" % (S_SEL, BOFF if Cfg.forceB else 0))

def layernorm(f, out, valid, T):
    e = [T + k for k in range(8)]
    s1, s2, t1, t2 = T + 8, T + 9, T + 10, T + 11
    pk = [T + 12 + k for k in range(4)]
    a("v_readlane_b32 s63, v%d, 0" % f[0])
    a("v_mov_b32 v%d, 0" % s1)
    a("v_mov_b32 v%d, 0" % s2)
    setexec(valid)
    for k in range(8):
        a("v_subrev_f32 v%d, s63, v%d" % (e[k], f[k]))
    a("v_add_f32 v%d, v%d, v%d" % (s1, e[0], e[1]))
    a("v_mul_f32 v%d, v%d, v%d" % (s2, e[0], e[0]))
    a("v_add_f32 v%d, v%d, v%d" % (t1, e[2], e[3]))
    a("v_mul_f32 v%d, v%d, v%d" % (t2, e[1], e[1]))
    for k in range(4, 8):
        a("v_add_f32 v%d, v%d, v%d" % (s1 if k % 2 == 0 else t1, s1 if k % 2 == 0 else t1, e[k]))
    for k in range(2, 8):
        a("v_fmac_f32 v%d, v%d, v%d" % (s2 if k % 2 == 0 else t2, e[k], e[k]))
    a("v_add_f32 v%d, v%d, v%d" % (s1, s1, t1))
    a("v_add_f32 v%d, v%d, v%d" % (s2, s2, t2))
    setexec(-1)
    for i, r in enumerate((8, 4, 2, 1)):
        a("v_add_f32_dpp v%d, v%d, v%d row_ror:%d%s" % (s1, s1, s1, r, DPPM))
        a("v_add_f32_dpp v%d, v%d, v%d row_ror:%d%s" % (s2, s2, s2, r, DPPM))
        a("v_mov_b32 v%d, 0" % (out + i))
    for which in (16, 32):
        a("v_mov_b32 v%d, v%d" % (t1, s1))
        a("v_mov_b32 v%d, v%d" % (t2, s2))
        a("v_permlane%d_swap_b32 v%d, v%d" % (which, s1, t1))
        a("v_permlane%d_swap_b32 v%d, v%d" % (which, s2, t2))
        a("v_add_f32 v%d, v%d, v%d" % (s1, s1, t1))
        a("v_add_f32 v%d, v%d, v%d" % (s2, s2, t2))
    a("v_mul_f32 v%d, %s, v%d" % (s1, f32(1.0 / 448), s1))
    a("v_mul_f32 v%d, %s, v%d" % (s2, f32(1.0 / 448), s2))
    a("v_fma_f32 v%d, -v%d, v%d, v%d" % (s2, s1, s1, s2))
    a("v_add_f32 v%d, s63, v%d" % (s1, s1))
    a("v_max_f32 v%d, 0, v%d" % (s2, s2))
    a("v_cvt_pk_bf16_f32 v%d, v%d, v%d" % (t1, s1, s2))
    a("v_and_b32 v%d, 0xffff0000, v%d" % (s2, t1))
    a("v_lshlrev_b32 v%d, 16, v%d" % (s1, t1))
    a("v_add_f32 v%d, %s, v%d" % (s2, f32(1e-5), s2))
    bf16r(s2, s2)
    a("v_sqrt_f32 v%d, v%d" % (s2, s2))
    for k in range(8):
        a("v_sub_f32 v%d, v%d, v%d" % (e[k], f[k], s1))
    bf16r(s2, s2)
    a("v_rcp_f32 v%d, v%d" % (s2, s2))
    for k in range(4):
        a("v_cvt_pk_bf16_f32 v%d, v%d, v%d" % (pk[k], e[2 * k], e[2 * k + 1]))
    for k in range(4):
        a("v_lshlrev_b32 v%d, 16, v%d" % (e[2 * k], pk[k]))
        a("v_and_b32 v%d, 0xffff0000, v%d" % (e[2 * k + 1], pk[k]))
    for k in range(8):
        a("v_mul_f32 v%d, v%d, v%d" % (e[k], e[k], s2))
    setexec(valid)
    for k in range(4):
        a("v_cvt_pk_bf16_f32 v%d, v%d, v%d" % (out + k, e[2 * k], e[2 * k + 1]))
    setexec(-1)

def quad_transpose_reduce(v, dst, T):
    k0, g0, k1, g1 = T, T + 1, T + 2, T + 3
    a("v_cndmask_b32 v%d, v%d, v%d, s[%d:%d]" % (g0, v[1], v[0], S_ODD, S_ODD + 1))
    a("v_cndmask_b32 v%d, v%d, v%d, s[%d:%d]" % (g1, v[3], v[2], S_ODD, S_ODD + 1))
    a("v_cndmask_b32 v%d, v%d, v%d, s[%d:%d]" % (k0, v[0], v[1], S_ODD, S_ODD + 1))
    a("v_cndmask_b32 v%d, v%d, v%d, s[%d:%d]" % (k1, v[2], v[3], S_ODD, S_ODD + 1))
    a("v_add_f32_dpp v%d, v%d, v%d quad_perm:[1,0,3,2]%s" % (k0, g0, k0, DPPM))
    a("v_add_f32_dpp v%d, v%d, v%d quad_perm:[1,0,3,2]%s" % (k1, g1, k1, DPPM))
    a("v_cndmask_b32 v%d, v%d, v%d, s[%d:%d]" % (g0, k1, k0, S_B1, S_B1 + 1))
    a("v_cndmask_b32 v%d, v%d, v%d, s[%d:%d]" % (dst, k0, k1, S_B1, S_B1 + 1))
    a("v_add_f32_dpp v%d, v%d, v%d quad_perm:[2,3,0,1]%s" % (dst, g0, dst, DPPM))

def check12(n, X, oklab):
    for t in range(n):
        for r in range(4):
            a("v_xor_b32 v%d, v%d, v%d" % (X + 4 * t + r, V_G + 4 * t + r, V_T + r))
    regs = [X + i for i in range(4 * n)]
    acc = [5, 6, 7]
    cur = regs[:]
    outs = []
    i = 0
    while len(cur) >= 3 and i < 3:
        a("v_or3_b32 v%d, v%d, v%d, v%d" % (acc[i], cur[0], cur[1], cur[2])); cur = cur[3:]; outs.append(acc[i]); i += 1
    i = 0
    while len(cur) >= 2:
        o = outs[i % len(outs)]
        a("v_or3_b32 v%d, v%d, v%d, v%d" % (o, o, cur[0], cur[1])); cur = cur[2:]; i += 1
    rest = outs + cur
    while len(rest) > 1:
        if len(rest) >= 3:
            a("v_or3_b32 v%d, v%d, v%d, v%d" % (acc[0], rest[0], rest[1], rest[2])); rest = [acc[0]] + rest[3:]
        else:
            a("v_or_b32 v%d, v%d, v%d" % (acc[0], rest[0], rest[1])); rest = [acc[0]]
    a("v_and_b32 v%d, 0xfff, v%d" % (acc[0], rest[0]))
    a("v_cmp_ne_u32 vcc, 0, v%d" % acc[0])
    a("s_cbranch_vccz %s" % oklab)

V_I16, V_GRP, V_LANE = 1, 2, 3
V_K, V_V, V_WO, V_W2, V_QF, V_W1F = 32, 64, 96, 128, 136, 168
V_M, V_T = 196, 200
V_TA, V_TB, V_T8, V_ONE = 204, 205, 206, 207
V_B1, V_X = 208, 209
V_GA = 213
V_PUB = 214
V_XA = 215
V_ACC = 216
V_G = 232
NVGPR = 248

if Cfg.stamps:
    for i in range(16):
        a("s_mov_b64 s[%d:%d], 0" % (64 + 2 * i, 65 + 2 * i))
stamp(0)
a("s_load_dwordx16 s[4:19], s[0:1], 0")
a("s_load_dwordx8 s[20:27], s[0:1], 64")
a("s_cmp_ge_u32 s2, 256")
a("s_cbranch_scc1 L_exit")
a("v_lshrrev_b32 v4, 6, v0")
a("v_and_b32 v%d, 63, v0" % V_LANE)
a("v_readfirstlane_b32 s34, v4")
a("v_and_b32 v%d, 15, v0" % V_I16)
a("v_bfe_u32 v%d, v0, 4, 2" % V_GRP)
a("s_and_b32 s32, s2, 7")
a("s_lshr_b32 s33, s2, 3")
a("s_cmp_eq_u32 s34, 4")
a("s_cbranch_scc1 L_aux")

def common_setup():
    a("s_mul_i32 s35, s32, 28")
    a("s_add_u32 s35, s35, s33")
    a("s_mov_b32 s%d, %d" % (S_TO, Cfg.timeout))
    setmask(S_ODD, 0xAAAAAAAAAAAAAAAA)
    setmask(S_B1, 0xCCCCCCCCCCCCCCCC)
    setmask(S_HI, 0xFFFFFFFF00000000)
    a("v_mov_b32 v%d, 1.0" % V_ONE)
    a("v_and_b32 v8, 3, v%d" % V_LANE)
    a("v_lshl_add_u32 v8, v%d, 2, v8" % V_GRP)
    a("v_lshlrev_b32 v8, 11, v8")
    a("v_bfe_u32 v9, v%d, 2, 2" % V_LANE)
    a("v_lshl_add_u32 v%d, v9, 4, v8" % V_GA)
    a("s_lshl_b32 s54, s32, 16")
    a("s_lshl_b32 s63, s33, 6")
    a("s_add_u32 s54, s54, s63")
    a("s_lshl_b32 s55, s32, 5")
    a("s_add_u32 s55, s55, s33")
    a("s_lshl_b32 s55, s55, 11")

def make_tags():
    a("s_waitcnt lgkmcnt(0)")
    for k in range(4):
        a("s_add_u32 s%d, s%d, 1" % (28 + k, 28 + k))
    for k in range(4):
        a("s_and_b32 s63, s%d, 0xfff" % (28 + k))
        a("v_mov_b32 v%d, s63" % (V_T + k))
    a("v_mov_b32 v%d, s30" % V_TA)
    a("v_mov_b32 v%d, s31" % V_TB)
    a("s_and_b32 s63, s30, 0xff")
    a("v_mov_b32 v%d, s63" % V_T8)

a("s_lshl_b32 s48, s32, 22")
a("s_lshl_b32 s49, s33, 15")
a("s_add_u32 s48, s48, s49")
a("s_lshl_b32 s49, s34, 13")
a("s_add_u32 s48, s48, s49")
a("s_add_u32 s48, s48, %d" % (6144 * 512))
a("v_lshlrev_b32 v4, 9, v%d" % V_I16)
a("v_lshl_add_u32 v4, v%d, 4, v4" % V_GRP)
a("v_lshlrev_b32 v5, 11, v%d" % V_GRP)
a("v_lshl_add_u32 v5, v%d, 4, v5" % V_I16)
a("s_waitcnt lgkmcnt(0)")
a("s_load_dwordx4 s[28:31], s[26:27], %d" % EPOCH)
srd(40, 6, 33554432)
srd(44, 8, 33554432)
srd(36, 26, WS_SIZE)
stamp(11)
a("s_barrier")
stamp(12)
nissued = [0]
def paced(text):
    if Cfg.depth and nissued[0] >= Cfg.depth:
        a("s_waitcnt vmcnt(%d)" % (Cfg.depth - 1))
    a(text)
    nissued[0] += 1
for s in range(8):
    paced("buffer_load_dwordx4 v[%d:%d], v4, s[40:43], s48 offen offset:%d%s" % (V_K + 4 * s, V_K + 4 * s + 3, 64 * s, NT))
common_setup()
a("v_and_b32 v6, 1, v%d" % V_I16)
a("v_lshlrev_b32 v6, 4, v6")
a("v_mov_b32 v7, 0xffff")
a("v_lshlrev_b32 v7, v6, v7")
a("v_bfe_u32 v6, v%d, 1, 2" % V_I16)
for rho in range(4):
    a("v_cmp_eq_u32 vcc, %d, v6" % rho)
    a("v_cndmask_b32 v%d, 0, v7, vcc" % (V_M + rho))
a("v_lshl_add_u32 v8, v%d, 3, v%d" % (V_GRP, V_I16))
a("v_lshlrev_b32 v%d, 4, v8" % V_PUB)
a("s_lshl_b32 s50, s32, 9")
a("s_bfe_u32 s49, s33, 0x10001")
a("s_lshl_b32 s49, s49, 8")
a("s_add_u32 s50, s50, s49")
a("s_lshr_b32 s49, s33, 4")
a("s_lshl_b32 s49, s49, 7")
a("s_add_u32 s50, s50, s49")
a("s_bfe_u32 s49, s33, 0x20002")
a("s_lshl_b32 s49, s49, 5")
a("s_add_u32 s50, s50, s49")
a("s_and_b32 s49, s33, 1")
a("s_lshl_b32 s49, s49, 2")
a("s_add_u32 s50, s50, s49")
a("s_mul_i32 s50, s50, 896")
a("s_and_b32 s49, s34, 1")
a("s_lshl_b32 s49, s49, 9")
a("s_add_u32 s50, s50, s49")
a("s_add_u32 s51, s50, 7168")
a("s_add_u32 s52, s50, %d" % (2 * 7168))
a("s_add_u32 s53, s50, %d" % (3 * 7168))
a("v_mul_u32_u24 v6, 896, v%d" % V_GRP)
a("v_lshl_add_u32 v6, v%d, 4, v6" % V_I16)
make_tags()
for r in range(4):
    for h in range(2):
        n = 2 * r + h
        paced("buffer_load_dwordx4 v[%d:%d], v5, s[44:47], s48 offen offset:%d%s" % (V_V + 4 * n, V_V + 4 * n + 3, 512 * r + 256 * h, NT))
stamp(13)
a("v_lshrrev_b32 v7, 3, v%d" % V_I16)
a("v_lshlrev_b32 v7, 9, v7")
a("v_lshl_add_u32 v7, v%d, 4, v7" % V_GRP)
srd(40, 12, 4096 * 896)
a("s_cmp_lt_u32 s34, 2")
a("s_cbranch_scc1 L_nowo")
for q, so in enumerate((50, 51, 52, 53)):
    a("buffer_load_dwordx4 v[%d:%d], v6, s[40:43], s%d offen%s" % (V_WO + 4 * q, V_WO + 4 * q + 3, so, NT))
a("s_cmp_lg_u32 s34, 3")
a("s_cbranch_scc1 L_nomask")
setexec(0x00FF00FF00FF00FF)
a.label("L_nomask")
for q, so in enumerate((50, 51, 52, 53)):
    a("buffer_load_dwordx4 v[%d:%d], v6, s[40:43], s%d offen offset:256%s" % (V_WO + 16 + 4 * q, V_WO + 16 + 4 * q + 3, so, NT))
setexec(-1)
a("s_mov_b32 s49, 8")
a("s_branch L_wodone")
a.label("L_nowo")
a("s_mov_b32 s49, 0")
a.label("L_wodone")
stamp(1)
a("s_barrier")
stamp(2)
for s in range(8):
    a("ds_read_b128 v[%d:%d], v7 offset:%d" % (V_QF + 4 * s, V_QF + 4 * s + 3, L_Q + 64 * s))

def wait_v(n):
    l1, l2 = a.newlabel("L_wv"), a.newlabel("L_wv")
    a("s_cmp_eq_u32 s49, 0")
    a("s_cbranch_scc1 %s" % l1)
    a("s_waitcnt vmcnt(%d)" % (n + 8))
    a("s_branch %s" % l2)
    a.label(l1)
    a("s_waitcnt vmcnt(%d)" % n)
    a.label(l2)
wait_v(8)
a("s_waitcnt lgkmcnt(0)")
S = V_ACC
for s in range(8):
    a("v_mfma_f32_16x16x32_bf16 v[%d:%d], v[%d:%d], v[%d:%d], %s" % (S, S + 3, V_K + 4 * s, V_K + 4 * s + 3, V_QF + 4 * s, V_QF + 4 * s + 3, "0" if s == 0 else "v[%d:%d]" % (S, S + 3)))
a("s_lshl_b32 s63, s34, 11")
a("v_lshl_add_u32 v22, v%d, 4, s63" % V_LANE)
a("s_lshl_b32 s63, s34, 9")
a("v_lshl_add_u32 v23, v%d, 3, s63" % V_LANE)
a("s_mov_b32 s63, %s" % f32(0.0625 * LOG2E))
a("v_cvt_pk_bf16_f32 v8, v%d, v%d" % (S, S + 1))
a("v_cvt_pk_bf16_f32 v9, v%d, v%d" % (S + 2, S + 3))
a("v_lshlrev_b32 v10, 16, v8")
a("v_and_b32 v11, 0xffff0000, v8")
a("v_lshlrev_b32 v12, 16, v9")
a("v_and_b32 v13, 0xffff0000, v9")
a("v_max3_f32 v14, v10, v11, v12")
a("v_max_f32 v14, v14, v13")
bfly("v_max_f32", 14, 15, 16)
bfly("v_max_f32", 14, 15, 32)
a("v_mul_f32 v14, s63, v14")
for r in range(4):
    a("v_fma_f32 v%d, v%d, s63, -v14" % (10 + r, 10 + r))
for r in range(4):
    a("v_exp_f32 v%d, v%d" % (10 + r, 10 + r))
for r in range(4):
    a("v_cvt_pk_bf16_f32 v%d, v%d, v%d" % (16 + r, 10 + r, 10 + r))
O = V_ACC + 4
BB = V_QF
for r in range(4):
    for rho in range(4):
        a("v_and_b32 v%d, v%d, v%d" % (BB + 4 * r + rho, 16 + r, V_M + rho))
a("v_add_f32 v15, v10, v11")
a("v_add_f32 v20, v12, v13")
a("v_add_f32 v15, v15, v20")
bfly("v_add_f32", 15, 20, 16)
bfly("v_add_f32", 15, 20, 32)
a("ds_write_b64 v23, v[14:15] offset:%d" % L_ML)
wait_v(2)
for r in range(4):
    if r == 3:
        wait_v(0)
    for h in range(2):
        n = 2 * r + h
        a("v_mfma_f32_16x16x32_bf16 v[%d:%d], v[%d:%d], v[%d:%d], %s" % (O + 4 * h, O + 4 * h + 3, V_V + 4 * n, V_V + 4 * n + 3, BB + 4 * r, BB + 4 * r + 3, "0" if r == 0 else "v[%d:%d]" % (O + 4 * h, O + 4 * h + 3)))
a("ds_write_b128 v22, v[%d:%d] offset:%d" % (O, O + 3, L_O))
a("ds_write_b128 v22, v[%d:%d] offset:%d" % (O + 4, O + 7, L_O + 1024))
a("s_waitcnt lgkmcnt(0)")
a("s_barrier")
stamp(3)
a("s_cmp_ge_u32 s34, 2")
a("s_cbranch_scc1 L_e2")
a("s_lshl_b32 s63, s34, 10")
a("v_lshl_add_u32 v8, v%d, 4, s63" % V_LANE)
a("v_lshlrev_b32 v9, 3, v%d" % V_LANE)
for w in range(4):
    a("ds_read_b64 v[%d:%d], v9 offset:%d" % (10 + 2 * w, 11 + 2 * w, L_ML + 512 * w))
for w in range(4):
    a("ds_read_b128 v[%d:%d], v8 offset:%d" % (V_G + 4 * w, V_G + 4 * w + 3, L_O + 2048 * w))
a("s_add_u32 s48, s55, %d" % E2)
a("s_add_u32 s49, s55, %d" % (E2 + BOFF))
a("s_movk_i32 s63, 0xff")
a("v_mov_b32 v31, v%d" % V_TB)
a("s_waitcnt lgkmcnt(4)" if not Cfg.stamps else "s_waitcnt lgkmcnt(0)")
a("v_max3_f32 v18, v10, v12, v14")
a("v_max_f32 v18, v18, v16")
for w in range(4):
    a("v_sub_f32 v%d, v%d, v18" % (10 + 2 * w, 10 + 2 * w))
for w in range(4):
    a("v_exp_f32 v%d, v%d" % (10 + 2 * w, 10 + 2 * w))
a("v_mul_f32 v19, v10, v11")
for w in range(1, 4):
    a("v_fmac_f32 v19, v%d, v%d" % (10 + 2 * w, 11 + 2 * w))
a("v_rcp_f32 v20, v19")
a("v_log_f32 v21, v19")
a("s_waitcnt lgkmcnt(0)")
for r in range(4):
    a("v_mul_f32 v%d, v10, v%d" % (24 + r, V_G + r))
for w in range(1, 4):
    for r in range(4):
        a("v_fmac_f32 v%d, v%d, v%d" % (24 + r, 10 + 2 * w, V_G + 4 * w + r))
a("v_add_f32 v21, v21, v18")
for r in range(4):
    a("v_mul_f32 v%d, v%d, v20" % (24 + r, 24 + r))
a("v_bfi_b32 v30, s63, v%d, v21" % V_T8)
a("v_cvt_pk_bf16_f32 v28, v24, v25")
a("v_cvt_pk_bf16_f32 v29, v26, v27")
a("buffer_store_dwordx4 v[28:31], v8, s[36:39], s48 offen")
a("buffer_store_dwordx4 v[28:31], v8, s[36:39], s49 offen sc1")
stamp(4)
a("s_cmp_ge_u32 s33, 28")
a("s_cbranch_scc1 L_b3")
a("s_cmp_eq_u32 s34, 1")
a("s_cbranch_scc1 L_b3")
sel_init()
a("s_lshl_b32 s51, s32, 12")
a("s_mul_i32 s63, s33, %d" % Cfg.ss)
a("s_add_u32 s51, s51, s63")
a("s_add_u32 s51, s51, %d" % E3X)
a("v_lshlrev_b32 v4, 4, v%d" % V_GRP)
a.label("L_e3apoll")
a("s_add_u32 s48, s54, s%d" % S_SEL)
a("s_add_u32 s49, s48, %d" % (E3A + 16 * 2048))
a("s_add_u32 s48, s48, %d" % E3A)
a("buffer_load_dwordx4 v[%d:%d], v%d, s[36:39], s48 offen sc1" % (V_G, V_G + 3, V_GA))
a("buffer_load_dwordx4 v[%d:%d], v%d, s[36:39], s49 offen sc1" % (V_G + 4, V_G + 7, V_GA))
a("s_waitcnt vmcnt(0)")
check12(2, 12, "L_e3aok")
retry("L_e3apoll", True)
a.label("L_e3aok")
stamp(7)
for r in range(4):
    a("v_add_f32 v%d, v%d, v%d" % (12 + r, 12 + r, 16 + r))
quad_transpose_reduce([12, 13, 14, 15], 9, 16)
a("v_mfma_f32_16x16x4_f32 v[%d:%d], v9, v%d, 0" % (V_ACC, V_ACC + 3, V_ONE))
a("s_movk_i32 s63, 0xfff")
setexec(0x0001000100010001)
for r in range(4):
    a("v_bfi_b32 v%d, s63, v%d, v%d" % (28 + r, V_T + r, V_ACC + r))
a("buffer_store_dwordx4 v[28:31], v4, s[36:39], s51 offen sc1")
setexec(-1)
stamp(8)
a("s_branch L_b3")

a.label("L_e2")
a.flush()
sel_init()
a.label("L_e2poll")
a("s_add_u32 s48, s54, s%d" % S_SEL)
a("s_add_u32 s49, s48, %d" % (E2 + 16 * 2048))
a("s_add_u32 s48, s48, %d" % E2)
a("buffer_load_dwordx4 v[%d:%d], v%d, s[36:39], s48 offen sc1" % (V_G, V_G + 3, V_GA))
a("buffer_load_dwordx4 v[%d:%d], v%d, s[36:39], s49 offen sc1" % (V_G + 4, V_G + 7, V_GA))
a("s_waitcnt vmcnt(0)")
a("v_xor_b32 v10, v%d, v%d" % (V_G + 2, V_T8))
a("v_xor_b32 v11, v%d, v%d" % (V_G + 6, V_T8))
a("v_xor_b32 v12, v%d, v%d" % (V_G + 3, V_TB))
a("v_xor_b32 v13, v%d, v%d" % (V_G + 7, V_TB))
a("v_or_b32 v14, v10, v11")
a("v_and_b32 v14, 0xff, v14")
a("v_or3_b32 v14, v14, v12, v13")
a("v_cmp_ne_u32 vcc, 0, v14")
a("s_cbranch_vccz L_e2ok")
retry("L_e2poll", True)
a.label("L_e2ok")
stamp(5)
a("v_max_f32 v14, v10, v11")
for t in range(2):
    a("v_lshlrev_b32 v%d, 16, v%d" % (16 + 4 * t, V_G + 4 * t))
    a("v_and_b32 v%d, 0xffff0000, v%d" % (17 + 4 * t, V_G + 4 * t))
    a("v_max_f32_dpp v14, v14, v14 quad_perm:[%s]%s" % ("1,0,3,2" if t == 0 else "2,3,0,1", DPPM))
for t, which in enumerate((16, 32)):
    a("v_mov_b32 v15, v14")
    a("v_lshlrev_b32 v%d, 16, v%d" % (18 + 4 * t, V_G + 4 * t + 1))
    a("v_and_b32 v%d, 0xffff0000, v%d" % (19 + 4 * t, V_G + 4 * t + 1))
    a("v_permlane%d_swap_b32 v14, v15" % which)
    a("v_max_f32 v14, v14, v15")
a("v_sub_f32 v10, v10, v14")
a("v_sub_f32 v11, v11, v14")
a("v_exp_f32 v10, v10")
a("v_exp_f32 v11, v11")
a("s_add_u32 s48, s55, %d" % E3A)
for r in range(4):
    a("v_mul_f32 v%d, v%d, v10" % (16 + r, 16 + r))
a("v_add_f32 v12, v10, v11")
for r in range(4):
    a("v_fmac_f32 v%d, v%d, v11" % (16 + r, 20 + r))
a("v_add_f32_dpp v12, v12, v12 quad_perm:[1,0,3,2]%s" % DPPM)
quad_transpose_reduce([16, 17, 18, 19], 13, 24)
a("v_add_f32_dpp v12, v12, v12 quad_perm:[2,3,0,1]%s" % DPPM)
a("v_mfma_f32_16x16x4_f32 v[%d:%d], v13, v%d, 0" % (V_ACC, V_ACC + 3, V_ONE))
a("v_mfma_f32_16x16x4_f32 v[%d:%d], v12, v%d, 0" % (V_ACC + 4, V_ACC + 7, V_ONE))
a("s_and_b32 s63, s34, 1")
a("s_lshl_b32 s63, s63, 10")
a("s_add_u32 s48, s48, s63")
a("s_add_u32 s49, s48, %d" % BOFF)
a("s_movk_i32 s63, 0xfff")
a("v_rcp_f32 v12, v%d" % (V_ACC + 4))
for r in range(4):
    a("v_mul_f32 v%d, v%d, v12" % (16 + r, V_ACC + r))
for r in range(4):
    a("v_cvt_pk_bf16_f32 v%d, v%d, v%d" % (16 + r, 16 + r, 16 + r))
A2 = V_ACC + 8
for q in range(4):
    for rho in range(4):
        a("v_and_b32 v%d, v%d, v%d" % (BB + 4 * q + rho, 16 + q, V_M + rho))
    if q >= 1:
        qq = q - 1
        for b in range(2):
            a("v_mfma_f32_16x16x32_bf16 v[%d:%d], v[%d:%d], v[%d:%d], %s" % (A2 + 4 * b, A2 + 4 * b + 3, V_WO + 16 * b + 4 * qq, V_WO + 16 * b + 4 * qq + 3, BB + 4 * qq, BB + 4 * qq + 3, "0" if qq == 0 else "v[%d:%d]" % (A2 + 4 * b, A2 + 4 * b + 3)))
for b in range(2):
    a("v_mfma_f32_16x16x32_bf16 v[%d:%d], v[%d:%d], v[%d:%d], v[%d:%d]" % (A2 + 4 * b, A2 + 4 * b + 3, V_WO + 16 * b + 12, V_WO + 16 * b + 15, BB + 12, BB + 15, A2 + 4 * b, A2 + 4 * b + 3))
a("v_cmp_lt_u32 vcc, 7, v%d" % V_I16)
a("v_add_u32 v4, %d, v%d" % (512 - 128, V_PUB))
a("v_cndmask_b32 v4, v%d, v4, vcc" % V_PUB)
for r in range(4):
    a("v_cndmask_b32 v%d, v%d, v%d, vcc" % (24 + r, A2 + r, A2 + 4 + r))
for r in range(4):
    a("v_bfi_b32 v%d, s63, v%d, v%d" % (28 + r, V_T + r, 24 + r))
a("s_cmp_lg_u32 s34, 3")
a("s_cbranch_scc1 L_pm1")
a("s_mov_b32 exec_hi, 0x00ff00ff")
a.label("L_pm1")
a("buffer_store_dwordx4 v[28:31], v4, s[36:39], s48 offen")
a("buffer_store_dwordx4 v[28:31], v4, s[36:39], s49 offen sc1")
setexec(-1)
stamp(6)

a.label("L_b3")
a.flush()
a("s_cmp_ge_u32 s33, 28")
a("s_cbranch_scc1 L_fin")
a("v_lshrrev_b32 v8, 3, v%d" % V_I16)
a("v_sub_u32 v8, v%d, v8" % V_I16)
a("v_min_u32 v8, 13, v8")
a("v_lshrrev_b32 v9, 1, v%d" % V_GRP)
a("v_lshl_add_u32 v9, v8, 1, v9")
a("v_mul_u32_u24 v9, %d, v9" % Cfg.ss)
a("v_and_b32 v10, 1, v%d" % V_GRP)
a("v_lshl_add_u32 v%d, v10, 5, v9" % V_XA)
a("v_bfe_u32 v7, v%d, 1, 1" % V_I16)
a("v_mul_u32_u24 v7, %d, v7" % (224 * 16))
a("v_lshl_add_u32 v7, v%d, 5, v7" % V_GRP)
a("v_lshrrev_b32 v11, 2, v%d" % V_I16)
a("v_lshl_add_u32 v7, v11, 7, v7")
a("v_and_b32 v11, 1, v%d" % V_I16)
a("v_lshl_add_u32 v7, v11, 3, v7")
a("v_lshlrev_b32 v12, 6, v8")
a("v_lshl_add_u32 v12, v%d, 2, v12" % V_GRP)
a("v_lshlrev_b32 v13, 2, v10")
a("v_and_b32 v14, 2, v%d" % V_GRP)
a("v_add_u32 v13, v13, v14")
a("v_mul_u32_u24 v14, 896, v13")
a("v_lshl_add_u32 v14, v%d, 4, v14" % V_I16)
a("v_add_u32 v13, v13, v11")
a("v_lshlrev_b32 v13, 1, v13")
srd(40, 20, 1792 * 896)
srd(44, 4, 896)
srd(48, 18, 1792 * 2)
a("s_mul_i32 s52, s35, %d" % (8 * 896))
a("s_lshl_b32 s63, s34, 8")
a("s_add_u32 s52, s52, s63")
a("s_lshl_b32 s53, s35, 4")
a("s_lshl_b32 s%d, s34, 13" % S_SEL)
a("s_add_u32 s%d, s%d, %d" % (S_SEL, S_SEL, E3X))
a("s_add_u32 s54, s%d, 4096" % S_SEL)
a("s_lshl_b32 s63, s34, 11")
a("v_lshl_add_u32 v22, v%d, 4, s63" % V_LANE)
a("v_lshlrev_b32 v23, 4, v%d" % V_LANE)
a("s_barrier")
stamp(9)
for e in range(4):
    a("buffer_load_dword v%d, v12, s[44:47], 0 offen offset:%d" % (V_X + e, 16 * e))
a("buffer_load_ushort v%d, v13, s[48:51], s53 offen" % V_B1)
a("s_cmp_lg_u32 s34, 3")
a("s_cbranch_scc1 L_nomask2")
setexec(0x00FF00FF00FF00FF)
a.label("L_nomask2")
for q in range(2):
    a("buffer_load_dwordx4 v[%d:%d], v14, s[40:43], s52 offen offset:%d%s" % (V_W2 + 4 * q, V_W2 + 4 * q + 3, 896 * q, NT))
setexec(-1)
for m in range(7):
    for u in range(2):
        a("ds_read_b64_tr_b16 v[%d:%d], v7 offset:%d" % (V_W1F + 4 * m + 2 * u, V_W1F + 4 * m + 2 * u + 1, L_W1 + 512 * m + 16 * u))
if Cfg.xsleep:
    a("s_sleep %d" % Cfg.xsleep)
a.label("L_e3xpoll")
a("buffer_load_dwordx4 v[%d:%d], v%d, s[36:39], s%d offen sc1" % (V_G, V_G + 3, V_XA, S_SEL))
a("buffer_load_dwordx4 v[%d:%d], v%d, s[36:39], s%d offen offset:16 sc1" % (V_G + 4, V_G + 7, V_XA, S_SEL))
a("buffer_load_dwordx4 v[%d:%d], v%d, s[36:39], s54 offen sc1" % (V_G + 8, V_G + 11, V_XA))
a("buffer_load_dwordx4 v[%d:%d], v%d, s[36:39], s54 offen offset:16 sc1" % (V_G + 12, V_G + 15, V_XA))
a("s_waitcnt vmcnt(0)")
XR = V_K
check12(4, XR, "L_e3xok")
retry("L_e3xpoll", False)
a.label("L_e3xok")
stamp(10)
for k in range(8):
    a("v_add_f32 v%d, v%d, v%d" % (XR + k, XR + k, XR + 8 + k))
a("ds_write_b128 v22, v[%d:%d] offset:%d" % (XR, XR + 3, L_O))
a("ds_write_b128 v22, v[%d:%d] offset:%d" % (XR + 4, XR + 7, L_O + 1024))
a("v_lshlrev_b32 v%d, 16, v%d" % (V_B1, V_B1))
XF = V_K + 16
for e in range(4):
    a("v_lshlrev_b32 v%d, 16, v%d" % (XF + e, V_X + e))
    a("v_and_b32 v%d, 0xffff0000, v%d" % (XF + 4 + e, V_X + e))
a("s_waitcnt lgkmcnt(0)")
a("s_barrier")
PR = V_V
for w in range(4):
    a("ds_read_b128 v[%d:%d], v23 offset:%d" % (PR + 8 * w, PR + 8 * w + 3, L_O + 2048 * w))
    a("ds_read_b128 v[%d:%d], v23 offset:%d" % (PR + 8 * w + 4, PR + 8 * w + 7, L_O + 2048 * w + 1024))
a("s_waitcnt lgkmcnt(0)")
for k in range(8):
    a("v_add_f32 v%d, v%d, v%d" % (PR + k, PR + k, PR + 8 + k))
    a("v_add_f32 v%d, v%d, v%d" % (PR + 16 + k, PR + 16 + k, PR + 24 + k))
for k in range(8):
    a("v_add_f32 v%d, v%d, v%d" % (PR + k, PR + k, PR + 16 + k))
for k in range(4):
    a("v_cvt_pk_bf16_f32 v%d, v%d, v%d" % (PR + 8 + k, PR + 2 * k, PR + 2 * k + 1))
for k in range(4):
    a("v_lshlrev_b32 v%d, 16, v%d" % (PR + 2 * k, PR + 8 + k))
    a("v_and_b32 v%d, 0xffff0000, v%d" % (PR + 2 * k + 1, PR + 8 + k))
for k in range(8):
    a("v_add_f32 v%d, v%d, v%d" % (PR + k, PR + k, XF + k))
for k in range(4):
    a("v_cvt_pk_bf16_f32 v%d, v%d, v%d" % (PR + 8 + k, PR + 2 * k, PR + 2 * k + 1))
for k in range(4):
    a("v_lshlrev_b32 v%d, 16, v%d" % (PR + 2 * k, PR + 8 + k))
    a("v_and_b32 v%d, 0xffff0000, v%d" % (PR + 2 * k + 1, PR + 8 + k))
AF = V_G
layernorm([PR + k for k in range(8)], AF, 0x7F7F7F7F7F7F7F7F, 8)
D1 = V_K
for m in range(7):
    a("v_mfma_f32_16x16x32_bf16 v[%d:%d], v[%d:%d], v[%d:%d], 0" % (D1 + 4 * m, D1 + 4 * m + 3, AF, AF + 3, V_W1F + 4 * m, V_W1F + 4 * m + 3))
a("v_mov_b32 v8, 0")
setexec(0x0000FF00000000FF)
a("v_add_f32 v8, v%d, v%d" % (D1 + 0, D1 + 4 + 1))
a("v_add_f32 v9, v%d, v%d" % (D1 + 8 + 2, D1 + 12 + 3))
a("v_add_f32 v8, v8, v9")
setexec(0xFF00000000FF0000)
a("v_add_f32 v8, v%d, v%d" % (D1 + 16, D1 + 20 + 1))
a("v_add_f32 v8, v8, v%d" % (D1 + 24 + 2))
setexec(-1)
a("v_add_f32_dpp v8, v8, v8 row_ror:8%s" % DPPM)
a("v_mfma_f32_16x16x4_f32 v[%d:%d], v8, v%d, 0" % (V_ACC, V_ACC + 3, V_ONE))
a("s_lshl_b32 s48, s35, 11")
a("s_lshl_b32 s63, s34, 9")
a("s_add_u32 s48, s48, s63")
a("s_add_u32 s48, s48, %d" % E4)
a("s_mov_b32 s63, %s" % f32(-LOG2E))
a("v_cndmask_b32 v8, v%d, v%d, s[%d:%d]" % (V_ACC, V_ACC + 1, S_ODD, S_ODD + 1))
a("v_cndmask_b32 v9, v%d, v%d, s[%d:%d]" % (V_ACC + 2, V_ACC + 3, S_ODD, S_ODD + 1))
a("v_cndmask_b32 v8, v8, v9, s[%d:%d]" % (S_HI, S_HI + 1))
bf16r(8, 8)
a("v_add_f32 v8, v8, v%d" % V_B1)
bf16r(8, 8)
a("v_mul_f32 v9, s63, abs(v8)")
a("v_exp_f32 v9, v9")
a("v_max_f32 v17, 0, v8")
bf16r(9, 9)
a("v_add_f32 v10, 1.0, v9")
a("v_add_f32 v11, -1.0, v10")
a("v_log_f32 v12, v10")
a("v_rcp_f32 v13, v11")
a("v_cmp_eq_f32 vcc, 0, v11")
a("v_mul_f32 v12, %s, v12" % f32(0.6931471805599453))
a("v_mul_f32 v13, v13, v9")
a("v_mul_f32 v12, v12, v13")
a("v_cndmask_b32 v12, v12, v9, vcc")
bf16r(12, 12)
a("v_add_f32 v12, v12, v17")
bf16r(12, 12)
a("v_mul_f32 v13, %s, v12" % f32(-2.0 * LOG2E))
a("v_exp_f32 v13, v13")
a("v_mul_f32 v16, v12, v12")
a("v_add_f32 v14, 1.0, v13")
a("v_sub_f32 v15, 1.0, v13")
a("v_rcp_f32 v14, v14")
a("v_mul_f32 v16, %s, v16" % f32(-1.0 / 3.0))
a("v_cmp_gt_f32 vcc, %s, v12" % f32(2.0 ** -6))
a("v_fma_f32 v16, v16, v12, v12")
a("v_mul_f32 v14, v14, v15")
a("v_cndmask_b32 v14, v14, v16, vcc")
bf16r(14, 14)
a("v_mul_f32 v14, v14, v8")
a("v_cvt_pk_bf16_f32 v14, v14, v14")
a("s_movk_i32 s63, 0xfff")
for q in range(2):
    for rho in range(4):
        a("v_and_b32_dpp v%d, v14, v%d quad_perm:[%d,%d,%d,%d]%s" % (BB + 4 * q + rho, V_M + rho, q, q, 2 + q, 2 + q, DPPM))
for q in range(2):
    a("v_mfma_f32_16x16x32_bf16 v[%d:%d], v[%d:%d], v[%d:%d], %s" % (A2, A2 + 3, V_W2 + 4 * q, V_W2 + 4 * q + 3, BB + 4 * q, BB + 4 * q + 3, "0" if q == 0 else "v[%d:%d]" % (A2, A2 + 3)))
setexec(0x00FF00FF00FF00FF)
a("s_cmp_lg_u32 s34, 3")
a("s_cbranch_scc1 L_pm2")
a("s_mov_b32 exec_hi, 0")
a.label("L_pm2")
for r in range(4):
    a("v_bfi_b32 v%d, s63, v%d, v%d" % (28 + r, V_T + r, A2 + r))
a("buffer_store_dwordx4 v[28:31], v%d, s[36:39], s48 offen sc1" % V_PUB)
setexec(-1)
stamp(14)
a("s_branch L_end")

a.label("L_fin")
a.flush()
a("s_sub_u32 s52, s2, 224")
a("s_cmp_ge_u32 s52, 28")
a("s_cbranch_scc1 L_end")
a("v_and_b32 v8, 3, v%d" % V_LANE)
a("v_and_b32 v9, 1, v%d" % V_GRP)
a("v_lshl_add_u32 v8, v9, 2, v8")
a("v_lshlrev_b32 v8, 12, v8")
a("v_bfe_u32 v9, v%d, 2, 2" % V_LANE)
a("v_lshl_add_u32 v8, v9, 4, v8")
a("s_mul_i32 s53, s52, %d" % Cfg.ss)
a("s_add_u32 s53, s53, %d" % E3X)
a("s_lshl_b32 s63, s52, 2")
a("v_add_u32 v10, s63, v%d" % V_GRP)
a("v_and_b32 v11, 7, v10")
a("v_sub_u32 v10, v10, v11")
a("v_lshl_add_u32 v10, v10, 2, v11")
a("v_lshlrev_b32 v%d, 1, v10" % V_XA)
srd(44, 4, 896)
for r in range(4):
    a("buffer_load_ushort v%d, v%d, s[44:47], 0 offen offset:%d" % (V_X + r, V_XA, 16 * r))
a.label("L_hpoll")
a("s_sleep 2")
a("buffer_load_dwordx4 v[%d:%d], v8, s[36:39], s53 offen sc1" % (V_G, V_G + 3))
a("s_waitcnt vmcnt(0)")
check12(1, 12, "L_hok")
retry("L_hpoll", False)
a.label("L_hok")
stamp(7)
quad_transpose_reduce([12, 13, 14, 15], 9, 16)
a("v_cndmask_b32 v9, v9, 0, s[%d:%d]" % (S_HI, S_HI + 1))
a("v_mfma_f32_16x16x4_f32 v[%d:%d], v9, v%d, 0" % (V_ACC, V_ACC + 3, V_ONE))
for r in range(4):
    a("v_lshlrev_b32 v%d, 16, v%d" % (V_X + r, V_X + r))
a("v_cvt_pk_bf16_f32 v10, v%d, v%d" % (V_ACC, V_ACC + 1))
a("v_cvt_pk_bf16_f32 v11, v%d, v%d" % (V_ACC + 2, V_ACC + 3))
a("v_lshlrev_b32 v12, 16, v10")
a("v_and_b32 v13, 0xffff0000, v10")
a("v_lshlrev_b32 v14, 16, v11")
a("v_and_b32 v15, 0xffff0000, v11")
for r in range(4):
    a("v_add_f32 v%d, v%d, v%d" % (12 + r, 12 + r, V_X + r))
a("v_cvt_pk_bf16_f32 v10, v12, v13")
a("v_cvt_pk_bf16_f32 v11, v14, v15")
a("v_lshlrev_b32 v%d, 16, v10" % (V_X))
a("v_and_b32 v%d, 0xffff0000, v10" % (V_X + 1))
a("v_lshlrev_b32 v%d, 16, v11" % (V_X + 2))
a("v_and_b32 v%d, 0xffff0000, v11" % (V_X + 3))
a("s_mul_i32 s48, s34, %d" % (56 * 2048))
a("s_lshl_b32 s63, s52, 6")
a("s_add_u32 s48, s48, s63")
a("s_add_u32 s48, s48, %d" % E4)
for t in range(1, 4):
    a("s_add_u32 s%d, s48, %d" % (48 + t, t * 16 * 2048))
for r in range(4):
    a("v_mov_b32 v%d, v%d" % (V_G + 12 + r, V_T + r))
a("s_lshl_b32 s63, s34, 6")
a("v_lshl_add_u32 v22, v%d, 4, s63" % V_GRP)
a("v_lshlrev_b32 v23, 4, v%d" % V_GRP)
srd(44, 22, 896)
a("s_sleep 8")
a.label("L_e4poll")
for t in range(4):
    if t == 3:
        a("s_mov_b32 exec_hi, 0")
    a("buffer_load_dwordx4 v[%d:%d], v%d, s[36:39], s%d offen sc1" % (V_G + 4 * t, V_G + 4 * t + 3, V_GA, 48 + t))
setexec(-1)
a("s_waitcnt vmcnt(0)")
check12(4, XR, "L_e4ok")
retry("L_e4poll", False)
a.label("L_e4ok")
stamp(9)
for r in range(4):
    a("v_add_f32 v%d, v%d, v%d" % (XR + r, XR + r, XR + 4 + r))
    a("v_add_f32 v%d, v%d, v%d" % (XR + 8 + r, XR + 8 + r, XR + 12 + r))
for r in range(4):
    a("v_add_f32 v%d, v%d, v%d" % (XR + r, XR + r, XR + 8 + r))
quad_transpose_reduce([XR, XR + 1, XR + 2, XR + 3], 9, 16)
a("v_mfma_f32_16x16x4_f32 v[%d:%d], v9, v%d, 0" % (V_ACC, V_ACC + 3, V_ONE))
setexec(0x0001000100010001)
a("ds_write_b128 v22, v[%d:%d] offset:%d" % (V_ACC, V_ACC + 3, L_ML))
setexec(-1)
a("s_waitcnt lgkmcnt(0)")
a("s_barrier")
a("s_cmp_lg_u32 s34, 0")
a("s_cbranch_scc1 L_end")
for w in range(4):
    a("ds_read_b128 v[%d:%d], v23 offset:%d" % (XR + 4 * w, XR + 4 * w + 3, L_ML + 64 * w))
a("s_waitcnt lgkmcnt(0)")
for r in range(4):
    a("v_add_f32 v%d, v%d, v%d" % (XR + r, XR + r, XR + 4 + r))
    a("v_add_f32 v%d, v%d, v%d" % (XR + 8 + r, XR + 8 + r, XR + 12 + r))
for r in range(4):
    a("v_add_f32 v%d, v%d, v%d" % (XR + r, XR + r, XR + 8 + r))
a("v_cvt_pk_bf16_f32 v10, v%d, v%d" % (XR, XR + 1))
a("v_cvt_pk_bf16_f32 v11, v%d, v%d" % (XR + 2, XR + 3))
a("v_lshlrev_b32 v12, 16, v10")
a("v_and_b32 v13, 0xffff0000, v10")
a("v_lshlrev_b32 v14, 16, v11")
a("v_and_b32 v15, 0xffff0000, v11")
for r in range(4):
    a("v_add_f32 v%d, v%d, v%d" % (12 + r, 12 + r, V_X + r))
a("v_cvt_pk_bf16_f32 v10, v12, v13")
a("v_cvt_pk_bf16_f32 v11, v14, v15")
setexec(0x0001000100010001)
a("buffer_store_short v10, v%d, s[44:47], 0 offen" % V_XA)
a("buffer_store_short_d16_hi v10, v%d, s[44:47], 0 offen offset:16" % V_XA)
a("buffer_store_short v11, v%d, s[44:47], 0 offen offset:32" % V_XA)
a("buffer_store_short_d16_hi v11, v%d, s[44:47], 0 offen offset:48" % V_XA)
a("s_cmp_lg_u32 s52, 0")
a("s_cbranch_scc1 L_noep")
setexec(1)
a("v_mov_b32 v9, 0")
for k in range(4):
    a("v_mov_b32 v%d, s%d" % (12 + k, 28 + k))
a("buffer_store_dwordx4 v[12:15], v9, s[36:39], 0 offen offset:%d" % EPOCH)
a.label("L_noep")
setexec(-1)
stamp(10)
a("s_branch L_end")

a.label("L_aux")
a.flush()
a("v_lshlrev_b32 v4, 6, v%d" % V_I16)
a("v_lshl_add_u32 v4, v%d, 4, v4" % V_GRP)
a("v_lshrrev_b32 v5, 1, v%d" % V_LANE)
a("v_lshlrev_b32 v5, 13, v5")
a("v_and_b32 v6, 1, v%d" % V_LANE)
a("v_lshl_add_u32 v5, v6, 4, v5")
a("s_lshl_b32 s52, s32, 10")
a("s_lshl_b32 s53, s33, 5")
a("s_add_u32 s52, s52, s53")
a("s_waitcnt lgkmcnt(0)")
srd(44, 4, 896)
srd(40, 10, 448 * 8192)
stamp(11)
a("buffer_load_dwordx4 v[%d:%d], v4, s[44:47], 0 offen" % (V_G, V_G + 3))
for t in range(14):
    a("s_movk_i32 m0, %d" % (L_WQ + 1024 * t))
    a("buffer_load_dwordx4 v5, s[40:43], s52 offen%s lds" % NTW)
    if t < 13:
        a("s_add_u32 s52, s52, %d" % (32 * 8192))
a("s_barrier")
stamp(12)
a("s_load_dwordx4 s[28:31], s[26:27], %d" % EPOCH)
srd(36, 26, WS_SIZE)
srd(48, 16, 448 * 3584)
common_setup()
a("s_lshl_b32 s52, s32, 12")
a("s_add_u32 s52, s52, %d" % E1)
a("v_lshrrev_b32 v24, 2, v%d" % V_LANE)
a("v_lshlrev_b32 v24, 7, v24")
a("v_and_b32 v25, 3, v%d" % V_LANE)
a("v_lshl_add_u32 v24, v25, 4, v24")
a("v_lshlrev_b32 v25, 3, v%d" % V_LANE)
npre = 0
if Cfg.pretouch:
    a("s_add_u32 s63, s54, %d" % E2)
    a("buffer_load_dword v26, v%d, s[36:39], s63 offen sc1" % V_GA)
    a("s_add_u32 s63, s54, %d" % (E2 + 16 * 2048))
    a("buffer_load_dword v26, v%d, s[36:39], s63 offen sc1" % V_GA)
    a("s_add_u32 s63, s54, %d" % E3A)
    a("buffer_load_dword v26, v%d, s[36:39], s63 offen sc1" % V_GA)
    a("s_add_u32 s63, s54, %d" % (E3A + 16 * 2048))
    a("buffer_load_dword v26, v%d, s[36:39], s63 offen sc1" % V_GA)
    a("buffer_load_dword v26, v24, s[36:39], s52 offen sc1")
    a("buffer_load_dword v26, v24, s[36:39], s52 offen offset:2048 sc1")
    npre = 6
a("s_waitcnt vmcnt(%d)" % (14 + npre))
stamp(1)
make_tags()
XF = 160
for k in range(4):
    a("v_lshlrev_b32 v%d, 16, v%d" % (XF + 2 * k, V_G + k))
    a("v_and_b32 v%d, 0xffff0000, v%d" % (XF + 2 * k + 1, V_G + k))
AF = V_G + 8
layernorm([XF + k for k in range(8)], AF, 0x3FFF3FFF3FFF3FFF, 8)
a("v_lshlrev_b32 v4, 8, v%d" % V_GRP)
a("v_lshrrev_b32 v5, 2, v%d" % V_I16)
a("v_lshl_add_u32 v4, v5, 5, v4")
a("v_and_b32 v5, 3, v%d" % V_I16)
a("v_lshl_add_u32 v4, v5, 3, v4")
a("v_mov_b32 v30, v%d" % V_TA)
a("v_mov_b32 v31, v%d" % V_TB)
a("s_lshl_b32 s53, s33, 7")
a("s_add_u32 s53, s53, s52")
a("s_add_u32 s44, s53, %d" % BOFF)
a("v_lshlrev_b32 v27, 4, v%d" % V_GRP)
WF = 32
DQ = 96
for s in range(14):
    a("s_waitcnt vmcnt(%d)" % (13 - s + npre))
    for h in range(2):
        a("ds_read_b64_tr_b16 v[%d:%d], v4 offset:%d" % (WF + 4 * s + 2 * h, WF + 4 * s + 2 * h + 1, L_WQ + 1024 * s + 128 * h))
stamp(2)
a("s_waitcnt lgkmcnt(0)")
for s in range(14):
    a("v_mfma_f32_16x16x32_bf16 v[%d:%d], v[%d:%d], v[%d:%d], 0" % (DQ + 4 * s, DQ + 4 * s + 3, AF, AF + 3, WF + 4 * s, WF + 4 * s + 3))
for G in range(4):
    setexec(0xFFFF << (16 * G))
    b = DQ + 16 * G
    a("v_add_f32 v8, v%d, v%d" % (b, b + 5))
    if G < 3:
        a("v_add_f32 v9, v%d, v%d" % (b + 10, b + 15))
        a("v_add_f32 v8, v8, v9")
setexec(-1)
a("v_mfma_f32_16x16x4_f32 v[%d:%d], v8, v%d, 0" % (V_ACC, V_ACC + 3, V_ONE))
a("v_cvt_pk_bf16_f32 v28, v%d, v%d" % (V_ACC, V_ACC + 1))
a("v_cvt_pk_bf16_f32 v29, v%d, v%d" % (V_ACC + 2, V_ACC + 3))
setexec(0x0001000100010001)
a("buffer_store_dwordx4 v[28:31], v27, s[36:39], s53 offen")
a("buffer_store_dwordx4 v[28:31], v27, s[36:39], s44 offen sc1")
setexec(-1)
stamp(3)
sel_init()
a.label("L_e1poll")
a("s_add_u32 s53, s52, s%d" % S_SEL)
a("buffer_load_dwordx4 v[%d:%d], v24, s[36:39], s53 offen sc1" % (V_G, V_G + 3))
a("buffer_load_dwordx4 v[%d:%d], v24, s[36:39], s53 offen offset:2048 sc1" % (V_G + 4, V_G + 7))
a("s_waitcnt vmcnt(0)")
a("v_xor_b32 v10, v%d, v%d" % (V_G + 2, V_TA))
a("v_xor_b32 v11, v%d, v%d" % (V_G + 6, V_TA))
a("v_xor_b32 v12, v%d, v%d" % (V_G + 3, V_TB))
a("v_xor_b32 v13, v%d, v%d" % (V_G + 7, V_TB))
a("v_or_b32 v14, v10, v11")
a("v_or3_b32 v14, v14, v12, v13")
a("v_cmp_ne_u32 vcc, 0, v14")
a("s_cbranch_vccz L_e1ok")
retry("L_e1poll", True)
a.label("L_e1ok")
a("ds_write_b64 v25, v[%d:%d] offset:%d" % (V_G, V_G + 1, L_Q))
a("ds_write_b64 v25, v[%d:%d] offset:%d" % (V_G + 4, V_G + 5, L_Q + 512))
a("s_waitcnt lgkmcnt(0)")
stamp(4)
a("s_barrier")
a("s_cmp_ge_u32 s33, 28")
a("s_cbranch_scc1 L_end")
a("v_mul_u32_u24 v6, 3584, v%d" % V_LANE)
a("s_lshl_b32 s52, s35, 4")
for t in range(7):
    a("s_movk_i32 m0, %d" % (L_W1 + 1024 * t))
    a("buffer_load_dwordx4 v6, s[48:51], s52 offen%s lds" % NTW)
    if t < 6:
        a("s_add_u32 s52, s52, %d" % (64 * 3584))
a("s_barrier")
a("s_waitcnt vmcnt(0)")
stamp(5)
a("s_barrier")
a.label("L_end")
if Cfg.stamps:
    setexec(-1)
    stamp(15)
    a("s_waitcnt lgkmcnt(0)")
    a("s_lshl_b32 s48, s2, 3")
    a("s_add_u32 s48, s48, s34")
    a("s_lshl_b32 s48, s48, 6")
    a("s_add_u32 s48, s48, %d" % STAMP)
    a("v_mov_b32 v9, 0")
    setexec(1)
    for i in range(16):
        a("v_mov_b32 v10, s%d" % (64 + 2 * i))
        a("buffer_store_dword v10, v9, s[36:39], s48 offen offset:%d" % (4 * i))
a.label("L_exit")
a("s_endpgm")
a.raw('''.section .rodata,"a"
.p2align 6
.amdhsa_kernel %s_kernel
  .amdhsa_next_free_vgpr %d
  .amdhsa_next_free_sgpr 96
  .amdhsa_accum_offset %d
  .amdhsa_group_segment_fixed_size 0
  .amdhsa_kernarg_size 96
  .amdhsa_user_sgpr_count 2
  .amdhsa_user_sgpr_kernarg_segment_ptr 1
  .amdhsa_system_sgpr_workgroup_id_x 1
  .amdhsa_float_denorm_mode_32 3
.end_amdhsa_kernel''' % (NAME, NVGPR, NVGPR))
open(sys.argv[1], "w").write(a.text())
```

```python
import sys, struct
from asmlib import Asm
NAME = "sequential_preLN__sliding_block_cached__dense_activation_mish__decode"

class Cfg:
    stamps = False
    nt = True
    ntw = True
    lds_bytes = 32768
    timeout = 200000
    depth = 8
    ss = 128
    forceB = False
    xsleep = 0
    pretouch = True
    xnt = False
    kstamp = False
for arg in sys.argv[2:]:
    k, v = arg.split('=')
    setattr(Cfg, k, type(getattr(Cfg, k))(int(v)))

NT = " nt" if Cfg.nt else ""
NTW = " nt" if Cfg.ntw else ""
EPOCH = 0x0
E3X = 0x1000
E1 = 0x10000
E2 = 0x20000
E3A = 0xA0000
BOFF = 0x120000
E4 = 0x240000
STAMP = 0x300000
WS_SIZE = 0x400000
L_WQ = 0
L_W1 = 14336
L_Q = 21504
L_O = 22528
L_ML = 30720
assert L_ML + 2048 <= Cfg.lds_bytes

LOG2E = 1.4426950408889634
def f32(x):
    return "0x%08x" % struct.unpack('<I', struct.pack('<f', x))[0]

a = Asm()
a.raw("; @launch grid=(256,1,1) block=(320,1,1) lds=%d" % Cfg.lds_bytes)
a.raw('.amdgcn_target "amdgcn-amd-amdhsa--gfx950"\n.text\n.globl %s_kernel\n.p2align 8\n.type %s_kernel,@function\n%s_kernel:' % (NAME, NAME, NAME))

DPPM = " row_mask:0xf bank_mask:0xf"
def stamp(i):
    if Cfg.stamps:
        a("s_memrealtime s[%d:%d]" % (64 + 2 * i, 65 + 2 * i))

def srd(dst, ptr, nbytes):
    a("s_mov_b32 s%d, s%d" % (dst, ptr))
    a("s_and_b32 s%d, s%d, 0xffff" % (dst + 1, ptr + 1))
    a("s_mov_b32 s%d, %d" % (dst + 2, nbytes))
    a("s_mov_b32 s%d, 0x20000" % (dst + 3))

def setexec(mask):
    if mask == -1:
        a("s_mov_b64 exec, -1")
    else:
        a("s_mov_b32 exec_lo, 0x%08x" % (mask & 0xffffffff))
        a("s_mov_b32 exec_hi, 0x%08x" % (mask >> 32))

def setmask(s, mask):
    a("s_mov_b32 s%d, 0x%08x" % (s, mask & 0xffffffff))
    a("s_mov_b32 s%d, 0x%08x" % (s + 1, mask >> 32))

def bfly(op, v, t, which):
    a("v_mov_b32 v%d, v%d" % (t, v))
    a("v_permlane%d_swap_b32 v%d, v%d" % (which, v, t))
    a("%s v%d, v%d, v%d" % (op, v, v, t))

def bf16r(dst, src):
    a("v_cvt_pk_bf16_f32 v%d, v%d, v%d" % (dst, src, src))
    a("v_and_b32 v%d, 0xffff0000, v%d" % (dst, dst))

S_ODD, S_B1, S_HI = 56, 58, 60
S_TO = 62
S_SEL = 3

def retry(loop, dual):
    a("s_sub_u32 s%d, s%d, 1" % (S_TO, S_TO))
    a("s_cbranch_scc1 L_end")
    if dual and not Cfg.forceB:
        a("s_and_b32 s63, s%d, 15" % S_TO)
        a("s_cmp_eq_u32 s63, 0")
        a("s_cselect_b32 s%d, %d, 0" % (S_SEL, BOFF))
    a("s_branch %s" % loop)

def sel_init():
    a("s_mov_b32 s%d, %d" % (S_SEL, BOFF if Cfg.forceB else 0))

def layernorm(f, out, valid, T):
    e = [T + k for k in range(8)]
    s1, s2, t1, t2 = T + 8, T + 9, T + 10, T + 11
    pk = [T + 12 + k for k in range(4)]
    a("v_readlane_b32 s63, v%d, 0" % f[0])
    a("v_mov_b32 v%d, 0" % s1)
    a("v_mov_b32 v%d, 0" % s2)
    setexec(valid)
    for k in range(8):
        a("v_subrev_f32 v%d, s63, v%d" % (e[k], f[k]))
    a("v_add_f32 v%d, v%d, v%d" % (s1, e[0], e[1]))
    a("v_mul_f32 v%d, v%d, v%d" % (s2, e[0], e[0]))
    a("v_add_f32 v%d, v%d, v%d" % (t1, e[2], e[3]))
    a("v_mul_f32 v%d, v%d, v%d" % (t2, e[1], e[1]))
    for k in range(4, 8):
        a("v_add_f32 v%d, v%d, v%d" % (s1 if k % 2 == 0 else t1, s1 if k % 2 == 0 else t1, e[k]))
    for k in range(2, 8):
        a("v_fmac_f32 v%d, v%d, v%d" % (s2 if k % 2 == 0 else t2, e[k], e[k]))
    a("v_add_f32 v%d, v%d, v%d" % (s1, s1, t1))
    a("v_add_f32 v%d, v%d, v%d" % (s2, s2, t2))
    setexec(-1)
    for i, r in enumerate((8, 4, 2, 1)):
        a("v_add_f32_dpp v%d, v%d, v%d row_ror:%d%s" % (s1, s1, s1, r, DPPM))
        a("v_add_f32_dpp v%d, v%d, v%d row_ror:%d%s" % (s2, s2, s2, r, DPPM))
        a("v_mov_b32 v%d, 0" % (out + i))
    for which in (16, 32):
        a("v_mov_b32 v%d, v%d" % (t1, s1))
        a("v_mov_b32 v%d, v%d" % (t2, s2))
        a("v_permlane%d_swap_b32 v%d, v%d" % (which, s1, t1))
        a("v_permlane%d_swap_b32 v%d, v%d" % (which, s2, t2))
        a("v_add_f32 v%d, v%d, v%d" % (s1, s1, t1))
        a("v_add_f32 v%d, v%d, v%d" % (s2, s2, t2))
    a("v_mul_f32 v%d, %s, v%d" % (s1, f32(1.0 / 448), s1))
    a("v_mul_f32 v%d, %s, v%d" % (s2, f32(1.0 / 448), s2))
    a("v_fma_f32 v%d, -v%d, v%d, v%d" % (s2, s1, s1, s2))
    a("v_add_f32 v%d, s63, v%d" % (s1, s1))
    a("v_max_f32 v%d, 0, v%d" % (s2, s2))
    a("v_cvt_pk_bf16_f32 v%d, v%d, v%d" % (t1, s1, s2))
    a("v_and_b32 v%d, 0xffff0000, v%d" % (s2, t1))
    a("v_lshlrev_b32 v%d, 16, v%d" % (s1, t1))
    a("v_add_f32 v%d, %s, v%d" % (s2, f32(1e-5), s2))
    bf16r(s2, s2)
    a("v_sqrt_f32 v%d, v%d" % (s2, s2))
    for k in range(8):
        a("v_sub_f32 v%d, v%d, v%d" % (e[k], f[k], s1))
    bf16r(s2, s2)
    a("v_rcp_f32 v%d, v%d" % (s2, s2))
    for k in range(4):
        a("v_cvt_pk_bf16_f32 v%d, v%d, v%d" % (pk[k], e[2 * k], e[2 * k + 1]))
    for k in range(4):
        a("v_lshlrev_b32 v%d, 16, v%d" % (e[2 * k], pk[k]))
        a("v_and_b32 v%d, 0xffff0000, v%d" % (e[2 * k + 1], pk[k]))
    for k in range(8):
        a("v_mul_f32 v%d, v%d, v%d" % (e[k], e[k], s2))
    setexec(valid)
    for k in range(4):
        a("v_cvt_pk_bf16_f32 v%d, v%d, v%d" % (out + k, e[2 * k], e[2 * k + 1]))
    setexec(-1)

def quad_transpose_reduce(v, dst, T):
    k0, g0, k1, g1 = T, T + 1, T + 2, T + 3
    a("v_cndmask_b32 v%d, v%d, v%d, s[%d:%d]" % (g0, v[1], v[0], S_ODD, S_ODD + 1))
    a("v_cndmask_b32 v%d, v%d, v%d, s[%d:%d]" % (g1, v[3], v[2], S_ODD, S_ODD + 1))
    a("v_cndmask_b32 v%d, v%d, v%d, s[%d:%d]" % (k0, v[0], v[1], S_ODD, S_ODD + 1))
    a("v_cndmask_b32 v%d, v%d, v%d, s[%d:%d]" % (k1, v[2], v[3], S_ODD, S_ODD + 1))
    a("v_add_f32_dpp v%d, v%d, v%d quad_perm:[1,0,3,2]%s" % (k0, g0, k0, DPPM))
    a("v_add_f32_dpp v%d, v%d, v%d quad_perm:[1,0,3,2]%s" % (k1, g1, k1, DPPM))
    a("v_cndmask_b32 v%d, v%d, v%d, s[%d:%d]" % (g0, k1, k0, S_B1, S_B1 + 1))
    a("v_cndmask_b32 v%d, v%d, v%d, s[%d:%d]" % (dst, k0, k1, S_B1, S_B1 + 1))
    a("v_add_f32_dpp v%d, v%d, v%d quad_perm:[2,3,0,1]%s" % (dst, g0, dst, DPPM))

def check12(n, X, oklab):
    for t in range(n):
        for r in range(4):
            a("v_xor_b32 v%d, v%d, v%d" % (X + 4 * t + r, V_G + 4 * t + r, V_T + r))
    regs = [X + i for i in range(4 * n)]
    acc = [5, 6, 7]
    cur = regs[:]
    outs = []
    i = 0
    while len(cur) >= 3 and i < 3:
        a("v_or3_b32 v%d, v%d, v%d, v%d" % (acc[i], cur[0], cur[1], cur[2])); cur = cur[3:]; outs.append(acc[i]); i += 1
    i = 0
    while len(cur) >= 2:
        o = outs[i % len(outs)]
        a("v_or3_b32 v%d, v%d, v%d, v%d" % (o, o, cur[0], cur[1])); cur = cur[2:]; i += 1
    rest = outs + cur
    while len(rest) > 1:
        if len(rest) >= 3:
            a("v_or3_b32 v%d, v%d, v%d, v%d" % (acc[0], rest[0], rest[1], rest[2])); rest = [acc[0]] + rest[3:]
        else:
            a("v_or_b32 v%d, v%d, v%d" % (acc[0], rest[0], rest[1])); rest = [acc[0]]
    a("v_and_b32 v%d, 0xfff, v%d" % (acc[0], rest[0]))
    a("v_cmp_ne_u32 vcc, 0, v%d" % acc[0])
    a("s_cbranch_vccz %s" % oklab)

V_I16, V_GRP, V_LANE = 1, 2, 3
V_K, V_V, V_WO, V_W2, V_QF, V_W1F = 32, 64, 96, 128, 136, 168
V_M, V_T = 196, 200
V_TA, V_TB, V_T8, V_ONE = 204, 205, 206, 207
V_B1, V_X = 208, 209
V_GA = 213
V_PUB = 214
V_XA = 215
V_ACC = 216
V_G = 232
NVGPR = 248

if Cfg.stamps:
    for i in range(16):
        a("s_mov_b64 s[%d:%d], 0" % (64 + 2 * i, 65 + 2 * i))
stamp(0)
a("s_load_dwordx16 s[4:19], s[0:1], 0")
a("s_load_dwordx8 s[20:27], s[0:1], 64")
a("s_cmp_ge_u32 s2, 256")
a("s_cbranch_scc1 L_exit")
a("v_lshrrev_b32 v4, 6, v0")
a("v_and_b32 v%d, 63, v0" % V_LANE)
a("v_readfirstlane_b32 s34, v4")
a("v_and_b32 v%d, 15, v0" % V_I16)
a("v_bfe_u32 v%d, v0, 4, 2" % V_GRP)
a("s_and_b32 s32, s2, 7")
a("s_lshr_b32 s33, s2, 3")
a("s_cmp_eq_u32 s34, 4")
a("s_cbranch_scc1 L_aux")

def common_setup():
    a("s_mul_i32 s35, s32, 28")
    a("s_add_u32 s35, s35, s33")
    a("s_mov_b32 s%d, %d" % (S_TO, Cfg.timeout))
    setmask(S_ODD, 0xAAAAAAAAAAAAAAAA)
    setmask(S_B1, 0xCCCCCCCCCCCCCCCC)
    setmask(S_HI, 0xFFFFFFFF00000000)
    a("v_mov_b32 v%d, 1.0" % V_ONE)
    a("v_and_b32 v8, 3, v%d" % V_LANE)
    a("v_lshl_add_u32 v8, v%d, 2, v8" % V_GRP)
    a("v_lshlrev_b32 v8, 11, v8")
    a("v_bfe_u32 v9, v%d, 2, 2" % V_LANE)
    a("v_lshl_add_u32 v%d, v9, 4, v8" % V_GA)
    a("s_lshl_b32 s54, s32, 16")
    a("s_lshl_b32 s63, s33, 6")
    a("s_add_u32 s54, s54, s63")
    a("s_lshl_b32 s55, s32, 5")
    a("s_add_u32 s55, s55, s33")
    a("s_lshl_b32 s55, s55, 11")

def make_tags():
    a("s_waitcnt lgkmcnt(0)")
    for k in range(4):
        a("s_add_u32 s%d, s%d, 1" % (28 + k, 28 + k))
    for k in range(4):
        a("s_and_b32 s63, s%d, 0xfff" % (28 + k))
        a("v_mov_b32 v%d, s63" % (V_T + k))
    a("v_mov_b32 v%d, s30" % V_TA)
    a("v_mov_b32 v%d, s31" % V_TB)
    a("s_and_b32 s63, s30, 0xff")
    a("v_mov_b32 v%d, s63" % V_T8)

a("s_lshl_b32 s48, s32, 22")
a("s_lshl_b32 s49, s33, 15")
a("s_add_u32 s48, s48, s49")
a("s_lshl_b32 s49, s34, 13")
a("s_add_u32 s48, s48, s49")
a("s_add_u32 s48, s48, %d" % (6144 * 512))
a("v_lshlrev_b32 v4, 9, v%d" % V_I16)
a("v_lshl_add_u32 v4, v%d, 4, v4" % V_GRP)
a("v_lshlrev_b32 v5, 11, v%d" % V_GRP)
a("v_lshl_add_u32 v5, v%d, 4, v5" % V_I16)
a("s_waitcnt lgkmcnt(0)")
a("s_load_dwordx4 s[28:31], s[26:27], %d" % EPOCH)
srd(40, 6, 33554432)
srd(44, 8, 33554432)
srd(36, 26, WS_SIZE)
stamp(11)
a("s_barrier")
stamp(12)
nissued = [0]
def paced(text):
    if Cfg.depth and nissued[0] >= Cfg.depth:
        a("s_waitcnt vmcnt(%d)" % (Cfg.depth - 1))
    a(text)
    nissued[0] += 1
for s in range(8):
    paced("buffer_load_dwordx4 v[%d:%d], v4, s[40:43], s48 offen offset:%d%s" % (V_K + 4 * s, V_K + 4 * s + 3, 64 * s, NT))
if Cfg.kstamp:
    a("s_waitcnt lgkmcnt(0)")
    stamp(5)
    a("s_waitcnt vmcnt(7)")
    stamp(6)
    a("s_waitcnt vmcnt(0)")
    stamp(7)
common_setup()
a("v_and_b32 v6, 1, v%d" % V_I16)
a("v_lshlrev_b32 v6, 4, v6")
a("v_mov_b32 v7, 0xffff")
a("v_lshlrev_b32 v7, v6, v7")
a("v_bfe_u32 v6, v%d, 1, 2" % V_I16)
for rho in range(4):
    a("v_cmp_eq_u32 vcc, %d, v6" % rho)
    a("v_cndmask_b32 v%d, 0, v7, vcc" % (V_M + rho))
a("v_lshl_add_u32 v8, v%d, 3, v%d" % (V_GRP, V_I16))
a("v_lshlrev_b32 v%d, 4, v8" % V_PUB)
a("s_lshl_b32 s50, s32, 9")
a("s_bfe_u32 s49, s33, 0x10001")
a("s_lshl_b32 s49, s49, 8")
a("s_add_u32 s50, s50, s49")
a("s_lshr_b32 s49, s33, 4")
a("s_lshl_b32 s49, s49, 7")
a("s_add_u32 s50, s50, s49")
a("s_bfe_u32 s49, s33, 0x20002")
a("s_lshl_b32 s49, s49, 5")
a("s_add_u32 s50, s50, s49")
a("s_and_b32 s49, s33, 1")
a("s_lshl_b32 s49, s49, 2")
a("s_add_u32 s50, s50, s49")
a("s_mul_i32 s50, s50, 896")
a("s_and_b32 s49, s34, 1")
a("s_lshl_b32 s49, s49, 9")
a("s_add_u32 s50, s50, s49")
a("s_add_u32 s51, s50, 7168")
a("s_add_u32 s52, s50, %d" % (2 * 7168))
a("s_add_u32 s53, s50, %d" % (3 * 7168))
a("v_mul_u32_u24 v6, 896, v%d" % V_GRP)
a("v_lshl_add_u32 v6, v%d, 4, v6" % V_I16)
make_tags()
for r in range(4):
    for h in range(2):
        n = 2 * r + h
        paced("buffer_load_dwordx4 v[%d:%d], v5, s[44:47], s48 offen offset:%d%s" % (V_V + 4 * n, V_V + 4 * n + 3, 512 * r + 256 * h, NT))
stamp(13)
a("v_lshrrev_b32 v7, 3, v%d" % V_I16)
a("v_lshlrev_b32 v7, 9, v7")
a("v_lshl_add_u32 v7, v%d, 4, v7" % V_GRP)
srd(40, 12, 4096 * 896)
a("s_cmp_lt_u32 s34, 2")
a("s_cbranch_scc1 L_nowo")
for q, so in enumerate((50, 51, 52, 53)):
    a("buffer_load_dwordx4 v[%d:%d], v6, s[40:43], s%d offen%s" % (V_WO + 4 * q, V_WO + 4 * q + 3, so, NT))
a("s_cmp_lg_u32 s34, 3")
a("s_cbranch_scc1 L_nomask")
setexec(0x00FF00FF00FF00FF)
a.label("L_nomask")
for q, so in enumerate((50, 51, 52, 53)):
    a("buffer_load_dwordx4 v[%d:%d], v6, s[40:43], s%d offen offset:256%s" % (V_WO + 16 + 4 * q, V_WO + 16 + 4 * q + 3, so, NT))
setexec(-1)
a("s_mov_b32 s49, 8")
a("s_branch L_wodone")
a.label("L_nowo")
a("s_mov_b32 s49, 0")
a.label("L_wodone")
stamp(1)
a("s_barrier")
stamp(2)
for s in range(8):
    a("ds_read_b128 v[%d:%d], v7 offset:%d" % (V_QF + 4 * s, V_QF + 4 * s + 3, L_Q + 64 * s))

def wait_v(n):
    l1, l2 = a.newlabel("L_wv"), a.newlabel("L_wv")
    a("s_cmp_eq_u32 s49, 0")
    a("s_cbranch_scc1 %s" % l1)
    a("s_waitcnt vmcnt(%d)" % (n + 8))
    a("s_branch %s" % l2)
    a.label(l1)
    a("s_waitcnt vmcnt(%d)" % n)
    a.label(l2)
wait_v(8)
a("s_waitcnt lgkmcnt(0)")
S = V_ACC
for s in range(8):
    a("v_mfma_f32_16x16x32_bf16 v[%d:%d], v[%d:%d], v[%d:%d], %s" % (S, S + 3, V_K + 4 * s, V_K + 4 * s + 3, V_QF + 4 * s, V_QF + 4 * s + 3, "0" if s == 0 else "v[%d:%d]" % (S, S + 3)))
a("s_lshl_b32 s63, s34, 11")
a("v_lshl_add_u32 v22, v%d, 4, s63" % V_LANE)
a("s_lshl_b32 s63, s34, 9")
a("v_lshl_add_u32 v23, v%d, 3, s63" % V_LANE)
a("s_mov_b32 s63, %s" % f32(0.0625 * LOG2E))
a("v_cvt_pk_bf16_f32 v8, v%d, v%d" % (S, S + 1))
a("v_cvt_pk_bf16_f32 v9, v%d, v%d" % (S + 2, S + 3))
a("v_lshlrev_b32 v10, 16, v8")
a("v_and_b32 v11, 0xffff0000, v8")
a("v_lshlrev_b32 v12, 16, v9")
a("v_and_b32 v13, 0xffff0000, v9")
a("v_max3_f32 v14, v10, v11, v12")
a("v_max_f32 v14, v14, v13")
bfly("v_max_f32", 14, 15, 16)
bfly("v_max_f32", 14, 15, 32)
a("v_mul_f32 v14, s63, v14")
for r in range(4):
    a("v_fma_f32 v%d, v%d, s63, -v14" % (10 + r, 10 + r))
for r in range(4):
    a("v_exp_f32 v%d, v%d" % (10 + r, 10 + r))
for r in range(4):
    a("v_cvt_pk_bf16_f32 v%d, v%d, v%d" % (16 + r, 10 + r, 10 + r))
O = V_ACC + 4
BB = V_QF
for r in range(4):
    for rho in range(4):
        a("v_and_b32 v%d, v%d, v%d" % (BB + 4 * r + rho, 16 + r, V_M + rho))
a("v_add_f32 v15, v10, v11")
a("v_add_f32 v20, v12, v13")
a("v_add_f32 v15, v15, v20")
bfly("v_add_f32", 15, 20, 16)
bfly("v_add_f32", 15, 20, 32)
a("ds_write_b64 v23, v[14:15] offset:%d" % L_ML)
wait_v(2)
for r in range(4):
    if r == 3:
        wait_v(0)
    for h in range(2):
        n = 2 * r + h
        a("v_mfma_f32_16x16x32_bf16 v[%d:%d], v[%d:%d], v[%d:%d], %s" % (O + 4 * h, O + 4 * h + 3, V_V + 4 * n, V_V + 4 * n + 3, BB + 4 * r, BB + 4 * r + 3, "0" if r == 0 else "v[%d:%d]" % (O + 4 * h, O + 4 * h + 3)))
a("ds_write_b128 v22, v[%d:%d] offset:%d" % (O, O + 3, L_O))
a("ds_write_b128 v22, v[%d:%d] offset:%d" % (O + 4, O + 7, L_O + 1024))
a("s_waitcnt lgkmcnt(0)")
a("s_barrier")
stamp(3)
a("s_cmp_ge_u32 s34, 2")
a("s_cbranch_scc1 L_e2")
a("s_lshl_b32 s63, s34, 10")
a("v_lshl_add_u32 v8, v%d, 4, s63" % V_LANE)
a("v_lshlrev_b32 v9, 3, v%d" % V_LANE)
for w in range(4):
    a("ds_read_b64 v[%d:%d], v9 offset:%d" % (10 + 2 * w, 11 + 2 * w, L_ML + 512 * w))
for w in range(4):
    a("ds_read_b128 v[%d:%d], v8 offset:%d" % (V_G + 4 * w, V_G + 4 * w + 3, L_O + 2048 * w))
a("s_add_u32 s48, s55, %d" % E2)
a("s_add_u32 s49, s55, %d" % (E2 + BOFF))
a("s_movk_i32 s63, 0xff")
a("v_mov_b32 v31, v%d" % V_TB)
a("s_waitcnt lgkmcnt(4)" if not Cfg.stamps else "s_waitcnt lgkmcnt(0)")
a("v_max3_f32 v18, v10, v12, v14")
a("v_max_f32 v18, v18, v16")
for w in range(4):
    a("v_sub_f32 v%d, v%d, v18" % (10 + 2 * w, 10 + 2 * w))
for w in range(4):
    a("v_exp_f32 v%d, v%d" % (10 + 2 * w, 10 + 2 * w))
a("v_mul_f32 v19, v10, v11")
for w in range(1, 4):
    a("v_fmac_f32 v19, v%d, v%d" % (10 + 2 * w, 11 + 2 * w))
a("v_rcp_f32 v20, v19")
a("v_log_f32 v21, v19")
a("s_waitcnt lgkmcnt(0)")
for r in range(4):
    a("v_mul_f32 v%d, v10, v%d" % (24 + r, V_G + r))
for w in range(1, 4):
    for r in range(4):
        a("v_fmac_f32 v%d, v%d, v%d" % (24 + r, 10 + 2 * w, V_G + 4 * w + r))
a("v_add_f32 v21, v21, v18")
for r in range(4):
    a("v_mul_f32 v%d, v%d, v20" % (24 + r, 24 + r))
a("v_bfi_b32 v30, s63, v%d, v21" % V_T8)
a("v_cvt_pk_bf16_f32 v28, v24, v25")
a("v_cvt_pk_bf16_f32 v29, v26, v27")
a("buffer_store_dwordx4 v[28:31], v8, s[36:39], s48 offen")
a("buffer_store_dwordx4 v[28:31], v8, s[36:39], s49 offen sc1")
stamp(4)
a("s_cmp_ge_u32 s33, 28")
a("s_cbranch_scc1 L_b3")
a("s_cmp_eq_u32 s34, 1")
a("s_cbranch_scc1 L_b3")
sel_init()
a("s_lshl_b32 s51, s32, 12")
a("s_mul_i32 s63, s33, %d" % Cfg.ss)
a("s_add_u32 s51, s51, s63")
a("s_add_u32 s51, s51, %d" % E3X)
a("v_lshlrev_b32 v4, 4, v%d" % V_GRP)
a.label("L_e3apoll")
a("s_add_u32 s48, s54, s%d" % S_SEL)
a("s_add_u32 s49, s48, %d" % (E3A + 16 * 2048))
a("s_add_u32 s48, s48, %d" % E3A)
a("buffer_load_dwordx4 v[%d:%d], v%d, s[36:39], s48 offen sc1" % (V_G, V_G + 3, V_GA))
a("buffer_load_dwordx4 v[%d:%d], v%d, s[36:39], s49 offen sc1" % (V_G + 4, V_G + 7, V_GA))
a("s_waitcnt vmcnt(0)")
check12(2, 12, "L_e3aok")
retry("L_e3apoll", True)
a.label("L_e3aok")
stamp(7)
for r in range(4):
    a("v_add_f32 v%d, v%d, v%d" % (12 + r, 12 + r, 16 + r))
quad_transpose_reduce([12, 13, 14, 15], 9, 16)
a("v_mfma_f32_16x16x4_f32 v[%d:%d], v9, v%d, 0" % (V_ACC, V_ACC + 3, V_ONE))
a("s_movk_i32 s63, 0xfff")
setexec(0x0001000100010001)
for r in range(4):
    a("v_bfi_b32 v%d, s63, v%d, v%d" % (28 + r, V_T + r, V_ACC + r))
a("buffer_store_dwordx4 v[28:31], v4, s[36:39], s51 offen sc1")
setexec(-1)
stamp(8)
a("s_branch L_b3")

a.label("L_e2")
a.flush()
sel_init()
a.label("L_e2poll")
a("s_add_u32 s48, s54, s%d" % S_SEL)
a("s_add_u32 s49, s48, %d" % (E2 + 16 * 2048))
a("s_add_u32 s48, s48, %d" % E2)
a("buffer_load_dwordx4 v[%d:%d], v%d, s[36:39], s48 offen sc1" % (V_G, V_G + 3, V_GA))
a("buffer_load_dwordx4 v[%d:%d], v%d, s[36:39], s49 offen sc1" % (V_G + 4, V_G + 7, V_GA))
a("s_waitcnt vmcnt(0)")
a("v_xor_b32 v10, v%d, v%d" % (V_G + 2, V_T8))
a("v_xor_b32 v11, v%d, v%d" % (V_G + 6, V_T8))
a("v_xor_b32 v12, v%d, v%d" % (V_G + 3, V_TB))
a("v_xor_b32 v13, v%d, v%d" % (V_G + 7, V_TB))
a("v_or_b32 v14, v10, v11")
a("v_and_b32 v14, 0xff, v14")
a("v_or3_b32 v14, v14, v12, v13")
a("v_cmp_ne_u32 vcc, 0, v14")
a("s_cbranch_vccz L_e2ok")
retry("L_e2poll", True)
a.label("L_e2ok")
stamp(5)
a("v_max_f32 v14, v10, v11")
for t in range(2):
    a("v_lshlrev_b32 v%d, 16, v%d" % (16 + 4 * t, V_G + 4 * t))
    a("v_and_b32 v%d, 0xffff0000, v%d" % (17 + 4 * t, V_G + 4 * t))
    a("v_max_f32_dpp v14, v14, v14 quad_perm:[%s]%s" % ("1,0,3,2" if t == 0 else "2,3,0,1", DPPM))
for t, which in enumerate((16, 32)):
    a("v_mov_b32 v15, v14")
    a("v_lshlrev_b32 v%d, 16, v%d" % (18 + 4 * t, V_G + 4 * t + 1))
    a("v_and_b32 v%d, 0xffff0000, v%d" % (19 + 4 * t, V_G + 4 * t + 1))
    a("v_permlane%d_swap_b32 v14, v15" % which)
    a("v_max_f32 v14, v14, v15")
a("v_sub_f32 v10, v10, v14")
a("v_sub_f32 v11, v11, v14")
a("v_exp_f32 v10, v10")
a("v_exp_f32 v11, v11")
a("s_add_u32 s48, s55, %d" % E3A)
for r in range(4):
    a("v_mul_f32 v%d, v%d, v10" % (16 + r, 16 + r))
a("v_add_f32 v12, v10, v11")
for r in range(4):
    a("v_fmac_f32 v%d, v%d, v11" % (16 + r, 20 + r))
a("v_add_f32_dpp v12, v12, v12 quad_perm:[1,0,3,2]%s" % DPPM)
quad_transpose_reduce([16, 17, 18, 19], 13, 24)
a("v_add_f32_dpp v12, v12, v12 quad_perm:[2,3,0,1]%s" % DPPM)
a("v_mfma_f32_16x16x4_f32 v[%d:%d], v13, v%d, 0" % (V_ACC, V_ACC + 3, V_ONE))
a("v_mfma_f32_16x16x4_f32 v[%d:%d], v12, v%d, 0" % (V_ACC + 4, V_ACC + 7, V_ONE))
a("s_and_b32 s63, s34, 1")
a("s_lshl_b32 s63, s63, 10")
a("s_add_u32 s48, s48, s63")
a("s_add_u32 s49, s48, %d" % BOFF)
a("s_movk_i32 s63, 0xfff")
a("v_rcp_f32 v12, v%d" % (V_ACC + 4))
for r in range(4):
    a("v_mul_f32 v%d, v%d, v12" % (16 + r, V_ACC + r))
for r in range(4):
    a("v_cvt_pk_bf16_f32 v%d, v%d, v%d" % (16 + r, 16 + r, 16 + r))
A2 = V_ACC + 8
for q in range(4):
    for rho in range(4):
        a("v_and_b32 v%d, v%d, v%d" % (BB + 4 * q + rho, 16 + q, V_M + rho))
    if q >= 1:
        qq = q - 1
        for b in range(2):
            a("v_mfma_f32_16x16x32_bf16 v[%d:%d], v[%d:%d], v[%d:%d], %s" % (A2 + 4 * b, A2 + 4 * b + 3, V_WO + 16 * b + 4 * qq, V_WO + 16 * b + 4 * qq + 3, BB + 4 * qq, BB + 4 * qq + 3, "0" if qq == 0 else "v[%d:%d]" % (A2 + 4 * b, A2 + 4 * b + 3)))
for b in range(2):
    a("v_mfma_f32_16x16x32_bf16 v[%d:%d], v[%d:%d], v[%d:%d], v[%d:%d]" % (A2 + 4 * b, A2 + 4 * b + 3, V_WO + 16 * b + 12, V_WO + 16 * b + 15, BB + 12, BB + 15, A2 + 4 * b, A2 + 4 * b + 3))
a("v_cmp_lt_u32 vcc, 7, v%d" % V_I16)
a("v_add_u32 v4, %d, v%d" % (512 - 128, V_PUB))
a("v_cndmask_b32 v4, v%d, v4, vcc" % V_PUB)
for r in range(4):
    a("v_cndmask_b32 v%d, v%d, v%d, vcc" % (24 + r, A2 + r, A2 + 4 + r))
for r in range(4):
    a("v_bfi_b32 v%d, s63, v%d, v%d" % (28 + r, V_T + r, 24 + r))
a("s_cmp_lg_u32 s34, 3")
a("s_cbranch_scc1 L_pm1")
a("s_mov_b32 exec_hi, 0x00ff00ff")
a.label("L_pm1")
a("buffer_store_dwordx4 v[28:31], v4, s[36:39], s48 offen")
a("buffer_store_dwordx4 v[28:31], v4, s[36:39], s49 offen sc1")
setexec(-1)
stamp(6)

a.label("L_b3")
a.flush()
a("s_cmp_ge_u32 s33, 28")
a("s_cbranch_scc1 L_fin")
a("v_lshrrev_b32 v8, 3, v%d" % V_I16)
a("v_sub_u32 v8, v%d, v8" % V_I16)
a("v_min_u32 v8, 13, v8")
a("v_lshrrev_b32 v9, 1, v%d" % V_GRP)
a("v_lshl_add_u32 v9, v8, 1, v9")
a("v_mul_u32_u24 v9, %d, v9" % Cfg.ss)
a("v_and_b32 v10, 1, v%d" % V_GRP)
a("v_lshl_add_u32 v%d, v10, 5, v9" % V_XA)
a("v_bfe_u32 v7, v%d, 1, 1" % V_I16)
a("v_mul_u32_u24 v7, %d, v7" % (224 * 16))
a("v_lshl_add_u32 v7, v%d, 5, v7" % V_GRP)
a("v_lshrrev_b32 v11, 2, v%d" % V_I16)
a("v_lshl_add_u32 v7, v11, 7, v7")
a("v_and_b32 v11, 1, v%d" % V_I16)
a("v_lshl_add_u32 v7, v11, 3, v7")
a("v_lshlrev_b32 v12, 6, v8")
a("v_lshl_add_u32 v12, v%d, 2, v12" % V_GRP)
a("v_lshlrev_b32 v13, 2, v10")
a("v_and_b32 v14, 2, v%d" % V_GRP)
a("v_add_u32 v13, v13, v14")
a("v_mul_u32_u24 v14, 896, v13")
a("v_lshl_add_u32 v14, v%d, 4, v14" % V_I16)
a("v_add_u32 v13, v13, v11")
a("v_lshlrev_b32 v13, 1, v13")
srd(40, 20, 1792 * 896)
srd(44, 4, 896)
srd(48, 18, 1792 * 2)
a("s_mul_i32 s52, s35, %d" % (8 * 896))
a("s_lshl_b32 s63, s34, 8")
a("s_add_u32 s52, s52, s63")
a("s_lshl_b32 s53, s35, 4")
a("s_lshl_b32 s%d, s34, 13" % S_SEL)
a("s_add_u32 s%d, s%d, %d" % (S_SEL, S_SEL, E3X))
a("s_add_u32 s54, s%d, 4096" % S_SEL)
a("s_lshl_b32 s63, s34, 11")
a("v_lshl_add_u32 v22, v%d, 4, s63" % V_LANE)
a("v_lshlrev_b32 v23, 4, v%d" % V_LANE)
a("s_barrier")
stamp(9)
for e in range(4):
    a("buffer_load_dword v%d, v12, s[44:47], 0 offen offset:%d" % (V_X + e, 16 * e))
a("buffer_load_ushort v%d, v13, s[48:51], s53 offen" % V_B1)
a("s_cmp_lg_u32 s34, 3")
a("s_cbranch_scc1 L_nomask2")
setexec(0x00FF00FF00FF00FF)
a.label("L_nomask2")
for q in range(2):
    a("buffer_load_dwordx4 v[%d:%d], v14, s[40:43], s52 offen offset:%d%s" % (V_W2 + 4 * q, V_W2 + 4 * q + 3, 896 * q, NT))
setexec(-1)
for m in range(7):
    for u in range(2):
        a("ds_read_b64_tr_b16 v[%d:%d], v7 offset:%d" % (V_W1F + 4 * m + 2 * u, V_W1F + 4 * m + 2 * u + 1, L_W1 + 512 * m + 16 * u))
if Cfg.xsleep:
    a("s_sleep %d" % Cfg.xsleep)
a.label("L_e3xpoll")
a("buffer_load_dwordx4 v[%d:%d], v%d, s[36:39], s%d offen sc1" % (V_G, V_G + 3, V_XA, S_SEL))
a("buffer_load_dwordx4 v[%d:%d], v%d, s[36:39], s%d offen offset:16 sc1" % (V_G + 4, V_G + 7, V_XA, S_SEL))
a("buffer_load_dwordx4 v[%d:%d], v%d, s[36:39], s54 offen sc1" % (V_G + 8, V_G + 11, V_XA))
a("buffer_load_dwordx4 v[%d:%d], v%d, s[36:39], s54 offen offset:16 sc1" % (V_G + 12, V_G + 15, V_XA))
a("s_waitcnt vmcnt(0)")
XR = V_K
check12(4, XR, "L_e3xok")
retry("L_e3xpoll", False)
a.label("L_e3xok")
stamp(10)
for k in range(8):
    a("v_add_f32 v%d, v%d, v%d" % (XR + k, XR + k, XR + 8 + k))
a("ds_write_b128 v22, v[%d:%d] offset:%d" % (XR, XR + 3, L_O))
a("ds_write_b128 v22, v[%d:%d] offset:%d" % (XR + 4, XR + 7, L_O + 1024))
a("v_lshlrev_b32 v%d, 16, v%d" % (V_B1, V_B1))
XF = V_K + 16
for e in range(4):
    a("v_lshlrev_b32 v%d, 16, v%d" % (XF + e, V_X + e))
    a("v_and_b32 v%d, 0xffff0000, v%d" % (XF + 4 + e, V_X + e))
a("s_waitcnt lgkmcnt(0)")
a("s_barrier")
PR = V_V
for w in range(4):
    a("ds_read_b128 v[%d:%d], v23 offset:%d" % (PR + 8 * w, PR + 8 * w + 3, L_O + 2048 * w))
    a("ds_read_b128 v[%d:%d], v23 offset:%d" % (PR + 8 * w + 4, PR + 8 * w + 7, L_O + 2048 * w + 1024))
a("s_waitcnt lgkmcnt(0)")
for k in range(8):
    a("v_add_f32 v%d, v%d, v%d" % (PR + k, PR + k, PR + 8 + k))
    a("v_add_f32 v%d, v%d, v%d" % (PR + 16 + k, PR + 16 + k, PR + 24 + k))
for k in range(8):
    a("v_add_f32 v%d, v%d, v%d" % (PR + k, PR + k, PR + 16 + k))
for k in range(4):
    a("v_cvt_pk_bf16_f32 v%d, v%d, v%d" % (PR + 8 + k, PR + 2 * k, PR + 2 * k + 1))
for k in range(4):
    a("v_lshlrev_b32 v%d, 16, v%d" % (PR + 2 * k, PR + 8 + k))
    a("v_and_b32 v%d, 0xffff0000, v%d" % (PR + 2 * k + 1, PR + 8 + k))
for k in range(8):
    a("v_add_f32 v%d, v%d, v%d" % (PR + k, PR + k, XF + k))
for k in range(4):
    a("v_cvt_pk_bf16_f32 v%d, v%d, v%d" % (PR + 8 + k, PR + 2 * k, PR + 2 * k + 1))
for k in range(4):
    a("v_lshlrev_b32 v%d, 16, v%d" % (PR + 2 * k, PR + 8 + k))
    a("v_and_b32 v%d, 0xffff0000, v%d" % (PR + 2 * k + 1, PR + 8 + k))
AF = V_G
layernorm([PR + k for k in range(8)], AF, 0x7F7F7F7F7F7F7F7F, 8)
D1 = V_K
for m in range(7):
    a("v_mfma_f32_16x16x32_bf16 v[%d:%d], v[%d:%d], v[%d:%d], 0" % (D1 + 4 * m, D1 + 4 * m + 3, AF, AF + 3, V_W1F + 4 * m, V_W1F + 4 * m + 3))
a("v_mov_b32 v8, 0")
setexec(0x0000FF00000000FF)
a("v_add_f32 v8, v%d, v%d" % (D1 + 0, D1 + 4 + 1))
a("v_add_f32 v9, v%d, v%d" % (D1 + 8 + 2, D1 + 12 + 3))
a("v_add_f32 v8, v8, v9")
setexec(0xFF00000000FF0000)
a("v_add_f32 v8, v%d, v%d" % (D1 + 16, D1 + 20 + 1))
a("v_add_f32 v8, v8, v%d" % (D1 + 24 + 2))
setexec(-1)
a("v_add_f32_dpp v8, v8, v8 row_ror:8%s" % DPPM)
a("v_mfma_f32_16x16x4_f32 v[%d:%d], v8, v%d, 0" % (V_ACC, V_ACC + 3, V_ONE))
a("s_lshl_b32 s48, s35, 11")
a("s_lshl_b32 s63, s34, 9")
a("s_add_u32 s48, s48, s63")
a("s_add_u32 s48, s48, %d" % E4)
a("s_mov_b32 s63, %s" % f32(-LOG2E))
a("v_cndmask_b32 v8, v%d, v%d, s[%d:%d]" % (V_ACC, V_ACC + 1, S_ODD, S_ODD + 1))
a("v_cndmask_b32 v9, v%d, v%d, s[%d:%d]" % (V_ACC + 2, V_ACC + 3, S_ODD, S_ODD + 1))
a("v_cndmask_b32 v8, v8, v9, s[%d:%d]" % (S_HI, S_HI + 1))
bf16r(8, 8)
a("v_add_f32 v8, v8, v%d" % V_B1)
bf16r(8, 8)
a("v_mul_f32 v9, s63, abs(v8)")
a("v_exp_f32 v9, v9")
a("v_max_f32 v17, 0, v8")
bf16r(9, 9)
a("v_add_f32 v10, 1.0, v9")
a("v_add_f32 v11, -1.0, v10")
a("v_log_f32 v12, v10")
a("v_rcp_f32 v13, v11")
a("v_cmp_eq_f32 vcc, 0, v11")
a("v_mul_f32 v12, %s, v12" % f32(0.6931471805599453))
a("v_mul_f32 v13, v13, v9")
a("v_mul_f32 v12, v12, v13")
a("v_cndmask_b32 v12, v12, v9, vcc")
bf16r(12, 12)
a("v_add_f32 v12, v12, v17")
bf16r(12, 12)
a("v_mul_f32 v13, %s, v12" % f32(-2.0 * LOG2E))
a("v_exp_f32 v13, v13")
a("v_mul_f32 v16, v12, v12")
a("v_add_f32 v14, 1.0, v13")
a("v_sub_f32 v15, 1.0, v13")
a("v_rcp_f32 v14, v14")
a("v_mul_f32 v16, %s, v16" % f32(-1.0 / 3.0))
a("v_cmp_gt_f32 vcc, %s, v12" % f32(2.0 ** -6))
a("v_fma_f32 v16, v16, v12, v12")
a("v_mul_f32 v14, v14, v15")
a("v_cndmask_b32 v14, v14, v16, vcc")
bf16r(14, 14)
a("v_mul_f32 v14, v14, v8")
a("v_cvt_pk_bf16_f32 v14, v14, v14")
a("s_movk_i32 s63, 0xfff")
for q in range(2):
    for rho in range(4):
        a("v_and_b32_dpp v%d, v14, v%d quad_perm:[%d,%d,%d,%d]%s" % (BB + 4 * q + rho, V_M + rho, q, q, 2 + q, 2 + q, DPPM))
for q in range(2):
    a("v_mfma_f32_16x16x32_bf16 v[%d:%d], v[%d:%d], v[%d:%d], %s" % (A2, A2 + 3, V_W2 + 4 * q, V_W2 + 4 * q + 3, BB + 4 * q, BB + 4 * q + 3, "0" if q == 0 else "v[%d:%d]" % (A2, A2 + 3)))
setexec(0x00FF00FF00FF00FF)
a("s_cmp_lg_u32 s34, 3")
a("s_cbranch_scc1 L_pm2")
a("s_mov_b32 exec_hi, 0")
a.label("L_pm2")
for r in range(4):
    a("v_bfi_b32 v%d, s63, v%d, v%d" % (28 + r, V_T + r, A2 + r))
a("buffer_store_dwordx4 v[28:31], v%d, s[36:39], s48 offen sc1" % V_PUB)
setexec(-1)
stamp(14)
a("s_branch L_end")

a.label("L_fin")
a.flush()
a("s_sub_u32 s52, s2, 224")
a("s_cmp_ge_u32 s52, 28")
a("s_cbranch_scc1 L_end")
a("v_and_b32 v8, 3, v%d" % V_LANE)
a("v_and_b32 v9, 1, v%d" % V_GRP)
a("v_lshl_add_u32 v8, v9, 2, v8")
a("v_lshlrev_b32 v8, 12, v8")
a("v_bfe_u32 v9, v%d, 2, 2" % V_LANE)
a("v_lshl_add_u32 v8, v9, 4, v8")
a("s_mul_i32 s53, s52, %d" % Cfg.ss)
a("s_add_u32 s53, s53, %d" % E3X)
a("s_lshl_b32 s63, s52, 2")
a("v_add_u32 v10, s63, v%d" % V_GRP)
a("v_and_b32 v11, 7, v10")
a("v_sub_u32 v10, v10, v11")
a("v_lshl_add_u32 v10, v10, 2, v11")
a("v_lshlrev_b32 v%d, 1, v10" % V_XA)
srd(44, 4, 896)
for r in range(4):
    a("buffer_load_ushort v%d, v%d, s[44:47], 0 offen offset:%d" % (V_X + r, V_XA, 16 * r))
a.label("L_hpoll")
a("s_sleep 2")
a("buffer_load_dwordx4 v[%d:%d], v8, s[36:39], s53 offen sc1" % (V_G, V_G + 3))
a("s_waitcnt vmcnt(0)")
check12(1, 12, "L_hok")
retry("L_hpoll", False)
a.label("L_hok")
stamp(7)
quad_transpose_reduce([12, 13, 14, 15], 9, 16)
a("v_cndmask_b32 v9, v9, 0, s[%d:%d]" % (S_HI, S_HI + 1))
a("v_mfma_f32_16x16x4_f32 v[%d:%d], v9, v%d, 0" % (V_ACC, V_ACC + 3, V_ONE))
for r in range(4):
    a("v_lshlrev_b32 v%d, 16, v%d" % (V_X + r, V_X + r))
a("v_cvt_pk_bf16_f32 v10, v%d, v%d" % (V_ACC, V_ACC + 1))
a("v_cvt_pk_bf16_f32 v11, v%d, v%d" % (V_ACC + 2, V_ACC + 3))
a("v_lshlrev_b32 v12, 16, v10")
a("v_and_b32 v13, 0xffff0000, v10")
a("v_lshlrev_b32 v14, 16, v11")
a("v_and_b32 v15, 0xffff0000, v11")
for r in range(4):
    a("v_add_f32 v%d, v%d, v%d" % (12 + r, 12 + r, V_X + r))
a("v_cvt_pk_bf16_f32 v10, v12, v13")
a("v_cvt_pk_bf16_f32 v11, v14, v15")
a("v_lshlrev_b32 v%d, 16, v10" % (V_X))
a("v_and_b32 v%d, 0xffff0000, v10" % (V_X + 1))
a("v_lshlrev_b32 v%d, 16, v11" % (V_X + 2))
a("v_and_b32 v%d, 0xffff0000, v11" % (V_X + 3))
a("s_mul_i32 s48, s34, %d" % (56 * 2048))
a("s_lshl_b32 s63, s52, 6")
a("s_add_u32 s48, s48, s63")
a("s_add_u32 s48, s48, %d" % E4)
for t in range(1, 4):
    a("s_add_u32 s%d, s48, %d" % (48 + t, t * 16 * 2048))
for r in range(4):
    a("v_mov_b32 v%d, v%d" % (V_G + 12 + r, V_T + r))
a("s_lshl_b32 s63, s34, 6")
a("v_lshl_add_u32 v22, v%d, 4, s63" % V_GRP)
a("v_lshlrev_b32 v23, 4, v%d" % V_GRP)
srd(44, 22, 896)
a("s_sleep 8")
a.label("L_e4poll")
for t in range(4):
    if t == 3:
        a("s_mov_b32 exec_hi, 0")
    a("buffer_load_dwordx4 v[%d:%d], v%d, s[36:39], s%d offen sc1" % (V_G + 4 * t, V_G + 4 * t + 3, V_GA, 48 + t))
setexec(-1)
a("s_waitcnt vmcnt(0)")
check12(4, XR, "L_e4ok")
retry("L_e4poll", False)
a.label("L_e4ok")
stamp(9)
for r in range(4):
    a("v_add_f32 v%d, v%d, v%d" % (XR + r, XR + r, XR + 4 + r))
    a("v_add_f32 v%d, v%d, v%d" % (XR + 8 + r, XR + 8 + r, XR + 12 + r))
for r in range(4):
    a("v_add_f32 v%d, v%d, v%d" % (XR + r, XR + r, XR + 8 + r))
quad_transpose_reduce([XR, XR + 1, XR + 2, XR + 3], 9, 16)
a("v_mfma_f32_16x16x4_f32 v[%d:%d], v9, v%d, 0" % (V_ACC, V_ACC + 3, V_ONE))
setexec(0x0001000100010001)
a("ds_write_b128 v22, v[%d:%d] offset:%d" % (V_ACC, V_ACC + 3, L_ML))
setexec(-1)
a("s_waitcnt lgkmcnt(0)")
a("s_barrier")
a("s_cmp_lg_u32 s34, 0")
a("s_cbranch_scc1 L_end")
for w in range(4):
    a("ds_read_b128 v[%d:%d], v23 offset:%d" % (XR + 4 * w, XR + 4 * w + 3, L_ML + 64 * w))
a("s_waitcnt lgkmcnt(0)")
for r in range(4):
    a("v_add_f32 v%d, v%d, v%d" % (XR + r, XR + r, XR + 4 + r))
    a("v_add_f32 v%d, v%d, v%d" % (XR + 8 + r, XR + 8 + r, XR + 12 + r))
for r in range(4):
    a("v_add_f32 v%d, v%d, v%d" % (XR + r, XR + r, XR + 8 + r))
a("v_cvt_pk_bf16_f32 v10, v%d, v%d" % (XR, XR + 1))
a("v_cvt_pk_bf16_f32 v11, v%d, v%d" % (XR + 2, XR + 3))
a("v_lshlrev_b32 v12, 16, v10")
a("v_and_b32 v13, 0xffff0000, v10")
a("v_lshlrev_b32 v14, 16, v11")
a("v_and_b32 v15, 0xffff0000, v11")
for r in range(4):
    a("v_add_f32 v%d, v%d, v%d" % (12 + r, 12 + r, V_X + r))
a("v_cvt_pk_bf16_f32 v10, v12, v13")
a("v_cvt_pk_bf16_f32 v11, v14, v15")
setexec(0x0001000100010001)
a("buffer_store_short v10, v%d, s[44:47], 0 offen" % V_XA)
a("buffer_store_short_d16_hi v10, v%d, s[44:47], 0 offen offset:16" % V_XA)
a("buffer_store_short v11, v%d, s[44:47], 0 offen offset:32" % V_XA)
a("buffer_store_short_d16_hi v11, v%d, s[44:47], 0 offen offset:48" % V_XA)
a("s_cmp_lg_u32 s52, 0")
a("s_cbranch_scc1 L_noep")
setexec(1)
a("v_mov_b32 v9, 0")
for k in range(4):
    a("v_mov_b32 v%d, s%d" % (12 + k, 28 + k))
a("buffer_store_dwordx4 v[12:15], v9, s[36:39], 0 offen offset:%d" % EPOCH)
a.label("L_noep")
setexec(-1)
stamp(10)
a("s_branch L_end")

a.label("L_aux")
a.flush()
a("v_lshlrev_b32 v4, 6, v%d" % V_I16)
a("v_lshl_add_u32 v4, v%d, 4, v4" % V_GRP)
a("v_lshrrev_b32 v5, 1, v%d" % V_LANE)
a("v_lshlrev_b32 v5, 13, v5")
a("v_and_b32 v6, 1, v%d" % V_LANE)
a("v_lshl_add_u32 v5, v6, 4, v5")
a("s_lshl_b32 s52, s32, 10")
a("s_lshl_b32 s53, s33, 5")
a("s_add_u32 s52, s52, s53")
a("s_waitcnt lgkmcnt(0)")
srd(44, 4, 896)
srd(40, 10, 448 * 8192)
stamp(11)
a("buffer_load_dwordx4 v[%d:%d], v4, s[44:47], 0 offen%s" % (V_G, V_G + 3, " nt" if Cfg.xnt else ""))
for t in range(14):
    a("s_movk_i32 m0, %d" % (L_WQ + 1024 * t))
    a("buffer_load_dwordx4 v5, s[40:43], s52 offen%s lds" % NTW)
    if t < 13:
        a("s_add_u32 s52, s52, %d" % (32 * 8192))
a("s_barrier")
stamp(12)
if Cfg.kstamp:
    a("s_waitcnt vmcnt(14)")
    stamp(6)
    a("s_waitcnt vmcnt(13)")
    stamp(7)
    a("s_waitcnt vmcnt(0)")
    stamp(8)
a("s_load_dwordx4 s[28:31], s[26:27], %d" % EPOCH)
srd(36, 26, WS_SIZE)
srd(48, 16, 448 * 3584)
common_setup()
a("s_lshl_b32 s52, s32, 12")
a("s_add_u32 s52, s52, %d" % E1)
a("v_lshrrev_b32 v24, 2, v%d" % V_LANE)
a("v_lshlrev_b32 v24, 7, v24")
a("v_and_b32 v25, 3, v%d" % V_LANE)
a("v_lshl_add_u32 v24, v25, 4, v24")
a("v_lshlrev_b32 v25, 3, v%d" % V_LANE)
npre = 0
if Cfg.pretouch:
    a("s_add_u32 s63, s54, %d" % E2)
    a("buffer_load_dword v26, v%d, s[36:39], s63 offen sc1" % V_GA)
    a("s_add_u32 s63, s54, %d" % (E2 + 16 * 2048))
    a("buffer_load_dword v26, v%d, s[36:39], s63 offen sc1" % V_GA)
    a("s_add_u32 s63, s54, %d" % E3A)
    a("buffer_load_dword v26, v%d, s[36:39], s63 offen sc1" % V_GA)
    a("s_add_u32 s63, s54, %d" % (E3A + 16 * 2048))
    a("buffer_load_dword v26, v%d, s[36:39], s63 offen sc1" % V_GA)
    a("buffer_load_dword v26, v24, s[36:39], s52 offen sc1")
    a("buffer_load_dword v26, v24, s[36:39], s52 offen offset:2048 sc1")
    npre = 6
a("s_waitcnt vmcnt(%d)" % (14 + npre))
stamp(1)
make_tags()
XF = 160
for k in range(4):
    a("v_lshlrev_b32 v%d, 16, v%d" % (XF + 2 * k, V_G + k))
    a("v_and_b32 v%d, 0xffff0000, v%d" % (XF + 2 * k + 1, V_G + k))
AF = V_G + 8
layernorm([XF + k for k in range(8)], AF, 0x3FFF3FFF3FFF3FFF, 8)
a("v_lshlrev_b32 v4, 8, v%d" % V_GRP)
a("v_lshrrev_b32 v5, 2, v%d" % V_I16)
a("v_lshl_add_u32 v4, v5, 5, v4")
a("v_and_b32 v5, 3, v%d" % V_I16)
a("v_lshl_add_u32 v4, v5, 3, v4")
a("v_mov_b32 v30, v%d" % V_TA)
a("v_mov_b32 v31, v%d" % V_TB)
a("s_lshl_b32 s53, s33, 7")
a("s_add_u32 s53, s53, s52")
a("s_add_u32 s44, s53, %d" % BOFF)
a("v_lshlrev_b32 v27, 4, v%d" % V_GRP)
WF = 32
DQ = 96
for s in range(14):
    a("s_waitcnt vmcnt(%d)" % (13 - s + npre))
    for h in range(2):
        a("ds_read_b64_tr_b16 v[%d:%d], v4 offset:%d" % (WF + 4 * s + 2 * h, WF + 4 * s + 2 * h + 1, L_WQ + 1024 * s + 128 * h))
stamp(2)
a("s_waitcnt lgkmcnt(0)")
for s in range(14):
    a("v_mfma_f32_16x16x32_bf16 v[%d:%d], v[%d:%d], v[%d:%d], 0" % (DQ + 4 * s, DQ + 4 * s + 3, AF, AF + 3, WF + 4 * s, WF + 4 * s + 3))
for G in range(4):
    setexec(0xFFFF << (16 * G))
    b = DQ + 16 * G
    a("v_add_f32 v8, v%d, v%d" % (b, b + 5))
    if G < 3:
        a("v_add_f32 v9, v%d, v%d" % (b + 10, b + 15))
        a("v_add_f32 v8, v8, v9")
setexec(-1)
a("v_mfma_f32_16x16x4_f32 v[%d:%d], v8, v%d, 0" % (V_ACC, V_ACC + 3, V_ONE))
a("v_cvt_pk_bf16_f32 v28, v%d, v%d" % (V_ACC, V_ACC + 1))
a("v_cvt_pk_bf16_f32 v29, v%d, v%d" % (V_ACC + 2, V_ACC + 3))
setexec(0x0001000100010001)
a("buffer_store_dwordx4 v[28:31], v27, s[36:39], s53 offen")
a("buffer_store_dwordx4 v[28:31], v27, s[36:39], s44 offen sc1")
setexec(-1)
stamp(3)
sel_init()
a.label("L_e1poll")
a("s_add_u32 s53, s52, s%d" % S_SEL)
a("buffer_load_dwordx4 v[%d:%d], v24, s[36:39], s53 offen sc1" % (V_G, V_G + 3))
a("buffer_load_dwordx4 v[%d:%d], v24, s[36:39], s53 offen offset:2048 sc1" % (V_G + 4, V_G + 7))
a("s_waitcnt vmcnt(0)")
a("v_xor_b32 v10, v%d, v%d" % (V_G + 2, V_TA))
a("v_xor_b32 v11, v%d, v%d" % (V_G + 6, V_TA))
a("v_xor_b32 v12, v%d, v%d" % (V_G + 3, V_TB))
a("v_xor_b32 v13, v%d, v%d" % (V_G + 7, V_TB))
a("v_or_b32 v14, v10, v11")
a("v_or3_b32 v14, v14, v12, v13")
a("v_cmp_ne_u32 vcc, 0, v14")
a("s_cbranch_vccz L_e1ok")
retry("L_e1poll", True)
a.label("L_e1ok")
a("ds_write_b64 v25, v[%d:%d] offset:%d" % (V_G, V_G + 1, L_Q))
a("ds_write_b64 v25, v[%d:%d] offset:%d" % (V_G + 4, V_G + 5, L_Q + 512))
a("s_waitcnt lgkmcnt(0)")
stamp(4)
a("s_barrier")
a("s_cmp_ge_u32 s33, 28")
a("s_cbranch_scc1 L_end")
a("v_mul_u32_u24 v6, 3584, v%d" % V_LANE)
a("s_lshl_b32 s52, s35, 4")
for t in range(7):
    a("s_movk_i32 m0, %d" % (L_W1 + 1024 * t))
    a("buffer_load_dwordx4 v6, s[48:51], s52 offen%s lds" % NTW)
    if t < 6:
        a("s_add_u32 s52, s52, %d" % (64 * 3584))
a("s_barrier")
a("s_waitcnt vmcnt(0)")
stamp(5)
a("s_barrier")
a.label("L_end")
if Cfg.stamps:
    setexec(-1)
    stamp(15)
    a("s_waitcnt lgkmcnt(0)")
    a("s_lshl_b32 s48, s2, 3")
    a("s_add_u32 s48, s48, s34")
    a("s_lshl_b32 s48, s48, 6")
    a("s_add_u32 s48, s48, %d" % STAMP)
    a("v_mov_b32 v9, 0")
    setexec(1)
    for i in range(16):
        a("v_mov_b32 v10, s%d" % (64 + 2 * i))
        a("buffer_store_dword v10, v9, s[36:39], s48 offen offset:%d" % (4 * i))
a.label("L_exit")
a("s_endpgm")
a.raw('''.section .rodata,"a"
.p2align 6
.amdhsa_kernel %s_kernel
  .amdhsa_next_free_vgpr %d
  .amdhsa_next_free_sgpr 96
  .amdhsa_accum_offset %d
  .amdhsa_group_segment_fixed_size 0
  .amdhsa_kernarg_size 96
  .amdhsa_user_sgpr_count 2
  .amdhsa_user_sgpr_kernarg_segment_ptr 1
  .amdhsa_system_sgpr_workgroup_id_x 1
  .amdhsa_float_denorm_mode_32 3
.end_amdhsa_kernel''' % (NAME, NVGPR, NVGPR))
open(sys.argv[1], "w").write(a.text())
```

```python
import sys, struct
from asmlib import Asm
NAME = "sequential_preLN__sliding_block_cached__dense_activation_mish__decode"

class Cfg:
    stamps = False
    nt = True
    ntw = True
    lds_bytes = 32768
    timeout = 200000
    depth = 8
    ss = 128
    forceB = False
    xsleep = 0
    pretouch = True
    xnt = False
    kstamp = False
    dbgwg = -1
    dbgwave = 0
for arg in sys.argv[2:]:
    k, v = arg.split('=')
    setattr(Cfg, k, type(getattr(Cfg, k))(int(v)))

NT = " nt" if Cfg.nt else ""
NTW = " nt" if Cfg.ntw else ""
EPOCH = 0x0
E3X = 0x1000
E1 = 0x10000
E2 = 0x20000
E3A = 0xA0000
BOFF = 0x120000
E4 = 0x240000
STAMP = 0x300000
WS_SIZE = 0x400000
L_WQ = 0
L_W1 = 14336
L_Q = 21504
L_O = 22528
L_ML = 30720
assert L_ML + 2048 <= Cfg.lds_bytes

LOG2E = 1.4426950408889634
def f32(x):
    return "0x%08x" % struct.unpack('<I', struct.pack('<f', x))[0]

a = Asm()
a.raw("; @launch grid=(256,1,1) block=(320,1,1) lds=%d" % Cfg.lds_bytes)
a.raw('.amdgcn_target "amdgcn-amd-amdhsa--gfx950"\n.text\n.globl %s_kernel\n.p2align 8\n.type %s_kernel,@function\n%s_kernel:' % (NAME, NAME, NAME))

DPPM = " row_mask:0xf bank_mask:0xf"
def stamp(i):
    if Cfg.stamps:
        a("s_memrealtime s[%d:%d]" % (64 + 2 * i, 65 + 2 * i))

def srd(dst, ptr, nbytes):
    a("s_mov_b32 s%d, s%d" % (dst, ptr))
    a("s_and_b32 s%d, s%d, 0xffff" % (dst + 1, ptr + 1))
    a("s_mov_b32 s%d, %d" % (dst + 2, nbytes))
    a("s_mov_b32 s%d, 0x20000" % (dst + 3))

def setexec(mask):
    if mask == -1:
        a("s_mov_b64 exec, -1")
    else:
        a("s_mov_b32 exec_lo, 0x%08x" % (mask & 0xffffffff))
        a("s_mov_b32 exec_hi, 0x%08x" % (mask >> 32))

def setmask(s, mask):
    a("s_mov_b32 s%d, 0x%08x" % (s, mask & 0xffffffff))
    a("s_mov_b32 s%d, 0x%08x" % (s + 1, mask >> 32))

def bfly(op, v, t, which):
    a("v_mov_b32 v%d, v%d" % (t, v))
    a("v_permlane%d_swap_b32 v%d, v%d" % (which, v, t))
    a("%s v%d, v%d, v%d" % (op, v, v, t))

def bf16r(dst, src):
    a("v_cvt_pk_bf16_f32 v%d, v%d, v%d" % (dst, src, src))
    a("v_and_b32 v%d, 0xffff0000, v%d" % (dst, dst))

S_ODD, S_B1, S_HI = 56, 58, 60
S_TO = 62
S_SEL = 3

def retry(loop, dual):
    a("s_sub_u32 s%d, s%d, 1" % (S_TO, S_TO))
    a("s_cbranch_scc1 L_end")
    if dual and not Cfg.forceB:
        a("s_and_b32 s63, s%d, 15" % S_TO)
        a("s_cmp_eq_u32 s63, 0")
        a("s_cselect_b32 s%d, %d, 0" % (S_SEL, BOFF))
    a("s_branch %s" % loop)

def sel_init():
    a("s_mov_b32 s%d, %d" % (S_SEL, BOFF if Cfg.forceB else 0))

def layernorm(f, out, valid, T):
    e = [T + k for k in range(8)]
    s1, s2, t1, t2 = T + 8, T + 9, T + 10, T + 11
    pk = [T + 12 + k for k in range(4)]
    a("v_readlane_b32 s63, v%d, 0" % f[0])
    a("v_mov_b32 v%d, 0" % s1)
    a("v_mov_b32 v%d, 0" % s2)
    setexec(valid)
    for k in range(8):
        a("v_subrev_f32 v%d, s63, v%d" % (e[k], f[k]))
    a("v_add_f32 v%d, v%d, v%d" % (s1, e[0], e[1]))
    a("v_mul_f32 v%d, v%d, v%d" % (s2, e[0], e[0]))
    a("v_add_f32 v%d, v%d, v%d" % (t1, e[2], e[3]))
    a("v_mul_f32 v%d, v%d, v%d" % (t2, e[1], e[1]))
    for k in range(4, 8):
        a("v_add_f32 v%d, v%d, v%d" % (s1 if k % 2 == 0 else t1, s1 if k % 2 == 0 else t1, e[k]))
    for k in range(2, 8):
        a("v_fmac_f32 v%d, v%d, v%d" % (s2 if k % 2 == 0 else t2, e[k], e[k]))
    a("v_add_f32 v%d, v%d, v%d" % (s1, s1, t1))
    a("v_add_f32 v%d, v%d, v%d" % (s2, s2, t2))
    setexec(-1)
    for i, r in enumerate((8, 4, 2, 1)):
        a("v_add_f32_dpp v%d, v%d, v%d row_ror:%d%s" % (s1, s1, s1, r, DPPM))
        a("v_add_f32_dpp v%d, v%d, v%d row_ror:%d%s" % (s2, s2, s2, r, DPPM))
        a("v_mov_b32 v%d, 0" % (out + i))
    for which in (16, 32):
        a("v_mov_b32 v%d, v%d" % (t1, s1))
        a("v_mov_b32 v%d, v%d" % (t2, s2))
        a("v_permlane%d_swap_b32 v%d, v%d" % (which, s1, t1))
        a("v_permlane%d_swap_b32 v%d, v%d" % (which, s2, t2))
        a("v_add_f32 v%d, v%d, v%d" % (s1, s1, t1))
        a("v_add_f32 v%d, v%d, v%d" % (s2, s2, t2))
    a("v_mul_f32 v%d, %s, v%d" % (s1, f32(1.0 / 448), s1))
    a("v_mul_f32 v%d, %s, v%d" % (s2, f32(1.0 / 448), s2))
    a("v_fma_f32 v%d, -v%d, v%d, v%d" % (s2, s1, s1, s2))
    a("v_add_f32 v%d, s63, v%d" % (s1, s1))
    a("v_max_f32 v%d, 0, v%d" % (s2, s2))
    a("v_cvt_pk_bf16_f32 v%d, v%d, v%d" % (t1, s1, s2))
    a("v_and_b32 v%d, 0xffff0000, v%d" % (s2, t1))
    a("v_lshlrev_b32 v%d, 16, v%d" % (s1, t1))
    a("v_add_f32 v%d, %s, v%d" % (s2, f32(1e-5), s2))
    bf16r(s2, s2)
    a("v_sqrt_f32 v%d, v%d" % (s2, s2))
    for k in range(8):
        a("v_sub_f32 v%d, v%d, v%d" % (e[k], f[k], s1))
    bf16r(s2, s2)
    a("v_rcp_f32 v%d, v%d" % (s2, s2))
    for k in range(4):
        a("v_cvt_pk_bf16_f32 v%d, v%d, v%d" % (pk[k], e[2 * k], e[2 * k + 1]))
    for k in range(4):
        a("v_lshlrev_b32 v%d, 16, v%d" % (e[2 * k], pk[k]))
        a("v_and_b32 v%d, 0xffff0000, v%d" % (e[2 * k + 1], pk[k]))
    for k in range(8):
        a("v_mul_f32 v%d, v%d, v%d" % (e[k], e[k], s2))
    setexec(valid)
    for k in range(4):
        a("v_cvt_pk_bf16_f32 v%d, v%d, v%d" % (out + k, e[2 * k], e[2 * k + 1]))
    setexec(-1)

def quad_transpose_reduce(v, dst, T):
    k0, g0, k1, g1 = T, T + 1, T + 2, T + 3
    a("v_cndmask_b32 v%d, v%d, v%d, s[%d:%d]" % (g0, v[1], v[0], S_ODD, S_ODD + 1))
    a("v_cndmask_b32 v%d, v%d, v%d, s[%d:%d]" % (g1, v[3], v[2], S_ODD, S_ODD + 1))
    a("v_cndmask_b32 v%d, v%d, v%d, s[%d:%d]" % (k0, v[0], v[1], S_ODD, S_ODD + 1))
    a("v_cndmask_b32 v%d, v%d, v%d, s[%d:%d]" % (k1, v[2], v[3], S_ODD, S_ODD + 1))
    a("v_add_f32_dpp v%d, v%d, v%d quad_perm:[1,0,3,2]%s" % (k0, g0, k0, DPPM))
    a("v_add_f32_dpp v%d, v%d, v%d quad_perm:[1,0,3,2]%s" % (k1, g1, k1, DPPM))
    a("v_cndmask_b32 v%d, v%d, v%d, s[%d:%d]" % (g0, k1, k0, S_B1, S_B1 + 1))
    a("v_cndmask_b32 v%d, v%d, v%d, s[%d:%d]" % (dst, k0, k1, S_B1, S_B1 + 1))
    a("v_add_f32_dpp v%d, v%d, v%d quad_perm:[2,3,0,1]%s" % (dst, g0, dst, DPPM))

def check12(n, X, oklab):
    for t in range(n):
        for r in range(4):
            a("v_xor_b32 v%d, v%d, v%d" % (X + 4 * t + r, V_G + 4 * t + r, V_T + r))
    regs = [X + i for i in range(4 * n)]
    acc = [5, 6, 7]
    cur = regs[:]
    outs = []
    i = 0
    while len(cur) >= 3 and i < 3:
        a("v_or3_b32 v%d, v%d, v%d, v%d" % (acc[i], cur[0], cur[1], cur[2])); cur = cur[3:]; outs.append(acc[i]); i += 1
    i = 0
    while len(cur) >= 2:
        o = outs[i % len(outs)]
        a("v_or3_b32 v%d, v%d, v%d, v%d" % (o, o, cur[0], cur[1])); cur = cur[2:]; i += 1
    rest = outs + cur
    while len(rest) > 1:
        if len(rest) >= 3:
            a("v_or3_b32 v%d, v%d, v%d, v%d" % (acc[0], rest[0], rest[1], rest[2])); rest = [acc[0]] + rest[3:]
        else:
            a("v_or_b32 v%d, v%d, v%d" % (acc[0], rest[0], rest[1])); rest = [acc[0]]
    a("v_and_b32 v%d, 0xfff, v%d" % (acc[0], rest[0]))
    a("v_cmp_ne_u32 vcc, 0, v%d" % acc[0])
    a("s_cbranch_vccz %s" % oklab)

V_I16, V_GRP, V_LANE = 1, 2, 3
V_K, V_V, V_WO, V_W2, V_QF, V_W1F = 32, 64, 96, 128, 136, 168
V_M, V_T = 196, 200
V_TA, V_TB, V_T8, V_ONE = 204, 205, 206, 207
V_B1, V_X = 208, 209
V_GA = 213
V_PUB = 214
V_XA = 215
V_ACC = 216
V_G = 232
NVGPR = 248

if Cfg.stamps:
    for i in range(16):
        a("s_mov_b64 s[%d:%d], 0" % (64 + 2 * i, 65 + 2 * i))
stamp(0)
a("s_load_dwordx16 s[4:19], s[0:1], 0")
a("s_load_dwordx8 s[20:27], s[0:1], 64")
a("s_cmp_ge_u32 s2, 256")
a("s_cbranch_scc1 L_exit")
a("v_lshrrev_b32 v4, 6, v0")
a("v_and_b32 v%d, 63, v0" % V_LANE)
a("v_readfirstlane_b32 s34, v4")
a("v_and_b32 v%d, 15, v0" % V_I16)
a("v_bfe_u32 v%d, v0, 4, 2" % V_GRP)
a("s_and_b32 s32, s2, 7")
a("s_lshr_b32 s33, s2, 3")
a("s_cmp_eq_u32 s34, 4")
a("s_cbranch_scc1 L_aux")

def common_setup():
    a("s_mul_i32 s35, s32, 28")
    a("s_add_u32 s35, s35, s33")
    a("s_mov_b32 s%d, %d" % (S_TO, Cfg.timeout))
    setmask(S_ODD, 0xAAAAAAAAAAAAAAAA)
    setmask(S_B1, 0xCCCCCCCCCCCCCCCC)
    setmask(S_HI, 0xFFFFFFFF00000000)
    a("v_mov_b32 v%d, 1.0" % V_ONE)
    a("v_and_b32 v8, 3, v%d" % V_LANE)
    a("v_lshl_add_u32 v8, v%d, 2, v8" % V_GRP)
    a("v_lshlrev_b32 v8, 11, v8")
    a("v_bfe_u32 v9, v%d, 2, 2" % V_LANE)
    a("v_lshl_add_u32 v%d, v9, 4, v8" % V_GA)
    a("s_lshl_b32 s54, s32, 16")
    a("s_lshl_b32 s63, s33, 6")
    a("s_add_u32 s54, s54, s63")
    a("s_lshl_b32 s55, s32, 5")
    a("s_add_u32 s55, s55, s33")
    a("s_lshl_b32 s55, s55, 11")

def make_tags():
    a("s_waitcnt lgkmcnt(0)")
    for k in range(4):
        a("s_add_u32 s%d, s%d, 1" % (28 + k, 28 + k))
    for k in range(4):
        a("s_and_b32 s63, s%d, 0xfff" % (28 + k))
        a("v_mov_b32 v%d, s63" % (V_T + k))
    a("v_mov_b32 v%d, s30" % V_TA)
    a("v_mov_b32 v%d, s31" % V_TB)
    a("s_and_b32 s63, s30, 0xff")
    a("v_mov_b32 v%d, s63" % V_T8)

a("s_lshl_b32 s48, s32, 22")
a("s_lshl_b32 s49, s33, 15")
a("s_add_u32 s48, s48, s49")
a("s_lshl_b32 s49, s34, 13")
a("s_add_u32 s48, s48, s49")
a("s_add_u32 s48, s48, %d" % (6144 * 512))
a("v_lshlrev_b32 v4, 9, v%d" % V_I16)
a("v_lshl_add_u32 v4, v%d, 4, v4" % V_GRP)
a("v_lshlrev_b32 v5, 11, v%d" % V_GRP)
a("v_lshl_add_u32 v5, v%d, 4, v5" % V_I16)
a("s_waitcnt lgkmcnt(0)")
a("s_load_dwordx4 s[28:31], s[26:27], %d" % EPOCH)
srd(40, 6, 33554432)
srd(44, 8, 33554432)
srd(36, 26, WS_SIZE)
stamp(11)
a("s_barrier")
stamp(12)
nissued = [0]
def paced(text):
    if Cfg.depth and nissued[0] >= Cfg.depth:
        a("s_waitcnt vmcnt(%d)" % (Cfg.depth - 1))
    a(text)
    nissued[0] += 1
for s in range(8):
    paced("buffer_load_dwordx4 v[%d:%d], v4, s[40:43], s48 offen offset:%d%s" % (V_K + 4 * s, V_K + 4 * s + 3, 64 * s, NT))
if Cfg.kstamp:
    a("s_waitcnt lgkmcnt(0)")
    stamp(5)
    a("s_waitcnt vmcnt(7)")
    stamp(6)
    a("s_waitcnt vmcnt(0)")
    stamp(7)
common_setup()
a("v_and_b32 v6, 1, v%d" % V_I16)
a("v_lshlrev_b32 v6, 4, v6")
a("v_mov_b32 v7, 0xffff")
a("v_lshlrev_b32 v7, v6, v7")
a("v_bfe_u32 v6, v%d, 1, 2" % V_I16)
for rho in range(4):
    a("v_cmp_eq_u32 vcc, %d, v6" % rho)
    a("v_cndmask_b32 v%d, 0, v7, vcc" % (V_M + rho))
a("v_lshl_add_u32 v8, v%d, 3, v%d" % (V_GRP, V_I16))
a("v_lshlrev_b32 v%d, 4, v8" % V_PUB)
a("s_lshl_b32 s50, s32, 9")
a("s_bfe_u32 s49, s33, 0x10001")
a("s_lshl_b32 s49, s49, 8")
a("s_add_u32 s50, s50, s49")
a("s_lshr_b32 s49, s33, 4")
a("s_lshl_b32 s49, s49, 7")
a("s_add_u32 s50, s50, s49")
a("s_bfe_u32 s49, s33, 0x20002")
a("s_lshl_b32 s49, s49, 5")
a("s_add_u32 s50, s50, s49")
a("s_and_b32 s49, s33, 1")
a("s_lshl_b32 s49, s49, 2")
a("s_add_u32 s50, s50, s49")
a("s_mul_i32 s50, s50, 896")
a("s_and_b32 s49, s34, 1")
a("s_lshl_b32 s49, s49, 9")
a("s_add_u32 s50, s50, s49")
a("s_add_u32 s51, s50, 7168")
a("s_add_u32 s52, s50, %d" % (2 * 7168))
a("s_add_u32 s53, s50, %d" % (3 * 7168))
a("v_mul_u32_u24 v6, 896, v%d" % V_GRP)
a("v_lshl_add_u32 v6, v%d, 4, v6" % V_I16)
make_tags()
for r in range(4):
    for h in range(2):
        n = 2 * r + h
        paced("buffer_load_dwordx4 v[%d:%d], v5, s[44:47], s48 offen offset:%d%s" % (V_V + 4 * n, V_V + 4 * n + 3, 512 * r + 256 * h, NT))
stamp(13)
a("v_lshrrev_b32 v7, 3, v%d" % V_I16)
a("v_lshlrev_b32 v7, 9, v7")
a("v_lshl_add_u32 v7, v%d, 4, v7" % V_GRP)
srd(40, 12, 4096 * 896)
a("s_cmp_lt_u32 s34, 2")
a("s_cbranch_scc1 L_nowo")
for q, so in enumerate((50, 51, 52, 53)):
    a("buffer_load_dwordx4 v[%d:%d], v6, s[40:43], s%d offen%s" % (V_WO + 4 * q, V_WO + 4 * q + 3, so, NT))
a("s_cmp_lg_u32 s34, 3")
a("s_cbranch_scc1 L_nomask")
setexec(0x00FF00FF00FF00FF)
a.label("L_nomask")
for q, so in enumerate((50, 51, 52, 53)):
    a("buffer_load_dwordx4 v[%d:%d], v6, s[40:43], s%d offen offset:256%s" % (V_WO + 16 + 4 * q, V_WO + 16 + 4 * q + 3, so, NT))
setexec(-1)
a("s_mov_b32 s49, 8")
a("s_branch L_wodone")
a.label("L_nowo")
a("s_mov_b32 s49, 0")
a.label("L_wodone")
stamp(1)
a("s_barrier")
stamp(2)
for s in range(8):
    a("ds_read_b128 v[%d:%d], v7 offset:%d" % (V_QF + 4 * s, V_QF + 4 * s + 3, L_Q + 64 * s))

def wait_v(n):
    l1, l2 = a.newlabel("L_wv"), a.newlabel("L_wv")
    a("s_cmp_eq_u32 s49, 0")
    a("s_cbranch_scc1 %s" % l1)
    a("s_waitcnt vmcnt(%d)" % (n + 8))
    a("s_branch %s" % l2)
    a.label(l1)
    a("s_waitcnt vmcnt(%d)" % n)
    a.label(l2)
wait_v(8)
a("s_waitcnt lgkmcnt(0)")
S = V_ACC
for s in range(8):
    a("v_mfma_f32_16x16x32_bf16 v[%d:%d], v[%d:%d], v[%d:%d], %s" % (S, S + 3, V_K + 4 * s, V_K + 4 * s + 3, V_QF + 4 * s, V_QF + 4 * s + 3, "0" if s == 0 else "v[%d:%d]" % (S, S + 3)))
a("s_lshl_b32 s63, s34, 11")
a("v_lshl_add_u32 v22, v%d, 4, s63" % V_LANE)
a("s_lshl_b32 s63, s34, 9")
a("v_lshl_add_u32 v23, v%d, 3, s63" % V_LANE)
a("s_mov_b32 s63, %s" % f32(0.0625 * LOG2E))
a("v_cvt_pk_bf16_f32 v8, v%d, v%d" % (S, S + 1))
a("v_cvt_pk_bf16_f32 v9, v%d, v%d" % (S + 2, S + 3))
a("v_lshlrev_b32 v10, 16, v8")
a("v_and_b32 v11, 0xffff0000, v8")
a("v_lshlrev_b32 v12, 16, v9")
a("v_and_b32 v13, 0xffff0000, v9")
a("v_max3_f32 v14, v10, v11, v12")
a("v_max_f32 v14, v14, v13")
bfly("v_max_f32", 14, 15, 16)
bfly("v_max_f32", 14, 15, 32)
a("v_mul_f32 v14, s63, v14")
for r in range(4):
    a("v_fma_f32 v%d, v%d, s63, -v14" % (10 + r, 10 + r))
for r in range(4):
    a("v_exp_f32 v%d, v%d" % (10 + r, 10 + r))
for r in range(4):
    a("v_cvt_pk_bf16_f32 v%d, v%d, v%d" % (16 + r, 10 + r, 10 + r))
O = V_ACC + 4
BB = V_QF
for r in range(4):
    for rho in range(4):
        a("v_and_b32 v%d, v%d, v%d" % (BB + 4 * r + rho, 16 + r, V_M + rho))
a("v_add_f32 v15, v10, v11")
a("v_add_f32 v20, v12, v13")
a("v_add_f32 v15, v15, v20")
bfly("v_add_f32", 15, 20, 16)
bfly("v_add_f32", 15, 20, 32)
a("ds_write_b64 v23, v[14:15] offset:%d" % L_ML)
wait_v(2)
for r in range(4):
    if r == 3:
        wait_v(0)
    for h in range(2):
        n = 2 * r + h
        a("v_mfma_f32_16x16x32_bf16 v[%d:%d], v[%d:%d], v[%d:%d], %s" % (O + 4 * h, O + 4 * h + 3, V_V + 4 * n, V_V + 4 * n + 3, BB + 4 * r, BB + 4 * r + 3, "0" if r == 0 else "v[%d:%d]" % (O + 4 * h, O + 4 * h + 3)))
a("ds_write_b128 v22, v[%d:%d] offset:%d" % (O, O + 3, L_O))
a("ds_write_b128 v22, v[%d:%d] offset:%d" % (O + 4, O + 7, L_O + 1024))
a("s_waitcnt lgkmcnt(0)")
a("s_barrier")
stamp(3)
a("s_cmp_ge_u32 s34, 2")
a("s_cbranch_scc1 L_e2")
a("s_lshl_b32 s63, s34, 10")
a("v_lshl_add_u32 v8, v%d, 4, s63" % V_LANE)
a("v_lshlrev_b32 v9, 3, v%d" % V_LANE)
for w in range(4):
    a("ds_read_b64 v[%d:%d], v9 offset:%d" % (10 + 2 * w, 11 + 2 * w, L_ML + 512 * w))
for w in range(4):
    a("ds_read_b128 v[%d:%d], v8 offset:%d" % (V_G + 4 * w, V_G + 4 * w + 3, L_O + 2048 * w))
a("s_add_u32 s48, s55, %d" % E2)
a("s_add_u32 s49, s55, %d" % (E2 + BOFF))
a("s_movk_i32 s63, 0xff")
a("v_mov_b32 v31, v%d" % V_TB)
a("s_waitcnt lgkmcnt(4)" if not Cfg.stamps else "s_waitcnt lgkmcnt(0)")
a("v_max3_f32 v18, v10, v12, v14")
a("v_max_f32 v18, v18, v16")
for w in range(4):
    a("v_sub_f32 v%d, v%d, v18" % (10 + 2 * w, 10 + 2 * w))
for w in range(4):
    a("v_exp_f32 v%d, v%d" % (10 + 2 * w, 10 + 2 * w))
a("v_mul_f32 v19, v10, v11")
for w in range(1, 4):
    a("v_fmac_f32 v19, v%d, v%d" % (10 + 2 * w, 11 + 2 * w))
a("v_rcp_f32 v20, v19")
a("v_log_f32 v21, v19")
a("s_waitcnt lgkmcnt(0)")
for r in range(4):
    a("v_mul_f32 v%d, v10, v%d" % (24 + r, V_G + r))
for w in range(1, 4):
    for r in range(4):
        a("v_fmac_f32 v%d, v%d, v%d" % (24 + r, 10 + 2 * w, V_G + 4 * w + r))
a("v_add_f32 v21, v21, v18")
for r in range(4):
    a("v_mul_f32 v%d, v%d, v20" % (24 + r, 24 + r))
a("v_bfi_b32 v30, s63, v%d, v21" % V_T8)
a("v_cvt_pk_bf16_f32 v28, v24, v25")
a("v_cvt_pk_bf16_f32 v29, v26, v27")
a("buffer_store_dwordx4 v[28:31], v8, s[36:39], s48 offen")
a("buffer_store_dwordx4 v[28:31], v8, s[36:39], s49 offen sc1")
stamp(4)
a("s_cmp_ge_u32 s33, 28")
a("s_cbranch_scc1 L_b3")
a("s_cmp_eq_u32 s34, 1")
a("s_cbranch_scc1 L_b3")
sel_init()
a("s_lshl_b32 s51, s32, 12")
a("s_mul_i32 s63, s33, %d" % Cfg.ss)
a("s_add_u32 s51, s51, s63")
a("s_add_u32 s51, s51, %d" % E3X)
a("v_lshlrev_b32 v4, 4, v%d" % V_GRP)
a.label("L_e3apoll")
a("s_add_u32 s48, s54, s%d" % S_SEL)
a("s_add_u32 s49, s48, %d" % (E3A + 16 * 2048))
a("s_add_u32 s48, s48, %d" % E3A)
a("buffer_load_dwordx4 v[%d:%d], v%d, s[36:39], s48 offen sc1" % (V_G, V_G + 3, V_GA))
a("buffer_load_dwordx4 v[%d:%d], v%d, s[36:39], s49 offen sc1" % (V_G + 4, V_G + 7, V_GA))
a("s_waitcnt vmcnt(0)")
check12(2, 12, "L_e3aok")
retry("L_e3apoll", True)
a.label("L_e3aok")
stamp(7)
for r in range(4):
    a("v_add_f32 v%d, v%d, v%d" % (12 + r, 12 + r, 16 + r))
quad_transpose_reduce([12, 13, 14, 15], 9, 16)
a("v_mfma_f32_16x16x4_f32 v[%d:%d], v9, v%d, 0" % (V_ACC, V_ACC + 3, V_ONE))
a("s_movk_i32 s63, 0xfff")
setexec(0x0001000100010001)
for r in range(4):
    a("v_bfi_b32 v%d, s63, v%d, v%d" % (28 + r, V_T + r, V_ACC + r))
a("buffer_store_dwordx4 v[28:31], v4, s[36:39], s51 offen sc1")
setexec(-1)
stamp(8)
a("s_branch L_b3")

a.label("L_e2")
a.flush()
sel_init()
a.label("L_e2poll")
a("s_add_u32 s48, s54, s%d" % S_SEL)
a("s_add_u32 s49, s48, %d" % (E2 + 16 * 2048))
a("s_add_u32 s48, s48, %d" % E2)
a("buffer_load_dwordx4 v[%d:%d], v%d, s[36:39], s48 offen sc1" % (V_G, V_G + 3, V_GA))
a("buffer_load_dwordx4 v[%d:%d], v%d, s[36:39], s49 offen sc1" % (V_G + 4, V_G + 7, V_GA))
a("s_waitcnt vmcnt(0)")
a("v_xor_b32 v10, v%d, v%d" % (V_G + 2, V_T8))
a("v_xor_b32 v11, v%d, v%d" % (V_G + 6, V_T8))
a("v_xor_b32 v12, v%d, v%d" % (V_G + 3, V_TB))
a("v_xor_b32 v13, v%d, v%d" % (V_G + 7, V_TB))
a("v_or_b32 v14, v10, v11")
a("v_and_b32 v14, 0xff, v14")
a("v_or3_b32 v14, v14, v12, v13")
a("v_cmp_ne_u32 vcc, 0, v14")
a("s_cbranch_vccz L_e2ok")
retry("L_e2poll", True)
a.label("L_e2ok")
stamp(5)
a("v_max_f32 v14, v10, v11")
for t in range(2):
    a("v_lshlrev_b32 v%d, 16, v%d" % (16 + 4 * t, V_G + 4 * t))
    a("v_and_b32 v%d, 0xffff0000, v%d" % (17 + 4 * t, V_G + 4 * t))
    a("v_max_f32_dpp v14, v14, v14 quad_perm:[%s]%s" % ("1,0,3,2" if t == 0 else "2,3,0,1", DPPM))
for t, which in enumerate((16, 32)):
    a("v_mov_b32 v15, v14")
    a("v_lshlrev_b32 v%d, 16, v%d" % (18 + 4 * t, V_G + 4 * t + 1))
    a("v_and_b32 v%d, 0xffff0000, v%d" % (19 + 4 * t, V_G + 4 * t + 1))
    a("v_permlane%d_swap_b32 v14, v15" % which)
    a("v_max_f32 v14, v14, v15")
a("v_sub_f32 v10, v10, v14")
a("v_sub_f32 v11, v11, v14")
a("v_exp_f32 v10, v10")
a("v_exp_f32 v11, v11")
a("s_add_u32 s48, s55, %d" % E3A)
for r in range(4):
    a("v_mul_f32 v%d, v%d, v10" % (16 + r, 16 + r))
a("v_add_f32 v12, v10, v11")
for r in range(4):
    a("v_fmac_f32 v%d, v%d, v11" % (16 + r, 20 + r))
a("v_add_f32_dpp v12, v12, v12 quad_perm:[1,0,3,2]%s" % DPPM)
quad_transpose_reduce([16, 17, 18, 19], 13, 24)
a("v_add_f32_dpp v12, v12, v12 quad_perm:[2,3,0,1]%s" % DPPM)
a("v_mfma_f32_16x16x4_f32 v[%d:%d], v13, v%d, 0" % (V_ACC, V_ACC + 3, V_ONE))
a("v_mfma_f32_16x16x4_f32 v[%d:%d], v12, v%d, 0" % (V_ACC + 4, V_ACC + 7, V_ONE))
a("s_and_b32 s63, s34, 1")
a("s_lshl_b32 s63, s63, 10")
a("s_add_u32 s48, s48, s63")
a("s_add_u32 s49, s48, %d" % BOFF)
a("s_movk_i32 s63, 0xfff")
a("v_rcp_f32 v12, v%d" % (V_ACC + 4))
for r in range(4):
    a("v_mul_f32 v%d, v%d, v12" % (16 + r, V_ACC + r))
for r in range(4):
    a("v_cvt_pk_bf16_f32 v%d, v%d, v%d" % (16 + r, 16 + r, 16 + r))
A2 = V_ACC + 8
for q in range(4):
    for rho in range(4):
        a("v_and_b32 v%d, v%d, v%d" % (BB + 4 * q + rho, 16 + q, V_M + rho))
    if q >= 1:
        qq = q - 1
        for b in range(2):
            a("v_mfma_f32_16x16x32_bf16 v[%d:%d], v[%d:%d], v[%d:%d], %s" % (A2 + 4 * b, A2 + 4 * b + 3, V_WO + 16 * b + 4 * qq, V_WO + 16 * b + 4 * qq + 3, BB + 4 * qq, BB + 4 * qq + 3, "0" if qq == 0 else "v[%d:%d]" % (A2 + 4 * b, A2 + 4 * b + 3)))
for b in range(2):
    a("v_mfma_f32_16x16x32_bf16 v[%d:%d], v[%d:%d], v[%d:%d], v[%d:%d]" % (A2 + 4 * b, A2 + 4 * b + 3, V_WO + 16 * b + 12, V_WO + 16 * b + 15, BB + 12, BB + 15, A2 + 4 * b, A2 + 4 * b + 3))
a("v_cmp_lt_u32 vcc, 7, v%d" % V_I16)
a("v_add_u32 v4, %d, v%d" % (512 - 128, V_PUB))
a("v_cndmask_b32 v4, v%d, v4, vcc" % V_PUB)
for r in range(4):
    a("v_cndmask_b32 v%d, v%d, v%d, vcc" % (24 + r, A2 + r, A2 + 4 + r))
for r in range(4):
    a("v_bfi_b32 v%d, s63, v%d, v%d" % (28 + r, V_T + r, 24 + r))
a("s_cmp_lg_u32 s34, 3")
a("s_cbranch_scc1 L_pm1")
a("s_mov_b32 exec_hi, 0x00ff00ff")
a.label("L_pm1")
a("buffer_store_dwordx4 v[28:31], v4, s[36:39], s48 offen")
a("buffer_store_dwordx4 v[28:31], v4, s[36:39], s49 offen sc1")
setexec(-1)
stamp(6)

a.label("L_b3")
a.flush()
a("s_cmp_ge_u32 s33, 28")
a("s_cbranch_scc1 L_fin")
a("v_lshrrev_b32 v8, 3, v%d" % V_I16)
a("v_sub_u32 v8, v%d, v8" % V_I16)
a("v_min_u32 v8, 13, v8")
a("v_lshrrev_b32 v9, 1, v%d" % V_GRP)
a("v_lshl_add_u32 v9, v8, 1, v9")
a("v_mul_u32_u24 v9, %d, v9" % Cfg.ss)
a("v_and_b32 v10, 1, v%d" % V_GRP)
a("v_lshl_add_u32 v%d, v10, 5, v9" % V_XA)
a("v_bfe_u32 v7, v%d, 1, 1" % V_I16)
a("v_mul_u32_u24 v7, %d, v7" % (224 * 16))
a("v_lshl_add_u32 v7, v%d, 5, v7" % V_GRP)
a("v_lshrrev_b32 v11, 2, v%d" % V_I16)
a("v_lshl_add_u32 v7, v11, 7, v7")
a("v_and_b32 v11, 1, v%d" % V_I16)
a("v_lshl_add_u32 v7, v11, 3, v7")
a("v_lshlrev_b32 v12, 6, v8")
a("v_lshl_add_u32 v12, v%d, 2, v12" % V_GRP)
a("v_lshlrev_b32 v13, 2, v10")
a("v_and_b32 v14, 2, v%d" % V_GRP)
a("v_add_u32 v13, v13, v14")
a("v_mul_u32_u24 v14, 896, v13")
a("v_lshl_add_u32 v14, v%d, 4, v14" % V_I16)
a("v_add_u32 v13, v13, v11")
a("v_lshlrev_b32 v13, 1, v13")
srd(40, 20, 1792 * 896)
srd(44, 4, 896)
srd(48, 18, 1792 * 2)
a("s_mul_i32 s52, s35, %d" % (8 * 896))
a("s_lshl_b32 s63, s34, 8")
a("s_add_u32 s52, s52, s63")
a("s_lshl_b32 s53, s35, 4")
a("s_lshl_b32 s%d, s34, 13" % S_SEL)
a("s_add_u32 s%d, s%d, %d" % (S_SEL, S_SEL, E3X))
a("s_add_u32 s54, s%d, 4096" % S_SEL)
a("s_lshl_b32 s63, s34, 11")
a("v_lshl_add_u32 v22, v%d, 4, s63" % V_LANE)
a("v_lshlrev_b32 v23, 4, v%d" % V_LANE)
a("s_barrier")
stamp(9)
for e in range(4):
    a("buffer_load_dword v%d, v12, s[44:47], 0 offen offset:%d" % (V_X + e, 16 * e))
a("buffer_load_ushort v%d, v13, s[48:51], s53 offen" % V_B1)
a("s_cmp_lg_u32 s34, 3")
a("s_cbranch_scc1 L_nomask2")
setexec(0x00FF00FF00FF00FF)
a.label("L_nomask2")
for q in range(2):
    a("buffer_load_dwordx4 v[%d:%d], v14, s[40:43], s52 offen offset:%d%s" % (V_W2 + 4 * q, V_W2 + 4 * q + 3, 896 * q, NT))
setexec(-1)
for m in range(7):
    for u in range(2):
        a("ds_read_b64_tr_b16 v[%d:%d], v7 offset:%d" % (V_W1F + 4 * m + 2 * u, V_W1F + 4 * m + 2 * u + 1, L_W1 + 512 * m + 16 * u))
if Cfg.xsleep:
    a("s_sleep %d" % Cfg.xsleep)
a.label("L_e3xpoll")
a("buffer_load_dwordx4 v[%d:%d], v%d, s[36:39], s%d offen sc1" % (V_G, V_G + 3, V_XA, S_SEL))
a("buffer_load_dwordx4 v[%d:%d], v%d, s[36:39], s%d offen offset:16 sc1" % (V_G + 4, V_G + 7, V_XA, S_SEL))
a("buffer_load_dwordx4 v[%d:%d], v%d, s[36:39], s54 offen sc1" % (V_G + 8, V_G + 11, V_XA))
a("buffer_load_dwordx4 v[%d:%d], v%d, s[36:39], s54 offen offset:16 sc1" % (V_G + 12, V_G + 15, V_XA))
a("s_waitcnt vmcnt(0)")
XR = V_K
check12(4, XR, "L_e3xok")
retry("L_e3xpoll", False)
a.label("L_e3xok")
stamp(10)
for k in range(8):
    a("v_add_f32 v%d, v%d, v%d" % (XR + k, XR + k, XR + 8 + k))
a("ds_write_b128 v22, v[%d:%d] offset:%d" % (XR, XR + 3, L_O))
a("ds_write_b128 v22, v[%d:%d] offset:%d" % (XR + 4, XR + 7, L_O + 1024))
a("v_lshlrev_b32 v%d, 16, v%d" % (V_B1, V_B1))
XF = V_K + 16
for e in range(4):
    a("v_lshlrev_b32 v%d, 16, v%d" % (XF + e, V_X + e))
    a("v_and_b32 v%d, 0xffff0000, v%d" % (XF + 4 + e, V_X + e))
a("s_waitcnt lgkmcnt(0)")
a("s_barrier")
PR = V_V
for w in range(4):
    a("ds_read_b128 v[%d:%d], v23 offset:%d" % (PR + 8 * w, PR + 8 * w + 3, L_O + 2048 * w))
    a("ds_read_b128 v[%d:%d], v23 offset:%d" % (PR + 8 * w + 4, PR + 8 * w + 7, L_O + 2048 * w + 1024))
a("s_waitcnt lgkmcnt(0)")
for k in range(8):
    a("v_add_f32 v%d, v%d, v%d" % (PR + k, PR + k, PR + 8 + k))
    a("v_add_f32 v%d, v%d, v%d" % (PR + 16 + k, PR + 16 + k, PR + 24 + k))
for k in range(8):
    a("v_add_f32 v%d, v%d, v%d" % (PR + k, PR + k, PR + 16 + k))
for k in range(4):
    a("v_cvt_pk_bf16_f32 v%d, v%d, v%d" % (PR + 8 + k, PR + 2 * k, PR + 2 * k + 1))
for k in range(4):
    a("v_lshlrev_b32 v%d, 16, v%d" % (PR + 2 * k, PR + 8 + k))
    a("v_and_b32 v%d, 0xffff0000, v%d" % (PR + 2 * k + 1, PR + 8 + k))
for k in range(8):
    a("v_add_f32 v%d, v%d, v%d" % (PR + k, PR + k, XF + k))
for k in range(4):
    a("v_cvt_pk_bf16_f32 v%d, v%d, v%d" % (PR + 8 + k, PR + 2 * k, PR + 2 * k + 1))
for k in range(4):
    a("v_lshlrev_b32 v%d, 16, v%d" % (PR + 2 * k, PR + 8 + k))
    a("v_and_b32 v%d, 0xffff0000, v%d" % (PR + 2 * k + 1, PR + 8 + k))
AF = V_G
layernorm([PR + k for k in range(8)], AF, 0x7F7F7F7F7F7F7F7F, 8)
D1 = V_K
for m in range(7):
    a("v_mfma_f32_16x16x32_bf16 v[%d:%d], v[%d:%d], v[%d:%d], 0" % (D1 + 4 * m, D1 + 4 * m + 3, AF, AF + 3, V_W1F + 4 * m, V_W1F + 4 * m + 3))
a("v_mov_b32 v8, 0")
setexec(0x0000FF00000000FF)
a("v_add_f32 v8, v%d, v%d" % (D1 + 0, D1 + 4 + 1))
a("v_add_f32 v9, v%d, v%d" % (D1 + 8 + 2, D1 + 12 + 3))
a("v_add_f32 v8, v8, v9")
setexec(0xFF00000000FF0000)
a("v_add_f32 v8, v%d, v%d" % (D1 + 16, D1 + 20 + 1))
a("v_add_f32 v8, v8, v%d" % (D1 + 24 + 2))
setexec(-1)
a("v_add_f32_dpp v8, v8, v8 row_ror:8%s" % DPPM)
a("v_mfma_f32_16x16x4_f32 v[%d:%d], v8, v%d, 0" % (V_ACC, V_ACC + 3, V_ONE))
a("s_lshl_b32 s48, s35, 11")
a("s_lshl_b32 s63, s34, 9")
a("s_add_u32 s48, s48, s63")
a("s_add_u32 s48, s48, %d" % E4)
a("s_mov_b32 s63, %s" % f32(-LOG2E))
a("v_cndmask_b32 v8, v%d, v%d, s[%d:%d]" % (V_ACC, V_ACC + 1, S_ODD, S_ODD + 1))
a("v_cndmask_b32 v9, v%d, v%d, s[%d:%d]" % (V_ACC + 2, V_ACC + 3, S_ODD, S_ODD + 1))
a("v_cndmask_b32 v8, v8, v9, s[%d:%d]" % (S_HI, S_HI + 1))
bf16r(8, 8)
a("v_add_f32 v8, v8, v%d" % V_B1)
bf16r(8, 8)
a("v_mul_f32 v9, s63, abs(v8)")
a("v_exp_f32 v9, v9")
a("v_max_f32 v17, 0, v8")
bf16r(9, 9)
a("v_add_f32 v10, 1.0, v9")
a("v_add_f32 v11, -1.0, v10")
a("v_log_f32 v12, v10")
a("v_rcp_f32 v13, v11")
a("v_cmp_eq_f32 vcc, 0, v11")
a("v_mul_f32 v12, %s, v12" % f32(0.6931471805599453))
a("v_mul_f32 v13, v13, v9")
a("v_mul_f32 v12, v12, v13")
a("v_cndmask_b32 v12, v12, v9, vcc")
bf16r(12, 12)
a("v_add_f32 v12, v12, v17")
bf16r(12, 12)
a("v_mul_f32 v13, %s, v12" % f32(-2.0 * LOG2E))
a("v_exp_f32 v13, v13")
a("v_mul_f32 v16, v12, v12")
a("v_add_f32 v14, 1.0, v13")
a("v_sub_f32 v15, 1.0, v13")
a("v_rcp_f32 v14, v14")
a("v_mul_f32 v16, %s, v16" % f32(-1.0 / 3.0))
a("v_cmp_gt_f32 vcc, %s, v12" % f32(2.0 ** -6))
a("v_fma_f32 v16, v16, v12, v12")
a("v_mul_f32 v14, v14, v15")
a("v_cndmask_b32 v14, v14, v16, vcc")
bf16r(14, 14)
a("v_mul_f32 v14, v14, v8")
a("v_cvt_pk_bf16_f32 v14, v14, v14")
a("s_movk_i32 s63, 0xfff")
for q in range(2):
    for rho in range(4):
        a("v_and_b32_dpp v%d, v14, v%d quad_perm:[%d,%d,%d,%d]%s" % (BB + 4 * q + rho, V_M + rho, q, q, 2 + q, 2 + q, DPPM))
for q in range(2):
    a("v_mfma_f32_16x16x32_bf16 v[%d:%d], v[%d:%d], v[%d:%d], %s" % (A2, A2 + 3, V_W2 + 4 * q, V_W2 + 4 * q + 3, BB + 4 * q, BB + 4 * q + 3, "0" if q == 0 else "v[%d:%d]" % (A2, A2 + 3)))
setexec(0x00FF00FF00FF00FF)
a("s_cmp_lg_u32 s34, 3")
a("s_cbranch_scc1 L_pm2")
a("s_mov_b32 exec_hi, 0")
a.label("L_pm2")
for r in range(4):
    a("v_bfi_b32 v%d, s63, v%d, v%d" % (28 + r, V_T + r, A2 + r))
a("buffer_store_dwordx4 v[28:31], v%d, s[36:39], s48 offen sc1" % V_PUB)
setexec(-1)
stamp(14)
a("s_branch L_end")

a.label("L_fin")
a.flush()
a("s_sub_u32 s52, s2, 224")
a("s_cmp_ge_u32 s52, 28")
a("s_cbranch_scc1 L_end")
a("v_and_b32 v8, 3, v%d" % V_LANE)
a("v_and_b32 v9, 1, v%d" % V_GRP)
a("v_lshl_add_u32 v8, v9, 2, v8")
a("v_lshlrev_b32 v8, 12, v8")
a("v_bfe_u32 v9, v%d, 2, 2" % V_LANE)
a("v_lshl_add_u32 v8, v9, 4, v8")
a("s_mul_i32 s53, s52, %d" % Cfg.ss)
a("s_add_u32 s53, s53, %d" % E3X)
a("s_lshl_b32 s63, s52, 2")
a("v_add_u32 v10, s63, v%d" % V_GRP)
a("v_and_b32 v11, 7, v10")
a("v_sub_u32 v10, v10, v11")
a("v_lshl_add_u32 v10, v10, 2, v11")
a("v_lshlrev_b32 v%d, 1, v10" % V_XA)
srd(44, 4, 896)
for r in range(4):
    a("buffer_load_ushort v%d, v%d, s[44:47], 0 offen offset:%d" % (V_X + r, V_XA, 16 * r))
a.label("L_hpoll")
a("s_sleep 2")
a("buffer_load_dwordx4 v[%d:%d], v8, s[36:39], s53 offen sc1" % (V_G, V_G + 3))
a("s_waitcnt vmcnt(0)")
check12(1, 12, "L_hok")
retry("L_hpoll", False)
a.label("L_hok")
stamp(7)
quad_transpose_reduce([12, 13, 14, 15], 9, 16)
a("v_cndmask_b32 v9, v9, 0, s[%d:%d]" % (S_HI, S_HI + 1))
a("v_mfma_f32_16x16x4_f32 v[%d:%d], v9, v%d, 0" % (V_ACC, V_ACC + 3, V_ONE))
for r in range(4):
    a("v_lshlrev_b32 v%d, 16, v%d" % (V_X + r, V_X + r))
a("v_cvt_pk_bf16_f32 v10, v%d, v%d" % (V_ACC, V_ACC + 1))
a("v_cvt_pk_bf16_f32 v11, v%d, v%d" % (V_ACC + 2, V_ACC + 3))
a("v_lshlrev_b32 v12, 16, v10")
a("v_and_b32 v13, 0xffff0000, v10")
a("v_lshlrev_b32 v14, 16, v11")
a("v_and_b32 v15, 0xffff0000, v11")
for r in range(4):
    a("v_add_f32 v%d, v%d, v%d" % (12 + r, 12 + r, V_X + r))
a("v_cvt_pk_bf16_f32 v10, v12, v13")
a("v_cvt_pk_bf16_f32 v11, v14, v15")
a("v_lshlrev_b32 v%d, 16, v10" % (V_X))
a("v_and_b32 v%d, 0xffff0000, v10" % (V_X + 1))
a("v_lshlrev_b32 v%d, 16, v11" % (V_X + 2))
a("v_and_b32 v%d, 0xffff0000, v11" % (V_X + 3))
a("s_mul_i32 s48, s34, %d" % (56 * 2048))
a("s_lshl_b32 s63, s52, 6")
a("s_add_u32 s48, s48, s63")
a("s_add_u32 s48, s48, %d" % E4)
for t in range(1, 4):
    a("s_add_u32 s%d, s48, %d" % (48 + t, t * 16 * 2048))
for r in range(4):
    a("v_mov_b32 v%d, v%d" % (V_G + 12 + r, V_T + r))
a("s_lshl_b32 s63, s34, 6")
a("v_lshl_add_u32 v22, v%d, 4, s63" % V_GRP)
a("v_lshlrev_b32 v23, 4, v%d" % V_GRP)
srd(44, 22, 896)
a("s_sleep 8")
a.label("L_e4poll")
for t in range(4):
    if t == 3:
        a("s_mov_b32 exec_hi, 0")
    a("buffer_load_dwordx4 v[%d:%d], v%d, s[36:39], s%d offen sc1" % (V_G + 4 * t, V_G + 4 * t + 3, V_GA, 48 + t))
setexec(-1)
a("s_waitcnt vmcnt(0)")
check12(4, XR, "L_e4ok")
retry("L_e4poll", False)
a.label("L_e4ok")
stamp(9)
for r in range(4):
    a("v_add_f32 v%d, v%d, v%d" % (XR + r, XR + r, XR + 4 + r))
    a("v_add_f32 v%d, v%d, v%d" % (XR + 8 + r, XR + 8 + r, XR + 12 + r))
for r in range(4):
    a("v_add_f32 v%d, v%d, v%d" % (XR + r, XR + r, XR + 8 + r))
quad_transpose_reduce([XR, XR + 1, XR + 2, XR + 3], 9, 16)
a("v_mfma_f32_16x16x4_f32 v[%d:%d], v9, v%d, 0" % (V_ACC, V_ACC + 3, V_ONE))
setexec(0x0001000100010001)
a("ds_write_b128 v22, v[%d:%d] offset:%d" % (V_ACC, V_ACC + 3, L_ML))
setexec(-1)
a("s_waitcnt lgkmcnt(0)")
a("s_barrier")
a("s_cmp_lg_u32 s34, 0")
a("s_cbranch_scc1 L_end")
for w in range(4):
    a("ds_read_b128 v[%d:%d], v23 offset:%d" % (XR + 4 * w, XR + 4 * w + 3, L_ML + 64 * w))
a("s_waitcnt lgkmcnt(0)")
for r in range(4):
    a("v_add_f32 v%d, v%d, v%d" % (XR + r, XR + r, XR + 4 + r))
    a("v_add_f32 v%d, v%d, v%d" % (XR + 8 + r, XR + 8 + r, XR + 12 + r))
for r in range(4):
    a("v_add_f32 v%d, v%d, v%d" % (XR + r, XR + r, XR + 8 + r))
a("v_cvt_pk_bf16_f32 v10, v%d, v%d" % (XR, XR + 1))
a("v_cvt_pk_bf16_f32 v11, v%d, v%d" % (XR + 2, XR + 3))
a("v_lshlrev_b32 v12, 16, v10")
a("v_and_b32 v13, 0xffff0000, v10")
a("v_lshlrev_b32 v14, 16, v11")
a("v_and_b32 v15, 0xffff0000, v11")
for r in range(4):
    a("v_add_f32 v%d, v%d, v%d" % (12 + r, 12 + r, V_X + r))
a("v_cvt_pk_bf16_f32 v10, v12, v13")
a("v_cvt_pk_bf16_f32 v11, v14, v15")
setexec(0x0001000100010001)
a("buffer_store_short v10, v%d, s[44:47], 0 offen" % V_XA)
a("buffer_store_short_d16_hi v10, v%d, s[44:47], 0 offen offset:16" % V_XA)
a("buffer_store_short v11, v%d, s[44:47], 0 offen offset:32" % V_XA)
a("buffer_store_short_d16_hi v11, v%d, s[44:47], 0 offen offset:48" % V_XA)
a("s_cmp_lg_u32 s52, 0")
a("s_cbranch_scc1 L_noep")
setexec(1)
a("v_mov_b32 v9, 0")
for k in range(4):
    a("v_mov_b32 v%d, s%d" % (12 + k, 28 + k))
a("buffer_store_dwordx4 v[12:15], v9, s[36:39], 0 offen offset:%d" % EPOCH)
a.label("L_noep")
setexec(-1)
stamp(10)
a("s_branch L_end")

a.label("L_aux")
a.flush()
a("v_lshlrev_b32 v4, 6, v%d" % V_I16)
a("v_lshl_add_u32 v4, v%d, 4, v4" % V_GRP)
a("v_lshrrev_b32 v5, 1, v%d" % V_LANE)
a("v_lshlrev_b32 v5, 13, v5")
a("v_and_b32 v6, 1, v%d" % V_LANE)
a("v_lshl_add_u32 v5, v6, 4, v5")
a("s_lshl_b32 s52, s32, 10")
a("s_lshl_b32 s53, s33, 5")
a("s_add_u32 s52, s52, s53")
a("s_waitcnt lgkmcnt(0)")
srd(44, 4, 896)
srd(40, 10, 448 * 8192)
stamp(11)
a("buffer_load_dwordx4 v[%d:%d], v4, s[44:47], 0 offen%s" % (V_G, V_G + 3, " nt" if Cfg.xnt else ""))
for t in range(14):
    a("s_movk_i32 m0, %d" % (L_WQ + 1024 * t))
    a("buffer_load_dwordx4 v5, s[40:43], s52 offen%s lds" % NTW)
    if t < 13:
        a("s_add_u32 s52, s52, %d" % (32 * 8192))
a("s_barrier")
stamp(12)
if Cfg.kstamp:
    a("s_waitcnt vmcnt(14)")
    stamp(6)
    a("s_waitcnt vmcnt(13)")
    stamp(7)
    a("s_waitcnt vmcnt(0)")
    stamp(8)
a("s_load_dwordx4 s[28:31], s[26:27], %d" % EPOCH)
srd(36, 26, WS_SIZE)
srd(48, 16, 448 * 3584)
common_setup()
a("s_lshl_b32 s52, s32, 12")
a("s_add_u32 s52, s52, %d" % E1)
a("v_lshrrev_b32 v24, 2, v%d" % V_LANE)
a("v_lshlrev_b32 v24, 7, v24")
a("v_and_b32 v25, 3, v%d" % V_LANE)
a("v_lshl_add_u32 v24, v25, 4, v24")
a("v_lshlrev_b32 v25, 3, v%d" % V_LANE)
npre = 0
if Cfg.pretouch:
    a("s_add_u32 s63, s54, %d" % E2)
    a("buffer_load_dword v26, v%d, s[36:39], s63 offen sc1" % V_GA)
    a("s_add_u32 s63, s54, %d" % (E2 + 16 * 2048))
    a("buffer_load_dword v26, v%d, s[36:39], s63 offen sc1" % V_GA)
    a("s_add_u32 s63, s54, %d" % E3A)
    a("buffer_load_dword v26, v%d, s[36:39], s63 offen sc1" % V_GA)
    a("s_add_u32 s63, s54, %d" % (E3A + 16 * 2048))
    a("buffer_load_dword v26, v%d, s[36:39], s63 offen sc1" % V_GA)
    a("buffer_load_dword v26, v24, s[36:39], s52 offen sc1")
    a("buffer_load_dword v26, v24, s[36:39], s52 offen offset:2048 sc1")
    npre = 6
a("s_waitcnt vmcnt(%d)" % (14 + npre))
stamp(1)
make_tags()
XF = 160
for k in range(4):
    a("v_lshlrev_b32 v%d, 16, v%d" % (XF + 2 * k, V_G + k))
    a("v_and_b32 v%d, 0xffff0000, v%d" % (XF + 2 * k + 1, V_G + k))
AF = V_G + 8
layernorm([XF + k for k in range(8)], AF, 0x3FFF3FFF3FFF3FFF, 8)
a("v_lshlrev_b32 v4, 8, v%d" % V_GRP)
a("v_lshrrev_b32 v5, 2, v%d" % V_I16)
a("v_lshl_add_u32 v4, v5, 5, v4")
a("v_and_b32 v5, 3, v%d" % V_I16)
a("v_lshl_add_u32 v4, v5, 3, v4")
a("v_mov_b32 v30, v%d" % V_TA)
a("v_mov_b32 v31, v%d" % V_TB)
a("s_lshl_b32 s53, s33, 7")
a("s_add_u32 s53, s53, s52")
a("s_add_u32 s44, s53, %d" % BOFF)
a("v_lshlrev_b32 v27, 4, v%d" % V_GRP)
WF = 32
DQ = 96
for s in range(14):
    a("s_waitcnt vmcnt(%d)" % (13 - s + npre))
    for h in range(2):
        a("ds_read_b64_tr_b16 v[%d:%d], v4 offset:%d" % (WF + 4 * s + 2 * h, WF + 4 * s + 2 * h + 1, L_WQ + 1024 * s + 128 * h))
stamp(2)
a("s_waitcnt lgkmcnt(0)")
for s in range(14):
    a("v_mfma_f32_16x16x32_bf16 v[%d:%d], v[%d:%d], v[%d:%d], 0" % (DQ + 4 * s, DQ + 4 * s + 3, AF, AF + 3, WF + 4 * s, WF + 4 * s + 3))
for G in range(4):
    setexec(0xFFFF << (16 * G))
    b = DQ + 16 * G
    a("v_add_f32 v8, v%d, v%d" % (b, b + 5))
    if G < 3:
        a("v_add_f32 v9, v%d, v%d" % (b + 10, b + 15))
        a("v_add_f32 v8, v8, v9")
setexec(-1)
a("v_mfma_f32_16x16x4_f32 v[%d:%d], v8, v%d, 0" % (V_ACC, V_ACC + 3, V_ONE))
a("v_cvt_pk_bf16_f32 v28, v%d, v%d" % (V_ACC, V_ACC + 1))
a("v_cvt_pk_bf16_f32 v29, v%d, v%d" % (V_ACC + 2, V_ACC + 3))
setexec(0x0001000100010001)
a("buffer_store_dwordx4 v[28:31], v27, s[36:39], s53 offen")
a("buffer_store_dwordx4 v[28:31], v27, s[36:39], s44 offen sc1")
setexec(-1)
stamp(3)
sel_init()
a.label("L_e1poll")
a("s_add_u32 s53, s52, s%d" % S_SEL)
a("buffer_load_dwordx4 v[%d:%d], v24, s[36:39], s53 offen sc1" % (V_G, V_G + 3))
a("buffer_load_dwordx4 v[%d:%d], v24, s[36:39], s53 offen offset:2048 sc1" % (V_G + 4, V_G + 7))
a("s_waitcnt vmcnt(0)")
a("v_xor_b32 v10, v%d, v%d" % (V_G + 2, V_TA))
a("v_xor_b32 v11, v%d, v%d" % (V_G + 6, V_TA))
a("v_xor_b32 v12, v%d, v%d" % (V_G + 3, V_TB))
a("v_xor_b32 v13, v%d, v%d" % (V_G + 7, V_TB))
a("v_or_b32 v14, v10, v11")
a("v_or3_b32 v14, v14, v12, v13")
a("v_cmp_ne_u32 vcc, 0, v14")
a("s_cbranch_vccz L_e1ok")
retry("L_e1poll", True)
a.label("L_e1ok")
a("ds_write_b64 v25, v[%d:%d] offset:%d" % (V_G, V_G + 1, L_Q))
a("ds_write_b64 v25, v[%d:%d] offset:%d" % (V_G + 4, V_G + 5, L_Q + 512))
a("s_waitcnt lgkmcnt(0)")
stamp(4)
a("s_barrier")
a("s_cmp_ge_u32 s33, 28")
a("s_cbranch_scc1 L_end")
a("v_mul_u32_u24 v6, 3584, v%d" % V_LANE)
a("s_lshl_b32 s52, s35, 4")
for t in range(7):
    a("s_movk_i32 m0, %d" % (L_W1 + 1024 * t))
    a("buffer_load_dwordx4 v6, s[48:51], s52 offen%s lds" % NTW)
    if t < 6:
        a("s_add_u32 s52, s52, %d" % (64 * 3584))
a("s_barrier")
a("s_waitcnt vmcnt(0)")
stamp(5)
a("s_barrier")
a.label("L_end")
if Cfg.stamps:
    setexec(-1)
    stamp(15)
    a("s_waitcnt lgkmcnt(0)")
    a("s_lshl_b32 s48, s2, 3")
    a("s_add_u32 s48, s48, s34")
    a("s_lshl_b32 s48, s48, 6")
    a("s_add_u32 s48, s48, %d" % STAMP)
    a("v_mov_b32 v9, 0")
    setexec(1)
    for i in range(16):
        a("v_mov_b32 v10, s%d" % (64 + 2 * i))
        a("buffer_store_dword v10, v9, s[36:39], s48 offen offset:%d" % (4 * i))
    if Cfg.dbgwg >= 0:
        a("s_cmp_lg_u32 s2, %d" % Cfg.dbgwg)
        a("s_cbranch_scc1 L_exit")
        a("s_cmp_lg_u32 s34, %d" % Cfg.dbgwave)
        a("s_cbranch_scc1 L_exit")
        srd(44, 24, 256)
        for i in range(16):
            a("s_sub_u32 s63, s%d, s64" % (64 + 2 * i))
            a("s_cmp_eq_u32 s%d, 0" % (64 + 2 * i))
            a("s_cselect_b32 s63, 0, s63")
            a("v_mov_b32 v10, s63")
            a("buffer_store_dword v10, v9, s[44:47], 0 offen offset:%d" % (4 * i))
a.label("L_exit")
a("s_endpgm")
a.raw('''.section .rodata,"a"
.p2align 6
.amdhsa_kernel %s_kernel
  .amdhsa_next_free_vgpr %d
  .amdhsa_next_free_sgpr 96
  .amdhsa_accum_offset %d
  .amdhsa_group_segment_fixed_size 0
  .amdhsa_kernarg_size 96
  .amdhsa_user_sgpr_count 2
  .amdhsa_user_sgpr_kernarg_segment_ptr 1
  .amdhsa_system_sgpr_workgroup_id_x 1
  .amdhsa_float_denorm_mode_32 3
.end_amdhsa_kernel''' % (NAME, NVGPR, NVGPR))
open(sys.argv[1], "w").write(a.text())
```

```python
import sys, struct
from asmlib import Asm
NAME = "sequential_preLN__sliding_block_cached__dense_activation_mish__decode"

class Cfg:
    stamps = False
    nt = True
    ntw = True
    lds_bytes = 32768
    timeout = 200000
    depth = 8
    ss = 128
    forceB = False
    xsleep = 0
    pretouch = True
    xnt = False
    kstamp = False
    dbgwg = -1
    dbgwave = 0
    spin = 0
for arg in sys.argv[2:]:
    k, v = arg.split('=')
    setattr(Cfg, k, type(getattr(Cfg, k))(int(v)))

NT = " nt" if Cfg.nt else ""
NTW = " nt" if Cfg.ntw else ""
EPOCH = 0x0
E3X = 0x1000
E1 = 0x10000
E2 = 0x20000
E3A = 0xA0000
BOFF = 0x120000
E4 = 0x240000
STAMP = 0x300000
WS_SIZE = 0x400000
L_WQ = 0
L_W1 = 14336
L_Q = 21504
L_O = 22528
L_ML = 30720
assert L_ML + 2048 <= Cfg.lds_bytes

LOG2E = 1.4426950408889634
def f32(x):
    return "0x%08x" % struct.unpack('<I', struct.pack('<f', x))[0]

a = Asm()
a.raw("; @launch grid=(256,1,1) block=(320,1,1) lds=%d" % Cfg.lds_bytes)
a.raw('.amdgcn_target "amdgcn-amd-amdhsa--gfx950"\n.text\n.globl %s_kernel\n.p2align 8\n.type %s_kernel,@function\n%s_kernel:' % (NAME, NAME, NAME))

DPPM = " row_mask:0xf bank_mask:0xf"
def stamp(i):
    if Cfg.stamps:
        a("s_memrealtime s[%d:%d]" % (64 + 2 * i, 65 + 2 * i))

def srd(dst, ptr, nbytes):
    a("s_mov_b32 s%d, s%d" % (dst, ptr))
    a("s_and_b32 s%d, s%d, 0xffff" % (dst + 1, ptr + 1))
    a("s_mov_b32 s%d, %d" % (dst + 2, nbytes))
    a("s_mov_b32 s%d, 0x20000" % (dst + 3))

def setexec(mask):
    if mask == -1:
        a("s_mov_b64 exec, -1")
    else:
        a("s_mov_b32 exec_lo, 0x%08x" % (mask & 0xffffffff))
        a("s_mov_b32 exec_hi, 0x%08x" % (mask >> 32))

def setmask(s, mask):
    a("s_mov_b32 s%d, 0x%08x" % (s, mask & 0xffffffff))
    a("s_mov_b32 s%d, 0x%08x" % (s + 1, mask >> 32))

def bfly(op, v, t, which):
    a("v_mov_b32 v%d, v%d" % (t, v))
    a("v_permlane%d_swap_b32 v%d, v%d" % (which, v, t))
    a("%s v%d, v%d, v%d" % (op, v, v, t))

def bf16r(dst, src):
    a("v_cvt_pk_bf16_f32 v%d, v%d, v%d" % (dst, src, src))
    a("v_and_b32 v%d, 0xffff0000, v%d" % (dst, dst))

S_ODD, S_B1, S_HI = 56, 58, 60
S_TO = 62
S_SEL = 3

def retry(loop, dual):
    a("s_sub_u32 s%d, s%d, 1" % (S_TO, S_TO))
    a("s_cbranch_scc1 L_end")
    if dual and not Cfg.forceB:
        a("s_and_b32 s63, s%d, 15" % S_TO)
        a("s_cmp_eq_u32 s63, 0")
        a("s_cselect_b32 s%d, %d, 0" % (S_SEL, BOFF))
    a("s_branch %s" % loop)

def sel_init():
    a("s_mov_b32 s%d, %d" % (S_SEL, BOFF if Cfg.forceB else 0))

def layernorm(f, out, valid, T):
    e = [T + k for k in range(8)]
    s1, s2, t1, t2 = T + 8, T + 9, T + 10, T + 11
    pk = [T + 12 + k for k in range(4)]
    a("v_readlane_b32 s63, v%d, 0" % f[0])
    a("v_mov_b32 v%d, 0" % s1)
    a("v_mov_b32 v%d, 0" % s2)
    setexec(valid)
    for k in range(8):
        a("v_subrev_f32 v%d, s63, v%d" % (e[k], f[k]))
    a("v_add_f32 v%d, v%d, v%d" % (s1, e[0], e[1]))
    a("v_mul_f32 v%d, v%d, v%d" % (s2, e[0], e[0]))
    a("v_add_f32 v%d, v%d, v%d" % (t1, e[2], e[3]))
    a("v_mul_f32 v%d, v%d, v%d" % (t2, e[1], e[1]))
    for k in range(4, 8):
        a("v_add_f32 v%d, v%d, v%d" % (s1 if k % 2 == 0 else t1, s1 if k % 2 == 0 else t1, e[k]))
    for k in range(2, 8):
        a("v_fmac_f32 v%d, v%d, v%d" % (s2 if k % 2 == 0 else t2, e[k], e[k]))
    a("v_add_f32 v%d, v%d, v%d" % (s1, s1, t1))
    a("v_add_f32 v%d, v%d, v%d" % (s2, s2, t2))
    setexec(-1)
    for i, r in enumerate((8, 4, 2, 1)):
        a("v_add_f32_dpp v%d, v%d, v%d row_ror:%d%s" % (s1, s1, s1, r, DPPM))
        a("v_add_f32_dpp v%d, v%d, v%d row_ror:%d%s" % (s2, s2, s2, r, DPPM))
        a("v_mov_b32 v%d, 0" % (out + i))
    for which in (16, 32):
        a("v_mov_b32 v%d, v%d" % (t1, s1))
        a("v_mov_b32 v%d, v%d" % (t2, s2))
        a("v_permlane%d_swap_b32 v%d, v%d" % (which, s1, t1))
        a("v_permlane%d_swap_b32 v%d, v%d" % (which, s2, t2))
        a("v_add_f32 v%d, v%d, v%d" % (s1, s1, t1))
        a("v_add_f32 v%d, v%d, v%d" % (s2, s2, t2))
    a("v_mul_f32 v%d, %s, v%d" % (s1, f32(1.0 / 448), s1))
    a("v_mul_f32 v%d, %s, v%d" % (s2, f32(1.0 / 448), s2))
    a("v_fma_f32 v%d, -v%d, v%d, v%d" % (s2, s1, s1, s2))
    a("v_add_f32 v%d, s63, v%d" % (s1, s1))
    a("v_max_f32 v%d, 0, v%d" % (s2, s2))
    a("v_cvt_pk_bf16_f32 v%d, v%d, v%d" % (t1, s1, s2))
    a("v_and_b32 v%d, 0xffff0000, v%d" % (s2, t1))
    a("v_lshlrev_b32 v%d, 16, v%d" % (s1, t1))
    a("v_add_f32 v%d, %s, v%d" % (s2, f32(1e-5), s2))
    bf16r(s2, s2)
    a("v_sqrt_f32 v%d, v%d" % (s2, s2))
    for k in range(8):
        a("v_sub_f32 v%d, v%d, v%d" % (e[k], f[k], s1))
    bf16r(s2, s2)
    a("v_rcp_f32 v%d, v%d" % (s2, s2))
    for k in range(4):
        a("v_cvt_pk_bf16_f32 v%d, v%d, v%d" % (pk[k], e[2 * k], e[2 * k + 1]))
    for k in range(4):
        a("v_lshlrev_b32 v%d, 16, v%d" % (e[2 * k], pk[k]))
        a("v_and_b32 v%d, 0xffff0000, v%d" % (e[2 * k + 1], pk[k]))
    for k in range(8):
        a("v_mul_f32 v%d, v%d, v%d" % (e[k], e[k], s2))
    setexec(valid)
    for k in range(4):
        a("v_cvt_pk_bf16_f32 v%d, v%d, v%d" % (out + k, e[2 * k], e[2 * k + 1]))
    setexec(-1)

def quad_transpose_reduce(v, dst, T):
    k0, g0, k1, g1 = T, T + 1, T + 2, T + 3
    a("v_cndmask_b32 v%d, v%d, v%d, s[%d:%d]" % (g0, v[1], v[0], S_ODD, S_ODD + 1))
    a("v_cndmask_b32 v%d, v%d, v%d, s[%d:%d]" % (g1, v[3], v[2], S_ODD, S_ODD + 1))
    a("v_cndmask_b32 v%d, v%d, v%d, s[%d:%d]" % (k0, v[0], v[1], S_ODD, S_ODD + 1))
    a("v_cndmask_b32 v%d, v%d, v%d, s[%d:%d]" % (k1, v[2], v[3], S_ODD, S_ODD + 1))
    a("v_add_f32_dpp v%d, v%d, v%d quad_perm:[1,0,3,2]%s" % (k0, g0, k0, DPPM))
    a("v_add_f32_dpp v%d, v%d, v%d quad_perm:[1,0,3,2]%s" % (k1, g1, k1, DPPM))
    a("v_cndmask_b32 v%d, v%d, v%d, s[%d:%d]" % (g0, k1, k0, S_B1, S_B1 + 1))
    a("v_cndmask_b32 v%d, v%d, v%d, s[%d:%d]" % (dst, k0, k1, S_B1, S_B1 + 1))
    a("v_add_f32_dpp v%d, v%d, v%d quad_perm:[2,3,0,1]%s" % (dst, g0, dst, DPPM))

def check12(n, X, oklab):
    for t in range(n):
        for r in range(4):
            a("v_xor_b32 v%d, v%d, v%d" % (X + 4 * t + r, V_G + 4 * t + r, V_T + r))
    regs = [X + i for i in range(4 * n)]
    acc = [5, 6, 7]
    cur = regs[:]
    outs = []
    i = 0
    while len(cur) >= 3 and i < 3:
        a("v_or3_b32 v%d, v%d, v%d, v%d" % (acc[i], cur[0], cur[1], cur[2])); cur = cur[3:]; outs.append(acc[i]); i += 1
    i = 0
    while len(cur) >= 2:
        o = outs[i % len(outs)]
        a("v_or3_b32 v%d, v%d, v%d, v%d" % (o, o, cur[0], cur[1])); cur = cur[2:]; i += 1
    rest = outs + cur
    while len(rest) > 1:
        if len(rest) >= 3:
            a("v_or3_b32 v%d, v%d, v%d, v%d" % (acc[0], rest[0], rest[1], rest[2])); rest = [acc[0]] + rest[3:]
        else:
            a("v_or_b32 v%d, v%d, v%d" % (acc[0], rest[0], rest[1])); rest = [acc[0]]
    a("v_and_b32 v%d, 0xfff, v%d" % (acc[0], rest[0]))
    a("v_cmp_ne_u32 vcc, 0, v%d" % acc[0])
    a("s_cbranch_vccz %s" % oklab)

V_I16, V_GRP, V_LANE = 1, 2, 3
V_K, V_V, V_WO, V_W2, V_QF, V_W1F = 32, 64, 96, 128, 136, 168
V_M, V_T = 196, 200
V_TA, V_TB, V_T8, V_ONE = 204, 205, 206, 207
V_B1, V_X = 208, 209
V_GA = 213
V_PUB = 214
V_XA = 215
V_ACC = 216
V_G = 232
NVGPR = 248

if Cfg.stamps:
    for i in range(16):
        a("s_mov_b64 s[%d:%d], 0" % (64 + 2 * i, 65 + 2 * i))
stamp(0)
a("s_load_dwordx16 s[4:19], s[0:1], 0")
a("s_load_dwordx8 s[20:27], s[0:1], 64")
a("s_cmp_ge_u32 s2, 256")
a("s_cbranch_scc1 L_exit")
a("v_lshrrev_b32 v4, 6, v0")
a("v_and_b32 v%d, 63, v0" % V_LANE)
a("v_readfirstlane_b32 s34, v4")
a("v_and_b32 v%d, 15, v0" % V_I16)
a("v_bfe_u32 v%d, v0, 4, 2" % V_GRP)
a("s_and_b32 s32, s2, 7")
a("s_lshr_b32 s33, s2, 3")
a("s_cmp_eq_u32 s34, 4")
a("s_cbranch_scc1 L_aux")

def common_setup():
    a("s_mul_i32 s35, s32, 28")
    a("s_add_u32 s35, s35, s33")
    a("s_mov_b32 s%d, %d" % (S_TO, Cfg.timeout))
    setmask(S_ODD, 0xAAAAAAAAAAAAAAAA)
    setmask(S_B1, 0xCCCCCCCCCCCCCCCC)
    setmask(S_HI, 0xFFFFFFFF00000000)
    a("v_mov_b32 v%d, 1.0" % V_ONE)
    a("v_and_b32 v8, 3, v%d" % V_LANE)
    a("v_lshl_add_u32 v8, v%d, 2, v8" % V_GRP)
    a("v_lshlrev_b32 v8, 11, v8")
    a("v_bfe_u32 v9, v%d, 2, 2" % V_LANE)
    a("v_lshl_add_u32 v%d, v9, 4, v8" % V_GA)
    a("s_lshl_b32 s54, s32, 16")
    a("s_lshl_b32 s63, s33, 6")
    a("s_add_u32 s54, s54, s63")
    a("s_lshl_b32 s55, s32, 5")
    a("s_add_u32 s55, s55, s33")
    a("s_lshl_b32 s55, s55, 11")

def make_tags():
    a("s_waitcnt lgkmcnt(0)")
    for k in range(4):
        a("s_add_u32 s%d, s%d, 1" % (28 + k, 28 + k))
    for k in range(4):
        a("s_and_b32 s63, s%d, 0xfff" % (28 + k))
        a("v_mov_b32 v%d, s63" % (V_T + k))
    a("v_mov_b32 v%d, s30" % V_TA)
    a("v_mov_b32 v%d, s31" % V_TB)
    a("s_and_b32 s63, s30, 0xff")
    a("v_mov_b32 v%d, s63" % V_T8)

a("s_lshl_b32 s48, s32, 22")
a("s_lshl_b32 s49, s33, 15")
a("s_add_u32 s48, s48, s49")
a("s_lshl_b32 s49, s34, 13")
a("s_add_u32 s48, s48, s49")
a("s_add_u32 s48, s48, %d" % (6144 * 512))
a("v_lshlrev_b32 v4, 9, v%d" % V_I16)
a("v_lshl_add_u32 v4, v%d, 4, v4" % V_GRP)
a("v_lshlrev_b32 v5, 11, v%d" % V_GRP)
a("v_lshl_add_u32 v5, v%d, 4, v5" % V_I16)
a("s_waitcnt lgkmcnt(0)")
a("s_load_dwordx4 s[28:31], s[26:27], %d" % EPOCH)
srd(40, 6, 33554432)
srd(44, 8, 33554432)
srd(36, 26, WS_SIZE)
stamp(11)
a("s_barrier")
stamp(12)
nissued = [0]
def paced(text):
    if Cfg.depth and nissued[0] >= Cfg.depth:
        a("s_waitcnt vmcnt(%d)" % (Cfg.depth - 1))
    a(text)
    nissued[0] += 1
for s in range(8):
    paced("buffer_load_dwordx4 v[%d:%d], v4, s[40:43], s48 offen offset:%d%s" % (V_K + 4 * s, V_K + 4 * s + 3, 64 * s, NT))
if Cfg.kstamp:
    a("s_waitcnt lgkmcnt(0)")
    stamp(5)
    a("s_waitcnt vmcnt(7)")
    stamp(6)
    a("s_waitcnt vmcnt(0)")
    stamp(7)
common_setup()
a("v_and_b32 v6, 1, v%d" % V_I16)
a("v_lshlrev_b32 v6, 4, v6")
a("v_mov_b32 v7, 0xffff")
a("v_lshlrev_b32 v7, v6, v7")
a("v_bfe_u32 v6, v%d, 1, 2" % V_I16)
for rho in range(4):
    a("v_cmp_eq_u32 vcc, %d, v6" % rho)
    a("v_cndmask_b32 v%d, 0, v7, vcc" % (V_M + rho))
a("v_lshl_add_u32 v8, v%d, 3, v%d" % (V_GRP, V_I16))
a("v_lshlrev_b32 v%d, 4, v8" % V_PUB)
a("s_lshl_b32 s50, s32, 9")
a("s_bfe_u32 s49, s33, 0x10001")
a("s_lshl_b32 s49, s49, 8")
a("s_add_u32 s50, s50, s49")
a("s_lshr_b32 s49, s33, 4")
a("s_lshl_b32 s49, s49, 7")
a("s_add_u32 s50, s50, s49")
a("s_bfe_u32 s49, s33, 0x20002")
a("s_lshl_b32 s49, s49, 5")
a("s_add_u32 s50, s50, s49")
a("s_and_b32 s49, s33, 1")
a("s_lshl_b32 s49, s49, 2")
a("s_add_u32 s50, s50, s49")
a("s_mul_i32 s50, s50, 896")
a("s_and_b32 s49, s34, 1")
a("s_lshl_b32 s49, s49, 9")
a("s_add_u32 s50, s50, s49")
a("s_add_u32 s51, s50, 7168")
a("s_add_u32 s52, s50, %d" % (2 * 7168))
a("s_add_u32 s53, s50, %d" % (3 * 7168))
a("v_mul_u32_u24 v6, 896, v%d" % V_GRP)
a("v_lshl_add_u32 v6, v%d, 4, v6" % V_I16)
make_tags()
for r in range(4):
    for h in range(2):
        n = 2 * r + h
        paced("buffer_load_dwordx4 v[%d:%d], v5, s[44:47], s48 offen offset:%d%s" % (V_V + 4 * n, V_V + 4 * n + 3, 512 * r + 256 * h, NT))
stamp(13)
a("v_lshrrev_b32 v7, 3, v%d" % V_I16)
a("v_lshlrev_b32 v7, 9, v7")
a("v_lshl_add_u32 v7, v%d, 4, v7" % V_GRP)
srd(40, 12, 4096 * 896)
a("s_cmp_lt_u32 s34, 2")
a("s_cbranch_scc1 L_nowo")
for q, so in enumerate((50, 51, 52, 53)):
    a("buffer_load_dwordx4 v[%d:%d], v6, s[40:43], s%d offen%s" % (V_WO + 4 * q, V_WO + 4 * q + 3, so, NT))
a("s_cmp_lg_u32 s34, 3")
a("s_cbranch_scc1 L_nomask")
setexec(0x00FF00FF00FF00FF)
a.label("L_nomask")
for q, so in enumerate((50, 51, 52, 53)):
    a("buffer_load_dwordx4 v[%d:%d], v6, s[40:43], s%d offen offset:256%s" % (V_WO + 16 + 4 * q, V_WO + 16 + 4 * q + 3, so, NT))
setexec(-1)
a("s_mov_b32 s49, 8")
a("s_branch L_wodone")
a.label("L_nowo")
a("s_mov_b32 s49, 0")
a.label("L_wodone")
stamp(1)
a("s_barrier")
stamp(2)
for s in range(8):
    a("ds_read_b128 v[%d:%d], v7 offset:%d" % (V_QF + 4 * s, V_QF + 4 * s + 3, L_Q + 64 * s))

def wait_v(n):
    l1, l2 = a.newlabel("L_wv"), a.newlabel("L_wv")
    a("s_cmp_eq_u32 s49, 0")
    a("s_cbranch_scc1 %s" % l1)
    a("s_waitcnt vmcnt(%d)" % (n + 8))
    a("s_branch %s" % l2)
    a.label(l1)
    a("s_waitcnt vmcnt(%d)" % n)
    a.label(l2)
wait_v(8)
a("s_waitcnt lgkmcnt(0)")
S = V_ACC
for s in range(8):
    a("v_mfma_f32_16x16x32_bf16 v[%d:%d], v[%d:%d], v[%d:%d], %s" % (S, S + 3, V_K + 4 * s, V_K + 4 * s + 3, V_QF + 4 * s, V_QF + 4 * s + 3, "0" if s == 0 else "v[%d:%d]" % (S, S + 3)))
a("s_lshl_b32 s63, s34, 11")
a("v_lshl_add_u32 v22, v%d, 4, s63" % V_LANE)
a("s_lshl_b32 s63, s34, 9")
a("v_lshl_add_u32 v23, v%d, 3, s63" % V_LANE)
a("s_mov_b32 s63, %s" % f32(0.0625 * LOG2E))
a("v_cvt_pk_bf16_f32 v8, v%d, v%d" % (S, S + 1))
a("v_cvt_pk_bf16_f32 v9, v%d, v%d" % (S + 2, S + 3))
a("v_lshlrev_b32 v10, 16, v8")
a("v_and_b32 v11, 0xffff0000, v8")
a("v_lshlrev_b32 v12, 16, v9")
a("v_and_b32 v13, 0xffff0000, v9")
a("v_max3_f32 v14, v10, v11, v12")
a("v_max_f32 v14, v14, v13")
bfly("v_max_f32", 14, 15, 16)
bfly("v_max_f32", 14, 15, 32)
a("v_mul_f32 v14, s63, v14")
for r in range(4):
    a("v_fma_f32 v%d, v%d, s63, -v14" % (10 + r, 10 + r))
for r in range(4):
    a("v_exp_f32 v%d, v%d" % (10 + r, 10 + r))
for r in range(4):
    a("v_cvt_pk_bf16_f32 v%d, v%d, v%d" % (16 + r, 10 + r, 10 + r))
O = V_ACC + 4
BB = V_QF
for r in range(4):
    for rho in range(4):
        a("v_and_b32 v%d, v%d, v%d" % (BB + 4 * r + rho, 16 + r, V_M + rho))
a("v_add_f32 v15, v10, v11")
a("v_add_f32 v20, v12, v13")
a("v_add_f32 v15, v15, v20")
bfly("v_add_f32", 15, 20, 16)
bfly("v_add_f32", 15, 20, 32)
a("ds_write_b64 v23, v[14:15] offset:%d" % L_ML)
wait_v(2)
for r in range(4):
    if r == 3:
        wait_v(0)
    for h in range(2):
        n = 2 * r + h
        a("v_mfma_f32_16x16x32_bf16 v[%d:%d], v[%d:%d], v[%d:%d], %s" % (O + 4 * h, O + 4 * h + 3, V_V + 4 * n, V_V + 4 * n + 3, BB + 4 * r, BB + 4 * r + 3, "0" if r == 0 else "v[%d:%d]" % (O + 4 * h, O + 4 * h + 3)))
a("ds_write_b128 v22, v[%d:%d] offset:%d" % (O, O + 3, L_O))
a("ds_write_b128 v22, v[%d:%d] offset:%d" % (O + 4, O + 7, L_O + 1024))
a("s_waitcnt lgkmcnt(0)")
a("s_barrier")
stamp(3)
a("s_cmp_ge_u32 s34, 2")
a("s_cbranch_scc1 L_e2")
a("s_lshl_b32 s63, s34, 10")
a("v_lshl_add_u32 v8, v%d, 4, s63" % V_LANE)
a("v_lshlrev_b32 v9, 3, v%d" % V_LANE)
for w in range(4):
    a("ds_read_b64 v[%d:%d], v9 offset:%d" % (10 + 2 * w, 11 + 2 * w, L_ML + 512 * w))
for w in range(4):
    a("ds_read_b128 v[%d:%d], v8 offset:%d" % (V_G + 4 * w, V_G + 4 * w + 3, L_O + 2048 * w))
a("s_add_u32 s48, s55, %d" % E2)
a("s_add_u32 s49, s55, %d" % (E2 + BOFF))
a("s_movk_i32 s63, 0xff")
a("v_mov_b32 v31, v%d" % V_TB)
a("s_waitcnt lgkmcnt(4)" if not Cfg.stamps else "s_waitcnt lgkmcnt(0)")
a("v_max3_f32 v18, v10, v12, v14")
a("v_max_f32 v18, v18, v16")
for w in range(4):
    a("v_sub_f32 v%d, v%d, v18" % (10 + 2 * w, 10 + 2 * w))
for w in range(4):
    a("v_exp_f32 v%d, v%d" % (10 + 2 * w, 10 + 2 * w))
a("v_mul_f32 v19, v10, v11")
for w in range(1, 4):
    a("v_fmac_f32 v19, v%d, v%d" % (10 + 2 * w, 11 + 2 * w))
a("v_rcp_f32 v20, v19")
a("v_log_f32 v21, v19")
a("s_waitcnt lgkmcnt(0)")
for r in range(4):
    a("v_mul_f32 v%d, v10, v%d" % (24 + r, V_G + r))
for w in range(1, 4):
    for r in range(4):
        a("v_fmac_f32 v%d, v%d, v%d" % (24 + r, 10 + 2 * w, V_G + 4 * w + r))
a("v_add_f32 v21, v21, v18")
for r in range(4):
    a("v_mul_f32 v%d, v%d, v20" % (24 + r, 24 + r))
a("v_bfi_b32 v30, s63, v%d, v21" % V_T8)
a("v_cvt_pk_bf16_f32 v28, v24, v25")
a("v_cvt_pk_bf16_f32 v29, v26, v27")
a("buffer_store_dwordx4 v[28:31], v8, s[36:39], s48 offen")
a("buffer_store_dwordx4 v[28:31], v8, s[36:39], s49 offen sc1")
stamp(4)
a("s_cmp_ge_u32 s33, 28")
a("s_cbranch_scc1 L_b3")
a("s_cmp_eq_u32 s34, 1")
a("s_cbranch_scc1 L_b3")
sel_init()
a("s_lshl_b32 s51, s32, 12")
a("s_mul_i32 s63, s33, %d" % Cfg.ss)
a("s_add_u32 s51, s51, s63")
a("s_add_u32 s51, s51, %d" % E3X)
a("v_lshlrev_b32 v4, 4, v%d" % V_GRP)
a.label("L_e3apoll")
a("s_add_u32 s48, s54, s%d" % S_SEL)
a("s_add_u32 s49, s48, %d" % (E3A + 16 * 2048))
a("s_add_u32 s48, s48, %d" % E3A)
a("buffer_load_dwordx4 v[%d:%d], v%d, s[36:39], s48 offen sc1" % (V_G, V_G + 3, V_GA))
a("buffer_load_dwordx4 v[%d:%d], v%d, s[36:39], s49 offen sc1" % (V_G + 4, V_G + 7, V_GA))
a("s_waitcnt vmcnt(0)")
check12(2, 12, "L_e3aok")
retry("L_e3apoll", True)
a.label("L_e3aok")
stamp(7)
for r in range(4):
    a("v_add_f32 v%d, v%d, v%d" % (12 + r, 12 + r, 16 + r))
quad_transpose_reduce([12, 13, 14, 15], 9, 16)
a("v_mfma_f32_16x16x4_f32 v[%d:%d], v9, v%d, 0" % (V_ACC, V_ACC + 3, V_ONE))
a("s_movk_i32 s63, 0xfff")
setexec(0x0001000100010001)
for r in range(4):
    a("v_bfi_b32 v%d, s63, v%d, v%d" % (28 + r, V_T + r, V_ACC + r))
a("buffer_store_dwordx4 v[28:31], v4, s[36:39], s51 offen sc1")
setexec(-1)
stamp(8)
a("s_branch L_b3")

a.label("L_e2")
a.flush()
sel_init()
a.label("L_e2poll")
a("s_add_u32 s48, s54, s%d" % S_SEL)
a("s_add_u32 s49, s48, %d" % (E2 + 16 * 2048))
a("s_add_u32 s48, s48, %d" % E2)
a("buffer_load_dwordx4 v[%d:%d], v%d, s[36:39], s48 offen sc1" % (V_G, V_G + 3, V_GA))
a("buffer_load_dwordx4 v[%d:%d], v%d, s[36:39], s49 offen sc1" % (V_G + 4, V_G + 7, V_GA))
a("s_waitcnt vmcnt(0)")
a("v_xor_b32 v10, v%d, v%d" % (V_G + 2, V_T8))
a("v_xor_b32 v11, v%d, v%d" % (V_G + 6, V_T8))
a("v_xor_b32 v12, v%d, v%d" % (V_G + 3, V_TB))
a("v_xor_b32 v13, v%d, v%d" % (V_G + 7, V_TB))
a("v_or_b32 v14, v10, v11")
a("v_and_b32 v14, 0xff, v14")
a("v_or3_b32 v14, v14, v12, v13")
a("v_cmp_ne_u32 vcc, 0, v14")
a("s_cbranch_vccz L_e2ok")
retry("L_e2poll", True)
a.label("L_e2ok")
stamp(5)
a("v_max_f32 v14, v10, v11")
for t in range(2):
    a("v_lshlrev_b32 v%d, 16, v%d" % (16 + 4 * t, V_G + 4 * t))
    a("v_and_b32 v%d, 0xffff0000, v%d" % (17 + 4 * t, V_G + 4 * t))
    a("v_max_f32_dpp v14, v14, v14 quad_perm:[%s]%s" % ("1,0,3,2" if t == 0 else "2,3,0,1", DPPM))
for t, which in enumerate((16, 32)):
    a("v_mov_b32 v15, v14")
    a("v_lshlrev_b32 v%d, 16, v%d" % (18 + 4 * t, V_G + 4 * t + 1))
    a("v_and_b32 v%d, 0xffff0000, v%d" % (19 + 4 * t, V_G + 4 * t + 1))
    a("v_permlane%d_swap_b32 v14, v15" % which)
    a("v_max_f32 v14, v14, v15")
a("v_sub_f32 v10, v10, v14")
a("v_sub_f32 v11, v11, v14")
a("v_exp_f32 v10, v10")
a("v_exp_f32 v11, v11")
a("s_add_u32 s48, s55, %d" % E3A)
for r in range(4):
    a("v_mul_f32 v%d, v%d, v10" % (16 + r, 16 + r))
a("v_add_f32 v12, v10, v11")
for r in range(4):
    a("v_fmac_f32 v%d, v%d, v11" % (16 + r, 20 + r))
a("v_add_f32_dpp v12, v12, v12 quad_perm:[1,0,3,2]%s" % DPPM)
quad_transpose_reduce([16, 17, 18, 19], 13, 24)
a("v_add_f32_dpp v12, v12, v12 quad_perm:[2,3,0,1]%s" % DPPM)
a("v_mfma_f32_16x16x4_f32 v[%d:%d], v13, v%d, 0" % (V_ACC, V_ACC + 3, V_ONE))
a("v_mfma_f32_16x16x4_f32 v[%d:%d], v12, v%d, 0" % (V_ACC + 4, V_ACC + 7, V_ONE))
a("s_and_b32 s63, s34, 1")
a("s_lshl_b32 s63, s63, 10")
a("s_add_u32 s48, s48, s63")
a("s_add_u32 s49, s48, %d" % BOFF)
a("s_movk_i32 s63, 0xfff")
a("v_rcp_f32 v12, v%d" % (V_ACC + 4))
for r in range(4):
    a("v_mul_f32 v%d, v%d, v12" % (16 + r, V_ACC + r))
for r in range(4):
    a("v_cvt_pk_bf16_f32 v%d, v%d, v%d" % (16 + r, 16 + r, 16 + r))
A2 = V_ACC + 8
for q in range(4):
    for rho in range(4):
        a("v_and_b32 v%d, v%d, v%d" % (BB + 4 * q + rho, 16 + q, V_M + rho))
    if q >= 1:
        qq = q - 1
        for b in range(2):
            a("v_mfma_f32_16x16x32_bf16 v[%d:%d], v[%d:%d], v[%d:%d], %s" % (A2 + 4 * b, A2 + 4 * b + 3, V_WO + 16 * b + 4 * qq, V_WO + 16 * b + 4 * qq + 3, BB + 4 * qq, BB + 4 * qq + 3, "0" if qq == 0 else "v[%d:%d]" % (A2 + 4 * b, A2 + 4 * b + 3)))
for b in range(2):
    a("v_mfma_f32_16x16x32_bf16 v[%d:%d], v[%d:%d], v[%d:%d], v[%d:%d]" % (A2 + 4 * b, A2 + 4 * b + 3, V_WO + 16 * b + 12, V_WO + 16 * b + 15, BB + 12, BB + 15, A2 + 4 * b, A2 + 4 * b + 3))
a("v_cmp_lt_u32 vcc, 7, v%d" % V_I16)
a("v_add_u32 v4, %d, v%d" % (512 - 128, V_PUB))
a("v_cndmask_b32 v4, v%d, v4, vcc" % V_PUB)
for r in range(4):
    a("v_cndmask_b32 v%d, v%d, v%d, vcc" % (24 + r, A2 + r, A2 + 4 + r))
for r in range(4):
    a("v_bfi_b32 v%d, s63, v%d, v%d" % (28 + r, V_T + r, 24 + r))
a("s_cmp_lg_u32 s34, 3")
a("s_cbranch_scc1 L_pm1")
a("s_mov_b32 exec_hi, 0x00ff00ff")
a.label("L_pm1")
a("buffer_store_dwordx4 v[28:31], v4, s[36:39], s48 offen")
a("buffer_store_dwordx4 v[28:31], v4, s[36:39], s49 offen sc1")
setexec(-1)
stamp(6)

a.label("L_b3")
a.flush()
a("s_cmp_ge_u32 s33, 28")
a("s_cbranch_scc1 L_fin")
a("v_lshrrev_b32 v8, 3, v%d" % V_I16)
a("v_sub_u32 v8, v%d, v8" % V_I16)
a("v_min_u32 v8, 13, v8")
a("v_lshrrev_b32 v9, 1, v%d" % V_GRP)
a("v_lshl_add_u32 v9, v8, 1, v9")
a("v_mul_u32_u24 v9, %d, v9" % Cfg.ss)
a("v_and_b32 v10, 1, v%d" % V_GRP)
a("v_lshl_add_u32 v%d, v10, 5, v9" % V_XA)
a("v_bfe_u32 v7, v%d, 1, 1" % V_I16)
a("v_mul_u32_u24 v7, %d, v7" % (224 * 16))
a("v_lshl_add_u32 v7, v%d, 5, v7" % V_GRP)
a("v_lshrrev_b32 v11, 2, v%d" % V_I16)
a("v_lshl_add_u32 v7, v11, 7, v7")
a("v_and_b32 v11, 1, v%d" % V_I16)
a("v_lshl_add_u32 v7, v11, 3, v7")
a("v_lshlrev_b32 v12, 6, v8")
a("v_lshl_add_u32 v12, v%d, 2, v12" % V_GRP)
a("v_lshlrev_b32 v13, 2, v10")
a("v_and_b32 v14, 2, v%d" % V_GRP)
a("v_add_u32 v13, v13, v14")
a("v_mul_u32_u24 v14, 896, v13")
a("v_lshl_add_u32 v14, v%d, 4, v14" % V_I16)
a("v_add_u32 v13, v13, v11")
a("v_lshlrev_b32 v13, 1, v13")
srd(40, 20, 1792 * 896)
srd(44, 4, 896)
srd(48, 18, 1792 * 2)
a("s_mul_i32 s52, s35, %d" % (8 * 896))
a("s_lshl_b32 s63, s34, 8")
a("s_add_u32 s52, s52, s63")
a("s_lshl_b32 s53, s35, 4")
a("s_lshl_b32 s%d, s34, 13" % S_SEL)
a("s_add_u32 s%d, s%d, %d" % (S_SEL, S_SEL, E3X))
a("s_add_u32 s54, s%d, 4096" % S_SEL)
a("s_lshl_b32 s63, s34, 11")
a("v_lshl_add_u32 v22, v%d, 4, s63" % V_LANE)
a("v_lshlrev_b32 v23, 4, v%d" % V_LANE)
a("s_barrier")
stamp(9)
for e in range(4):
    a("buffer_load_dword v%d, v12, s[44:47], 0 offen offset:%d" % (V_X + e, 16 * e))
a("buffer_load_ushort v%d, v13, s[48:51], s53 offen" % V_B1)
a("s_cmp_lg_u32 s34, 3")
a("s_cbranch_scc1 L_nomask2")
setexec(0x00FF00FF00FF00FF)
a.label("L_nomask2")
for q in range(2):
    a("buffer_load_dwordx4 v[%d:%d], v14, s[40:43], s52 offen offset:%d%s" % (V_W2 + 4 * q, V_W2 + 4 * q + 3, 896 * q, NT))
setexec(-1)
for m in range(7):
    for u in range(2):
        a("ds_read_b64_tr_b16 v[%d:%d], v7 offset:%d" % (V_W1F + 4 * m + 2 * u, V_W1F + 4 * m + 2 * u + 1, L_W1 + 512 * m + 16 * u))
if Cfg.xsleep:
    a("s_sleep %d" % Cfg.xsleep)
a.label("L_e3xpoll")
a("buffer_load_dwordx4 v[%d:%d], v%d, s[36:39], s%d offen sc1" % (V_G, V_G + 3, V_XA, S_SEL))
a("buffer_load_dwordx4 v[%d:%d], v%d, s[36:39], s%d offen offset:16 sc1" % (V_G + 4, V_G + 7, V_XA, S_SEL))
a("buffer_load_dwordx4 v[%d:%d], v%d, s[36:39], s54 offen sc1" % (V_G + 8, V_G + 11, V_XA))
a("buffer_load_dwordx4 v[%d:%d], v%d, s[36:39], s54 offen offset:16 sc1" % (V_G + 12, V_G + 15, V_XA))
a("s_waitcnt vmcnt(0)")
XR = V_K
check12(4, XR, "L_e3xok")
retry("L_e3xpoll", False)
a.label("L_e3xok")
stamp(10)
for k in range(8):
    a("v_add_f32 v%d, v%d, v%d" % (XR + k, XR + k, XR + 8 + k))
a("ds_write_b128 v22, v[%d:%d] offset:%d" % (XR, XR + 3, L_O))
a("ds_write_b128 v22, v[%d:%d] offset:%d" % (XR + 4, XR + 7, L_O + 1024))
a("v_lshlrev_b32 v%d, 16, v%d" % (V_B1, V_B1))
XF = V_K + 16
for e in range(4):
    a("v_lshlrev_b32 v%d, 16, v%d" % (XF + e, V_X + e))
    a("v_and_b32 v%d, 0xffff0000, v%d" % (XF + 4 + e, V_X + e))
a("s_waitcnt lgkmcnt(0)")
a("s_barrier")
PR = V_V
for w in range(4):
    a("ds_read_b128 v[%d:%d], v23 offset:%d" % (PR + 8 * w, PR + 8 * w + 3, L_O + 2048 * w))
    a("ds_read_b128 v[%d:%d], v23 offset:%d" % (PR + 8 * w + 4, PR + 8 * w + 7, L_O + 2048 * w + 1024))
a("s_waitcnt lgkmcnt(0)")
for k in range(8):
    a("v_add_f32 v%d, v%d, v%d" % (PR + k, PR + k, PR + 8 + k))
    a("v_add_f32 v%d, v%d, v%d" % (PR + 16 + k, PR + 16 + k, PR + 24 + k))
for k in range(8):
    a("v_add_f32 v%d, v%d, v%d" % (PR + k, PR + k, PR + 16 + k))
for k in range(4):
    a("v_cvt_pk_bf16_f32 v%d, v%d, v%d" % (PR + 8 + k, PR + 2 * k, PR + 2 * k + 1))
for k in range(4):
    a("v_lshlrev_b32 v%d, 16, v%d" % (PR + 2 * k, PR + 8 + k))
    a("v_and_b32 v%d, 0xffff0000, v%d" % (PR + 2 * k + 1, PR + 8 + k))
for k in range(8):
    a("v_add_f32 v%d, v%d, v%d" % (PR + k, PR + k, XF + k))
for k in range(4):
    a("v_cvt_pk_bf16_f32 v%d, v%d, v%d" % (PR + 8 + k, PR + 2 * k, PR + 2 * k + 1))
for k in range(4):
    a("v_lshlrev_b32 v%d, 16, v%d" % (PR + 2 * k, PR + 8 + k))
    a("v_and_b32 v%d, 0xffff0000, v%d" % (PR + 2 * k + 1, PR + 8 + k))
AF = V_G
layernorm([PR + k for k in range(8)], AF, 0x7F7F7F7F7F7F7F7F, 8)
D1 = V_K
for m in range(7):
    a("v_mfma_f32_16x16x32_bf16 v[%d:%d], v[%d:%d], v[%d:%d], 0" % (D1 + 4 * m, D1 + 4 * m + 3, AF, AF + 3, V_W1F + 4 * m, V_W1F + 4 * m + 3))
a("v_mov_b32 v8, 0")
setexec(0x0000FF00000000FF)
a("v_add_f32 v8, v%d, v%d" % (D1 + 0, D1 + 4 + 1))
a("v_add_f32 v9, v%d, v%d" % (D1 + 8 + 2, D1 + 12 + 3))
a("v_add_f32 v8, v8, v9")
setexec(0xFF00000000FF0000)
a("v_add_f32 v8, v%d, v%d" % (D1 + 16, D1 + 20 + 1))
a("v_add_f32 v8, v8, v%d" % (D1 + 24 + 2))
setexec(-1)
a("v_add_f32_dpp v8, v8, v8 row_ror:8%s" % DPPM)
a("v_mfma_f32_16x16x4_f32 v[%d:%d], v8, v%d, 0" % (V_ACC, V_ACC + 3, V_ONE))
a("s_lshl_b32 s48, s35, 11")
a("s_lshl_b32 s63, s34, 9")
a("s_add_u32 s48, s48, s63")
a("s_add_u32 s48, s48, %d" % E4)
a("s_mov_b32 s63, %s" % f32(-LOG2E))
a("v_cndmask_b32 v8, v%d, v%d, s[%d:%d]" % (V_ACC, V_ACC + 1, S_ODD, S_ODD + 1))
a("v_cndmask_b32 v9, v%d, v%d, s[%d:%d]" % (V_ACC + 2, V_ACC + 3, S_ODD, S_ODD + 1))
a("v_cndmask_b32 v8, v8, v9, s[%d:%d]" % (S_HI, S_HI + 1))
bf16r(8, 8)
a("v_add_f32 v8, v8, v%d" % V_B1)
bf16r(8, 8)
a("v_mul_f32 v9, s63, abs(v8)")
a("v_exp_f32 v9, v9")
a("v_max_f32 v17, 0, v8")
bf16r(9, 9)
a("v_add_f32 v10, 1.0, v9")
a("v_add_f32 v11, -1.0, v10")
a("v_log_f32 v12, v10")
a("v_rcp_f32 v13, v11")
a("v_cmp_eq_f32 vcc, 0, v11")
a("v_mul_f32 v12, %s, v12" % f32(0.6931471805599453))
a("v_mul_f32 v13, v13, v9")
a("v_mul_f32 v12, v12, v13")
a("v_cndmask_b32 v12, v12, v9, vcc")
bf16r(12, 12)
a("v_add_f32 v12, v12, v17")
bf16r(12, 12)
a("v_mul_f32 v13, %s, v12" % f32(-2.0 * LOG2E))
a("v_exp_f32 v13, v13")
a("v_mul_f32 v16, v12, v12")
a("v_add_f32 v14, 1.0, v13")
a("v_sub_f32 v15, 1.0, v13")
a("v_rcp_f32 v14, v14")
a("v_mul_f32 v16, %s, v16" % f32(-1.0 / 3.0))
a("v_cmp_gt_f32 vcc, %s, v12" % f32(2.0 ** -6))
a("v_fma_f32 v16, v16, v12, v12")
a("v_mul_f32 v14, v14, v15")
a("v_cndmask_b32 v14, v14, v16, vcc")
bf16r(14, 14)
a("v_mul_f32 v14, v14, v8")
a("v_cvt_pk_bf16_f32 v14, v14, v14")
a("s_movk_i32 s63, 0xfff")
for q in range(2):
    for rho in range(4):
        a("v_and_b32_dpp v%d, v14, v%d quad_perm:[%d,%d,%d,%d]%s" % (BB + 4 * q + rho, V_M + rho, q, q, 2 + q, 2 + q, DPPM))
for q in range(2):
    a("v_mfma_f32_16x16x32_bf16 v[%d:%d], v[%d:%d], v[%d:%d], %s" % (A2, A2 + 3, V_W2 + 4 * q, V_W2 + 4 * q + 3, BB + 4 * q, BB + 4 * q + 3, "0" if q == 0 else "v[%d:%d]" % (A2, A2 + 3)))
setexec(0x00FF00FF00FF00FF)
a("s_cmp_lg_u32 s34, 3")
a("s_cbranch_scc1 L_pm2")
a("s_mov_b32 exec_hi, 0")
a.label("L_pm2")
for r in range(4):
    a("v_bfi_b32 v%d, s63, v%d, v%d" % (28 + r, V_T + r, A2 + r))
a("buffer_store_dwordx4 v[28:31], v%d, s[36:39], s48 offen sc1" % V_PUB)
setexec(-1)
stamp(14)
a("s_branch L_end")

a.label("L_fin")
a.flush()
a("s_sub_u32 s52, s2, 224")
a("s_cmp_ge_u32 s52, 28")
a("s_cbranch_scc1 L_end")
a("v_and_b32 v8, 3, v%d" % V_LANE)
a("v_and_b32 v9, 1, v%d" % V_GRP)
a("v_lshl_add_u32 v8, v9, 2, v8")
a("v_lshlrev_b32 v8, 12, v8")
a("v_bfe_u32 v9, v%d, 2, 2" % V_LANE)
a("v_lshl_add_u32 v8, v9, 4, v8")
a("s_mul_i32 s53, s52, %d" % Cfg.ss)
a("s_add_u32 s53, s53, %d" % E3X)
a("s_lshl_b32 s63, s52, 2")
a("v_add_u32 v10, s63, v%d" % V_GRP)
a("v_and_b32 v11, 7, v10")
a("v_sub_u32 v10, v10, v11")
a("v_lshl_add_u32 v10, v10, 2, v11")
a("v_lshlrev_b32 v%d, 1, v10" % V_XA)
srd(44, 4, 896)
for r in range(4):
    a("buffer_load_ushort v%d, v%d, s[44:47], 0 offen offset:%d" % (V_X + r, V_XA, 16 * r))
a.label("L_hpoll")
a("s_sleep 2")
a("buffer_load_dwordx4 v[%d:%d], v8, s[36:39], s53 offen sc1" % (V_G, V_G + 3))
a("s_waitcnt vmcnt(0)")
check12(1, 12, "L_hok")
retry("L_hpoll", False)
a.label("L_hok")
stamp(7)
quad_transpose_reduce([12, 13, 14, 15], 9, 16)
a("v_cndmask_b32 v9, v9, 0, s[%d:%d]" % (S_HI, S_HI + 1))
a("v_mfma_f32_16x16x4_f32 v[%d:%d], v9, v%d, 0" % (V_ACC, V_ACC + 3, V_ONE))
for r in range(4):
    a("v_lshlrev_b32 v%d, 16, v%d" % (V_X + r, V_X + r))
a("v_cvt_pk_bf16_f32 v10, v%d, v%d" % (V_ACC, V_ACC + 1))
a("v_cvt_pk_bf16_f32 v11, v%d, v%d" % (V_ACC + 2, V_ACC + 3))
a("v_lshlrev_b32 v12, 16, v10")
a("v_and_b32 v13, 0xffff0000, v10")
a("v_lshlrev_b32 v14, 16, v11")
a("v_and_b32 v15, 0xffff0000, v11")
for r in range(4):
    a("v_add_f32 v%d, v%d, v%d" % (12 + r, 12 + r, V_X + r))
a("v_cvt_pk_bf16_f32 v10, v12, v13")
a("v_cvt_pk_bf16_f32 v11, v14, v15")
a("v_lshlrev_b32 v%d, 16, v10" % (V_X))
a("v_and_b32 v%d, 0xffff0000, v10" % (V_X + 1))
a("v_lshlrev_b32 v%d, 16, v11" % (V_X + 2))
a("v_and_b32 v%d, 0xffff0000, v11" % (V_X + 3))
a("s_mul_i32 s48, s34, %d" % (56 * 2048))
a("s_lshl_b32 s63, s52, 6")
a("s_add_u32 s48, s48, s63")
a("s_add_u32 s48, s48, %d" % E4)
for t in range(1, 4):
    a("s_add_u32 s%d, s48, %d" % (48 + t, t * 16 * 2048))
for r in range(4):
    a("v_mov_b32 v%d, v%d" % (V_G + 12 + r, V_T + r))
a("s_lshl_b32 s63, s34, 6")
a("v_lshl_add_u32 v22, v%d, 4, s63" % V_GRP)
a("v_lshlrev_b32 v23, 4, v%d" % V_GRP)
srd(44, 22, 896)
a("s_sleep 8")
a.label("L_e4poll")
for t in range(4):
    if t == 3:
        a("s_mov_b32 exec_hi, 0")
    a("buffer_load_dwordx4 v[%d:%d], v%d, s[36:39], s%d offen sc1" % (V_G + 4 * t, V_G + 4 * t + 3, V_GA, 48 + t))
setexec(-1)
a("s_waitcnt vmcnt(0)")
check12(4, XR, "L_e4ok")
retry("L_e4poll", False)
a.label("L_e4ok")
stamp(9)
for r in range(4):
    a("v_add_f32 v%d, v%d, v%d" % (XR + r, XR + r, XR + 4 + r))
    a("v_add_f32 v%d, v%d, v%d" % (XR + 8 + r, XR + 8 + r, XR + 12 + r))
for r in range(4):
    a("v_add_f32 v%d, v%d, v%d" % (XR + r, XR + r, XR + 8 + r))
quad_transpose_reduce([XR, XR + 1, XR + 2, XR + 3], 9, 16)
a("v_mfma_f32_16x16x4_f32 v[%d:%d], v9, v%d, 0" % (V_ACC, V_ACC + 3, V_ONE))
setexec(0x0001000100010001)
a("ds_write_b128 v22, v[%d:%d] offset:%d" % (V_ACC, V_ACC + 3, L_ML))
setexec(-1)
a("s_waitcnt lgkmcnt(0)")
a("s_barrier")
a("s_cmp_lg_u32 s34, 0")
a("s_cbranch_scc1 L_end")
for w in range(4):
    a("ds_read_b128 v[%d:%d], v23 offset:%d" % (XR + 4 * w, XR + 4 * w + 3, L_ML + 64 * w))
a("s_waitcnt lgkmcnt(0)")
for r in range(4):
    a("v_add_f32 v%d, v%d, v%d" % (XR + r, XR + r, XR + 4 + r))
    a("v_add_f32 v%d, v%d, v%d" % (XR + 8 + r, XR + 8 + r, XR + 12 + r))
for r in range(4):
    a("v_add_f32 v%d, v%d, v%d" % (XR + r, XR + r, XR + 8 + r))
a("v_cvt_pk_bf16_f32 v10, v%d, v%d" % (XR, XR + 1))
a("v_cvt_pk_bf16_f32 v11, v%d, v%d" % (XR + 2, XR + 3))
a("v_lshlrev_b32 v12, 16, v10")
a("v_and_b32 v13, 0xffff0000, v10")
a("v_lshlrev_b32 v14, 16, v11")
a("v_and_b32 v15, 0xffff0000, v11")
for r in range(4):
    a("v_add_f32 v%d, v%d, v%d" % (12 + r, 12 + r, V_X + r))
a("v_cvt_pk_bf16_f32 v10, v12, v13")
a("v_cvt_pk_bf16_f32 v11, v14, v15")
setexec(0x0001000100010001)
a("buffer_store_short v10, v%d, s[44:47], 0 offen" % V_XA)
a("buffer_store_short_d16_hi v10, v%d, s[44:47], 0 offen offset:16" % V_XA)
a("buffer_store_short v11, v%d, s[44:47], 0 offen offset:32" % V_XA)
a("buffer_store_short_d16_hi v11, v%d, s[44:47], 0 offen offset:48" % V_XA)
a("s_cmp_lg_u32 s52, 0")
a("s_cbranch_scc1 L_noep")
setexec(1)
a("v_mov_b32 v9, 0")
for k in range(4):
    a("v_mov_b32 v%d, s%d" % (12 + k, 28 + k))
a("buffer_store_dwordx4 v[12:15], v9, s[36:39], 0 offen offset:%d" % EPOCH)
a.label("L_noep")
setexec(-1)
stamp(10)
a("s_branch L_end")

a.label("L_aux")
a.flush()
a("v_lshlrev_b32 v4, 6, v%d" % V_I16)
a("v_lshl_add_u32 v4, v%d, 4, v4" % V_GRP)
a("v_lshrrev_b32 v5, 1, v%d" % V_LANE)
a("v_lshlrev_b32 v5, 13, v5")
a("v_and_b32 v6, 1, v%d" % V_LANE)
a("v_lshl_add_u32 v5, v6, 4, v5")
a("s_lshl_b32 s52, s32, 10")
a("s_lshl_b32 s53, s33, 5")
a("s_add_u32 s52, s52, s53")
a("s_waitcnt lgkmcnt(0)")
srd(44, 4, 896)
srd(40, 10, 448 * 8192)
stamp(11)
a("buffer_load_dwordx4 v[%d:%d], v4, s[44:47], 0 offen%s" % (V_G, V_G + 3, " nt" if Cfg.xnt else ""))
for t in range(14):
    a("s_movk_i32 m0, %d" % (L_WQ + 1024 * t))
    a("buffer_load_dwordx4 v5, s[40:43], s52 offen%s lds" % NTW)
    if t < 13:
        a("s_add_u32 s52, s52, %d" % (32 * 8192))
a("s_barrier")
stamp(12)
if Cfg.kstamp:
    a("s_waitcnt vmcnt(14)")
    stamp(6)
    a("s_waitcnt vmcnt(13)")
    stamp(7)
    a("s_waitcnt vmcnt(0)")
    stamp(8)
a("s_load_dwordx4 s[28:31], s[26:27], %d" % EPOCH)
srd(36, 26, WS_SIZE)
srd(48, 16, 448 * 3584)
common_setup()
a("s_lshl_b32 s52, s32, 12")
a("s_add_u32 s52, s52, %d" % E1)
a("v_lshrrev_b32 v24, 2, v%d" % V_LANE)
a("v_lshlrev_b32 v24, 7, v24")
a("v_and_b32 v25, 3, v%d" % V_LANE)
a("v_lshl_add_u32 v24, v25, 4, v24")
a("v_lshlrev_b32 v25, 3, v%d" % V_LANE)
npre = 0
if Cfg.pretouch:
    a("s_add_u32 s63, s54, %d" % E2)
    a("buffer_load_dword v26, v%d, s[36:39], s63 offen sc1" % V_GA)
    a("s_add_u32 s63, s54, %d" % (E2 + 16 * 2048))
    a("buffer_load_dword v26, v%d, s[36:39], s63 offen sc1" % V_GA)
    a("s_add_u32 s63, s54, %d" % E3A)
    a("buffer_load_dword v26, v%d, s[36:39], s63 offen sc1" % V_GA)
    a("s_add_u32 s63, s54, %d" % (E3A + 16 * 2048))
    a("buffer_load_dword v26, v%d, s[36:39], s63 offen sc1" % V_GA)
    a("buffer_load_dword v26, v24, s[36:39], s52 offen sc1")
    a("buffer_load_dword v26, v24, s[36:39], s52 offen offset:2048 sc1")
    npre = 6
a("s_waitcnt vmcnt(%d)" % (14 + npre))
stamp(1)
make_tags()
XF = 160
for k in range(4):
    a("v_lshlrev_b32 v%d, 16, v%d" % (XF + 2 * k, V_G + k))
    a("v_and_b32 v%d, 0xffff0000, v%d" % (XF + 2 * k + 1, V_G + k))
AF = V_G + 8
layernorm([XF + k for k in range(8)], AF, 0x3FFF3FFF3FFF3FFF, 8)
a("v_lshlrev_b32 v4, 8, v%d" % V_GRP)
a("v_lshrrev_b32 v5, 2, v%d" % V_I16)
a("v_lshl_add_u32 v4, v5, 5, v4")
a("v_and_b32 v5, 3, v%d" % V_I16)
a("v_lshl_add_u32 v4, v5, 3, v4")
a("v_mov_b32 v30, v%d" % V_TA)
a("v_mov_b32 v31, v%d" % V_TB)
a("s_lshl_b32 s53, s33, 7")
a("s_add_u32 s53, s53, s52")
a("s_add_u32 s44, s53, %d" % BOFF)
a("v_lshlrev_b32 v27, 4, v%d" % V_GRP)
WF = 32
DQ = 96
for s in range(14):
    a("s_waitcnt vmcnt(%d)" % (13 - s + npre))
    for h in range(2):
        a("ds_read_b64_tr_b16 v[%d:%d], v4 offset:%d" % (WF + 4 * s + 2 * h, WF + 4 * s + 2 * h + 1, L_WQ + 1024 * s + 128 * h))
stamp(2)
a("s_waitcnt lgkmcnt(0)")
for s in range(14):
    a("v_mfma_f32_16x16x32_bf16 v[%d:%d], v[%d:%d], v[%d:%d], 0" % (DQ + 4 * s, DQ + 4 * s + 3, AF, AF + 3, WF + 4 * s, WF + 4 * s + 3))
for G in range(4):
    setexec(0xFFFF << (16 * G))
    b = DQ + 16 * G
    a("v_add_f32 v8, v%d, v%d" % (b, b + 5))
    if G < 3:
        a("v_add_f32 v9, v%d, v%d" % (b + 10, b + 15))
        a("v_add_f32 v8, v8, v9")
setexec(-1)
a("v_mfma_f32_16x16x4_f32 v[%d:%d], v8, v%d, 0" % (V_ACC, V_ACC + 3, V_ONE))
a("v_cvt_pk_bf16_f32 v28, v%d, v%d" % (V_ACC, V_ACC + 1))
a("v_cvt_pk_bf16_f32 v29, v%d, v%d" % (V_ACC + 2, V_ACC + 3))
setexec(0x0001000100010001)
a("buffer_store_dwordx4 v[28:31], v27, s[36:39], s53 offen")
a("buffer_store_dwordx4 v[28:31], v27, s[36:39], s44 offen sc1")
setexec(-1)
stamp(3)
sel_init()
a.label("L_e1poll")
a("s_add_u32 s53, s52, s%d" % S_SEL)
a("buffer_load_dwordx4 v[%d:%d], v24, s[36:39], s53 offen sc1" % (V_G, V_G + 3))
a("buffer_load_dwordx4 v[%d:%d], v24, s[36:39], s53 offen offset:2048 sc1" % (V_G + 4, V_G + 7))
a("s_waitcnt vmcnt(0)")
a("v_xor_b32 v10, v%d, v%d" % (V_G + 2, V_TA))
a("v_xor_b32 v11, v%d, v%d" % (V_G + 6, V_TA))
a("v_xor_b32 v12, v%d, v%d" % (V_G + 3, V_TB))
a("v_xor_b32 v13, v%d, v%d" % (V_G + 7, V_TB))
a("v_or_b32 v14, v10, v11")
a("v_or3_b32 v14, v14, v12, v13")
a("v_cmp_ne_u32 vcc, 0, v14")
a("s_cbranch_vccz L_e1ok")
retry("L_e1poll", True)
a.label("L_e1ok")
a("ds_write_b64 v25, v[%d:%d] offset:%d" % (V_G, V_G + 1, L_Q))
a("ds_write_b64 v25, v[%d:%d] offset:%d" % (V_G + 4, V_G + 5, L_Q + 512))
a("s_waitcnt lgkmcnt(0)")
stamp(4)
a("s_barrier")
a("s_cmp_ge_u32 s33, 28")
a("s_cbranch_scc1 L_end")
a("v_mul_u32_u24 v6, 3584, v%d" % V_LANE)
a("s_lshl_b32 s52, s35, 4")
for t in range(7):
    a("s_movk_i32 m0, %d" % (L_W1 + 1024 * t))
    a("buffer_load_dwordx4 v6, s[48:51], s52 offen%s lds" % NTW)
    if t < 6:
        a("s_add_u32 s52, s52, %d" % (64 * 3584))
a("s_barrier")
a("s_waitcnt vmcnt(0)")
stamp(5)
a("s_barrier")
a.label("L_end")
if Cfg.stamps:
    setexec(-1)
    stamp(15)
    a("s_waitcnt lgkmcnt(0)")
    a("s_lshl_b32 s48, s2, 3")
    a("s_add_u32 s48, s48, s34")
    a("s_lshl_b32 s48, s48, 6")
    a("s_add_u32 s48, s48, %d" % STAMP)
    a("v_mov_b32 v9, 0")
    setexec(1)
    for i in range(16):
        a("v_mov_b32 v10, s%d" % (64 + 2 * i))
        a("buffer_store_dword v10, v9, s[36:39], s48 offen offset:%d" % (4 * i))
    if Cfg.dbgwg >= 0:
        a("s_cmp_lg_u32 s2, %d" % Cfg.dbgwg)
        a("s_cbranch_scc1 L_exit")
        a("s_cmp_lg_u32 s34, %d" % Cfg.dbgwave)
        a("s_cbranch_scc1 L_exit")
        if Cfg.spin:
            a.label("L_spin")
            a("s_memrealtime s[94:95]")
            a("s_waitcnt lgkmcnt(0)")
            a("s_sub_u32 s63, s94, s64")
            a("s_cmp_lt_u32 s63, %d" % Cfg.spin)
            a("s_cbranch_scc1 L_spin")
        srd(44, 24, 256)
        for i in range(16):
            a("s_sub_u32 s63, s%d, s64" % (64 + 2 * i))
            a("s_cmp_eq_u32 s%d, 0" % (64 + 2 * i))
            a("s_cselect_b32 s63, 0, s63")
            a("v_mov_b32 v10, s63")
            a("buffer_store_dword v10, v9, s[44:47], 0 offen offset:%d" % (4 * i))
a.label("L_exit")
a("s_endpgm")
a.raw('''.section .rodata,"a"
.p2align 6
.amdhsa_kernel %s_kernel
  .amdhsa_next_free_vgpr %d
  .amdhsa_next_free_sgpr 96
  .amdhsa_accum_offset %d
  .amdhsa_group_segment_fixed_size 0
  .amdhsa_kernarg_size 96
  .amdhsa_user_sgpr_count 2
  .amdhsa_user_sgpr_kernarg_segment_ptr 1
  .amdhsa_system_sgpr_workgroup_id_x 1
  .amdhsa_float_denorm_mode_32 3
.end_amdhsa_kernel''' % (NAME, NVGPR, NVGPR))
open(sys.argv[1], "w").write(a.text())
```

```python
import sys, struct
from asmlib import Asm
NAME = "sequential_preLN__sliding_block_cached__dense_activation_mish__decode"

class Cfg:
    stamps = False
    nt = True
    ntw = False
    timeout = 200000
    ocnt = 1
    vs = 0
    nearly = 4
    pfat = 1
    n1 = 10
    pf = True
    cpf = True
    ntl = False
    depth = 0
    ss = 128
    forceB = False
    pretouch = True
    fs = 4
    tlb = False
    bthr = 64
    b0 = True
    npipe = 1
    ps0 = 0
    ps1 = 4
    kpat = 0
    kdma = True
    pd = 1
    pds = 2
    k0 = 8
    xs = 0
    e4s = 8
    rnd = True
    dbgwg = -1
    dbgwave = 0
    spin = 0
for arg in sys.argv[2:]:
    k, v = arg.split('=')
    setattr(Cfg, k, type(getattr(Cfg, k))(int(v)))

NT = " nt" if Cfg.nt else ""
NTW = " nt" if Cfg.ntw else ""
NTQ = NT
NTL = " nt" if Cfg.ntl else ""
EPOCH = 0x0
E3X = 0x1000
E1 = 0x10000
E2 = 0x20000
E3A = 0xA0000
BOFF = 0x120000
E4 = 0x240000
STAMP = 0x300000
WS_SIZE = 0x400000
L_Q = 0
L_ML = 1024
L_O = 4096
L_F = 12288
L_W1 = 20480
L_X = 49152
L_CNT = 3072
L_H = 3200
L_K = 57344
LDS_BYTES = 90112

LOG2E = 1.4426950408889634
def f32(x):
    return "0x%08x" % struct.unpack('<I', struct.pack('<f', x))[0]

a = Asm()
a.raw("; @launch grid=(256,1,1) block=(512,1,1) lds=%d" % LDS_BYTES)
a.raw('.amdgcn_target "amdgcn-amd-amdhsa--gfx950"\n.text\n.globl %s_kernel\n.p2align 8\n.type %s_kernel,@function\n%s_kernel:' % (NAME, NAME, NAME))

DPPM = " row_mask:0xf bank_mask:0xf"
def stamp(i):
    if Cfg.stamps:
        a("s_memrealtime s[%d:%d]" % (64 + 2 * i, 65 + 2 * i))

def srd(dst, ptr, nbytes):
    a("s_mov_b32 s%d, s%d" % (dst, ptr))
    a("s_and_b32 s%d, s%d, 0xffff" % (dst + 1, ptr + 1))
    a("s_mov_b32 s%d, %d" % (dst + 2, nbytes))
    a("s_mov_b32 s%d, 0x20000" % (dst + 3))

def setexec(mask):
    if mask == -1:
        a("s_mov_b64 exec, -1")
    else:
        a("s_mov_b32 exec_lo, 0x%08x" % (mask & 0xffffffff))
        a("s_mov_b32 exec_hi, 0x%08x" % (mask >> 32))

def setmask(s, mask):
    a("s_mov_b32 s%d, 0x%08x" % (s, mask & 0xffffffff))
    a("s_mov_b32 s%d, 0x%08x" % (s + 1, mask >> 32))

def bfly(op, v, t, which):
    a("v_mov_b32 v%d, v%d" % (t, v))
    a("v_permlane%d_swap_b32 v%d, v%d" % (which, v, t))
    a("%s v%d, v%d, v%d" % (op, v, v, t))

def bf16r(dst, src):
    a("v_cvt_pk_bf16_f32 v%d, v%d, v%d" % (dst, src, src))
    a("v_and_b32 v%d, 0xffff0000, v%d" % (dst, dst))

S_ODD, S_B1, S_HI = 56, 58, 60
S_M4, S_M8 = 58, 96
S_TO = 62
S_SEL = 3

S_CNT = 33
def sel_step(thr):
    a("s_sub_u32 s%d, s%d, 1" % (S_TO, S_TO))
    a("s_cbranch_scc1 L_end")
    if thr is not None and not Cfg.forceB:
        a("s_cmp_lt_u32 s%d, s1" % S_TO)
        a("s_cselect_b32 s%d, %d, 0" % (S_SEL, BOFF))

def retry(loop, dual):
    sel_step(True if dual else None)
    a("s_branch %s" % loop)

def sel_init(thr=None):
    a("s_mov_b32 s%d, %d" % (S_SEL, BOFF if Cfg.forceB else 0))
    a("s_sub_u32 s1, s%d, %d" % (S_TO, Cfg.bthr if thr is None else thr))

def ln_stats(f, valid, T, fill=None):
    e = [T + k for k in range(8)]
    s1, s2, t1, t2 = T + 8, T + 9, T + 10, T + 11
    fill = list(fill or [])
    def filler():
        if fill:
            a(fill.pop(0))
    a("v_readlane_b32 s63, v%d, 0" % f[0])
    a("v_mov_b32 v%d, 0" % s1)
    a("v_mov_b32 v%d, 0" % s2)
    setexec(valid)
    for k in range(8):
        a("v_subrev_f32 v%d, s63, v%d" % (e[k], f[k]))
    a("v_add_f32 v%d, v%d, v%d" % (s1, e[0], e[1]))
    a("v_mul_f32 v%d, v%d, v%d" % (s2, e[0], e[0]))
    a("v_add_f32 v%d, v%d, v%d" % (t1, e[2], e[3]))
    a("v_mul_f32 v%d, v%d, v%d" % (t2, e[1], e[1]))
    for k in range(4, 8):
        a("v_add_f32 v%d, v%d, v%d" % (s1 if k % 2 == 0 else t1, s1 if k % 2 == 0 else t1, e[k]))
    for k in range(2, 8):
        a("v_fmac_f32 v%d, v%d, v%d" % (s2 if k % 2 == 0 else t2, e[k], e[k]))
    a("v_add_f32 v%d, v%d, v%d" % (s1, s1, t1))
    a("v_add_f32 v%d, v%d, v%d" % (s2, s2, t2))
    setexec(-1)
    for i, r in enumerate((8, 4, 2, 1)):
        a("v_add_f32_dpp v%d, v%d, v%d row_ror:%d%s" % (s1, s1, s1, r, DPPM))
        a("v_add_f32_dpp v%d, v%d, v%d row_ror:%d%s" % (s2, s2, s2, r, DPPM))
        filler()
    for which in (16, 32):
        a("v_mov_b32 v%d, v%d" % (t1, s1))
        a("v_mov_b32 v%d, v%d" % (t2, s2))
        filler()
        a("v_permlane%d_swap_b32 v%d, v%d" % (which, s1, t1))
        a("v_permlane%d_swap_b32 v%d, v%d" % (which, s2, t2))
        a("v_add_f32 v%d, v%d, v%d" % (s1, s1, t1))
        a("v_add_f32 v%d, v%d, v%d" % (s2, s2, t2))
    a("v_mul_f32 v%d, %s, v%d" % (s1, f32(1.0 / 448), s1))
    a("v_mul_f32 v%d, %s, v%d" % (s2, f32(1.0 / 448), s2))
    a("v_fma_f32 v%d, -v%d, v%d, v%d" % (s2, s1, s1, s2))
    a("v_add_f32 v%d, s63, v%d" % (s1, s1))
    a("v_max_f32 v%d, 0, v%d" % (s2, s2))
    a("v_cvt_pk_bf16_f32 v%d, v%d, v%d" % (t1, s1, s2))
    a("v_and_b32 v%d, 0xffff0000, v%d" % (s2, t1))
    a("v_lshlrev_b32 v%d, 16, v%d" % (s1, t1))
    a("v_add_f32 v%d, %s, v%d" % (s2, f32(1e-5), s2))
    bf16r(s2, s2)
    a("v_sqrt_f32 v%d, v%d" % (s2, s2))
    while fill:
        filler()
    return s1, s2

def ln_apply(f, e, pk, s1, s2):
    n = len(f)
    for k in range(n):
        a("v_sub_f32 v%d, v%d, v%d" % (e[k], f[k], s1))
    bf16r(s2, s2)
    a("v_rcp_f32 v%d, v%d" % (s2, s2))
    for k in range(n // 2):
        a("v_cvt_pk_bf16_f32 v%d, v%d, v%d" % (pk[k], e[2 * k], e[2 * k + 1]))
    for k in range(n // 2):
        a("v_lshlrev_b32 v%d, 16, v%d" % (e[2 * k], pk[k]))
        a("v_and_b32 v%d, 0xffff0000, v%d" % (e[2 * k + 1], pk[k]))
    for k in range(n):
        a("v_mul_f32 v%d, v%d, v%d" % (e[k], e[k], s2))

def layernorm(f, out, valid, T):
    e = [T + k for k in range(8)]
    pk = [T + 12 + k for k in range(4)]
    s1, s2 = ln_stats(f, valid, T, ["v_mov_b32 v%d, 0" % (out + i) for i in range(4)])
    ln_apply(f, e, pk, s1, s2)
    setexec(valid)
    for k in range(4):
        a("v_cvt_pk_bf16_f32 v%d, v%d, v%d" % (out + k, e[2 * k], e[2 * k + 1]))
    setexec(-1)

def quad_transpose_reduce(v, dst, T):
    k0, g0, k1, g1 = T, T + 1, T + 2, T + 3
    a("v_cndmask_b32 v%d, v%d, v%d, s[%d:%d]" % (g0, v[1], v[0], S_ODD, S_ODD + 1))
    a("v_cndmask_b32 v%d, v%d, v%d, s[%d:%d]" % (g1, v[3], v[2], S_ODD, S_ODD + 1))
    a("v_cndmask_b32 v%d, v%d, v%d, s[%d:%d]" % (k0, v[0], v[1], S_ODD, S_ODD + 1))
    a("v_cndmask_b32 v%d, v%d, v%d, s[%d:%d]" % (k1, v[2], v[3], S_ODD, S_ODD + 1))
    a("v_add_f32_dpp v%d, v%d, v%d quad_perm:[1,0,3,2]%s" % (k0, g0, k0, DPPM))
    a("v_add_f32_dpp v%d, v%d, v%d quad_perm:[1,0,3,2]%s" % (k1, g1, k1, DPPM))
    a("v_cndmask_b32 v%d, v%d, v%d, s[%d:%d]" % (g0, k1, k0, S_B1, S_B1 + 1))
    a("v_cndmask_b32 v%d, v%d, v%d, s[%d:%d]" % (dst, k0, k1, S_B1, S_B1 + 1))
    a("v_add_f32_dpp v%d, v%d, v%d quad_perm:[2,3,0,1]%s" % (dst, g0, dst, DPPM))

S_B2, S_B3 = S_B1, 4
def reduce16(v, dst):
    for r in range(4):
        a("v_add_f32_dpp v%d, v%d, v%d row_ror:8%s" % (v[r], v[r], v[r], DPPM))
    for r in range(4):
        a("v_add_f32_dpp v%d, v%d, v%d row_ror:4%s" % (v[r], v[r], v[r], DPPM))
    a("v_cndmask_b32 v%d, v%d, v%d, s[%d:%d]" % (v[0], v[0], v[1], S_M4, S_M4 + 1))
    a("v_cndmask_b32 v%d, v%d, v%d, s[%d:%d]" % (v[2], v[2], v[3], S_M4, S_M4 + 1))
    a("v_cndmask_b32 v%d, v%d, v%d, s[%d:%d]" % (dst, v[0], v[2], S_M8, S_M8 + 1))

def check12(n, X, oklab, G=None):
    if G is None:
        G = V_G
    for t in range(n):
        for r in range(4):
            a("v_xor_b32 v%d, v%d, v%d" % (X + 4 * t + r, G + 4 * t + r, V_T + r))
    regs = [X + i for i in range(4 * n)]
    acc = [5, 6, 7]
    cur = regs[:]
    outs = []
    i = 0
    while len(cur) >= 3 and i < 3:
        a("v_or3_b32 v%d, v%d, v%d, v%d" % (acc[i], cur[0], cur[1], cur[2])); cur = cur[3:]; outs.append(acc[i]); i += 1
    i = 0
    while len(cur) >= 2:
        o = outs[i % len(outs)]
        a("v_or3_b32 v%d, v%d, v%d, v%d" % (o, o, cur[0], cur[1])); cur = cur[2:]; i += 1
    rest = outs + cur
    while len(rest) > 1:
        if len(rest) >= 3:
            a("v_or3_b32 v%d, v%d, v%d, v%d" % (acc[0], rest[0], rest[1], rest[2])); rest = [acc[0]] + rest[3:]
        else:
            a("v_or_b32 v%d, v%d, v%d" % (acc[0], rest[0], rest[1])); rest = [acc[0]]
    a("v_and_b32 v%d, 0xfff, v%d" % (acc[0], rest[0]))
    a("v_cmp_ne_u32 vcc, 0, v%d" % acc[0])
    a("s_cbranch_vccz %s" % oklab)

V_I16, V_GRP, V_LANE = 1, 2, 3
V_M, V_T = 196, 200
V_TA, V_TB, V_T8, V_ONE = 204, 205, 206, 207
V_B1, V_X = 208, 209
V_GA = 213
V_PUB = 214
V_XA = 215
V_ACC = 216
V_G = 232
V_W1A, V_LW = 248, 249
NVGPR = 252
V_K, V_V, V_QF = 32, 64, 96
V_W = 32
V_W1F = 64
V_BB = 96
V_S1 = 112
V_S2 = 144

def tag12(dst, src):
    for r in range(4):
        if Cfg.rnd:
            a("v_add_u32 v%d, 0x800, v%d" % (dst + r, src + r))
            src_r = dst + r
        else:
            src_r = src + r
    for r in range(4):
        a("v_bfi_b32 v%d, s63, v%d, v%d" % (dst + r, V_T + r, (dst if Cfg.rnd else src) + r))

def make_masks():
    a("v_and_b32 v10, 1, v%d" % V_I16)
    a("v_lshlrev_b32 v10, 4, v10")
    a("v_mov_b32 v11, 0xffff")
    a("v_lshlrev_b32 v11, v10, v11")
    a("v_bfe_u32 v10, v%d, 1, 2" % V_I16)
    for rho in range(4):
        a("v_cmp_eq_u32 vcc, %d, v10" % rho)
        a("v_cndmask_b32 v%d, 0, v11, vcc" % (V_M + rho))

def make_tags(full=True):
    a("s_waitcnt lgkmcnt(0)")
    for k in range(4):
        a("s_add_u32 s%d, s%d, 1" % (28 + k, 28 + k))
    if full:
        for k in range(4):
            a("s_and_b32 s63, s%d, 0xfff" % (28 + k))
            a("v_mov_b32 v%d, s63" % (V_T + k))
    a("v_mov_b32 v%d, s31" % V_TB)
    a("s_and_b32 s63, s30, 0xff")
    a("v_mov_b32 v%d, s63" % V_T8)

if Cfg.stamps:
    for i in range(16):
        a("s_mov_b64 s[%d:%d], 0" % (64 + 2 * i, 65 + 2 * i))
stamp(0)
a("s_load_dwordx16 s[4:19], s[0:1], 0")
a("s_load_dwordx8 s[20:27], s[0:1], 64")
a("s_cmp_ge_u32 s2, 256")
a("s_cbranch_scc1 L_exit")
a("v_lshrrev_b32 v4, 6, v0")
a("v_and_b32 v%d, 63, v0" % V_LANE)
a("v_readfirstlane_b32 s34, v4")
a("v_and_b32 v%d, 15, v0" % V_I16)
a("v_bfe_u32 v%d, v0, 4, 2" % V_GRP)
a("s_and_b32 s32, s2, 7")
a("s_lshr_b32 s33, s2, 3")
a("s_and_b32 s35, s34, 3")
a("s_cmp_ge_u32 s34, 4")
a("s_cbranch_scc1 L_tail")

a("s_lshl_b32 s48, s32, 22")
a("s_lshl_b32 s49, s33, 15")
a("s_add_u32 s48, s48, s49")
a("s_lshl_b32 s49, s34, 13")
a("s_add_u32 s48, s48, s49")
a("s_add_u32 s48, s48, %d" % (6144 * 512))
if Cfg.kdma:
    a("v_lshrrev_b32 v4, 2, v%d" % V_LANE)
    a("v_lshlrev_b32 v4, 9, v4")
    a("v_and_b32 v5, 3, v%d" % V_LANE)
    a("v_lshl_add_u32 v4, v5, 4, v4")
    a("s_add_u32 s49, s49, %d" % L_K)
else:
    a("v_lshlrev_b32 v4, 9, v%d" % V_I16)
    a("v_lshl_add_u32 v4, v%d, 4, v4" % V_GRP)
a("v_lshlrev_b32 v5, 11, v%d" % V_GRP)
a("v_lshl_add_u32 v5, v%d, 4, v5" % V_I16)
a("s_mov_b32 s42, 33554432")
a("s_mov_b32 s43, 0x20000")
a("s_mov_b32 s46, 33554432")
a("s_mov_b32 s47, 0x20000")
a("s_waitcnt lgkmcnt(0)")
a("s_mov_b32 s40, s6")
a("s_and_b32 s41, s7, 0xffff")
a("s_mov_b32 s44, s8")
a("s_and_b32 s45, s9, 0xffff")
stamp(11)
if Cfg.b0:
    a("s_barrier")
nissued = [0]
def paced(text):
    if Cfg.depth and nissued[0] >= Cfg.depth and nissued[0] < Cfg.n1:
        a("s_waitcnt vmcnt(%d)" % (Cfg.depth - 1))
    a(text)
    nissued[0] += 1
loads = []
for s in range(8):
    if Cfg.kdma:
        loads.append(["s_add_u32 m0, s49, %d" % (960 * s), "buffer_load_dwordx4 v4, s[40:43], s48 offen offset:%d%s lds" % (64 * s, NT)])
    else:
        loads.append("buffer_load_dwordx4 v[%d:%d], v4, s[40:43], s48 offen offset:%d%s" % (V_K + 4 * s, V_K + 4 * s + 3, 64 * s, NT))
def emit(t):
    for x in ([t] if isinstance(t, str) else t):
        a(x)
for r in range(4):
    for h in range(2):
        n = 2 * r + h
        loads.append("buffer_load_dwordx4 v[%d:%d], v5, s[44:47], s48 offen offset:%d%s" % (V_V + 4 * n, V_V + 4 * n + 3, 512 * r + 256 * h, NT))
nfirst = 8 + Cfg.nearly
for t in loads[:Cfg.k0]:
    emit(t)
stamp(12)
a("s_load_dwordx4 s[28:31], s[26:27], %d" % EPOCH)
srd(36, 26, WS_SIZE)
make_masks()
a("v_lshrrev_b32 v7, 3, v%d" % V_I16)
a("v_lshlrev_b32 v7, 9, v7")
a("v_lshl_add_u32 v7, v%d, 4, v7" % V_GRP)
a("s_lshl_b32 s63, s34, 11")
a("v_lshl_add_u32 v%d, v%d, 4, s63" % (V_LW, V_LANE))
a("s_lshl_b32 s63, s34, 9")
a("v_lshl_add_u32 v23, v%d, 3, s63" % V_LANE)
a("s_lshl_b32 s63, s34, 10")
a("v_lshl_add_u32 v21, v%d, 4, s63" % V_LANE)
a("v_lshlrev_b32 v22, 3, v%d" % V_LANE)
a("s_lshl_b32 s55, s32, 5")
a("s_add_u32 s55, s55, s33")
a("s_lshl_b32 s55, s55, 11")
a("s_add_u32 s50, s55, %d" % E2)
a("s_add_u32 s51, s55, %d" % (E2 + BOFF))
make_tags(False)
a("v_mov_b32 v31, v%d" % V_TB)
a("v_mov_b32 v6, 0")
a("v_mov_b32 v29, 1")
a("ds_write_b32 v6, v6 offset:%d" % L_CNT)
a("s_mov_b32 s%d, %d" % (S_TO, Cfg.timeout))
NPF = [0]
a("s_lshl_b32 s52, s33, 2")
a("s_add_u32 s52, s52, s34")
a("v_lshlrev_b32 v24, 7, v%d" % V_LANE)
a("s_mul_i32 s53, s32, %d" % (512 * 896))
a("s_mul_i32 s63, s52, %d" % (28 * 128))
a("s_add_u32 s53, s53, s63")
a("s_mov_b32 s14, %d" % (4096 * 896))
a("s_mov_b32 s15, 0x20000")
a("s_and_b32 s13, s13, 0xffff")
def wo_prefetch():
    if Cfg.pf:
        a("s_mov_b32 exec_hi, 0")
        a("s_mov_b32 exec_lo, 0x0fffffff")
        a("buffer_load_dword v250, v24, s[12:15], s53 offen")
        setexec(-1)
        NPF[0] = 1
a("s_barrier")
for t in loads[Cfg.k0:nfirst]:
    emit(t)
a("s_barrier")
a("s_barrier")
stamp(13)
if Cfg.vs:
    a("s_sleep %d" % Cfg.vs)
for t in loads[nfirst:]:
    emit(t)
if Cfg.pfat < 0:
    wo_prefetch()
if Cfg.kdma:
    a("v_lshlrev_b32 v25, 6, v%d" % V_I16)
    a("v_lshl_add_u32 v25, v%d, 4, v25" % V_GRP)
    a("v_add_u32 v25, s49, v25")
    a("s_waitcnt vmcnt(%d)" % (8 + NPF[0]))
    for s in range(8):
        a("ds_read_b128 v[%d:%d], v25 offset:%d" % (V_K + 4 * s, V_K + 4 * s + 3, 1024 * s))
stamp(1)
a("s_waitcnt lgkmcnt(0)")
a("s_barrier")
stamp(2)
for s in range(8):
    a("ds_read_b128 v[%d:%d], v7 offset:%d" % (V_QF + 4 * s, V_QF + 4 * s + 3, L_Q + 64 * s))
a("s_mov_b32 s63, %s" % f32(0.0625 * LOG2E))
a("s_waitcnt vmcnt(%d)" % (8 + NPF[0]))
S = V_ACC
for s in range(8):
    a("s_waitcnt lgkmcnt(%d)" % (0 if Cfg.stamps else 7 - s))
    a("v_mfma_f32_16x16x32_bf16 v[%d:%d], v[%d:%d], v[%d:%d], %s" % (S, S + 3, V_K + 4 * s, V_K + 4 * s + 3, V_QF + 4 * s, V_QF + 4 * s + 3, "0" if s == 0 else "v[%d:%d]" % (S, S + 3)))
a("v_cvt_pk_bf16_f32 v8, v%d, v%d" % (S, S + 1))
a("v_cvt_pk_bf16_f32 v9, v%d, v%d" % (S + 2, S + 3))
a("v_lshlrev_b32 v10, 16, v8")
a("v_and_b32 v11, 0xffff0000, v8")
a("v_lshlrev_b32 v12, 16, v9")
a("v_and_b32 v13, 0xffff0000, v9")
a("v_max3_f32 v14, v10, v11, v12")
a("v_max_f32 v14, v14, v13")
bfly("v_max_f32", 14, 15, 16)
bfly("v_max_f32", 14, 15, 32)
a("v_mul_f32 v14, s63, v14")
for r in range(4):
    a("v_fma_f32 v%d, v%d, s63, -v14" % (10 + r, 10 + r))
for r in range(4):
    a("v_exp_f32 v%d, v%d" % (10 + r, 10 + r))
for r in range(4):
    a("v_cvt_pk_bf16_f32 v%d, v%d, v%d" % (16 + r, 10 + r, 10 + r))
O = V_ACC + 4
BB = V_QF
def bbuild(r):
    for rho in range(4):
        a("v_and_b32 v%d, v%d, v%d" % (BB + 4 * r + rho, 16 + r, V_M + rho))
def pv(r):
    a("s_waitcnt vmcnt(%d)" % (6 - 2 * r + NPF[0]))
    for h in range(2):
        n = 2 * r + h
        a("v_mfma_f32_16x16x32_bf16 v[%d:%d], v[%d:%d], v[%d:%d], %s" % (O + 4 * h, O + 4 * h + 3, V_V + 4 * n, V_V + 4 * n + 3, BB + 4 * r, BB + 4 * r + 3, "0" if r == 0 else "v[%d:%d]" % (O + 4 * h, O + 4 * h + 3)))
    if r == Cfg.pfat:
        wo_prefetch()
bbuild(0)
bbuild(1)
pv(0)
bbuild(2)
a("v_add_f32 v15, v10, v11")
a("v_add_f32 v20, v12, v13")
pv(1)
bbuild(3)
a("v_add_f32 v15, v15, v20")
pv(2)
bfly("v_add_f32", 15, 20, 16)
pv(3)
bfly("v_add_f32", 15, 20, 32)
a("ds_write_b64 v23, v[14:15] offset:%d" % L_ML)
a("ds_write_b128 v%d, v[%d:%d] offset:%d" % (V_LW, O, O + 3, L_O))
a("ds_write_b128 v%d, v[%d:%d] offset:%d" % (V_LW, O + 4, O + 7, L_O + 1024))
setexec(1)
a("ds_add_u32 v6, v29 offset:%d" % L_CNT)
setexec(-1)
a("s_cmp_ge_u32 s34, 2")
a("s_cbranch_scc1 L_end")
a.label("L_cnt")
a("ds_read_b32 v8, v6 offset:%d" % L_CNT)
a("s_sub_u32 s%d, s%d, 1" % (S_TO, S_TO))
a("s_cbranch_scc1 L_end")
a("s_waitcnt lgkmcnt(0)")
a("v_cmp_ne_u32 vcc, 4, v8")
a("s_cbranch_vccnz L_cnt")
stamp(3)
for w in range(4):
    a("ds_read_b64 v[%d:%d], v22 offset:%d" % (10 + 2 * w, 11 + 2 * w, L_ML + 512 * w))
for w in range(4):
    a("ds_read_b128 v[%d:%d], v21 offset:%d" % (V_G + 4 * w, V_G + 4 * w + 3, L_O + 2048 * w))
a("s_movk_i32 s63, 0xff")
a("s_waitcnt lgkmcnt(4)" if not Cfg.stamps else "s_waitcnt lgkmcnt(0)")
a("v_max3_f32 v18, v10, v12, v14")
a("v_max_f32 v18, v18, v16")
for w in range(4):
    a("v_sub_f32 v%d, v%d, v18" % (10 + 2 * w, 10 + 2 * w))
for w in range(4):
    a("v_exp_f32 v%d, v%d" % (10 + 2 * w, 10 + 2 * w))
a("v_mul_f32 v19, v10, v11")
for w in range(1, 4):
    a("v_fmac_f32 v19, v%d, v%d" % (10 + 2 * w, 11 + 2 * w))
a("v_rcp_f32 v20, v19")
a("v_log_f32 v9, v19")
a("s_waitcnt lgkmcnt(0)")
for r in range(4):
    a("v_mul_f32 v%d, v10, v%d" % (24 + r, V_G + r))
for w in range(1, 4):
    for r in range(4):
        a("v_fmac_f32 v%d, v%d, v%d" % (24 + r, 10 + 2 * w, V_G + 4 * w + r))
a("v_add_f32 v9, v9, v18")
for r in range(4):
    a("v_mul_f32 v%d, v%d, v20" % (24 + r, 24 + r))
a("v_bfi_b32 v30, s63, v%d, v9" % V_T8)
a("v_cvt_pk_bf16_f32 v28, v24, v25")
a("v_cvt_pk_bf16_f32 v29, v26, v27")
a("buffer_store_dwordx4 v[28:31], v21, s[36:39], s50 offen")
a("buffer_store_dwordx4 v[28:31], v21, s[36:39], s51 offen sc1")
stamp(4)
a("s_branch L_end")

a.label("L_tail")
a.flush()
a("s_cmp_lg_u32 s34, 4")
a("s_cbranch_scc1 L_tail_common")
a("v_lshrrev_b32 v4, 3, v%d" % V_I16)
a("v_mul_u32_u24 v4, 56, v4")
a("v_mul_u32_u24 v5, 14, v%d" % V_GRP)
a("v_add_u32 v4, v4, v5")
a("v_lshlrev_b32 v5, 13, v4")
a("v_and_b32 v6, 7, v%d" % V_I16)
a("v_lshl_add_u32 v5, v6, 4, v5")
a("v_lshlrev_b32 v4, 1, v4")
a("v_lshlrev_b32 v6, 6, v%d" % V_I16)
a("v_lshl_add_u32 v6, v%d, 4, v6" % V_GRP)
a("s_lshr_b32 s50, s33, 3")
a("s_mul_i32 s52, s50, %d" % (112 * 8192))
a("s_lshl_b32 s53, s32, 10")
a("s_add_u32 s52, s52, s53")
a("s_and_b32 s53, s33, 7")
a("s_lshl_b32 s53, s53, 7")
a("s_add_u32 s52, s52, s53")
a("s_mul_i32 s51, s50, 224")
a("s_mov_b32 s42, %d" % (448 * 8192))
a("s_mov_b32 s43, 0x20000")
a("s_mov_b32 s46, 896")
a("s_mov_b32 s47, 0x20000")
a("s_setprio 3")
a("s_waitcnt lgkmcnt(0)")
a("s_mov_b32 s44, s4")
a("s_and_b32 s45, s5, 0xffff")
a("s_mov_b32 s40, s10")
a("s_and_b32 s41, s11, 0xffff")
stamp(11)
WQ, BQ, XR14 = 32, 88, 144
a("buffer_load_dwordx4 v[%d:%d], v6, s[44:47], 0 offen" % (V_G, V_G + 3))
a("buffer_load_dwordx4 v[%d:%d], v4, s[44:47], s51 offen" % (XR14, XR14 + 3))
a("buffer_load_dwordx3 v[%d:%d], v4, s[44:47], s51 offen offset:16" % (XR14 + 4, XR14 + 6))
for t in range(14):
    a("buffer_load_dwordx4 v[%d:%d], v5, s[40:43], s52 offen%s" % (WQ + 4 * t, WQ + 4 * t + 3, NTQ))
    if t < 13:
        a("s_add_u32 s52, s52, 8192")
stamp(12)
a.label("L_tail_common")
a("s_waitcnt lgkmcnt(0)")
if Cfg.b0:
    a("s_barrier")
a("s_load_dwordx4 s[28:31], s[26:27], %d" % EPOCH)
srd(36, 26, WS_SIZE)
a("s_mov_b32 s%d, %d" % (S_TO, Cfg.timeout))
setmask(S_ODD, 0xAAAAAAAAAAAAAAAA)
setmask(S_M4, 0xF0F0F0F0F0F0F0F0)
setmask(S_M8, 0xFF00FF00FF00FF00)
setmask(S_HI, 0xFFFFFFFF00000000)
a("v_mov_b32 v%d, 1.0" % V_ONE)
a("v_lshrrev_b32 v8, 2, v%d" % V_LANE)
a("v_lshlrev_b32 v8, 11, v8")
a("v_and_b32 v9, 3, v%d" % V_LANE)
a("v_lshl_add_u32 v%d, v9, 4, v8" % V_GA)
make_masks()
a("v_lshl_add_u32 v8, v%d, 3, v%d" % (V_GRP, V_I16))
a("v_lshlrev_b32 v%d, 4, v8" % V_PUB)
a("s_lshl_b32 s52, s32, 13")
a("s_add_u32 s52, s52, %d" % E1)
a("s_lshl_b32 s53, s33, 8")
a("s_add_u32 s53, s53, s52")
a("v_and_b32 v8, 31, v%d" % V_LANE)
a("s_lshl_b32 s63, s35, 5")
a("v_add_u32 v8, s63, v8")
a("v_lshrrev_b32 v9, 5, v%d" % V_LANE)
a("v_lshlrev_b32 v9, 12, v9")
a("v_lshl_add_u32 v24, v8, 4, v9")
a("v_and_b32 v9, 7, v8")
a("v_sub_u32 v8, v8, v9")
a("v_lshl_add_u32 v8, v8, 2, v9")
a("v_lshlrev_b32 v25, 1, v8")
a("s_cmp_lg_u32 s34, 4")
a("s_cbranch_scc1 L_notq")
a("s_add_u32 s49, s53, %d" % BOFF)
a("s_waitcnt vmcnt(14)")
stamp(1)
XF, XV, XE, XP = 152, 160, 176, 216
for k in range(4):
    a("v_lshlrev_b32 v%d, 16, v%d" % (XF + 2 * k, V_G + k))
    a("v_and_b32 v%d, 0xffff0000, v%d" % (XF + 2 * k + 1, V_G + k))
fill = []
for k in range(7):
    fill.append("v_lshlrev_b32 v%d, 16, v%d" % (XV + 2 * k, XR14 + k))
    fill.append("v_and_b32 v%d, 0xffff0000, v%d" % (XV + 2 * k + 1, XR14 + k))
s1, s2 = ln_stats([XF + k for k in range(8)], 0x3FFF3FFF3FFF3FFF, 8, fill)
ln_apply([XV + k for k in range(14)], [XE + k for k in range(14)], [XP + k for k in range(7)], s1, s2)
for t in range(14):
    a("v_cvt_pk_bf16_f32 v%d, v%d, v%d" % (XE + t, XE + t, XE + t))
make_tags()
stamp(6)
QA = V_ACC
for t in range(15):
    if t < 14:
        for rho in range(4):
            a("v_and_b32 v%d, v%d, v%d" % (BQ + 4 * t + rho, XE + t, V_M + rho))
    if t >= 1:
        u = t - 1
        a("s_waitcnt vmcnt(%d)" % (13 - u))
        a("v_mfma_f32_16x16x32_bf16 v[%d:%d], v[%d:%d], v[%d:%d], %s" % (QA, QA + 3, WQ + 4 * u, WQ + 4 * u + 3, BQ + 4 * u, BQ + 4 * u + 3, "0" if u == 0 else "v[%d:%d]" % (QA, QA + 3)))
stamp(2)
a("s_movk_i32 s63, 0xfff")
for r in range(4):
    a("v_mov_b32_dpp v%d, v%d row_ror:8%s" % (8 + r, QA + r, DPPM))
for r in range(4):
    a("v_mov_b32 v%d, v%d" % (12 + r, 8 + r))
for r in range(4):
    a("v_permlane32_swap_b32 v%d, v%d" % (8 + r, 12 + r))
for r in range(4):
    a("v_add_f32 v%d, v%d, v%d" % (12 + r, 12 + r, QA + r))
tag12(28, 12)
setexec(0x0000000000FF00FF)
a("buffer_store_dwordx4 v[28:31], v%d, s[36:39], s53 offen" % V_PUB)
a("buffer_store_dwordx4 v[28:31], v%d, s[36:39], s49 offen sc1" % V_PUB)
setexec(-1)
a("s_setprio 0")
stamp(3)
a("s_branch L_e1")
a.label("L_notq")
a.flush()
make_tags()
if Cfg.pretouch:
    a("s_cmp_lg_u32 s34, 5")
    a("s_cbranch_scc1 L_nopre")
    a("s_lshl_b32 s55, s32, 5")
    a("s_add_u32 s55, s55, s33")
    a("s_lshl_b32 s55, s55, 11")
    a("v_lshlrev_b32 v8, 7, v%d" % V_I16)
    a("s_add_u32 s63, s55, %d" % E2)
    a("v_add_u32 v9, s63, v8")
    a("s_add_u32 s63, s55, %d" % E3A)
    a("v_add_u32 v10, s63, v8")
    a("v_and_b32 v8, 128, v8")
    a("v_add_u32 v8, s53, v8")
    a("v_cmp_eq_u32 vcc, 1, v%d" % V_GRP)
    a("v_cndmask_b32 v9, v9, v10, vcc")
    a("v_cndmask_b32 v9, v9, v8, s[%d:%d]" % (S_HI, S_HI + 1))
    a("buffer_load_dword v26, v9, s[36:39], 0 offen sc1")
    a.label("L_nopre")
if Cfg.tlb:
    a("s_cmp_lg_u32 s34, 6")
    a("s_cbranch_scc1 L_notlb")
    a("s_mul_i32 s48, s32, %d" % (512 * 896))
    a("s_add_u32 s49, s48, %d" % (511 * 896))
    a("s_mul_i32 s50, s32, %d" % (224 * 896))
    a("s_mov_b32 s51, %d" % (447 * 3584))
    a("v_mov_b32 v8, 0")
    setexec(1)
    srd(40, 12, 4096 * 896)
    a("buffer_load_dword v26, v8, s[40:43], s48 offen")
    a("buffer_load_dword v26, v8, s[40:43], s49 offen")
    srd(40, 20, 1792 * 896)
    a("buffer_load_dword v26, v8, s[40:43], s50 offen")
    srd(40, 16, 448 * 3584)
    a("buffer_load_dword v26, v8, s[40:43], 0 offen")
    a("buffer_load_dword v26, v8, s[40:43], s51 offen")
    srd(40, 18, 1792 * 2)
    a("buffer_load_dword v26, v8, s[40:43], 0 offen")
    setexec(-1)
    a.label("L_notlb")
if Cfg.cpf:
    a("s_cmp_lg_u32 s34, 7")
    a("s_cbranch_scc1 L_nocpf")
    a("s_getpc_b64 s[48:49]")
    a.label("L_pc")
    a("s_sub_u32 s48, s48, L_pc-%s_kernel" % NAME)
    a("s_subb_u32 s49, s49, 0")
    a("v_lshlrev_b32 v8, 7, v%d" % V_LANE)
    a("v_min_u32 v9, L_exit-%s_kernel-8192, v8" % NAME)
    a("global_load_dword v26, v8, s[48:49]")
    a("v_add_u32 v9, 8192, v9")
    a("global_load_dword v26, v9, s[48:49]")
    a.label("L_nocpf")
a.label("L_e1")
a("s_barrier")
a("s_barrier")
sel_init(32)
P = Cfg.npipe
GS = [V_S2 + 8 * k for k in range(P)]
XC = 12
def e1_issue(k):
    a("s_add_u32 s53, s52, s%d" % S_SEL)
    for u in range(2):
        a("buffer_load_dwordx4 v[%d:%d], v24, s[36:39], s53 offen offset:%d sc1" % (GS[k] + 4 * u, GS[k] + 4 * u + 3, 2048 * u))
    sel_step(True)
if Cfg.ps0:
    a("s_sleep %d" % Cfg.ps0)
for k in range(P):
    e1_issue(k)
    if k < P - 1 and Cfg.ps1:
        a("s_sleep %d" % Cfg.ps1)
stamp(7)
a("s_barrier")
for k in range(P):
    a("s_waitcnt vmcnt(%d)" % (2 * (P - 1 - k)))
    check12(2, XC, "L_e1ok", GS[k])
a.label("L_e1poll")
e1_issue(0)
a("s_waitcnt vmcnt(0)")
check12(2, XC, "L_e1ok", GS[0])
a("s_branch L_e1poll")
a.label("L_e1ok")
for r in range(4):
    a("v_add_f32 v%d, v%d, v%d" % (XC + r, XC + r, XC + 4 + r))
for r in range(4):
    a("v_mov_b32 v%d, v%d" % (XC + 4 + r, XC + r))
for r in range(4):
    a("v_permlane32_swap_b32 v%d, v%d" % (XC + r, XC + 4 + r))
for r in range(4):
    a("v_add_f32 v%d, v%d, v%d" % (XC + r, XC + r, XC + 4 + r))
a("v_cvt_pk_bf16_f32 v8, v%d, v%d" % (XC, XC + 1))
a("v_cvt_pk_bf16_f32 v9, v%d, v%d" % (XC + 2, XC + 3))
a("s_mov_b32 exec_hi, 0")
a("ds_write_b16 v25, v8 offset:%d" % (L_Q))
a("ds_write_b16_d16_hi v25, v8 offset:%d" % (L_Q + 16))
a("ds_write_b16 v25, v9 offset:%d" % (L_Q + 32))
a("ds_write_b16_d16_hi v25, v9 offset:%d" % (L_Q + 48))
setexec(-1)
a("s_waitcnt lgkmcnt(0)")
stamp(4)
a("s_barrier")
a("s_cmp_ge_u32 s33, 30")
a("s_cbranch_scc1 L_end")
a("s_cmp_ge_u32 s33, 23")
a("s_cbranch_scc1 L_R")
a("s_cmp_ge_u32 s33, 16")
a("s_cbranch_scc1 L_F")

def poll(name, issue, nload, check, dual, sets=1):
    D = Cfg.pd
    ok = name + "_ok"
    for r in range(D):
        issue(r % sets)
        if r < D - 1 and Cfg.pds:
            a("s_sleep %d" % Cfg.pds)
    a.label(name)
    n = sets if sets > 1 else 1
    for k in range(n):
        a("s_waitcnt vmcnt(%d)" % (nload * (D - 1)))
        check(k, ok)
        sel_step(True if dual else None)
        issue(k)
    a("s_branch %s" % name)
    a.label(ok)

def wait_cnt(n):
    lab = a.newlabel("L_wc")
    a("v_mov_b32 v5, 0")
    a.label(lab)
    a("ds_read_b32 v7, v5 offset:%d" % L_CNT)
    a("s_sub_u32 s%d, s%d, 1" % (S_TO, S_TO))
    a("s_cbranch_scc1 L_end")
    a("s_sleep 1")
    a("s_waitcnt lgkmcnt(0)")
    a("v_cmp_gt_u32 vcc, %d, v7" % n)
    a("s_cbranch_vccnz %s" % lab)

a("s_lshl_b32 s48, s33, 1")
a("s_lshr_b32 s49, s35, 1")
a("s_add_u32 s48, s48, s49")
a("s_lshl_b32 s50, s32, 9")
a("s_bfe_u32 s49, s48, 0x10001")
a("s_lshl_b32 s49, s49, 8")
a("s_add_u32 s50, s50, s49")
a("s_lshr_b32 s49, s48, 4")
a("s_lshl_b32 s49, s49, 7")
a("s_add_u32 s50, s50, s49")
a("s_bfe_u32 s49, s48, 0x20002")
a("s_lshl_b32 s49, s49, 5")
a("s_add_u32 s50, s50, s49")
a("s_and_b32 s49, s48, 1")
a("s_lshl_b32 s49, s49, 2")
a("s_add_u32 s50, s50, s49")
a("s_mul_i32 s50, s50, 896")
a("s_and_b32 s49, s35, 1")
a("s_lshl_b32 s49, s49, 9")
a("s_add_u32 s50, s50, s49")
a("v_mul_u32_u24 v6, 7168, v%d" % V_GRP)
a("v_lshl_add_u32 v6, v%d, 4, v6" % V_I16)
srd(40, 12, 4096 * 896)
wait_cnt(Cfg.ocnt)
for q in range(4):
    a("buffer_load_dwordx4 v[%d:%d], v6, s[40:43], s50 offen offset:%d%s" % (V_W + 4 * q, V_W + 4 * q + 3, 896 * q, NTL))
a("s_bitcmp1_b32 s35, 0")
a("s_cbranch_scc0 L_nomask")
setexec(0x00FF00FF00FF00FF)
a.label("L_nomask")
for q in range(4):
    a("buffer_load_dwordx4 v[%d:%d], v6, s[40:43], s50 offen offset:%d%s" % (V_W + 16 + 4 * q, V_W + 16 + 4 * q + 3, 896 * q + 256, NTL))
setexec(-1)
a("s_lshl_b32 s54, s32, 16")
a("s_lshl_b32 s63, s48, 6")
a("s_add_u32 s54, s54, s63")
a("s_lshl_b32 s55, s32, 5")
a("s_add_u32 s55, s55, s48")
a("s_lshl_b32 s55, s55, 11")
a("s_lshl_b32 s49, s49, 1")
a("s_add_u32 s55, s55, s49")
a("s_add_u32 s50, s55, %d" % E3A)
a("s_add_u32 s51, s55, %d" % (E3A + BOFF))
a("v_cmp_lt_u32 s[6:7], 7, v%d" % V_I16)
a("v_add_u32 v4, %d, v%d" % (512 - 128, V_PUB))
a("v_cndmask_b32 v4, v%d, v4, s[6:7]" % V_PUB)
a("s_mov_b64 s[8:9], -1")
a("s_bitcmp1_b32 s35, 0")
a("s_cselect_b32 s9, 0x00ff00ff, s9")
sel_init()
stamp(1)
if Cfg.stamps:
    a("s_waitcnt vmcnt(0)")
    stamp(13)
E2S = [V_S1 + 8 * k for k in range(Cfg.pd)]
def e2_issue(k):
    a("s_add_u32 s48, s54, s%d" % S_SEL)
    a("s_add_u32 s49, s48, %d" % (E2 + 16 * 2048))
    a("s_add_u32 s48, s48, %d" % E2)
    a("buffer_load_dwordx4 v[%d:%d], v%d, s[36:39], s48 offen sc1" % (E2S[k], E2S[k] + 3, V_GA))
    a("buffer_load_dwordx4 v[%d:%d], v%d, s[36:39], s49 offen sc1" % (E2S[k] + 4, E2S[k] + 7, V_GA))
def e2_check(k, ok):
    G = E2S[k]
    a("v_xor_b32 v10, v%d, v%d" % (G + 2, V_T8))
    a("v_xor_b32 v11, v%d, v%d" % (G + 6, V_T8))
    a("v_xor_b32 v12, v%d, v%d" % (G + 3, V_TB))
    a("v_xor_b32 v13, v%d, v%d" % (G + 7, V_TB))
    a("v_or_b32 v14, v10, v11")
    a("v_and_b32 v14, 0xff, v14")
    a("v_or3_b32 v14, v14, v12, v13")
    a("v_cmp_ne_u32 vcc, 0, v14")
    for t in range(2):
        a("v_lshlrev_b32 v%d, 16, v%d" % (16 + 4 * t, G + 4 * t))
        a("v_and_b32 v%d, 0xffff0000, v%d" % (17 + 4 * t, G + 4 * t))
        a("v_lshlrev_b32 v%d, 16, v%d" % (18 + 4 * t, G + 4 * t + 1))
        a("v_and_b32 v%d, 0xffff0000, v%d" % (19 + 4 * t, G + 4 * t + 1))
    a("s_cbranch_vccz %s" % ok)
poll("L_e2poll", e2_issue, 2, e2_check, True, sets=Cfg.pd)
stamp(5)
a("v_max_f32 v14, v10, v11")
a("v_max_f32_dpp v14, v14, v14 row_ror:8%s" % DPPM)
a("v_max_f32_dpp v14, v14, v14 row_ror:4%s" % DPPM)
bfly("v_max_f32", 14, 15, 16)
bfly("v_max_f32", 14, 15, 32)
a("v_sub_f32 v10, v10, v14")
a("v_sub_f32 v11, v11, v14")
a("v_exp_f32 v10, v10")
a("v_exp_f32 v11, v11")
a("s_movk_i32 s63, 0xfff")
for r in range(4):
    a("v_mul_f32 v%d, v%d, v10" % (16 + r, 16 + r))
a("v_add_f32 v12, v10, v11")
for r in range(4):
    a("v_fmac_f32 v%d, v%d, v11" % (16 + r, 20 + r))
a("v_add_f32_dpp v12, v12, v12 row_ror:8%s" % DPPM)
a("v_add_f32_dpp v12, v12, v12 row_ror:4%s" % DPPM)
a("v_mfma_f32_16x16x4_f32 v[%d:%d], v12, v%d, 0" % (V_ACC + 4, V_ACC + 7, V_ONE))
reduce16([16, 17, 18, 19], 13)
a("v_mfma_f32_16x16x4_f32 v[%d:%d], v13, v%d, 0" % (V_ACC, V_ACC + 3, V_ONE))
a("v_rcp_f32 v12, v%d" % (V_ACC + 4))
for r in range(4):
    a("v_mul_f32 v%d, v%d, v12" % (16 + r, V_ACC + r))
for r in range(4):
    a("v_cvt_pk_bf16_f32 v%d, v%d, v%d" % (16 + r, 16 + r, 16 + r))
A2 = V_ACC + 8
BB = V_BB
def omf(qq):
    for b in range(2):
        a("v_mfma_f32_16x16x32_bf16 v[%d:%d], v[%d:%d], v[%d:%d], %s" % (A2 + 4 * b, A2 + 4 * b + 3, V_W + 16 * b + 4 * qq, V_W + 16 * b + 4 * qq + 3, BB + 4 * qq, BB + 4 * qq + 3, "0" if qq == 0 else "v[%d:%d]" % (A2 + 4 * b, A2 + 4 * b + 3)))
for q in range(4):
    for rho in range(4):
        a("v_and_b32 v%d, v%d, v%d" % (BB + 4 * q + rho, 16 + q, V_M + rho))
    if q >= 1:
        omf(q - 1)
omf(3)
for r in range(4):
    a("v_cndmask_b32 v%d, v%d, v%d, s[6:7]" % (24 + r, A2 + r, A2 + 4 + r))
tag12(28, 24)
a("s_mov_b64 exec, s[8:9]")
a("buffer_store_dwordx4 v[28:31], v4, s[36:39], s50 offen")
a("buffer_store_dwordx4 v[28:31], v4, s[36:39], s51 offen sc1")
setexec(-1)
stamp(6)
a("s_branch L_end")

a.label("L_R")
a.flush()
a("s_sub_u32 s50, s33, 23")
a("s_lshl_b32 s52, s50, 2")
a("s_add_u32 s52, s52, s35")
a("s_lshl_b32 s54, s32, 16")
a("s_lshl_b32 s63, s52, 6")
a("s_add_u32 s54, s54, s63")
a("s_mul_i32 s53, s52, %d" % Cfg.ss)
a("s_add_u32 s53, s53, %d" % E3X)
a("s_lshl_b32 s51, s32, 12")
a("s_add_u32 s51, s51, s53")
a("v_lshlrev_b32 v4, 4, v%d" % V_GRP)
a("s_lshr_b32 s63, s52, 1")
a("s_lshl_b32 s63, s63, 6")
a("s_and_b32 s48, s52, 1")
a("s_lshl_b32 s48, s48, 3")
a("s_add_u32 s63, s63, s48")
a("v_lshl_add_u32 v%d, v%d, 4, s63" % (V_XA, V_GRP))
srd(44, 4, 896)
a("buffer_load_dwordx2 v[%d:%d], v%d, s[44:47], 0 offen" % (V_X + 1, V_X + 2, V_XA))
a("v_and_b32 v8, 7, v%d" % V_I16)
a("v_lshlrev_b32 v8, 12, v8")
a("v_lshl_add_u32 v%d, v%d, 4, v8" % (V_LW, V_GRP))
wait_cnt(4)
sel_init()
a("s_sleep 8")
def e3a_issue(k):
    a("s_add_u32 s48, s54, s%d" % S_SEL)
    a("s_add_u32 s49, s48, %d" % (E3A + 16 * 2048))
    a("s_add_u32 s48, s48, %d" % E3A)
    a("buffer_load_dwordx4 v[%d:%d], v%d, s[36:39], s48 offen sc1" % (V_S2, V_S2 + 3, V_GA))
    a("buffer_load_dwordx4 v[%d:%d], v%d, s[36:39], s49 offen sc1" % (V_S2 + 4, V_S2 + 7, V_GA))
poll("L_e3apoll", e3a_issue, 2, lambda k, ok: check12(2, 12, ok, V_S2), True)
stamp(7)
for r in range(4):
    a("v_add_f32 v%d, v%d, v%d" % (12 + r, 12 + r, 16 + r))
reduce16([12, 13, 14, 15], 9)
a("v_mfma_f32_16x16x4_f32 v[%d:%d], v9, v%d, 0" % (V_ACC, V_ACC + 3, V_ONE))
a("s_movk_i32 s63, 0xfff")
setexec(0x0001000100010001)
tag12(28, V_ACC)
a("buffer_store_dwordx4 v[28:31], v4, s[36:39], s51 offen sc1")
setexec(-1)
stamp(8)
a("s_cmp_lg_u32 s50, s32")
a("s_cbranch_scc1 L_end")
a.label("L_hpoll")
a("s_sleep 2")
a("buffer_load_dwordx4 v[%d:%d], v%d, s[36:39], s53 offen sc1" % (V_G, V_G + 3, V_LW))
a("s_waitcnt vmcnt(0)")
check12(1, 12, "L_hok")
retry("L_hpoll", False)
a.label("L_hok")
stamp(9)
for pat in ("quad_perm:[1,0,3,2]", "quad_perm:[2,3,0,1]", "row_half_mirror"):
    for r in range(4):
        a("v_add_f32_dpp v%d, v%d, v%d %s%s" % (12 + r, 12 + r, 12 + r, pat, DPPM))
for r in range(4):
    a("v_mov_b32 v%d, v%d" % (V_ACC + r, 12 + r))
a("v_lshlrev_b32 v%d, 16, v%d" % (V_X, V_X + 1))
a("v_and_b32 v%d, 0xffff0000, v%d" % (V_X + 1, V_X + 1))
a("v_and_b32 v%d, 0xffff0000, v%d" % (V_X + 3, V_X + 2))
a("v_lshlrev_b32 v%d, 16, v%d" % (V_X + 2, V_X + 2))
def round_add_round(src, add):
    a("v_cvt_pk_bf16_f32 v10, v%d, v%d" % (src, src + 1))
    a("v_cvt_pk_bf16_f32 v11, v%d, v%d" % (src + 2, src + 3))
    a("v_lshlrev_b32 v12, 16, v10")
    a("v_and_b32 v13, 0xffff0000, v10")
    a("v_lshlrev_b32 v14, 16, v11")
    a("v_and_b32 v15, 0xffff0000, v11")
    for r in range(4):
        a("v_add_f32 v%d, v%d, v%d" % (12 + r, 12 + r, add + r))
    a("v_cvt_pk_bf16_f32 v10, v12, v13")
    a("v_cvt_pk_bf16_f32 v11, v14, v15")
round_add_round(V_ACC, V_X)
a("v_lshlrev_b32 v%d, 16, v10" % (V_X))
a("v_and_b32 v%d, 0xffff0000, v10" % (V_X + 1))
a("v_lshlrev_b32 v%d, 16, v11" % (V_X + 2))
a("v_and_b32 v%d, 0xffff0000, v11" % (V_X + 3))
a("s_lshl_b32 s48, s52, 6")
a("s_add_u32 s48, s48, %d" % E4)
for t in range(1, 4):
    a("s_add_u32 s%d, s48, %d" % (48 + t, t * 16 * 2048))
for r in range(4):
    a("v_mov_b32 v%d, v%d" % (V_G + 12 + r, V_T + r))
srd(44, 22, 896)
if Cfg.e4s:
    a("s_sleep %d" % Cfg.e4s)
XR = V_S1
def e4_issue(k):
    for t in range(4):
        if t == 3:
            a("s_mov_b32 exec_hi, 0")
        a("buffer_load_dwordx4 v[%d:%d], v%d, s[36:39], s%d offen sc1" % (V_G + 4 * t, V_G + 4 * t + 3, V_GA, 48 + t))
    setexec(-1)
poll("L_e4poll", e4_issue, 4, lambda k, ok: check12(4, XR, ok), False)
stamp(10)
for r in range(4):
    a("v_add_f32 v%d, v%d, v%d" % (XR + r, XR + r, XR + 4 + r))
    a("v_add_f32 v%d, v%d, v%d" % (XR + 8 + r, XR + 8 + r, XR + 12 + r))
for r in range(4):
    a("v_add_f32 v%d, v%d, v%d" % (XR + r, XR + r, XR + 8 + r))
reduce16([XR, XR + 1, XR + 2, XR + 3], 9)
a("v_mfma_f32_16x16x4_f32 v[%d:%d], v9, v%d, 0" % (V_ACC, V_ACC + 3, V_ONE))
round_add_round(V_ACC, V_X)
setexec(0x0001000100010001)
a("buffer_store_dwordx2 v[10:11], v%d, s[44:47], 0 offen" % V_XA)
a("s_cmp_lg_u32 s52, 0")
a("s_cbranch_scc1 L_noep")
setexec(1)
a("v_mov_b32 v9, 0")
for k in range(4):
    a("v_mov_b32 v%d, s%d" % (12 + k, 28 + k))
a("buffer_store_dwordx4 v[12:15], v9, s[36:39], 0 offen offset:%d" % EPOCH)
a.label("L_noep")
setexec(-1)
stamp(14)
a("s_branch L_end")

a.label("L_F")
a.flush()
a("s_mul_i32 s50, s32, 7")
a("s_add_u32 s50, s50, s33")
a("s_sub_u32 s50, s50, 16")
a("s_lshl_b32 s51, s50, 2")
a("s_add_u32 s51, s51, s35")
a("v_lshrrev_b32 v8, 3, v%d" % V_I16)
a("v_sub_u32 v8, v%d, v8" % V_I16)
a("v_min_u32 v8, 13, v8")
a("v_lshlrev_b32 v8, 6, v8")
a("v_lshl_add_u32 v23, v%d, 4, v8" % V_GRP)
a("v_bfe_u32 v8, v%d, 2, 3" % V_LANE)
a("v_min_u32 v8, 6, v8")
a("v_and_b32 v9, 3, v%d" % V_LANE)
a("v_mul_u32_u24 v10, %d, v8" % Cfg.ss)
a("v_lshl_add_u32 v10, v9, 4, v10")
a("v_lshrrev_b32 v11, 5, v%d" % V_LANE)
a("v_lshl_add_u32 v%d, v11, 12, v10" % V_XA)
a("s_mul_i32 s63, s35, 7")
a("v_add_u32 v8, s63, v8")
a("v_lshrrev_b32 v10, 1, v8")
a("v_lshlrev_b32 v10, 6, v10")
a("v_and_b32 v8, 1, v8")
a("v_lshl_add_u32 v10, v8, 3, v10")
a("v_lshl_add_u32 v24, v9, 4, v10")
a("v_and_b32 v10, 1, v%d" % V_GRP)
a("v_and_b32 v11, 1, v%d" % V_I16)
a("v_lshlrev_b32 v25, 2, v10")
a("v_and_b32 v26, 2, v%d" % V_GRP)
a("v_add_u32 v25, v25, v26")
a("v_mul_u32_u24 v26, 896, v25")
a("v_lshl_add_u32 v26, v%d, 4, v26" % V_I16)
a("v_add_u32 v25, v25, v11")
a("v_lshlrev_b32 v25, 1, v25")
a("v_bfe_u32 v27, v%d, 1, 1" % V_I16)
a("v_mul_u32_u24 v27, %d, v27" % (224 * 64))
a("v_lshl_add_u32 v27, v%d, 9, v27" % V_GRP)
a("v_lshrrev_b32 v12, 2, v%d" % V_I16)
a("v_lshl_add_u32 v27, v12, 6, v27")
a("v_lshl_add_u32 v27, v11, 3, v27")
a("s_lshl_b32 s63, s35, 4")
a("v_add_u32 v%d, s63, v27" % V_W1A)
a("v_lshrrev_b32 v27, 2, v%d" % V_LANE)
a("v_mul_u32_u24 v27, 3584, v27")
a("v_and_b32 v12, 3, v%d" % V_LANE)
a("v_lshl_add_u32 v27, v12, 4, v27")
a("s_lshl_b32 s63, s35, 11")
a("v_lshl_add_u32 v%d, v%d, 4, s63" % (V_LW, V_LANE))
srd(40, 16, 448 * 3584)
srd(44, 20, 1792 * 896)
srd(8, 4, 896)
srd(12, 18, 1792 * 2)
a("s_mul_i32 s52, s35, %d" % (112 * 3584))
a("s_lshl_b32 s63, s50, 6")
a("s_add_u32 s52, s52, s63")
a("s_mul_i32 s53, s35, 7168")
a("s_add_u32 s53, s53, %d" % L_W1)
a("s_mul_i32 s54, s51, %d" % (8 * 896))
a("s_lshl_b32 s55, s51, 4")
a("s_mul_i32 s24, s35, %d" % (7 * Cfg.ss))
a("s_add_u32 s24, s24, %d" % E3X)
a("s_add_u32 s25, s24, 8192")
a("s_add_u32 s26, s24, 16384")
a("s_add_u32 s27, s24, 24576")
wait_cnt(4)
if Cfg.fs:
    a("s_sleep %d" % Cfg.fs)
stamp(1)
for t in range(7):
    a("s_mov_b32 m0, s53")
    a("buffer_load_dwordx4 v27, s[40:43], s52 offen%s lds" % NTW)
    if t < 6:
        a("s_add_u32 s52, s52, %d" % (16 * 3584))
        a("s_add_u32 s53, s53, 1024")
for b in range(4):
    if b == 3:
        setexec(0x00FF00FF00FF00FF)
    for q in range(2):
        a("buffer_load_dwordx4 v[%d:%d], v26, s[44:47], s54 offen offset:%d%s" % (V_W + 8 * b + 4 * q, V_W + 8 * b + 4 * q + 3, 896 * q + 256 * b, NTL))
setexec(-1)
a("buffer_load_dwordx2 v[%d:%d], v24, s[8:11], 0 offen" % (V_X + 1, V_X + 2))
a("buffer_load_ushort v%d, v25, s[12:15], s55 offen" % V_B1)
a("s_lshl_b32 s48, s50, 11")
a("s_lshl_b32 s63, s35, 10")
a("s_add_u32 s48, s48, s63")
a("s_add_u32 s48, s48, %d" % E4)
a("v_cmp_lt_u32 s[6:7], 7, v%d" % V_I16)
a("v_add_u32 v4, %d, v%d" % (512 - 128, V_PUB))
a("v_cndmask_b32 v4, v%d, v4, s[6:7]" % V_PUB)
a("s_lshl_b32 s63, s35, 10")
a("v_lshl_add_u32 v21, v%d, 4, s63" % V_LANE)
a("s_waitcnt vmcnt(0)")
stamp(5)
a("s_barrier")
for m in range(7):
    for u in range(2):
        a("ds_read_b64_tr_b16 v[%d:%d], v%d offset:%d" % (V_W1F + 4 * m + 2 * u, V_W1F + 4 * m + 2 * u + 1, V_W1A, L_W1 + 2048 * m + 256 * u))
a("v_lshlrev_b32 v%d, 16, v%d" % (V_B1, V_B1))
a("v_lshlrev_b32 v%d, 16, v%d" % (V_X, V_X + 1))
a("v_and_b32 v%d, 0xffff0000, v%d" % (V_X + 1, V_X + 1))
a("v_and_b32 v%d, 0xffff0000, v%d" % (V_X + 3, V_X + 2))
a("v_lshlrev_b32 v%d, 16, v%d" % (V_X + 2, V_X + 2))
if Cfg.xs:
    a("s_sleep %d" % Cfg.xs)
def e3x_issue(k):
    for t in range(4):
        a("buffer_load_dwordx4 v[%d:%d], v%d, s[36:39], s%d offen sc1" % (V_G + 4 * t, V_G + 4 * t + 3, V_XA, 24 + t))
poll("L_e3xpoll", e3x_issue, 4, lambda k, ok: check12(4, XR, ok), False)
stamp(9)
for r in range(4):
    a("v_add_f32 v%d, v%d, v%d" % (XR + r, XR + r, XR + 4 + r))
    a("v_add_f32 v%d, v%d, v%d" % (XR + 8 + r, XR + 8 + r, XR + 12 + r))
for r in range(4):
    a("v_add_f32 v%d, v%d, v%d" % (XR + r, XR + r, XR + 8 + r))
for r in range(4):
    a("v_mov_b32 v%d, v%d" % (XR + 4 + r, XR + r))
for r in range(4):
    a("v_permlane32_swap_b32 v%d, v%d" % (XR + r, XR + 4 + r))
for r in range(4):
    a("v_add_f32 v%d, v%d, v%d" % (XR + r, XR + r, XR + 4 + r))
round_add_round(XR, V_X)
a("ds_write_b64 v24, v[10:11] offset:%d" % L_H)
a("s_waitcnt lgkmcnt(0)")
a("s_barrier")
stamp(10)
PR = V_S2
a("ds_read_b128 v[%d:%d], v23 offset:%d" % (PR + 8, PR + 11, L_H))
a("s_waitcnt lgkmcnt(0)")
for k in range(4):
    a("v_lshlrev_b32 v%d, 16, v%d" % (PR + 2 * k, PR + 8 + k))
    a("v_and_b32 v%d, 0xffff0000, v%d" % (PR + 2 * k + 1, PR + 8 + k))
AF = 176
layernorm([PR + k for k in range(8)], AF, 0x7F7F7F7F7F7F7F7F, 5)
D1 = V_S1
for m in range(7):
    a("v_mfma_f32_16x16x32_bf16 v[%d:%d], v[%d:%d], v[%d:%d], 0" % (D1 + 4 * m, D1 + 4 * m + 3, AF, AF + 3, V_W1F + 4 * m, V_W1F + 4 * m + 3))
a("v_mov_b32 v8, 0")
setexec(0x0000FF00000000FF)
a("v_add_f32 v8, v%d, v%d" % (D1 + 0, D1 + 4 + 1))
a("v_add_f32 v9, v%d, v%d" % (D1 + 8 + 2, D1 + 12 + 3))
a("v_add_f32 v8, v8, v9")
setexec(0xFF00000000FF0000)
a("v_add_f32 v8, v%d, v%d" % (D1 + 16, D1 + 20 + 1))
a("v_add_f32 v8, v8, v%d" % (D1 + 24 + 2))
setexec(-1)
a("v_add_f32_dpp v8, v8, v8 row_ror:8%s" % DPPM)
a("v_mfma_f32_16x16x4_f32 v[%d:%d], v8, v%d, 0" % (V_ACC, V_ACC + 3, V_ONE))
a("s_mov_b32 s63, %s" % f32(-LOG2E))
a("v_cndmask_b32 v8, v%d, v%d, s[%d:%d]" % (V_ACC, V_ACC + 1, S_ODD, S_ODD + 1))
a("v_cndmask_b32 v9, v%d, v%d, s[%d:%d]" % (V_ACC + 2, V_ACC + 3, S_ODD, S_ODD + 1))
a("v_cndmask_b32 v8, v8, v9, s[%d:%d]" % (S_HI, S_HI + 1))
bf16r(8, 8)
a("v_add_f32 v8, v8, v%d" % V_B1)
bf16r(8, 8)
a("v_mul_f32 v9, s63, abs(v8)")
a("v_exp_f32 v9, v9")
a("v_max_f32 v17, 0, v8")
bf16r(9, 9)
a("v_add_f32 v10, 1.0, v9")
a("v_add_f32 v11, -1.0, v10")
a("v_log_f32 v12, v10")
a("v_rcp_f32 v13, v11")
a("v_cmp_eq_f32 vcc, 0, v11")
a("v_mul_f32 v12, %s, v12" % f32(0.6931471805599453))
a("v_mul_f32 v13, v13, v9")
a("v_mul_f32 v12, v12, v13")
a("v_cndmask_b32 v12, v12, v9, vcc")
bf16r(12, 12)
a("v_add_f32 v12, v12, v17")
bf16r(12, 12)
a("v_mul_f32 v13, %s, v12" % f32(-2.0 * LOG2E))
a("v_exp_f32 v13, v13")
a("v_mul_f32 v16, v12, v12")
a("v_add_f32 v14, 1.0, v13")
a("v_sub_f32 v15, 1.0, v13")
a("v_rcp_f32 v14, v14")
a("v_mul_f32 v16, %s, v16" % f32(-1.0 / 3.0))
a("v_cmp_gt_f32 vcc, %s, v12" % f32(2.0 ** -6))
a("v_fma_f32 v16, v16, v12, v12")
a("v_mul_f32 v14, v14, v15")
a("v_cndmask_b32 v14, v14, v16, vcc")
bf16r(14, 14)
a("v_mul_f32 v14, v14, v8")
a("v_cvt_pk_bf16_f32 v14, v14, v14")
a("s_movk_i32 s63, 0xfff")
for q in range(2):
    for rho in range(4):
        a("v_and_b32_dpp v%d, v14, v%d quad_perm:[%d,%d,%d,%d]%s" % (BB + 4 * q + rho, V_M + rho, q, q, 2 + q, 2 + q, DPPM))
for q in range(2):
    for b in range(4):
        a("v_mfma_f32_16x16x32_bf16 v[%d:%d], v[%d:%d], v[%d:%d], %s" % (V_ACC + 4 * b, V_ACC + 4 * b + 3, V_W + 8 * b + 4 * q, V_W + 8 * b + 4 * q + 3, BB + 4 * q, BB + 4 * q + 3, "0" if q == 0 else "v[%d:%d]" % (V_ACC + 4 * b, V_ACC + 4 * b + 3)))
setexec(0x00FF00FF00FF00FF)
a("ds_write_b128 v%d, v[%d:%d] offset:%d" % (V_LW, V_ACC, V_ACC + 3, L_F))
a("s_not_b64 exec, exec")
a("ds_write_b128 v%d, v[%d:%d] offset:%d" % (V_LW, V_ACC + 4, V_ACC + 7, L_F))
a("s_not_b64 exec, exec")
a("ds_write_b128 v%d, v[%d:%d] offset:%d" % (V_LW, V_ACC + 8, V_ACC + 11, L_F + 1024))
a("s_not_b64 exec, exec")
a("ds_write_b128 v%d, v[%d:%d] offset:%d" % (V_LW, V_ACC + 12, V_ACC + 15, L_F + 1024))
setexec(-1)
a("s_waitcnt lgkmcnt(0)")
stamp(13)
a("s_barrier")
a("s_cmp_ge_u32 s35, 2")
a("s_cbranch_scc1 L_end")
for w in range(4):
    a("ds_read_b128 v[%d:%d], v21 offset:%d" % (PR + 4 * w, PR + 4 * w + 3, L_F + 2048 * w))
a("s_cmp_eq_u32 s35, 1")
a("s_cselect_b32 exec_hi, 0x00ff00ff, -1")
a("s_waitcnt lgkmcnt(0)")
for r in range(4):
    a("v_add_f32 v%d, v%d, v%d" % (PR + r, PR + r, PR + 4 + r))
    a("v_add_f32 v%d, v%d, v%d" % (PR + 8 + r, PR + 8 + r, PR + 12 + r))
for r in range(4):
    a("v_add_f32 v%d, v%d, v%d" % (PR + r, PR + r, PR + 8 + r))
tag12(28, PR)
a("buffer_store_dwordx4 v[28:31], v4, s[36:39], s48 offen sc1")
setexec(-1)
stamp(14)
a.label("L_end")
if Cfg.stamps:
    setexec(-1)
    stamp(15)
    a("s_waitcnt lgkmcnt(0)")
    a("s_lshl_b32 s48, s2, 3")
    a("s_add_u32 s48, s48, s34")
    a("s_lshl_b32 s48, s48, 6")
    a("s_add_u32 s48, s48, %d" % STAMP)
    a("v_mov_b32 v9, 0")
    setexec(1)
    for i in range(16):
        a("v_mov_b32 v10, s%d" % (64 + 2 * i))
        a("buffer_store_dword v10, v9, s[36:39], s48 offen offset:%d" % (4 * i))
    if Cfg.dbgwg >= 0:
        a("s_cmp_lg_u32 s2, %d" % Cfg.dbgwg)
        a("s_cbranch_scc1 L_exit")
        a("s_cmp_lg_u32 s34, %d" % Cfg.dbgwave)
        a("s_cbranch_scc1 L_exit")
        if Cfg.spin:
            a.label("L_spin")
            a("s_memrealtime s[94:95]")
            a("s_waitcnt lgkmcnt(0)")
            a("s_sub_u32 s63, s94, s64")
            a("s_cmp_lt_u32 s63, %d" % Cfg.spin)
            a("s_cbranch_scc1 L_spin")
        srd(44, 24, 256)
        for i in range(16):
            a("s_sub_u32 s63, s%d, s64" % (64 + 2 * i))
            a("s_cmp_eq_u32 s%d, 0" % (64 + 2 * i))
            a("s_cselect_b32 s63, 0, s63")
            a("v_mov_b32 v10, s63")
            a("buffer_store_dword v10, v9, s[44:47], 0 offen offset:%d" % (4 * i))
a.label("L_exit")
a("s_endpgm")
a.raw('''.section .rodata,"a"
.p2align 6
.amdhsa_kernel %s_kernel
  .amdhsa_next_free_vgpr %d
  .amdhsa_next_free_sgpr 100
  .amdhsa_accum_offset %d
  .amdhsa_group_segment_fixed_size 0
  .amdhsa_kernarg_size 96
  .amdhsa_user_sgpr_count 2
  .amdhsa_user_sgpr_kernarg_segment_ptr 1
  .amdhsa_system_sgpr_workgroup_id_x 1
  .amdhsa_float_denorm_mode_32 3
.end_amdhsa_kernel''' % (NAME, NVGPR, NVGPR))
open(sys.argv[1], "w").write(a.text())
```

```python
import sys, struct
from asmlib import Asm
NAME = "sequential_preLN__sliding_block_cached__dense_activation_mish__decode"

class Cfg:
    stamps = False
    nt = True
    ntw = False
    timeout = 200000
    ocnt = 6
    vs = 0
    nearly = 7
    pfat = 1
    n1 = 10
    pf = True
    cpf = True
    ntl = False
    depth = 0
    ss = 128
    forceB = False
    pretouch = True
    fs = 0
    tlb = False
    bthr = 64
    b0 = True
    npipe = 3
    ps0 = 0
    ps1 = 4
    kpat = 0
    kdma = True
    pd = 1
    pds = 2
    fpf = False
    prio = True
    xls = 0
    pace = 0
    e1w = 20
    fcnt = 6
    w2l = False
    lh = True
    e3e = False
    lin = True
    rpf = False
    rs = 0
    os = 0
    ka = 3
    kb = 0
    kc = 0
    k0 = 12
    xs = 0
    e4s = 8
    rnd = True
    dbgwg = -1
    dbgwave = 0
    spin = 0
for arg in sys.argv[2:]:
    k, v = arg.split('=')
    setattr(Cfg, k, type(getattr(Cfg, k))(int(v)))

NT = " nt" if Cfg.nt else ""
NTW = " nt" if Cfg.ntw else ""
NTQ = NT
NTL = " nt" if Cfg.ntl else ""
EPOCH = 0x0
E3X = 0x1000
E3L = 0x9000
E1 = 0x10000
E2 = 0x20000
E3A = 0xA0000
BOFF = 0x120000
E4 = 0x240000
STAMP = 0x300000
WS_SIZE = 0x400000
L_Q = 0
L_ML = 1024
L_CNT = 3072
L_H = 3136
L_O = 4096
L_F = L_O
L_K = 12288
L_W1 = L_K
LDS_BYTES = 45056

LOG2E = 1.4426950408889634
def f32(x):
    return "0x%08x" % struct.unpack('<I', struct.pack('<f', x))[0]

a = Asm()
a.raw("; @launch grid=(256,1,1) block=(512,1,1) lds=%d" % LDS_BYTES)
a.raw('.amdgcn_target "amdgcn-amd-amdhsa--gfx950"\n.text\n.globl %s_kernel\n.p2align 8\n.type %s_kernel,@function\n%s_kernel:' % (NAME, NAME, NAME))

DPPM = " row_mask:0xf bank_mask:0xf"
def stamp(i):
    if Cfg.stamps:
        a("s_memrealtime s[%d:%d]" % (64 + 2 * i, 65 + 2 * i))

def srd(dst, ptr, nbytes):
    a("s_mov_b32 s%d, s%d" % (dst, ptr))
    a("s_and_b32 s%d, s%d, 0xffff" % (dst + 1, ptr + 1))
    a("s_mov_b32 s%d, %d" % (dst + 2, nbytes))
    a("s_mov_b32 s%d, 0x20000" % (dst + 3))

def setexec(mask):
    if mask == -1:
        a("s_mov_b64 exec, -1")
    else:
        a("s_mov_b32 exec_lo, 0x%08x" % (mask & 0xffffffff))
        a("s_mov_b32 exec_hi, 0x%08x" % (mask >> 32))

def setmask(s, mask):
    a("s_mov_b32 s%d, 0x%08x" % (s, mask & 0xffffffff))
    a("s_mov_b32 s%d, 0x%08x" % (s + 1, mask >> 32))

def bfly(op, v, t, which):
    a("v_mov_b32 v%d, v%d" % (t, v))
    a("v_permlane%d_swap_b32 v%d, v%d" % (which, v, t))
    a("%s v%d, v%d, v%d" % (op, v, v, t))

def bf16r(dst, src):
    a("v_cvt_pk_bf16_f32 v%d, v%d, v%d" % (dst, src, src))
    a("v_and_b32 v%d, 0xffff0000, v%d" % (dst, dst))

S_ODD, S_B1, S_HI = 56, 58, 60
S_M4, S_M8 = 58, 96
S_TO = 62
S_SEL = 3

S_CNT = 33
def sel_step(thr):
    a("s_sub_u32 s%d, s%d, 1" % (S_TO, S_TO))
    a("s_cbranch_scc1 L_end")
    if thr is not None and not Cfg.forceB:
        a("s_cmp_lt_u32 s%d, s1" % S_TO)
        a("s_cselect_b32 s%d, %d, 0" % (S_SEL, BOFF))

def retry(loop, dual):
    sel_step(True if dual else None)
    a("s_branch %s" % loop)

def sel_init(thr=None):
    a("s_mov_b32 s%d, %d" % (S_SEL, BOFF if Cfg.forceB else 0))
    a("s_sub_u32 s1, s%d, %d" % (S_TO, Cfg.bthr if thr is None else thr))

def ln_stats(f, valid, T, fill=None):
    e = [T + k for k in range(8)]
    s1, s2, t1, t2 = T + 8, T + 9, T + 10, T + 11
    fill = list(fill or [])
    def filler():
        if fill:
            a(fill.pop(0))
    a("v_readlane_b32 s63, v%d, 0" % f[0])
    a("v_mov_b32 v%d, 0" % s1)
    a("v_mov_b32 v%d, 0" % s2)
    setexec(valid)
    for k in range(8):
        a("v_subrev_f32 v%d, s63, v%d" % (e[k], f[k]))
    a("v_add_f32 v%d, v%d, v%d" % (s1, e[0], e[1]))
    a("v_mul_f32 v%d, v%d, v%d" % (s2, e[0], e[0]))
    a("v_add_f32 v%d, v%d, v%d" % (t1, e[2], e[3]))
    a("v_mul_f32 v%d, v%d, v%d" % (t2, e[1], e[1]))
    for k in range(4, 8):
        a("v_add_f32 v%d, v%d, v%d" % (s1 if k % 2 == 0 else t1, s1 if k % 2 == 0 else t1, e[k]))
    for k in range(2, 8):
        a("v_fmac_f32 v%d, v%d, v%d" % (s2 if k % 2 == 0 else t2, e[k], e[k]))
    a("v_add_f32 v%d, v%d, v%d" % (s1, s1, t1))
    a("v_add_f32 v%d, v%d, v%d" % (s2, s2, t2))
    setexec(-1)
    for i, r in enumerate((8, 4, 2, 1)):
        a("v_add_f32_dpp v%d, v%d, v%d row_ror:%d%s" % (s1, s1, s1, r, DPPM))
        a("v_add_f32_dpp v%d, v%d, v%d row_ror:%d%s" % (s2, s2, s2, r, DPPM))
        filler()
    for which in (16, 32):
        a("v_mov_b32 v%d, v%d" % (t1, s1))
        a("v_mov_b32 v%d, v%d" % (t2, s2))
        filler()
        a("v_permlane%d_swap_b32 v%d, v%d" % (which, s1, t1))
        a("v_permlane%d_swap_b32 v%d, v%d" % (which, s2, t2))
        a("v_add_f32 v%d, v%d, v%d" % (s1, s1, t1))
        a("v_add_f32 v%d, v%d, v%d" % (s2, s2, t2))
    a("v_mul_f32 v%d, %s, v%d" % (s1, f32(1.0 / 448), s1))
    a("v_mul_f32 v%d, %s, v%d" % (s2, f32(1.0 / 448), s2))
    a("v_fma_f32 v%d, -v%d, v%d, v%d" % (s2, s1, s1, s2))
    a("v_add_f32 v%d, s63, v%d" % (s1, s1))
    a("v_max_f32 v%d, 0, v%d" % (s2, s2))
    a("v_cvt_pk_bf16_f32 v%d, v%d, v%d" % (t1, s1, s2))
    a("v_and_b32 v%d, 0xffff0000, v%d" % (s2, t1))
    a("v_lshlrev_b32 v%d, 16, v%d" % (s1, t1))
    a("v_add_f32 v%d, %s, v%d" % (s2, f32(1e-5), s2))
    bf16r(s2, s2)
    a("v_sqrt_f32 v%d, v%d" % (s2, s2))
    while fill:
        filler()
    return s1, s2

def ln_apply(f, e, pk, s1, s2):
    n = len(f)
    for k in range(n):
        a("v_sub_f32 v%d, v%d, v%d" % (e[k], f[k], s1))
    bf16r(s2, s2)
    a("v_rcp_f32 v%d, v%d" % (s2, s2))
    for k in range(n // 2):
        a("v_cvt_pk_bf16_f32 v%d, v%d, v%d" % (pk[k], e[2 * k], e[2 * k + 1]))
    for k in range(n // 2):
        a("v_lshlrev_b32 v%d, 16, v%d" % (e[2 * k], pk[k]))
        a("v_and_b32 v%d, 0xffff0000, v%d" % (e[2 * k + 1], pk[k]))
    for k in range(n):
        a("v_mul_f32 v%d, v%d, v%d" % (e[k], e[k], s2))

def layernorm(f, out, valid, T):
    e = [T + k for k in range(8)]
    pk = [T + 12 + k for k in range(4)]
    s1, s2 = ln_stats(f, valid, T, ["v_mov_b32 v%d, 0" % (out + i) for i in range(4)])
    ln_apply(f, e, pk, s1, s2)
    setexec(valid)
    for k in range(4):
        a("v_cvt_pk_bf16_f32 v%d, v%d, v%d" % (out + k, e[2 * k], e[2 * k + 1]))
    setexec(-1)

def quad_transpose_reduce(v, dst, T):
    k0, g0, k1, g1 = T, T + 1, T + 2, T + 3
    a("v_cndmask_b32 v%d, v%d, v%d, s[%d:%d]" % (g0, v[1], v[0], S_ODD, S_ODD + 1))
    a("v_cndmask_b32 v%d, v%d, v%d, s[%d:%d]" % (g1, v[3], v[2], S_ODD, S_ODD + 1))
    a("v_cndmask_b32 v%d, v%d, v%d, s[%d:%d]" % (k0, v[0], v[1], S_ODD, S_ODD + 1))
    a("v_cndmask_b32 v%d, v%d, v%d, s[%d:%d]" % (k1, v[2], v[3], S_ODD, S_ODD + 1))
    a("v_add_f32_dpp v%d, v%d, v%d quad_perm:[1,0,3,2]%s" % (k0, g0, k0, DPPM))
    a("v_add_f32_dpp v%d, v%d, v%d quad_perm:[1,0,3,2]%s" % (k1, g1, k1, DPPM))
    a("v_cndmask_b32 v%d, v%d, v%d, s[%d:%d]" % (g0, k1, k0, S_B1, S_B1 + 1))
    a("v_cndmask_b32 v%d, v%d, v%d, s[%d:%d]" % (dst, k0, k1, S_B1, S_B1 + 1))
    a("v_add_f32_dpp v%d, v%d, v%d quad_perm:[2,3,0,1]%s" % (dst, g0, dst, DPPM))

S_B2, S_B3 = S_B1, 4
def reduce16(v, dst):
    for r in range(4):
        a("v_add_f32_dpp v%d, v%d, v%d row_ror:8%s" % (v[r], v[r], v[r], DPPM))
    for r in range(4):
        a("v_add_f32_dpp v%d, v%d, v%d row_ror:4%s" % (v[r], v[r], v[r], DPPM))
    a("v_cndmask_b32 v%d, v%d, v%d, s[%d:%d]" % (v[0], v[0], v[1], S_M4, S_M4 + 1))
    a("v_cndmask_b32 v%d, v%d, v%d, s[%d:%d]" % (v[2], v[2], v[3], S_M4, S_M4 + 1))
    a("v_cndmask_b32 v%d, v%d, v%d, s[%d:%d]" % (dst, v[0], v[2], S_M8, S_M8 + 1))

def check12(n, X, oklab, G=None):
    if G is None:
        G = V_G
    for t in range(n):
        for r in range(4):
            a("v_xor_b32 v%d, v%d, v%d" % (X + 4 * t + r, G + 4 * t + r, V_T + r))
    regs = [X + i for i in range(4 * n)]
    acc = [5, 6, 7]
    cur = regs[:]
    outs = []
    i = 0
    while len(cur) >= 3 and i < 3:
        a("v_or3_b32 v%d, v%d, v%d, v%d" % (acc[i], cur[0], cur[1], cur[2])); cur = cur[3:]; outs.append(acc[i]); i += 1
    i = 0
    while len(cur) >= 2:
        o = outs[i % len(outs)]
        a("v_or3_b32 v%d, v%d, v%d, v%d" % (o, o, cur[0], cur[1])); cur = cur[2:]; i += 1
    rest = outs + cur
    while len(rest) > 1:
        if len(rest) >= 3:
            a("v_or3_b32 v%d, v%d, v%d, v%d" % (acc[0], rest[0], rest[1], rest[2])); rest = [acc[0]] + rest[3:]
        else:
            a("v_or_b32 v%d, v%d, v%d" % (acc[0], rest[0], rest[1])); rest = [acc[0]]
    a("v_and_b32 v%d, 0xfff, v%d" % (acc[0], rest[0]))
    a("v_cmp_ne_u32 vcc, 0, v%d" % acc[0])
    a("s_cbranch_vccz %s" % oklab)

V_I16, V_GRP, V_LANE = 1, 2, 3
V_M, V_T = 196, 200
V_TA, V_TB, V_T8, V_ONE = 204, 205, 206, 207
V_B1, V_X = 208, 209
V_GA = 213
V_PUB = 214
V_XA = 215
V_ACC = 216
V_G = 232
V_W1A, V_LW = 248, 249
NVGPR = 252
V_K, V_V, V_QF = 32, 64, 96
V_W = 32
V_W1F = 64
V_BB = 96
V_S1 = 112
V_S2 = 144

def tag12(dst, src):
    for r in range(4):
        if Cfg.rnd:
            a("v_add_u32 v%d, 0x800, v%d" % (dst + r, src + r))
            src_r = dst + r
        else:
            src_r = src + r
    for r in range(4):
        a("v_bfi_b32 v%d, s63, v%d, v%d" % (dst + r, V_T + r, (dst if Cfg.rnd else src) + r))

def make_masks():
    a("v_and_b32 v10, 1, v%d" % V_I16)
    a("v_lshlrev_b32 v10, 4, v10")
    a("v_mov_b32 v11, 0xffff")
    a("v_lshlrev_b32 v11, v10, v11")
    a("v_bfe_u32 v10, v%d, 1, 2" % V_I16)
    for rho in range(4):
        a("v_cmp_eq_u32 vcc, %d, v10" % rho)
        a("v_cndmask_b32 v%d, 0, v11, vcc" % (V_M + rho))

def make_tags(full=True):
    a("s_waitcnt lgkmcnt(0)")
    for k in range(4):
        a("s_add_u32 s%d, s%d, 1" % (28 + k, 28 + k))
    if full:
        for k in range(4):
            a("s_and_b32 s63, s%d, 0xfff" % (28 + k))
            a("v_mov_b32 v%d, s63" % (V_T + k))
    a("v_mov_b32 v%d, s31" % V_TB)
    a("s_and_b32 s63, s30, 0xff")
    a("v_mov_b32 v%d, s63" % V_T8)

if Cfg.stamps:
    for i in range(16):
        a("s_mov_b64 s[%d:%d], 0" % (64 + 2 * i, 65 + 2 * i))
stamp(0)
a("s_load_dwordx16 s[4:19], s[0:1], 0")
a("s_load_dwordx8 s[20:27], s[0:1], 64")
a("s_cmp_ge_u32 s2, 256")
a("s_cbranch_scc1 L_exit")
a("v_lshrrev_b32 v4, 6, v0")
a("v_and_b32 v%d, 63, v0" % V_LANE)
a("v_readfirstlane_b32 s34, v4")
a("v_and_b32 v%d, 15, v0" % V_I16)
a("v_bfe_u32 v%d, v0, 4, 2" % V_GRP)
a("s_and_b32 s32, s2, 7")
a("s_lshr_b32 s33, s2, 3")
a("s_and_b32 s35, s34, 3")
a("s_cmp_ge_u32 s34, 4")
a("s_cbranch_scc1 L_tail")

a("s_lshl_b32 s48, s32, 22")
a("s_lshl_b32 s49, s33, 15")
a("s_add_u32 s48, s48, s49")
a("s_lshl_b32 s49, s34, 13")
a("s_add_u32 s48, s48, s49")
a("s_add_u32 s48, s48, %d" % (6144 * 512))
if Cfg.kdma:
    a("v_lshrrev_b32 v4, 2, v%d" % V_LANE)
    a("v_lshlrev_b32 v4, 9, v4")
    a("v_and_b32 v5, 3, v%d" % V_LANE)
    a("v_lshl_add_u32 v4, v5, 4, v4")
    a("s_add_u32 s49, s49, %d" % L_K)
else:
    a("v_lshlrev_b32 v4, 9, v%d" % V_I16)
    a("v_lshl_add_u32 v4, v%d, 4, v4" % V_GRP)
a("v_lshlrev_b32 v5, 11, v%d" % V_GRP)
a("v_lshl_add_u32 v5, v%d, 4, v5" % V_I16)
a("s_mov_b32 s42, 33554432")
a("s_mov_b32 s43, 0x20000")
a("s_mov_b32 s46, 33554432")
a("s_mov_b32 s47, 0x20000")
a("s_waitcnt lgkmcnt(0)")
a("s_mov_b32 s40, s6")
a("s_and_b32 s41, s7, 0xffff")
a("s_mov_b32 s44, s8")
a("s_and_b32 s45, s9, 0xffff")
stamp(11)
if Cfg.b0:
    a("s_barrier")
nissued = [0]
def paced(text):
    if Cfg.depth and nissued[0] >= Cfg.depth and nissued[0] < Cfg.n1:
        a("s_waitcnt vmcnt(%d)" % (Cfg.depth - 1))
    a(text)
    nissued[0] += 1
loads = []
for s in range(8):
    if Cfg.kdma:
        loads.append(["s_add_u32 m0, s49, %d" % (960 * s), "buffer_load_dwordx4 v4, s[40:43], s48 offen offset:%d%s lds" % (64 * s, NT)])
    else:
        loads.append("buffer_load_dwordx4 v[%d:%d], v4, s[40:43], s48 offen offset:%d%s" % (V_K + 4 * s, V_K + 4 * s + 3, 64 * s, NT))
def emit(t):
    for x in ([t] if isinstance(t, str) else t):
        a(x)
for r in range(4):
    for h in range(2):
        n = 2 * r + h
        loads.append("buffer_load_dwordx4 v[%d:%d], v5, s[44:47], s48 offen offset:%d%s" % (V_V + 4 * n, V_V + 4 * n + 3, 512 * r + 256 * h, NT))
nfirst = 8 + Cfg.nearly
if Cfg.pace:
    Cfg.k0 = Cfg.pace
for t in loads[:Cfg.k0]:
    emit(t)
stamp(12)
a("s_load_dwordx4 s[28:31], s[26:27], %d" % EPOCH)
srd(36, 26, WS_SIZE)
make_masks()
a("v_lshrrev_b32 v7, 3, v%d" % V_I16)
a("v_lshlrev_b32 v7, 9, v7")
a("v_lshl_add_u32 v7, v%d, 4, v7" % V_GRP)
a("s_lshl_b32 s63, s34, 11")
a("v_lshl_add_u32 v%d, v%d, 4, s63" % (V_LW, V_LANE))
a("s_lshl_b32 s63, s34, 9")
a("v_lshl_add_u32 v23, v%d, 3, s63" % V_LANE)
a("s_lshl_b32 s63, s34, 10")
a("v_lshl_add_u32 v21, v%d, 4, s63" % V_LANE)
a("v_lshlrev_b32 v22, 3, v%d" % V_LANE)
a("s_lshl_b32 s55, s32, 5")
a("s_add_u32 s55, s55, s33")
a("s_lshl_b32 s55, s55, 11")
a("s_add_u32 s50, s55, %d" % E2)
a("s_add_u32 s51, s55, %d" % (E2 + BOFF))
make_tags(False)
a("v_mov_b32 v31, v%d" % V_TB)
a("v_mov_b32 v6, 0")
a("v_mov_b32 v29, 1")
a("ds_write_b32 v6, v6 offset:%d" % L_CNT)
a("s_mov_b32 s%d, %d" % (S_TO, Cfg.timeout))
NPF = [0]
a("s_lshl_b32 s52, s33, 2")
a("s_add_u32 s52, s52, s34")
a("v_lshlrev_b32 v24, 7, v%d" % V_LANE)
a("s_mul_i32 s53, s32, %d" % (512 * 896))
a("s_mul_i32 s63, s52, %d" % (28 * 128))
a("s_add_u32 s53, s53, s63")
a("s_mov_b32 s14, %d" % (4096 * 896))
a("s_mov_b32 s15, 0x20000")
a("s_and_b32 s13, s13, 0xffff")
def wo_prefetch():
    if Cfg.pf:
        a("s_mov_b32 exec_hi, 0")
        a("s_mov_b32 exec_lo, 0x0fffffff")
        a("buffer_load_dword v250, v24, s[12:15], s53 offen")
        setexec(-1)
        NPF[0] = 1
SEGS = [x for x in (Cfg.ka, Cfg.kb, Cfg.kc) if x > 0]
pos = Cfg.k0
if Cfg.pace:
    for t in loads[pos:]:
        a("s_waitcnt vmcnt(%d)" % (Cfg.pace - 1))
        emit(t)
    stamp(13)
else:
    a("s_barrier")
    for n in SEGS:
        for t in loads[pos:pos + n]:
            emit(t)
        pos += n
        a("s_barrier")
        a("s_barrier")
    stamp(13)
    for t in loads[pos:]:
        emit(t)
if Cfg.pfat < 0:
    wo_prefetch()
if Cfg.kdma:
    a("v_lshlrev_b32 v25, 6, v%d" % V_I16)
    a("v_lshl_add_u32 v25, v%d, 4, v25" % V_GRP)
    a("v_add_u32 v25, s49, v25")
    a("s_waitcnt vmcnt(%d)" % (8 + NPF[0]))
    for s in range(8):
        a("ds_read_b128 v[%d:%d], v25 offset:%d" % (V_K + 4 * s, V_K + 4 * s + 3, 1024 * s))
stamp(1)
a("s_waitcnt lgkmcnt(0)")
if Cfg.prio:
    a("s_setprio 2")
a("s_barrier")
stamp(2)
for s in range(8):
    a("ds_read_b128 v[%d:%d], v7 offset:%d" % (V_QF + 4 * s, V_QF + 4 * s + 3, L_Q + 64 * s))
a("s_mov_b32 s63, %s" % f32(0.0625 * LOG2E))
a("s_waitcnt vmcnt(%d)" % (8 + NPF[0]))
S = V_ACC
for s in range(8):
    a("s_waitcnt lgkmcnt(%d)" % (0 if Cfg.stamps else 7 - s))
    a("v_mfma_f32_16x16x32_bf16 v[%d:%d], v[%d:%d], v[%d:%d], %s" % (S, S + 3, V_K + 4 * s, V_K + 4 * s + 3, V_QF + 4 * s, V_QF + 4 * s + 3, "0" if s == 0 else "v[%d:%d]" % (S, S + 3)))
a("v_cvt_pk_bf16_f32 v8, v%d, v%d" % (S, S + 1))
a("v_cvt_pk_bf16_f32 v9, v%d, v%d" % (S + 2, S + 3))
a("v_lshlrev_b32 v10, 16, v8")
a("v_and_b32 v11, 0xffff0000, v8")
a("v_lshlrev_b32 v12, 16, v9")
a("v_and_b32 v13, 0xffff0000, v9")
a("v_max3_f32 v14, v10, v11, v12")
a("v_max_f32 v14, v14, v13")
bfly("v_max_f32", 14, 15, 16)
bfly("v_max_f32", 14, 15, 32)
a("v_mul_f32 v14, s63, v14")
for r in range(4):
    a("v_fma_f32 v%d, v%d, s63, -v14" % (10 + r, 10 + r))
for r in range(4):
    a("v_exp_f32 v%d, v%d" % (10 + r, 10 + r))
for r in range(4):
    a("v_cvt_pk_bf16_f32 v%d, v%d, v%d" % (16 + r, 10 + r, 10 + r))
O = V_ACC + 4
BB = V_QF
def bbuild(r):
    for rho in range(4):
        a("v_and_b32 v%d, v%d, v%d" % (BB + 4 * r + rho, 16 + r, V_M + rho))
def pv(r):
    a("s_waitcnt vmcnt(%d)" % (6 - 2 * r + NPF[0]))
    for h in range(2):
        n = 2 * r + h
        a("v_mfma_f32_16x16x32_bf16 v[%d:%d], v[%d:%d], v[%d:%d], %s" % (O + 4 * h, O + 4 * h + 3, V_V + 4 * n, V_V + 4 * n + 3, BB + 4 * r, BB + 4 * r + 3, "0" if r == 0 else "v[%d:%d]" % (O + 4 * h, O + 4 * h + 3)))
    if r == Cfg.pfat:
        wo_prefetch()
bbuild(0)
bbuild(1)
stamp(5)
pv(0)
bbuild(2)
a("v_add_f32 v15, v10, v11")
a("v_add_f32 v20, v12, v13")
pv(1)
bbuild(3)
a("v_add_f32 v15, v15, v20")
pv(2)
bfly("v_add_f32", 15, 20, 16)
pv(3)
stamp(6)
bfly("v_add_f32", 15, 20, 32)
a("ds_write_b64 v23, v[14:15] offset:%d" % L_ML)
a("ds_write_b128 v%d, v[%d:%d] offset:%d" % (V_LW, O, O + 3, L_O))
a("ds_write_b128 v%d, v[%d:%d] offset:%d" % (V_LW, O + 4, O + 7, L_O + 1024))
setexec(1)
a("ds_add_u32 v6, v29 offset:%d" % L_CNT)
setexec(-1)
a("s_cmp_ge_u32 s34, 2")
a("s_cbranch_scc1 L_att_exit")
a.label("L_cnt")
a("ds_read_b32 v8, v6 offset:%d" % L_CNT)
a("s_sub_u32 s%d, s%d, 1" % (S_TO, S_TO))
a("s_cbranch_scc1 L_end")
a("s_waitcnt lgkmcnt(0)")
a("v_cmp_gt_u32 vcc, 4, v8")
a("s_cbranch_vccnz L_cnt")
stamp(3)
for w in range(4):
    a("ds_read_b64 v[%d:%d], v22 offset:%d" % (10 + 2 * w, 11 + 2 * w, L_ML + 512 * w))
for w in range(4):
    a("ds_read_b128 v[%d:%d], v21 offset:%d" % (V_G + 4 * w, V_G + 4 * w + 3, L_O + 2048 * w))
a("s_movk_i32 s63, 0xff")
a("s_waitcnt lgkmcnt(4)" if not Cfg.stamps else "s_waitcnt lgkmcnt(0)")
a("v_max3_f32 v18, v10, v12, v14")
a("v_max_f32 v18, v18, v16")
for w in range(4):
    a("v_sub_f32 v%d, v%d, v18" % (10 + 2 * w, 10 + 2 * w))
for w in range(4):
    a("v_exp_f32 v%d, v%d" % (10 + 2 * w, 10 + 2 * w))
a("v_mul_f32 v19, v10, v11")
for w in range(1, 4):
    a("v_fmac_f32 v19, v%d, v%d" % (10 + 2 * w, 11 + 2 * w))
a("v_rcp_f32 v20, v19")
a("v_log_f32 v9, v19")
a("s_waitcnt lgkmcnt(0)")
for r in range(4):
    a("v_mul_f32 v%d, v10, v%d" % (24 + r, V_G + r))
for w in range(1, 4):
    for r in range(4):
        a("v_fmac_f32 v%d, v%d, v%d" % (24 + r, 10 + 2 * w, V_G + 4 * w + r))
a("v_add_f32 v9, v9, v18")
for r in range(4):
    a("v_mul_f32 v%d, v%d, v20" % (24 + r, 24 + r))
a("v_bfi_b32 v30, s63, v%d, v9" % V_T8)
a("v_cvt_pk_bf16_f32 v28, v24, v25")
a("v_cvt_pk_bf16_f32 v29, v26, v27")
a("buffer_store_dwordx4 v[28:31], v21, s[36:39], s50 offen")
a("buffer_store_dwordx4 v[28:31], v21, s[36:39], s51 offen sc1")
a("v_mov_b32 v8, 1")
setexec(1)
a("ds_add_u32 v6, v8 offset:%d" % L_CNT)
setexec(-1)
stamp(4)
a("s_branch L_end")

a.label("L_att_exit")
if Cfg.fpf:
    a("s_cmp_lt_u32 s33, 16")
    a("s_cbranch_scc1 L_end")
    a("s_sub_u32 s52, s33, 16")
    a("s_lshl_b32 s52, s52, 1")
    a("s_add_u32 s52, s52, s34")
    a("s_sub_u32 s52, s52, 2")
    a("s_mul_i32 s54, s32, %d" % (224 * 896))
    a("s_mul_i32 s63, s52, %d" % (49 * 128))
    a("s_add_u32 s54, s54, s63")
    a("s_mul_i32 s49, s32, 448")
    a("s_mul_i32 s63, s52, %d" % (14 * 3584))
    a("s_add_u32 s49, s49, s63")
    a("v_lshrrev_b32 v25, 2, v%d" % V_LANE)
    a("v_mul_u32_u24 v25, 3584, v25")
    a("v_and_b32 v26, 3, v%d" % V_LANE)
    a("v_mul_u32_u24 v26, 148, v26")
    a("v_add_u32 v25, v25, v26")
    a("s_mov_b32 s18, %d" % (448 * 3584))
    a("s_mov_b32 s19, 0x20000")
    a("s_and_b32 s17, s17, 0xffff")
    a("s_mov_b32 s22, %d" % (1792 * 896))
    a("s_mov_b32 s23, 0x20000")
    a("s_and_b32 s21, s21, 0xffff")
    a("s_mov_b32 exec_hi, 0x00ffffff")
    a("buffer_load_dword v250, v25, s[16:19], s49 offen")
    a("s_mov_b32 exec_hi, 0x0001ffff")
    a("buffer_load_dword v250, v24, s[20:23], s54 offen")
a("s_branch L_end")

a.label("L_tail")
a.flush()
a("s_cmp_lg_u32 s34, 4")
a("s_cbranch_scc1 L_tail_common")
a("v_lshrrev_b32 v4, 3, v%d" % V_I16)
a("v_mul_u32_u24 v4, 56, v4")
a("v_mul_u32_u24 v5, 14, v%d" % V_GRP)
a("v_add_u32 v4, v4, v5")
a("v_lshlrev_b32 v5, 13, v4")
a("v_and_b32 v6, 7, v%d" % V_I16)
a("v_lshl_add_u32 v5, v6, 4, v5")
a("v_lshlrev_b32 v4, 1, v4")
a("v_lshlrev_b32 v6, 6, v%d" % V_I16)
a("v_lshl_add_u32 v6, v%d, 4, v6" % V_GRP)
a("s_lshr_b32 s50, s33, 3")
a("s_mul_i32 s52, s50, %d" % (112 * 8192))
a("s_lshl_b32 s53, s32, 10")
a("s_add_u32 s52, s52, s53")
a("s_and_b32 s53, s33, 7")
a("s_lshl_b32 s53, s53, 7")
a("s_add_u32 s52, s52, s53")
a("s_mul_i32 s51, s50, 224")
a("s_mov_b32 s42, %d" % (448 * 8192))
a("s_mov_b32 s43, 0x20000")
a("s_mov_b32 s46, 896")
a("s_mov_b32 s47, 0x20000")
a("s_setprio 3")
a("s_waitcnt lgkmcnt(0)")
a("s_mov_b32 s44, s4")
a("s_and_b32 s45, s5, 0xffff")
a("s_mov_b32 s40, s10")
a("s_and_b32 s41, s11, 0xffff")
stamp(11)
WQ, BQ, XR14 = 32, 88, 144
a("buffer_load_dwordx4 v[%d:%d], v6, s[44:47], 0 offen" % (V_G, V_G + 3))
a("buffer_load_dwordx4 v[%d:%d], v4, s[44:47], s51 offen" % (XR14, XR14 + 3))
a("buffer_load_dwordx3 v[%d:%d], v4, s[44:47], s51 offen offset:16" % (XR14 + 4, XR14 + 6))
for t in range(14):
    a("buffer_load_dwordx4 v[%d:%d], v5, s[40:43], s52 offen%s" % (WQ + 4 * t, WQ + 4 * t + 3, NTQ))
    if t < 13:
        a("s_add_u32 s52, s52, 8192")
stamp(12)
a.label("L_tail_common")
a("s_waitcnt lgkmcnt(0)")
if Cfg.b0:
    a("s_barrier")
a("s_load_dwordx4 s[28:31], s[26:27], %d" % EPOCH)
srd(36, 26, WS_SIZE)
a("s_mov_b32 s%d, %d" % (S_TO, Cfg.timeout))
setmask(S_ODD, 0xAAAAAAAAAAAAAAAA)
setmask(S_M4, 0xF0F0F0F0F0F0F0F0)
setmask(S_M8, 0xFF00FF00FF00FF00)
setmask(S_HI, 0xFFFFFFFF00000000)
a("v_mov_b32 v%d, 1.0" % V_ONE)
a("v_lshrrev_b32 v8, 2, v%d" % V_LANE)
a("v_lshlrev_b32 v8, 11, v8")
a("v_and_b32 v9, 3, v%d" % V_LANE)
a("v_lshl_add_u32 v%d, v9, 4, v8" % V_GA)
make_masks()
a("v_lshl_add_u32 v8, v%d, 3, v%d" % (V_GRP, V_I16))
a("v_lshlrev_b32 v%d, 4, v8" % V_PUB)
a("s_lshl_b32 s52, s32, 13")
a("s_add_u32 s52, s52, %d" % E1)
a("s_lshl_b32 s53, s33, 8")
a("s_add_u32 s53, s53, s52")
a("v_and_b32 v8, 31, v%d" % V_LANE)
a("s_lshl_b32 s63, s35, 5")
a("v_add_u32 v8, s63, v8")
a("v_lshrrev_b32 v9, 5, v%d" % V_LANE)
a("v_lshlrev_b32 v9, 12, v9")
a("v_lshl_add_u32 v24, v8, 4, v9")
a("v_and_b32 v9, 7, v8")
a("v_sub_u32 v8, v8, v9")
a("v_lshl_add_u32 v8, v8, 2, v9")
a("v_lshlrev_b32 v25, 1, v8")
a("s_cmp_lg_u32 s34, 4")
a("s_cbranch_scc1 L_notq")
a("s_add_u32 s49, s53, %d" % BOFF)
a("s_waitcnt vmcnt(14)")
stamp(1)
XF, XV, XE, XP = 152, 160, 176, 216
for k in range(4):
    a("v_lshlrev_b32 v%d, 16, v%d" % (XF + 2 * k, V_G + k))
    a("v_and_b32 v%d, 0xffff0000, v%d" % (XF + 2 * k + 1, V_G + k))
fill = []
for k in range(7):
    fill.append("v_lshlrev_b32 v%d, 16, v%d" % (XV + 2 * k, XR14 + k))
    fill.append("v_and_b32 v%d, 0xffff0000, v%d" % (XV + 2 * k + 1, XR14 + k))
s1, s2 = ln_stats([XF + k for k in range(8)], 0x3FFF3FFF3FFF3FFF, 8, fill)
ln_apply([XV + k for k in range(14)], [XE + k for k in range(14)], [XP + k for k in range(7)], s1, s2)
for t in range(14):
    a("v_cvt_pk_bf16_f32 v%d, v%d, v%d" % (XE + t, XE + t, XE + t))
make_tags()
stamp(6)
QA = V_ACC
for t in range(15):
    if t < 14:
        for rho in range(4):
            a("v_and_b32 v%d, v%d, v%d" % (BQ + 4 * t + rho, XE + t, V_M + rho))
    if t >= 1:
        u = t - 1
        a("s_waitcnt vmcnt(%d)" % (13 - u))
        a("v_mfma_f32_16x16x32_bf16 v[%d:%d], v[%d:%d], v[%d:%d], %s" % (QA, QA + 3, WQ + 4 * u, WQ + 4 * u + 3, BQ + 4 * u, BQ + 4 * u + 3, "0" if u == 0 else "v[%d:%d]" % (QA, QA + 3)))
stamp(2)
a("s_movk_i32 s63, 0xfff")
for r in range(4):
    a("v_mov_b32_dpp v%d, v%d row_ror:8%s" % (8 + r, QA + r, DPPM))
for r in range(4):
    a("v_mov_b32 v%d, v%d" % (12 + r, 8 + r))
for r in range(4):
    a("v_permlane32_swap_b32 v%d, v%d" % (8 + r, 12 + r))
for r in range(4):
    a("v_add_f32 v%d, v%d, v%d" % (12 + r, 12 + r, QA + r))
tag12(28, 12)
setexec(0x0000000000FF00FF)
a("buffer_store_dwordx4 v[28:31], v%d, s[36:39], s53 offen" % V_PUB)
a("buffer_store_dwordx4 v[28:31], v%d, s[36:39], s49 offen sc1" % V_PUB)
setexec(-1)
a("s_setprio 0")
stamp(3)
a("s_branch L_e1")
a.label("L_notq")
a.flush()
make_tags()
if Cfg.pretouch:
    a("s_cmp_lg_u32 s34, 5")
    a("s_cbranch_scc1 L_nopre")
    a("s_lshl_b32 s55, s32, 5")
    a("s_add_u32 s55, s55, s33")
    a("s_lshl_b32 s55, s55, 11")
    a("v_lshlrev_b32 v8, 7, v%d" % V_I16)
    a("s_add_u32 s63, s55, %d" % E2)
    a("v_add_u32 v9, s63, v8")
    a("s_add_u32 s63, s55, %d" % E3A)
    a("v_add_u32 v10, s63, v8")
    a("v_and_b32 v8, 128, v8")
    a("v_add_u32 v8, s53, v8")
    a("v_cmp_eq_u32 vcc, 1, v%d" % V_GRP)
    a("v_cndmask_b32 v9, v9, v10, vcc")
    a("v_cndmask_b32 v9, v9, v8, s[%d:%d]" % (S_HI, S_HI + 1))
    a("buffer_load_dword v26, v9, s[36:39], 0 offen sc1")
    a.label("L_nopre")
if Cfg.tlb:
    a("s_cmp_lg_u32 s34, 6")
    a("s_cbranch_scc1 L_notlb")
    a("s_mul_i32 s48, s32, %d" % (512 * 896))
    a("s_add_u32 s49, s48, %d" % (511 * 896))
    a("s_mul_i32 s50, s32, %d" % (224 * 896))
    a("s_mov_b32 s51, %d" % (447 * 3584))
    a("v_mov_b32 v8, 0")
    setexec(1)
    srd(40, 12, 4096 * 896)
    a("buffer_load_dword v26, v8, s[40:43], s48 offen")
    a("buffer_load_dword v26, v8, s[40:43], s49 offen")
    srd(40, 20, 1792 * 896)
    a("buffer_load_dword v26, v8, s[40:43], s50 offen")
    srd(40, 16, 448 * 3584)
    a("buffer_load_dword v26, v8, s[40:43], 0 offen")
    a("buffer_load_dword v26, v8, s[40:43], s51 offen")
    srd(40, 18, 1792 * 2)
    a("buffer_load_dword v26, v8, s[40:43], 0 offen")
    setexec(-1)
    a.label("L_notlb")
if Cfg.cpf:
    a("s_cmp_lg_u32 s34, 7")
    a("s_cbranch_scc1 L_nocpf")
    a("s_getpc_b64 s[48:49]")
    a.label("L_pc")
    a("s_sub_u32 s48, s48, L_pc-%s_kernel" % NAME)
    a("s_subb_u32 s49, s49, 0")
    a("v_lshlrev_b32 v8, 7, v%d" % V_LANE)
    a("v_min_u32 v9, L_exit-%s_kernel-8192, v8" % NAME)
    a("global_load_dword v26, v8, s[48:49]")
    a("v_add_u32 v9, 8192, v9")
    a("global_load_dword v26, v9, s[48:49]")
    a.label("L_nocpf")
if Cfg.pace:
    a("s_sleep %d" % Cfg.e1w)
a.label("L_e1")
if not Cfg.pace:
    a("s_barrier")
sel_init(32)
P = Cfg.npipe if Cfg.pace else len(SEGS)
GS = [V_S2 + 8 * k for k in range(P)]
XC = 12
def e1_issue(k):
    a("s_add_u32 s53, s52, s%d" % S_SEL)
    for u in range(2):
        a("buffer_load_dwordx4 v[%d:%d], v24, s[36:39], s53 offen offset:%d sc1" % (GS[k] + 4 * u, GS[k] + 4 * u + 3, 2048 * u))
    sel_step(True)
if Cfg.pace:
    for k in range(P):
        e1_issue(k)
        if k < P - 1:
            a("s_sleep %d" % Cfg.ps1)
    a.label("L_e1poll")
    for k in range(P):
        a("s_waitcnt vmcnt(%d)" % (2 * (P - 1)))
        check12(2, XC, "L_e1ok", GS[k])
        e1_issue(k)
    a("s_branch L_e1poll")
else:
    for k in range(P):
        a("s_barrier")
        e1_issue(k)
        a("s_barrier")
    stamp(7)
    for k in range(P):
        a("s_waitcnt vmcnt(%d)" % (2 * (P - 1 - k)))
        check12(2, XC, "L_e1ok", GS[k])
    a.label("L_e1poll")
    e1_issue(0)
    a("s_waitcnt vmcnt(0)")
    check12(2, XC, "L_e1ok", GS[0])
    a("s_branch L_e1poll")
a.label("L_e1ok")
for r in range(4):
    a("v_add_f32 v%d, v%d, v%d" % (XC + r, XC + r, XC + 4 + r))
for r in range(4):
    a("v_mov_b32 v%d, v%d" % (XC + 4 + r, XC + r))
for r in range(4):
    a("v_permlane32_swap_b32 v%d, v%d" % (XC + r, XC + 4 + r))
for r in range(4):
    a("v_add_f32 v%d, v%d, v%d" % (XC + r, XC + r, XC + 4 + r))
a("v_cvt_pk_bf16_f32 v8, v%d, v%d" % (XC, XC + 1))
a("v_cvt_pk_bf16_f32 v9, v%d, v%d" % (XC + 2, XC + 3))
a("s_mov_b32 exec_hi, 0")
a("ds_write_b16 v25, v8 offset:%d" % (L_Q))
a("ds_write_b16_d16_hi v25, v8 offset:%d" % (L_Q + 16))
a("ds_write_b16 v25, v9 offset:%d" % (L_Q + 32))
a("ds_write_b16_d16_hi v25, v9 offset:%d" % (L_Q + 48))
setexec(-1)
a("s_waitcnt lgkmcnt(0)")
stamp(4)
a("s_barrier")
a("s_cmp_ge_u32 s33, 30")
a("s_cbranch_scc1 L_end")
a("s_cmp_ge_u32 s33, 23")
a("s_cbranch_scc1 L_R")
a("s_cmp_ge_u32 s33, 16")
a("s_cbranch_scc1 L_F")

def poll(name, issue, nload, check, dual, sets=1, shadow=None):
    D = Cfg.pd
    ok = name + "_ok"
    for r in range(D):
        issue(r % sets)
        if r < D - 1 and Cfg.pds:
            a("s_sleep %d" % Cfg.pds)
    if shadow:
        shadow()
    a.label(name)
    n = sets if sets > 1 else 1
    for k in range(n):
        a("s_waitcnt vmcnt(%d)" % (nload * (D - 1)))
        check(k, ok)
        sel_step(True if dual else None)
        if not dual and Cfg.xls:
            a("s_sleep %d" % Cfg.xls)
        issue(k)
    a("s_branch %s" % name)
    a.label(ok)

def wait_cnt(n):
    lab = a.newlabel("L_wc")
    a("v_mov_b32 v5, 0")
    a.label(lab)
    a("ds_read_b32 v7, v5 offset:%d" % L_CNT)
    a("s_sub_u32 s%d, s%d, 1" % (S_TO, S_TO))
    a("s_cbranch_scc1 L_end")
    a("s_sleep 1")
    a("s_waitcnt lgkmcnt(0)")
    a("v_cmp_gt_u32 vcc, %d, v7" % n)
    a("s_cbranch_vccnz %s" % lab)

a("s_lshl_b32 s48, s33, 1")
a("s_lshr_b32 s49, s35, 1")
a("s_add_u32 s48, s48, s49")
a("s_lshl_b32 s50, s32, 9")
a("s_bfe_u32 s49, s48, 0x10001")
a("s_lshl_b32 s49, s49, 8")
a("s_add_u32 s50, s50, s49")
a("s_lshr_b32 s49, s48, 4")
a("s_lshl_b32 s49, s49, 7")
a("s_add_u32 s50, s50, s49")
a("s_bfe_u32 s49, s48, 0x20002")
a("s_lshl_b32 s49, s49, 5")
a("s_add_u32 s50, s50, s49")
a("s_and_b32 s49, s48, 1")
a("s_lshl_b32 s49, s49, 2")
a("s_add_u32 s50, s50, s49")
a("s_mul_i32 s50, s50, 896")
a("s_and_b32 s49, s35, 1")
a("s_lshl_b32 s49, s49, 9")
a("s_add_u32 s50, s50, s49")
a("v_mul_u32_u24 v6, 7168, v%d" % V_GRP)
a("v_lshl_add_u32 v6, v%d, 4, v6" % V_I16)
srd(40, 12, 4096 * 896)
wait_cnt(Cfg.ocnt)
if Cfg.os:
    a("s_sleep %d" % Cfg.os)
for q in range(4):
    a("buffer_load_dwordx4 v[%d:%d], v6, s[40:43], s50 offen offset:%d%s" % (V_W + 4 * q, V_W + 4 * q + 3, 896 * q, NTL))
a("s_bitcmp1_b32 s35, 0")
a("s_cbranch_scc0 L_nomask")
setexec(0x00FF00FF00FF00FF)
a.label("L_nomask")
for q in range(4):
    a("buffer_load_dwordx4 v[%d:%d], v6, s[40:43], s50 offen offset:%d%s" % (V_W + 16 + 4 * q, V_W + 16 + 4 * q + 3, 896 * q + 256, NTL))
setexec(-1)
a("s_lshl_b32 s54, s32, 16")
a("s_lshl_b32 s63, s48, 6")
a("s_add_u32 s54, s54, s63")
a("s_lshl_b32 s55, s32, 5")
a("s_add_u32 s55, s55, s48")
a("s_lshl_b32 s55, s55, 11")
a("s_lshl_b32 s49, s49, 1")
a("s_add_u32 s55, s55, s49")
a("s_add_u32 s50, s55, %d" % E3A)
a("s_add_u32 s51, s55, %d" % (E3A + BOFF))
a("v_cmp_lt_u32 s[6:7], 7, v%d" % V_I16)
a("v_add_u32 v4, %d, v%d" % (512 - 128, V_PUB))
a("v_cndmask_b32 v4, v%d, v4, s[6:7]" % V_PUB)
a("s_mov_b64 s[8:9], -1")
a("s_bitcmp1_b32 s35, 0")
a("s_cselect_b32 s9, 0x00ff00ff, s9")
sel_init()
stamp(1)
if Cfg.stamps:
    a("s_waitcnt vmcnt(0)")
    stamp(13)
E2S = [V_S1 + 8 * k for k in range(Cfg.pd)]
def e2_issue(k):
    a("s_add_u32 s48, s54, s%d" % S_SEL)
    a("s_add_u32 s49, s48, %d" % (E2 + 16 * 2048))
    a("s_add_u32 s48, s48, %d" % E2)
    a("buffer_load_dwordx4 v[%d:%d], v%d, s[36:39], s48 offen sc1" % (E2S[k], E2S[k] + 3, V_GA))
    a("buffer_load_dwordx4 v[%d:%d], v%d, s[36:39], s49 offen sc1" % (E2S[k] + 4, E2S[k] + 7, V_GA))
def e2_check(k, ok):
    G = E2S[k]
    a("v_xor_b32 v10, v%d, v%d" % (G + 2, V_T8))
    a("v_xor_b32 v11, v%d, v%d" % (G + 6, V_T8))
    a("v_xor_b32 v12, v%d, v%d" % (G + 3, V_TB))
    a("v_xor_b32 v13, v%d, v%d" % (G + 7, V_TB))
    a("v_or_b32 v14, v10, v11")
    a("v_and_b32 v14, 0xff, v14")
    a("v_or3_b32 v14, v14, v12, v13")
    a("v_cmp_ne_u32 vcc, 0, v14")
    for t in range(2):
        a("v_lshlrev_b32 v%d, 16, v%d" % (16 + 4 * t, G + 4 * t))
        a("v_and_b32 v%d, 0xffff0000, v%d" % (17 + 4 * t, G + 4 * t))
        a("v_lshlrev_b32 v%d, 16, v%d" % (18 + 4 * t, G + 4 * t + 1))
        a("v_and_b32 v%d, 0xffff0000, v%d" % (19 + 4 * t, G + 4 * t + 1))
    a("s_cbranch_vccz %s" % ok)
poll("L_e2poll", e2_issue, 2, e2_check, True, sets=Cfg.pd)
stamp(5)
a("v_max_f32 v14, v10, v11")
a("v_max_f32_dpp v14, v14, v14 row_ror:8%s" % DPPM)
a("v_max_f32_dpp v14, v14, v14 row_ror:4%s" % DPPM)
bfly("v_max_f32", 14, 15, 16)
bfly("v_max_f32", 14, 15, 32)
a("v_sub_f32 v10, v10, v14")
a("v_sub_f32 v11, v11, v14")
a("v_exp_f32 v10, v10")
a("v_exp_f32 v11, v11")
a("s_movk_i32 s63, 0xfff")
for r in range(4):
    a("v_mul_f32 v%d, v%d, v10" % (16 + r, 16 + r))
a("v_add_f32 v12, v10, v11")
for r in range(4):
    a("v_fmac_f32 v%d, v%d, v11" % (16 + r, 20 + r))
a("v_add_f32_dpp v12, v12, v12 row_ror:8%s" % DPPM)
a("v_add_f32_dpp v12, v12, v12 row_ror:4%s" % DPPM)
a("v_mfma_f32_16x16x4_f32 v[%d:%d], v12, v%d, 0" % (V_ACC + 4, V_ACC + 7, V_ONE))
reduce16([16, 17, 18, 19], 13)
a("v_mfma_f32_16x16x4_f32 v[%d:%d], v13, v%d, 0" % (V_ACC, V_ACC + 3, V_ONE))
a("v_rcp_f32 v12, v%d" % (V_ACC + 4))
for r in range(4):
    a("v_mul_f32 v%d, v%d, v12" % (16 + r, V_ACC + r))
for r in range(4):
    a("v_cvt_pk_bf16_f32 v%d, v%d, v%d" % (16 + r, 16 + r, 16 + r))
A2 = V_ACC + 8
BB = V_BB
def omf(qq):
    for b in range(2):
        a("v_mfma_f32_16x16x32_bf16 v[%d:%d], v[%d:%d], v[%d:%d], %s" % (A2 + 4 * b, A2 + 4 * b + 3, V_W + 16 * b + 4 * qq, V_W + 16 * b + 4 * qq + 3, BB + 4 * qq, BB + 4 * qq + 3, "0" if qq == 0 else "v[%d:%d]" % (A2 + 4 * b, A2 + 4 * b + 3)))
for q in range(4):
    for rho in range(4):
        a("v_and_b32 v%d, v%d, v%d" % (BB + 4 * q + rho, 16 + q, V_M + rho))
    if q >= 1:
        omf(q - 1)
omf(3)
for r in range(4):
    a("v_cndmask_b32 v%d, v%d, v%d, s[6:7]" % (24 + r, A2 + r, A2 + 4 + r))
tag12(28, 24)
a("s_mov_b64 exec, s[8:9]")
a("buffer_store_dwordx4 v[28:31], v4, s[36:39], s50 offen")
a("buffer_store_dwordx4 v[28:31], v4, s[36:39], s51 offen sc1")
setexec(-1)
stamp(6)
if Cfg.w2l:
    a("s_lshl_b32 s48, s33, 2")
    a("s_add_u32 s48, s48, s35")
    a("s_mul_i32 s48, s48, %d" % (25 * 128))
    a("s_mul_i32 s63, s32, %d" % (224 * 896))
    a("s_add_u32 s48, s48, s63")
    a("v_lshlrev_b32 v24, 7, v%d" % V_LANE)
    srd(40, 20, 1792 * 896)
    setexec(0x1ffffff)
    a("buffer_load_dword v250, v24, s[40:43], s48 offen")
a("s_branch L_end")

a.label("L_R")
a.flush()
a("s_sub_u32 s50, s33, 23")
a("s_lshl_b32 s52, s50, 2")
a("s_add_u32 s52, s52, s35")
a("s_lshl_b32 s54, s32, 16")
a("s_lshl_b32 s63, s52, 6")
a("s_add_u32 s54, s54, s63")
a("s_mul_i32 s53, s52, %d" % Cfg.ss)
a("s_add_u32 s53, s53, %d" % E3X)
a("s_lshl_b32 s51, s32, 12")
a("s_add_u32 s51, s51, s53")
a("s_lshl_b32 s55, s32, 11")
a("s_lshl_b32 s63, s52, 6")
a("s_add_u32 s55, s55, s63")
a("s_add_u32 s55, s55, %d" % E3L)
a("v_lshlrev_b32 v4, 4, v%d" % V_GRP)
a("s_lshr_b32 s63, s52, 1")
a("s_lshl_b32 s63, s63, 6")
a("s_and_b32 s48, s52, 1")
a("s_lshl_b32 s48, s48, 3")
a("s_add_u32 s63, s63, s48")
a("v_lshl_add_u32 v%d, v%d, 4, s63" % (V_XA, V_GRP))
srd(44, 4, 896)
a("buffer_load_dwordx2 v[%d:%d], v%d, s[44:47], 0 offen" % (V_X + 1, V_X + 2, V_XA))
a("v_and_b32 v8, 7, v%d" % V_I16)
a("v_lshlrev_b32 v8, 12, v8")
a("v_lshl_add_u32 v%d, v%d, 4, v8" % (V_LW, V_GRP))
if Cfg.rpf:
    a("s_mul_i32 s48, s32, %d" % (224 * 896))
    a("s_mul_i32 s63, s52, %d" % (56 * 128))
    a("s_add_u32 s48, s48, s63")
    a("s_mul_i32 s49, s32, 448")
    a("s_mul_i32 s63, s52, %d" % (16 * 3584))
    a("s_add_u32 s49, s49, s63")
    a("v_lshrrev_b32 v25, 2, v%d" % V_LANE)
    a("v_mul_u32_u24 v25, 3584, v25")
    a("v_and_b32 v26, 3, v%d" % V_LANE)
    a("v_mul_u32_u24 v26, 148, v26")
    a("v_add_u32 v25, v25, v26")
    a("v_lshlrev_b32 v24, 7, v%d" % V_LANE)
    srd(40, 16, 448 * 3584)
    srd(8, 20, 1792 * 896)
wait_cnt(6)
if Cfg.rpf:
    a("buffer_load_dword v250, v25, s[40:43], s49 offen")
    a("s_mov_b32 exec_hi, 0x00ffffff")
    a("buffer_load_dword v250, v24, s[8:11], s48 offen")
    setexec(-1)
sel_init()
if Cfg.rs:
    a("s_sleep %d" % Cfg.rs)
def e3a_issue(k):
    a("s_add_u32 s48, s54, s%d" % S_SEL)
    a("s_add_u32 s49, s48, %d" % (E3A + 16 * 2048))
    a("s_add_u32 s48, s48, %d" % E3A)
    a("buffer_load_dwordx4 v[%d:%d], v%d, s[36:39], s48 offen sc1" % (V_S2, V_S2 + 3, V_GA))
    a("buffer_load_dwordx4 v[%d:%d], v%d, s[36:39], s49 offen sc1" % (V_S2 + 4, V_S2 + 7, V_GA))
poll("L_e3apoll", e3a_issue, 2, lambda k, ok: check12(2, 12, ok, V_S2), True)
stamp(7)
for r in range(4):
    a("v_add_f32 v%d, v%d, v%d" % (12 + r, 12 + r, 16 + r))
reduce16([12, 13, 14, 15], 9)
a("v_mfma_f32_16x16x4_f32 v[%d:%d], v9, v%d, 0" % (V_ACC, V_ACC + 3, V_ONE))
a("s_movk_i32 s63, 0xfff")
setexec(0x0001000100010001)
tag12(28, V_ACC)
a("buffer_store_dwordx4 v[28:31], v4, s[36:39], s51 offen sc1")
if Cfg.lh:
    a("buffer_store_dwordx4 v[28:31], v4, s[36:39], s55 offen")
setexec(-1)
stamp(8)
a("s_cmp_lg_u32 s50, s32")
a("s_cbranch_scc1 L_end")
a.label("L_hpoll")
a("s_sleep 2")
a("buffer_load_dwordx4 v[%d:%d], v%d, s[36:39], s53 offen sc1" % (V_G, V_G + 3, V_LW))
a("s_waitcnt vmcnt(0)")
check12(1, 12, "L_hok")
retry("L_hpoll", False)
a.label("L_hok")
stamp(9)
for pat in ("quad_perm:[1,0,3,2]", "quad_perm:[2,3,0,1]", "row_half_mirror"):
    for r in range(4):
        a("v_add_f32_dpp v%d, v%d, v%d %s%s" % (12 + r, 12 + r, 12 + r, pat, DPPM))
for r in range(4):
    a("v_mov_b32 v%d, v%d" % (V_ACC + r, 12 + r))
a("v_lshlrev_b32 v%d, 16, v%d" % (V_X, V_X + 1))
a("v_and_b32 v%d, 0xffff0000, v%d" % (V_X + 1, V_X + 1))
a("v_and_b32 v%d, 0xffff0000, v%d" % (V_X + 3, V_X + 2))
a("v_lshlrev_b32 v%d, 16, v%d" % (V_X + 2, V_X + 2))
def round_add_round(src, add):
    a("v_cvt_pk_bf16_f32 v10, v%d, v%d" % (src, src + 1))
    a("v_cvt_pk_bf16_f32 v11, v%d, v%d" % (src + 2, src + 3))
    a("v_lshlrev_b32 v12, 16, v10")
    a("v_and_b32 v13, 0xffff0000, v10")
    a("v_lshlrev_b32 v14, 16, v11")
    a("v_and_b32 v15, 0xffff0000, v11")
    for r in range(4):
        a("v_add_f32 v%d, v%d, v%d" % (12 + r, 12 + r, add + r))
    a("v_cvt_pk_bf16_f32 v10, v12, v13")
    a("v_cvt_pk_bf16_f32 v11, v14, v15")
round_add_round(V_ACC, V_X)
a("v_lshlrev_b32 v%d, 16, v10" % (V_X))
a("v_and_b32 v%d, 0xffff0000, v10" % (V_X + 1))
a("v_lshlrev_b32 v%d, 16, v11" % (V_X + 2))
a("v_and_b32 v%d, 0xffff0000, v11" % (V_X + 3))
a("s_lshl_b32 s48, s52, 6")
a("s_add_u32 s48, s48, %d" % E4)
for t in range(1, 4):
    a("s_add_u32 s%d, s48, %d" % (48 + t, t * 16 * 2048))
for r in range(4):
    a("v_mov_b32 v%d, v%d" % (V_G + 12 + r, V_T + r))
srd(44, 22, 896)
if Cfg.e4s:
    a("s_sleep %d" % Cfg.e4s)
XR = V_S1
def e4_issue(k):
    for t in range(4):
        if t == 3:
            a("s_mov_b32 exec_hi, 0")
        a("buffer_load_dwordx4 v[%d:%d], v%d, s[36:39], s%d offen sc1" % (V_G + 4 * t, V_G + 4 * t + 3, V_GA, 48 + t))
    setexec(-1)
poll("L_e4poll", e4_issue, 4, lambda k, ok: check12(4, XR, ok), False)
stamp(10)
for r in range(4):
    a("v_add_f32 v%d, v%d, v%d" % (XR + r, XR + r, XR + 4 + r))
    a("v_add_f32 v%d, v%d, v%d" % (XR + 8 + r, XR + 8 + r, XR + 12 + r))
for r in range(4):
    a("v_add_f32 v%d, v%d, v%d" % (XR + r, XR + r, XR + 8 + r))
reduce16([XR, XR + 1, XR + 2, XR + 3], 9)
a("v_mfma_f32_16x16x4_f32 v[%d:%d], v9, v%d, 0" % (V_ACC, V_ACC + 3, V_ONE))
round_add_round(V_ACC, V_X)
setexec(0x0001000100010001)
a("buffer_store_dwordx2 v[10:11], v%d, s[44:47], 0 offen" % V_XA)
a("s_cmp_lg_u32 s52, 0")
a("s_cbranch_scc1 L_noep")
setexec(1)
a("v_mov_b32 v9, 0")
for k in range(4):
    a("v_mov_b32 v%d, s%d" % (12 + k, 28 + k))
a("buffer_store_dwordx4 v[12:15], v9, s[36:39], 0 offen offset:%d" % EPOCH)
a.label("L_noep")
setexec(-1)
stamp(14)
a("s_branch L_end")

a.label("L_F")
a.flush()
a("s_mul_i32 s50, s32, 7")
a("s_add_u32 s50, s50, s33")
a("s_sub_u32 s50, s50, 16")
a("s_lshl_b32 s51, s50, 2")
a("s_add_u32 s51, s51, s35")
a("v_lshrrev_b32 v8, 3, v%d" % V_I16)
a("v_sub_u32 v8, v%d, v8" % V_I16)
a("v_min_u32 v8, 13, v8")
a("v_lshlrev_b32 v8, 6, v8")
a("v_lshl_add_u32 v23, v%d, 4, v8" % V_GRP)
if Cfg.lin:
    setexec(0x8080808080808080)
    a("v_mov_b32 v23, 896")
    for k in range(4):
        a("v_mov_b32 v%d, 0" % (12 + k))
    a("ds_write_b128 v23, v[12:15] offset:%d" % L_H)
    setexec(-1)
a("v_bfe_u32 v8, v%d, 2, 3" % V_LANE)
a("v_min_u32 v8, 6, v8")
a("v_and_b32 v9, 3, v%d" % V_LANE)
a("v_mul_u32_u24 v10, %d, v8" % Cfg.ss)
a("v_lshl_add_u32 v10, v9, 4, v10")
a("v_lshrrev_b32 v11, 5, v%d" % V_LANE)
a("v_lshl_add_u32 v%d, v11, 12, v10" % V_XA)
a("s_mul_i32 s63, s35, 7")
a("v_add_u32 v8, s63, v8")
a("v_lshrrev_b32 v10, 1, v8")
a("v_lshlrev_b32 v10, 6, v10")
a("v_and_b32 v8, 1, v8")
a("v_lshl_add_u32 v10, v8, 3, v10")
a("v_lshl_add_u32 v24, v9, 4, v10")
a("v_and_b32 v10, 1, v%d" % V_GRP)
a("v_and_b32 v11, 1, v%d" % V_I16)
a("v_lshlrev_b32 v25, 2, v10")
a("v_and_b32 v26, 2, v%d" % V_GRP)
a("v_add_u32 v25, v25, v26")
a("v_mul_u32_u24 v26, 896, v25")
a("v_lshl_add_u32 v26, v%d, 4, v26" % V_I16)
a("v_add_u32 v25, v25, v11")
a("v_lshlrev_b32 v25, 1, v25")
a("v_bfe_u32 v27, v%d, 1, 1" % V_I16)
a("v_mul_u32_u24 v27, %d, v27" % (224 * 64))
a("v_lshl_add_u32 v27, v%d, 9, v27" % V_GRP)
a("v_lshrrev_b32 v12, 2, v%d" % V_I16)
a("v_lshl_add_u32 v27, v12, 6, v27")
a("v_lshl_add_u32 v27, v11, 3, v27")
a("s_lshl_b32 s63, s35, 4")
a("v_add_u32 v%d, s63, v27" % V_W1A)
a("v_lshrrev_b32 v27, 2, v%d" % V_LANE)
a("v_mul_u32_u24 v27, 3584, v27")
a("v_and_b32 v12, 3, v%d" % V_LANE)
a("v_lshl_add_u32 v27, v12, 4, v27")
a("s_lshl_b32 s63, s35, 11")
a("v_lshl_add_u32 v%d, v%d, 4, s63" % (V_LW, V_LANE))
srd(40, 16, 448 * 3584)
srd(44, 20, 1792 * 896)
srd(8, 4, 896)
srd(12, 18, 1792 * 2)
a("s_mul_i32 s52, s35, %d" % (112 * 3584))
a("s_lshl_b32 s63, s50, 6")
a("s_add_u32 s52, s52, s63")
a("s_mul_i32 s53, s35, 7168")
a("s_add_u32 s53, s53, %d" % L_W1)
a("s_mul_i32 s54, s51, %d" % (8 * 896))
a("s_lshl_b32 s55, s51, 4")
a("s_mul_i32 s24, s35, %d" % (7 * Cfg.ss))
a("s_add_u32 s24, s24, %d" % E3X)
a("s_add_u32 s25, s24, 8192")
a("s_add_u32 s26, s24, 16384")
a("s_add_u32 s27, s24, 24576")
wait_cnt(Cfg.fcnt)
if Cfg.fs:
    a("s_sleep %d" % Cfg.fs)
stamp(1)
for t in range(7):
    a("s_mov_b32 m0, s53")
    a("buffer_load_dwordx4 v27, s[40:43], s52 offen%s lds" % NTW)
    if t < 6:
        a("s_add_u32 s52, s52, %d" % (16 * 3584))
        a("s_add_u32 s53, s53, 1024")
def w2_loads():
    for b in range(4):
        if b == 3:
            setexec(0x00FF00FF00FF00FF)
        for q in range(2):
            a("buffer_load_dwordx4 v[%d:%d], v26, s[44:47], s54 offen offset:%d%s" % (V_W + 8 * b + 4 * q, V_W + 8 * b + 4 * q + 3, 896 * q + 256 * b, NTL))
    setexec(-1)
if not Cfg.w2l:
    w2_loads()
a("buffer_load_dwordx2 v[%d:%d], v24, s[8:11], 0 offen" % (V_X + 1, V_X + 2))
a("buffer_load_ushort v%d, v25, s[12:15], s55 offen" % V_B1)
a("s_lshl_b32 s48, s50, 11")
a("s_lshl_b32 s63, s35, 10")
a("s_add_u32 s48, s48, s63")
a("s_add_u32 s48, s48, %d" % E4)
a("v_cmp_lt_u32 s[6:7], 7, v%d" % V_I16)
a("v_add_u32 v4, %d, v%d" % (512 - 128, V_PUB))
a("v_cndmask_b32 v4, v%d, v4, s[6:7]" % V_PUB)
a("s_lshl_b32 s63, s35, 10")
a("v_lshl_add_u32 v21, v%d, 4, s63" % V_LANE)
D1 = V_S2
V_CS = 251
def ffn1(AF, dst, fill=()):
    fill = list(fill)
    def f(n):
        for _ in range(n):
            if fill:
                a(fill.pop(0))
    for m in range(7):
        a("v_mfma_f32_16x16x32_bf16 v[%d:%d], v[%d:%d], v[%d:%d], 0" % (D1 + 4 * m, D1 + 4 * m + 3, AF, AF + 3, V_W1F + 4 * m, V_W1F + 4 * m + 3))
    return
def ffn1_tail(dst, t):
    a("v_mov_b32 v%d, 0" % dst)
    setexec(0x0000FF00000000FF)
    a("v_add_f32 v%d, v%d, v%d" % (dst, D1 + 0, D1 + 4 + 1))
    a("v_add_f32 v%d, v%d, v%d" % (t, D1 + 8 + 2, D1 + 12 + 3))
    a("v_add_f32 v%d, v%d, v%d" % (dst, dst, t))
    setexec(0xFF00000000FF0000)
    a("v_add_f32 v%d, v%d, v%d" % (dst, D1 + 16, D1 + 20 + 1))
    a("v_add_f32 v%d, v%d, v%d" % (dst, dst, D1 + 24 + 2))
    setexec(-1)
    a("v_add_f32_dpp v%d, v%d, v%d row_ror:8%s" % (dst, dst, dst, DPPM))
    a("v_mfma_f32_16x16x4_f32 v[%d:%d], v%d, v%d, 0" % (V_ACC, V_ACC + 3, dst, V_ONE))
def ffn1_sel(dst, t):
    a("v_cndmask_b32 v%d, v%d, v%d, s[%d:%d]" % (dst, V_ACC, V_ACC + 1, S_ODD, S_ODD + 1))
    a("v_cndmask_b32 v%d, v%d, v%d, s[%d:%d]" % (t, V_ACC + 2, V_ACC + 3, S_ODD, S_ODD + 1))
    a("v_cndmask_b32 v%d, v%d, v%d, s[%d:%d]" % (dst, dst, t, S_HI, S_HI + 1))
AF = 176
if not Cfg.e3e:
    a("s_waitcnt vmcnt(0)")
    stamp(5)
    a("s_barrier")
def f_shadow():
    if Cfg.e3e:
        a("s_waitcnt vmcnt(%d)" % (4 * Cfg.pd))
        stamp(5)
        a("s_barrier")
    for m in range(7):
        for u in range(2):
            a("ds_read_b64_tr_b16 v[%d:%d], v%d offset:%d" % (V_W1F + 4 * m + 2 * u, V_W1F + 4 * m + 2 * u + 1, V_W1A, L_W1 + 2048 * m + 256 * u))
    a("v_lshlrev_b32 v%d, 16, v%d" % (V_B1, V_B1))
    a("v_lshlrev_b32 v%d, 16, v%d" % (V_X, V_X + 1))
    a("v_and_b32 v%d, 0xffff0000, v%d" % (V_X + 1, V_X + 1))
    a("v_and_b32 v%d, 0xffff0000, v%d" % (V_X + 3, V_X + 2))
    a("v_lshlrev_b32 v%d, 16, v%d" % (V_X + 2, V_X + 2))
    if Cfg.lin:
        for k in range(4):
            a("v_mov_b32 v%d, 0x3f803f80" % (AF + k))
        a("s_waitcnt lgkmcnt(0)")
        ffn1(AF, V_CS)
        ffn1_tail(V_CS, 9)
        ffn1_sel(V_CS, 9)
def e3x_issue(k):
    for t in range(4):
        a("buffer_load_dwordx4 v[%d:%d], v%d, s[36:39], s%d offen sc1" % (V_G + 4 * t, V_G + 4 * t + 3, V_XA, 24 + t))
if Cfg.lh:
    f_shadow()
    a("v_min_u32 v22, 27, v%d" % V_LANE)
    a("v_lshlrev_b32 v22, 4, v22")
    a("s_lshl_b32 s49, s32, 11")
    a("s_mul_i32 s63, s35, 448")
    a("s_add_u32 s49, s49, s63")
    a("s_add_u32 s49, s49, %d" % E3L)
    a("s_mov_b32 s1, %d" % Cfg.bthr)
    a.label("L_lh")
    a("buffer_load_dwordx4 v[%d:%d], v22, s[36:39], s49 offen sc1" % (V_G, V_G + 3))
    a("s_sub_u32 s1, s1, 1")
    a("s_cbranch_scc1 L_lhok")
    a("s_waitcnt vmcnt(0)")
    check12(1, XR, "L_lhok")
    a("s_branch L_lh")
    a.label("L_lhok")
    if Cfg.xs:
        a("s_sleep %d" % Cfg.xs)
    poll("L_e3xpoll", e3x_issue, 4, lambda k, ok: check12(4, XR, ok), False)
else:
    poll("L_e3xpoll", e3x_issue, 4, lambda k, ok: check12(4, XR, ok), False, shadow=f_shadow)
stamp(9)
if Cfg.w2l:
    w2_loads()
for r in range(4):
    a("v_add_f32 v%d, v%d, v%d" % (XR + r, XR + r, XR + 4 + r))
    a("v_add_f32 v%d, v%d, v%d" % (XR + 8 + r, XR + 8 + r, XR + 12 + r))
for r in range(4):
    a("v_add_f32 v%d, v%d, v%d" % (XR + r, XR + r, XR + 8 + r))
for r in range(4):
    a("v_mov_b32 v%d, v%d" % (XR + 4 + r, XR + r))
for r in range(4):
    a("v_permlane32_swap_b32 v%d, v%d" % (XR + r, XR + 4 + r))
for r in range(4):
    a("v_add_f32 v%d, v%d, v%d" % (XR + r, XR + r, XR + 4 + r))
round_add_round(XR, V_X)
a("ds_write_b64 v24, v[10:11] offset:%d" % L_H)
a("s_waitcnt lgkmcnt(0)")
a("s_barrier")
stamp(10)
PR = V_S1
if Cfg.lin:
    a("ds_read_b128 v[%d:%d], v23 offset:%d" % (AF, AF + 3, L_H))
    a("s_waitcnt lgkmcnt(0)")
    ffn1(AF, 22)
    for k in range(4):
        a("v_lshlrev_b32 v%d, 16, v%d" % (PR + 2 * k, AF + k))
        a("v_and_b32 v%d, 0xffff0000, v%d" % (PR + 2 * k + 1, AF + k))
    ffn1_tail(22, 20)
    s1, s2 = ln_stats([PR + k for k in range(8)], 0x7F7F7F7F7F7F7F7F, 5)
    ffn1_sel(22, 20)
    bf16r(s2, s2)
    a("v_rcp_f32 v%d, v%d" % (s2, s2))
    a("v_fma_f32 v8, -v%d, v%d, v22" % (s1, V_CS))
    a("s_mov_b32 s63, %s" % f32(-LOG2E))
    a("v_mul_f32 v8, v8, v%d" % s2)
else:
    a("ds_read_b128 v[%d:%d], v23 offset:%d" % (PR + 8, PR + 11, L_H))
    a("s_waitcnt lgkmcnt(0)")
    for k in range(4):
        a("v_lshlrev_b32 v%d, 16, v%d" % (PR + 2 * k, PR + 8 + k))
        a("v_and_b32 v%d, 0xffff0000, v%d" % (PR + 2 * k + 1, PR + 8 + k))
    layernorm([PR + k for k in range(8)], AF, 0x7F7F7F7F7F7F7F7F, 5)
    ffn1(AF, 8)
    ffn1_tail(8, 9)
    a("s_mov_b32 s63, %s" % f32(-LOG2E))
    ffn1_sel(8, 9)
bf16r(8, 8)
a("v_add_f32 v8, v8, v%d" % V_B1)
bf16r(8, 8)
a("v_mul_f32 v9, s63, abs(v8)")
a("v_exp_f32 v9, v9")
a("v_max_f32 v17, 0, v8")
bf16r(9, 9)
a("v_add_f32 v10, 1.0, v9")
a("v_add_f32 v11, -1.0, v10")
a("v_log_f32 v12, v10")
a("v_rcp_f32 v13, v11")
a("v_cmp_eq_f32 vcc, 0, v11")
a("v_mul_f32 v12, %s, v12" % f32(0.6931471805599453))
a("v_mul_f32 v13, v13, v9")
a("v_mul_f32 v12, v12, v13")
a("v_cndmask_b32 v12, v12, v9, vcc")
bf16r(12, 12)
a("v_add_f32 v12, v12, v17")
bf16r(12, 12)
a("v_mul_f32 v13, %s, v12" % f32(-2.0 * LOG2E))
a("v_exp_f32 v13, v13")
a("v_mul_f32 v16, v12, v12")
a("v_add_f32 v14, 1.0, v13")
a("v_sub_f32 v15, 1.0, v13")
a("v_rcp_f32 v14, v14")
a("v_mul_f32 v16, %s, v16" % f32(-1.0 / 3.0))
a("v_cmp_gt_f32 vcc, %s, v12" % f32(2.0 ** -6))
a("v_fma_f32 v16, v16, v12, v12")
a("v_mul_f32 v14, v14, v15")
a("v_cndmask_b32 v14, v14, v16, vcc")
bf16r(14, 14)
a("v_mul_f32 v14, v14, v8")
a("v_cvt_pk_bf16_f32 v14, v14, v14")
a("s_movk_i32 s63, 0xfff")
for q in range(2):
    for rho in range(4):
        a("v_and_b32_dpp v%d, v14, v%d quad_perm:[%d,%d,%d,%d]%s" % (BB + 4 * q + rho, V_M + rho, q, q, 2 + q, 2 + q, DPPM))
if Cfg.w2l:
    stamp(12)
    a("s_waitcnt vmcnt(0)")
for q in range(2):
    for b in range(4):
        a("v_mfma_f32_16x16x32_bf16 v[%d:%d], v[%d:%d], v[%d:%d], %s" % (V_ACC + 4 * b, V_ACC + 4 * b + 3, V_W + 8 * b + 4 * q, V_W + 8 * b + 4 * q + 3, BB + 4 * q, BB + 4 * q + 3, "0" if q == 0 else "v[%d:%d]" % (V_ACC + 4 * b, V_ACC + 4 * b + 3)))
setexec(0x00FF00FF00FF00FF)
a("ds_write_b128 v%d, v[%d:%d] offset:%d" % (V_LW, V_ACC, V_ACC + 3, L_F))
a("s_not_b64 exec, exec")
a("ds_write_b128 v%d, v[%d:%d] offset:%d" % (V_LW, V_ACC + 4, V_ACC + 7, L_F))
a("s_not_b64 exec, exec")
a("ds_write_b128 v%d, v[%d:%d] offset:%d" % (V_LW, V_ACC + 8, V_ACC + 11, L_F + 1024))
a("s_not_b64 exec, exec")
a("ds_write_b128 v%d, v[%d:%d] offset:%d" % (V_LW, V_ACC + 12, V_ACC + 15, L_F + 1024))
setexec(-1)
a("s_waitcnt lgkmcnt(0)")
stamp(13)
a("s_barrier")
a("s_cmp_ge_u32 s35, 2")
a("s_cbranch_scc1 L_end")
for w in range(4):
    a("ds_read_b128 v[%d:%d], v21 offset:%d" % (PR + 4 * w, PR + 4 * w + 3, L_F + 2048 * w))
a("s_cmp_eq_u32 s35, 1")
a("s_cselect_b32 exec_hi, 0x00ff00ff, -1")
a("s_waitcnt lgkmcnt(0)")
for r in range(4):
    a("v_add_f32 v%d, v%d, v%d" % (PR + r, PR + r, PR + 4 + r))
    a("v_add_f32 v%d, v%d, v%d" % (PR + 8 + r, PR + 8 + r, PR + 12 + r))
for r in range(4):
    a("v_add_f32 v%d, v%d, v%d" % (PR + r, PR + r, PR + 8 + r))
tag12(28, PR)
a("buffer_store_dwordx4 v[28:31], v4, s[36:39], s48 offen sc1")
setexec(-1)
stamp(14)
a.label("L_end")
if Cfg.stamps:
    setexec(-1)
    stamp(15)
    a("s_waitcnt lgkmcnt(0)")
    a("s_lshl_b32 s48, s2, 3")
    a("s_add_u32 s48, s48, s34")
    a("s_lshl_b32 s48, s48, 6")
    a("s_add_u32 s48, s48, %d" % STAMP)
    a("v_mov_b32 v9, 0")
    setexec(1)
    for i in range(16):
        a("v_mov_b32 v10, s%d" % (64 + 2 * i))
        a("buffer_store_dword v10, v9, s[36:39], s48 offen offset:%d" % (4 * i))
    if Cfg.dbgwg >= 0:
        a("s_cmp_lg_u32 s2, %d" % Cfg.dbgwg)
        a("s_cbranch_scc1 L_exit")
        a("s_cmp_lg_u32 s34, %d" % Cfg.dbgwave)
        a("s_cbranch_scc1 L_exit")
        if Cfg.spin:
            a.label("L_spin")
            a("s_memrealtime s[94:95]")
            a("s_waitcnt lgkmcnt(0)")
            a("s_sub_u32 s63, s94, s64")
            a("s_cmp_lt_u32 s63, %d" % Cfg.spin)
            a("s_cbranch_scc1 L_spin")
        srd(44, 24, 256)
        for i in range(16):
            a("s_sub_u32 s63, s%d, s64" % (64 + 2 * i))
            a("s_cmp_eq_u32 s%d, 0" % (64 + 2 * i))
            a("s_cselect_b32 s63, 0, s63")
            a("v_mov_b32 v10, s63")
            a("buffer_store_dword v10, v9, s[44:47], 0 offen offset:%d" % (4 * i))
a.label("L_exit")
a("s_endpgm")
a.raw('''.section .rodata,"a"
.p2align 6
.amdhsa_kernel %s_kernel
  .amdhsa_next_free_vgpr %d
  .amdhsa_next_free_sgpr 100
  .amdhsa_accum_offset %d
  .amdhsa_group_segment_fixed_size 0
  .amdhsa_kernarg_size 96
  .amdhsa_user_sgpr_count 2
  .amdhsa_user_sgpr_kernarg_segment_ptr 1
  .amdhsa_system_sgpr_workgroup_id_x 1
  .amdhsa_float_denorm_mode_32 3
.end_amdhsa_kernel''' % (NAME, NVGPR, NVGPR))
open(sys.argv[1], "w").write(a.text())
```

```python
import sys, struct
from asmlib import Asm
NAME = "sequential_preLN__sliding_block_cached__dense_activation_mish__decode"

class Cfg:
    stamps = False
    nt = True
    ntw = False
    timeout = 200000
    ocnt = 6
    vs = 0
    nearly = 7
    pfat = 1
    n1 = 10
    pf = True
    cpf = True
    ntl = False
    depth = 0
    ss = 128
    forceB = False
    pretouch = True
    fs = 0
    tlb = 0
    bthr = 64
    b0 = True
    npipe = 3
    ps0 = 0
    ps1 = 4
    kpat = 0
    kdma = True
    pd = 1
    pds = 2
    fpf = False
    prio = True
    xls = 0
    pace = 0
    e1w = 20
    fcnt = 6
    w2l = False
    lh = True
    e3e = False
    lin = True
    rpf = False
    rs = 0
    os = 0
    ka = 3
    kb = 0
    kc = 0
    k0 = 12
    xs = 0
    e4s = 8
    rnd = True
    dbgwg = -1
    dbgwave = 0
    spin = 0
for arg in sys.argv[2:]:
    k, v = arg.split('=')
    setattr(Cfg, k, type(getattr(Cfg, k))(int(v)))

NT = " nt" if Cfg.nt else ""
NTW = " nt" if Cfg.ntw else ""
NTQ = NT
NTL = " nt" if Cfg.ntl else ""
EPOCH = 0x0
E3X = 0x1000
E3L = 0x9000
E1 = 0x10000
E2 = 0x20000
E3A = 0xA0000
BOFF = 0x120000
E4 = 0x240000
STAMP = 0x300000
WS_SIZE = 0x400000
L_Q = 0
L_ML = 1024
L_CNT = 3072
L_H = 3136
L_O = 4096
L_F = L_O
L_K = 12288
L_W1 = L_K
LDS_BYTES = 45056

LOG2E = 1.4426950408889634
def f32(x):
    return "0x%08x" % struct.unpack('<I', struct.pack('<f', x))[0]

a = Asm()
a.raw("; @launch grid=(256,1,1) block=(512,1,1) lds=%d" % LDS_BYTES)
a.raw('.amdgcn_target "amdgcn-amd-amdhsa--gfx950"\n.text\n.globl %s_kernel\n.p2align 8\n.type %s_kernel,@function\n%s_kernel:' % (NAME, NAME, NAME))

DPPM = " row_mask:0xf bank_mask:0xf"
def stamp(i):
    if Cfg.stamps:
        a("s_memrealtime s[%d:%d]" % (64 + 2 * i, 65 + 2 * i))

def srd(dst, ptr, nbytes):
    a("s_mov_b32 s%d, s%d" % (dst, ptr))
    a("s_and_b32 s%d, s%d, 0xffff" % (dst + 1, ptr + 1))
    a("s_mov_b32 s%d, %d" % (dst + 2, nbytes))
    a("s_mov_b32 s%d, 0x20000" % (dst + 3))

def setexec(mask):
    if mask == -1:
        a("s_mov_b64 exec, -1")
    else:
        a("s_mov_b32 exec_lo, 0x%08x" % (mask & 0xffffffff))
        a("s_mov_b32 exec_hi, 0x%08x" % (mask >> 32))

def setmask(s, mask):
    a("s_mov_b32 s%d, 0x%08x" % (s, mask & 0xffffffff))
    a("s_mov_b32 s%d, 0x%08x" % (s + 1, mask >> 32))

def bfly(op, v, t, which):
    a("v_mov_b32 v%d, v%d" % (t, v))
    a("v_permlane%d_swap_b32 v%d, v%d" % (which, v, t))
    a("%s v%d, v%d, v%d" % (op, v, v, t))

def bf16r(dst, src):
    a("v_cvt_pk_bf16_f32 v%d, v%d, v%d" % (dst, src, src))
    a("v_and_b32 v%d, 0xffff0000, v%d" % (dst, dst))

S_ODD, S_B1, S_HI = 56, 58, 60
S_M4, S_M8 = 58, 96
S_TO = 62
S_SEL = 3

S_CNT = 33
def sel_step(thr):
    a("s_sub_u32 s%d, s%d, 1" % (S_TO, S_TO))
    a("s_cbranch_scc1 L_end")
    if thr is not None and not Cfg.forceB:
        a("s_cmp_lt_u32 s%d, s1" % S_TO)
        a("s_cselect_b32 s%d, %d, 0" % (S_SEL, BOFF))

def retry(loop, dual):
    sel_step(True if dual else None)
    a("s_branch %s" % loop)

def sel_init(thr=None):
    a("s_mov_b32 s%d, %d" % (S_SEL, BOFF if Cfg.forceB else 0))
    a("s_sub_u32 s1, s%d, %d" % (S_TO, Cfg.bthr if thr is None else thr))

def ln_stats(f, valid, T, fill=None):
    e = [T + k for k in range(8)]
    s1, s2, t1, t2 = T + 8, T + 9, T + 10, T + 11
    fill = list(fill or [])
    def filler():
        if fill:
            a(fill.pop(0))
    a("v_readlane_b32 s63, v%d, 0" % f[0])
    a("v_mov_b32 v%d, 0" % s1)
    a("v_mov_b32 v%d, 0" % s2)
    setexec(valid)
    for k in range(8):
        a("v_subrev_f32 v%d, s63, v%d" % (e[k], f[k]))
    a("v_add_f32 v%d, v%d, v%d" % (s1, e[0], e[1]))
    a("v_mul_f32 v%d, v%d, v%d" % (s2, e[0], e[0]))
    a("v_add_f32 v%d, v%d, v%d" % (t1, e[2], e[3]))
    a("v_mul_f32 v%d, v%d, v%d" % (t2, e[1], e[1]))
    for k in range(4, 8):
        a("v_add_f32 v%d, v%d, v%d" % (s1 if k % 2 == 0 else t1, s1 if k % 2 == 0 else t1, e[k]))
    for k in range(2, 8):
        a("v_fmac_f32 v%d, v%d, v%d" % (s2 if k % 2 == 0 else t2, e[k], e[k]))
    a("v_add_f32 v%d, v%d, v%d" % (s1, s1, t1))
    a("v_add_f32 v%d, v%d, v%d" % (s2, s2, t2))
    setexec(-1)
    for i, r in enumerate((8, 4, 2, 1)):
        a("v_add_f32_dpp v%d, v%d, v%d row_ror:%d%s" % (s1, s1, s1, r, DPPM))
        a("v_add_f32_dpp v%d, v%d, v%d row_ror:%d%s" % (s2, s2, s2, r, DPPM))
        filler()
    for which in (16, 32):
        a("v_mov_b32 v%d, v%d" % (t1, s1))
        a("v_mov_b32 v%d, v%d" % (t2, s2))
        filler()
        a("v_permlane%d_swap_b32 v%d, v%d" % (which, s1, t1))
        a("v_permlane%d_swap_b32 v%d, v%d" % (which, s2, t2))
        a("v_add_f32 v%d, v%d, v%d" % (s1, s1, t1))
        a("v_add_f32 v%d, v%d, v%d" % (s2, s2, t2))
    a("v_mul_f32 v%d, %s, v%d" % (s1, f32(1.0 / 448), s1))
    a("v_mul_f32 v%d, %s, v%d" % (s2, f32(1.0 / 448), s2))
    a("v_fma_f32 v%d, -v%d, v%d, v%d" % (s2, s1, s1, s2))
    a("v_add_f32 v%d, s63, v%d" % (s1, s1))
    a("v_max_f32 v%d, 0, v%d" % (s2, s2))
    a("v_cvt_pk_bf16_f32 v%d, v%d, v%d" % (t1, s1, s2))
    a("v_and_b32 v%d, 0xffff0000, v%d" % (s2, t1))
    a("v_lshlrev_b32 v%d, 16, v%d" % (s1, t1))
    a("v_add_f32 v%d, %s, v%d" % (s2, f32(1e-5), s2))
    bf16r(s2, s2)
    a("v_sqrt_f32 v%d, v%d" % (s2, s2))
    while fill:
        filler()
    return s1, s2

def ln_apply(f, e, pk, s1, s2):
    n = len(f)
    for k in range(n):
        a("v_sub_f32 v%d, v%d, v%d" % (e[k], f[k], s1))
    bf16r(s2, s2)
    a("v_rcp_f32 v%d, v%d" % (s2, s2))
    for k in range(n // 2):
        a("v_cvt_pk_bf16_f32 v%d, v%d, v%d" % (pk[k], e[2 * k], e[2 * k + 1]))
    for k in range(n // 2):
        a("v_lshlrev_b32 v%d, 16, v%d" % (e[2 * k], pk[k]))
        a("v_and_b32 v%d, 0xffff0000, v%d" % (e[2 * k + 1], pk[k]))
    for k in range(n):
        a("v_mul_f32 v%d, v%d, v%d" % (e[k], e[k], s2))

def layernorm(f, out, valid, T):
    e = [T + k for k in range(8)]
    pk = [T + 12 + k for k in range(4)]
    s1, s2 = ln_stats(f, valid, T, ["v_mov_b32 v%d, 0" % (out + i) for i in range(4)])
    ln_apply(f, e, pk, s1, s2)
    setexec(valid)
    for k in range(4):
        a("v_cvt_pk_bf16_f32 v%d, v%d, v%d" % (out + k, e[2 * k], e[2 * k + 1]))
    setexec(-1)

def quad_transpose_reduce(v, dst, T):
    k0, g0, k1, g1 = T, T + 1, T + 2, T + 3
    a("v_cndmask_b32 v%d, v%d, v%d, s[%d:%d]" % (g0, v[1], v[0], S_ODD, S_ODD + 1))
    a("v_cndmask_b32 v%d, v%d, v%d, s[%d:%d]" % (g1, v[3], v[2], S_ODD, S_ODD + 1))
    a("v_cndmask_b32 v%d, v%d, v%d, s[%d:%d]" % (k0, v[0], v[1], S_ODD, S_ODD + 1))
    a("v_cndmask_b32 v%d, v%d, v%d, s[%d:%d]" % (k1, v[2], v[3], S_ODD, S_ODD + 1))
    a("v_add_f32_dpp v%d, v%d, v%d quad_perm:[1,0,3,2]%s" % (k0, g0, k0, DPPM))
    a("v_add_f32_dpp v%d, v%d, v%d quad_perm:[1,0,3,2]%s" % (k1, g1, k1, DPPM))
    a("v_cndmask_b32 v%d, v%d, v%d, s[%d:%d]" % (g0, k1, k0, S_B1, S_B1 + 1))
    a("v_cndmask_b32 v%d, v%d, v%d, s[%d:%d]" % (dst, k0, k1, S_B1, S_B1 + 1))
    a("v_add_f32_dpp v%d, v%d, v%d quad_perm:[2,3,0,1]%s" % (dst, g0, dst, DPPM))

S_B2, S_B3 = S_B1, 4
def reduce16(v, dst):
    for r in range(4):
        a("v_add_f32_dpp v%d, v%d, v%d row_ror:8%s" % (v[r], v[r], v[r], DPPM))
    for r in range(4):
        a("v_add_f32_dpp v%d, v%d, v%d row_ror:4%s" % (v[r], v[r], v[r], DPPM))
    a("v_cndmask_b32 v%d, v%d, v%d, s[%d:%d]" % (v[0], v[0], v[1], S_M4, S_M4 + 1))
    a("v_cndmask_b32 v%d, v%d, v%d, s[%d:%d]" % (v[2], v[2], v[3], S_M4, S_M4 + 1))
    a("v_cndmask_b32 v%d, v%d, v%d, s[%d:%d]" % (dst, v[0], v[2], S_M8, S_M8 + 1))

def check12(n, X, oklab, G=None):
    if G is None:
        G = V_G
    for t in range(n):
        for r in range(4):
            a("v_xor_b32 v%d, v%d, v%d" % (X + 4 * t + r, G + 4 * t + r, V_T + r))
    regs = [X + i for i in range(4 * n)]
    acc = [5, 6, 7]
    cur = regs[:]
    outs = []
    i = 0
    while len(cur) >= 3 and i < 3:
        a("v_or3_b32 v%d, v%d, v%d, v%d" % (acc[i], cur[0], cur[1], cur[2])); cur = cur[3:]; outs.append(acc[i]); i += 1
    i = 0
    while len(cur) >= 2:
        o = outs[i % len(outs)]
        a("v_or3_b32 v%d, v%d, v%d, v%d" % (o, o, cur[0], cur[1])); cur = cur[2:]; i += 1
    rest = outs + cur
    while len(rest) > 1:
        if len(rest) >= 3:
            a("v_or3_b32 v%d, v%d, v%d, v%d" % (acc[0], rest[0], rest[1], rest[2])); rest = [acc[0]] + rest[3:]
        else:
            a("v_or_b32 v%d, v%d, v%d" % (acc[0], rest[0], rest[1])); rest = [acc[0]]
    a("v_and_b32 v%d, 0xfff, v%d" % (acc[0], rest[0]))
    a("v_cmp_ne_u32 vcc, 0, v%d" % acc[0])
    a("s_cbranch_vccz %s" % oklab)

V_I16, V_GRP, V_LANE = 1, 2, 3
V_M, V_T = 196, 200
V_TA, V_TB, V_T8, V_ONE = 204, 205, 206, 207
V_B1, V_X = 208, 209
V_GA = 213
V_PUB = 214
V_XA = 215
V_ACC = 216
V_G = 232
V_W1A, V_LW = 248, 249
NVGPR = 252
V_K, V_V, V_QF = 32, 64, 96
V_W = 32
V_W1F = 64
V_BB = 96
V_S1 = 112
V_S2 = 144

def tag12(dst, src):
    for r in range(4):
        if Cfg.rnd:
            a("v_add_u32 v%d, 0x800, v%d" % (dst + r, src + r))
            src_r = dst + r
        else:
            src_r = src + r
    for r in range(4):
        a("v_bfi_b32 v%d, s63, v%d, v%d" % (dst + r, V_T + r, (dst if Cfg.rnd else src) + r))

def make_masks():
    a("v_and_b32 v10, 1, v%d" % V_I16)
    a("v_lshlrev_b32 v10, 4, v10")
    a("v_mov_b32 v11, 0xffff")
    a("v_lshlrev_b32 v11, v10, v11")
    a("v_bfe_u32 v10, v%d, 1, 2" % V_I16)
    for rho in range(4):
        a("v_cmp_eq_u32 vcc, %d, v10" % rho)
        a("v_cndmask_b32 v%d, 0, v11, vcc" % (V_M + rho))

def make_tags(full=True):
    a("s_waitcnt lgkmcnt(0)")
    for k in range(4):
        a("s_add_u32 s%d, s%d, 1" % (28 + k, 28 + k))
    if full:
        for k in range(4):
            a("s_and_b32 s63, s%d, 0xfff" % (28 + k))
            a("v_mov_b32 v%d, s63" % (V_T + k))
    a("v_mov_b32 v%d, s31" % V_TB)
    a("s_and_b32 s63, s30, 0xff")
    a("v_mov_b32 v%d, s63" % V_T8)

if Cfg.stamps:
    for i in range(16):
        a("s_mov_b64 s[%d:%d], 0" % (64 + 2 * i, 65 + 2 * i))
stamp(0)
a("s_load_dwordx16 s[4:19], s[0:1], 0")
a("s_load_dwordx8 s[20:27], s[0:1], 64")
a("s_cmp_ge_u32 s2, 256")
a("s_cbranch_scc1 L_exit")
a("v_lshrrev_b32 v4, 6, v0")
a("v_and_b32 v%d, 63, v0" % V_LANE)
a("v_readfirstlane_b32 s34, v4")
a("v_and_b32 v%d, 15, v0" % V_I16)
a("v_bfe_u32 v%d, v0, 4, 2" % V_GRP)
a("s_and_b32 s32, s2, 7")
a("s_lshr_b32 s33, s2, 3")
a("s_and_b32 s35, s34, 3")
a("s_cmp_ge_u32 s34, 4")
a("s_cbranch_scc1 L_tail")

a("s_lshl_b32 s48, s32, 22")
a("s_lshl_b32 s49, s33, 15")
a("s_add_u32 s48, s48, s49")
a("s_lshl_b32 s49, s34, 13")
a("s_add_u32 s48, s48, s49")
a("s_add_u32 s48, s48, %d" % (6144 * 512))
if Cfg.kdma:
    a("v_lshrrev_b32 v4, 2, v%d" % V_LANE)
    a("v_lshlrev_b32 v4, 9, v4")
    a("v_and_b32 v5, 3, v%d" % V_LANE)
    a("v_lshl_add_u32 v4, v5, 4, v4")
    a("s_add_u32 s49, s49, %d" % L_K)
else:
    a("v_lshlrev_b32 v4, 9, v%d" % V_I16)
    a("v_lshl_add_u32 v4, v%d, 4, v4" % V_GRP)
a("v_lshlrev_b32 v5, 11, v%d" % V_GRP)
a("v_lshl_add_u32 v5, v%d, 4, v5" % V_I16)
a("s_mov_b32 s42, 33554432")
a("s_mov_b32 s43, 0x20000")
a("s_mov_b32 s46, 33554432")
a("s_mov_b32 s47, 0x20000")
a("s_waitcnt lgkmcnt(0)")
a("s_mov_b32 s40, s6")
a("s_and_b32 s41, s7, 0xffff")
a("s_mov_b32 s44, s8")
a("s_and_b32 s45, s9, 0xffff")
stamp(11)
if Cfg.b0:
    a("s_barrier")
nissued = [0]
def paced(text):
    if Cfg.depth and nissued[0] >= Cfg.depth and nissued[0] < Cfg.n1:
        a("s_waitcnt vmcnt(%d)" % (Cfg.depth - 1))
    a(text)
    nissued[0] += 1
loads = []
for s in range(8):
    if Cfg.kdma:
        loads.append(["s_add_u32 m0, s49, %d" % (960 * s), "buffer_load_dwordx4 v4, s[40:43], s48 offen offset:%d%s lds" % (64 * s, NT)])
    else:
        loads.append("buffer_load_dwordx4 v[%d:%d], v4, s[40:43], s48 offen offset:%d%s" % (V_K + 4 * s, V_K + 4 * s + 3, 64 * s, NT))
def emit(t):
    for x in ([t] if isinstance(t, str) else t):
        a(x)
for r in range(4):
    for h in range(2):
        n = 2 * r + h
        loads.append("buffer_load_dwordx4 v[%d:%d], v5, s[44:47], s48 offen offset:%d%s" % (V_V + 4 * n, V_V + 4 * n + 3, 512 * r + 256 * h, NT))
nfirst = 8 + Cfg.nearly
if Cfg.pace:
    Cfg.k0 = Cfg.pace
for t in loads[:Cfg.k0]:
    emit(t)
stamp(12)
a("s_load_dwordx4 s[28:31], s[26:27], %d" % EPOCH)
srd(36, 26, WS_SIZE)
make_masks()
a("v_lshrrev_b32 v7, 3, v%d" % V_I16)
a("v_lshlrev_b32 v7, 9, v7")
a("v_lshl_add_u32 v7, v%d, 4, v7" % V_GRP)
a("s_lshl_b32 s63, s34, 11")
a("v_lshl_add_u32 v%d, v%d, 4, s63" % (V_LW, V_LANE))
a("s_lshl_b32 s63, s34, 9")
a("v_lshl_add_u32 v23, v%d, 3, s63" % V_LANE)
a("s_lshl_b32 s63, s34, 10")
a("v_lshl_add_u32 v21, v%d, 4, s63" % V_LANE)
a("v_lshlrev_b32 v22, 3, v%d" % V_LANE)
a("s_lshl_b32 s55, s32, 5")
a("s_add_u32 s55, s55, s33")
a("s_lshl_b32 s55, s55, 11")
a("s_add_u32 s50, s55, %d" % E2)
a("s_add_u32 s51, s55, %d" % (E2 + BOFF))
make_tags(False)
a("v_mov_b32 v31, v%d" % V_TB)
a("v_mov_b32 v6, 0")
a("v_mov_b32 v29, 1")
a("ds_write_b32 v6, v6 offset:%d" % L_CNT)
a("s_mov_b32 s%d, %d" % (S_TO, Cfg.timeout))
NPF = [0]
a("s_lshl_b32 s52, s33, 2")
a("s_add_u32 s52, s52, s34")
a("v_lshlrev_b32 v24, 7, v%d" % V_LANE)
a("s_mul_i32 s53, s32, %d" % (512 * 896))
a("s_mul_i32 s63, s52, %d" % (28 * 128))
a("s_add_u32 s53, s53, s63")
a("s_mov_b32 s14, %d" % (4096 * 896))
a("s_mov_b32 s15, 0x20000")
a("s_and_b32 s13, s13, 0xffff")
def wo_prefetch():
    if Cfg.pf:
        a("s_mov_b32 exec_hi, 0")
        a("s_mov_b32 exec_lo, 0x0fffffff")
        a("buffer_load_dword v250, v24, s[12:15], s53 offen")
        setexec(-1)
        NPF[0] = 1
SEGS = [x for x in (Cfg.ka, Cfg.kb, Cfg.kc) if x > 0]
pos = Cfg.k0
if Cfg.pace:
    for t in loads[pos:]:
        a("s_waitcnt vmcnt(%d)" % (Cfg.pace - 1))
        emit(t)
    stamp(13)
else:
    a("s_barrier")
    for n in SEGS:
        for t in loads[pos:pos + n]:
            emit(t)
        pos += n
        a("s_barrier")
        a("s_barrier")
    stamp(13)
    for t in loads[pos:]:
        emit(t)
if Cfg.pfat < 0:
    wo_prefetch()
if Cfg.kdma:
    a("v_lshlrev_b32 v25, 6, v%d" % V_I16)
    a("v_lshl_add_u32 v25, v%d, 4, v25" % V_GRP)
    a("v_add_u32 v25, s49, v25")
    a("s_waitcnt vmcnt(%d)" % (8 + NPF[0]))
    for s in range(8):
        a("ds_read_b128 v[%d:%d], v25 offset:%d" % (V_K + 4 * s, V_K + 4 * s + 3, 1024 * s))
stamp(1)
a("s_waitcnt lgkmcnt(0)")
if Cfg.prio:
    a("s_setprio 2")
a("s_barrier")
stamp(2)
for s in range(8):
    a("ds_read_b128 v[%d:%d], v7 offset:%d" % (V_QF + 4 * s, V_QF + 4 * s + 3, L_Q + 64 * s))
a("s_mov_b32 s63, %s" % f32(0.0625 * LOG2E))
a("s_waitcnt vmcnt(%d)" % (8 + NPF[0]))
S = V_ACC
for s in range(8):
    a("s_waitcnt lgkmcnt(%d)" % (0 if Cfg.stamps else 7 - s))
    a("v_mfma_f32_16x16x32_bf16 v[%d:%d], v[%d:%d], v[%d:%d], %s" % (S, S + 3, V_K + 4 * s, V_K + 4 * s + 3, V_QF + 4 * s, V_QF + 4 * s + 3, "0" if s == 0 else "v[%d:%d]" % (S, S + 3)))
a("v_cvt_pk_bf16_f32 v8, v%d, v%d" % (S, S + 1))
a("v_cvt_pk_bf16_f32 v9, v%d, v%d" % (S + 2, S + 3))
a("v_lshlrev_b32 v10, 16, v8")
a("v_and_b32 v11, 0xffff0000, v8")
a("v_lshlrev_b32 v12, 16, v9")
a("v_and_b32 v13, 0xffff0000, v9")
a("v_max3_f32 v14, v10, v11, v12")
a("v_max_f32 v14, v14, v13")
bfly("v_max_f32", 14, 15, 16)
bfly("v_max_f32", 14, 15, 32)
a("v_mul_f32 v14, s63, v14")
for r in range(4):
    a("v_fma_f32 v%d, v%d, s63, -v14" % (10 + r, 10 + r))
for r in range(4):
    a("v_exp_f32 v%d, v%d" % (10 + r, 10 + r))
for r in range(4):
    a("v_cvt_pk_bf16_f32 v%d, v%d, v%d" % (16 + r, 10 + r, 10 + r))
O = V_ACC + 4
BB = V_QF
def bbuild(r):
    for rho in range(4):
        a("v_and_b32 v%d, v%d, v%d" % (BB + 4 * r + rho, 16 + r, V_M + rho))
def pv(r):
    a("s_waitcnt vmcnt(%d)" % (6 - 2 * r + NPF[0]))
    for h in range(2):
        n = 2 * r + h
        a("v_mfma_f32_16x16x32_bf16 v[%d:%d], v[%d:%d], v[%d:%d], %s" % (O + 4 * h, O + 4 * h + 3, V_V + 4 * n, V_V + 4 * n + 3, BB + 4 * r, BB + 4 * r + 3, "0" if r == 0 else "v[%d:%d]" % (O + 4 * h, O + 4 * h + 3)))
    if r == Cfg.pfat:
        wo_prefetch()
bbuild(0)
bbuild(1)
stamp(5)
pv(0)
bbuild(2)
a("v_add_f32 v15, v10, v11")
a("v_add_f32 v20, v12, v13")
pv(1)
bbuild(3)
a("v_add_f32 v15, v15, v20")
pv(2)
bfly("v_add_f32", 15, 20, 16)
pv(3)
stamp(6)
bfly("v_add_f32", 15, 20, 32)
a("ds_write_b64 v23, v[14:15] offset:%d" % L_ML)
a("ds_write_b128 v%d, v[%d:%d] offset:%d" % (V_LW, O, O + 3, L_O))
a("ds_write_b128 v%d, v[%d:%d] offset:%d" % (V_LW, O + 4, O + 7, L_O + 1024))
setexec(1)
a("ds_add_u32 v6, v29 offset:%d" % L_CNT)
setexec(-1)
a("s_cmp_ge_u32 s34, 2")
a("s_cbranch_scc1 L_att_exit")
a.label("L_cnt")
a("ds_read_b32 v8, v6 offset:%d" % L_CNT)
a("s_sub_u32 s%d, s%d, 1" % (S_TO, S_TO))
a("s_cbranch_scc1 L_end")
a("s_waitcnt lgkmcnt(0)")
a("v_cmp_gt_u32 vcc, 4, v8")
a("s_cbranch_vccnz L_cnt")
stamp(3)
for w in range(4):
    a("ds_read_b64 v[%d:%d], v22 offset:%d" % (10 + 2 * w, 11 + 2 * w, L_ML + 512 * w))
for w in range(4):
    a("ds_read_b128 v[%d:%d], v21 offset:%d" % (V_G + 4 * w, V_G + 4 * w + 3, L_O + 2048 * w))
a("s_movk_i32 s63, 0xff")
a("s_waitcnt lgkmcnt(4)" if not Cfg.stamps else "s_waitcnt lgkmcnt(0)")
a("v_max3_f32 v18, v10, v12, v14")
a("v_max_f32 v18, v18, v16")
for w in range(4):
    a("v_sub_f32 v%d, v%d, v18" % (10 + 2 * w, 10 + 2 * w))
for w in range(4):
    a("v_exp_f32 v%d, v%d" % (10 + 2 * w, 10 + 2 * w))
a("v_mul_f32 v19, v10, v11")
for w in range(1, 4):
    a("v_fmac_f32 v19, v%d, v%d" % (10 + 2 * w, 11 + 2 * w))
a("v_rcp_f32 v20, v19")
a("v_log_f32 v9, v19")
a("s_waitcnt lgkmcnt(0)")
for r in range(4):
    a("v_mul_f32 v%d, v10, v%d" % (24 + r, V_G + r))
for w in range(1, 4):
    for r in range(4):
        a("v_fmac_f32 v%d, v%d, v%d" % (24 + r, 10 + 2 * w, V_G + 4 * w + r))
a("v_add_f32 v9, v9, v18")
for r in range(4):
    a("v_mul_f32 v%d, v%d, v20" % (24 + r, 24 + r))
a("v_bfi_b32 v30, s63, v%d, v9" % V_T8)
a("v_cvt_pk_bf16_f32 v28, v24, v25")
a("v_cvt_pk_bf16_f32 v29, v26, v27")
a("buffer_store_dwordx4 v[28:31], v21, s[36:39], s50 offen")
a("buffer_store_dwordx4 v[28:31], v21, s[36:39], s51 offen sc1")
a("v_mov_b32 v8, 1")
setexec(1)
a("ds_add_u32 v6, v8 offset:%d" % L_CNT)
setexec(-1)
stamp(4)
a("s_branch L_end")

a.label("L_att_exit")
if Cfg.fpf:
    a("s_cmp_lt_u32 s33, 16")
    a("s_cbranch_scc1 L_end")
    a("s_sub_u32 s52, s33, 16")
    a("s_lshl_b32 s52, s52, 1")
    a("s_add_u32 s52, s52, s34")
    a("s_sub_u32 s52, s52, 2")
    a("s_mul_i32 s54, s32, %d" % (224 * 896))
    a("s_mul_i32 s63, s52, %d" % (49 * 128))
    a("s_add_u32 s54, s54, s63")
    a("s_mul_i32 s49, s32, 448")
    a("s_mul_i32 s63, s52, %d" % (14 * 3584))
    a("s_add_u32 s49, s49, s63")
    a("v_lshrrev_b32 v25, 2, v%d" % V_LANE)
    a("v_mul_u32_u24 v25, 3584, v25")
    a("v_and_b32 v26, 3, v%d" % V_LANE)
    a("v_mul_u32_u24 v26, 148, v26")
    a("v_add_u32 v25, v25, v26")
    a("s_mov_b32 s18, %d" % (448 * 3584))
    a("s_mov_b32 s19, 0x20000")
    a("s_and_b32 s17, s17, 0xffff")
    a("s_mov_b32 s22, %d" % (1792 * 896))
    a("s_mov_b32 s23, 0x20000")
    a("s_and_b32 s21, s21, 0xffff")
    a("s_mov_b32 exec_hi, 0x00ffffff")
    a("buffer_load_dword v250, v25, s[16:19], s49 offen")
    a("s_mov_b32 exec_hi, 0x0001ffff")
    a("buffer_load_dword v250, v24, s[20:23], s54 offen")
a("s_branch L_end")

a.label("L_tail")
a.flush()
a("s_cmp_lg_u32 s34, 4")
a("s_cbranch_scc1 L_tail_common")
a("v_lshrrev_b32 v4, 3, v%d" % V_I16)
a("v_mul_u32_u24 v4, 56, v4")
a("v_mul_u32_u24 v5, 14, v%d" % V_GRP)
a("v_add_u32 v4, v4, v5")
a("v_lshlrev_b32 v5, 13, v4")
a("v_and_b32 v6, 7, v%d" % V_I16)
a("v_lshl_add_u32 v5, v6, 4, v5")
a("v_lshlrev_b32 v4, 1, v4")
a("v_lshlrev_b32 v6, 6, v%d" % V_I16)
a("v_lshl_add_u32 v6, v%d, 4, v6" % V_GRP)
a("s_lshr_b32 s50, s33, 3")
a("s_mul_i32 s52, s50, %d" % (112 * 8192))
a("s_lshl_b32 s53, s32, 10")
a("s_add_u32 s52, s52, s53")
a("s_and_b32 s53, s33, 7")
a("s_lshl_b32 s53, s53, 7")
a("s_add_u32 s52, s52, s53")
a("s_mul_i32 s51, s50, 224")
a("s_mov_b32 s42, %d" % (448 * 8192))
a("s_mov_b32 s43, 0x20000")
a("s_mov_b32 s46, 896")
a("s_mov_b32 s47, 0x20000")
a("s_setprio 3")
a("s_waitcnt lgkmcnt(0)")
a("s_mov_b32 s44, s4")
a("s_and_b32 s45, s5, 0xffff")
a("s_mov_b32 s40, s10")
a("s_and_b32 s41, s11, 0xffff")
stamp(11)
WQ, BQ, XR14 = 32, 88, 144
a("buffer_load_dwordx4 v[%d:%d], v6, s[44:47], 0 offen" % (V_G, V_G + 3))
a("buffer_load_dwordx4 v[%d:%d], v4, s[44:47], s51 offen" % (XR14, XR14 + 3))
a("buffer_load_dwordx3 v[%d:%d], v4, s[44:47], s51 offen offset:16" % (XR14 + 4, XR14 + 6))
for t in range(14):
    a("buffer_load_dwordx4 v[%d:%d], v5, s[40:43], s52 offen%s" % (WQ + 4 * t, WQ + 4 * t + 3, NTQ))
    if t < 13:
        a("s_add_u32 s52, s52, 8192")
stamp(12)
a.label("L_tail_common")
a("s_waitcnt lgkmcnt(0)")
if Cfg.tlb == 2:
    a("s_cmp_lg_u32 s34, 6")
    a("s_cbranch_scc1 L_notlb")
    a("s_mul_i32 s48, s32, %d" % (512 * 896))
    a("s_add_u32 s49, s48, %d" % (511 * 896))
    a("s_mul_i32 s50, s32, %d" % (224 * 896))
    a("s_mov_b32 s51, %d" % (447 * 3584))
    a("s_mov_b32 s54, %d" % (E4 + 2044))
    a("s_lshl_b32 s55, s32, 22")
    a("s_add_u32 s55, s55, %d" % (6144 * 512))
    a("s_load_dword s40, s[8:9], s55")
    a("s_load_dword s41, s[12:13], s48")
    a("s_load_dword s42, s[12:13], s49")
    a("s_load_dword s43, s[20:21], s50")
    a("s_load_dword s44, s[16:17], 0")
    a("s_load_dword s45, s[16:17], s51")
    a("s_load_dword s46, s[18:19], 0")
    a("s_load_dword s47, s[22:23], 0")
    a("s_load_dword s98, s[26:27], s54")
    a.label("L_notlb")
if Cfg.b0:
    a("s_barrier")
a("s_load_dwordx4 s[28:31], s[26:27], %d" % EPOCH)
srd(36, 26, WS_SIZE)
a("s_mov_b32 s%d, %d" % (S_TO, Cfg.timeout))
setmask(S_ODD, 0xAAAAAAAAAAAAAAAA)
setmask(S_M4, 0xF0F0F0F0F0F0F0F0)
setmask(S_M8, 0xFF00FF00FF00FF00)
setmask(S_HI, 0xFFFFFFFF00000000)
a("v_mov_b32 v%d, 1.0" % V_ONE)
a("v_lshrrev_b32 v8, 2, v%d" % V_LANE)
a("v_lshlrev_b32 v8, 11, v8")
a("v_and_b32 v9, 3, v%d" % V_LANE)
a("v_lshl_add_u32 v%d, v9, 4, v8" % V_GA)
make_masks()
a("v_lshl_add_u32 v8, v%d, 3, v%d" % (V_GRP, V_I16))
a("v_lshlrev_b32 v%d, 4, v8" % V_PUB)
a("s_lshl_b32 s52, s32, 13")
a("s_add_u32 s52, s52, %d" % E1)
a("s_lshl_b32 s53, s33, 8")
a("s_add_u32 s53, s53, s52")
a("v_and_b32 v8, 31, v%d" % V_LANE)
a("s_lshl_b32 s63, s35, 5")
a("v_add_u32 v8, s63, v8")
a("v_lshrrev_b32 v9, 5, v%d" % V_LANE)
a("v_lshlrev_b32 v9, 12, v9")
a("v_lshl_add_u32 v24, v8, 4, v9")
a("v_and_b32 v9, 7, v8")
a("v_sub_u32 v8, v8, v9")
a("v_lshl_add_u32 v8, v8, 2, v9")
a("v_lshlrev_b32 v25, 1, v8")
a("s_cmp_lg_u32 s34, 4")
a("s_cbranch_scc1 L_notq")
a("s_add_u32 s49, s53, %d" % BOFF)
a("s_waitcnt vmcnt(14)")
stamp(1)
XF, XV, XE, XP = 152, 160, 176, 216
for k in range(4):
    a("v_lshlrev_b32 v%d, 16, v%d" % (XF + 2 * k, V_G + k))
    a("v_and_b32 v%d, 0xffff0000, v%d" % (XF + 2 * k + 1, V_G + k))
fill = []
for k in range(7):
    fill.append("v_lshlrev_b32 v%d, 16, v%d" % (XV + 2 * k, XR14 + k))
    fill.append("v_and_b32 v%d, 0xffff0000, v%d" % (XV + 2 * k + 1, XR14 + k))
s1, s2 = ln_stats([XF + k for k in range(8)], 0x3FFF3FFF3FFF3FFF, 8, fill)
ln_apply([XV + k for k in range(14)], [XE + k for k in range(14)], [XP + k for k in range(7)], s1, s2)
for t in range(14):
    a("v_cvt_pk_bf16_f32 v%d, v%d, v%d" % (XE + t, XE + t, XE + t))
make_tags()
stamp(6)
QA = V_ACC
for t in range(15):
    if t < 14:
        for rho in range(4):
            a("v_and_b32 v%d, v%d, v%d" % (BQ + 4 * t + rho, XE + t, V_M + rho))
    if t >= 1:
        u = t - 1
        a("s_waitcnt vmcnt(%d)" % (13 - u))
        a("v_mfma_f32_16x16x32_bf16 v[%d:%d], v[%d:%d], v[%d:%d], %s" % (QA, QA + 3, WQ + 4 * u, WQ + 4 * u + 3, BQ + 4 * u, BQ + 4 * u + 3, "0" if u == 0 else "v[%d:%d]" % (QA, QA + 3)))
stamp(2)
a("s_movk_i32 s63, 0xfff")
for r in range(4):
    a("v_mov_b32_dpp v%d, v%d row_ror:8%s" % (8 + r, QA + r, DPPM))
for r in range(4):
    a("v_mov_b32 v%d, v%d" % (12 + r, 8 + r))
for r in range(4):
    a("v_permlane32_swap_b32 v%d, v%d" % (8 + r, 12 + r))
for r in range(4):
    a("v_add_f32 v%d, v%d, v%d" % (12 + r, 12 + r, QA + r))
tag12(28, 12)
setexec(0x0000000000FF00FF)
a("buffer_store_dwordx4 v[28:31], v%d, s[36:39], s53 offen" % V_PUB)
a("buffer_store_dwordx4 v[28:31], v%d, s[36:39], s49 offen sc1" % V_PUB)
setexec(-1)
a("s_setprio 0")
stamp(3)
a("s_branch L_e1")
a.label("L_notq")
a.flush()
make_tags()
if Cfg.pretouch:
    a("s_cmp_lg_u32 s34, 5")
    a("s_cbranch_scc1 L_nopre")
    a("s_lshl_b32 s55, s32, 5")
    a("s_add_u32 s55, s55, s33")
    a("s_lshl_b32 s55, s55, 11")
    a("v_lshlrev_b32 v8, 7, v%d" % V_I16)
    a("s_add_u32 s63, s55, %d" % E2)
    a("v_add_u32 v9, s63, v8")
    a("s_add_u32 s63, s55, %d" % E3A)
    a("v_add_u32 v10, s63, v8")
    a("v_and_b32 v8, 128, v8")
    a("v_add_u32 v8, s53, v8")
    a("v_cmp_eq_u32 vcc, 1, v%d" % V_GRP)
    a("v_cndmask_b32 v9, v9, v10, vcc")
    a("v_cndmask_b32 v9, v9, v8, s[%d:%d]" % (S_HI, S_HI + 1))
    a("buffer_load_dword v26, v9, s[36:39], 0 offen sc1")
    a.label("L_nopre")
if Cfg.tlb == 1:
    a("s_cmp_lg_u32 s34, 6")
    a("s_cbranch_scc1 L_notlb")
    a("s_mul_i32 s48, s32, %d" % (512 * 896))
    a("s_add_u32 s49, s48, %d" % (511 * 896))
    a("s_mul_i32 s50, s32, %d" % (224 * 896))
    a("s_mov_b32 s51, %d" % (447 * 3584))
    a("s_mov_b32 s54, %d" % E4)
    a("v_mov_b32 v8, 0")
    setexec(1)
    srd(40, 12, 4096 * 896)
    a("buffer_load_dword v26, v8, s[40:43], s48 offen")
    a("buffer_load_dword v26, v8, s[40:43], s49 offen")
    srd(40, 20, 1792 * 896)
    a("buffer_load_dword v26, v8, s[40:43], s50 offen")
    srd(40, 16, 448 * 3584)
    a("buffer_load_dword v26, v8, s[40:43], 0 offen")
    a("buffer_load_dword v26, v8, s[40:43], s51 offen")
    srd(40, 18, 1792 * 2)
    a("buffer_load_dword v26, v8, s[40:43], 0 offen")
    srd(40, 22, 896)
    a("buffer_load_dword v26, v8, s[40:43], 0 offen")
    a("buffer_load_dword v26, v8, s[36:39], s54 offen offset:2044")
    setexec(-1)
    a.label("L_notlb")
if Cfg.cpf:
    a("s_cmp_lg_u32 s34, 7")
    a("s_cbranch_scc1 L_nocpf")
    a("s_getpc_b64 s[48:49]")
    a.label("L_pc")
    a("s_sub_u32 s48, s48, L_pc-%s_kernel" % NAME)
    a("s_subb_u32 s49, s49, 0")
    a("v_lshlrev_b32 v8, 7, v%d" % V_LANE)
    a("v_min_u32 v9, L_exit-%s_kernel-8192, v8" % NAME)
    a("global_load_dword v26, v8, s[48:49]")
    a("v_add_u32 v9, 8192, v9")
    a("global_load_dword v26, v9, s[48:49]")
    a.label("L_nocpf")
if Cfg.pace:
    a("s_sleep %d" % Cfg.e1w)
a.label("L_e1")
if not Cfg.pace:
    a("s_barrier")
sel_init(32)
P = Cfg.npipe if Cfg.pace else len(SEGS)
GS = [V_S2 + 8 * k for k in range(P)]
XC = 12
def e1_issue(k):
    a("s_add_u32 s53, s52, s%d" % S_SEL)
    for u in range(2):
        a("buffer_load_dwordx4 v[%d:%d], v24, s[36:39], s53 offen offset:%d sc1" % (GS[k] + 4 * u, GS[k] + 4 * u + 3, 2048 * u))
    sel_step(True)
if Cfg.pace:
    for k in range(P):
        e1_issue(k)
        if k < P - 1:
            a("s_sleep %d" % Cfg.ps1)
    a.label("L_e1poll")
    for k in range(P):
        a("s_waitcnt vmcnt(%d)" % (2 * (P - 1)))
        check12(2, XC, "L_e1ok", GS[k])
        e1_issue(k)
    a("s_branch L_e1poll")
else:
    for k in range(P):
        a("s_barrier")
        e1_issue(k)
        a("s_barrier")
    stamp(7)
    for k in range(P):
        a("s_waitcnt vmcnt(%d)" % (2 * (P - 1 - k)))
        check12(2, XC, "L_e1ok", GS[k])
    a.label("L_e1poll")
    e1_issue(0)
    a("s_waitcnt vmcnt(0)")
    check12(2, XC, "L_e1ok", GS[0])
    a("s_branch L_e1poll")
a.label("L_e1ok")
for r in range(4):
    a("v_add_f32 v%d, v%d, v%d" % (XC + r, XC + r, XC + 4 + r))
for r in range(4):
    a("v_mov_b32 v%d, v%d" % (XC + 4 + r, XC + r))
for r in range(4):
    a("v_permlane32_swap_b32 v%d, v%d" % (XC + r, XC + 4 + r))
for r in range(4):
    a("v_add_f32 v%d, v%d, v%d" % (XC + r, XC + r, XC + 4 + r))
a("v_cvt_pk_bf16_f32 v8, v%d, v%d" % (XC, XC + 1))
a("v_cvt_pk_bf16_f32 v9, v%d, v%d" % (XC + 2, XC + 3))
a("s_mov_b32 exec_hi, 0")
a("ds_write_b16 v25, v8 offset:%d" % (L_Q))
a("ds_write_b16_d16_hi v25, v8 offset:%d" % (L_Q + 16))
a("ds_write_b16 v25, v9 offset:%d" % (L_Q + 32))
a("ds_write_b16_d16_hi v25, v9 offset:%d" % (L_Q + 48))
setexec(-1)
a("s_waitcnt lgkmcnt(0)")
stamp(4)
a("s_barrier")
a("s_cmp_ge_u32 s33, 30")
a("s_cbranch_scc1 L_end")
a("s_cmp_ge_u32 s33, 23")
a("s_cbranch_scc1 L_R")
a("s_cmp_ge_u32 s33, 16")
a("s_cbranch_scc1 L_F")

def poll(name, issue, nload, check, dual, sets=1, shadow=None):
    D = Cfg.pd
    ok = name + "_ok"
    for r in range(D):
        issue(r % sets)
        if r < D - 1 and Cfg.pds:
            a("s_sleep %d" % Cfg.pds)
    if shadow:
        shadow()
    a.label(name)
    n = sets if sets > 1 else 1
    for k in range(n):
        a("s_waitcnt vmcnt(%d)" % (nload * (D - 1)))
        check(k, ok)
        sel_step(True if dual else None)
        if not dual and Cfg.xls:
            a("s_sleep %d" % Cfg.xls)
        issue(k)
    a("s_branch %s" % name)
    a.label(ok)

def wait_cnt(n):
    lab = a.newlabel("L_wc")
    a("v_mov_b32 v5, 0")
    a.label(lab)
    a("ds_read_b32 v7, v5 offset:%d" % L_CNT)
    a("s_sub_u32 s%d, s%d, 1" % (S_TO, S_TO))
    a("s_cbranch_scc1 L_end")
    a("s_sleep 1")
    a("s_waitcnt lgkmcnt(0)")
    a("v_cmp_gt_u32 vcc, %d, v7" % n)
    a("s_cbranch_vccnz %s" % lab)

a("s_lshl_b32 s48, s33, 1")
a("s_lshr_b32 s49, s35, 1")
a("s_add_u32 s48, s48, s49")
a("s_lshl_b32 s50, s32, 9")
a("s_bfe_u32 s49, s48, 0x10001")
a("s_lshl_b32 s49, s49, 8")
a("s_add_u32 s50, s50, s49")
a("s_lshr_b32 s49, s48, 4")
a("s_lshl_b32 s49, s49, 7")
a("s_add_u32 s50, s50, s49")
a("s_bfe_u32 s49, s48, 0x20002")
a("s_lshl_b32 s49, s49, 5")
a("s_add_u32 s50, s50, s49")
a("s_and_b32 s49, s48, 1")
a("s_lshl_b32 s49, s49, 2")
a("s_add_u32 s50, s50, s49")
a("s_mul_i32 s50, s50, 896")
a("s_and_b32 s49, s35, 1")
a("s_lshl_b32 s49, s49, 9")
a("s_add_u32 s50, s50, s49")
a("v_mul_u32_u24 v6, 7168, v%d" % V_GRP)
a("v_lshl_add_u32 v6, v%d, 4, v6" % V_I16)
srd(40, 12, 4096 * 896)
wait_cnt(Cfg.ocnt)
if Cfg.os:
    a("s_sleep %d" % Cfg.os)
for q in range(4):
    a("buffer_load_dwordx4 v[%d:%d], v6, s[40:43], s50 offen offset:%d%s" % (V_W + 4 * q, V_W + 4 * q + 3, 896 * q, NTL))
a("s_bitcmp1_b32 s35, 0")
a("s_cbranch_scc0 L_nomask")
setexec(0x00FF00FF00FF00FF)
a.label("L_nomask")
for q in range(4):
    a("buffer_load_dwordx4 v[%d:%d], v6, s[40:43], s50 offen offset:%d%s" % (V_W + 16 + 4 * q, V_W + 16 + 4 * q + 3, 896 * q + 256, NTL))
setexec(-1)
a("s_lshl_b32 s54, s32, 16")
a("s_lshl_b32 s63, s48, 6")
a("s_add_u32 s54, s54, s63")
a("s_lshl_b32 s55, s32, 5")
a("s_add_u32 s55, s55, s48")
a("s_lshl_b32 s55, s55, 11")
a("s_lshl_b32 s49, s49, 1")
a("s_add_u32 s55, s55, s49")
a("s_add_u32 s50, s55, %d" % E3A)
a("s_add_u32 s51, s55, %d" % (E3A + BOFF))
a("v_cmp_lt_u32 s[6:7], 7, v%d" % V_I16)
a("v_add_u32 v4, %d, v%d" % (512 - 128, V_PUB))
a("v_cndmask_b32 v4, v%d, v4, s[6:7]" % V_PUB)
a("s_mov_b64 s[8:9], -1")
a("s_bitcmp1_b32 s35, 0")
a("s_cselect_b32 s9, 0x00ff00ff, s9")
sel_init()
stamp(1)
if Cfg.stamps:
    a("s_waitcnt vmcnt(0)")
    stamp(13)
E2S = [V_S1 + 8 * k for k in range(Cfg.pd)]
def e2_issue(k):
    a("s_add_u32 s48, s54, s%d" % S_SEL)
    a("s_add_u32 s49, s48, %d" % (E2 + 16 * 2048))
    a("s_add_u32 s48, s48, %d" % E2)
    a("buffer_load_dwordx4 v[%d:%d], v%d, s[36:39], s48 offen sc1" % (E2S[k], E2S[k] + 3, V_GA))
    a("buffer_load_dwordx4 v[%d:%d], v%d, s[36:39], s49 offen sc1" % (E2S[k] + 4, E2S[k] + 7, V_GA))
def e2_check(k, ok):
    G = E2S[k]
    a("v_xor_b32 v10, v%d, v%d" % (G + 2, V_T8))
    a("v_xor_b32 v11, v%d, v%d" % (G + 6, V_T8))
    a("v_xor_b32 v12, v%d, v%d" % (G + 3, V_TB))
    a("v_xor_b32 v13, v%d, v%d" % (G + 7, V_TB))
    a("v_or_b32 v14, v10, v11")
    a("v_and_b32 v14, 0xff, v14")
    a("v_or3_b32 v14, v14, v12, v13")
    a("v_cmp_ne_u32 vcc, 0, v14")
    for t in range(2):
        a("v_lshlrev_b32 v%d, 16, v%d" % (16 + 4 * t, G + 4 * t))
        a("v_and_b32 v%d, 0xffff0000, v%d" % (17 + 4 * t, G + 4 * t))
        a("v_lshlrev_b32 v%d, 16, v%d" % (18 + 4 * t, G + 4 * t + 1))
        a("v_and_b32 v%d, 0xffff0000, v%d" % (19 + 4 * t, G + 4 * t + 1))
    a("s_cbranch_vccz %s" % ok)
poll("L_e2poll", e2_issue, 2, e2_check, True, sets=Cfg.pd)
stamp(5)
a("v_max_f32 v14, v10, v11")
a("v_max_f32_dpp v14, v14, v14 row_ror:8%s" % DPPM)
a("v_max_f32_dpp v14, v14, v14 row_ror:4%s" % DPPM)
bfly("v_max_f32", 14, 15, 16)
bfly("v_max_f32", 14, 15, 32)
a("v_sub_f32 v10, v10, v14")
a("v_sub_f32 v11, v11, v14")
a("v_exp_f32 v10, v10")
a("v_exp_f32 v11, v11")
a("s_movk_i32 s63, 0xfff")
for r in range(4):
    a("v_mul_f32 v%d, v%d, v10" % (16 + r, 16 + r))
a("v_add_f32 v12, v10, v11")
for r in range(4):
    a("v_fmac_f32 v%d, v%d, v11" % (16 + r, 20 + r))
a("v_add_f32_dpp v12, v12, v12 row_ror:8%s" % DPPM)
a("v_add_f32_dpp v12, v12, v12 row_ror:4%s" % DPPM)
a("v_mfma_f32_16x16x4_f32 v[%d:%d], v12, v%d, 0" % (V_ACC + 4, V_ACC + 7, V_ONE))
reduce16([16, 17, 18, 19], 13)
a("v_mfma_f32_16x16x4_f32 v[%d:%d], v13, v%d, 0" % (V_ACC, V_ACC + 3, V_ONE))
a("v_rcp_f32 v12, v%d" % (V_ACC + 4))
for r in range(4):
    a("v_mul_f32 v%d, v%d, v12" % (16 + r, V_ACC + r))
for r in range(4):
    a("v_cvt_pk_bf16_f32 v%d, v%d, v%d" % (16 + r, 16 + r, 16 + r))
A2 = V_ACC + 8
BB = V_BB
def omf(qq):
    for b in range(2):
        a("v_mfma_f32_16x16x32_bf16 v[%d:%d], v[%d:%d], v[%d:%d], %s" % (A2 + 4 * b, A2 + 4 * b + 3, V_W + 16 * b + 4 * qq, V_W + 16 * b + 4 * qq + 3, BB + 4 * qq, BB + 4 * qq + 3, "0" if qq == 0 else "v[%d:%d]" % (A2 + 4 * b, A2 + 4 * b + 3)))
for q in range(4):
    for rho in range(4):
        a("v_and_b32 v%d, v%d, v%d" % (BB + 4 * q + rho, 16 + q, V_M + rho))
    if q >= 1:
        omf(q - 1)
omf(3)
for r in range(4):
    a("v_cndmask_b32 v%d, v%d, v%d, s[6:7]" % (24 + r, A2 + r, A2 + 4 + r))
tag12(28, 24)
a("s_mov_b64 exec, s[8:9]")
a("buffer_store_dwordx4 v[28:31], v4, s[36:39], s50 offen")
a("buffer_store_dwordx4 v[28:31], v4, s[36:39], s51 offen sc1")
setexec(-1)
stamp(6)
if Cfg.w2l:
    a("s_lshl_b32 s48, s33, 2")
    a("s_add_u32 s48, s48, s35")
    a("s_mul_i32 s48, s48, %d" % (25 * 128))
    a("s_mul_i32 s63, s32, %d" % (224 * 896))
    a("s_add_u32 s48, s48, s63")
    a("v_lshlrev_b32 v24, 7, v%d" % V_LANE)
    srd(40, 20, 1792 * 896)
    setexec(0x1ffffff)
    a("buffer_load_dword v250, v24, s[40:43], s48 offen")
a("s_branch L_end")

a.label("L_R")
a.flush()
a("s_sub_u32 s50, s33, 23")
a("s_lshl_b32 s52, s50, 2")
a("s_add_u32 s52, s52, s35")
a("s_lshl_b32 s54, s32, 16")
a("s_lshl_b32 s63, s52, 6")
a("s_add_u32 s54, s54, s63")
a("s_mul_i32 s53, s52, %d" % Cfg.ss)
a("s_add_u32 s53, s53, %d" % E3X)
a("s_lshl_b32 s51, s32, 12")
a("s_add_u32 s51, s51, s53")
a("s_lshl_b32 s55, s32, 11")
a("s_lshl_b32 s63, s52, 6")
a("s_add_u32 s55, s55, s63")
a("s_add_u32 s55, s55, %d" % E3L)
a("v_lshlrev_b32 v4, 4, v%d" % V_GRP)
a("s_lshr_b32 s63, s52, 1")
a("s_lshl_b32 s63, s63, 6")
a("s_and_b32 s48, s52, 1")
a("s_lshl_b32 s48, s48, 3")
a("s_add_u32 s63, s63, s48")
a("v_lshl_add_u32 v%d, v%d, 4, s63" % (V_XA, V_GRP))
srd(44, 4, 896)
a("buffer_load_dwordx2 v[%d:%d], v%d, s[44:47], 0 offen" % (V_X + 1, V_X + 2, V_XA))
a("v_and_b32 v8, 7, v%d" % V_I16)
a("v_lshlrev_b32 v8, 12, v8")
a("v_lshl_add_u32 v%d, v%d, 4, v8" % (V_LW, V_GRP))
if Cfg.rpf:
    a("s_mul_i32 s48, s32, %d" % (224 * 896))
    a("s_mul_i32 s63, s52, %d" % (56 * 128))
    a("s_add_u32 s48, s48, s63")
    a("s_mul_i32 s49, s32, 448")
    a("s_mul_i32 s63, s52, %d" % (16 * 3584))
    a("s_add_u32 s49, s49, s63")
    a("v_lshrrev_b32 v25, 2, v%d" % V_LANE)
    a("v_mul_u32_u24 v25, 3584, v25")
    a("v_and_b32 v26, 3, v%d" % V_LANE)
    a("v_mul_u32_u24 v26, 148, v26")
    a("v_add_u32 v25, v25, v26")
    a("v_lshlrev_b32 v24, 7, v%d" % V_LANE)
    srd(40, 16, 448 * 3584)
    srd(8, 20, 1792 * 896)
wait_cnt(6)
if Cfg.rpf:
    a("buffer_load_dword v250, v25, s[40:43], s49 offen")
    a("s_mov_b32 exec_hi, 0x00ffffff")
    a("buffer_load_dword v250, v24, s[8:11], s48 offen")
    setexec(-1)
sel_init()
if Cfg.rs:
    a("s_sleep %d" % Cfg.rs)
def e3a_issue(k):
    a("s_add_u32 s48, s54, s%d" % S_SEL)
    a("s_add_u32 s49, s48, %d" % (E3A + 16 * 2048))
    a("s_add_u32 s48, s48, %d" % E3A)
    a("buffer_load_dwordx4 v[%d:%d], v%d, s[36:39], s48 offen sc1" % (V_S2, V_S2 + 3, V_GA))
    a("buffer_load_dwordx4 v[%d:%d], v%d, s[36:39], s49 offen sc1" % (V_S2 + 4, V_S2 + 7, V_GA))
poll("L_e3apoll", e3a_issue, 2, lambda k, ok: check12(2, 12, ok, V_S2), True)
stamp(7)
for r in range(4):
    a("v_add_f32 v%d, v%d, v%d" % (12 + r, 12 + r, 16 + r))
reduce16([12, 13, 14, 15], 9)
a("v_mfma_f32_16x16x4_f32 v[%d:%d], v9, v%d, 0" % (V_ACC, V_ACC + 3, V_ONE))
a("s_movk_i32 s63, 0xfff")
setexec(0x0001000100010001)
tag12(28, V_ACC)
a("buffer_store_dwordx4 v[28:31], v4, s[36:39], s51 offen sc1")
if Cfg.lh:
    a("buffer_store_dwordx4 v[28:31], v4, s[36:39], s55 offen")
setexec(-1)
stamp(8)
a("s_cmp_lg_u32 s50, s32")
a("s_cbranch_scc1 L_end")
a.label("L_hpoll")
a("s_sleep 2")
a("buffer_load_dwordx4 v[%d:%d], v%d, s[36:39], s53 offen sc1" % (V_G, V_G + 3, V_LW))
a("s_waitcnt vmcnt(0)")
check12(1, 12, "L_hok")
retry("L_hpoll", False)
a.label("L_hok")
stamp(9)
for pat in ("quad_perm:[1,0,3,2]", "quad_perm:[2,3,0,1]", "row_half_mirror"):
    for r in range(4):
        a("v_add_f32_dpp v%d, v%d, v%d %s%s" % (12 + r, 12 + r, 12 + r, pat, DPPM))
for r in range(4):
    a("v_mov_b32 v%d, v%d" % (V_ACC + r, 12 + r))
a("v_lshlrev_b32 v%d, 16, v%d" % (V_X, V_X + 1))
a("v_and_b32 v%d, 0xffff0000, v%d" % (V_X + 1, V_X + 1))
a("v_and_b32 v%d, 0xffff0000, v%d" % (V_X + 3, V_X + 2))
a("v_lshlrev_b32 v%d, 16, v%d" % (V_X + 2, V_X + 2))
def round_add_round(src, add):
    a("v_cvt_pk_bf16_f32 v10, v%d, v%d" % (src, src + 1))
    a("v_cvt_pk_bf16_f32 v11, v%d, v%d" % (src + 2, src + 3))
    a("v_lshlrev_b32 v12, 16, v10")
    a("v_and_b32 v13, 0xffff0000, v10")
    a("v_lshlrev_b32 v14, 16, v11")
    a("v_and_b32 v15, 0xffff0000, v11")
    for r in range(4):
        a("v_add_f32 v%d, v%d, v%d" % (12 + r, 12 + r, add + r))
    a("v_cvt_pk_bf16_f32 v10, v12, v13")
    a("v_cvt_pk_bf16_f32 v11, v14, v15")
round_add_round(V_ACC, V_X)
a("v_lshlrev_b32 v%d, 16, v10" % (V_X))
a("v_and_b32 v%d, 0xffff0000, v10" % (V_X + 1))
a("v_lshlrev_b32 v%d, 16, v11" % (V_X + 2))
a("v_and_b32 v%d, 0xffff0000, v11" % (V_X + 3))
a("s_lshl_b32 s48, s52, 6")
a("s_add_u32 s48, s48, %d" % E4)
for t in range(1, 4):
    a("s_add_u32 s%d, s48, %d" % (48 + t, t * 16 * 2048))
for r in range(4):
    a("v_mov_b32 v%d, v%d" % (V_G + 12 + r, V_T + r))
srd(44, 22, 896)
if Cfg.e4s:
    a("s_sleep %d" % Cfg.e4s)
XR = V_S1
def e4_issue(k):
    for t in range(4):
        if t == 3:
            a("s_mov_b32 exec_hi, 0")
        a("buffer_load_dwordx4 v[%d:%d], v%d, s[36:39], s%d offen sc1" % (V_G + 4 * t, V_G + 4 * t + 3, V_GA, 48 + t))
    setexec(-1)
poll("L_e4poll", e4_issue, 4, lambda k, ok: check12(4, XR, ok), False)
stamp(10)
for r in range(4):
    a("v_add_f32 v%d, v%d, v%d" % (XR + r, XR + r, XR + 4 + r))
    a("v_add_f32 v%d, v%d, v%d" % (XR + 8 + r, XR + 8 + r, XR + 12 + r))
for r in range(4):
    a("v_add_f32 v%d, v%d, v%d" % (XR + r, XR + r, XR + 8 + r))
reduce16([XR, XR + 1, XR + 2, XR + 3], 9)
a("v_mfma_f32_16x16x4_f32 v[%d:%d], v9, v%d, 0" % (V_ACC, V_ACC + 3, V_ONE))
round_add_round(V_ACC, V_X)
setexec(0x0001000100010001)
a("buffer_store_dwordx2 v[10:11], v%d, s[44:47], 0 offen" % V_XA)
a("s_cmp_lg_u32 s52, 0")
a("s_cbranch_scc1 L_noep")
setexec(1)
a("v_mov_b32 v9, 0")
for k in range(4):
    a("v_mov_b32 v%d, s%d" % (12 + k, 28 + k))
a("buffer_store_dwordx4 v[12:15], v9, s[36:39], 0 offen offset:%d" % EPOCH)
a.label("L_noep")
setexec(-1)
stamp(14)
a("s_branch L_end")

a.label("L_F")
a.flush()
a("s_mul_i32 s50, s32, 7")
a("s_add_u32 s50, s50, s33")
a("s_sub_u32 s50, s50, 16")
a("s_lshl_b32 s51, s50, 2")
a("s_add_u32 s51, s51, s35")
a("v_lshrrev_b32 v8, 3, v%d" % V_I16)
a("v_sub_u32 v8, v%d, v8" % V_I16)
a("v_min_u32 v8, 13, v8")
a("v_lshlrev_b32 v8, 6, v8")
a("v_lshl_add_u32 v23, v%d, 4, v8" % V_GRP)
if Cfg.lin:
    setexec(0x8080808080808080)
    a("v_mov_b32 v23, 896")
    for k in range(4):
        a("v_mov_b32 v%d, 0" % (12 + k))
    a("ds_write_b128 v23, v[12:15] offset:%d" % L_H)
    setexec(-1)
a("v_bfe_u32 v8, v%d, 2, 3" % V_LANE)
a("v_min_u32 v8, 6, v8")
a("v_and_b32 v9, 3, v%d" % V_LANE)
a("v_mul_u32_u24 v10, %d, v8" % Cfg.ss)
a("v_lshl_add_u32 v10, v9, 4, v10")
a("v_lshrrev_b32 v11, 5, v%d" % V_LANE)
a("v_lshl_add_u32 v%d, v11, 12, v10" % V_XA)
a("s_mul_i32 s63, s35, 7")
a("v_add_u32 v8, s63, v8")
a("v_lshrrev_b32 v10, 1, v8")
a("v_lshlrev_b32 v10, 6, v10")
a("v_and_b32 v8, 1, v8")
a("v_lshl_add_u32 v10, v8, 3, v10")
a("v_lshl_add_u32 v24, v9, 4, v10")
a("v_and_b32 v10, 1, v%d" % V_GRP)
a("v_and_b32 v11, 1, v%d" % V_I16)
a("v_lshlrev_b32 v25, 2, v10")
a("v_and_b32 v26, 2, v%d" % V_GRP)
a("v_add_u32 v25, v25, v26")
a("v_mul_u32_u24 v26, 896, v25")
a("v_lshl_add_u32 v26, v%d, 4, v26" % V_I16)
a("v_add_u32 v25, v25, v11")
a("v_lshlrev_b32 v25, 1, v25")
a("v_bfe_u32 v27, v%d, 1, 1" % V_I16)
a("v_mul_u32_u24 v27, %d, v27" % (224 * 64))
a("v_lshl_add_u32 v27, v%d, 9, v27" % V_GRP)
a("v_lshrrev_b32 v12, 2, v%d" % V_I16)
a("v_lshl_add_u32 v27, v12, 6, v27")
a("v_lshl_add_u32 v27, v11, 3, v27")
a("s_lshl_b32 s63, s35, 4")
a("v_add_u32 v%d, s63, v27" % V_W1A)
a("v_lshrrev_b32 v27, 2, v%d" % V_LANE)
a("v_mul_u32_u24 v27, 3584, v27")
a("v_and_b32 v12, 3, v%d" % V_LANE)
a("v_lshl_add_u32 v27, v12, 4, v27")
a("s_lshl_b32 s63, s35, 11")
a("v_lshl_add_u32 v%d, v%d, 4, s63" % (V_LW, V_LANE))
srd(40, 16, 448 * 3584)
srd(44, 20, 1792 * 896)
srd(8, 4, 896)
srd(12, 18, 1792 * 2)
a("s_mul_i32 s52, s35, %d" % (112 * 3584))
a("s_lshl_b32 s63, s50, 6")
a("s_add_u32 s52, s52, s63")
a("s_mul_i32 s53, s35, 7168")
a("s_add_u32 s53, s53, %d" % L_W1)
a("s_mul_i32 s54, s51, %d" % (8 * 896))
a("s_lshl_b32 s55, s51, 4")
a("s_mul_i32 s24, s35, %d" % (7 * Cfg.ss))
a("s_add_u32 s24, s24, %d" % E3X)
a("s_add_u32 s25, s24, 8192")
a("s_add_u32 s26, s24, 16384")
a("s_add_u32 s27, s24, 24576")
wait_cnt(Cfg.fcnt)
if Cfg.fs:
    a("s_sleep %d" % Cfg.fs)
stamp(1)
for t in range(7):
    a("s_mov_b32 m0, s53")
    a("buffer_load_dwordx4 v27, s[40:43], s52 offen%s lds" % NTW)
    if t < 6:
        a("s_add_u32 s52, s52, %d" % (16 * 3584))
        a("s_add_u32 s53, s53, 1024")
def w2_loads():
    for b in range(4):
        if b == 3:
            setexec(0x00FF00FF00FF00FF)
        for q in range(2):
            a("buffer_load_dwordx4 v[%d:%d], v26, s[44:47], s54 offen offset:%d%s" % (V_W + 8 * b + 4 * q, V_W + 8 * b + 4 * q + 3, 896 * q + 256 * b, NTL))
    setexec(-1)
if not Cfg.w2l:
    w2_loads()
a("buffer_load_dwordx2 v[%d:%d], v24, s[8:11], 0 offen" % (V_X + 1, V_X + 2))
a("buffer_load_ushort v%d, v25, s[12:15], s55 offen" % V_B1)
a("s_lshl_b32 s48, s50, 11")
a("s_lshl_b32 s63, s35, 10")
a("s_add_u32 s48, s48, s63")
a("s_add_u32 s48, s48, %d" % E4)
a("v_cmp_lt_u32 s[6:7], 7, v%d" % V_I16)
a("v_add_u32 v4, %d, v%d" % (512 - 128, V_PUB))
a("v_cndmask_b32 v4, v%d, v4, s[6:7]" % V_PUB)
a("s_lshl_b32 s63, s35, 10")
a("v_lshl_add_u32 v21, v%d, 4, s63" % V_LANE)
D1 = V_S2
V_CS = 251
def ffn1(AF, dst, fill=()):
    fill = list(fill)
    def f(n):
        for _ in range(n):
            if fill:
                a(fill.pop(0))
    for m in range(7):
        a("v_mfma_f32_16x16x32_bf16 v[%d:%d], v[%d:%d], v[%d:%d], 0" % (D1 + 4 * m, D1 + 4 * m + 3, AF, AF + 3, V_W1F + 4 * m, V_W1F + 4 * m + 3))
    return
def ffn1_tail(dst, t):
    a("v_mov_b32 v%d, 0" % dst)
    setexec(0x0000FF00000000FF)
    a("v_add_f32 v%d, v%d, v%d" % (dst, D1 + 0, D1 + 4 + 1))
    a("v_add_f32 v%d, v%d, v%d" % (t, D1 + 8 + 2, D1 + 12 + 3))
    a("v_add_f32 v%d, v%d, v%d" % (dst, dst, t))
    setexec(0xFF00000000FF0000)
    a("v_add_f32 v%d, v%d, v%d" % (dst, D1 + 16, D1 + 20 + 1))
    a("v_add_f32 v%d, v%d, v%d" % (dst, dst, D1 + 24 + 2))
    setexec(-1)
    a("v_add_f32_dpp v%d, v%d, v%d row_ror:8%s" % (dst, dst, dst, DPPM))
    a("v_mfma_f32_16x16x4_f32 v[%d:%d], v%d, v%d, 0" % (V_ACC, V_ACC + 3, dst, V_ONE))
def ffn1_sel(dst, t):
    a("v_cndmask_b32 v%d, v%d, v%d, s[%d:%d]" % (dst, V_ACC, V_ACC + 1, S_ODD, S_ODD + 1))
    a("v_cndmask_b32 v%d, v%d, v%d, s[%d:%d]" % (t, V_ACC + 2, V_ACC + 3, S_ODD, S_ODD + 1))
    a("v_cndmask_b32 v%d, v%d, v%d, s[%d:%d]" % (dst, dst, t, S_HI, S_HI + 1))
AF = 176
if not Cfg.e3e:
    a("s_waitcnt vmcnt(0)")
    stamp(5)
    a("s_barrier")
def f_shadow():
    if Cfg.e3e:
        a("s_waitcnt vmcnt(%d)" % (4 * Cfg.pd))
        stamp(5)
        a("s_barrier")
    for m in range(7):
        for u in range(2):
            a("ds_read_b64_tr_b16 v[%d:%d], v%d offset:%d" % (V_W1F + 4 * m + 2 * u, V_W1F + 4 * m + 2 * u + 1, V_W1A, L_W1 + 2048 * m + 256 * u))
    a("v_lshlrev_b32 v%d, 16, v%d" % (V_B1, V_B1))
    a("v_lshlrev_b32 v%d, 16, v%d" % (V_X, V_X + 1))
    a("v_and_b32 v%d, 0xffff0000, v%d" % (V_X + 1, V_X + 1))
    a("v_and_b32 v%d, 0xffff0000, v%d" % (V_X + 3, V_X + 2))
    a("v_lshlrev_b32 v%d, 16, v%d" % (V_X + 2, V_X + 2))
    if Cfg.lin:
        for k in range(4):
            a("v_mov_b32 v%d, 0x3f803f80" % (AF + k))
        a("s_waitcnt lgkmcnt(0)")
        ffn1(AF, V_CS)
        ffn1_tail(V_CS, 9)
        ffn1_sel(V_CS, 9)
def e3x_issue(k):
    for t in range(4):
        a("buffer_load_dwordx4 v[%d:%d], v%d, s[36:39], s%d offen sc1" % (V_G + 4 * t, V_G + 4 * t + 3, V_XA, 24 + t))
if Cfg.lh:
    f_shadow()
    a("v_min_u32 v22, 27, v%d" % V_LANE)
    a("v_lshlrev_b32 v22, 4, v22")
    a("s_lshl_b32 s49, s32, 11")
    a("s_mul_i32 s63, s35, 448")
    a("s_add_u32 s49, s49, s63")
    a("s_add_u32 s49, s49, %d" % E3L)
    a("s_mov_b32 s1, %d" % Cfg.bthr)
    a.label("L_lh")
    a("buffer_load_dwordx4 v[%d:%d], v22, s[36:39], s49 offen sc1" % (V_G, V_G + 3))
    a("s_sub_u32 s1, s1, 1")
    a("s_cbranch_scc1 L_lhok")
    a("s_waitcnt vmcnt(0)")
    check12(1, XR, "L_lhok")
    a("s_branch L_lh")
    a.label("L_lhok")
    if Cfg.xs:
        a("s_sleep %d" % Cfg.xs)
    poll("L_e3xpoll", e3x_issue, 4, lambda k, ok: check12(4, XR, ok), False)
else:
    poll("L_e3xpoll", e3x_issue, 4, lambda k, ok: check12(4, XR, ok), False, shadow=f_shadow)
stamp(9)
if Cfg.w2l:
    w2_loads()
for r in range(4):
    a("v_add_f32 v%d, v%d, v%d" % (XR + r, XR + r, XR + 4 + r))
    a("v_add_f32 v%d, v%d, v%d" % (XR + 8 + r, XR + 8 + r, XR + 12 + r))
for r in range(4):
    a("v_add_f32 v%d, v%d, v%d" % (XR + r, XR + r, XR + 8 + r))
for r in range(4):
    a("v_mov_b32 v%d, v%d" % (XR + 4 + r, XR + r))
for r in range(4):
    a("v_permlane32_swap_b32 v%d, v%d" % (XR + r, XR + 4 + r))
for r in range(4):
    a("v_add_f32 v%d, v%d, v%d" % (XR + r, XR + r, XR + 4 + r))
round_add_round(XR, V_X)
a("ds_write_b64 v24, v[10:11] offset:%d" % L_H)
a("s_waitcnt lgkmcnt(0)")
a("s_barrier")
stamp(10)
PR = V_S1
if Cfg.lin:
    a("ds_read_b128 v[%d:%d], v23 offset:%d" % (AF, AF + 3, L_H))
    a("s_waitcnt lgkmcnt(0)")
    ffn1(AF, 22)
    for k in range(4):
        a("v_lshlrev_b32 v%d, 16, v%d" % (PR + 2 * k, AF + k))
        a("v_and_b32 v%d, 0xffff0000, v%d" % (PR + 2 * k + 1, AF + k))
    ffn1_tail(22, 20)
    s1, s2 = ln_stats([PR + k for k in range(8)], 0x7F7F7F7F7F7F7F7F, 5)
    ffn1_sel(22, 20)
    bf16r(s2, s2)
    a("v_rcp_f32 v%d, v%d" % (s2, s2))
    a("v_fma_f32 v8, -v%d, v%d, v22" % (s1, V_CS))
    a("s_mov_b32 s63, %s" % f32(-LOG2E))
    a("v_mul_f32 v8, v8, v%d" % s2)
else:
    a("ds_read_b128 v[%d:%d], v23 offset:%d" % (PR + 8, PR + 11, L_H))
    a("s_waitcnt lgkmcnt(0)")
    for k in range(4):
        a("v_lshlrev_b32 v%d, 16, v%d" % (PR + 2 * k, PR + 8 + k))
        a("v_and_b32 v%d, 0xffff0000, v%d" % (PR + 2 * k + 1, PR + 8 + k))
    layernorm([PR + k for k in range(8)], AF, 0x7F7F7F7F7F7F7F7F, 5)
    ffn1(AF, 8)
    ffn1_tail(8, 9)
    a("s_mov_b32 s63, %s" % f32(-LOG2E))
    ffn1_sel(8, 9)
bf16r(8, 8)
a("v_add_f32 v8, v8, v%d" % V_B1)
bf16r(8, 8)
a("v_mul_f32 v9, s63, abs(v8)")
a("v_exp_f32 v9, v9")
a("v_max_f32 v17, 0, v8")
bf16r(9, 9)
a("v_add_f32 v10, 1.0, v9")
a("v_add_f32 v11, -1.0, v10")
a("v_log_f32 v12, v10")
a("v_rcp_f32 v13, v11")
a("v_cmp_eq_f32 vcc, 0, v11")
a("v_mul_f32 v12, %s, v12" % f32(0.6931471805599453))
a("v_mul_f32 v13, v13, v9")
a("v_mul_f32 v12, v12, v13")
a("v_cndmask_b32 v12, v12, v9, vcc")
bf16r(12, 12)
a("v_add_f32 v12, v12, v17")
bf16r(12, 12)
a("v_mul_f32 v13, %s, v12" % f32(-2.0 * LOG2E))
a("v_exp_f32 v13, v13")
a("v_mul_f32 v16, v12, v12")
a("v_add_f32 v14, 1.0, v13")
a("v_sub_f32 v15, 1.0, v13")
a("v_rcp_f32 v14, v14")
a("v_mul_f32 v16, %s, v16" % f32(-1.0 / 3.0))
a("v_cmp_gt_f32 vcc, %s, v12" % f32(2.0 ** -6))
a("v_fma_f32 v16, v16, v12, v12")
a("v_mul_f32 v14, v14, v15")
a("v_cndmask_b32 v14, v14, v16, vcc")
bf16r(14, 14)
a("v_mul_f32 v14, v14, v8")
a("v_cvt_pk_bf16_f32 v14, v14, v14")
a("s_movk_i32 s63, 0xfff")
for q in range(2):
    for rho in range(4):
        a("v_and_b32_dpp v%d, v14, v%d quad_perm:[%d,%d,%d,%d]%s" % (BB + 4 * q + rho, V_M + rho, q, q, 2 + q, 2 + q, DPPM))
if Cfg.w2l:
    stamp(12)
    a("s_waitcnt vmcnt(0)")
for q in range(2):
    for b in range(4):
        a("v_mfma_f32_16x16x32_bf16 v[%d:%d], v[%d:%d], v[%d:%d], %s" % (V_ACC + 4 * b, V_ACC + 4 * b + 3, V_W + 8 * b + 4 * q, V_W + 8 * b + 4 * q + 3, BB + 4 * q, BB + 4 * q + 3, "0" if q == 0 else "v[%d:%d]" % (V_ACC + 4 * b, V_ACC + 4 * b + 3)))
setexec(0x00FF00FF00FF00FF)
a("ds_write_b128 v%d, v[%d:%d] offset:%d" % (V_LW, V_ACC, V_ACC + 3, L_F))
a("s_not_b64 exec, exec")
a("ds_write_b128 v%d, v[%d:%d] offset:%d" % (V_LW, V_ACC + 4, V_ACC + 7, L_F))
a("s_not_b64 exec, exec")
a("ds_write_b128 v%d, v[%d:%d] offset:%d" % (V_LW, V_ACC + 8, V_ACC + 11, L_F + 1024))
a("s_not_b64 exec, exec")
a("ds_write_b128 v%d, v[%d:%d] offset:%d" % (V_LW, V_ACC + 12, V_ACC + 15, L_F + 1024))
setexec(-1)
a("s_waitcnt lgkmcnt(0)")
stamp(13)
a("s_barrier")
a("s_cmp_ge_u32 s35, 2")
a("s_cbranch_scc1 L_end")
for w in range(4):
    a("ds_read_b128 v[%d:%d], v21 offset:%d" % (PR + 4 * w, PR + 4 * w + 3, L_F + 2048 * w))
a("s_cmp_eq_u32 s35, 1")
a("s_cselect_b32 exec_hi, 0x00ff00ff, -1")
a("s_waitcnt lgkmcnt(0)")
for r in range(4):
    a("v_add_f32 v%d, v%d, v%d" % (PR + r, PR + r, PR + 4 + r))
    a("v_add_f32 v%d, v%d, v%d" % (PR + 8 + r, PR + 8 + r, PR + 12 + r))
for r in range(4):
    a("v_add_f32 v%d, v%d, v%d" % (PR + r, PR + r, PR + 8 + r))
tag12(28, PR)
a("buffer_store_dwordx4 v[28:31], v4, s[36:39], s48 offen sc1")
setexec(-1)
stamp(14)
a.label("L_end")
if Cfg.stamps:
    setexec(-1)
    stamp(15)
    a("s_waitcnt lgkmcnt(0)")
    a("s_lshl_b32 s48, s2, 3")
    a("s_add_u32 s48, s48, s34")
    a("s_lshl_b32 s48, s48, 6")
    a("s_add_u32 s48, s48, %d" % STAMP)
    a("v_mov_b32 v9, 0")
    setexec(1)
    for i in range(16):
        a("v_mov_b32 v10, s%d" % (64 + 2 * i))
        a("buffer_store_dword v10, v9, s[36:39], s48 offen offset:%d" % (4 * i))
    if Cfg.dbgwg >= 0:
        a("s_cmp_lg_u32 s2, %d" % Cfg.dbgwg)
        a("s_cbranch_scc1 L_exit")
        a("s_cmp_lg_u32 s34, %d" % Cfg.dbgwave)
        a("s_cbranch_scc1 L_exit")
        if Cfg.spin:
            a.label("L_spin")
            a("s_memrealtime s[94:95]")
            a("s_waitcnt lgkmcnt(0)")
            a("s_sub_u32 s63, s94, s64")
            a("s_cmp_lt_u32 s63, %d" % Cfg.spin)
            a("s_cbranch_scc1 L_spin")
        srd(44, 24, 256)
        for i in range(16):
            a("s_sub_u32 s63, s%d, s64" % (64 + 2 * i))
            a("s_cmp_eq_u32 s%d, 0" % (64 + 2 * i))
            a("s_cselect_b32 s63, 0, s63")
            a("v_mov_b32 v10, s63")
            a("buffer_store_dword v10, v9, s[44:47], 0 offen offset:%d" % (4 * i))
a.label("L_exit")
a("s_endpgm")
a.raw('''.section .rodata,"a"
.p2align 6
.amdhsa_kernel %s_kernel
  .amdhsa_next_free_vgpr %d
  .amdhsa_next_free_sgpr 100
  .amdhsa_accum_offset %d
  .amdhsa_group_segment_fixed_size 0
  .amdhsa_kernarg_size 96
  .amdhsa_user_sgpr_count 2
  .amdhsa_user_sgpr_kernarg_segment_ptr 1
  .amdhsa_system_sgpr_workgroup_id_x 1
  .amdhsa_float_denorm_mode_32 3
.end_amdhsa_kernel''' % (NAME, NVGPR, NVGPR))
open(sys.argv[1], "w").write(a.text())
```

```python
import sys, struct
from asmlib import Asm
NAME = "sequential_preLN__sliding_block_cached__dense_activation_mish__decode"

class Cfg:
    stamps = False
    nt = True
    ntw = False
    timeout = 200000
    ocnt = 0
    vs = 0
    nearly = 7
    pfat = 1
    n1 = 10
    pf = False
    cpf = True
    ntl = False
    depth = 0
    ss = 128
    forceB = False
    pretouch = True
    fs = 0
    tlb = 0
    bthr = 64
    b0 = True
    npipe = 3
    ps0 = 0
    ps1 = 4
    kpat = 0
    kdma = True
    pd = 1
    pds = 2
    fpf = False
    prio = True
    xls = 0
    pace = 0
    e1w = 20
    fcnt = 6
    w2l = False
    pdx = 1
    pd4 = 1
    zig = True
    w2first = True
    w2e = True
    bd = 0
    xcc = True
    fakex = False
    noB = False
    dry = 0
    lh2 = False
    lh = True
    e3e = False
    lin = True
    rpf = False
    rs = 0
    os = 0
    ka = 3
    kb = 0
    kc = 0
    k0 = 12
    xs = 0
    e4s = 8
    rnd = True
    dbgwg = -1
    dbgwave = 0
    spin = 0
for arg in sys.argv[2:]:
    k, v = arg.split('=')
    setattr(Cfg, k, type(getattr(Cfg, k))(int(v)))

NT = " nt" if Cfg.nt else ""
NTW = " nt" if Cfg.ntw else ""
NTQ = NT
NTL = " nt" if Cfg.ntl else ""
EPOCH = 0x0
E3X = 0x1000
E3L = 0x9000
E1 = 0x10000
E2 = 0x20000
E3A = 0xA0000
BOFF = 0x120000
E4 = 0x240000
STAMP = 0x300000
WS_SIZE = 0x400000
L_Q = 0
L_ML = 1024
L_CNT = 3072
L_H = 3136
L_O = 4096
L_F = L_O
L_K = 12288
L_W1 = L_K
LDS_BYTES = 45056

LOG2E = 1.4426950408889634
def f32(x):
    return "0x%08x" % struct.unpack('<I', struct.pack('<f', x))[0]

a = Asm()
a.raw("; @launch grid=(256,1,1) block=(512,1,1) lds=%d" % LDS_BYTES)
a.raw('.amdgcn_target "amdgcn-amd-amdhsa--gfx950"\n.text\n.globl %s_kernel\n.p2align 8\n.type %s_kernel,@function\n%s_kernel:' % (NAME, NAME, NAME))

DPPM = " row_mask:0xf bank_mask:0xf"
def stamp(i):
    if Cfg.stamps:
        a("s_memrealtime s[%d:%d]" % (64 + 2 * i, 65 + 2 * i))

def srd(dst, ptr, nbytes):
    a("s_mov_b32 s%d, s%d" % (dst, ptr))
    a("s_and_b32 s%d, s%d, 0xffff" % (dst + 1, ptr + 1))
    a("s_mov_b32 s%d, %d" % (dst + 2, nbytes))
    a("s_mov_b32 s%d, 0x20000" % (dst + 3))

def setexec(mask):
    if mask == -1:
        a("s_mov_b64 exec, -1")
    else:
        a("s_mov_b32 exec_lo, 0x%08x" % (mask & 0xffffffff))
        a("s_mov_b32 exec_hi, 0x%08x" % (mask >> 32))

def setmask(s, mask):
    a("s_mov_b32 s%d, 0x%08x" % (s, mask & 0xffffffff))
    a("s_mov_b32 s%d, 0x%08x" % (s + 1, mask >> 32))

def bfly(op, v, t, which):
    a("v_mov_b32 v%d, v%d" % (t, v))
    a("v_permlane%d_swap_b32 v%d, v%d" % (which, v, t))
    a("%s v%d, v%d, v%d" % (op, v, v, t))

def bf16r(dst, src):
    a("v_cvt_pk_bf16_f32 v%d, v%d, v%d" % (dst, src, src))
    a("v_and_b32 v%d, 0xffff0000, v%d" % (dst, dst))

S_ODD, S_B1, S_HI = 56, 58, 60
S_M4, S_M8 = 58, 96
S_TO = 62
S_SEL = 3

S_CNT = 33
def sel_step(thr):
    a("s_sub_u32 s%d, s%d, 1" % (S_TO, S_TO))
    a("s_cbranch_scc1 L_end")
    if thr is not None and not Cfg.forceB:
        assert Cfg.pd == 1
        a("s_xor_b32 s63, s%d, %d" % (S_SEL, BOFF))
        a("s_cmp_lt_u32 s%d, s1" % S_TO)
        a("s_cselect_b32 s%d, s63, s%d" % (S_SEL, S_SEL))

def retry(loop, dual):
    sel_step(True if dual else None)
    a("s_branch %s" % loop)

def sel_init(thr=None):
    a("s_mov_b32 s%d, %d" % (S_SEL, BOFF if Cfg.forceB else 0))
    a("s_sub_u32 s1, s%d, %d" % (S_TO, Cfg.bthr if thr is None else thr))

def ln_stats(f, valid, T, fill=None):
    e = [T + k for k in range(8)]
    s1, s2, t1, t2 = T + 8, T + 9, T + 10, T + 11
    fill = list(fill or [])
    def filler():
        if fill:
            a(fill.pop(0))
    a("v_readlane_b32 s63, v%d, 0" % f[0])
    a("v_mov_b32 v%d, 0" % s1)
    a("v_mov_b32 v%d, 0" % s2)
    setexec(valid)
    for k in range(8):
        a("v_subrev_f32 v%d, s63, v%d" % (e[k], f[k]))
    a("v_add_f32 v%d, v%d, v%d" % (s1, e[0], e[1]))
    a("v_mul_f32 v%d, v%d, v%d" % (s2, e[0], e[0]))
    a("v_add_f32 v%d, v%d, v%d" % (t1, e[2], e[3]))
    a("v_mul_f32 v%d, v%d, v%d" % (t2, e[1], e[1]))
    for k in range(4, 8):
        a("v_add_f32 v%d, v%d, v%d" % (s1 if k % 2 == 0 else t1, s1 if k % 2 == 0 else t1, e[k]))
    for k in range(2, 8):
        a("v_fmac_f32 v%d, v%d, v%d" % (s2 if k % 2 == 0 else t2, e[k], e[k]))
    a("v_add_f32 v%d, v%d, v%d" % (s1, s1, t1))
    a("v_add_f32 v%d, v%d, v%d" % (s2, s2, t2))
    setexec(-1)
    for i, r in enumerate((8, 4, 2, 1)):
        a("v_add_f32_dpp v%d, v%d, v%d row_ror:%d%s" % (s1, s1, s1, r, DPPM))
        a("v_add_f32_dpp v%d, v%d, v%d row_ror:%d%s" % (s2, s2, s2, r, DPPM))
        filler()
    for which in (16, 32):
        a("v_mov_b32 v%d, v%d" % (t1, s1))
        a("v_mov_b32 v%d, v%d" % (t2, s2))
        filler()
        a("v_permlane%d_swap_b32 v%d, v%d" % (which, s1, t1))
        a("v_permlane%d_swap_b32 v%d, v%d" % (which, s2, t2))
        a("v_add_f32 v%d, v%d, v%d" % (s1, s1, t1))
        a("v_add_f32 v%d, v%d, v%d" % (s2, s2, t2))
    a("v_mul_f32 v%d, %s, v%d" % (s1, f32(1.0 / 448), s1))
    a("v_mul_f32 v%d, %s, v%d" % (s2, f32(1.0 / 448), s2))
    a("v_fma_f32 v%d, -v%d, v%d, v%d" % (s2, s1, s1, s2))
    a("v_add_f32 v%d, s63, v%d" % (s1, s1))
    a("v_max_f32 v%d, 0, v%d" % (s2, s2))
    a("v_cvt_pk_bf16_f32 v%d, v%d, v%d" % (t1, s1, s2))
    a("v_and_b32 v%d, 0xffff0000, v%d" % (s2, t1))
    a("v_lshlrev_b32 v%d, 16, v%d" % (s1, t1))
    a("v_add_f32 v%d, %s, v%d" % (s2, f32(1e-5), s2))
    bf16r(s2, s2)
    a("v_sqrt_f32 v%d, v%d" % (s2, s2))
    while fill:
        filler()
    return s1, s2

def ln_apply(f, e, pk, s1, s2):
    n = len(f)
    for k in range(n):
        a("v_sub_f32 v%d, v%d, v%d" % (e[k], f[k], s1))
    bf16r(s2, s2)
    a("v_rcp_f32 v%d, v%d" % (s2, s2))
    for k in range(n // 2):
        a("v_cvt_pk_bf16_f32 v%d, v%d, v%d" % (pk[k], e[2 * k], e[2 * k + 1]))
    for k in range(n // 2):
        a("v_lshlrev_b32 v%d, 16, v%d" % (e[2 * k], pk[k]))
        a("v_and_b32 v%d, 0xffff0000, v%d" % (e[2 * k + 1], pk[k]))
    for k in range(n):
        a("v_mul_f32 v%d, v%d, v%d" % (e[k], e[k], s2))

def layernorm(f, out, valid, T):
    e = [T + k for k in range(8)]
    pk = [T + 12 + k for k in range(4)]
    s1, s2 = ln_stats(f, valid, T, ["v_mov_b32 v%d, 0" % (out + i) for i in range(4)])
    ln_apply(f, e, pk, s1, s2)
    setexec(valid)
    for k in range(4):
        a("v_cvt_pk_bf16_f32 v%d, v%d, v%d" % (out + k, e[2 * k], e[2 * k + 1]))
    setexec(-1)

def quad_transpose_reduce(v, dst, T):
    k0, g0, k1, g1 = T, T + 1, T + 2, T + 3
    a("v_cndmask_b32 v%d, v%d, v%d, s[%d:%d]" % (g0, v[1], v[0], S_ODD, S_ODD + 1))
    a("v_cndmask_b32 v%d, v%d, v%d, s[%d:%d]" % (g1, v[3], v[2], S_ODD, S_ODD + 1))
    a("v_cndmask_b32 v%d, v%d, v%d, s[%d:%d]" % (k0, v[0], v[1], S_ODD, S_ODD + 1))
    a("v_cndmask_b32 v%d, v%d, v%d, s[%d:%d]" % (k1, v[2], v[3], S_ODD, S_ODD + 1))
    a("v_add_f32_dpp v%d, v%d, v%d quad_perm:[1,0,3,2]%s" % (k0, g0, k0, DPPM))
    a("v_add_f32_dpp v%d, v%d, v%d quad_perm:[1,0,3,2]%s" % (k1, g1, k1, DPPM))
    a("v_cndmask_b32 v%d, v%d, v%d, s[%d:%d]" % (g0, k1, k0, S_B1, S_B1 + 1))
    a("v_cndmask_b32 v%d, v%d, v%d, s[%d:%d]" % (dst, k0, k1, S_B1, S_B1 + 1))
    a("v_add_f32_dpp v%d, v%d, v%d quad_perm:[2,3,0,1]%s" % (dst, g0, dst, DPPM))

S_B2, S_B3 = S_B1, 4
def reduce16(v, dst):
    for r in range(4):
        a("v_add_f32_dpp v%d, v%d, v%d row_ror:8%s" % (v[r], v[r], v[r], DPPM))
    for r in range(4):
        a("v_add_f32_dpp v%d, v%d, v%d row_ror:4%s" % (v[r], v[r], v[r], DPPM))
    a("v_cndmask_b32 v%d, v%d, v%d, s[%d:%d]" % (v[0], v[0], v[1], S_M4, S_M4 + 1))
    a("v_cndmask_b32 v%d, v%d, v%d, s[%d:%d]" % (v[2], v[2], v[3], S_M4, S_M4 + 1))
    a("v_cndmask_b32 v%d, v%d, v%d, s[%d:%d]" % (dst, v[0], v[2], S_M8, S_M8 + 1))

def check12(n, X, oklab, G=None, T0=None):
    if G is None:
        G = V_G
    for t in range(n):
        for r in range(4):
            a("v_xor_b32 v%d, v%d, v%d" % (X + 4 * t + r, G + 4 * t + r, T0 if (r == 0 and T0 is not None) else V_T + r))
    regs = [X + i for i in range(4 * n)]
    acc = [5, 6, 7]
    cur = regs[:]
    outs = []
    i = 0
    while len(cur) >= 3 and i < 3:
        a("v_or3_b32 v%d, v%d, v%d, v%d" % (acc[i], cur[0], cur[1], cur[2])); cur = cur[3:]; outs.append(acc[i]); i += 1
    i = 0
    while len(cur) >= 2:
        o = outs[i % len(outs)]
        a("v_or3_b32 v%d, v%d, v%d, v%d" % (o, o, cur[0], cur[1])); cur = cur[2:]; i += 1
    rest = outs + cur
    while len(rest) > 1:
        if len(rest) >= 3:
            a("v_or3_b32 v%d, v%d, v%d, v%d" % (acc[0], rest[0], rest[1], rest[2])); rest = [acc[0]] + rest[3:]
        else:
            a("v_or_b32 v%d, v%d, v%d" % (acc[0], rest[0], rest[1])); rest = [acc[0]]
    a("v_and_b32 v%d, 0xfff, v%d" % (acc[0], rest[0]))
    a("v_cmp_ne_u32 vcc, 0, v%d" % acc[0])
    a("s_cbranch_vccz %s" % oklab)

V_I16, V_GRP, V_LANE = 1, 2, 3
V_M, V_T = 196, 200
V_TA, V_TB, V_T8, V_ONE = 204, 205, 206, 207
V_B1, V_X = 208, 209
V_GA = 213
V_PUB = 214
V_XA = 215
V_ACC = 216
V_G = 232
V_W1A, V_LW = 248, 249
NVGPR = 252
V_K, V_V, V_QF = 32, 64, 96
V_W = 32
V_W1F = 64
V_BB = 96
V_S1 = 112
V_S2 = 144

def tag12(dst, src):
    for r in range(4):
        if Cfg.rnd:
            a("v_add_u32 v%d, 0x800, v%d" % (dst + r, src + r))
            src_r = dst + r
        else:
            src_r = src + r
    for r in range(4):
        a("v_bfi_b32 v%d, s63, v%d, v%d" % (dst + r, V_T + r, (dst if Cfg.rnd else src) + r))

def make_masks():
    a("v_and_b32 v10, 1, v%d" % V_I16)
    a("v_lshlrev_b32 v10, 4, v10")
    a("v_mov_b32 v11, 0xffff")
    a("v_lshlrev_b32 v11, v10, v11")
    a("v_bfe_u32 v10, v%d, 1, 2" % V_I16)
    for rho in range(4):
        a("v_cmp_eq_u32 vcc, %d, v10" % rho)
        a("v_cndmask_b32 v%d, 0, v11, vcc" % (V_M + rho))

def make_tags(full=True):
    a("s_waitcnt lgkmcnt(0)")
    for k in range(4):
        a("s_add_u32 s%d, s%d, 1" % (28 + k, 28 + k))
    if full:
        for k in range(4):
            a("s_and_b32 s63, s%d, 0xfff" % (28 + k))
            a("v_mov_b32 v%d, s63" % (V_T + k))
    a("v_mov_b32 v%d, s31" % V_TB)
    a("s_and_b32 s63, s30, 0xff")
    a("v_mov_b32 v%d, s63" % V_T8)

if Cfg.stamps:
    for i in range(16):
        a("s_mov_b64 s[%d:%d], 0" % (64 + 2 * i, 65 + 2 * i))
stamp(0)
a("s_load_dwordx16 s[4:19], s[0:1], 0")
a("s_load_dwordx8 s[20:27], s[0:1], 64")
a("s_cmp_ge_u32 s2, 256")
a("s_cbranch_scc1 L_exit")
a("v_lshrrev_b32 v4, 6, v0")
a("v_and_b32 v%d, 63, v0" % V_LANE)
a("v_readfirstlane_b32 s34, v4")
a("v_and_b32 v%d, 15, v0" % V_I16)
a("v_bfe_u32 v%d, v0, 4, 2" % V_GRP)
a("s_and_b32 s32, s2, 7")
a("s_lshr_b32 s33, s2, 3")
a("s_and_b32 s35, s34, 3")
a("s_cmp_ge_u32 s34, 4")
a("s_cbranch_scc1 L_tail")

a("s_lshl_b32 s48, s32, 22")
a("s_lshl_b32 s49, s33, 15")
a("s_add_u32 s48, s48, s49")
a("s_lshl_b32 s49, s34, 13")
a("s_add_u32 s48, s48, s49")
a("s_add_u32 s48, s48, %d" % (6144 * 512))
if Cfg.kdma:
    a("v_lshrrev_b32 v4, 2, v%d" % V_LANE)
    a("v_lshlrev_b32 v4, 9, v4")
    a("v_and_b32 v5, 3, v%d" % V_LANE)
    a("v_lshl_add_u32 v4, v5, 4, v4")
    a("s_add_u32 s49, s49, %d" % L_K)
else:
    a("v_lshlrev_b32 v4, 9, v%d" % V_I16)
    a("v_lshl_add_u32 v4, v%d, 4, v4" % V_GRP)
a("v_lshlrev_b32 v5, 11, v%d" % V_GRP)
a("v_lshl_add_u32 v5, v%d, 4, v5" % V_I16)
a("s_mov_b32 s42, 33554432")
a("s_mov_b32 s43, 0x20000")
a("s_mov_b32 s46, 33554432")
a("s_mov_b32 s47, 0x20000")
a("s_waitcnt lgkmcnt(0)")
a("s_mov_b32 s40, s6")
a("s_and_b32 s41, s7, 0xffff")
a("s_mov_b32 s44, s8")
a("s_and_b32 s45, s9, 0xffff")
stamp(11)
if Cfg.b0:
    a("s_barrier")
nissued = [0]
def paced(text):
    if Cfg.depth and nissued[0] >= Cfg.depth and nissued[0] < Cfg.n1:
        a("s_waitcnt vmcnt(%d)" % (Cfg.depth - 1))
    a(text)
    nissued[0] += 1
loads = []
for s in range(8):
    if Cfg.kdma:
        loads.append(["s_add_u32 m0, s49, %d" % (960 * s), "buffer_load_dwordx4 v4, s[40:43], s48 offen offset:%d%s lds" % (64 * s, NT)])
    else:
        loads.append("buffer_load_dwordx4 v[%d:%d], v4, s[40:43], s48 offen offset:%d%s" % (V_K + 4 * s, V_K + 4 * s + 3, 64 * s, NT))
def emit(t):
    for x in ([t] if isinstance(t, str) else t):
        a(x)
for r in range(4):
    for h in range(2):
        n = 2 * r + h
        loads.append("buffer_load_dwordx4 v[%d:%d], v5, s[44:47], s48 offen offset:%d%s" % (V_V + 4 * n, V_V + 4 * n + 3, 512 * r + 256 * h, NT))
nfirst = 8 + Cfg.nearly
if Cfg.pace:
    Cfg.k0 = Cfg.pace
for t in loads[:Cfg.k0]:
    emit(t)
stamp(12)
a("s_load_dwordx4 s[28:31], s[26:27], %d" % EPOCH)
srd(36, 26, WS_SIZE)
make_masks()
a("v_lshrrev_b32 v7, 3, v%d" % V_I16)
a("v_lshlrev_b32 v7, 9, v7")
a("v_lshl_add_u32 v7, v%d, 4, v7" % V_GRP)
a("s_lshl_b32 s63, s34, 11")
a("v_lshl_add_u32 v%d, v%d, 4, s63" % (V_LW, V_LANE))
a("s_lshl_b32 s63, s34, 9")
a("v_lshl_add_u32 v23, v%d, 3, s63" % V_LANE)
a("s_lshl_b32 s63, s34, 10")
a("v_lshl_add_u32 v21, v%d, 4, s63" % V_LANE)
a("v_lshlrev_b32 v22, 3, v%d" % V_LANE)
a("s_lshl_b32 s55, s32, 5")
a("s_add_u32 s55, s55, s33")
a("s_lshl_b32 s55, s55, 11")
a("s_add_u32 s50, s55, %d" % E2)
a("s_add_u32 s51, s55, %d" % (E2 + BOFF))
make_tags(False)
a("v_mov_b32 v31, v%d" % V_TB)
a("v_mov_b32 v6, 0")
a("v_mov_b32 v29, 1")
a("ds_write2_b32 v6, v6, v6 offset0:%d offset1:%d" % (L_CNT // 4 % 256, L_CNT // 4 % 256 + 1)) if False else None
a("ds_write_b32 v6, v6 offset:%d" % L_CNT)
a("ds_write_b32 v6, v6 offset:%d" % (L_CNT + 4))
a("s_waitcnt lgkmcnt(0)")
a("s_mov_b32 s%d, %d" % (S_TO, Cfg.timeout))
NPF = [0]
a("s_lshl_b32 s52, s33, 2")
a("s_add_u32 s52, s52, s34")
a("v_lshlrev_b32 v24, 7, v%d" % V_LANE)
a("s_mul_i32 s53, s32, %d" % (512 * 896))
a("s_mul_i32 s63, s52, %d" % (28 * 128))
a("s_add_u32 s53, s53, s63")
a("s_mov_b32 s14, %d" % (4096 * 896))
a("s_mov_b32 s15, 0x20000")
a("s_and_b32 s13, s13, 0xffff")
def wo_prefetch():
    if Cfg.pf:
        a("s_mov_b32 exec_hi, 0")
        a("s_mov_b32 exec_lo, 0x0fffffff")
        a("buffer_load_dword v250, v24, s[12:15], s53 offen")
        setexec(-1)
        NPF[0] = 1
SEGS = [x for x in (Cfg.ka, Cfg.kb, Cfg.kc) if x > 0]
pos = Cfg.k0
if Cfg.pace:
    for t in loads[pos:]:
        a("s_waitcnt vmcnt(%d)" % (Cfg.pace - 1))
        emit(t)
    stamp(13)
else:
    a("s_barrier")
    for n in SEGS:
        for t in loads[pos:pos + n]:
            emit(t)
        pos += n
        a("s_barrier")
        a("s_barrier")
    stamp(13)
    for t in loads[pos:]:
        emit(t)
if Cfg.pfat < 0:
    wo_prefetch()
if Cfg.kdma:
    a("v_lshlrev_b32 v25, 6, v%d" % V_I16)
    a("v_lshl_add_u32 v25, v%d, 4, v25" % V_GRP)
    a("v_add_u32 v25, s49, v25")
    a("s_waitcnt vmcnt(%d)" % (8 + NPF[0]))
    for s in range(8):
        a("ds_read_b128 v[%d:%d], v25 offset:%d" % (V_K + 4 * s, V_K + 4 * s + 3, 1024 * s))
stamp(1)
a("s_waitcnt lgkmcnt(0)")
if Cfg.prio:
    a("s_setprio 2")
a("s_barrier")
stamp(2)
for s in range(8):
    a("ds_read_b128 v[%d:%d], v7 offset:%d" % (V_QF + 4 * s, V_QF + 4 * s + 3, L_Q + 64 * s))
a("s_mov_b32 s63, %s" % f32(0.0625 * LOG2E))
a("s_waitcnt vmcnt(%d)" % (8 + NPF[0]))
S = V_ACC
for s in range(8):
    a("s_waitcnt lgkmcnt(%d)" % (0 if Cfg.stamps else 7 - s))
    a("v_mfma_f32_16x16x32_bf16 v[%d:%d], v[%d:%d], v[%d:%d], %s" % (S, S + 3, V_K + 4 * s, V_K + 4 * s + 3, V_QF + 4 * s, V_QF + 4 * s + 3, "0" if s == 0 else "v[%d:%d]" % (S, S + 3)))
a("v_cvt_pk_bf16_f32 v8, v%d, v%d" % (S, S + 1))
a("v_cvt_pk_bf16_f32 v9, v%d, v%d" % (S + 2, S + 3))
a("v_lshlrev_b32 v10, 16, v8")
a("v_and_b32 v11, 0xffff0000, v8")
a("v_lshlrev_b32 v12, 16, v9")
a("v_and_b32 v13, 0xffff0000, v9")
a("v_max3_f32 v14, v10, v11, v12")
a("v_max_f32 v14, v14, v13")
bfly("v_max_f32", 14, 15, 16)
bfly("v_max_f32", 14, 15, 32)
a("v_mul_f32 v14, s63, v14")
for r in range(4):
    a("v_fma_f32 v%d, v%d, s63, -v14" % (10 + r, 10 + r))
for r in range(4):
    a("v_exp_f32 v%d, v%d" % (10 + r, 10 + r))
for r in range(4):
    a("v_cvt_pk_bf16_f32 v%d, v%d, v%d" % (16 + r, 10 + r, 10 + r))
O = V_ACC + 4
BB = V_QF
def bbuild(r):
    for rho in range(4):
        a("v_and_b32 v%d, v%d, v%d" % (BB + 4 * r + rho, 16 + r, V_M + rho))
def pv(r):
    a("s_waitcnt vmcnt(%d)" % (6 - 2 * r + NPF[0]))
    for h in range(2):
        n = 2 * r + h
        a("v_mfma_f32_16x16x32_bf16 v[%d:%d], v[%d:%d], v[%d:%d], %s" % (O + 4 * h, O + 4 * h + 3, V_V + 4 * n, V_V + 4 * n + 3, BB + 4 * r, BB + 4 * r + 3, "0" if r == 0 else "v[%d:%d]" % (O + 4 * h, O + 4 * h + 3)))
    if r == Cfg.pfat:
        wo_prefetch()
bbuild(0)
bbuild(1)
stamp(5)
pv(0)
bbuild(2)
a("v_add_f32 v15, v10, v11")
a("v_add_f32 v20, v12, v13")
pv(1)
bbuild(3)
a("v_add_f32 v15, v15, v20")
pv(2)
bfly("v_add_f32", 15, 20, 16)
pv(3)
stamp(6)
bfly("v_add_f32", 15, 20, 32)
a("ds_write_b64 v23, v[14:15] offset:%d" % L_ML)
a("ds_write_b128 v%d, v[%d:%d] offset:%d" % (V_LW, O, O + 3, L_O))
a("ds_write_b128 v%d, v[%d:%d] offset:%d" % (V_LW, O + 4, O + 7, L_O + 1024))
setexec(1)
a("ds_add_u32 v6, v29 offset:%d" % L_CNT)
setexec(-1)
a("s_cmp_ge_u32 s34, 2")
a("s_cbranch_scc1 L_att_exit")
a.label("L_cnt")
a("ds_read_b32 v8, v6 offset:%d" % L_CNT)
a("s_sub_u32 s%d, s%d, 1" % (S_TO, S_TO))
a("s_cbranch_scc1 L_end")
a("s_waitcnt lgkmcnt(0)")
a("v_cmp_gt_u32 vcc, 4, v8")
a("s_cbranch_vccnz L_cnt")
stamp(3)
for w in range(4):
    a("ds_read_b64 v[%d:%d], v22 offset:%d" % (10 + 2 * w, 11 + 2 * w, L_ML + 512 * w))
for w in range(4):
    a("ds_read_b128 v[%d:%d], v21 offset:%d" % (V_G + 4 * w, V_G + 4 * w + 3, L_O + 2048 * w))
a("s_movk_i32 s63, 0xff")
a("s_waitcnt lgkmcnt(4)" if not Cfg.stamps else "s_waitcnt lgkmcnt(0)")
a("v_max3_f32 v18, v10, v12, v14")
a("v_max_f32 v18, v18, v16")
for w in range(4):
    a("v_sub_f32 v%d, v%d, v18" % (10 + 2 * w, 10 + 2 * w))
for w in range(4):
    a("v_exp_f32 v%d, v%d" % (10 + 2 * w, 10 + 2 * w))
a("v_mul_f32 v19, v10, v11")
for w in range(1, 4):
    a("v_fmac_f32 v19, v%d, v%d" % (10 + 2 * w, 11 + 2 * w))
a("v_rcp_f32 v20, v19")
a("v_log_f32 v9, v19")
a("s_waitcnt lgkmcnt(0)")
for r in range(4):
    a("v_mul_f32 v%d, v10, v%d" % (24 + r, V_G + r))
for w in range(1, 4):
    for r in range(4):
        a("v_fmac_f32 v%d, v%d, v%d" % (24 + r, 10 + 2 * w, V_G + 4 * w + r))
a("v_add_f32 v9, v9, v18")
for r in range(4):
    a("v_mul_f32 v%d, v%d, v20" % (24 + r, 24 + r))
a("v_bfi_b32 v30, s63, v%d, v9" % V_T8)
a("v_cvt_pk_bf16_f32 v28, v24, v25")
a("v_cvt_pk_bf16_f32 v29, v26, v27")
a("buffer_store_dwordx4 v[28:31], v21, s[36:39], s50 offen")
def bdefer():
    if Cfg.bd == 1:
        a("s_waitcnt vmcnt(0)")
    elif Cfg.bd > 1:
        a("s_sleep %d" % Cfg.bd)
a("v_mov_b32 v8, 1")
setexec(1)
a("ds_add_u32 v6, v8 offset:%d" % L_CNT)
setexec(-1)
stamp(4)
def skip_if_local(tmp, lab):
    if Cfg.xcc:
        a("v_mov_b32 v%d, 0" % tmp)
        a("ds_read_b32 v%d, v%d offset:%d" % (tmp, tmp, L_CNT + 4))
        a("s_waitcnt lgkmcnt(0)")
        a("v_cmp_eq_u32 vcc, 0, v%d" % tmp)
        a("s_cbranch_vccnz %s" % lab)
bdefer()
skip_if_local(8, "L_end")
if not Cfg.noB:
    a("buffer_store_dwordx4 v[28:31], v21, s[36:39], s51 offen sc1")
a("s_branch L_end")

a.label("L_att_exit")
if Cfg.fpf:
    a("s_cmp_lt_u32 s33, 16")
    a("s_cbranch_scc1 L_end")
    a("s_sub_u32 s52, s33, 16")
    a("s_lshl_b32 s52, s52, 1")
    a("s_add_u32 s52, s52, s34")
    a("s_sub_u32 s52, s52, 2")
    a("s_mul_i32 s54, s32, %d" % (224 * 896))
    a("s_mul_i32 s63, s52, %d" % (49 * 128))
    a("s_add_u32 s54, s54, s63")
    a("s_mul_i32 s49, s32, 448")
    a("s_mul_i32 s63, s52, %d" % (14 * 3584))
    a("s_add_u32 s49, s49, s63")
    a("v_lshrrev_b32 v25, 2, v%d" % V_LANE)
    a("v_mul_u32_u24 v25, 3584, v25")
    a("v_and_b32 v26, 3, v%d" % V_LANE)
    a("v_mul_u32_u24 v26, 148, v26")
    a("v_add_u32 v25, v25, v26")
    a("s_mov_b32 s18, %d" % (448 * 3584))
    a("s_mov_b32 s19, 0x20000")
    a("s_and_b32 s17, s17, 0xffff")
    a("s_mov_b32 s22, %d" % (1792 * 896))
    a("s_mov_b32 s23, 0x20000")
    a("s_and_b32 s21, s21, 0xffff")
    a("s_mov_b32 exec_hi, 0x00ffffff")
    a("buffer_load_dword v250, v25, s[16:19], s49 offen")
    a("s_mov_b32 exec_hi, 0x0001ffff")
    a("buffer_load_dword v250, v24, s[20:23], s54 offen")
a("s_branch L_end")

a.label("L_tail")
a.flush()
a("s_cmp_lg_u32 s34, 4")
a("s_cbranch_scc1 L_tail_common")
a("v_lshrrev_b32 v4, 3, v%d" % V_I16)
a("v_mul_u32_u24 v4, 56, v4")
a("v_mul_u32_u24 v5, 14, v%d" % V_GRP)
a("v_add_u32 v4, v4, v5")
a("v_lshlrev_b32 v5, 13, v4")
a("v_and_b32 v6, 7, v%d" % V_I16)
a("v_lshl_add_u32 v5, v6, 4, v5")
a("v_lshlrev_b32 v4, 1, v4")
a("v_lshlrev_b32 v6, 6, v%d" % V_I16)
a("v_lshl_add_u32 v6, v%d, 4, v6" % V_GRP)
a("s_lshr_b32 s50, s33, 3")
a("s_mul_i32 s52, s50, %d" % (112 * 8192))
a("s_lshl_b32 s53, s32, 10")
a("s_add_u32 s52, s52, s53")
a("s_and_b32 s53, s33, 7")
a("s_lshl_b32 s53, s53, 7")
a("s_add_u32 s52, s52, s53")
a("s_mul_i32 s51, s50, 224")
a("s_mov_b32 s42, %d" % (448 * 8192))
a("s_mov_b32 s43, 0x20000")
a("s_mov_b32 s46, 896")
a("s_mov_b32 s47, 0x20000")
a("s_setprio 3")
a("s_waitcnt lgkmcnt(0)")
a("s_mov_b32 s44, s4")
a("s_and_b32 s45, s5, 0xffff")
a("s_mov_b32 s40, s10")
a("s_and_b32 s41, s11, 0xffff")
stamp(11)
WQ, BQ, XR14 = 32, 88, 144
a("buffer_load_dwordx4 v[%d:%d], v6, s[44:47], 0 offen" % (V_G, V_G + 3))
a("buffer_load_dwordx4 v[%d:%d], v4, s[44:47], s51 offen" % (XR14, XR14 + 3))
a("buffer_load_dwordx3 v[%d:%d], v4, s[44:47], s51 offen offset:16" % (XR14 + 4, XR14 + 6))
for t in range(14):
    a("buffer_load_dwordx4 v[%d:%d], v5, s[40:43], s52 offen%s" % (WQ + 4 * t, WQ + 4 * t + 3, NTQ))
    if t < 13:
        a("s_add_u32 s52, s52, 8192")
stamp(12)
a.label("L_tail_common")
a("s_waitcnt lgkmcnt(0)")
if Cfg.tlb == 2:
    a("s_cmp_lg_u32 s34, 6")
    a("s_cbranch_scc1 L_notlb")
    a("s_mul_i32 s48, s32, %d" % (512 * 896))
    a("s_add_u32 s49, s48, %d" % (511 * 896))
    a("s_mul_i32 s50, s32, %d" % (224 * 896))
    a("s_mov_b32 s51, %d" % (447 * 3584))
    a("s_mov_b32 s54, %d" % (E4 + 2044))
    a("s_lshl_b32 s55, s32, 22")
    a("s_add_u32 s55, s55, %d" % (6144 * 512))
    a("s_load_dword s40, s[8:9], s55")
    a("s_load_dword s41, s[12:13], s48")
    a("s_load_dword s42, s[12:13], s49")
    a("s_load_dword s43, s[20:21], s50")
    a("s_load_dword s44, s[16:17], 0")
    a("s_load_dword s45, s[16:17], s51")
    a("s_load_dword s46, s[18:19], 0")
    a("s_load_dword s47, s[22:23], 0")
    a("s_load_dword s98, s[26:27], s54")
    a.label("L_notlb")
if Cfg.b0:
    a("s_barrier")
a("s_load_dwordx4 s[28:31], s[26:27], %d" % EPOCH)
srd(36, 26, WS_SIZE)
a("s_mov_b32 s%d, %d" % (S_TO, Cfg.timeout))
if Cfg.xcc:
    if Cfg.fakex:
        a("s_and_b32 s99, s33, 15")
    else:
        a("s_getreg_b32 s99, hwreg(HW_REG_XCC_ID)")
        a("s_and_b32 s99, s99, 15")
else:
    a("s_mov_b32 s99, 0")
setmask(S_ODD, 0xAAAAAAAAAAAAAAAA)
setmask(S_M4, 0xF0F0F0F0F0F0F0F0)
setmask(S_M8, 0xFF00FF00FF00FF00)
setmask(S_HI, 0xFFFFFFFF00000000)
a("v_mov_b32 v%d, 1.0" % V_ONE)
a("v_lshrrev_b32 v8, 2, v%d" % V_LANE)
a("v_lshlrev_b32 v8, 11, v8")
a("v_and_b32 v9, 3, v%d" % V_LANE)
a("v_lshl_add_u32 v%d, v9, 4, v8" % V_GA)
make_masks()
a("v_lshl_add_u32 v8, v%d, 3, v%d" % (V_GRP, V_I16))
a("v_lshlrev_b32 v%d, 4, v8" % V_PUB)
a("s_lshl_b32 s52, s32, 13")
a("s_add_u32 s52, s52, %d" % E1)
a("s_lshl_b32 s53, s33, 8")
a("s_add_u32 s53, s53, s52")
a("v_and_b32 v8, 31, v%d" % V_LANE)
a("s_lshl_b32 s63, s35, 5")
a("v_add_u32 v8, s63, v8")
a("v_lshrrev_b32 v9, 5, v%d" % V_LANE)
a("v_lshlrev_b32 v9, 12, v9")
a("v_lshl_add_u32 v24, v8, 4, v9")
a("v_and_b32 v9, 7, v8")
a("v_sub_u32 v8, v8, v9")
a("v_lshl_add_u32 v8, v8, 2, v9")
a("v_lshlrev_b32 v25, 1, v8")
a("s_cmp_lg_u32 s34, 4")
a("s_cbranch_scc1 L_notq")
a("s_add_u32 s49, s53, %d" % BOFF)
a("s_waitcnt vmcnt(14)")
stamp(1)
XF, XV, XE, XP = 152, 160, 176, 216
for k in range(4):
    a("v_lshlrev_b32 v%d, 16, v%d" % (XF + 2 * k, V_G + k))
    a("v_and_b32 v%d, 0xffff0000, v%d" % (XF + 2 * k + 1, V_G + k))
fill = []
for k in range(7):
    fill.append("v_lshlrev_b32 v%d, 16, v%d" % (XV + 2 * k, XR14 + k))
    fill.append("v_and_b32 v%d, 0xffff0000, v%d" % (XV + 2 * k + 1, XR14 + k))
s1, s2 = ln_stats([XF + k for k in range(8)], 0x3FFF3FFF3FFF3FFF, 8, fill)
ln_apply([XV + k for k in range(14)], [XE + k for k in range(14)], [XP + k for k in range(7)], s1, s2)
for t in range(14):
    a("v_cvt_pk_bf16_f32 v%d, v%d, v%d" % (XE + t, XE + t, XE + t))
make_tags()
stamp(6)
QA = V_ACC
for t in range(15):
    if t < 14:
        for rho in range(4):
            a("v_and_b32 v%d, v%d, v%d" % (BQ + 4 * t + rho, XE + t, V_M + rho))
    if t >= 1:
        u = t - 1
        a("s_waitcnt vmcnt(%d)" % (13 - u))
        a("v_mfma_f32_16x16x32_bf16 v[%d:%d], v[%d:%d], v[%d:%d], %s" % (QA, QA + 3, WQ + 4 * u, WQ + 4 * u + 3, BQ + 4 * u, BQ + 4 * u + 3, "0" if u == 0 else "v[%d:%d]" % (QA, QA + 3)))
stamp(2)
a("s_movk_i32 s63, 0xfff")
for r in range(4):
    a("v_mov_b32_dpp v%d, v%d row_ror:8%s" % (8 + r, QA + r, DPPM))
for r in range(4):
    a("v_mov_b32 v%d, v%d" % (12 + r, 8 + r))
for r in range(4):
    a("v_permlane32_swap_b32 v%d, v%d" % (8 + r, 12 + r))
for r in range(4):
    a("v_add_f32 v%d, v%d, v%d" % (12 + r, 12 + r, QA + r))
tag12(28, 12)
setexec(0x0000000000FF00FF)
a("v_xor_b32 v16, s99, v28")
for r in range(1, 4):
    a("v_mov_b32 v%d, v%d" % (16 + r, 28 + r))
a("buffer_store_dwordx4 v[16:19], v%d, s[36:39], s53 offen" % V_PUB)
a("buffer_store_dwordx4 v[28:31], v%d, s[36:39], s49 offen sc1" % V_PUB)
setexec(-1)
a("s_setprio 0")
stamp(3)
a("s_branch L_e1")
a.label("L_notq")
a.flush()
make_tags()
if Cfg.pretouch:
    a("s_cmp_lg_u32 s34, 5")
    a("s_cbranch_scc1 L_nopre")
    a("s_lshl_b32 s55, s32, 5")
    a("s_add_u32 s55, s55, s33")
    a("s_lshl_b32 s55, s55, 11")
    a("v_lshlrev_b32 v8, 7, v%d" % V_I16)
    a("s_add_u32 s63, s55, %d" % E2)
    a("v_add_u32 v9, s63, v8")
    a("s_add_u32 s63, s55, %d" % E3A)
    a("v_add_u32 v10, s63, v8")
    a("v_and_b32 v8, 128, v8")
    a("v_add_u32 v8, s53, v8")
    a("v_cmp_eq_u32 vcc, 1, v%d" % V_GRP)
    a("v_cndmask_b32 v9, v9, v10, vcc")
    a("v_cndmask_b32 v9, v9, v8, s[%d:%d]" % (S_HI, S_HI + 1))
    a("buffer_load_dword v26, v9, s[36:39], 0 offen sc1")
    a.label("L_nopre")
if Cfg.tlb == 1:
    a("s_cmp_lg_u32 s34, 6")
    a("s_cbranch_scc1 L_notlb")
    a("s_mul_i32 s48, s32, %d" % (512 * 896))
    a("s_add_u32 s49, s48, %d" % (511 * 896))
    a("s_mul_i32 s50, s32, %d" % (224 * 896))
    a("s_mov_b32 s51, %d" % (447 * 3584))
    a("s_mov_b32 s54, %d" % E4)
    a("v_mov_b32 v8, 0")
    setexec(1)
    srd(40, 12, 4096 * 896)
    a("buffer_load_dword v26, v8, s[40:43], s48 offen")
    a("buffer_load_dword v26, v8, s[40:43], s49 offen")
    srd(40, 20, 1792 * 896)
    a("buffer_load_dword v26, v8, s[40:43], s50 offen")
    srd(40, 16, 448 * 3584)
    a("buffer_load_dword v26, v8, s[40:43], 0 offen")
    a("buffer_load_dword v26, v8, s[40:43], s51 offen")
    srd(40, 18, 1792 * 2)
    a("buffer_load_dword v26, v8, s[40:43], 0 offen")
    srd(40, 22, 896)
    a("buffer_load_dword v26, v8, s[40:43], 0 offen")
    a("buffer_load_dword v26, v8, s[36:39], s54 offen offset:2044")
    setexec(-1)
    a.label("L_notlb")
if Cfg.cpf:
    a("s_cmp_lg_u32 s34, 7")
    a("s_cbranch_scc1 L_nocpf")
    a("s_getpc_b64 s[48:49]")
    a.label("L_pc")
    a("s_sub_u32 s48, s48, L_pc-%s_kernel" % NAME)
    a("s_subb_u32 s49, s49, 0")
    a("v_lshlrev_b32 v8, 7, v%d" % V_LANE)
    a("v_min_u32 v9, L_exit-%s_kernel-8192, v8" % NAME)
    a("global_load_dword v26, v8, s[48:49]")
    a("v_add_u32 v9, 8192, v9")
    a("global_load_dword v26, v9, s[48:49]")
    a.label("L_nocpf")
if Cfg.pace:
    a("s_sleep %d" % Cfg.e1w)
a.label("L_e1")
if not Cfg.pace:
    a("s_barrier")
sel_init(32)
P = Cfg.npipe if Cfg.pace else len(SEGS)
GS = [V_S2 + 8 * k for k in range(P)]
XC = 12
V_E0 = 27
def e1_issue(k):
    a("s_add_u32 s53, s52, s%d" % S_SEL)
    a("s_cmp_eq_u32 s%d, 0" % S_SEL)
    a("s_cselect_b32 s98, s99, 0")
    a("s_cselect_b32 s0, 0, 1")
    a("v_xor_b32 v%d, s98, v%d" % (V_E0, V_T))
    for u in range(2):
        a("buffer_load_dwordx4 v[%d:%d], v24, s[36:39], s53 offen offset:%d sc1" % (GS[k] + 4 * u, GS[k] + 4 * u + 3, 2048 * u))
    sel_step(True)
if Cfg.pace:
    for k in range(P):
        e1_issue(k)
        if k < P - 1:
            a("s_sleep %d" % Cfg.ps1)
    a.label("L_e1poll")
    for k in range(P):
        a("s_waitcnt vmcnt(%d)" % (2 * (P - 1)))
        check12(2, XC, "L_e1ok", GS[k], V_E0)
        e1_issue(k)
    a("s_branch L_e1poll")
else:
    for k in range(P):
        a("s_barrier")
        e1_issue(k)
        a("s_barrier")
    stamp(7)
    for k in range(P):
        a("s_waitcnt vmcnt(%d)" % (2 * (P - 1 - k)))
        check12(2, XC, "L_e1ok", GS[k], V_E0)
    a.label("L_e1poll")
    e1_issue(0)
    a("s_waitcnt vmcnt(0)")
    check12(2, XC, "L_e1ok", GS[0], V_E0)
    a("s_branch L_e1poll")
a.label("L_e1ok")
for r in range(4):
    a("v_add_f32 v%d, v%d, v%d" % (XC + r, XC + r, XC + 4 + r))
for r in range(4):
    a("v_mov_b32 v%d, v%d" % (XC + 4 + r, XC + r))
for r in range(4):
    a("v_permlane32_swap_b32 v%d, v%d" % (XC + r, XC + 4 + r))
for r in range(4):
    a("v_add_f32 v%d, v%d, v%d" % (XC + r, XC + r, XC + 4 + r))
a("v_cvt_pk_bf16_f32 v8, v%d, v%d" % (XC, XC + 1))
a("v_cvt_pk_bf16_f32 v9, v%d, v%d" % (XC + 2, XC + 3))
a("s_mov_b32 exec_hi, 0")
a("ds_write_b16 v25, v8 offset:%d" % (L_Q))
a("ds_write_b16_d16_hi v25, v8 offset:%d" % (L_Q + 16))
a("ds_write_b16 v25, v9 offset:%d" % (L_Q + 32))
a("ds_write_b16_d16_hi v25, v9 offset:%d" % (L_Q + 48))
setexec(-1)
if Cfg.xcc:
    a("s_cmp_eq_u32 s0, 0")
    a("s_cbranch_scc1 L_fastq")
    a("v_mov_b32 v10, 0")
    a("v_mov_b32 v11, 1")
    a("ds_write_b32 v10, v11 offset:%d" % (L_CNT + 4))
    a.label("L_fastq")
a("s_waitcnt lgkmcnt(0)")
stamp(4)
a("s_barrier")
a("s_cmp_ge_u32 s33, 30")
a("s_cbranch_scc1 L_end")
a("s_cmp_ge_u32 s33, 23")
a("s_cbranch_scc1 L_R")
a("s_cmp_ge_u32 s33, 16")
a("s_cbranch_scc1 L_F")

def poll(name, issue, nload, check, dual, sets=1, shadow=None, D=None):
    D = D or Cfg.pd
    ok = name + "_ok"
    for r in range(D):
        issue(r % sets)
        if r < D - 1 and Cfg.pds:
            a("s_sleep %d" % Cfg.pds)
    if shadow:
        shadow()
    a.label(name)
    n = sets if sets > 1 else 1
    for k in range(n):
        a("s_waitcnt vmcnt(%d)" % (nload * (D - 1)))
        check(k, ok)
        sel_step(True if dual else None)
        if not dual and Cfg.xls:
            a("s_sleep %d" % Cfg.xls)
        issue(k)
    a("s_branch %s" % name)
    a.label(ok)

def wait_cnt(n):
    lab = a.newlabel("L_wc")
    a("v_mov_b32 v5, 0")
    a.label(lab)
    a("ds_read_b32 v7, v5 offset:%d" % L_CNT)
    a("s_sub_u32 s%d, s%d, 1" % (S_TO, S_TO))
    a("s_cbranch_scc1 L_end")
    a("s_sleep 1")
    a("s_waitcnt lgkmcnt(0)")
    a("v_cmp_gt_u32 vcc, %d, v7" % n)
    a("s_cbranch_vccnz %s" % lab)

a("s_lshl_b32 s48, s33, 1")
a("s_lshr_b32 s49, s35, 1")
a("s_add_u32 s48, s48, s49")
a("s_lshl_b32 s50, s32, 9")
a("s_bfe_u32 s49, s48, 0x10001")
a("s_lshl_b32 s49, s49, 8")
a("s_add_u32 s50, s50, s49")
a("s_lshr_b32 s49, s48, 4")
a("s_lshl_b32 s49, s49, 7")
a("s_add_u32 s50, s50, s49")
a("s_bfe_u32 s49, s48, 0x20002")
a("s_lshl_b32 s49, s49, 5")
a("s_add_u32 s50, s50, s49")
a("s_and_b32 s49, s48, 1")
a("s_lshl_b32 s49, s49, 2")
a("s_add_u32 s50, s50, s49")
a("s_mul_i32 s50, s50, 896")
a("s_and_b32 s49, s35, 1")
a("s_lshl_b32 s49, s49, 9")
a("s_add_u32 s50, s50, s49")
a("v_mul_u32_u24 v6, 7168, v%d" % V_GRP)
a("v_lshl_add_u32 v6, v%d, 4, v6" % V_I16)
srd(40, 12, 4096 * 896)
a("s_lshl_b32 s54, s32, 16")
a("s_lshl_b32 s63, s48, 6")
a("s_add_u32 s54, s54, s63")
a("s_lshl_b32 s55, s32, 5")
a("s_add_u32 s55, s55, s48")
a("s_lshl_b32 s55, s55, 11")
a("s_lshl_b32 s49, s49, 1")
a("s_add_u32 s55, s55, s49")
a("s_add_u32 s52, s55, %d" % E3A)
a("s_add_u32 s53, s55, %d" % (E3A + BOFF))
a("v_cmp_lt_u32 s[6:7], 7, v%d" % V_I16)
a("v_add_u32 v4, %d, v%d" % (512 - 128, V_PUB))
a("v_cndmask_b32 v4, v%d, v4, s[6:7]" % V_PUB)
a("s_mov_b64 s[8:9], -1")
a("s_bitcmp1_b32 s35, 0")
a("s_cselect_b32 s9, 0x00ff00ff, s9")
a("s_mov_b32 s0, 0")
if Cfg.dry & 1:
    a("s_mov_b32 s0, 1")
    a("s_mov_b64 s[6:7], 0")
    a("s_branch L_e2poll_ok")
    a.label("L_odry")
    a("s_mov_b32 s0, 0")
wait_cnt(Cfg.ocnt)
if Cfg.os:
    a("s_sleep %d" % Cfg.os)
for q in range(4):
    a("buffer_load_dwordx4 v[%d:%d], v6, s[40:43], s50 offen offset:%d%s" % (V_W + 4 * q, V_W + 4 * q + 3, 896 * q, NTL))
a("s_mov_b32 exec_lo, s9")
a("s_mov_b32 exec_hi, s9")
for q in range(4):
    a("buffer_load_dwordx4 v[%d:%d], v6, s[40:43], s50 offen offset:%d%s" % (V_W + 16 + 4 * q, V_W + 16 + 4 * q + 3, 896 * q + 256, NTL))
setexec(-1)
sel_init()
stamp(1)
E2S = [V_S1 + 8 * k for k in range(Cfg.pd)]
def e2_issue(k):
    a("s_add_u32 s48, s54, s%d" % S_SEL)
    a("s_add_u32 s49, s48, %d" % (E2 + 16 * 2048))
    a("s_add_u32 s48, s48, %d" % E2)
    a("buffer_load_dwordx4 v[%d:%d], v%d, s[36:39], s48 offen sc1" % (E2S[k], E2S[k] + 3, V_GA))
    a("buffer_load_dwordx4 v[%d:%d], v%d, s[36:39], s49 offen sc1" % (E2S[k] + 4, E2S[k] + 7, V_GA))
def e2_check(k, ok):
    G = E2S[k]
    a("v_xor_b32 v10, v%d, v%d" % (G + 2, V_T8))
    a("v_xor_b32 v11, v%d, v%d" % (G + 6, V_T8))
    a("v_xor_b32 v12, v%d, v%d" % (G + 3, V_TB))
    a("v_xor_b32 v13, v%d, v%d" % (G + 7, V_TB))
    a("v_or_b32 v14, v10, v11")
    a("v_and_b32 v14, 0xff, v14")
    a("v_or3_b32 v14, v14, v12, v13")
    a("v_cmp_ne_u32 vcc, 0, v14")
    for t in range(2):
        a("v_lshlrev_b32 v%d, 16, v%d" % (16 + 4 * t, G + 4 * t))
        a("v_and_b32 v%d, 0xffff0000, v%d" % (17 + 4 * t, G + 4 * t))
        a("v_lshlrev_b32 v%d, 16, v%d" % (18 + 4 * t, G + 4 * t + 1))
        a("v_and_b32 v%d, 0xffff0000, v%d" % (19 + 4 * t, G + 4 * t + 1))
    a("s_cbranch_vccz %s" % ok)
poll("L_e2poll", e2_issue, 2, e2_check, True, sets=Cfg.pd)
stamp(5)
a("v_max_f32 v14, v10, v11")
a("v_max_f32_dpp v14, v14, v14 row_ror:8%s" % DPPM)
a("v_max_f32_dpp v14, v14, v14 row_ror:4%s" % DPPM)
bfly("v_max_f32", 14, 15, 16)
bfly("v_max_f32", 14, 15, 32)
a("v_sub_f32 v10, v10, v14")
a("v_sub_f32 v11, v11, v14")
a("v_exp_f32 v10, v10")
a("v_exp_f32 v11, v11")
a("s_movk_i32 s63, 0xfff")
for r in range(4):
    a("v_mul_f32 v%d, v%d, v10" % (16 + r, 16 + r))
a("v_add_f32 v12, v10, v11")
for r in range(4):
    a("v_fmac_f32 v%d, v%d, v11" % (16 + r, 20 + r))
a("v_add_f32_dpp v12, v12, v12 row_ror:8%s" % DPPM)
a("v_add_f32_dpp v12, v12, v12 row_ror:4%s" % DPPM)
a("v_mfma_f32_16x16x4_f32 v[%d:%d], v12, v%d, 0" % (V_ACC + 4, V_ACC + 7, V_ONE))
reduce16([16, 17, 18, 19], 13)
a("v_mfma_f32_16x16x4_f32 v[%d:%d], v13, v%d, 0" % (V_ACC, V_ACC + 3, V_ONE))
a("v_rcp_f32 v12, v%d" % (V_ACC + 4))
for r in range(4):
    a("v_mul_f32 v%d, v%d, v12" % (16 + r, V_ACC + r))
for r in range(4):
    a("v_cvt_pk_bf16_f32 v%d, v%d, v%d" % (16 + r, 16 + r, 16 + r))
A2 = V_ACC + 8
BB = V_BB
def omf(qq):
    for b in range(2):
        a("v_mfma_f32_16x16x32_bf16 v[%d:%d], v[%d:%d], v[%d:%d], %s" % (A2 + 4 * b, A2 + 4 * b + 3, V_W + 16 * b + 4 * qq, V_W + 16 * b + 4 * qq + 3, BB + 4 * qq, BB + 4 * qq + 3, "0" if qq == 0 else "v[%d:%d]" % (A2 + 4 * b, A2 + 4 * b + 3)))
for q in range(4):
    for rho in range(4):
        a("v_and_b32 v%d, v%d, v%d" % (BB + 4 * q + rho, 16 + q, V_M + rho))
    if q >= 1:
        omf(q - 1)
omf(3)
for r in range(4):
    a("v_cndmask_b32 v%d, v%d, v%d, s[6:7]" % (24 + r, A2 + r, A2 + 4 + r))
tag12(28, 24)
if Cfg.dry & 1:
    a("s_cmp_eq_u32 s0, 1")
    a("s_cbranch_scc1 L_odry")
a("s_mov_b64 exec, s[8:9]")
a("buffer_store_dwordx4 v[28:31], v4, s[36:39], s52 offen")
stamp(6)
bdefer()
skip_if_local(8, "L_end")
if not Cfg.noB:
    a("buffer_store_dwordx4 v[28:31], v4, s[36:39], s53 offen sc1")
setexec(-1)
if Cfg.w2l:
    a("s_lshl_b32 s48, s33, 2")
    a("s_add_u32 s48, s48, s35")
    a("s_mul_i32 s48, s48, %d" % (25 * 128))
    a("s_mul_i32 s63, s32, %d" % (224 * 896))
    a("s_add_u32 s48, s48, s63")
    a("v_lshlrev_b32 v24, 7, v%d" % V_LANE)
    srd(40, 20, 1792 * 896)
    setexec(0x1ffffff)
    a("buffer_load_dword v250, v24, s[40:43], s48 offen")
a("s_branch L_end")

a.label("L_R")
a.flush()
a("s_sub_u32 s50, s33, 23")
a("s_lshl_b32 s52, s50, 2")
a("s_add_u32 s52, s52, s35")
a("s_lshl_b32 s54, s32, 16")
a("s_lshl_b32 s63, s52, 6")
a("s_add_u32 s54, s54, s63")
a("s_mul_i32 s53, s52, %d" % Cfg.ss)
a("s_add_u32 s53, s53, %d" % E3X)
a("s_lshl_b32 s51, s32, 12")
a("s_add_u32 s51, s51, s53")
a("s_lshl_b32 s55, s32, 11")
a("s_lshl_b32 s63, s52, 6")
a("s_add_u32 s55, s55, s63")
a("s_add_u32 s55, s55, %d" % E3L)
a("v_lshlrev_b32 v4, 4, v%d" % V_GRP)
a("s_lshr_b32 s63, s52, 1")
a("s_lshl_b32 s63, s63, 6")
a("s_and_b32 s48, s52, 1")
a("s_lshl_b32 s48, s48, 3")
a("s_add_u32 s63, s63, s48")
a("v_lshl_add_u32 v%d, v%d, 4, s63" % (V_XA, V_GRP))
srd(44, 4, 896)
a("buffer_load_dwordx2 v[%d:%d], v%d, s[44:47], 0 offen" % (V_X + 1, V_X + 2, V_XA))
a("v_and_b32 v8, 7, v%d" % V_I16)
a("v_lshlrev_b32 v8, 12, v8")
a("v_lshl_add_u32 v%d, v%d, 4, v8" % (V_LW, V_GRP))
if Cfg.rpf:
    a("s_mul_i32 s48, s32, %d" % (224 * 896))
    a("s_mul_i32 s63, s52, %d" % (56 * 128))
    a("s_add_u32 s48, s48, s63")
    a("s_mul_i32 s49, s32, 448")
    a("s_mul_i32 s63, s52, %d" % (16 * 3584))
    a("s_add_u32 s49, s49, s63")
    a("v_lshrrev_b32 v25, 2, v%d" % V_LANE)
    a("v_mul_u32_u24 v25, 3584, v25")
    a("v_and_b32 v26, 3, v%d" % V_LANE)
    a("v_mul_u32_u24 v26, 148, v26")
    a("v_add_u32 v25, v25, v26")
    a("v_lshlrev_b32 v24, 7, v%d" % V_LANE)
    srd(40, 16, 448 * 3584)
    srd(8, 20, 1792 * 896)
wait_cnt(6)
if Cfg.rpf:
    a("buffer_load_dword v250, v25, s[40:43], s49 offen")
    a("s_mov_b32 exec_hi, 0x00ffffff")
    a("buffer_load_dword v250, v24, s[8:11], s48 offen")
    setexec(-1)
sel_init()
if Cfg.rs:
    a("s_sleep %d" % Cfg.rs)
def e3a_issue(k):
    a("s_add_u32 s48, s54, s%d" % S_SEL)
    a("s_add_u32 s49, s48, %d" % (E3A + 16 * 2048))
    a("s_add_u32 s48, s48, %d" % E3A)
    a("buffer_load_dwordx4 v[%d:%d], v%d, s[36:39], s48 offen sc1" % (V_S2, V_S2 + 3, V_GA))
    a("buffer_load_dwordx4 v[%d:%d], v%d, s[36:39], s49 offen sc1" % (V_S2 + 4, V_S2 + 7, V_GA))
poll("L_e3apoll", e3a_issue, 2, lambda k, ok: check12(2, 12, ok, V_S2), True)
stamp(7)
for r in range(4):
    a("v_add_f32 v%d, v%d, v%d" % (12 + r, 12 + r, 16 + r))
reduce16([12, 13, 14, 15], 9)
a("v_mfma_f32_16x16x4_f32 v[%d:%d], v9, v%d, 0" % (V_ACC, V_ACC + 3, V_ONE))
a("s_movk_i32 s63, 0xfff")
setexec(0x0001000100010001)
tag12(28, V_ACC)
a("buffer_store_dwordx4 v[28:31], v4, s[36:39], s51 offen sc1")
if Cfg.lh:
    a("buffer_store_dwordx4 v[28:31], v4, s[36:39], s55 offen")
setexec(-1)
stamp(8)
a("s_cmp_lg_u32 s50, s32")
a("s_cbranch_scc1 L_end")
a.label("L_hpoll")
a("s_sleep 2")
a("buffer_load_dwordx4 v[%d:%d], v%d, s[36:39], s53 offen sc1" % (V_G, V_G + 3, V_LW))
a("s_waitcnt vmcnt(0)")
check12(1, 12, "L_hok")
retry("L_hpoll", False)
a.label("L_hok")
stamp(9)
for pat in ("quad_perm:[1,0,3,2]", "quad_perm:[2,3,0,1]", "row_half_mirror"):
    for r in range(4):
        a("v_add_f32_dpp v%d, v%d, v%d %s%s" % (12 + r, 12 + r, 12 + r, pat, DPPM))
for r in range(4):
    a("v_mov_b32 v%d, v%d" % (V_ACC + r, 12 + r))
a("v_lshlrev_b32 v%d, 16, v%d" % (V_X, V_X + 1))
a("v_and_b32 v%d, 0xffff0000, v%d" % (V_X + 1, V_X + 1))
a("v_and_b32 v%d, 0xffff0000, v%d" % (V_X + 3, V_X + 2))
a("v_lshlrev_b32 v%d, 16, v%d" % (V_X + 2, V_X + 2))
def round_add_round(src, add):
    a("v_cvt_pk_bf16_f32 v10, v%d, v%d" % (src, src + 1))
    a("v_cvt_pk_bf16_f32 v11, v%d, v%d" % (src + 2, src + 3))
    a("v_lshlrev_b32 v12, 16, v10")
    a("v_and_b32 v13, 0xffff0000, v10")
    a("v_lshlrev_b32 v14, 16, v11")
    a("v_and_b32 v15, 0xffff0000, v11")
    for r in range(4):
        a("v_add_f32 v%d, v%d, v%d" % (12 + r, 12 + r, add + r))
    a("v_cvt_pk_bf16_f32 v10, v12, v13")
    a("v_cvt_pk_bf16_f32 v11, v14, v15")
round_add_round(V_ACC, V_X)
a("v_lshlrev_b32 v%d, 16, v10" % (V_X))
a("v_and_b32 v%d, 0xffff0000, v10" % (V_X + 1))
a("v_lshlrev_b32 v%d, 16, v11" % (V_X + 2))
a("v_and_b32 v%d, 0xffff0000, v11" % (V_X + 3))
a("s_lshl_b32 s48, s52, 6")
a("s_add_u32 s48, s48, %d" % E4)
for t in range(1, 4):
    a("s_add_u32 s%d, s48, %d" % (48 + t, t * 16 * 2048))
for r in range(4):
    a("v_mov_b32 v%d, v%d" % (V_G + 12 + r, V_T + r))
srd(44, 22, 896)
if Cfg.e4s:
    a("s_sleep %d" % Cfg.e4s)
XR = V_S1
def e4_issue(k):
    for t in range(4):
        if t == 3:
            a("s_mov_b32 exec_hi, 0")
        a("buffer_load_dwordx4 v[%d:%d], v%d, s[36:39], s%d offen sc1" % (V_G + 4 * t, V_G + 4 * t + 3, V_GA, 48 + t))
    setexec(-1)
poll("L_e4poll", e4_issue, 4, lambda k, ok: check12(4, XR, ok), False, D=Cfg.pd4)
stamp(10)
for r in range(4):
    a("v_add_f32 v%d, v%d, v%d" % (XR + r, XR + r, XR + 4 + r))
    a("v_add_f32 v%d, v%d, v%d" % (XR + 8 + r, XR + 8 + r, XR + 12 + r))
for r in range(4):
    a("v_add_f32 v%d, v%d, v%d" % (XR + r, XR + r, XR + 8 + r))
reduce16([XR, XR + 1, XR + 2, XR + 3], 9)
a("v_mfma_f32_16x16x4_f32 v[%d:%d], v9, v%d, 0" % (V_ACC, V_ACC + 3, V_ONE))
round_add_round(V_ACC, V_X)
setexec(0x0001000100010001)
a("buffer_store_dwordx2 v[10:11], v%d, s[44:47], 0 offen" % V_XA)
a("s_cmp_lg_u32 s52, 0")
a("s_cbranch_scc1 L_noep")
setexec(1)
a("v_mov_b32 v9, 0")
for k in range(4):
    a("v_mov_b32 v%d, s%d" % (12 + k, 28 + k))
a("buffer_store_dwordx4 v[12:15], v9, s[36:39], 0 offen offset:%d" % EPOCH)
a.label("L_noep")
setexec(-1)
stamp(14)
a("s_branch L_end")

a.label("L_F")
a.flush()
a("s_mul_i32 s50, s32, 7")
a("s_add_u32 s50, s50, s33")
a("s_sub_u32 s50, s50, 16")
a("s_lshl_b32 s51, s50, 2")
a("s_add_u32 s51, s51, s35")
a("v_lshrrev_b32 v8, 3, v%d" % V_I16)
a("v_sub_u32 v8, v%d, v8" % V_I16)
a("v_min_u32 v8, 13, v8")
a("v_lshlrev_b32 v8, 6, v8")
a("v_lshl_add_u32 v23, v%d, 4, v8" % V_GRP)
if Cfg.lin:
    setexec(0x8080808080808080)
    a("v_mov_b32 v23, 896")
    for k in range(4):
        a("v_mov_b32 v%d, 0" % (12 + k))
    a("ds_write_b128 v23, v[12:15] offset:%d" % L_H)
    setexec(-1)
a("v_bfe_u32 v8, v%d, 2, 3" % V_LANE)
a("v_min_u32 v8, 6, v8")
a("v_and_b32 v9, 3, v%d" % V_LANE)
a("v_mul_u32_u24 v10, %d, v8" % Cfg.ss)
a("v_lshl_add_u32 v10, v9, 4, v10")
a("v_lshrrev_b32 v11, 5, v%d" % V_LANE)
a("v_lshl_add_u32 v%d, v11, 12, v10" % V_XA)
a("s_mul_i32 s63, s35, 7")
a("v_add_u32 v8, s63, v8")
a("v_lshrrev_b32 v10, 1, v8")
a("v_lshlrev_b32 v10, 6, v10")
a("v_and_b32 v8, 1, v8")
a("v_lshl_add_u32 v10, v8, 3, v10")
a("v_lshl_add_u32 v24, v9, 4, v10")
a("v_and_b32 v10, 1, v%d" % V_GRP)
a("v_and_b32 v11, 1, v%d" % V_I16)
a("v_lshlrev_b32 v25, 2, v10")
a("v_and_b32 v26, 2, v%d" % V_GRP)
a("v_add_u32 v25, v25, v26")
a("v_mul_u32_u24 v26, 896, v25")
a("v_lshl_add_u32 v26, v%d, 4, v26" % V_I16)
a("v_add_u32 v25, v25, v11")
a("v_lshlrev_b32 v25, 1, v25")
a("v_bfe_u32 v27, v%d, 1, 1" % V_I16)
a("v_mul_u32_u24 v27, %d, v27" % (224 * 64))
a("v_lshl_add_u32 v27, v%d, 9, v27" % V_GRP)
a("v_lshrrev_b32 v12, 2, v%d" % V_I16)
a("v_lshl_add_u32 v27, v12, 6, v27")
a("v_lshl_add_u32 v27, v11, 3, v27")
a("s_lshl_b32 s63, s35, 4")
a("v_add_u32 v%d, s63, v27" % V_W1A)
a("v_lshrrev_b32 v27, 2, v%d" % V_LANE)
a("v_mul_u32_u24 v27, 3584, v27")
a("v_and_b32 v12, 3, v%d" % V_LANE)
a("v_lshl_add_u32 v27, v12, 4, v27")
a("s_lshl_b32 s63, s35, 11")
a("v_lshl_add_u32 v%d, v%d, 4, s63" % (V_LW, V_LANE))
srd(40, 16, 448 * 3584)
srd(44, 20, 1792 * 896)
srd(8, 4, 896)
srd(12, 18, 1792 * 2)
a("s_mul_i32 s52, s35, %d" % (112 * 3584))
a("s_lshl_b32 s63, s50, 6")
a("s_add_u32 s52, s52, s63")
a("s_mul_i32 s53, s35, 7168")
a("s_add_u32 s53, s53, %d" % L_W1)
a("s_mul_i32 s54, s51, %d" % (8 * 896))
a("s_lshl_b32 s55, s51, 4")
a("s_mul_i32 s24, s35, %d" % (7 * Cfg.ss))
a("s_add_u32 s24, s24, %d" % E3X)
a("s_add_u32 s25, s24, 8192")
a("s_add_u32 s26, s24, 16384")
a("s_add_u32 s27, s24, 24576")
a("s_mov_b32 s6, %d" % (16 * 3584))
a("s_movk_i32 s7, 1024")
if Cfg.zig:
    a("s_bitcmp1_b32 s50, 0")
    a("s_cbranch_scc0 L_nozig")
    a("s_add_u32 s52, s52, %d" % (6 * 16 * 3584))
    a("s_add_u32 s53, s53, 6144")
    a("s_mov_b32 s6, %d" % (-16 * 3584))
    a("s_movk_i32 s7, -1024")
    a.label("L_nozig")
def w1_loads():
    for t in range(7):
        a("s_mov_b32 m0, s53")
        a("buffer_load_dwordx4 v27, s[40:43], s52 offen%s lds" % NTW)
        if t < 6:
            a("s_add_u32 s52, s52, s6")
            a("s_add_u32 s53, s53, s7")
def w2_loads():
    for b in range(4):
        if b == 3:
            setexec(0x00FF00FF00FF00FF)
        for q in range(2):
            a("buffer_load_dwordx4 v[%d:%d], v26, s[44:47], s54 offen offset:%d%s" % (V_W + 8 * b + 4 * q, V_W + 8 * b + 4 * q + 3, 896 * q + 256 * b, NTL))
    setexec(-1)
def small_loads():
    a("buffer_load_dwordx2 v[%d:%d], v24, s[8:11], 0 offen" % (V_X + 1, V_X + 2))
    a("buffer_load_ushort v%d, v25, s[12:15], s55 offen" % V_B1)
if Cfg.w2e:
    w2_loads()
    small_loads()
wait_cnt(Cfg.fcnt)
if Cfg.fs:
    a("s_sleep %d" % Cfg.fs)
stamp(1)
if Cfg.w2e:
    w1_loads()
else:
    if not Cfg.w2first:
        w1_loads()
    if not Cfg.w2l:
        w2_loads()
    if Cfg.w2first:
        w1_loads()
    small_loads()
a("s_lshl_b32 s48, s50, 11")
a("s_lshl_b32 s63, s35, 10")
a("s_add_u32 s48, s48, s63")
a("s_add_u32 s48, s48, %d" % E4)
a("v_cmp_lt_u32 s[6:7], 7, v%d" % V_I16)
a("v_add_u32 v4, %d, v%d" % (512 - 128, V_PUB))
a("v_cndmask_b32 v4, v%d, v4, s[6:7]" % V_PUB)
a("s_lshl_b32 s63, s35, 10")
a("v_lshl_add_u32 v21, v%d, 4, s63" % V_LANE)
D1 = V_S2
V_CS = 251
def ffn1(AF, dst, fill=()):
    fill = list(fill)
    def f(n):
        for _ in range(n):
            if fill:
                a(fill.pop(0))
    for m in range(7):
        a("v_mfma_f32_16x16x32_bf16 v[%d:%d], v[%d:%d], v[%d:%d], 0" % (D1 + 4 * m, D1 + 4 * m + 3, AF, AF + 3, V_W1F + 4 * m, V_W1F + 4 * m + 3))
    return
def ffn1_tail(dst, t):
    a("v_mov_b32 v%d, 0" % dst)
    setexec(0x0000FF00000000FF)
    a("v_add_f32 v%d, v%d, v%d" % (dst, D1 + 0, D1 + 4 + 1))
    a("v_add_f32 v%d, v%d, v%d" % (t, D1 + 8 + 2, D1 + 12 + 3))
    a("v_add_f32 v%d, v%d, v%d" % (dst, dst, t))
    setexec(0xFF00000000FF0000)
    a("v_add_f32 v%d, v%d, v%d" % (dst, D1 + 16, D1 + 20 + 1))
    a("v_add_f32 v%d, v%d, v%d" % (dst, dst, D1 + 24 + 2))
    setexec(-1)
    a("v_add_f32_dpp v%d, v%d, v%d row_ror:8%s" % (dst, dst, dst, DPPM))
    a("v_mfma_f32_16x16x4_f32 v[%d:%d], v%d, v%d, 0" % (V_ACC, V_ACC + 3, dst, V_ONE))
def ffn1_sel(dst, t):
    a("v_cndmask_b32 v%d, v%d, v%d, s[%d:%d]" % (dst, V_ACC, V_ACC + 1, S_ODD, S_ODD + 1))
    a("v_cndmask_b32 v%d, v%d, v%d, s[%d:%d]" % (t, V_ACC + 2, V_ACC + 3, S_ODD, S_ODD + 1))
    a("v_cndmask_b32 v%d, v%d, v%d, s[%d:%d]" % (dst, dst, t, S_HI, S_HI + 1))
AF = 176
def e3x_issue(k):
    for t in range(4):
        a("buffer_load_dwordx4 v[%d:%d], v%d, s[36:39], s%d offen sc1" % (V_G + 4 * t, V_G + 4 * t + 3, V_XA, 24 + t))
a("v_min_u32 v22, 27, v%d" % V_LANE)
a("v_lshlrev_b32 v22, 4, v22")
a("s_lshl_b32 s49, s32, 11")
a("s_mul_i32 s63, s35, 448")
a("s_add_u32 s49, s49, s63")
a("s_add_u32 s49, s49, %d" % E3L)
a("s_mov_b32 s1, %d" % Cfg.bthr)
if Cfg.lh2:
    a("buffer_load_dwordx4 v[%d:%d], v22, s[36:39], s49 offen sc1" % (V_G, V_G + 3))
    a("s_waitcnt vmcnt(0)")
    stamp(5)
    check12(1, XR, "L_lh1")
    a("s_branch L_lh2")
    a.label("L_lh1")
    e3x_issue(0)
    a("s_mov_b32 s1, -1")
    a.label("L_lh2")
    a("s_barrier")
elif not Cfg.e3e:
    a("s_waitcnt vmcnt(0)")
    stamp(5)
    a("s_barrier")
def f_shadow():
    if Cfg.e3e:
        a("s_waitcnt vmcnt(%d)" % (4 * Cfg.pd))
        stamp(5)
        a("s_barrier")
    for m in range(7):
        for u in range(2):
            a("ds_read_b64_tr_b16 v[%d:%d], v%d offset:%d" % (V_W1F + 4 * m + 2 * u, V_W1F + 4 * m + 2 * u + 1, V_W1A, L_W1 + 2048 * m + 256 * u))
    a("v_lshlrev_b32 v%d, 16, v%d" % (V_B1, V_B1))
    a("v_lshlrev_b32 v%d, 16, v%d" % (V_X, V_X + 1))
    a("v_and_b32 v%d, 0xffff0000, v%d" % (V_X + 1, V_X + 1))
    a("v_and_b32 v%d, 0xffff0000, v%d" % (V_X + 3, V_X + 2))
    a("v_lshlrev_b32 v%d, 16, v%d" % (V_X + 2, V_X + 2))
    if Cfg.lin:
        for k in range(4):
            a("v_mov_b32 v%d, 0x3f803f80" % (AF + k))
        a("s_waitcnt lgkmcnt(0)")
        ffn1(AF, V_CS)
        ffn1_tail(V_CS, 9)
        ffn1_sel(V_CS, 9)
if Cfg.lh:
    f_shadow()
    if Cfg.lh2:
        a("s_cmp_eq_u32 s1, -1")
        a("s_cbranch_scc1 L_e3xpoll")
    a.label("L_lh")
    a("buffer_load_dwordx4 v[%d:%d], v22, s[36:39], s49 offen sc1" % (V_G, V_G + 3))
    a("s_sub_u32 s1, s1, 1")
    a("s_cbranch_scc1 L_lhok")
    a("s_waitcnt vmcnt(0)")
    check12(1, XR, "L_lhok")
    a("s_branch L_lh")
    a.label("L_lhok")
    if Cfg.xs:
        a("s_sleep %d" % Cfg.xs)
    assert Cfg.pdx == 1 or not Cfg.lh2
    poll("L_e3xpoll", e3x_issue, 4, lambda k, ok: check12(4, XR, ok), False, D=Cfg.pdx)
else:
    poll("L_e3xpoll", e3x_issue, 4, lambda k, ok: check12(4, XR, ok), False, shadow=f_shadow)
stamp(9)
if Cfg.w2l:
    w2_loads()
for r in range(4):
    a("v_add_f32 v%d, v%d, v%d" % (XR + r, XR + r, XR + 4 + r))
    a("v_add_f32 v%d, v%d, v%d" % (XR + 8 + r, XR + 8 + r, XR + 12 + r))
for r in range(4):
    a("v_add_f32 v%d, v%d, v%d" % (XR + r, XR + r, XR + 8 + r))
for r in range(4):
    a("v_mov_b32 v%d, v%d" % (XR + 4 + r, XR + r))
for r in range(4):
    a("v_permlane32_swap_b32 v%d, v%d" % (XR + r, XR + 4 + r))
for r in range(4):
    a("v_add_f32 v%d, v%d, v%d" % (XR + r, XR + r, XR + 4 + r))
round_add_round(XR, V_X)
a("ds_write_b64 v24, v[10:11] offset:%d" % L_H)
a("s_waitcnt lgkmcnt(0)")
a("s_barrier")
stamp(10)
PR = V_S1
if Cfg.lin:
    a("ds_read_b128 v[%d:%d], v23 offset:%d" % (AF, AF + 3, L_H))
    a("s_waitcnt lgkmcnt(0)")
    ffn1(AF, 22)
    for k in range(4):
        a("v_lshlrev_b32 v%d, 16, v%d" % (PR + 2 * k, AF + k))
        a("v_and_b32 v%d, 0xffff0000, v%d" % (PR + 2 * k + 1, AF + k))
    ffn1_tail(22, 20)
    s1, s2 = ln_stats([PR + k for k in range(8)], 0x7F7F7F7F7F7F7F7F, 5)
    ffn1_sel(22, 20)
    bf16r(s2, s2)
    a("v_rcp_f32 v%d, v%d" % (s2, s2))
    a("v_fma_f32 v8, -v%d, v%d, v22" % (s1, V_CS))
    a("s_mov_b32 s63, %s" % f32(-LOG2E))
    a("v_mul_f32 v8, v8, v%d" % s2)
else:
    a("ds_read_b128 v[%d:%d], v23 offset:%d" % (PR + 8, PR + 11, L_H))
    a("s_waitcnt lgkmcnt(0)")
    for k in range(4):
        a("v_lshlrev_b32 v%d, 16, v%d" % (PR + 2 * k, PR + 8 + k))
        a("v_and_b32 v%d, 0xffff0000, v%d" % (PR + 2 * k + 1, PR + 8 + k))
    layernorm([PR + k for k in range(8)], AF, 0x7F7F7F7F7F7F7F7F, 5)
    ffn1(AF, 8)
    ffn1_tail(8, 9)
    a("s_mov_b32 s63, %s" % f32(-LOG2E))
    ffn1_sel(8, 9)
bf16r(8, 8)
a("v_add_f32 v8, v8, v%d" % V_B1)
bf16r(8, 8)
a("v_mul_f32 v9, s63, abs(v8)")
a("v_exp_f32 v9, v9")
a("v_max_f32 v17, 0, v8")
bf16r(9, 9)
a("v_add_f32 v10, 1.0, v9")
a("v_add_f32 v11, -1.0, v10")
a("v_log_f32 v12, v10")
a("v_rcp_f32 v13, v11")
a("v_cmp_eq_f32 vcc, 0, v11")
a("v_mul_f32 v12, %s, v12" % f32(0.6931471805599453))
a("v_mul_f32 v13, v13, v9")
a("v_mul_f32 v12, v12, v13")
a("v_cndmask_b32 v12, v12, v9, vcc")
bf16r(12, 12)
a("v_add_f32 v12, v12, v17")
bf16r(12, 12)
a("v_mul_f32 v13, %s, v12" % f32(-2.0 * LOG2E))
a("v_exp_f32 v13, v13")
a("v_mul_f32 v16, v12, v12")
a("v_add_f32 v14, 1.0, v13")
a("v_sub_f32 v15, 1.0, v13")
a("v_rcp_f32 v14, v14")
a("v_mul_f32 v16, %s, v16" % f32(-1.0 / 3.0))
a("v_cmp_gt_f32 vcc, %s, v12" % f32(2.0 ** -6))
a("v_fma_f32 v16, v16, v12, v12")
a("v_mul_f32 v14, v14, v15")
a("v_cndmask_b32 v14, v14, v16, vcc")
bf16r(14, 14)
a("v_mul_f32 v14, v14, v8")
a("v_cvt_pk_bf16_f32 v14, v14, v14")
a("s_movk_i32 s63, 0xfff")
for q in range(2):
    for rho in range(4):
        a("v_and_b32_dpp v%d, v14, v%d quad_perm:[%d,%d,%d,%d]%s" % (BB + 4 * q + rho, V_M + rho, q, q, 2 + q, 2 + q, DPPM))
if Cfg.w2l:
    stamp(12)
    a("s_waitcnt vmcnt(0)")
for q in range(2):
    for b in range(4):
        a("v_mfma_f32_16x16x32_bf16 v[%d:%d], v[%d:%d], v[%d:%d], %s" % (V_ACC + 4 * b, V_ACC + 4 * b + 3, V_W + 8 * b + 4 * q, V_W + 8 * b + 4 * q + 3, BB + 4 * q, BB + 4 * q + 3, "0" if q == 0 else "v[%d:%d]" % (V_ACC + 4 * b, V_ACC + 4 * b + 3)))
setexec(0x00FF00FF00FF00FF)
a("ds_write_b128 v%d, v[%d:%d] offset:%d" % (V_LW, V_ACC, V_ACC + 3, L_F))
a("s_not_b64 exec, exec")
a("ds_write_b128 v%d, v[%d:%d] offset:%d" % (V_LW, V_ACC + 4, V_ACC + 7, L_F))
a("s_not_b64 exec, exec")
a("ds_write_b128 v%d, v[%d:%d] offset:%d" % (V_LW, V_ACC + 8, V_ACC + 11, L_F + 1024))
a("s_not_b64 exec, exec")
a("ds_write_b128 v%d, v[%d:%d] offset:%d" % (V_LW, V_ACC + 12, V_ACC + 15, L_F + 1024))
setexec(-1)
a("s_waitcnt lgkmcnt(0)")
stamp(13)
a("s_barrier")
a("s_cmp_ge_u32 s35, 2")
a("s_cbranch_scc1 L_end")
for w in range(4):
    a("ds_read_b128 v[%d:%d], v21 offset:%d" % (PR + 4 * w, PR + 4 * w + 3, L_F + 2048 * w))
a("s_cmp_eq_u32 s35, 1")
a("s_cselect_b32 exec_hi, 0x00ff00ff, -1")
a("s_waitcnt lgkmcnt(0)")
for r in range(4):
    a("v_add_f32 v%d, v%d, v%d" % (PR + r, PR + r, PR + 4 + r))
    a("v_add_f32 v%d, v%d, v%d" % (PR + 8 + r, PR + 8 + r, PR + 12 + r))
for r in range(4):
    a("v_add_f32 v%d, v%d, v%d" % (PR + r, PR + r, PR + 8 + r))
tag12(28, PR)
a("buffer_store_dwordx4 v[28:31], v4, s[36:39], s48 offen sc1")
setexec(-1)
stamp(14)
a.label("L_end")
if Cfg.stamps:
    setexec(-1)
    stamp(15)
    a("s_waitcnt lgkmcnt(0)")
    a("s_lshl_b32 s48, s2, 3")
    a("s_add_u32 s48, s48, s34")
    a("s_lshl_b32 s48, s48, 6")
    a("s_add_u32 s48, s48, %d" % STAMP)
    a("v_mov_b32 v9, 0")
    setexec(1)
    for i in range(16):
        a("v_mov_b32 v10, s%d" % (64 + 2 * i))
        a("buffer_store_dword v10, v9, s[36:39], s48 offen offset:%d" % (4 * i))
    if Cfg.dbgwg >= 0:
        a("s_cmp_lg_u32 s2, %d" % Cfg.dbgwg)
        a("s_cbranch_scc1 L_exit")
        a("s_cmp_lg_u32 s34, %d" % Cfg.dbgwave)
        a("s_cbranch_scc1 L_exit")
        if Cfg.spin:
            a.label("L_spin")
            a("s_memrealtime s[94:95]")
            a("s_waitcnt lgkmcnt(0)")
            a("s_sub_u32 s63, s94, s64")
            a("s_cmp_lt_u32 s63, %d" % Cfg.spin)
            a("s_cbranch_scc1 L_spin")
        srd(44, 24, 256)
        for i in range(16):
            a("s_sub_u32 s63, s%d, s64" % (64 + 2 * i))
            a("s_cmp_eq_u32 s%d, 0" % (64 + 2 * i))
            a("s_cselect_b32 s63, 0, s63")
            a("v_mov_b32 v10, s63")
            a("buffer_store_dword v10, v9, s[44:47], 0 offen offset:%d" % (4 * i))
a.label("L_exit")
a("s_endpgm")
a.raw('''.section .rodata,"a"
.p2align 6
.amdhsa_kernel %s_kernel
  .amdhsa_next_free_vgpr %d
  .amdhsa_next_free_sgpr 100
  .amdhsa_accum_offset %d
  .amdhsa_group_segment_fixed_size 0
  .amdhsa_kernarg_size 96
  .amdhsa_user_sgpr_count 2
  .amdhsa_user_sgpr_kernarg_segment_ptr 1
  .amdhsa_system_sgpr_workgroup_id_x 1
  .amdhsa_float_denorm_mode_32 3
.end_amdhsa_kernel''' % (NAME, NVGPR, NVGPR))
open(sys.argv[1], "w").write(a.text())
```

```python
import sys, struct
from asmlib import Asm
NAME = "sequential_preLN__sliding_block_cached__dense_activation_mish__decode"

class Cfg:
    stamps = False
    nt = True
    ntw = False
    timeout = 200000
    ocnt = 0
    vs = 0
    nearly = 7
    pfat = 1
    n1 = 10
    pf = False
    cpf = True
    ntl = False
    depth = 0
    ss = 128
    forceB = False
    pretouch = True
    fs = 0
    tlb = 0
    bthr = 64
    b0 = True
    npipe = 3
    ps0 = 0
    ps1 = 4
    kpat = 0
    kdma = True
    pd = 1
    pds = 2
    fpf = False
    prio = True
    xls = 0
    pace = 0
    e1w = 20
    fcnt = 6
    w2l = False
    pdx = 1
    pd4 = 1
    zig = True
    w2first = True
    w2e = True
    bd = 0
    xcc = True
    fakex = False
    noA = False
    nost = False
    noB = False
    dry = 0
    lh2 = False
    lh = True
    e3e = False
    lin = True
    rpf = False
    rs = 0
    os = 0
    ka = 3
    kb = 0
    kc = 0
    k0 = 12
    xs = 0
    e4s = 8
    rnd = True
    dbgwg = -1
    dbgwave = 0
    spin = 0
for arg in sys.argv[2:]:
    k, v = arg.split('=')
    setattr(Cfg, k, type(getattr(Cfg, k))(int(v)))

NT = " nt" if Cfg.nt else ""
NTW = " nt" if Cfg.ntw else ""
NTQ = NT
NTL = " nt" if Cfg.ntl else ""
EPOCH = 0x0
E3X = 0x1000
E3L = 0x9000
E1 = 0x10000
E2 = 0x20000
E3A = 0xA0000
BOFF = 0x120000
E4 = 0x240000
STAMP = 0x300000
WS_SIZE = 0x400000
L_Q = 0
L_ML = 1024
L_CNT = 3072
L_H = 3136
L_O = 4096
L_F = L_O
L_K = 12288
L_W1 = L_K
LDS_BYTES = 45056

LOG2E = 1.4426950408889634
def f32(x):
    return "0x%08x" % struct.unpack('<I', struct.pack('<f', x))[0]

a = Asm()
a.raw("; @launch grid=(256,1,1) block=(512,1,1) lds=%d" % LDS_BYTES)
a.raw('.amdgcn_target "amdgcn-amd-amdhsa--gfx950"\n.text\n.globl %s_kernel\n.p2align 8\n.type %s_kernel,@function\n%s_kernel:' % (NAME, NAME, NAME))

DPPM = " row_mask:0xf bank_mask:0xf"
def stamp(i):
    if Cfg.stamps:
        a("s_memrealtime s[%d:%d]" % (64 + 2 * i, 65 + 2 * i))

def srd(dst, ptr, nbytes):
    a("s_mov_b32 s%d, s%d" % (dst, ptr))
    a("s_and_b32 s%d, s%d, 0xffff" % (dst + 1, ptr + 1))
    a("s_mov_b32 s%d, %d" % (dst + 2, nbytes))
    a("s_mov_b32 s%d, 0x20000" % (dst + 3))

def setexec(mask):
    if mask == -1:
        a("s_mov_b64 exec, -1")
    else:
        a("s_mov_b32 exec_lo, 0x%08x" % (mask & 0xffffffff))
        a("s_mov_b32 exec_hi, 0x%08x" % (mask >> 32))

def setmask(s, mask):
    a("s_mov_b32 s%d, 0x%08x" % (s, mask & 0xffffffff))
    a("s_mov_b32 s%d, 0x%08x" % (s + 1, mask >> 32))

def bfly(op, v, t, which):
    a("v_mov_b32 v%d, v%d" % (t, v))
    a("v_permlane%d_swap_b32 v%d, v%d" % (which, v, t))
    a("%s v%d, v%d, v%d" % (op, v, v, t))

def bf16r(dst, src):
    a("v_cvt_pk_bf16_f32 v%d, v%d, v%d" % (dst, src, src))
    a("v_and_b32 v%d, 0xffff0000, v%d" % (dst, dst))

S_ODD, S_B1, S_HI = 56, 58, 60
S_M4, S_M8 = 58, 96
S_TO = 62
S_SEL = 3

S_CNT = 33
def sel_step(thr):
    a("s_sub_u32 s%d, s%d, 1" % (S_TO, S_TO))
    a("s_cbranch_scc1 L_end")
    if thr is not None and not Cfg.forceB:
        assert Cfg.pd == 1
        a("s_xor_b32 s63, s%d, %d" % (S_SEL, BOFF))
        a("s_cmp_lt_u32 s%d, s1" % S_TO)
        a("s_cselect_b32 s%d, s63, s%d" % (S_SEL, S_SEL))

def retry(loop, dual):
    sel_step(True if dual else None)
    a("s_branch %s" % loop)

def sel_init(thr=None):
    a("s_mov_b32 s%d, %d" % (S_SEL, BOFF if Cfg.forceB else 0))
    a("s_sub_u32 s1, s%d, %d" % (S_TO, Cfg.bthr if thr is None else thr))

def ln_stats(f, valid, T, fill=None):
    e = [T + k for k in range(8)]
    s1, s2, t1, t2 = T + 8, T + 9, T + 10, T + 11
    fill = list(fill or [])
    def filler():
        if fill:
            a(fill.pop(0))
    a("v_readlane_b32 s63, v%d, 0" % f[0])
    a("v_mov_b32 v%d, 0" % s1)
    a("v_mov_b32 v%d, 0" % s2)
    setexec(valid)
    for k in range(8):
        a("v_subrev_f32 v%d, s63, v%d" % (e[k], f[k]))
    a("v_add_f32 v%d, v%d, v%d" % (s1, e[0], e[1]))
    a("v_mul_f32 v%d, v%d, v%d" % (s2, e[0], e[0]))
    a("v_add_f32 v%d, v%d, v%d" % (t1, e[2], e[3]))
    a("v_mul_f32 v%d, v%d, v%d" % (t2, e[1], e[1]))
    for k in range(4, 8):
        a("v_add_f32 v%d, v%d, v%d" % (s1 if k % 2 == 0 else t1, s1 if k % 2 == 0 else t1, e[k]))
    for k in range(2, 8):
        a("v_fmac_f32 v%d, v%d, v%d" % (s2 if k % 2 == 0 else t2, e[k], e[k]))
    a("v_add_f32 v%d, v%d, v%d" % (s1, s1, t1))
    a("v_add_f32 v%d, v%d, v%d" % (s2, s2, t2))
    setexec(-1)
    for i, r in enumerate((8, 4, 2, 1)):
        a("v_add_f32_dpp v%d, v%d, v%d row_ror:%d%s" % (s1, s1, s1, r, DPPM))
        a("v_add_f32_dpp v%d, v%d, v%d row_ror:%d%s" % (s2, s2, s2, r, DPPM))
        filler()
    for which in (16, 32):
        a("v_mov_b32 v%d, v%d" % (t1, s1))
        a("v_mov_b32 v%d, v%d" % (t2, s2))
        filler()
        a("v_permlane%d_swap_b32 v%d, v%d" % (which, s1, t1))
        a("v_permlane%d_swap_b32 v%d, v%d" % (which, s2, t2))
        a("v_add_f32 v%d, v%d, v%d" % (s1, s1, t1))
        a("v_add_f32 v%d, v%d, v%d" % (s2, s2, t2))
    a("v_mul_f32 v%d, %s, v%d" % (s1, f32(1.0 / 448), s1))
    a("v_mul_f32 v%d, %s, v%d" % (s2, f32(1.0 / 448), s2))
    a("v_fma_f32 v%d, -v%d, v%d, v%d" % (s2, s1, s1, s2))
    a("v_add_f32 v%d, s63, v%d" % (s1, s1))
    a("v_max_f32 v%d, 0, v%d" % (s2, s2))
    a("v_cvt_pk_bf16_f32 v%d, v%d, v%d" % (t1, s1, s2))
    a("v_and_b32 v%d, 0xffff0000, v%d" % (s2, t1))
    a("v_lshlrev_b32 v%d, 16, v%d" % (s1, t1))
    a("v_add_f32 v%d, %s, v%d" % (s2, f32(1e-5), s2))
    bf16r(s2, s2)
    a("v_sqrt_f32 v%d, v%d" % (s2, s2))
    while fill:
        filler()
    return s1, s2

def ln_apply(f, e, pk, s1, s2):
    n = len(f)
    for k in range(n):
        a("v_sub_f32 v%d, v%d, v%d" % (e[k], f[k], s1))
    bf16r(s2, s2)
    a("v_rcp_f32 v%d, v%d" % (s2, s2))
    for k in range(n // 2):
        a("v_cvt_pk_bf16_f32 v%d, v%d, v%d" % (pk[k], e[2 * k], e[2 * k + 1]))
    for k in range(n // 2):
        a("v_lshlrev_b32 v%d, 16, v%d" % (e[2 * k], pk[k]))
        a("v_and_b32 v%d, 0xffff0000, v%d" % (e[2 * k + 1], pk[k]))
    for k in range(n):
        a("v_mul_f32 v%d, v%d, v%d" % (e[k], e[k], s2))

def layernorm(f, out, valid, T):
    e = [T + k for k in range(8)]
    pk = [T + 12 + k for k in range(4)]
    s1, s2 = ln_stats(f, valid, T, ["v_mov_b32 v%d, 0" % (out + i) for i in range(4)])
    ln_apply(f, e, pk, s1, s2)
    setexec(valid)
    for k in range(4):
        a("v_cvt_pk_bf16_f32 v%d, v%d, v%d" % (out + k, e[2 * k], e[2 * k + 1]))
    setexec(-1)

def quad_transpose_reduce(v, dst, T):
    k0, g0, k1, g1 = T, T + 1, T + 2, T + 3
    a("v_cndmask_b32 v%d, v%d, v%d, s[%d:%d]" % (g0, v[1], v[0], S_ODD, S_ODD + 1))
    a("v_cndmask_b32 v%d, v%d, v%d, s[%d:%d]" % (g1, v[3], v[2], S_ODD, S_ODD + 1))
    a("v_cndmask_b32 v%d, v%d, v%d, s[%d:%d]" % (k0, v[0], v[1], S_ODD, S_ODD + 1))
    a("v_cndmask_b32 v%d, v%d, v%d, s[%d:%d]" % (k1, v[2], v[3], S_ODD, S_ODD + 1))
    a("v_add_f32_dpp v%d, v%d, v%d quad_perm:[1,0,3,2]%s" % (k0, g0, k0, DPPM))
    a("v_add_f32_dpp v%d, v%d, v%d quad_perm:[1,0,3,2]%s" % (k1, g1, k1, DPPM))
    a("v_cndmask_b32 v%d, v%d, v%d, s[%d:%d]" % (g0, k1, k0, S_B1, S_B1 + 1))
    a("v_cndmask_b32 v%d, v%d, v%d, s[%d:%d]" % (dst, k0, k1, S_B1, S_B1 + 1))
    a("v_add_f32_dpp v%d, v%d, v%d quad_perm:[2,3,0,1]%s" % (dst, g0, dst, DPPM))

S_B2, S_B3 = S_B1, 4
def reduce16(v, dst):
    for r in range(4):
        a("v_add_f32_dpp v%d, v%d, v%d row_ror:8%s" % (v[r], v[r], v[r], DPPM))
    for r in range(4):
        a("v_add_f32_dpp v%d, v%d, v%d row_ror:4%s" % (v[r], v[r], v[r], DPPM))
    a("v_cndmask_b32 v%d, v%d, v%d, s[%d:%d]" % (v[0], v[0], v[1], S_M4, S_M4 + 1))
    a("v_cndmask_b32 v%d, v%d, v%d, s[%d:%d]" % (v[2], v[2], v[3], S_M4, S_M4 + 1))
    a("v_cndmask_b32 v%d, v%d, v%d, s[%d:%d]" % (dst, v[0], v[2], S_M8, S_M8 + 1))

def check12(n, X, oklab, G=None, T0=None):
    if G is None:
        G = V_G
    for t in range(n):
        for r in range(4):
            a("v_xor_b32 v%d, v%d, v%d" % (X + 4 * t + r, G + 4 * t + r, T0 if (r == 0 and T0 is not None) else V_T + r))
    regs = [X + i for i in range(4 * n)]
    acc = [5, 6, 7]
    cur = regs[:]
    outs = []
    i = 0
    while len(cur) >= 3 and i < 3:
        a("v_or3_b32 v%d, v%d, v%d, v%d" % (acc[i], cur[0], cur[1], cur[2])); cur = cur[3:]; outs.append(acc[i]); i += 1
    i = 0
    while len(cur) >= 2:
        o = outs[i % len(outs)]
        a("v_or3_b32 v%d, v%d, v%d, v%d" % (o, o, cur[0], cur[1])); cur = cur[2:]; i += 1
    rest = outs + cur
    while len(rest) > 1:
        if len(rest) >= 3:
            a("v_or3_b32 v%d, v%d, v%d, v%d" % (acc[0], rest[0], rest[1], rest[2])); rest = [acc[0]] + rest[3:]
        else:
            a("v_or_b32 v%d, v%d, v%d" % (acc[0], rest[0], rest[1])); rest = [acc[0]]
    a("v_and_b32 v%d, 0xfff, v%d" % (acc[0], rest[0]))
    a("v_cmp_ne_u32 vcc, 0, v%d" % acc[0])
    a("s_cbranch_vccz %s" % oklab)

V_I16, V_GRP, V_LANE = 1, 2, 3
V_M, V_T = 196, 200
V_TA, V_TB, V_T8, V_ONE = 204, 205, 206, 207
V_B1, V_X = 208, 209
V_GA = 213
V_PUB = 214
V_XA = 215
V_ACC = 216
V_G = 232
V_W1A, V_LW = 248, 249
NVGPR = 252
V_K, V_V, V_QF = 32, 64, 96
V_W = 32
V_W1F = 64
V_BB = 96
V_S1 = 112
V_S2 = 144

def tag12(dst, src):
    for r in range(4):
        if Cfg.rnd:
            a("v_add_u32 v%d, 0x800, v%d" % (dst + r, src + r))
            src_r = dst + r
        else:
            src_r = src + r
    for r in range(4):
        a("v_bfi_b32 v%d, s63, v%d, v%d" % (dst + r, V_T + r, (dst if Cfg.rnd else src) + r))

def make_masks():
    a("v_and_b32 v10, 1, v%d" % V_I16)
    a("v_lshlrev_b32 v10, 4, v10")
    a("v_mov_b32 v11, 0xffff")
    a("v_lshlrev_b32 v11, v10, v11")
    a("v_bfe_u32 v10, v%d, 1, 2" % V_I16)
    for rho in range(4):
        a("v_cmp_eq_u32 vcc, %d, v10" % rho)
        a("v_cndmask_b32 v%d, 0, v11, vcc" % (V_M + rho))

def make_tags(full=True):
    a("s_waitcnt lgkmcnt(0)")
    for k in range(4):
        a("s_add_u32 s%d, s%d, 1" % (28 + k, 28 + k))
    if full:
        for k in range(4):
            a("s_and_b32 s63, s%d, 0xfff" % (28 + k))
            a("v_mov_b32 v%d, s63" % (V_T + k))
    a("v_mov_b32 v%d, s31" % V_TB)
    a("s_and_b32 s63, s30, 0xff")
    a("v_mov_b32 v%d, s63" % V_T8)

if Cfg.stamps:
    for i in range(16):
        a("s_mov_b64 s[%d:%d], 0" % (64 + 2 * i, 65 + 2 * i))
stamp(0)
a("s_load_dwordx16 s[4:19], s[0:1], 0")
a("s_load_dwordx8 s[20:27], s[0:1], 64")
a("s_cmp_ge_u32 s2, 256")
a("s_cbranch_scc1 L_exit")
a("v_lshrrev_b32 v4, 6, v0")
a("v_and_b32 v%d, 63, v0" % V_LANE)
a("v_readfirstlane_b32 s34, v4")
a("v_and_b32 v%d, 15, v0" % V_I16)
a("v_bfe_u32 v%d, v0, 4, 2" % V_GRP)
a("s_and_b32 s32, s2, 7")
a("s_lshr_b32 s33, s2, 3")
a("s_and_b32 s35, s34, 3")
a("s_cmp_ge_u32 s34, 4")
a("s_cbranch_scc1 L_tail")

a("s_lshl_b32 s48, s32, 22")
a("s_lshl_b32 s49, s33, 15")
a("s_add_u32 s48, s48, s49")
a("s_lshl_b32 s49, s34, 13")
a("s_add_u32 s48, s48, s49")
a("s_add_u32 s48, s48, %d" % (6144 * 512))
if Cfg.kdma:
    a("v_lshrrev_b32 v4, 2, v%d" % V_LANE)
    a("v_lshlrev_b32 v4, 9, v4")
    a("v_and_b32 v5, 3, v%d" % V_LANE)
    a("v_lshl_add_u32 v4, v5, 4, v4")
    a("s_add_u32 s49, s49, %d" % L_K)
else:
    a("v_lshlrev_b32 v4, 9, v%d" % V_I16)
    a("v_lshl_add_u32 v4, v%d, 4, v4" % V_GRP)
a("v_lshlrev_b32 v5, 11, v%d" % V_GRP)
a("v_lshl_add_u32 v5, v%d, 4, v5" % V_I16)
a("s_mov_b32 s42, 33554432")
a("s_mov_b32 s43, 0x20000")
a("s_mov_b32 s46, 33554432")
a("s_mov_b32 s47, 0x20000")
a("s_waitcnt lgkmcnt(0)")
a("s_mov_b32 s40, s6")
a("s_and_b32 s41, s7, 0xffff")
a("s_mov_b32 s44, s8")
a("s_and_b32 s45, s9, 0xffff")
stamp(11)
if Cfg.b0:
    a("s_barrier")
nissued = [0]
def paced(text):
    if Cfg.depth and nissued[0] >= Cfg.depth and nissued[0] < Cfg.n1:
        a("s_waitcnt vmcnt(%d)" % (Cfg.depth - 1))
    a(text)
    nissued[0] += 1
loads = []
for s in range(8):
    if Cfg.kdma:
        loads.append(["s_add_u32 m0, s49, %d" % (960 * s), "buffer_load_dwordx4 v4, s[40:43], s48 offen offset:%d%s lds" % (64 * s, NT)])
    else:
        loads.append("buffer_load_dwordx4 v[%d:%d], v4, s[40:43], s48 offen offset:%d%s" % (V_K + 4 * s, V_K + 4 * s + 3, 64 * s, NT))
def emit(t):
    for x in ([t] if isinstance(t, str) else t):
        a(x)
for r in range(4):
    for h in range(2):
        n = 2 * r + h
        loads.append("buffer_load_dwordx4 v[%d:%d], v5, s[44:47], s48 offen offset:%d%s" % (V_V + 4 * n, V_V + 4 * n + 3, 512 * r + 256 * h, NT))
nfirst = 8 + Cfg.nearly
if Cfg.pace:
    Cfg.k0 = Cfg.pace
for t in loads[:Cfg.k0]:
    emit(t)
stamp(12)
a("s_load_dwordx4 s[28:31], s[26:27], %d" % EPOCH)
srd(36, 26, WS_SIZE)
make_masks()
a("v_lshrrev_b32 v7, 3, v%d" % V_I16)
a("v_lshlrev_b32 v7, 9, v7")
a("v_lshl_add_u32 v7, v%d, 4, v7" % V_GRP)
a("s_lshl_b32 s63, s34, 11")
a("v_lshl_add_u32 v%d, v%d, 4, s63" % (V_LW, V_LANE))
a("s_lshl_b32 s63, s34, 9")
a("v_lshl_add_u32 v23, v%d, 3, s63" % V_LANE)
a("s_lshl_b32 s63, s34, 10")
a("v_lshl_add_u32 v21, v%d, 4, s63" % V_LANE)
a("v_lshlrev_b32 v22, 3, v%d" % V_LANE)
a("s_lshl_b32 s55, s32, 5")
a("s_add_u32 s55, s55, s33")
a("s_lshl_b32 s55, s55, 11")
a("s_add_u32 s50, s55, %d" % E2)
a("s_add_u32 s51, s55, %d" % (E2 + BOFF))
make_tags(False)
a("v_mov_b32 v31, v%d" % V_TB)
a("v_mov_b32 v6, 0")
a("v_mov_b32 v29, 1")
a("ds_write2_b32 v6, v6, v6 offset0:%d offset1:%d" % (L_CNT // 4 % 256, L_CNT // 4 % 256 + 1)) if False else None
a("ds_write_b32 v6, v6 offset:%d" % L_CNT)
a("ds_write_b32 v6, v6 offset:%d" % (L_CNT + 4))
a("s_waitcnt lgkmcnt(0)")
a("s_mov_b32 s%d, %d" % (S_TO, Cfg.timeout))
NPF = [0]
a("s_lshl_b32 s52, s33, 2")
a("s_add_u32 s52, s52, s34")
a("v_lshlrev_b32 v24, 7, v%d" % V_LANE)
a("s_mul_i32 s53, s32, %d" % (512 * 896))
a("s_mul_i32 s63, s52, %d" % (28 * 128))
a("s_add_u32 s53, s53, s63")
a("s_mov_b32 s14, %d" % (4096 * 896))
a("s_mov_b32 s15, 0x20000")
a("s_and_b32 s13, s13, 0xffff")
def wo_prefetch():
    if Cfg.pf:
        a("s_mov_b32 exec_hi, 0")
        a("s_mov_b32 exec_lo, 0x0fffffff")
        a("buffer_load_dword v250, v24, s[12:15], s53 offen")
        setexec(-1)
        NPF[0] = 1
SEGS = [x for x in (Cfg.ka, Cfg.kb, Cfg.kc) if x > 0]
pos = Cfg.k0
if Cfg.pace:
    for t in loads[pos:]:
        a("s_waitcnt vmcnt(%d)" % (Cfg.pace - 1))
        emit(t)
    stamp(13)
else:
    a("s_barrier")
    for n in SEGS:
        for t in loads[pos:pos + n]:
            emit(t)
        pos += n
        a("s_barrier")
        a("s_barrier")
    stamp(13)
    for t in loads[pos:]:
        emit(t)
if Cfg.pfat < 0:
    wo_prefetch()
if Cfg.kdma:
    a("v_lshlrev_b32 v25, 6, v%d" % V_I16)
    a("v_lshl_add_u32 v25, v%d, 4, v25" % V_GRP)
    a("v_add_u32 v25, s49, v25")
    a("s_waitcnt vmcnt(%d)" % (8 + NPF[0]))
    for s in range(8):
        a("ds_read_b128 v[%d:%d], v25 offset:%d" % (V_K + 4 * s, V_K + 4 * s + 3, 1024 * s))
stamp(1)
a("s_waitcnt lgkmcnt(0)")
if Cfg.prio:
    a("s_setprio 2")
a("s_barrier")
stamp(2)
for s in range(8):
    a("ds_read_b128 v[%d:%d], v7 offset:%d" % (V_QF + 4 * s, V_QF + 4 * s + 3, L_Q + 64 * s))
a("s_mov_b32 s63, %s" % f32(0.0625 * LOG2E))
a("s_waitcnt vmcnt(%d)" % (8 + NPF[0]))
S = V_ACC
for s in range(8):
    a("s_waitcnt lgkmcnt(%d)" % (0 if Cfg.stamps else 7 - s))
    a("v_mfma_f32_16x16x32_bf16 v[%d:%d], v[%d:%d], v[%d:%d], %s" % (S, S + 3, V_K + 4 * s, V_K + 4 * s + 3, V_QF + 4 * s, V_QF + 4 * s + 3, "0" if s == 0 else "v[%d:%d]" % (S, S + 3)))
a("v_cvt_pk_bf16_f32 v8, v%d, v%d" % (S, S + 1))
a("v_cvt_pk_bf16_f32 v9, v%d, v%d" % (S + 2, S + 3))
a("v_lshlrev_b32 v10, 16, v8")
a("v_and_b32 v11, 0xffff0000, v8")
a("v_lshlrev_b32 v12, 16, v9")
a("v_and_b32 v13, 0xffff0000, v9")
a("v_max3_f32 v14, v10, v11, v12")
a("v_max_f32 v14, v14, v13")
bfly("v_max_f32", 14, 15, 16)
bfly("v_max_f32", 14, 15, 32)
a("v_mul_f32 v14, s63, v14")
for r in range(4):
    a("v_fma_f32 v%d, v%d, s63, -v14" % (10 + r, 10 + r))
for r in range(4):
    a("v_exp_f32 v%d, v%d" % (10 + r, 10 + r))
for r in range(4):
    a("v_cvt_pk_bf16_f32 v%d, v%d, v%d" % (16 + r, 10 + r, 10 + r))
O = V_ACC + 4
BB = V_QF
def bbuild(r):
    for rho in range(4):
        a("v_and_b32 v%d, v%d, v%d" % (BB + 4 * r + rho, 16 + r, V_M + rho))
def pv(r):
    a("s_waitcnt vmcnt(%d)" % (6 - 2 * r + NPF[0]))
    for h in range(2):
        n = 2 * r + h
        a("v_mfma_f32_16x16x32_bf16 v[%d:%d], v[%d:%d], v[%d:%d], %s" % (O + 4 * h, O + 4 * h + 3, V_V + 4 * n, V_V + 4 * n + 3, BB + 4 * r, BB + 4 * r + 3, "0" if r == 0 else "v[%d:%d]" % (O + 4 * h, O + 4 * h + 3)))
    if r == Cfg.pfat:
        wo_prefetch()
bbuild(0)
bbuild(1)
stamp(5)
pv(0)
bbuild(2)
a("v_add_f32 v15, v10, v11")
a("v_add_f32 v20, v12, v13")
pv(1)
bbuild(3)
a("v_add_f32 v15, v15, v20")
pv(2)
bfly("v_add_f32", 15, 20, 16)
pv(3)
stamp(6)
bfly("v_add_f32", 15, 20, 32)
a("ds_write_b64 v23, v[14:15] offset:%d" % L_ML)
a("ds_write_b128 v%d, v[%d:%d] offset:%d" % (V_LW, O, O + 3, L_O))
a("ds_write_b128 v%d, v[%d:%d] offset:%d" % (V_LW, O + 4, O + 7, L_O + 1024))
setexec(1)
a("ds_add_u32 v6, v29 offset:%d" % L_CNT)
setexec(-1)
a("s_cmp_ge_u32 s34, 2")
a("s_cbranch_scc1 L_att_exit")
a.label("L_cnt")
a("ds_read_b32 v8, v6 offset:%d" % L_CNT)
a("s_sub_u32 s%d, s%d, 1" % (S_TO, S_TO))
a("s_cbranch_scc1 L_end")
a("s_waitcnt lgkmcnt(0)")
a("v_cmp_gt_u32 vcc, 4, v8")
a("s_cbranch_vccnz L_cnt")
stamp(3)
for w in range(4):
    a("ds_read_b64 v[%d:%d], v22 offset:%d" % (10 + 2 * w, 11 + 2 * w, L_ML + 512 * w))
for w in range(4):
    a("ds_read_b128 v[%d:%d], v21 offset:%d" % (V_G + 4 * w, V_G + 4 * w + 3, L_O + 2048 * w))
a("s_movk_i32 s63, 0xff")
a("s_waitcnt lgkmcnt(4)" if not Cfg.stamps else "s_waitcnt lgkmcnt(0)")
a("v_max3_f32 v18, v10, v12, v14")
a("v_max_f32 v18, v18, v16")
for w in range(4):
    a("v_sub_f32 v%d, v%d, v18" % (10 + 2 * w, 10 + 2 * w))
for w in range(4):
    a("v_exp_f32 v%d, v%d" % (10 + 2 * w, 10 + 2 * w))
a("v_mul_f32 v19, v10, v11")
for w in range(1, 4):
    a("v_fmac_f32 v19, v%d, v%d" % (10 + 2 * w, 11 + 2 * w))
a("v_rcp_f32 v20, v19")
a("v_log_f32 v9, v19")
a("s_waitcnt lgkmcnt(0)")
for r in range(4):
    a("v_mul_f32 v%d, v10, v%d" % (24 + r, V_G + r))
for w in range(1, 4):
    for r in range(4):
        a("v_fmac_f32 v%d, v%d, v%d" % (24 + r, 10 + 2 * w, V_G + 4 * w + r))
a("v_add_f32 v9, v9, v18")
for r in range(4):
    a("v_mul_f32 v%d, v%d, v20" % (24 + r, 24 + r))
a("v_bfi_b32 v30, s63, v%d, v9" % V_T8)
a("v_cvt_pk_bf16_f32 v28, v24, v25")
a("v_cvt_pk_bf16_f32 v29, v26, v27")
if not Cfg.noA:
    a("buffer_store_dwordx4 v[28:31], v21, s[36:39], s50 offen")
def bdefer():
    if Cfg.bd == 1:
        a("s_waitcnt vmcnt(0)")
    elif Cfg.bd > 1:
        a("s_sleep %d" % Cfg.bd)
a("v_mov_b32 v8, 1")
setexec(1)
a("ds_add_u32 v6, v8 offset:%d" % L_CNT)
setexec(-1)
stamp(4)
def skip_if_local(tmp, lab):
    if Cfg.xcc:
        a("v_mov_b32 v%d, 0" % tmp)
        a("ds_read_b32 v%d, v%d offset:%d" % (tmp, tmp, L_CNT + 4))
        a("s_waitcnt lgkmcnt(0)")
        a("v_cmp_eq_u32 vcc, 0, v%d" % tmp)
        a("s_cbranch_vccnz %s" % lab)
bdefer()
skip_if_local(8, "L_end")
if not Cfg.noB:
    a("buffer_store_dwordx4 v[28:31], v21, s[36:39], s51 offen sc1")
a("s_branch L_end")

a.label("L_att_exit")
if Cfg.fpf:
    a("s_cmp_lt_u32 s33, 16")
    a("s_cbranch_scc1 L_end")
    a("s_sub_u32 s52, s33, 16")
    a("s_lshl_b32 s52, s52, 1")
    a("s_add_u32 s52, s52, s34")
    a("s_sub_u32 s52, s52, 2")
    a("s_mul_i32 s54, s32, %d" % (224 * 896))
    a("s_mul_i32 s63, s52, %d" % (49 * 128))
    a("s_add_u32 s54, s54, s63")
    a("s_mul_i32 s49, s32, 448")
    a("s_mul_i32 s63, s52, %d" % (14 * 3584))
    a("s_add_u32 s49, s49, s63")
    a("v_lshrrev_b32 v25, 2, v%d" % V_LANE)
    a("v_mul_u32_u24 v25, 3584, v25")
    a("v_and_b32 v26, 3, v%d" % V_LANE)
    a("v_mul_u32_u24 v26, 148, v26")
    a("v_add_u32 v25, v25, v26")
    a("s_mov_b32 s18, %d" % (448 * 3584))
    a("s_mov_b32 s19, 0x20000")
    a("s_and_b32 s17, s17, 0xffff")
    a("s_mov_b32 s22, %d" % (1792 * 896))
    a("s_mov_b32 s23, 0x20000")
    a("s_and_b32 s21, s21, 0xffff")
    a("s_mov_b32 exec_hi, 0x00ffffff")
    a("buffer_load_dword v250, v25, s[16:19], s49 offen")
    a("s_mov_b32 exec_hi, 0x0001ffff")
    a("buffer_load_dword v250, v24, s[20:23], s54 offen")
a("s_branch L_end")

a.label("L_tail")
a.flush()
a("s_cmp_lg_u32 s34, 4")
a("s_cbranch_scc1 L_tail_common")
a("v_lshrrev_b32 v4, 3, v%d" % V_I16)
a("v_mul_u32_u24 v4, 56, v4")
a("v_mul_u32_u24 v5, 14, v%d" % V_GRP)
a("v_add_u32 v4, v4, v5")
a("v_lshlrev_b32 v5, 13, v4")
a("v_and_b32 v6, 7, v%d" % V_I16)
a("v_lshl_add_u32 v5, v6, 4, v5")
a("v_lshlrev_b32 v4, 1, v4")
a("v_lshlrev_b32 v6, 6, v%d" % V_I16)
a("v_lshl_add_u32 v6, v%d, 4, v6" % V_GRP)
a("s_lshr_b32 s50, s33, 3")
a("s_mul_i32 s52, s50, %d" % (112 * 8192))
a("s_lshl_b32 s53, s32, 10")
a("s_add_u32 s52, s52, s53")
a("s_and_b32 s53, s33, 7")
a("s_lshl_b32 s53, s53, 7")
a("s_add_u32 s52, s52, s53")
a("s_mul_i32 s51, s50, 224")
a("s_mov_b32 s42, %d" % (448 * 8192))
a("s_mov_b32 s43, 0x20000")
a("s_mov_b32 s46, 896")
a("s_mov_b32 s47, 0x20000")
a("s_setprio 3")
a("s_waitcnt lgkmcnt(0)")
a("s_mov_b32 s44, s4")
a("s_and_b32 s45, s5, 0xffff")
a("s_mov_b32 s40, s10")
a("s_and_b32 s41, s11, 0xffff")
stamp(11)
WQ, BQ, XR14 = 32, 88, 144
a("buffer_load_dwordx4 v[%d:%d], v6, s[44:47], 0 offen" % (V_G, V_G + 3))
a("buffer_load_dwordx4 v[%d:%d], v4, s[44:47], s51 offen" % (XR14, XR14 + 3))
a("buffer_load_dwordx3 v[%d:%d], v4, s[44:47], s51 offen offset:16" % (XR14 + 4, XR14 + 6))
for t in range(14):
    a("buffer_load_dwordx4 v[%d:%d], v5, s[40:43], s52 offen%s" % (WQ + 4 * t, WQ + 4 * t + 3, NTQ))
    if t < 13:
        a("s_add_u32 s52, s52, 8192")
stamp(12)
a.label("L_tail_common")
a("s_waitcnt lgkmcnt(0)")
if Cfg.tlb == 2:
    a("s_cmp_lg_u32 s34, 6")
    a("s_cbranch_scc1 L_notlb")
    a("s_mul_i32 s48, s32, %d" % (512 * 896))
    a("s_add_u32 s49, s48, %d" % (511 * 896))
    a("s_mul_i32 s50, s32, %d" % (224 * 896))
    a("s_mov_b32 s51, %d" % (447 * 3584))
    a("s_mov_b32 s54, %d" % (E4 + 2044))
    a("s_lshl_b32 s55, s32, 22")
    a("s_add_u32 s55, s55, %d" % (6144 * 512))
    a("s_load_dword s40, s[8:9], s55")
    a("s_load_dword s41, s[12:13], s48")
    a("s_load_dword s42, s[12:13], s49")
    a("s_load_dword s43, s[20:21], s50")
    a("s_load_dword s44, s[16:17], 0")
    a("s_load_dword s45, s[16:17], s51")
    a("s_load_dword s46, s[18:19], 0")
    a("s_load_dword s47, s[22:23], 0")
    a("s_load_dword s98, s[26:27], s54")
    a.label("L_notlb")
if Cfg.b0:
    a("s_barrier")
a("s_load_dwordx4 s[28:31], s[26:27], %d" % EPOCH)
srd(36, 26, WS_SIZE)
a("s_mov_b32 s%d, %d" % (S_TO, Cfg.timeout))
if Cfg.xcc:
    if Cfg.fakex:
        a("s_and_b32 s99, s33, 15")
    else:
        a("s_getreg_b32 s99, hwreg(HW_REG_XCC_ID)")
        a("s_and_b32 s99, s99, 15")
else:
    a("s_mov_b32 s99, 0")
setmask(S_ODD, 0xAAAAAAAAAAAAAAAA)
setmask(S_M4, 0xF0F0F0F0F0F0F0F0)
setmask(S_M8, 0xFF00FF00FF00FF00)
setmask(S_HI, 0xFFFFFFFF00000000)
a("v_mov_b32 v%d, 1.0" % V_ONE)
a("v_lshrrev_b32 v8, 2, v%d" % V_LANE)
a("v_lshlrev_b32 v8, 11, v8")
a("v_and_b32 v9, 3, v%d" % V_LANE)
a("v_lshl_add_u32 v%d, v9, 4, v8" % V_GA)
make_masks()
a("v_lshl_add_u32 v8, v%d, 3, v%d" % (V_GRP, V_I16))
a("v_lshlrev_b32 v%d, 4, v8" % V_PUB)
a("s_lshl_b32 s52, s32, 13")
a("s_add_u32 s52, s52, %d" % E1)
a("s_lshl_b32 s53, s33, 8")
a("s_add_u32 s53, s53, s52")
a("v_and_b32 v8, 31, v%d" % V_LANE)
a("s_lshl_b32 s63, s35, 5")
a("v_add_u32 v8, s63, v8")
a("v_lshrrev_b32 v9, 5, v%d" % V_LANE)
a("v_lshlrev_b32 v9, 12, v9")
a("v_lshl_add_u32 v24, v8, 4, v9")
a("v_and_b32 v9, 7, v8")
a("v_sub_u32 v8, v8, v9")
a("v_lshl_add_u32 v8, v8, 2, v9")
a("v_lshlrev_b32 v25, 1, v8")
a("s_cmp_lg_u32 s34, 4")
a("s_cbranch_scc1 L_notq")
a("s_add_u32 s49, s53, %d" % BOFF)
a("s_waitcnt vmcnt(14)")
stamp(1)
XF, XV, XE, XP = 152, 160, 176, 216
for k in range(4):
    a("v_lshlrev_b32 v%d, 16, v%d" % (XF + 2 * k, V_G + k))
    a("v_and_b32 v%d, 0xffff0000, v%d" % (XF + 2 * k + 1, V_G + k))
fill = []
for k in range(7):
    fill.append("v_lshlrev_b32 v%d, 16, v%d" % (XV + 2 * k, XR14 + k))
    fill.append("v_and_b32 v%d, 0xffff0000, v%d" % (XV + 2 * k + 1, XR14 + k))
s1, s2 = ln_stats([XF + k for k in range(8)], 0x3FFF3FFF3FFF3FFF, 8, fill)
ln_apply([XV + k for k in range(14)], [XE + k for k in range(14)], [XP + k for k in range(7)], s1, s2)
for t in range(14):
    a("v_cvt_pk_bf16_f32 v%d, v%d, v%d" % (XE + t, XE + t, XE + t))
make_tags()
stamp(6)
QA = V_ACC
for t in range(15):
    if t < 14:
        for rho in range(4):
            a("v_and_b32 v%d, v%d, v%d" % (BQ + 4 * t + rho, XE + t, V_M + rho))
    if t >= 1:
        u = t - 1
        a("s_waitcnt vmcnt(%d)" % (13 - u))
        a("v_mfma_f32_16x16x32_bf16 v[%d:%d], v[%d:%d], v[%d:%d], %s" % (QA, QA + 3, WQ + 4 * u, WQ + 4 * u + 3, BQ + 4 * u, BQ + 4 * u + 3, "0" if u == 0 else "v[%d:%d]" % (QA, QA + 3)))
stamp(2)
a("s_movk_i32 s63, 0xfff")
for r in range(4):
    a("v_mov_b32_dpp v%d, v%d row_ror:8%s" % (8 + r, QA + r, DPPM))
for r in range(4):
    a("v_mov_b32 v%d, v%d" % (12 + r, 8 + r))
for r in range(4):
    a("v_permlane32_swap_b32 v%d, v%d" % (8 + r, 12 + r))
for r in range(4):
    a("v_add_f32 v%d, v%d, v%d" % (12 + r, 12 + r, QA + r))
tag12(28, 12)
setexec(0x0000000000FF00FF)
a("v_xor_b32 v16, s99, v28")
for r in range(1, 4):
    a("v_mov_b32 v%d, v%d" % (16 + r, 28 + r))
if not Cfg.noA:
    a("buffer_store_dwordx4 v[16:19], v%d, s[36:39], s53 offen" % V_PUB)
a("buffer_store_dwordx4 v[28:31], v%d, s[36:39], s49 offen sc1" % V_PUB)
setexec(-1)
a("s_setprio 0")
stamp(3)
a("s_branch L_e1")
a.label("L_notq")
a.flush()
make_tags()
if Cfg.pretouch:
    a("s_cmp_lg_u32 s34, 5")
    a("s_cbranch_scc1 L_nopre")
    a("s_lshl_b32 s55, s32, 5")
    a("s_add_u32 s55, s55, s33")
    a("s_lshl_b32 s55, s55, 11")
    a("v_lshlrev_b32 v8, 7, v%d" % V_I16)
    a("s_add_u32 s63, s55, %d" % E2)
    a("v_add_u32 v9, s63, v8")
    a("s_add_u32 s63, s55, %d" % E3A)
    a("v_add_u32 v10, s63, v8")
    a("v_and_b32 v8, 128, v8")
    a("v_add_u32 v8, s53, v8")
    a("v_cmp_eq_u32 vcc, 1, v%d" % V_GRP)
    a("v_cndmask_b32 v9, v9, v10, vcc")
    a("v_cndmask_b32 v9, v9, v8, s[%d:%d]" % (S_HI, S_HI + 1))
    a("buffer_load_dword v26, v9, s[36:39], 0 offen sc1")
    a.label("L_nopre")
if Cfg.tlb == 1:
    a("s_cmp_lg_u32 s34, 6")
    a("s_cbranch_scc1 L_notlb")
    a("s_mul_i32 s48, s32, %d" % (512 * 896))
    a("s_add_u32 s49, s48, %d" % (511 * 896))
    a("s_mul_i32 s50, s32, %d" % (224 * 896))
    a("s_mov_b32 s51, %d" % (447 * 3584))
    a("s_mov_b32 s54, %d" % E4)
    a("v_mov_b32 v8, 0")
    setexec(1)
    srd(40, 12, 4096 * 896)
    a("buffer_load_dword v26, v8, s[40:43], s48 offen")
    a("buffer_load_dword v26, v8, s[40:43], s49 offen")
    srd(40, 20, 1792 * 896)
    a("buffer_load_dword v26, v8, s[40:43], s50 offen")
    srd(40, 16, 448 * 3584)
    a("buffer_load_dword v26, v8, s[40:43], 0 offen")
    a("buffer_load_dword v26, v8, s[40:43], s51 offen")
    srd(40, 18, 1792 * 2)
    a("buffer_load_dword v26, v8, s[40:43], 0 offen")
    srd(40, 22, 896)
    a("buffer_load_dword v26, v8, s[40:43], 0 offen")
    a("buffer_load_dword v26, v8, s[36:39], s54 offen offset:2044")
    setexec(-1)
    a.label("L_notlb")
if Cfg.cpf:
    a("s_cmp_lg_u32 s34, 7")
    a("s_cbranch_scc1 L_nocpf")
    a("s_getpc_b64 s[48:49]")
    a.label("L_pc")
    a("s_sub_u32 s48, s48, L_pc-%s_kernel" % NAME)
    a("s_subb_u32 s49, s49, 0")
    a("v_lshlrev_b32 v8, 7, v%d" % V_LANE)
    a("v_min_u32 v9, L_exit-%s_kernel-8192, v8" % NAME)
    a("global_load_dword v26, v8, s[48:49]")
    a("v_add_u32 v9, 8192, v9")
    a("global_load_dword v26, v9, s[48:49]")
    a.label("L_nocpf")
if Cfg.pace:
    a("s_sleep %d" % Cfg.e1w)
a.label("L_e1")
if not Cfg.pace:
    a("s_barrier")
sel_init(32)
P = Cfg.npipe if Cfg.pace else len(SEGS)
GS = [V_S2 + 8 * k for k in range(P)]
XC = 12
V_E0 = 27
def e1_issue(k):
    a("s_add_u32 s53, s52, s%d" % S_SEL)
    a("s_cmp_eq_u32 s%d, 0" % S_SEL)
    a("s_cselect_b32 s98, s99, 0")
    a("s_cselect_b32 s0, 0, 1")
    a("v_xor_b32 v%d, s98, v%d" % (V_E0, V_T))
    for u in range(2):
        a("buffer_load_dwordx4 v[%d:%d], v24, s[36:39], s53 offen offset:%d sc1" % (GS[k] + 4 * u, GS[k] + 4 * u + 3, 2048 * u))
    sel_step(True)
if Cfg.pace:
    for k in range(P):
        e1_issue(k)
        if k < P - 1:
            a("s_sleep %d" % Cfg.ps1)
    a.label("L_e1poll")
    for k in range(P):
        a("s_waitcnt vmcnt(%d)" % (2 * (P - 1)))
        check12(2, XC, "L_e1ok", GS[k], V_E0)
        e1_issue(k)
    a("s_branch L_e1poll")
else:
    for k in range(P):
        a("s_barrier")
        e1_issue(k)
        a("s_barrier")
    stamp(7)
    for k in range(P):
        a("s_waitcnt vmcnt(%d)" % (2 * (P - 1 - k)))
        check12(2, XC, "L_e1ok", GS[k], V_E0)
    a.label("L_e1poll")
    e1_issue(0)
    a("s_waitcnt vmcnt(0)")
    check12(2, XC, "L_e1ok", GS[0], V_E0)
    a("s_branch L_e1poll")
a.label("L_e1ok")
for r in range(4):
    a("v_add_f32 v%d, v%d, v%d" % (XC + r, XC + r, XC + 4 + r))
for r in range(4):
    a("v_mov_b32 v%d, v%d" % (XC + 4 + r, XC + r))
for r in range(4):
    a("v_permlane32_swap_b32 v%d, v%d" % (XC + r, XC + 4 + r))
for r in range(4):
    a("v_add_f32 v%d, v%d, v%d" % (XC + r, XC + r, XC + 4 + r))
a("v_cvt_pk_bf16_f32 v8, v%d, v%d" % (XC, XC + 1))
a("v_cvt_pk_bf16_f32 v9, v%d, v%d" % (XC + 2, XC + 3))
a("s_mov_b32 exec_hi, 0")
a("ds_write_b16 v25, v8 offset:%d" % (L_Q))
a("ds_write_b16_d16_hi v25, v8 offset:%d" % (L_Q + 16))
a("ds_write_b16 v25, v9 offset:%d" % (L_Q + 32))
a("ds_write_b16_d16_hi v25, v9 offset:%d" % (L_Q + 48))
setexec(-1)
if Cfg.xcc:
    a("s_cmp_eq_u32 s0, 0")
    a("s_cbranch_scc1 L_fastq")
    a("v_mov_b32 v10, 0")
    a("v_mov_b32 v11, 1")
    a("ds_write_b32 v10, v11 offset:%d" % (L_CNT + 4))
    a.label("L_fastq")
a("s_waitcnt lgkmcnt(0)")
stamp(4)
a("s_barrier")
a("s_cmp_ge_u32 s33, 30")
a("s_cbranch_scc1 L_end")
a("s_cmp_ge_u32 s33, 23")
a("s_cbranch_scc1 L_R")
a("s_cmp_ge_u32 s33, 16")
a("s_cbranch_scc1 L_F")

def poll(name, issue, nload, check, dual, sets=1, shadow=None, D=None):
    D = D or Cfg.pd
    ok = name + "_ok"
    for r in range(D):
        issue(r % sets)
        if r < D - 1 and Cfg.pds:
            a("s_sleep %d" % Cfg.pds)
    if shadow:
        shadow()
    a.label(name)
    n = sets if sets > 1 else 1
    for k in range(n):
        a("s_waitcnt vmcnt(%d)" % (nload * (D - 1)))
        check(k, ok)
        sel_step(True if dual else None)
        if not dual and Cfg.xls:
            a("s_sleep %d" % Cfg.xls)
        issue(k)
    a("s_branch %s" % name)
    a.label(ok)

def wait_cnt(n):
    lab = a.newlabel("L_wc")
    a("v_mov_b32 v5, 0")
    a.label(lab)
    a("ds_read_b32 v7, v5 offset:%d" % L_CNT)
    a("s_sub_u32 s%d, s%d, 1" % (S_TO, S_TO))
    a("s_cbranch_scc1 L_end")
    a("s_sleep 1")
    a("s_waitcnt lgkmcnt(0)")
    a("v_cmp_gt_u32 vcc, %d, v7" % n)
    a("s_cbranch_vccnz %s" % lab)

a("s_lshl_b32 s48, s33, 1")
a("s_lshr_b32 s49, s35, 1")
a("s_add_u32 s48, s48, s49")
a("s_lshl_b32 s50, s32, 9")
a("s_bfe_u32 s49, s48, 0x10001")
a("s_lshl_b32 s49, s49, 8")
a("s_add_u32 s50, s50, s49")
a("s_lshr_b32 s49, s48, 4")
a("s_lshl_b32 s49, s49, 7")
a("s_add_u32 s50, s50, s49")
a("s_bfe_u32 s49, s48, 0x20002")
a("s_lshl_b32 s49, s49, 5")
a("s_add_u32 s50, s50, s49")
a("s_and_b32 s49, s48, 1")
a("s_lshl_b32 s49, s49, 2")
a("s_add_u32 s50, s50, s49")
a("s_mul_i32 s50, s50, 896")
a("s_and_b32 s49, s35, 1")
a("s_lshl_b32 s49, s49, 9")
a("s_add_u32 s50, s50, s49")
a("v_mul_u32_u24 v6, 7168, v%d" % V_GRP)
a("v_lshl_add_u32 v6, v%d, 4, v6" % V_I16)
srd(40, 12, 4096 * 896)
a("s_lshl_b32 s54, s32, 16")
a("s_lshl_b32 s63, s48, 6")
a("s_add_u32 s54, s54, s63")
a("s_lshl_b32 s55, s32, 5")
a("s_add_u32 s55, s55, s48")
a("s_lshl_b32 s55, s55, 11")
a("s_lshl_b32 s49, s49, 1")
a("s_add_u32 s55, s55, s49")
a("s_add_u32 s52, s55, %d" % E3A)
a("s_add_u32 s53, s55, %d" % (E3A + BOFF))
a("v_cmp_lt_u32 s[6:7], 7, v%d" % V_I16)
a("v_add_u32 v4, %d, v%d" % (512 - 128, V_PUB))
a("v_cndmask_b32 v4, v%d, v4, s[6:7]" % V_PUB)
a("s_mov_b64 s[8:9], -1")
a("s_bitcmp1_b32 s35, 0")
a("s_cselect_b32 s9, 0x00ff00ff, s9")
a("s_mov_b32 s0, 0")
if Cfg.dry & 1:
    a("s_mov_b32 s0, 1")
    a("s_mov_b64 s[6:7], 0")
    a("s_branch L_e2poll_ok")
    a.label("L_odry")
    a("s_mov_b32 s0, 0")
wait_cnt(Cfg.ocnt)
if Cfg.os:
    a("s_sleep %d" % Cfg.os)
for q in range(4):
    a("buffer_load_dwordx4 v[%d:%d], v6, s[40:43], s50 offen offset:%d%s" % (V_W + 4 * q, V_W + 4 * q + 3, 896 * q, NTL))
a("s_mov_b32 exec_lo, s9")
a("s_mov_b32 exec_hi, s9")
for q in range(4):
    a("buffer_load_dwordx4 v[%d:%d], v6, s[40:43], s50 offen offset:%d%s" % (V_W + 16 + 4 * q, V_W + 16 + 4 * q + 3, 896 * q + 256, NTL))
setexec(-1)
sel_init()
stamp(1)
E2S = [V_S1 + 8 * k for k in range(Cfg.pd)]
def e2_issue(k):
    a("s_add_u32 s48, s54, s%d" % S_SEL)
    a("s_add_u32 s49, s48, %d" % (E2 + 16 * 2048))
    a("s_add_u32 s48, s48, %d" % E2)
    a("buffer_load_dwordx4 v[%d:%d], v%d, s[36:39], s48 offen sc1" % (E2S[k], E2S[k] + 3, V_GA))
    a("buffer_load_dwordx4 v[%d:%d], v%d, s[36:39], s49 offen sc1" % (E2S[k] + 4, E2S[k] + 7, V_GA))
def e2_check(k, ok):
    G = E2S[k]
    a("v_xor_b32 v10, v%d, v%d" % (G + 2, V_T8))
    a("v_xor_b32 v11, v%d, v%d" % (G + 6, V_T8))
    a("v_xor_b32 v12, v%d, v%d" % (G + 3, V_TB))
    a("v_xor_b32 v13, v%d, v%d" % (G + 7, V_TB))
    a("v_or_b32 v14, v10, v11")
    a("v_and_b32 v14, 0xff, v14")
    a("v_or3_b32 v14, v14, v12, v13")
    a("v_cmp_ne_u32 vcc, 0, v14")
    for t in range(2):
        a("v_lshlrev_b32 v%d, 16, v%d" % (16 + 4 * t, G + 4 * t))
        a("v_and_b32 v%d, 0xffff0000, v%d" % (17 + 4 * t, G + 4 * t))
        a("v_lshlrev_b32 v%d, 16, v%d" % (18 + 4 * t, G + 4 * t + 1))
        a("v_and_b32 v%d, 0xffff0000, v%d" % (19 + 4 * t, G + 4 * t + 1))
    a("s_cbranch_vccz %s" % ok)
poll("L_e2poll", e2_issue, 2, e2_check, True, sets=Cfg.pd)
stamp(5)
a("v_max_f32 v14, v10, v11")
a("v_max_f32_dpp v14, v14, v14 row_ror:8%s" % DPPM)
a("v_max_f32_dpp v14, v14, v14 row_ror:4%s" % DPPM)
bfly("v_max_f32", 14, 15, 16)
bfly("v_max_f32", 14, 15, 32)
a("v_sub_f32 v10, v10, v14")
a("v_sub_f32 v11, v11, v14")
a("v_exp_f32 v10, v10")
a("v_exp_f32 v11, v11")
a("s_movk_i32 s63, 0xfff")
for r in range(4):
    a("v_mul_f32 v%d, v%d, v10" % (16 + r, 16 + r))
a("v_add_f32 v12, v10, v11")
for r in range(4):
    a("v_fmac_f32 v%d, v%d, v11" % (16 + r, 20 + r))
a("v_add_f32_dpp v12, v12, v12 row_ror:8%s" % DPPM)
a("v_add_f32_dpp v12, v12, v12 row_ror:4%s" % DPPM)
a("v_mfma_f32_16x16x4_f32 v[%d:%d], v12, v%d, 0" % (V_ACC + 4, V_ACC + 7, V_ONE))
reduce16([16, 17, 18, 19], 13)
a("v_mfma_f32_16x16x4_f32 v[%d:%d], v13, v%d, 0" % (V_ACC, V_ACC + 3, V_ONE))
a("v_rcp_f32 v12, v%d" % (V_ACC + 4))
for r in range(4):
    a("v_mul_f32 v%d, v%d, v12" % (16 + r, V_ACC + r))
for r in range(4):
    a("v_cvt_pk_bf16_f32 v%d, v%d, v%d" % (16 + r, 16 + r, 16 + r))
A2 = V_ACC + 8
BB = V_BB
def omf(qq):
    for b in range(2):
        a("v_mfma_f32_16x16x32_bf16 v[%d:%d], v[%d:%d], v[%d:%d], %s" % (A2 + 4 * b, A2 + 4 * b + 3, V_W + 16 * b + 4 * qq, V_W + 16 * b + 4 * qq + 3, BB + 4 * qq, BB + 4 * qq + 3, "0" if qq == 0 else "v[%d:%d]" % (A2 + 4 * b, A2 + 4 * b + 3)))
for q in range(4):
    for rho in range(4):
        a("v_and_b32 v%d, v%d, v%d" % (BB + 4 * q + rho, 16 + q, V_M + rho))
    if q >= 1:
        omf(q - 1)
omf(3)
for r in range(4):
    a("v_cndmask_b32 v%d, v%d, v%d, s[6:7]" % (24 + r, A2 + r, A2 + 4 + r))
tag12(28, 24)
if Cfg.dry & 1:
    a("s_cmp_eq_u32 s0, 1")
    a("s_cbranch_scc1 L_odry")
a("s_mov_b64 exec, s[8:9]")
if not Cfg.noA:
    a("buffer_store_dwordx4 v[28:31], v4, s[36:39], s52 offen")
stamp(6)
bdefer()
skip_if_local(8, "L_end")
if not Cfg.noB:
    a("buffer_store_dwordx4 v[28:31], v4, s[36:39], s53 offen sc1")
setexec(-1)
if Cfg.w2l:
    a("s_lshl_b32 s48, s33, 2")
    a("s_add_u32 s48, s48, s35")
    a("s_mul_i32 s48, s48, %d" % (25 * 128))
    a("s_mul_i32 s63, s32, %d" % (224 * 896))
    a("s_add_u32 s48, s48, s63")
    a("v_lshlrev_b32 v24, 7, v%d" % V_LANE)
    srd(40, 20, 1792 * 896)
    setexec(0x1ffffff)
    a("buffer_load_dword v250, v24, s[40:43], s48 offen")
a("s_branch L_end")

a.label("L_R")
a.flush()
a("s_sub_u32 s50, s33, 23")
a("s_lshl_b32 s52, s50, 2")
a("s_add_u32 s52, s52, s35")
a("s_lshl_b32 s54, s32, 16")
a("s_lshl_b32 s63, s52, 6")
a("s_add_u32 s54, s54, s63")
a("s_mul_i32 s53, s52, %d" % Cfg.ss)
a("s_add_u32 s53, s53, %d" % E3X)
a("s_lshl_b32 s51, s32, 12")
a("s_add_u32 s51, s51, s53")
a("s_lshl_b32 s55, s32, 11")
a("s_lshl_b32 s63, s52, 6")
a("s_add_u32 s55, s55, s63")
a("s_add_u32 s55, s55, %d" % E3L)
a("v_lshlrev_b32 v4, 4, v%d" % V_GRP)
a("s_lshr_b32 s63, s52, 1")
a("s_lshl_b32 s63, s63, 6")
a("s_and_b32 s48, s52, 1")
a("s_lshl_b32 s48, s48, 3")
a("s_add_u32 s63, s63, s48")
a("v_lshl_add_u32 v%d, v%d, 4, s63" % (V_XA, V_GRP))
srd(44, 4, 896)
a("buffer_load_dwordx2 v[%d:%d], v%d, s[44:47], 0 offen" % (V_X + 1, V_X + 2, V_XA))
a("v_and_b32 v8, 7, v%d" % V_I16)
a("v_lshlrev_b32 v8, 12, v8")
a("v_lshl_add_u32 v%d, v%d, 4, v8" % (V_LW, V_GRP))
if Cfg.rpf:
    a("s_mul_i32 s48, s32, %d" % (224 * 896))
    a("s_mul_i32 s63, s52, %d" % (56 * 128))
    a("s_add_u32 s48, s48, s63")
    a("s_mul_i32 s49, s32, 448")
    a("s_mul_i32 s63, s52, %d" % (16 * 3584))
    a("s_add_u32 s49, s49, s63")
    a("v_lshrrev_b32 v25, 2, v%d" % V_LANE)
    a("v_mul_u32_u24 v25, 3584, v25")
    a("v_and_b32 v26, 3, v%d" % V_LANE)
    a("v_mul_u32_u24 v26, 148, v26")
    a("v_add_u32 v25, v25, v26")
    a("v_lshlrev_b32 v24, 7, v%d" % V_LANE)
    srd(40, 16, 448 * 3584)
    srd(8, 20, 1792 * 896)
wait_cnt(6)
if Cfg.rpf:
    a("buffer_load_dword v250, v25, s[40:43], s49 offen")
    a("s_mov_b32 exec_hi, 0x00ffffff")
    a("buffer_load_dword v250, v24, s[8:11], s48 offen")
    setexec(-1)
sel_init()
if Cfg.rs:
    a("s_sleep %d" % Cfg.rs)
def e3a_issue(k):
    a("s_add_u32 s48, s54, s%d" % S_SEL)
    a("s_add_u32 s49, s48, %d" % (E3A + 16 * 2048))
    a("s_add_u32 s48, s48, %d" % E3A)
    a("buffer_load_dwordx4 v[%d:%d], v%d, s[36:39], s48 offen sc1" % (V_S2, V_S2 + 3, V_GA))
    a("buffer_load_dwordx4 v[%d:%d], v%d, s[36:39], s49 offen sc1" % (V_S2 + 4, V_S2 + 7, V_GA))
poll("L_e3apoll", e3a_issue, 2, lambda k, ok: check12(2, 12, ok, V_S2), True)
stamp(7)
for r in range(4):
    a("v_add_f32 v%d, v%d, v%d" % (12 + r, 12 + r, 16 + r))
reduce16([12, 13, 14, 15], 9)
a("v_mfma_f32_16x16x4_f32 v[%d:%d], v9, v%d, 0" % (V_ACC, V_ACC + 3, V_ONE))
a("s_movk_i32 s63, 0xfff")
setexec(0x0001000100010001)
tag12(28, V_ACC)
a("buffer_store_dwordx4 v[28:31], v4, s[36:39], s51 offen sc1")
if Cfg.lh:
    a("buffer_store_dwordx4 v[28:31], v4, s[36:39], s55 offen")
setexec(-1)
stamp(8)
a("s_cmp_lg_u32 s50, s32")
a("s_cbranch_scc1 L_end")
a.label("L_hpoll")
a("s_sleep 2")
a("buffer_load_dwordx4 v[%d:%d], v%d, s[36:39], s53 offen sc1" % (V_G, V_G + 3, V_LW))
a("s_waitcnt vmcnt(0)")
check12(1, 12, "L_hok")
retry("L_hpoll", False)
a.label("L_hok")
stamp(9)
for pat in ("quad_perm:[1,0,3,2]", "quad_perm:[2,3,0,1]", "row_half_mirror"):
    for r in range(4):
        a("v_add_f32_dpp v%d, v%d, v%d %s%s" % (12 + r, 12 + r, 12 + r, pat, DPPM))
for r in range(4):
    a("v_mov_b32 v%d, v%d" % (V_ACC + r, 12 + r))
a("v_lshlrev_b32 v%d, 16, v%d" % (V_X, V_X + 1))
a("v_and_b32 v%d, 0xffff0000, v%d" % (V_X + 1, V_X + 1))
a("v_and_b32 v%d, 0xffff0000, v%d" % (V_X + 3, V_X + 2))
a("v_lshlrev_b32 v%d, 16, v%d" % (V_X + 2, V_X + 2))
def round_add_round(src, add):
    a("v_cvt_pk_bf16_f32 v10, v%d, v%d" % (src, src + 1))
    a("v_cvt_pk_bf16_f32 v11, v%d, v%d" % (src + 2, src + 3))
    a("v_lshlrev_b32 v12, 16, v10")
    a("v_and_b32 v13, 0xffff0000, v10")
    a("v_lshlrev_b32 v14, 16, v11")
    a("v_and_b32 v15, 0xffff0000, v11")
    for r in range(4):
        a("v_add_f32 v%d, v%d, v%d" % (12 + r, 12 + r, add + r))
    a("v_cvt_pk_bf16_f32 v10, v12, v13")
    a("v_cvt_pk_bf16_f32 v11, v14, v15")
round_add_round(V_ACC, V_X)
a("v_lshlrev_b32 v%d, 16, v10" % (V_X))
a("v_and_b32 v%d, 0xffff0000, v10" % (V_X + 1))
a("v_lshlrev_b32 v%d, 16, v11" % (V_X + 2))
a("v_and_b32 v%d, 0xffff0000, v11" % (V_X + 3))
a("s_lshl_b32 s48, s52, 6")
a("s_add_u32 s48, s48, %d" % E4)
for t in range(1, 4):
    a("s_add_u32 s%d, s48, %d" % (48 + t, t * 16 * 2048))
for r in range(4):
    a("v_mov_b32 v%d, v%d" % (V_G + 12 + r, V_T + r))
srd(44, 22, 896)
if Cfg.e4s:
    a("s_sleep %d" % Cfg.e4s)
XR = V_S1
def e4_issue(k):
    for t in range(4):
        if t == 3:
            a("s_mov_b32 exec_hi, 0")
        a("buffer_load_dwordx4 v[%d:%d], v%d, s[36:39], s%d offen sc1" % (V_G + 4 * t, V_G + 4 * t + 3, V_GA, 48 + t))
    setexec(-1)
poll("L_e4poll", e4_issue, 4, lambda k, ok: check12(4, XR, ok), False, D=Cfg.pd4)
stamp(10)
for r in range(4):
    a("v_add_f32 v%d, v%d, v%d" % (XR + r, XR + r, XR + 4 + r))
    a("v_add_f32 v%d, v%d, v%d" % (XR + 8 + r, XR + 8 + r, XR + 12 + r))
for r in range(4):
    a("v_add_f32 v%d, v%d, v%d" % (XR + r, XR + r, XR + 8 + r))
reduce16([XR, XR + 1, XR + 2, XR + 3], 9)
a("v_mfma_f32_16x16x4_f32 v[%d:%d], v9, v%d, 0" % (V_ACC, V_ACC + 3, V_ONE))
round_add_round(V_ACC, V_X)
setexec(0x0001000100010001)
a("buffer_store_dwordx2 v[10:11], v%d, s[44:47], 0 offen" % V_XA)
a("s_cmp_lg_u32 s52, 0")
a("s_cbranch_scc1 L_noep")
setexec(1)
a("v_mov_b32 v9, 0")
for k in range(4):
    a("v_mov_b32 v%d, s%d" % (12 + k, 28 + k))
a("buffer_store_dwordx4 v[12:15], v9, s[36:39], 0 offen offset:%d" % EPOCH)
a.label("L_noep")
setexec(-1)
stamp(14)
a("s_branch L_end")

a.label("L_F")
a.flush()
a("s_mul_i32 s50, s32, 7")
a("s_add_u32 s50, s50, s33")
a("s_sub_u32 s50, s50, 16")
a("s_lshl_b32 s51, s50, 2")
a("s_add_u32 s51, s51, s35")
a("v_lshrrev_b32 v8, 3, v%d" % V_I16)
a("v_sub_u32 v8, v%d, v8" % V_I16)
a("v_min_u32 v8, 13, v8")
a("v_lshlrev_b32 v8, 6, v8")
a("v_lshl_add_u32 v23, v%d, 4, v8" % V_GRP)
if Cfg.lin:
    setexec(0x8080808080808080)
    a("v_mov_b32 v23, 896")
    for k in range(4):
        a("v_mov_b32 v%d, 0" % (12 + k))
    a("ds_write_b128 v23, v[12:15] offset:%d" % L_H)
    setexec(-1)
a("v_bfe_u32 v8, v%d, 2, 3" % V_LANE)
a("v_min_u32 v8, 6, v8")
a("v_and_b32 v9, 3, v%d" % V_LANE)
a("v_mul_u32_u24 v10, %d, v8" % Cfg.ss)
a("v_lshl_add_u32 v10, v9, 4, v10")
a("v_lshrrev_b32 v11, 5, v%d" % V_LANE)
a("v_lshl_add_u32 v%d, v11, 12, v10" % V_XA)
a("s_mul_i32 s63, s35, 7")
a("v_add_u32 v8, s63, v8")
a("v_lshrrev_b32 v10, 1, v8")
a("v_lshlrev_b32 v10, 6, v10")
a("v_and_b32 v8, 1, v8")
a("v_lshl_add_u32 v10, v8, 3, v10")
a("v_lshl_add_u32 v24, v9, 4, v10")
a("v_and_b32 v10, 1, v%d" % V_GRP)
a("v_and_b32 v11, 1, v%d" % V_I16)
a("v_lshlrev_b32 v25, 2, v10")
a("v_and_b32 v26, 2, v%d" % V_GRP)
a("v_add_u32 v25, v25, v26")
a("v_mul_u32_u24 v26, 896, v25")
a("v_lshl_add_u32 v26, v%d, 4, v26" % V_I16)
a("v_add_u32 v25, v25, v11")
a("v_lshlrev_b32 v25, 1, v25")
a("v_bfe_u32 v27, v%d, 1, 1" % V_I16)
a("v_mul_u32_u24 v27, %d, v27" % (224 * 64))
a("v_lshl_add_u32 v27, v%d, 9, v27" % V_GRP)
a("v_lshrrev_b32 v12, 2, v%d" % V_I16)
a("v_lshl_add_u32 v27, v12, 6, v27")
a("v_lshl_add_u32 v27, v11, 3, v27")
a("s_lshl_b32 s63, s35, 4")
a("v_add_u32 v%d, s63, v27" % V_W1A)
a("v_lshrrev_b32 v27, 2, v%d" % V_LANE)
a("v_mul_u32_u24 v27, 3584, v27")
a("v_and_b32 v12, 3, v%d" % V_LANE)
a("v_lshl_add_u32 v27, v12, 4, v27")
a("s_lshl_b32 s63, s35, 11")
a("v_lshl_add_u32 v%d, v%d, 4, s63" % (V_LW, V_LANE))
srd(40, 16, 448 * 3584)
srd(44, 20, 1792 * 896)
srd(8, 4, 896)
srd(12, 18, 1792 * 2)
a("s_mul_i32 s52, s35, %d" % (112 * 3584))
a("s_lshl_b32 s63, s50, 6")
a("s_add_u32 s52, s52, s63")
a("s_mul_i32 s53, s35, 7168")
a("s_add_u32 s53, s53, %d" % L_W1)
a("s_mul_i32 s54, s51, %d" % (8 * 896))
a("s_lshl_b32 s55, s51, 4")
a("s_mul_i32 s24, s35, %d" % (7 * Cfg.ss))
a("s_add_u32 s24, s24, %d" % E3X)
a("s_add_u32 s25, s24, 8192")
a("s_add_u32 s26, s24, 16384")
a("s_add_u32 s27, s24, 24576")
a("s_mov_b32 s6, %d" % (16 * 3584))
a("s_movk_i32 s7, 1024")
if Cfg.zig:
    a("s_bitcmp1_b32 s50, 0")
    a("s_cbranch_scc0 L_nozig")
    a("s_add_u32 s52, s52, %d" % (6 * 16 * 3584))
    a("s_add_u32 s53, s53, 6144")
    a("s_mov_b32 s6, %d" % (-16 * 3584))
    a("s_movk_i32 s7, -1024")
    a.label("L_nozig")
def w1_loads():
    for t in range(7):
        a("s_mov_b32 m0, s53")
        a("buffer_load_dwordx4 v27, s[40:43], s52 offen%s lds" % NTW)
        if t < 6:
            a("s_add_u32 s52, s52, s6")
            a("s_add_u32 s53, s53, s7")
def w2_loads():
    for b in range(4):
        if b == 3:
            setexec(0x00FF00FF00FF00FF)
        for q in range(2):
            a("buffer_load_dwordx4 v[%d:%d], v26, s[44:47], s54 offen offset:%d%s" % (V_W + 8 * b + 4 * q, V_W + 8 * b + 4 * q + 3, 896 * q + 256 * b, NTL))
    setexec(-1)
def small_loads():
    a("buffer_load_dwordx2 v[%d:%d], v24, s[8:11], 0 offen" % (V_X + 1, V_X + 2))
    a("buffer_load_ushort v%d, v25, s[12:15], s55 offen" % V_B1)
if Cfg.w2e:
    w2_loads()
    small_loads()
wait_cnt(Cfg.fcnt)
if Cfg.fs:
    a("s_sleep %d" % Cfg.fs)
stamp(1)
if Cfg.w2e:
    w1_loads()
else:
    if not Cfg.w2first:
        w1_loads()
    if not Cfg.w2l:
        w2_loads()
    if Cfg.w2first:
        w1_loads()
    small_loads()
a("s_lshl_b32 s48, s50, 11")
a("s_lshl_b32 s63, s35, 10")
a("s_add_u32 s48, s48, s63")
a("s_add_u32 s48, s48, %d" % E4)
a("v_cmp_lt_u32 s[6:7], 7, v%d" % V_I16)
a("v_add_u32 v4, %d, v%d" % (512 - 128, V_PUB))
a("v_cndmask_b32 v4, v%d, v4, s[6:7]" % V_PUB)
a("s_lshl_b32 s63, s35, 10")
a("v_lshl_add_u32 v21, v%d, 4, s63" % V_LANE)
D1 = V_S2
V_CS = 251
def ffn1(AF, dst, fill=()):
    fill = list(fill)
    def f(n):
        for _ in range(n):
            if fill:
                a(fill.pop(0))
    for m in range(7):
        a("v_mfma_f32_16x16x32_bf16 v[%d:%d], v[%d:%d], v[%d:%d], 0" % (D1 + 4 * m, D1 + 4 * m + 3, AF, AF + 3, V_W1F + 4 * m, V_W1F + 4 * m + 3))
    return
def ffn1_tail(dst, t):
    a("v_mov_b32 v%d, 0" % dst)
    setexec(0x0000FF00000000FF)
    a("v_add_f32 v%d, v%d, v%d" % (dst, D1 + 0, D1 + 4 + 1))
    a("v_add_f32 v%d, v%d, v%d" % (t, D1 + 8 + 2, D1 + 12 + 3))
    a("v_add_f32 v%d, v%d, v%d" % (dst, dst, t))
    setexec(0xFF00000000FF0000)
    a("v_add_f32 v%d, v%d, v%d" % (dst, D1 + 16, D1 + 20 + 1))
    a("v_add_f32 v%d, v%d, v%d" % (dst, dst, D1 + 24 + 2))
    setexec(-1)
    a("v_add_f32_dpp v%d, v%d, v%d row_ror:8%s" % (dst, dst, dst, DPPM))
    a("v_mfma_f32_16x16x4_f32 v[%d:%d], v%d, v%d, 0" % (V_ACC, V_ACC + 3, dst, V_ONE))
def ffn1_sel(dst, t):
    a("v_cndmask_b32 v%d, v%d, v%d, s[%d:%d]" % (dst, V_ACC, V_ACC + 1, S_ODD, S_ODD + 1))
    a("v_cndmask_b32 v%d, v%d, v%d, s[%d:%d]" % (t, V_ACC + 2, V_ACC + 3, S_ODD, S_ODD + 1))
    a("v_cndmask_b32 v%d, v%d, v%d, s[%d:%d]" % (dst, dst, t, S_HI, S_HI + 1))
AF = 176
def e3x_issue(k):
    for t in range(4):
        a("buffer_load_dwordx4 v[%d:%d], v%d, s[36:39], s%d offen sc1" % (V_G + 4 * t, V_G + 4 * t + 3, V_XA, 24 + t))
a("v_min_u32 v22, 27, v%d" % V_LANE)
a("v_lshlrev_b32 v22, 4, v22")
a("s_lshl_b32 s49, s32, 11")
a("s_mul_i32 s63, s35, 448")
a("s_add_u32 s49, s49, s63")
a("s_add_u32 s49, s49, %d" % E3L)
a("s_mov_b32 s1, %d" % Cfg.bthr)
if Cfg.lh2:
    a("buffer_load_dwordx4 v[%d:%d], v22, s[36:39], s49 offen sc1" % (V_G, V_G + 3))
    a("s_waitcnt vmcnt(0)")
    stamp(5)
    check12(1, XR, "L_lh1")
    a("s_branch L_lh2")
    a.label("L_lh1")
    e3x_issue(0)
    a("s_mov_b32 s1, -1")
    a.label("L_lh2")
    a("s_barrier")
elif not Cfg.e3e:
    a("s_waitcnt vmcnt(0)")
    stamp(5)
    a("s_barrier")
def f_shadow():
    if Cfg.e3e:
        a("s_waitcnt vmcnt(%d)" % (4 * Cfg.pd))
        stamp(5)
        a("s_barrier")
    for m in range(7):
        for u in range(2):
            a("ds_read_b64_tr_b16 v[%d:%d], v%d offset:%d" % (V_W1F + 4 * m + 2 * u, V_W1F + 4 * m + 2 * u + 1, V_W1A, L_W1 + 2048 * m + 256 * u))
    a("v_lshlrev_b32 v%d, 16, v%d" % (V_B1, V_B1))
    a("v_lshlrev_b32 v%d, 16, v%d" % (V_X, V_X + 1))
    a("v_and_b32 v%d, 0xffff0000, v%d" % (V_X + 1, V_X + 1))
    a("v_and_b32 v%d, 0xffff0000, v%d" % (V_X + 3, V_X + 2))
    a("v_lshlrev_b32 v%d, 16, v%d" % (V_X + 2, V_X + 2))
    if Cfg.lin:
        for k in range(4):
            a("v_mov_b32 v%d, 0x3f803f80" % (AF + k))
        a("s_waitcnt lgkmcnt(0)")
        ffn1(AF, V_CS)
        ffn1_tail(V_CS, 9)
        ffn1_sel(V_CS, 9)
if Cfg.lh:
    f_shadow()
    if Cfg.lh2:
        a("s_cmp_eq_u32 s1, -1")
        a("s_cbranch_scc1 L_e3xpoll")
    a.label("L_lh")
    a("buffer_load_dwordx4 v[%d:%d], v22, s[36:39], s49 offen sc1" % (V_G, V_G + 3))
    a("s_sub_u32 s1, s1, 1")
    a("s_cbranch_scc1 L_lhok")
    a("s_waitcnt vmcnt(0)")
    check12(1, XR, "L_lhok")
    a("s_branch L_lh")
    a.label("L_lhok")
    if Cfg.xs:
        a("s_sleep %d" % Cfg.xs)
    assert Cfg.pdx == 1 or not Cfg.lh2
    poll("L_e3xpoll", e3x_issue, 4, lambda k, ok: check12(4, XR, ok), False, D=Cfg.pdx)
else:
    poll("L_e3xpoll", e3x_issue, 4, lambda k, ok: check12(4, XR, ok), False, shadow=f_shadow)
stamp(9)
if Cfg.w2l:
    w2_loads()
for r in range(4):
    a("v_add_f32 v%d, v%d, v%d" % (XR + r, XR + r, XR + 4 + r))
    a("v_add_f32 v%d, v%d, v%d" % (XR + 8 + r, XR + 8 + r, XR + 12 + r))
for r in range(4):
    a("v_add_f32 v%d, v%d, v%d" % (XR + r, XR + r, XR + 8 + r))
for r in range(4):
    a("v_mov_b32 v%d, v%d" % (XR + 4 + r, XR + r))
for r in range(4):
    a("v_permlane32_swap_b32 v%d, v%d" % (XR + r, XR + 4 + r))
for r in range(4):
    a("v_add_f32 v%d, v%d, v%d" % (XR + r, XR + r, XR + 4 + r))
round_add_round(XR, V_X)
a("ds_write_b64 v24, v[10:11] offset:%d" % L_H)
a("s_waitcnt lgkmcnt(0)")
a("s_barrier")
stamp(10)
PR = V_S1
if Cfg.lin:
    a("ds_read_b128 v[%d:%d], v23 offset:%d" % (AF, AF + 3, L_H))
    a("s_waitcnt lgkmcnt(0)")
    ffn1(AF, 22)
    for k in range(4):
        a("v_lshlrev_b32 v%d, 16, v%d" % (PR + 2 * k, AF + k))
        a("v_and_b32 v%d, 0xffff0000, v%d" % (PR + 2 * k + 1, AF + k))
    ffn1_tail(22, 20)
    s1, s2 = ln_stats([PR + k for k in range(8)], 0x7F7F7F7F7F7F7F7F, 5)
    ffn1_sel(22, 20)
    bf16r(s2, s2)
    a("v_rcp_f32 v%d, v%d" % (s2, s2))
    a("v_fma_f32 v8, -v%d, v%d, v22" % (s1, V_CS))
    a("s_mov_b32 s63, %s" % f32(-LOG2E))
    a("v_mul_f32 v8, v8, v%d" % s2)
else:
    a("ds_read_b128 v[%d:%d], v23 offset:%d" % (PR + 8, PR + 11, L_H))
    a("s_waitcnt lgkmcnt(0)")
    for k in range(4):
        a("v_lshlrev_b32 v%d, 16, v%d" % (PR + 2 * k, PR + 8 + k))
        a("v_and_b32 v%d, 0xffff0000, v%d" % (PR + 2 * k + 1, PR + 8 + k))
    layernorm([PR + k for k in range(8)], AF, 0x7F7F7F7F7F7F7F7F, 5)
    ffn1(AF, 8)
    ffn1_tail(8, 9)
    a("s_mov_b32 s63, %s" % f32(-LOG2E))
    ffn1_sel(8, 9)
bf16r(8, 8)
a("v_add_f32 v8, v8, v%d" % V_B1)
bf16r(8, 8)
a("v_mul_f32 v9, s63, abs(v8)")
a("v_exp_f32 v9, v9")
a("v_max_f32 v17, 0, v8")
bf16r(9, 9)
a("v_add_f32 v10, 1.0, v9")
a("v_add_f32 v11, -1.0, v10")
a("v_log_f32 v12, v10")
a("v_rcp_f32 v13, v11")
a("v_cmp_eq_f32 vcc, 0, v11")
a("v_mul_f32 v12, %s, v12" % f32(0.6931471805599453))
a("v_mul_f32 v13, v13, v9")
a("v_mul_f32 v12, v12, v13")
a("v_cndmask_b32 v12, v12, v9, vcc")
bf16r(12, 12)
a("v_add_f32 v12, v12, v17")
bf16r(12, 12)
a("v_mul_f32 v13, %s, v12" % f32(-2.0 * LOG2E))
a("v_exp_f32 v13, v13")
a("v_mul_f32 v16, v12, v12")
a("v_add_f32 v14, 1.0, v13")
a("v_sub_f32 v15, 1.0, v13")
a("v_rcp_f32 v14, v14")
a("v_mul_f32 v16, %s, v16" % f32(-1.0 / 3.0))
a("v_cmp_gt_f32 vcc, %s, v12" % f32(2.0 ** -6))
a("v_fma_f32 v16, v16, v12, v12")
a("v_mul_f32 v14, v14, v15")
a("v_cndmask_b32 v14, v14, v16, vcc")
bf16r(14, 14)
a("v_mul_f32 v14, v14, v8")
a("v_cvt_pk_bf16_f32 v14, v14, v14")
a("s_movk_i32 s63, 0xfff")
for q in range(2):
    for rho in range(4):
        a("v_and_b32_dpp v%d, v14, v%d quad_perm:[%d,%d,%d,%d]%s" % (BB + 4 * q + rho, V_M + rho, q, q, 2 + q, 2 + q, DPPM))
if Cfg.w2l:
    stamp(12)
    a("s_waitcnt vmcnt(0)")
for q in range(2):
    for b in range(4):
        a("v_mfma_f32_16x16x32_bf16 v[%d:%d], v[%d:%d], v[%d:%d], %s" % (V_ACC + 4 * b, V_ACC + 4 * b + 3, V_W + 8 * b + 4 * q, V_W + 8 * b + 4 * q + 3, BB + 4 * q, BB + 4 * q + 3, "0" if q == 0 else "v[%d:%d]" % (V_ACC + 4 * b, V_ACC + 4 * b + 3)))
setexec(0x00FF00FF00FF00FF)
a("ds_write_b128 v%d, v[%d:%d] offset:%d" % (V_LW, V_ACC, V_ACC + 3, L_F))
a("s_not_b64 exec, exec")
a("ds_write_b128 v%d, v[%d:%d] offset:%d" % (V_LW, V_ACC + 4, V_ACC + 7, L_F))
a("s_not_b64 exec, exec")
a("ds_write_b128 v%d, v[%d:%d] offset:%d" % (V_LW, V_ACC + 8, V_ACC + 11, L_F + 1024))
a("s_not_b64 exec, exec")
a("ds_write_b128 v%d, v[%d:%d] offset:%d" % (V_LW, V_ACC + 12, V_ACC + 15, L_F + 1024))
setexec(-1)
a("s_waitcnt lgkmcnt(0)")
stamp(13)
a("s_barrier")
a("s_cmp_ge_u32 s35, 2")
a("s_cbranch_scc1 L_end")
for w in range(4):
    a("ds_read_b128 v[%d:%d], v21 offset:%d" % (PR + 4 * w, PR + 4 * w + 3, L_F + 2048 * w))
a("s_cmp_eq_u32 s35, 1")
a("s_cselect_b32 exec_hi, 0x00ff00ff, -1")
a("s_waitcnt lgkmcnt(0)")
for r in range(4):
    a("v_add_f32 v%d, v%d, v%d" % (PR + r, PR + r, PR + 4 + r))
    a("v_add_f32 v%d, v%d, v%d" % (PR + 8 + r, PR + 8 + r, PR + 12 + r))
for r in range(4):
    a("v_add_f32 v%d, v%d, v%d" % (PR + r, PR + r, PR + 8 + r))
tag12(28, PR)
a("buffer_store_dwordx4 v[28:31], v4, s[36:39], s48 offen sc1")
setexec(-1)
stamp(14)
a.label("L_end")
if Cfg.stamps:
    setexec(-1)
    stamp(15)
    a("s_waitcnt lgkmcnt(0)")
    a("s_lshl_b32 s48, s2, 3")
    a("s_add_u32 s48, s48, s34")
    a("s_lshl_b32 s48, s48, 6")
    a("s_add_u32 s48, s48, %d" % STAMP)
    a("v_mov_b32 v9, 0")
    setexec(1)
    for i in range(0 if getattr(Cfg, "nost", False) else 16):
        a("v_mov_b32 v10, s%d" % (64 + 2 * i))
        a("buffer_store_dword v10, v9, s[36:39], s48 offen offset:%d" % (4 * i))
    if Cfg.dbgwg >= 0:
        a("s_cmp_lg_u32 s2, %d" % Cfg.dbgwg)
        a("s_cbranch_scc1 L_exit")
        a("s_cmp_lg_u32 s34, %d" % Cfg.dbgwave)
        a("s_cbranch_scc1 L_exit")
        if Cfg.spin:
            a.label("L_spin")
            a("s_memrealtime s[94:95]")
            a("s_waitcnt lgkmcnt(0)")
            a("s_sub_u32 s63, s94, s64")
            a("s_cmp_lt_u32 s63, %d" % Cfg.spin)
            a("s_cbranch_scc1 L_spin")
        srd(44, 24, 256)
        for i in range(16):
            a("s_sub_u32 s63, s%d, s64" % (64 + 2 * i))
            a("s_cmp_eq_u32 s%d, 0" % (64 + 2 * i))
            a("s_cselect_b32 s63, 0, s63")
            a("v_mov_b32 v10, s63")
            a("buffer_store_dword v10, v9, s[44:47], 0 offen offset:%d" % (4 * i))
a.label("L_exit")
a("s_endpgm")
a.raw('''.section .rodata,"a"
.p2align 6
.amdhsa_kernel %s_kernel
  .amdhsa_next_free_vgpr %d
  .amdhsa_next_free_sgpr 100
  .amdhsa_accum_offset %d
  .amdhsa_group_segment_fixed_size 0
  .amdhsa_kernarg_size 96
  .amdhsa_user_sgpr_count 2
  .amdhsa_user_sgpr_kernarg_segment_ptr 1
  .amdhsa_system_sgpr_workgroup_id_x 1
  .amdhsa_float_denorm_mode_32 3
.end_amdhsa_kernel''' % (NAME, NVGPR, NVGPR))
open(sys.argv[1], "w").write(a.text())
```

```python
import sys, struct
from asmlib import Asm
NAME = "sequential_preLN__sliding_block_cached__dense_activation_mish__decode"

class Cfg:
    stamps = False
    nt = True
    ntw = False
    timeout = 200000
    ocnt = 0
    vs = 0
    nearly = 7
    pfat = 1
    n1 = 10
    pf = False
    cpf = True
    ntl = False
    depth = 0
    ss = 128
    forceB = False
    pretouch = True
    fs = 0
    tlb = 0
    bthr = 64
    b0 = True
    npipe = 3
    ps0 = 0
    ps1 = 4
    kpat = 0
    kdma = True
    pd = 1
    pds = 2
    fpf = False
    prio = True
    xls = 0
    pace = 0
    e1w = 20
    fcnt = 6
    w2l = False
    pdx = 1
    pd4 = 1
    zig = True
    w2first = True
    w2e = True
    bd = 0
    xcc = True
    fakex = False
    fmish = True
    noA = False
    nost = False
    noB = False
    dry = 0
    lh2 = False
    lh = True
    e3e = False
    lin = True
    rpf = False
    rs = 0
    os = 0
    ka = 3
    kb = 0
    kc = 0
    p1 = 13
    p2 = 15
    bq = True
    kpre = 0
    sp = True
    k0 = 9
    xs = 0
    e4s = 0
    rnd = True
    dbgwg = -1
    dbgwave = 0
    spin = 0
for arg in sys.argv[2:]:
    k, v = arg.split('=')
    setattr(Cfg, k, type(getattr(Cfg, k))(int(v)))

NT = " nt" if Cfg.nt else ""
NTW = " nt" if Cfg.ntw else ""
NTQ = NT
NTL = " nt" if Cfg.ntl else ""
EPOCH = 0x0
E3X = 0x1000
E3L = 0x9000
E1 = 0x10000
E2 = 0x20000
E3A = 0xA0000
BOFF = 0x120000
E4 = 0x240000
STAMP = 0x300000
WS_SIZE = 0x400000
L_Q = 0
L_ML = 1024
L_CNT = 3072
L_H = 3136
L_O = 4096
L_F = L_O
L_K = 12288
L_W1 = L_K
LDS_BYTES = 45056

LOG2E = 1.4426950408889634
def f32(x):
    return "0x%08x" % struct.unpack('<I', struct.pack('<f', x))[0]

a = Asm()
a.raw("""; Single persistent launch, 256 workgroups (one per CU) x 8 waves; written with a small generator script.
; copies are written and polled, so any placement is correct.""")
a.raw("; @launch grid=(256,1,1) block=(512,1,1) lds=%d" % LDS_BYTES)
a.raw('.amdgcn_target "amdgcn-amd-amdhsa--gfx950"\n.text\n.globl %s_kernel\n.p2align 8\n.type %s_kernel,@function\n%s_kernel:' % (NAME, NAME, NAME))

DPPM = " row_mask:0xf bank_mask:0xf"
def stamp(i):
    if Cfg.stamps:
        a("s_memrealtime s[%d:%d]" % (64 + 2 * i, 65 + 2 * i))

def srd(dst, ptr, nbytes):
    a("s_mov_b32 s%d, s%d" % (dst, ptr))
    a("s_and_b32 s%d, s%d, 0xffff" % (dst + 1, ptr + 1))
    a("s_mov_b32 s%d, %d" % (dst + 2, nbytes))
    a("s_mov_b32 s%d, 0x20000" % (dst + 3))

def setexec(mask):
    if mask == -1:
        a("s_mov_b64 exec, -1")
    else:
        a("s_mov_b32 exec_lo, 0x%08x" % (mask & 0xffffffff))
        a("s_mov_b32 exec_hi, 0x%08x" % (mask >> 32))

def setmask(s, mask):
    a("s_mov_b32 s%d, 0x%08x" % (s, mask & 0xffffffff))
    a("s_mov_b32 s%d, 0x%08x" % (s + 1, mask >> 32))

def bfly(op, v, t, which):
    a("v_mov_b32 v%d, v%d" % (t, v))
    a("v_permlane%d_swap_b32 v%d, v%d" % (which, v, t))
    a("%s v%d, v%d, v%d" % (op, v, v, t))

def bf16r(dst, src):
    a("v_cvt_pk_bf16_f32 v%d, v%d, v%d" % (dst, src, src))
    a("v_and_b32 v%d, 0xffff0000, v%d" % (dst, dst))

S_ODD, S_B1, S_HI = 56, 58, 60
S_M4, S_M8 = 58, 96
S_TO = 62
S_SEL = 3

S_CNT = 33
def sel_step(thr):
    a("s_sub_u32 s%d, s%d, 1" % (S_TO, S_TO))
    a("s_cbranch_scc1 L_end")
    if thr is not None and not Cfg.forceB:
        assert Cfg.pd == 1
        a("s_xor_b32 s63, s%d, %d" % (S_SEL, BOFF))
        a("s_cmp_lt_u32 s%d, s1" % S_TO)
        a("s_cselect_b32 s%d, s63, s%d" % (S_SEL, S_SEL))

def retry(loop, dual):
    sel_step(True if dual else None)
    a("s_branch %s" % loop)

def sel_init(thr=None):
    a("s_mov_b32 s%d, %d" % (S_SEL, BOFF if Cfg.forceB else 0))
    a("s_sub_u32 s1, s%d, %d" % (S_TO, Cfg.bthr if thr is None else thr))

def ln_stats(f, valid, T, fill=None):
    e = [T + k for k in range(8)]
    s1, s2, t1, t2 = T + 8, T + 9, T + 10, T + 11
    fill = list(fill or [])
    def filler():
        if fill:
            a(fill.pop(0))
    a("v_readlane_b32 s63, v%d, 0" % f[0])
    a("v_mov_b32 v%d, 0" % s1)
    a("v_mov_b32 v%d, 0" % s2)
    setexec(valid)
    for k in range(8):
        a("v_subrev_f32 v%d, s63, v%d" % (e[k], f[k]))
    a("v_add_f32 v%d, v%d, v%d" % (s1, e[0], e[1]))
    a("v_mul_f32 v%d, v%d, v%d" % (s2, e[0], e[0]))
    a("v_add_f32 v%d, v%d, v%d" % (t1, e[2], e[3]))
    a("v_mul_f32 v%d, v%d, v%d" % (t2, e[1], e[1]))
    for k in range(4, 8):
        a("v_add_f32 v%d, v%d, v%d" % (s1 if k % 2 == 0 else t1, s1 if k % 2 == 0 else t1, e[k]))
    for k in range(2, 8):
        a("v_fmac_f32 v%d, v%d, v%d" % (s2 if k % 2 == 0 else t2, e[k], e[k]))
    a("v_add_f32 v%d, v%d, v%d" % (s1, s1, t1))
    a("v_add_f32 v%d, v%d, v%d" % (s2, s2, t2))
    setexec(-1)
    for i, r in enumerate((8, 4, 2, 1)):
        a("v_add_f32_dpp v%d, v%d, v%d row_ror:%d%s" % (s1, s1, s1, r, DPPM))
        a("v_add_f32_dpp v%d, v%d, v%d row_ror:%d%s" % (s2, s2, s2, r, DPPM))
        filler()
    for which in (16, 32):
        a("v_mov_b32 v%d, v%d" % (t1, s1))
        a("v_mov_b32 v%d, v%d" % (t2, s2))
        filler()
        a("v_permlane%d_swap_b32 v%d, v%d" % (which, s1, t1))
        a("v_permlane%d_swap_b32 v%d, v%d" % (which, s2, t2))
        a("v_add_f32 v%d, v%d, v%d" % (s1, s1, t1))
        a("v_add_f32 v%d, v%d, v%d" % (s2, s2, t2))
    a("v_mul_f32 v%d, %s, v%d" % (s1, f32(1.0 / 448), s1))
    a("v_mul_f32 v%d, %s, v%d" % (s2, f32(1.0 / 448), s2))
    a("v_fma_f32 v%d, -v%d, v%d, v%d" % (s2, s1, s1, s2))
    a("v_add_f32 v%d, s63, v%d" % (s1, s1))
    a("v_max_f32 v%d, 0, v%d" % (s2, s2))
    a("v_cvt_pk_bf16_f32 v%d, v%d, v%d" % (t1, s1, s2))
    a("v_and_b32 v%d, 0xffff0000, v%d" % (s2, t1))
    a("v_lshlrev_b32 v%d, 16, v%d" % (s1, t1))
    a("v_add_f32 v%d, %s, v%d" % (s2, f32(1e-5), s2))
    bf16r(s2, s2)
    a("v_sqrt_f32 v%d, v%d" % (s2, s2))
    while fill:
        filler()
    return s1, s2

def ln_apply(f, e, pk, s1, s2):
    n = len(f)
    for k in range(n):
        a("v_sub_f32 v%d, v%d, v%d" % (e[k], f[k], s1))
    bf16r(s2, s2)
    a("v_rcp_f32 v%d, v%d" % (s2, s2))
    for k in range(n // 2):
        a("v_cvt_pk_bf16_f32 v%d, v%d, v%d" % (pk[k], e[2 * k], e[2 * k + 1]))
    for k in range(n // 2):
        a("v_lshlrev_b32 v%d, 16, v%d" % (e[2 * k], pk[k]))
        a("v_and_b32 v%d, 0xffff0000, v%d" % (e[2 * k + 1], pk[k]))
    for k in range(n):
        a("v_mul_f32 v%d, v%d, v%d" % (e[k], e[k], s2))

def layernorm(f, out, valid, T):
    e = [T + k for k in range(8)]
    pk = [T + 12 + k for k in range(4)]
    s1, s2 = ln_stats(f, valid, T, ["v_mov_b32 v%d, 0" % (out + i) for i in range(4)])
    ln_apply(f, e, pk, s1, s2)
    setexec(valid)
    for k in range(4):
        a("v_cvt_pk_bf16_f32 v%d, v%d, v%d" % (out + k, e[2 * k], e[2 * k + 1]))
    setexec(-1)

def quad_transpose_reduce(v, dst, T):
    k0, g0, k1, g1 = T, T + 1, T + 2, T + 3
    a("v_cndmask_b32 v%d, v%d, v%d, s[%d:%d]" % (g0, v[1], v[0], S_ODD, S_ODD + 1))
    a("v_cndmask_b32 v%d, v%d, v%d, s[%d:%d]" % (g1, v[3], v[2], S_ODD, S_ODD + 1))
    a("v_cndmask_b32 v%d, v%d, v%d, s[%d:%d]" % (k0, v[0], v[1], S_ODD, S_ODD + 1))
    a("v_cndmask_b32 v%d, v%d, v%d, s[%d:%d]" % (k1, v[2], v[3], S_ODD, S_ODD + 1))
    a("v_add_f32_dpp v%d, v%d, v%d quad_perm:[1,0,3,2]%s" % (k0, g0, k0, DPPM))
    a("v_add_f32_dpp v%d, v%d, v%d quad_perm:[1,0,3,2]%s" % (k1, g1, k1, DPPM))
    a("v_cndmask_b32 v%d, v%d, v%d, s[%d:%d]" % (g0, k1, k0, S_B1, S_B1 + 1))
    a("v_cndmask_b32 v%d, v%d, v%d, s[%d:%d]" % (dst, k0, k1, S_B1, S_B1 + 1))
    a("v_add_f32_dpp v%d, v%d, v%d quad_perm:[2,3,0,1]%s" % (dst, g0, dst, DPPM))

S_B2, S_B3 = S_B1, 4
def reduce16(v, dst):
    for r in range(4):
        a("v_add_f32_dpp v%d, v%d, v%d row_ror:8%s" % (v[r], v[r], v[r], DPPM))
    for r in range(4):
        a("v_add_f32_dpp v%d, v%d, v%d row_ror:4%s" % (v[r], v[r], v[r], DPPM))
    a("v_cndmask_b32 v%d, v%d, v%d, s[%d:%d]" % (v[0], v[0], v[1], S_M4, S_M4 + 1))
    a("v_cndmask_b32 v%d, v%d, v%d, s[%d:%d]" % (v[2], v[2], v[3], S_M4, S_M4 + 1))
    a("v_cndmask_b32 v%d, v%d, v%d, s[%d:%d]" % (dst, v[0], v[2], S_M8, S_M8 + 1))

def check12(n, X, oklab, G=None, T0=None, mask=0xfff, acc=(5, 6, 7)):
    if G is None:
        G = V_G
    for t in range(n):
        for r in range(4):
            a("v_xor_b32 v%d, v%d, v%d" % (X + 4 * t + r, G + 4 * t + r, T0 if (r == 0 and T0 is not None) else V_T + r))
    regs = [X + i for i in range(4 * n)]
    acc = list(acc)
    cur = regs[:]
    outs = []
    i = 0
    while len(cur) >= 3 and i < 3:
        a("v_or3_b32 v%d, v%d, v%d, v%d" % (acc[i], cur[0], cur[1], cur[2])); cur = cur[3:]; outs.append(acc[i]); i += 1
    i = 0
    while len(cur) >= 2:
        o = outs[i % len(outs)]
        a("v_or3_b32 v%d, v%d, v%d, v%d" % (o, o, cur[0], cur[1])); cur = cur[2:]; i += 1
    rest = outs + cur
    while len(rest) > 1:
        if len(rest) >= 3:
            a("v_or3_b32 v%d, v%d, v%d, v%d" % (acc[0], rest[0], rest[1], rest[2])); rest = [acc[0]] + rest[3:]
        else:
            a("v_or_b32 v%d, v%d, v%d" % (acc[0], rest[0], rest[1])); rest = [acc[0]]
    a("v_and_b32 v%d, 0x%x, v%d" % (acc[0], mask, rest[0]))
    a("v_cmp_ne_u32 vcc, 0, v%d" % acc[0])
    a("s_cbranch_vccz %s" % oklab)

V_I16, V_GRP, V_LANE = 1, 2, 3
V_M, V_T = 196, 200
V_TA, V_TB, V_T8, V_ONE = 204, 205, 206, 207
V_B1, V_X = 208, 209
V_GA = 213
V_PUB = 214
V_XA = 215
V_ACC = 216
V_G = 232
V_W1A, V_LW = 248, 249
NVGPR = 252
V_K, V_V, V_QF = 32, 64, 96
V_W = 32
V_W1F = 64
V_BB = 96
V_S1 = 112
V_S2 = 144

def tag12(dst, src):
    for r in range(4):
        if Cfg.rnd:
            a("v_add_u32 v%d, 0x800, v%d" % (dst + r, src + r))
            src_r = dst + r
        else:
            src_r = src + r
    for r in range(4):
        a("v_bfi_b32 v%d, s63, v%d, v%d" % (dst + r, V_T + r, (dst if Cfg.rnd else src) + r))

def get_xcc():
    if Cfg.fakex:
        a("s_and_b32 s99, s33, 15")
    else:
        a("s_getreg_b32 s99, hwreg(HW_REG_XCC_ID)")
        a("s_and_b32 s99, s99, 15")

def make_masks():
    a("v_and_b32 v10, 1, v%d" % V_I16)
    a("v_lshlrev_b32 v10, 4, v10")
    a("v_mov_b32 v11, 0xffff")
    a("v_lshlrev_b32 v11, v10, v11")
    a("v_bfe_u32 v10, v%d, 1, 2" % V_I16)
    for rho in range(4):
        a("v_cmp_eq_u32 vcc, %d, v10" % rho)
        a("v_cndmask_b32 v%d, 0, v11, vcc" % (V_M + rho))

def make_tags(full=True):
    a("s_waitcnt lgkmcnt(0)")
    for k in range(4):
        a("s_add_u32 s%d, s%d, 1" % (28 + k, 28 + k))
    if full:
        for k in range(4):
            a("s_and_b32 s63, s%d, 0xfff" % (28 + k))
            a("v_mov_b32 v%d, s63" % (V_T + k))
    a("v_mov_b32 v%d, s31" % V_TB)
    a("s_and_b32 s63, s30, 0xff")
    a("v_mov_b32 v%d, s63" % V_T8)

if Cfg.stamps:
    for i in range(16):
        a("s_mov_b64 s[%d:%d], 0" % (64 + 2 * i, 65 + 2 * i))
stamp(0)
a("s_load_dwordx16 s[4:19], s[0:1], 0")
a("s_load_dwordx8 s[20:27], s[0:1], 64")
a("s_cmp_ge_u32 s2, 256")
a("s_cbranch_scc1 L_exit")
a("v_lshrrev_b32 v4, 6, v0")
a("v_and_b32 v%d, 63, v0" % V_LANE)
a("v_readfirstlane_b32 s34, v4")
a("v_and_b32 v%d, 15, v0" % V_I16)
a("v_bfe_u32 v%d, v0, 4, 2" % V_GRP)
a("s_and_b32 s32, s2, 7")
a("s_lshr_b32 s33, s2, 3")
a("s_and_b32 s35, s34, 3")
a("s_cmp_ge_u32 s34, 4")
a("s_cbranch_scc1 L_tail")

a("s_lshl_b32 s48, s32, 22")
a("s_lshl_b32 s49, s33, 15")
a("s_add_u32 s48, s48, s49")
a("s_lshl_b32 s49, s34, 13")
a("s_add_u32 s48, s48, s49")
a("s_add_u32 s48, s48, %d" % (6144 * 512))
if Cfg.kdma:
    a("v_lshrrev_b32 v4, 2, v%d" % V_LANE)
    a("v_lshlrev_b32 v4, 9, v4")
    a("v_and_b32 v5, 3, v%d" % V_LANE)
    a("v_lshl_add_u32 v4, v5, 4, v4")
    a("s_add_u32 s49, s49, %d" % L_K)
else:
    a("v_lshlrev_b32 v4, 9, v%d" % V_I16)
    a("v_lshl_add_u32 v4, v%d, 4, v4" % V_GRP)
a("v_lshlrev_b32 v5, 11, v%d" % V_GRP)
a("v_lshl_add_u32 v5, v%d, 4, v5" % V_I16)
a("s_mov_b32 s42, 33554432")
a("s_mov_b32 s43, 0x20000")
a("s_mov_b32 s46, 33554432")
a("s_mov_b32 s47, 0x20000")
a("s_waitcnt lgkmcnt(0)")
a("s_mov_b32 s40, s6")
a("s_and_b32 s41, s7, 0xffff")
a("s_mov_b32 s44, s8")
a("s_and_b32 s45, s9, 0xffff")
stamp(11)
nissued = [0]
def paced(text):
    if Cfg.depth and nissued[0] >= Cfg.depth and nissued[0] < Cfg.n1:
        a("s_waitcnt vmcnt(%d)" % (Cfg.depth - 1))
    a(text)
    nissued[0] += 1
loads = []
for s in range(8):
    if Cfg.kdma:
        loads.append(["s_add_u32 m0, s49, %d" % (960 * s), "buffer_load_dwordx4 v4, s[40:43], s48 offen offset:%d%s lds" % (64 * s, NT)])
    else:
        loads.append("buffer_load_dwordx4 v[%d:%d], v4, s[40:43], s48 offen offset:%d%s" % (V_K + 4 * s, V_K + 4 * s + 3, 64 * s, NT))
def emit(t):
    for x in ([t] if isinstance(t, str) else t):
        a(x)
for r in range(4):
    for h in range(2):
        n = 2 * r + h
        loads.append("buffer_load_dwordx4 v[%d:%d], v5, s[44:47], s48 offen offset:%d%s" % (V_V + 4 * n, V_V + 4 * n + 3, 512 * r + 256 * h, NT))
nfirst = 8 + Cfg.nearly
for i, t in enumerate(loads[:Cfg.k0]):
    if i == Cfg.kpre and Cfg.b0:
        a("s_barrier")
    emit(t)
stamp(12)
a("s_load_dwordx4 s[28:31], s[26:27], %d" % EPOCH)
srd(36, 26, WS_SIZE)
make_masks()
a("v_lshrrev_b32 v7, 3, v%d" % V_I16)
a("v_lshlrev_b32 v7, 9, v7")
a("v_lshl_add_u32 v7, v%d, 4, v7" % V_GRP)
a("s_lshl_b32 s63, s34, 11")
a("v_lshl_add_u32 v%d, v%d, 4, s63" % (V_LW, V_LANE))
a("s_lshl_b32 s63, s34, 9")
a("v_lshl_add_u32 v23, v%d, 3, s63" % V_LANE)
a("s_lshl_b32 s63, s34, 10")
a("v_lshl_add_u32 v21, v%d, 4, s63" % V_LANE)
a("v_lshlrev_b32 v22, 3, v%d" % V_LANE)
a("s_lshl_b32 s55, s32, 5")
a("s_add_u32 s55, s55, s33")
a("s_lshl_b32 s55, s55, 11")
a("s_add_u32 s50, s55, %d" % E2)
a("s_add_u32 s51, s55, %d" % (E2 + BOFF))
make_tags(True)
a("v_mov_b32 v31, v%d" % V_TB)
a("v_mov_b32 v6, 0")
a("v_mov_b32 v29, 1")
a("ds_write_b32 v6, v6 offset:%d" % L_CNT)
a("ds_write_b32 v6, v6 offset:%d" % (L_CNT + 4))
a("s_mov_b32 s%d, %d" % (S_TO, Cfg.timeout))
get_xcc()
NPF = [0]
def wo_prefetch():
    pass
a("s_lshl_b32 s52, s32, 13")
a("s_add_u32 s52, s52, %d" % E1)
a("v_and_b32 v8, 31, v%d" % V_LANE)
a("s_lshl_b32 s63, s34, 5")
a("v_add_u32 v8, s63, v8")
a("v_lshrrev_b32 v9, 5, v%d" % V_LANE)
a("v_lshlrev_b32 v9, 12, v9")
a("v_lshl_add_u32 v24, v8, 4, v9")
a("v_and_b32 v9, 7, v8")
a("v_sub_u32 v8, v8, v9")
a("v_lshl_add_u32 v8, v8, 2, v9")
a("v_lshlrev_b32 v26, 1, v8")
a("v_lshlrev_b32 v25, 6, v%d" % V_I16)
a("v_lshl_add_u32 v25, v%d, 4, v25" % V_GRP)
a("v_add_u32 v25, s49, v25")
sel_init(32)
GS = [128, 136]
XC = 12
V_E0 = 27
E1M = 0x3ff
def e1_issue(k):
    a("s_add_u32 s53, s52, s%d" % S_SEL)
    a("s_cmp_eq_u32 s%d, 0" % S_SEL)
    a("s_cselect_b32 s98, s99, 0")
    a("s_cselect_b32 s0, 0, 1")
    a("v_xor_b32 v%d, s98, v%d" % (V_E0, V_T))
    for u in range(2):
        a("buffer_load_dwordx4 v[%d:%d], v24, s[36:39], s53 offen offset:%d sc1" % (GS[k] + 4 * u, GS[k] + 4 * u + 3, 2048 * u))
def e1_check(k):
    check12(2, XC, "L_e1ok", GS[k], V_E0, E1M, acc=(144, 145, 146))
a("s_waitcnt lgkmcnt(0)")
if Cfg.sp:
    a("s_setprio 3")
a("s_barrier")
order = [("L", i) for i in range(Cfg.k0)]
rounds = [p for p in (Cfg.p1, Cfg.p2) if p]
for i in range(Cfg.k0, 17):
    for k, p in enumerate(rounds):
        if p == i:
            e1_issue(k)
            if Cfg.sp:
                a("s_setprio %d" % (len(rounds) - 1 - k))
            order += [("P", k), ("P", k)]
    if i < 16:
        emit(loads[i])
        order.append(("L", i))
stamp(13)
def younger(item):
    last = max(i for i, x in enumerate(order) if x == item)
    return len(order) - 1 - last
a("s_waitcnt vmcnt(%d)" % younger(("L", 7)))
for s in range(8):
    a("ds_read_b128 v[%d:%d], v25 offset:%d" % (V_K + 4 * s, V_K + 4 * s + 3, 1024 * s))
for k in range(len(rounds)):
    a("s_waitcnt vmcnt(%d)" % younger(("P", k)))
    e1_check(k)
a.label("L_e1poll")
sel_step(True)
e1_issue(0)
a("s_waitcnt vmcnt(0)")
e1_check(0)
a("s_branch L_e1poll")
a.label("L_e1ok")
stamp(7)
for r in range(4):
    a("v_add_f32 v%d, v%d, v%d" % (XC + r, XC + r, XC + 4 + r))
for r in range(4):
    a("v_mov_b32 v%d, v%d" % (XC + 4 + r, XC + r))
for r in range(4):
    a("v_permlane32_swap_b32 v%d, v%d" % (XC + r, XC + 4 + r))
for r in range(4):
    a("v_add_f32 v%d, v%d, v%d" % (XC + r, XC + r, XC + 4 + r))
a("v_cvt_pk_bf16_f32 v8, v%d, v%d" % (XC, XC + 1))
a("v_cvt_pk_bf16_f32 v9, v%d, v%d" % (XC + 2, XC + 3))
a("s_mov_b32 exec_hi, 0")
a("ds_write_b16 v26, v8 offset:%d" % (L_Q))
a("ds_write_b16_d16_hi v26, v8 offset:%d" % (L_Q + 16))
a("ds_write_b16 v26, v9 offset:%d" % (L_Q + 32))
a("ds_write_b16_d16_hi v26, v9 offset:%d" % (L_Q + 48))
setexec(-1)
a("s_cmp_eq_u32 s0, 0")
a("s_cbranch_scc1 L_fastq")
a("ds_write_b32 v6, v29 offset:%d" % (L_CNT + 4))
a.label("L_fastq")
stamp(1)
a("s_waitcnt lgkmcnt(0)")
if Cfg.prio:
    a("s_setprio 2")
a("s_barrier")
stamp(2)
for s in range(8):
    a("ds_read_b128 v[%d:%d], v7 offset:%d" % (V_QF + 4 * s, V_QF + 4 * s + 3, L_Q + 64 * s))
a("s_mov_b32 s63, %s" % f32(0.0625 * LOG2E))
S = V_ACC
for s in range(8):
    a("s_waitcnt lgkmcnt(%d)" % (0 if Cfg.stamps else 7 - s))
    a("v_mfma_f32_16x16x32_bf16 v[%d:%d], v[%d:%d], v[%d:%d], %s" % (S, S + 3, V_K + 4 * s, V_K + 4 * s + 3, V_QF + 4 * s, V_QF + 4 * s + 3, "0" if s == 0 else "v[%d:%d]" % (S, S + 3)))
a("v_cvt_pk_bf16_f32 v8, v%d, v%d" % (S, S + 1))
a("v_cvt_pk_bf16_f32 v9, v%d, v%d" % (S + 2, S + 3))
a("v_lshlrev_b32 v10, 16, v8")
a("v_and_b32 v11, 0xffff0000, v8")
a("v_lshlrev_b32 v12, 16, v9")
a("v_and_b32 v13, 0xffff0000, v9")
a("v_max3_f32 v14, v10, v11, v12")
a("v_max_f32 v14, v14, v13")
bfly("v_max_f32", 14, 15, 16)
bfly("v_max_f32", 14, 15, 32)
a("v_mul_f32 v14, s63, v14")
for r in range(4):
    a("v_fma_f32 v%d, v%d, s63, -v14" % (10 + r, 10 + r))
for r in range(4):
    a("v_exp_f32 v%d, v%d" % (10 + r, 10 + r))
for r in range(4):
    a("v_cvt_pk_bf16_f32 v%d, v%d, v%d" % (16 + r, 10 + r, 10 + r))
O = V_ACC + 4
BB = V_QF
def bbuild(r):
    for rho in range(4):
        a("v_and_b32 v%d, v%d, v%d" % (BB + 4 * r + rho, 16 + r, V_M + rho))
def pv(r):
    a("s_waitcnt vmcnt(%d)" % younger(("L", 8 + 2 * r + 1)))
    for h in range(2):
        n = 2 * r + h
        a("v_mfma_f32_16x16x32_bf16 v[%d:%d], v[%d:%d], v[%d:%d], %s" % (O + 4 * h, O + 4 * h + 3, V_V + 4 * n, V_V + 4 * n + 3, BB + 4 * r, BB + 4 * r + 3, "0" if r == 0 else "v[%d:%d]" % (O + 4 * h, O + 4 * h + 3)))
    if r == Cfg.pfat:
        wo_prefetch()
bbuild(0)
bbuild(1)
stamp(5)
pv(0)
bbuild(2)
a("v_add_f32 v15, v10, v11")
a("v_add_f32 v20, v12, v13")
pv(1)
bbuild(3)
a("v_add_f32 v15, v15, v20")
pv(2)
bfly("v_add_f32", 15, 20, 16)
pv(3)
stamp(6)
bfly("v_add_f32", 15, 20, 32)
a("ds_write_b64 v23, v[14:15] offset:%d" % L_ML)
a("ds_write_b128 v%d, v[%d:%d] offset:%d" % (V_LW, O, O + 3, L_O))
a("ds_write_b128 v%d, v[%d:%d] offset:%d" % (V_LW, O + 4, O + 7, L_O + 1024))
setexec(1)
a("ds_add_u32 v6, v29 offset:%d" % L_CNT)
setexec(-1)
a("s_cmp_ge_u32 s34, 2")
a("s_cbranch_scc1 L_att_exit")
a.label("L_cnt")
a("ds_read_b32 v8, v6 offset:%d" % L_CNT)
a("s_sub_u32 s%d, s%d, 1" % (S_TO, S_TO))
a("s_cbranch_scc1 L_end")
a("s_waitcnt lgkmcnt(0)")
a("v_cmp_gt_u32 vcc, 4, v8")
a("s_cbranch_vccnz L_cnt")
stamp(3)
for w in range(4):
    a("ds_read_b64 v[%d:%d], v22 offset:%d" % (10 + 2 * w, 11 + 2 * w, L_ML + 512 * w))
for w in range(4):
    a("ds_read_b128 v[%d:%d], v21 offset:%d" % (V_G + 4 * w, V_G + 4 * w + 3, L_O + 2048 * w))
a("s_movk_i32 s63, 0xff")
a("s_waitcnt lgkmcnt(4)" if not Cfg.stamps else "s_waitcnt lgkmcnt(0)")
a("v_max3_f32 v18, v10, v12, v14")
a("v_max_f32 v18, v18, v16")
for w in range(4):
    a("v_sub_f32 v%d, v%d, v18" % (10 + 2 * w, 10 + 2 * w))
for w in range(4):
    a("v_exp_f32 v%d, v%d" % (10 + 2 * w, 10 + 2 * w))
a("v_mul_f32 v19, v10, v11")
for w in range(1, 4):
    a("v_fmac_f32 v19, v%d, v%d" % (10 + 2 * w, 11 + 2 * w))
a("v_rcp_f32 v20, v19")
a("v_log_f32 v9, v19")
a("s_waitcnt lgkmcnt(0)")
for r in range(4):
    a("v_mul_f32 v%d, v10, v%d" % (24 + r, V_G + r))
for w in range(1, 4):
    for r in range(4):
        a("v_fmac_f32 v%d, v%d, v%d" % (24 + r, 10 + 2 * w, V_G + 4 * w + r))
a("v_add_f32 v9, v9, v18")
for r in range(4):
    a("v_mul_f32 v%d, v%d, v20" % (24 + r, 24 + r))
a("v_bfi_b32 v30, s63, v%d, v9" % V_T8)
a("v_cvt_pk_bf16_f32 v28, v24, v25")
a("v_cvt_pk_bf16_f32 v29, v26, v27")
if not Cfg.noA:
    a("buffer_store_dwordx4 v[28:31], v21, s[36:39], s50 offen")
def bdefer():
    if Cfg.bd == 1:
        a("s_waitcnt vmcnt(0)")
    elif Cfg.bd > 1:
        a("s_sleep %d" % Cfg.bd)
a("v_mov_b32 v8, 1")
setexec(1)
a("ds_add_u32 v6, v8 offset:%d" % L_CNT)
setexec(-1)
stamp(4)
def skip_if_local(tmp, lab):
    if Cfg.xcc:
        a("v_mov_b32 v%d, 0" % tmp)
        a("ds_read_b32 v%d, v%d offset:%d" % (tmp, tmp, L_CNT + 4))
        a("s_waitcnt lgkmcnt(0)")
        a("v_cmp_eq_u32 vcc, 0, v%d" % tmp)
        a("s_cbranch_vccnz %s" % lab)
bdefer()
skip_if_local(8, "L_end")
if not Cfg.noB:
    a("buffer_store_dwordx4 v[28:31], v21, s[36:39], s51 offen sc1")
a("s_branch L_end")

a.label("L_att_exit")
if Cfg.fpf:
    a("s_cmp_lt_u32 s33, 16")
    a("s_cbranch_scc1 L_end")
    a("s_sub_u32 s52, s33, 16")
    a("s_lshl_b32 s52, s52, 1")
    a("s_add_u32 s52, s52, s34")
    a("s_sub_u32 s52, s52, 2")
    a("s_mul_i32 s54, s32, %d" % (224 * 896))
    a("s_mul_i32 s63, s52, %d" % (49 * 128))
    a("s_add_u32 s54, s54, s63")
    a("s_mul_i32 s49, s32, 448")
    a("s_mul_i32 s63, s52, %d" % (14 * 3584))
    a("s_add_u32 s49, s49, s63")
    a("v_lshrrev_b32 v25, 2, v%d" % V_LANE)
    a("v_mul_u32_u24 v25, 3584, v25")
    a("v_and_b32 v26, 3, v%d" % V_LANE)
    a("v_mul_u32_u24 v26, 148, v26")
    a("v_add_u32 v25, v25, v26")
    a("s_mov_b32 s18, %d" % (448 * 3584))
    a("s_mov_b32 s19, 0x20000")
    a("s_and_b32 s17, s17, 0xffff")
    a("s_mov_b32 s22, %d" % (1792 * 896))
    a("s_mov_b32 s23, 0x20000")
    a("s_and_b32 s21, s21, 0xffff")
    a("s_mov_b32 exec_hi, 0x00ffffff")
    a("buffer_load_dword v250, v25, s[16:19], s49 offen")
    a("s_mov_b32 exec_hi, 0x0001ffff")
    a("buffer_load_dword v250, v24, s[20:23], s54 offen")
a("s_branch L_end")

a.label("L_tail")
a.flush()
a("s_cmp_lg_u32 s34, 4")
a("s_cbranch_scc1 L_tail_common")
a("v_lshrrev_b32 v4, 3, v%d" % V_I16)
a("v_mul_u32_u24 v4, 56, v4")
a("v_mul_u32_u24 v5, 14, v%d" % V_GRP)
a("v_add_u32 v4, v4, v5")
a("v_lshlrev_b32 v5, 13, v4")
a("v_and_b32 v6, 7, v%d" % V_I16)
a("v_lshl_add_u32 v5, v6, 4, v5")
a("v_lshlrev_b32 v4, 1, v4")
a("v_lshlrev_b32 v6, 6, v%d" % V_I16)
a("v_lshl_add_u32 v6, v%d, 4, v6" % V_GRP)
a("s_lshr_b32 s50, s33, 3")
a("s_mul_i32 s52, s50, %d" % (112 * 8192))
a("s_lshl_b32 s53, s32, 10")
a("s_add_u32 s52, s52, s53")
a("s_and_b32 s53, s33, 7")
a("s_lshl_b32 s53, s53, 7")
a("s_add_u32 s52, s52, s53")
a("s_mul_i32 s51, s50, 224")
a("s_mov_b32 s42, %d" % (448 * 8192))
a("s_mov_b32 s43, 0x20000")
a("s_mov_b32 s46, 896")
a("s_mov_b32 s47, 0x20000")
a("s_setprio 3")
a("s_waitcnt lgkmcnt(0)")
a("s_mov_b32 s44, s4")
a("s_and_b32 s45, s5, 0xffff")
a("s_mov_b32 s40, s10")
a("s_and_b32 s41, s11, 0xffff")
stamp(11)
WQ, BQ, XR14 = 32, 88, 144
a("buffer_load_dwordx4 v[%d:%d], v6, s[44:47], 0 offen" % (V_G, V_G + 3))
a("buffer_load_dwordx4 v[%d:%d], v4, s[44:47], s51 offen" % (XR14, XR14 + 3))
a("buffer_load_dwordx3 v[%d:%d], v4, s[44:47], s51 offen offset:16" % (XR14 + 4, XR14 + 6))
for t in range(14):
    a("buffer_load_dwordx4 v[%d:%d], v5, s[40:43], s52 offen%s" % (WQ + 4 * t, WQ + 4 * t + 3, NTQ))
    if t < 13:
        a("s_add_u32 s52, s52, 8192")
stamp(12)
a.label("L_tail_common")
a("s_waitcnt lgkmcnt(0)")
if Cfg.tlb == 2:
    a("s_cmp_lg_u32 s34, 6")
    a("s_cbranch_scc1 L_notlb")
    a("s_mul_i32 s48, s32, %d" % (512 * 896))
    a("s_add_u32 s49, s48, %d" % (511 * 896))
    a("s_mul_i32 s50, s32, %d" % (224 * 896))
    a("s_mov_b32 s51, %d" % (447 * 3584))
    a("s_mov_b32 s54, %d" % (E4 + 2044))
    a("s_lshl_b32 s55, s32, 22")
    a("s_add_u32 s55, s55, %d" % (6144 * 512))
    a("s_load_dword s40, s[8:9], s55")
    a("s_load_dword s41, s[12:13], s48")
    a("s_load_dword s42, s[12:13], s49")
    a("s_load_dword s43, s[20:21], s50")
    a("s_load_dword s44, s[16:17], 0")
    a("s_load_dword s45, s[16:17], s51")
    a("s_load_dword s46, s[18:19], 0")
    a("s_load_dword s47, s[22:23], 0")
    a("s_load_dword s98, s[26:27], s54")
    a.label("L_notlb")
if Cfg.b0:
    a("s_barrier")
a("s_load_dwordx4 s[28:31], s[26:27], %d" % EPOCH)
srd(36, 26, WS_SIZE)
a("s_mov_b32 s%d, %d" % (S_TO, Cfg.timeout))
get_xcc()
setmask(S_ODD, 0xAAAAAAAAAAAAAAAA)
setmask(S_M4, 0xF0F0F0F0F0F0F0F0)
setmask(S_M8, 0xFF00FF00FF00FF00)
setmask(S_HI, 0xFFFFFFFF00000000)
a("v_mov_b32 v%d, 1.0" % V_ONE)
a("v_lshrrev_b32 v8, 2, v%d" % V_LANE)
a("v_lshlrev_b32 v8, 11, v8")
a("v_and_b32 v9, 3, v%d" % V_LANE)
a("v_lshl_add_u32 v%d, v9, 4, v8" % V_GA)
make_masks()
a("v_lshl_add_u32 v8, v%d, 3, v%d" % (V_GRP, V_I16))
a("v_lshlrev_b32 v%d, 4, v8" % V_PUB)
a("s_lshl_b32 s52, s32, 13")
a("s_add_u32 s52, s52, %d" % E1)
a("s_lshl_b32 s53, s33, 8")
a("s_add_u32 s53, s53, s52")
a("s_cmp_lg_u32 s34, 4")
a("s_cbranch_scc1 L_notq")
a("s_add_u32 s49, s53, %d" % BOFF)
a("s_waitcnt vmcnt(14)")
stamp(1)
XF, XV, XE, XP = 152, 160, 176, 216
for k in range(4):
    a("v_lshlrev_b32 v%d, 16, v%d" % (XF + 2 * k, V_G + k))
    a("v_and_b32 v%d, 0xffff0000, v%d" % (XF + 2 * k + 1, V_G + k))
fill = []
for k in range(7):
    fill.append("v_lshlrev_b32 v%d, 16, v%d" % (XV + 2 * k, XR14 + k))
    fill.append("v_and_b32 v%d, 0xffff0000, v%d" % (XV + 2 * k + 1, XR14 + k))
s1, s2 = ln_stats([XF + k for k in range(8)], 0x3FFF3FFF3FFF3FFF, 8, fill)
ln_apply([XV + k for k in range(14)], [XE + k for k in range(14)], [XP + k for k in range(7)], s1, s2)
for t in range(14):
    a("v_cvt_pk_bf16_f32 v%d, v%d, v%d" % (XE + t, XE + t, XE + t))
make_tags()
stamp(6)
QA = V_ACC
for t in range(15):
    if t < 14:
        for rho in range(4):
            a("v_and_b32 v%d, v%d, v%d" % (BQ + 4 * t + rho, XE + t, V_M + rho))
    if t >= 1:
        u = t - 1
        a("s_waitcnt vmcnt(%d)" % (13 - u))
        a("v_mfma_f32_16x16x32_bf16 v[%d:%d], v[%d:%d], v[%d:%d], %s" % (QA, QA + 3, WQ + 4 * u, WQ + 4 * u + 3, BQ + 4 * u, BQ + 4 * u + 3, "0" if u == 0 else "v[%d:%d]" % (QA, QA + 3)))
stamp(2)
a("s_movk_i32 s63, 0xfff")
for r in range(4):
    a("v_mov_b32_dpp v%d, v%d row_ror:8%s" % (8 + r, QA + r, DPPM))
for r in range(4):
    a("v_mov_b32 v%d, v%d" % (12 + r, 8 + r))
for r in range(4):
    a("v_permlane32_swap_b32 v%d, v%d" % (8 + r, 12 + r))
for r in range(4):
    a("v_add_f32 v%d, v%d, v%d" % (12 + r, 12 + r, QA + r))
for r in range(4):
    a("v_add_u32 v%d, 0x%x, v%d" % (12 + r, (E1M + 1) // 2, 12 + r))
for r in range(4):
    a("v_and_b32 v%d, 0x%x, v%d" % (12 + r, 0xffffffff ^ E1M, 12 + r))
for r in range(4):
    a("v_xor_b32 v%d, v%d, v%d" % (28 + r, 12 + r, V_T + r))
setexec(0x0000000000FF00FF)
a("v_xor_b32 v16, s99, v28")
for r in range(1, 4):
    a("v_mov_b32 v%d, v%d" % (16 + r, 28 + r))
if not Cfg.noA:
    a("buffer_store_dwordx4 v[16:19], v%d, s[36:39], s53 offen" % V_PUB)
a("buffer_store_dwordx4 v[28:31], v%d, s[36:39], s49 offen sc1" % V_PUB)
setexec(-1)
a("s_setprio 0")
stamp(3)
a("s_branch L_e1")
a.label("L_notq")
a.flush()
make_tags()
if Cfg.pretouch:
    a("s_cmp_lg_u32 s34, 5")
    a("s_cbranch_scc1 L_nopre")
    a("s_lshl_b32 s55, s32, 5")
    a("s_add_u32 s55, s55, s33")
    a("s_lshl_b32 s55, s55, 11")
    a("v_lshlrev_b32 v8, 7, v%d" % V_I16)
    a("s_add_u32 s63, s55, %d" % E2)
    a("v_add_u32 v9, s63, v8")
    a("s_add_u32 s63, s55, %d" % E3A)
    a("v_add_u32 v10, s63, v8")
    a("v_and_b32 v8, 128, v8")
    a("v_add_u32 v8, s53, v8")
    a("v_cmp_eq_u32 vcc, 1, v%d" % V_GRP)
    a("v_cndmask_b32 v9, v9, v10, vcc")
    a("v_cndmask_b32 v9, v9, v8, s[%d:%d]" % (S_HI, S_HI + 1))
    a("buffer_load_dword v250, v9, s[36:39], 0 offen sc1")
    a.label("L_nopre")
if Cfg.tlb == 1:
    a("s_cmp_lg_u32 s34, 6")
    a("s_cbranch_scc1 L_notlb")
    a("s_mul_i32 s48, s32, %d" % (512 * 896))
    a("s_add_u32 s49, s48, %d" % (511 * 896))
    a("s_mul_i32 s50, s32, %d" % (224 * 896))
    a("s_mov_b32 s51, %d" % (447 * 3584))
    a("s_mov_b32 s54, %d" % E4)
    a("v_mov_b32 v8, 0")
    setexec(1)
    srd(40, 12, 4096 * 896)
    a("buffer_load_dword v250, v8, s[40:43], s48 offen")
    a("buffer_load_dword v250, v8, s[40:43], s49 offen")
    srd(40, 20, 1792 * 896)
    a("buffer_load_dword v250, v8, s[40:43], s50 offen")
    srd(40, 16, 448 * 3584)
    a("buffer_load_dword v250, v8, s[40:43], 0 offen")
    a("buffer_load_dword v250, v8, s[40:43], s51 offen")
    srd(40, 18, 1792 * 2)
    a("buffer_load_dword v250, v8, s[40:43], 0 offen")
    srd(40, 22, 896)
    a("buffer_load_dword v250, v8, s[40:43], 0 offen")
    a("buffer_load_dword v250, v8, s[36:39], s54 offen offset:2044")
    setexec(-1)
    a.label("L_notlb")
if Cfg.cpf:
    a("s_cmp_lg_u32 s34, 7")
    a("s_cbranch_scc1 L_nocpf")
    a("s_getpc_b64 s[48:49]")
    a.label("L_pc")
    a("s_sub_u32 s48, s48, L_pc-%s_kernel" % NAME)
    a("s_subb_u32 s49, s49, 0")
    a("v_lshlrev_b32 v8, 7, v%d" % V_LANE)
    a("v_min_u32 v9, L_exit-%s_kernel-8192, v8" % NAME)
    a("global_load_dword v250, v8, s[48:49]")
    a("v_add_u32 v9, 8192, v9")
    a("global_load_dword v250, v9, s[48:49]")
    a.label("L_nocpf")
a.label("L_e1")
a("s_barrier")
a("s_cmp_lt_u32 s33, 30")
a("s_cbranch_scc1 L_roles")
a("s_barrier")
a("s_branch L_end")
a.label("L_roles")
a("s_cmp_ge_u32 s33, 23")
a("s_cbranch_scc1 L_R")
a("s_cmp_ge_u32 s33, 16")
a("s_cbranch_scc1 L_F")

def poll(name, issue, nload, check, dual, sets=1, shadow=None, D=None):
    D = D or Cfg.pd
    ok = name + "_ok"
    for r in range(D):
        issue(r % sets)
        if r < D - 1 and Cfg.pds:
            a("s_sleep %d" % Cfg.pds)
    if shadow:
        shadow()
    a.label(name)
    n = sets if sets > 1 else 1
    for k in range(n):
        a("s_waitcnt vmcnt(%d)" % (nload * (D - 1)))
        check(k, ok)
        sel_step(True if dual else None)
        if not dual and Cfg.xls:
            a("s_sleep %d" % Cfg.xls)
        issue(k)
    a("s_branch %s" % name)
    a.label(ok)

def wait_cnt(n):
    lab = a.newlabel("L_wc")
    a("v_mov_b32 v5, 0")
    a.label(lab)
    a("ds_read_b32 v7, v5 offset:%d" % L_CNT)
    a("s_sub_u32 s%d, s%d, 1" % (S_TO, S_TO))
    a("s_cbranch_scc1 L_end")
    a("s_sleep 1")
    a("s_waitcnt lgkmcnt(0)")
    a("v_cmp_gt_u32 vcc, %d, v7" % n)
    a("s_cbranch_vccnz %s" % lab)

a("s_lshl_b32 s48, s33, 1")
a("s_lshr_b32 s49, s35, 1")
a("s_add_u32 s48, s48, s49")
a("s_lshl_b32 s50, s32, 9")
a("s_bfe_u32 s49, s48, 0x10001")
a("s_lshl_b32 s49, s49, 8")
a("s_add_u32 s50, s50, s49")
a("s_lshr_b32 s49, s48, 4")
a("s_lshl_b32 s49, s49, 7")
a("s_add_u32 s50, s50, s49")
a("s_bfe_u32 s49, s48, 0x20002")
a("s_lshl_b32 s49, s49, 5")
a("s_add_u32 s50, s50, s49")
a("s_and_b32 s49, s48, 1")
a("s_lshl_b32 s49, s49, 2")
a("s_add_u32 s50, s50, s49")
a("s_mul_i32 s50, s50, 896")
a("s_and_b32 s49, s35, 1")
a("s_lshl_b32 s49, s49, 9")
a("s_add_u32 s50, s50, s49")
a("v_mul_u32_u24 v6, 7168, v%d" % V_GRP)
a("v_lshl_add_u32 v6, v%d, 4, v6" % V_I16)
srd(40, 12, 4096 * 896)
a("s_lshl_b32 s54, s32, 16")
a("s_lshl_b32 s63, s48, 6")
a("s_add_u32 s54, s54, s63")
a("s_lshl_b32 s55, s32, 5")
a("s_add_u32 s55, s55, s48")
a("s_lshl_b32 s55, s55, 11")
a("s_lshl_b32 s49, s49, 1")
a("s_add_u32 s55, s55, s49")
a("s_add_u32 s52, s55, %d" % E3A)
a("s_add_u32 s53, s55, %d" % (E3A + BOFF))
a("v_cmp_lt_u32 s[6:7], 7, v%d" % V_I16)
a("v_add_u32 v4, %d, v%d" % (512 - 128, V_PUB))
a("v_cndmask_b32 v4, v%d, v4, s[6:7]" % V_PUB)
a("s_mov_b64 s[8:9], -1")
a("s_bitcmp1_b32 s35, 0")
a("s_cselect_b32 s9, 0x00ff00ff, s9")
a("s_mov_b32 s0, 0")
if Cfg.dry & 1:
    a("s_mov_b32 s0, 1")
    a("s_mov_b64 s[6:7], 0")
    a("s_branch L_e2poll_ok")
    a.label("L_odry")
    a("s_mov_b32 s0, 0")
a("s_barrier")
if Cfg.ocnt:
    wait_cnt(Cfg.ocnt)
if Cfg.os:
    a("s_sleep %d" % Cfg.os)
for q in range(4):
    a("buffer_load_dwordx4 v[%d:%d], v6, s[40:43], s50 offen offset:%d%s" % (V_W + 4 * q, V_W + 4 * q + 3, 896 * q, NTL))
a("s_mov_b32 exec_lo, s9")
a("s_mov_b32 exec_hi, s9")
for q in range(4):
    a("buffer_load_dwordx4 v[%d:%d], v6, s[40:43], s50 offen offset:%d%s" % (V_W + 16 + 4 * q, V_W + 16 + 4 * q + 3, 896 * q + 256, NTL))
setexec(-1)
sel_init()
stamp(1)
E2S = [V_S1 + 8 * k for k in range(Cfg.pd)]
def e2_issue(k):
    a("s_add_u32 s48, s54, s%d" % S_SEL)
    a("s_add_u32 s49, s48, %d" % (E2 + 16 * 2048))
    a("s_add_u32 s48, s48, %d" % E2)
    a("buffer_load_dwordx4 v[%d:%d], v%d, s[36:39], s48 offen sc1" % (E2S[k], E2S[k] + 3, V_GA))
    a("buffer_load_dwordx4 v[%d:%d], v%d, s[36:39], s49 offen sc1" % (E2S[k] + 4, E2S[k] + 7, V_GA))
def e2_check(k, ok):
    G = E2S[k]
    a("v_xor_b32 v10, v%d, v%d" % (G + 2, V_T8))
    a("v_xor_b32 v11, v%d, v%d" % (G + 6, V_T8))
    a("v_xor_b32 v12, v%d, v%d" % (G + 3, V_TB))
    a("v_xor_b32 v13, v%d, v%d" % (G + 7, V_TB))
    a("v_or_b32 v14, v10, v11")
    a("v_and_b32 v14, 0xff, v14")
    a("v_or3_b32 v14, v14, v12, v13")
    a("v_cmp_ne_u32 vcc, 0, v14")
    for t in range(2):
        a("v_lshlrev_b32 v%d, 16, v%d" % (16 + 4 * t, G + 4 * t))
        a("v_and_b32 v%d, 0xffff0000, v%d" % (17 + 4 * t, G + 4 * t))
        a("v_lshlrev_b32 v%d, 16, v%d" % (18 + 4 * t, G + 4 * t + 1))
        a("v_and_b32 v%d, 0xffff0000, v%d" % (19 + 4 * t, G + 4 * t + 1))
    a("s_cbranch_vccz %s" % ok)
poll("L_e2poll", e2_issue, 2, e2_check, True, sets=Cfg.pd)
stamp(5)
a("v_max_f32 v14, v10, v11")
a("v_max_f32_dpp v14, v14, v14 row_ror:8%s" % DPPM)
a("v_max_f32_dpp v14, v14, v14 row_ror:4%s" % DPPM)
bfly("v_max_f32", 14, 15, 16)
bfly("v_max_f32", 14, 15, 32)
a("v_sub_f32 v10, v10, v14")
a("v_sub_f32 v11, v11, v14")
a("v_exp_f32 v10, v10")
a("v_exp_f32 v11, v11")
a("s_movk_i32 s63, 0xfff")
for r in range(4):
    a("v_mul_f32 v%d, v%d, v10" % (16 + r, 16 + r))
a("v_add_f32 v12, v10, v11")
for r in range(4):
    a("v_fmac_f32 v%d, v%d, v11" % (16 + r, 20 + r))
a("v_add_f32_dpp v12, v12, v12 row_ror:8%s" % DPPM)
a("v_add_f32_dpp v12, v12, v12 row_ror:4%s" % DPPM)
a("v_mfma_f32_16x16x4_f32 v[%d:%d], v12, v%d, 0" % (V_ACC + 4, V_ACC + 7, V_ONE))
reduce16([16, 17, 18, 19], 13)
a("v_mfma_f32_16x16x4_f32 v[%d:%d], v13, v%d, 0" % (V_ACC, V_ACC + 3, V_ONE))
a("v_rcp_f32 v12, v%d" % (V_ACC + 4))
for r in range(4):
    a("v_mul_f32 v%d, v%d, v12" % (16 + r, V_ACC + r))
for r in range(4):
    a("v_cvt_pk_bf16_f32 v%d, v%d, v%d" % (16 + r, 16 + r, 16 + r))
A2 = V_ACC + 8
BB = V_BB
def omf(qq):
    for b in range(2):
        a("v_mfma_f32_16x16x32_bf16 v[%d:%d], v[%d:%d], v[%d:%d], %s" % (A2 + 4 * b, A2 + 4 * b + 3, V_W + 16 * b + 4 * qq, V_W + 16 * b + 4 * qq + 3, BB + 4 * qq, BB + 4 * qq + 3, "0" if qq == 0 else "v[%d:%d]" % (A2 + 4 * b, A2 + 4 * b + 3)))
for q in range(4):
    for rho in range(4):
        a("v_and_b32 v%d, v%d, v%d" % (BB + 4 * q + rho, 16 + q, V_M + rho))
    if q >= 1:
        omf(q - 1)
omf(3)
for r in range(4):
    a("v_cndmask_b32 v%d, v%d, v%d, s[6:7]" % (24 + r, A2 + r, A2 + 4 + r))
tag12(28, 24)
if Cfg.dry & 1:
    a("s_cmp_eq_u32 s0, 1")
    a("s_cbranch_scc1 L_odry")
a("s_mov_b64 exec, s[8:9]")
if not Cfg.noA:
    a("buffer_store_dwordx4 v[28:31], v4, s[36:39], s52 offen")
stamp(6)
bdefer()
skip_if_local(8, "L_end")
if not Cfg.noB:
    a("buffer_store_dwordx4 v[28:31], v4, s[36:39], s53 offen sc1")
setexec(-1)
if Cfg.w2l:
    a("s_lshl_b32 s48, s33, 2")
    a("s_add_u32 s48, s48, s35")
    a("s_mul_i32 s48, s48, %d" % (25 * 128))
    a("s_mul_i32 s63, s32, %d" % (224 * 896))
    a("s_add_u32 s48, s48, s63")
    a("v_lshlrev_b32 v24, 7, v%d" % V_LANE)
    srd(40, 20, 1792 * 896)
    setexec(0x1ffffff)
    a("buffer_load_dword v250, v24, s[40:43], s48 offen")
a("s_branch L_end")

a.label("L_R")
a.flush()
a("s_sub_u32 s50, s33, 23")
a("s_lshl_b32 s52, s50, 2")
a("s_add_u32 s52, s52, s35")
a("s_lshl_b32 s54, s32, 16")
a("s_lshl_b32 s63, s52, 6")
a("s_add_u32 s54, s54, s63")
a("s_mul_i32 s53, s52, %d" % Cfg.ss)
a("s_add_u32 s53, s53, %d" % E3X)
a("s_lshl_b32 s51, s32, 12")
a("s_add_u32 s51, s51, s53")
a("s_lshl_b32 s55, s32, 11")
a("s_lshl_b32 s63, s52, 6")
a("s_add_u32 s55, s55, s63")
a("s_add_u32 s55, s55, %d" % E3L)
a("v_lshlrev_b32 v4, 4, v%d" % V_GRP)
a("s_lshr_b32 s63, s52, 1")
a("s_lshl_b32 s63, s63, 6")
a("s_and_b32 s48, s52, 1")
a("s_lshl_b32 s48, s48, 3")
a("s_add_u32 s63, s63, s48")
a("v_lshl_add_u32 v%d, v%d, 4, s63" % (V_XA, V_GRP))
srd(44, 4, 896)
a("buffer_load_dwordx2 v[%d:%d], v%d, s[44:47], 0 offen" % (V_X + 1, V_X + 2, V_XA))
a("v_and_b32 v8, 7, v%d" % V_I16)
a("v_lshlrev_b32 v8, 12, v8")
a("v_lshl_add_u32 v%d, v%d, 4, v8" % (V_LW, V_GRP))
if Cfg.rpf:
    a("s_mul_i32 s48, s32, %d" % (224 * 896))
    a("s_mul_i32 s63, s52, %d" % (56 * 128))
    a("s_add_u32 s48, s48, s63")
    a("s_mul_i32 s49, s32, 448")
    a("s_mul_i32 s63, s52, %d" % (16 * 3584))
    a("s_add_u32 s49, s49, s63")
    a("v_lshrrev_b32 v25, 2, v%d" % V_LANE)
    a("v_mul_u32_u24 v25, 3584, v25")
    a("v_and_b32 v26, 3, v%d" % V_LANE)
    a("v_mul_u32_u24 v26, 148, v26")
    a("v_add_u32 v25, v25, v26")
    a("v_lshlrev_b32 v24, 7, v%d" % V_LANE)
    srd(40, 16, 448 * 3584)
    srd(8, 20, 1792 * 896)
a("s_barrier")
wait_cnt(6)
if Cfg.rpf:
    a("buffer_load_dword v250, v25, s[40:43], s49 offen")
    a("s_mov_b32 exec_hi, 0x00ffffff")
    a("buffer_load_dword v250, v24, s[8:11], s48 offen")
    setexec(-1)
sel_init()
if Cfg.rs:
    a("s_sleep %d" % Cfg.rs)
def e3a_issue(k):
    a("s_add_u32 s48, s54, s%d" % S_SEL)
    a("s_add_u32 s49, s48, %d" % (E3A + 16 * 2048))
    a("s_add_u32 s48, s48, %d" % E3A)
    a("buffer_load_dwordx4 v[%d:%d], v%d, s[36:39], s48 offen sc1" % (V_S2, V_S2 + 3, V_GA))
    a("buffer_load_dwordx4 v[%d:%d], v%d, s[36:39], s49 offen sc1" % (V_S2 + 4, V_S2 + 7, V_GA))
poll("L_e3apoll", e3a_issue, 2, lambda k, ok: check12(2, 12, ok, V_S2), True)
stamp(7)
for r in range(4):
    a("v_add_f32 v%d, v%d, v%d" % (12 + r, 12 + r, 16 + r))
reduce16([12, 13, 14, 15], 9)
a("v_mfma_f32_16x16x4_f32 v[%d:%d], v9, v%d, 0" % (V_ACC, V_ACC + 3, V_ONE))
a("s_movk_i32 s63, 0xfff")
setexec(0x0001000100010001)
tag12(28, V_ACC)
a("buffer_store_dwordx4 v[28:31], v4, s[36:39], s51 offen sc1")
if Cfg.lh:
    a("buffer_store_dwordx4 v[28:31], v4, s[36:39], s55 offen")
setexec(-1)
stamp(8)
a("s_cmp_lg_u32 s50, s32")
a("s_cbranch_scc1 L_end")
a.label("L_hpoll")
a("s_sleep 2")
a("buffer_load_dwordx4 v[%d:%d], v%d, s[36:39], s53 offen sc1" % (V_G, V_G + 3, V_LW))
a("s_waitcnt vmcnt(0)")
check12(1, 12, "L_hok")
retry("L_hpoll", False)
a.label("L_hok")
stamp(9)
for pat in ("quad_perm:[1,0,3,2]", "quad_perm:[2,3,0,1]", "row_half_mirror"):
    for r in range(4):
        a("v_add_f32_dpp v%d, v%d, v%d %s%s" % (12 + r, 12 + r, 12 + r, pat, DPPM))
for r in range(4):
    a("v_mov_b32 v%d, v%d" % (V_ACC + r, 12 + r))
a("v_lshlrev_b32 v%d, 16, v%d" % (V_X, V_X + 1))
a("v_and_b32 v%d, 0xffff0000, v%d" % (V_X + 1, V_X + 1))
a("v_and_b32 v%d, 0xffff0000, v%d" % (V_X + 3, V_X + 2))
a("v_lshlrev_b32 v%d, 16, v%d" % (V_X + 2, V_X + 2))
def round_add_round(src, add):
    a("v_cvt_pk_bf16_f32 v10, v%d, v%d" % (src, src + 1))
    a("v_cvt_pk_bf16_f32 v11, v%d, v%d" % (src + 2, src + 3))
    a("v_lshlrev_b32 v12, 16, v10")
    a("v_and_b32 v13, 0xffff0000, v10")
    a("v_lshlrev_b32 v14, 16, v11")
    a("v_and_b32 v15, 0xffff0000, v11")
    for r in range(4):
        a("v_add_f32 v%d, v%d, v%d" % (12 + r, 12 + r, add + r))
    a("v_cvt_pk_bf16_f32 v10, v12, v13")
    a("v_cvt_pk_bf16_f32 v11, v14, v15")
round_add_round(V_ACC, V_X)
a("v_lshlrev_b32 v%d, 16, v10" % (V_X))
a("v_and_b32 v%d, 0xffff0000, v10" % (V_X + 1))
a("v_lshlrev_b32 v%d, 16, v11" % (V_X + 2))
a("v_and_b32 v%d, 0xffff0000, v11" % (V_X + 3))
a("s_lshl_b32 s48, s52, 6")
a("s_add_u32 s48, s48, %d" % E4)
for t in range(1, 4):
    a("s_add_u32 s%d, s48, %d" % (48 + t, t * 16 * 2048))
for r in range(4):
    a("v_mov_b32 v%d, v%d" % (V_G + 12 + r, V_T + r))
srd(44, 22, 896)
if Cfg.e4s:
    a("s_sleep %d" % Cfg.e4s)
XR = V_S1
def e4_issue(k):
    for t in range(4):
        if t == 3:
            a("s_mov_b32 exec_hi, 0")
        a("buffer_load_dwordx4 v[%d:%d], v%d, s[36:39], s%d offen sc1" % (V_G + 4 * t, V_G + 4 * t + 3, V_GA, 48 + t))
    setexec(-1)
poll("L_e4poll", e4_issue, 4, lambda k, ok: check12(4, XR, ok), False, D=Cfg.pd4)
stamp(10)
for r in range(4):
    a("v_add_f32 v%d, v%d, v%d" % (XR + r, XR + r, XR + 4 + r))
    a("v_add_f32 v%d, v%d, v%d" % (XR + 8 + r, XR + 8 + r, XR + 12 + r))
for r in range(4):
    a("v_add_f32 v%d, v%d, v%d" % (XR + r, XR + r, XR + 8 + r))
reduce16([XR, XR + 1, XR + 2, XR + 3], 9)
a("v_mfma_f32_16x16x4_f32 v[%d:%d], v9, v%d, 0" % (V_ACC, V_ACC + 3, V_ONE))
round_add_round(V_ACC, V_X)
setexec(0x0001000100010001)
a("buffer_store_dwordx2 v[10:11], v%d, s[44:47], 0 offen" % V_XA)
a("s_cmp_lg_u32 s52, 0")
a("s_cbranch_scc1 L_noep")
setexec(1)
a("v_mov_b32 v9, 0")
for k in range(4):
    a("v_mov_b32 v%d, s%d" % (12 + k, 28 + k))
a("buffer_store_dwordx4 v[12:15], v9, s[36:39], 0 offen offset:%d" % EPOCH)
a.label("L_noep")
setexec(-1)
stamp(14)
a("s_branch L_end")

a.label("L_F")
a.flush()
a("s_mul_i32 s50, s32, 7")
a("s_add_u32 s50, s50, s33")
a("s_sub_u32 s50, s50, 16")
a("s_lshl_b32 s51, s50, 2")
a("s_add_u32 s51, s51, s35")
a("v_lshrrev_b32 v8, 3, v%d" % V_I16)
a("v_sub_u32 v8, v%d, v8" % V_I16)
a("v_min_u32 v8, 13, v8")
a("v_lshlrev_b32 v8, 6, v8")
a("v_lshl_add_u32 v23, v%d, 4, v8" % V_GRP)
if Cfg.lin:
    setexec(0x8080808080808080)
    a("v_mov_b32 v23, 896")
    for k in range(4):
        a("v_mov_b32 v%d, 0" % (12 + k))
    a("ds_write_b128 v23, v[12:15] offset:%d" % L_H)
    setexec(-1)
a("v_bfe_u32 v8, v%d, 2, 3" % V_LANE)
a("v_min_u32 v8, 6, v8")
a("v_and_b32 v9, 3, v%d" % V_LANE)
a("v_mul_u32_u24 v10, %d, v8" % Cfg.ss)
a("v_lshl_add_u32 v10, v9, 4, v10")
a("v_lshrrev_b32 v11, 5, v%d" % V_LANE)
a("v_lshl_add_u32 v%d, v11, 12, v10" % V_XA)
a("s_mul_i32 s63, s35, 7")
a("v_add_u32 v8, s63, v8")
a("v_lshrrev_b32 v10, 1, v8")
a("v_lshlrev_b32 v10, 6, v10")
a("v_and_b32 v8, 1, v8")
a("v_lshl_add_u32 v10, v8, 3, v10")
a("v_lshl_add_u32 v24, v9, 4, v10")
a("v_and_b32 v10, 1, v%d" % V_GRP)
a("v_and_b32 v11, 1, v%d" % V_I16)
a("v_lshlrev_b32 v25, 2, v10")
a("v_and_b32 v26, 2, v%d" % V_GRP)
a("v_add_u32 v25, v25, v26")
a("v_mul_u32_u24 v26, 896, v25")
a("v_lshl_add_u32 v26, v%d, 4, v26" % V_I16)
a("v_add_u32 v25, v25, v11")
a("v_lshlrev_b32 v25, 1, v25")
a("v_bfe_u32 v27, v%d, 1, 1" % V_I16)
a("v_mul_u32_u24 v27, %d, v27" % (224 * 64))
a("v_lshl_add_u32 v27, v%d, 9, v27" % V_GRP)
a("v_lshrrev_b32 v12, 2, v%d" % V_I16)
a("v_lshl_add_u32 v27, v12, 6, v27")
a("v_lshl_add_u32 v27, v11, 3, v27")
a("s_lshl_b32 s63, s35, 4")
a("v_add_u32 v%d, s63, v27" % V_W1A)
a("v_lshrrev_b32 v27, 2, v%d" % V_LANE)
a("v_mul_u32_u24 v27, 3584, v27")
a("v_and_b32 v12, 3, v%d" % V_LANE)
a("v_lshl_add_u32 v27, v12, 4, v27")
a("s_lshl_b32 s63, s35, 11")
a("v_lshl_add_u32 v%d, v%d, 4, s63" % (V_LW, V_LANE))
srd(40, 16, 448 * 3584)
srd(44, 20, 1792 * 896)
srd(8, 4, 896)
srd(12, 18, 1792 * 2)
a("s_mul_i32 s52, s35, %d" % (112 * 3584))
a("s_lshl_b32 s63, s50, 6")
a("s_add_u32 s52, s52, s63")
a("s_mul_i32 s53, s35, 7168")
a("s_add_u32 s53, s53, %d" % L_W1)
a("s_mul_i32 s54, s51, %d" % (8 * 896))
a("s_lshl_b32 s55, s51, 4")
a("s_mul_i32 s24, s35, %d" % (7 * Cfg.ss))
a("s_add_u32 s24, s24, %d" % E3X)
a("s_add_u32 s25, s24, 8192")
a("s_add_u32 s26, s24, 16384")
a("s_add_u32 s27, s24, 24576")
a("s_mov_b32 s6, %d" % (16 * 3584))
a("s_movk_i32 s7, 1024")
if Cfg.zig:
    a("s_bitcmp1_b32 s50, 0")
    a("s_cbranch_scc0 L_nozig")
    a("s_add_u32 s52, s52, %d" % (6 * 16 * 3584))
    a("s_add_u32 s53, s53, 6144")
    a("s_mov_b32 s6, %d" % (-16 * 3584))
    a("s_movk_i32 s7, -1024")
    a.label("L_nozig")
def w1_loads():
    for t in range(7):
        a("s_mov_b32 m0, s53")
        a("buffer_load_dwordx4 v27, s[40:43], s52 offen%s lds" % NTW)
        if t < 6:
            a("s_add_u32 s52, s52, s6")
            a("s_add_u32 s53, s53, s7")
def w2_loads():
    for b in range(4):
        if b == 3:
            setexec(0x00FF00FF00FF00FF)
        for q in range(2):
            a("buffer_load_dwordx4 v[%d:%d], v26, s[44:47], s54 offen offset:%d%s" % (V_W + 8 * b + 4 * q, V_W + 8 * b + 4 * q + 3, 896 * q + 256 * b, NTL))
    setexec(-1)
def small_loads():
    a("buffer_load_dwordx2 v[%d:%d], v24, s[8:11], 0 offen" % (V_X + 1, V_X + 2))
    a("buffer_load_ushort v%d, v25, s[12:15], s55 offen" % V_B1)
a("s_barrier")
if Cfg.w2e:
    w2_loads()
    small_loads()
wait_cnt(Cfg.fcnt)
if Cfg.fs:
    a("s_sleep %d" % Cfg.fs)
stamp(1)
if Cfg.w2e:
    w1_loads()
else:
    if not Cfg.w2first:
        w1_loads()
    if not Cfg.w2l:
        w2_loads()
    if Cfg.w2first:
        w1_loads()
    small_loads()
a("s_lshl_b32 s48, s50, 11")
a("s_lshl_b32 s63, s35, 10")
a("s_add_u32 s48, s48, s63")
a("s_add_u32 s48, s48, %d" % E4)
a("v_cmp_lt_u32 s[6:7], 7, v%d" % V_I16)
a("v_add_u32 v4, %d, v%d" % (512 - 128, V_PUB))
a("v_cndmask_b32 v4, v%d, v4, s[6:7]" % V_PUB)
a("s_lshl_b32 s63, s35, 10")
a("v_lshl_add_u32 v21, v%d, 4, s63" % V_LANE)
D1 = V_S2
V_CS = 251
def ffn1(AF, dst, fill=()):
    fill = list(fill)
    def f(n):
        for _ in range(n):
            if fill:
                a(fill.pop(0))
    for m in range(7):
        a("v_mfma_f32_16x16x32_bf16 v[%d:%d], v[%d:%d], v[%d:%d], 0" % (D1 + 4 * m, D1 + 4 * m + 3, AF, AF + 3, V_W1F + 4 * m, V_W1F + 4 * m + 3))
    return
def ffn1_tail(dst, t):
    a("v_mov_b32 v%d, 0" % dst)
    setexec(0x0000FF00000000FF)
    a("v_add_f32 v%d, v%d, v%d" % (dst, D1 + 0, D1 + 4 + 1))
    a("v_add_f32 v%d, v%d, v%d" % (t, D1 + 8 + 2, D1 + 12 + 3))
    a("v_add_f32 v%d, v%d, v%d" % (dst, dst, t))
    setexec(0xFF00000000FF0000)
    a("v_add_f32 v%d, v%d, v%d" % (dst, D1 + 16, D1 + 20 + 1))
    a("v_add_f32 v%d, v%d, v%d" % (dst, dst, D1 + 24 + 2))
    setexec(-1)
    a("v_add_f32_dpp v%d, v%d, v%d row_ror:8%s" % (dst, dst, dst, DPPM))
    a("v_mfma_f32_16x16x4_f32 v[%d:%d], v%d, v%d, 0" % (V_ACC, V_ACC + 3, dst, V_ONE))
def ffn1_sel(dst, t):
    a("v_cndmask_b32 v%d, v%d, v%d, s[%d:%d]" % (dst, V_ACC, V_ACC + 1, S_ODD, S_ODD + 1))
    a("v_cndmask_b32 v%d, v%d, v%d, s[%d:%d]" % (t, V_ACC + 2, V_ACC + 3, S_ODD, S_ODD + 1))
    a("v_cndmask_b32 v%d, v%d, v%d, s[%d:%d]" % (dst, dst, t, S_HI, S_HI + 1))
AF = 176
def e3x_issue(k):
    for t in range(4):
        a("buffer_load_dwordx4 v[%d:%d], v%d, s[36:39], s%d offen sc1" % (V_G + 4 * t, V_G + 4 * t + 3, V_XA, 24 + t))
a("v_min_u32 v22, 27, v%d" % V_LANE)
a("v_lshlrev_b32 v22, 4, v22")
a("s_lshl_b32 s49, s32, 11")
a("s_mul_i32 s63, s35, 448")
a("s_add_u32 s49, s49, s63")
a("s_add_u32 s49, s49, %d" % E3L)
a("s_mov_b32 s1, %d" % Cfg.bthr)
if Cfg.lh2:
    a("buffer_load_dwordx4 v[%d:%d], v22, s[36:39], s49 offen sc1" % (V_G, V_G + 3))
    a("s_waitcnt vmcnt(0)")
    stamp(5)
    check12(1, XR, "L_lh1")
    a("s_branch L_lh2")
    a.label("L_lh1")
    e3x_issue(0)
    a("s_mov_b32 s1, -1")
    a.label("L_lh2")
    a("s_barrier")
elif not Cfg.e3e:
    a("s_waitcnt vmcnt(0)")
    stamp(5)
    a("s_barrier")
def f_shadow():
    if Cfg.e3e:
        a("s_waitcnt vmcnt(%d)" % (4 * Cfg.pd))
        stamp(5)
        a("s_barrier")
    for m in range(7):
        for u in range(2):
            a("ds_read_b64_tr_b16 v[%d:%d], v%d offset:%d" % (V_W1F + 4 * m + 2 * u, V_W1F + 4 * m + 2 * u + 1, V_W1A, L_W1 + 2048 * m + 256 * u))
    a("v_lshlrev_b32 v%d, 16, v%d" % (V_B1, V_B1))
    a("v_lshlrev_b32 v%d, 16, v%d" % (V_X, V_X + 1))
    a("v_and_b32 v%d, 0xffff0000, v%d" % (V_X + 1, V_X + 1))
    a("v_and_b32 v%d, 0xffff0000, v%d" % (V_X + 3, V_X + 2))
    a("v_lshlrev_b32 v%d, 16, v%d" % (V_X + 2, V_X + 2))
    if Cfg.lin:
        for k in range(4):
            a("v_mov_b32 v%d, 0x3f803f80" % (AF + k))
        a("s_waitcnt lgkmcnt(0)")
        ffn1(AF, V_CS)
        ffn1_tail(V_CS, 9)
        ffn1_sel(V_CS, 9)
if Cfg.lh:
    f_shadow()
    if Cfg.lh2:
        a("s_cmp_eq_u32 s1, -1")
        a("s_cbranch_scc1 L_e3xpoll")
    a.label("L_lh")
    a("buffer_load_dwordx4 v[%d:%d], v22, s[36:39], s49 offen sc1" % (V_G, V_G + 3))
    a("s_sub_u32 s1, s1, 1")
    a("s_cbranch_scc1 L_lhok")
    a("s_waitcnt vmcnt(0)")
    check12(1, XR, "L_lhok")
    a("s_branch L_lh")
    a.label("L_lhok")
    if Cfg.xs:
        a("s_sleep %d" % Cfg.xs)
    assert Cfg.pdx == 1 or not Cfg.lh2
    poll("L_e3xpoll", e3x_issue, 4, lambda k, ok: check12(4, XR, ok), False, D=Cfg.pdx)
else:
    poll("L_e3xpoll", e3x_issue, 4, lambda k, ok: check12(4, XR, ok), False, shadow=f_shadow)
stamp(9)
if Cfg.w2l:
    w2_loads()
for r in range(4):
    a("v_add_f32 v%d, v%d, v%d" % (XR + r, XR + r, XR + 4 + r))
    a("v_add_f32 v%d, v%d, v%d" % (XR + 8 + r, XR + 8 + r, XR + 12 + r))
for r in range(4):
    a("v_add_f32 v%d, v%d, v%d" % (XR + r, XR + r, XR + 8 + r))
for r in range(4):
    a("v_mov_b32 v%d, v%d" % (XR + 4 + r, XR + r))
for r in range(4):
    a("v_permlane32_swap_b32 v%d, v%d" % (XR + r, XR + 4 + r))
for r in range(4):
    a("v_add_f32 v%d, v%d, v%d" % (XR + r, XR + r, XR + 4 + r))
round_add_round(XR, V_X)
a("ds_write_b64 v24, v[10:11] offset:%d" % L_H)
a("s_waitcnt lgkmcnt(0)")
a("s_barrier")
stamp(10)
PR = V_S1
if Cfg.lin:
    a("ds_read_b128 v[%d:%d], v23 offset:%d" % (AF, AF + 3, L_H))
    a("s_waitcnt lgkmcnt(0)")
    ffn1(AF, 22)
    for k in range(4):
        a("v_lshlrev_b32 v%d, 16, v%d" % (PR + 2 * k, AF + k))
        a("v_and_b32 v%d, 0xffff0000, v%d" % (PR + 2 * k + 1, AF + k))
    ffn1_tail(22, 20)
    s1, s2 = ln_stats([PR + k for k in range(8)], 0x7F7F7F7F7F7F7F7F, 5)
    ffn1_sel(22, 20)
    bf16r(s2, s2)
    a("v_rcp_f32 v%d, v%d" % (s2, s2))
    a("v_fma_f32 v8, -v%d, v%d, v22" % (s1, V_CS))
    a("s_mov_b32 s63, %s" % f32(-LOG2E))
    a("v_mul_f32 v8, v8, v%d" % s2)
else:
    a("ds_read_b128 v[%d:%d], v23 offset:%d" % (PR + 8, PR + 11, L_H))
    a("s_waitcnt lgkmcnt(0)")
    for k in range(4):
        a("v_lshlrev_b32 v%d, 16, v%d" % (PR + 2 * k, PR + 8 + k))
        a("v_and_b32 v%d, 0xffff0000, v%d" % (PR + 2 * k + 1, PR + 8 + k))
    layernorm([PR + k for k in range(8)], AF, 0x7F7F7F7F7F7F7F7F, 5)
    ffn1(AF, 8)
    ffn1_tail(8, 9)
    a("s_mov_b32 s63, %s" % f32(-LOG2E))
    ffn1_sel(8, 9)
bf16r(8, 8)
a("v_add_f32 v8, v8, v%d" % V_B1)
bf16r(8, 8)
if Cfg.fmish:
    a("v_mul_f32 v9, s63, abs(v8)")
    a("v_exp_f32 v9, v9")
    a("v_cmp_gt_f32 vcc, 0, v8")
    a("v_mul_f32 v10, v9, v9")
    a("v_cndmask_b32 v11, 1.0, v10, vcc")
    a("v_cndmask_b32 v12, v10, 1.0, vcc")
    a("v_fma_f32 v11, 2.0, v9, v11")
    a("v_fma_f32 v12, 2.0, v12, v11")
    a("v_rcp_f32 v12, v12")
    a("v_mul_f32 v14, v11, v12")
else:
    a("v_mul_f32 v9, s63, abs(v8)")
    a("v_exp_f32 v9, v9")
    a("v_max_f32 v17, 0, v8")
    bf16r(9, 9)
    a("v_add_f32 v10, 1.0, v9")
    a("v_add_f32 v11, -1.0, v10")
    a("v_log_f32 v12, v10")
    a("v_rcp_f32 v13, v11")
    a("v_cmp_eq_f32 vcc, 0, v11")
    a("v_mul_f32 v12, %s, v12" % f32(0.6931471805599453))
    a("v_mul_f32 v13, v13, v9")
    a("v_mul_f32 v12, v12, v13")
    a("v_cndmask_b32 v12, v12, v9, vcc")
    bf16r(12, 12)
    a("v_add_f32 v12, v12, v17")
    bf16r(12, 12)
    a("v_mul_f32 v13, %s, v12" % f32(-2.0 * LOG2E))
    a("v_exp_f32 v13, v13")
    a("v_mul_f32 v16, v12, v12")
    a("v_add_f32 v14, 1.0, v13")
    a("v_sub_f32 v15, 1.0, v13")
    a("v_rcp_f32 v14, v14")
    a("v_mul_f32 v16, %s, v16" % f32(-1.0 / 3.0))
    a("v_cmp_gt_f32 vcc, %s, v12" % f32(2.0 ** -6))
    a("v_fma_f32 v16, v16, v12, v12")
    a("v_mul_f32 v14, v14, v15")
    a("v_cndmask_b32 v14, v14, v16, vcc")
    bf16r(14, 14)
a("v_mul_f32 v14, v14, v8")
a("v_cvt_pk_bf16_f32 v14, v14, v14")
a("s_movk_i32 s63, 0xfff")
for q in range(2):
    for rho in range(4):
        a("v_and_b32_dpp v%d, v14, v%d quad_perm:[%d,%d,%d,%d]%s" % (BB + 4 * q + rho, V_M + rho, q, q, 2 + q, 2 + q, DPPM))
if Cfg.w2l:
    stamp(12)
    a("s_waitcnt vmcnt(0)")
for q in range(2):
    for b in range(4):
        a("v_mfma_f32_16x16x32_bf16 v[%d:%d], v[%d:%d], v[%d:%d], %s" % (V_ACC + 4 * b, V_ACC + 4 * b + 3, V_W + 8 * b + 4 * q, V_W + 8 * b + 4 * q + 3, BB + 4 * q, BB + 4 * q + 3, "0" if q == 0 else "v[%d:%d]" % (V_ACC + 4 * b, V_ACC + 4 * b + 3)))
setexec(0x00FF00FF00FF00FF)
a("ds_write_b128 v%d, v[%d:%d] offset:%d" % (V_LW, V_ACC, V_ACC + 3, L_F))
a("s_not_b64 exec, exec")
a("ds_write_b128 v%d, v[%d:%d] offset:%d" % (V_LW, V_ACC + 4, V_ACC + 7, L_F))
a("s_not_b64 exec, exec")
a("ds_write_b128 v%d, v[%d:%d] offset:%d" % (V_LW, V_ACC + 8, V_ACC + 11, L_F + 1024))
a("s_not_b64 exec, exec")
a("ds_write_b128 v%d, v[%d:%d] offset:%d" % (V_LW, V_ACC + 12, V_ACC + 15, L_F + 1024))
setexec(-1)
a("s_waitcnt lgkmcnt(0)")
stamp(13)
a("s_barrier")
a("s_cmp_ge_u32 s35, 2")
a("s_cbranch_scc1 L_end")
for w in range(4):
    a("ds_read_b128 v[%d:%d], v21 offset:%d" % (PR + 4 * w, PR + 4 * w + 3, L_F + 2048 * w))
a("s_cmp_eq_u32 s35, 1")
a("s_cselect_b32 exec_hi, 0x00ff00ff, -1")
a("s_waitcnt lgkmcnt(0)")
for r in range(4):
    a("v_add_f32 v%d, v%d, v%d" % (PR + r, PR + r, PR + 4 + r))
    a("v_add_f32 v%d, v%d, v%d" % (PR + 8 + r, PR + 8 + r, PR + 12 + r))
for r in range(4):
    a("v_add_f32 v%d, v%d, v%d" % (PR + r, PR + r, PR + 8 + r))
tag12(28, PR)
a("buffer_store_dwordx4 v[28:31], v4, s[36:39], s48 offen sc1")
setexec(-1)
stamp(14)
a.label("L_end")
if Cfg.stamps:
    setexec(-1)
    stamp(15)
    a("s_waitcnt lgkmcnt(0)")
    a("s_lshl_b32 s48, s2, 3")
    a("s_add_u32 s48, s48, s34")
    a("s_lshl_b32 s48, s48, 6")
    a("s_add_u32 s48, s48, %d" % STAMP)
    a("v_mov_b32 v9, 0")
    setexec(1)
    for i in range(0 if getattr(Cfg, "nost", False) else 16):
        a("v_mov_b32 v10, s%d" % (64 + 2 * i))
        a("buffer_store_dword v10, v9, s[36:39], s48 offen offset:%d" % (4 * i))
    if Cfg.dbgwg >= 0:
        a("s_cmp_lg_u32 s2, %d" % Cfg.dbgwg)
        a("s_cbranch_scc1 L_exit")
        a("s_cmp_lg_u32 s34, %d" % Cfg.dbgwave)
        a("s_cbranch_scc1 L_exit")
        if Cfg.spin:
            a.label("L_spin")
            a("s_memrealtime s[94:95]")
            a("s_waitcnt lgkmcnt(0)")
            a("s_sub_u32 s63, s94, s64")
            a("s_cmp_lt_u32 s63, %d" % Cfg.spin)
            a("s_cbranch_scc1 L_spin")
        srd(44, 24, 256)
        for i in range(16):
            a("s_sub_u32 s63, s%d, s64" % (64 + 2 * i))
            a("s_cmp_eq_u32 s%d, 0" % (64 + 2 * i))
            a("s_cselect_b32 s63, 0, s63")
            a("v_mov_b32 v10, s63")
            a("buffer_store_dword v10, v9, s[44:47], 0 offen offset:%d" % (4 * i))
a.label("L_exit")
a("s_endpgm")
a.raw('''.section .rodata,"a"
.p2align 6
.amdhsa_kernel %s_kernel
  .amdhsa_next_free_vgpr %d
  .amdhsa_next_free_sgpr 100
  .amdhsa_accum_offset %d
  .amdhsa_group_segment_fixed_size 0
  .amdhsa_kernarg_size 96
  .amdhsa_user_sgpr_count 2
  .amdhsa_user_sgpr_kernarg_segment_ptr 1
  .amdhsa_system_sgpr_workgroup_id_x 1
  .amdhsa_float_denorm_mode_32 3
.end_amdhsa_kernel''' % (NAME, NVGPR, NVGPR))
open(sys.argv[1], "w").write(a.text())
```

```python
import sys, struct
from asmlib import Asm
NAME = "sequential_preLN__sliding_block_cached__dense_activation_mish__decode"

class Cfg:
    stamps = False
    nt = True
    ntw = False
    timeout = 200000
    ocnt = 0
    vs = 0
    nearly = 7
    pfat = 1
    n1 = 10
    pf = False
    cpf = True
    ntl = False
    depth = 0
    ss = 128
    forceB = False
    pretouch = True
    fs = 0
    tlb = 0
    bthr = 64
    b0 = True
    npipe = 3
    ps0 = 0
    ps1 = 4
    kpat = 0
    kdma = True
    pd = 1
    pds = 2
    fpf = False
    prio = True
    xls = 0
    pace = 0
    e1w = 20
    fcnt = 6
    w2l = False
    pdx = 1
    pd4 = 1
    zig = True
    w2first = True
    w2e = True
    bd = 0
    xcc = True
    fakex = False
    fmish = True
    noA = False
    nost = False
    noB = False
    dry = 0
    lh2 = False
    lh = True
    e3e = False
    lin = True
    rpf = False
    rs = 0
    os = 0
    ka = 3
    kb = 0
    kc = 0
    k0 = 12
    xs = 0
    e4s = 0
    rnd = True
    dbgwg = -1
    dbgwave = 0
    spin = 0
for arg in sys.argv[2:]:
    k, v = arg.split('=')
    setattr(Cfg, k, type(getattr(Cfg, k))(int(v)))

NT = " nt" if Cfg.nt else ""
NTW = " nt" if Cfg.ntw else ""
NTQ = NT
NTL = " nt" if Cfg.ntl else ""
EPOCH = 0x0
E3X = 0x1000
E3L = 0x9000
E1 = 0x10000
E2 = 0x20000
E3A = 0xA0000
BOFF = 0x120000
E4 = 0x240000
STAMP = 0x300000
WS_SIZE = 0x400000
L_Q = 0
L_ML = 1024
L_CNT = 3072
L_H = 3136
L_O = 4096
L_F = L_O
L_K = 12288
L_W1 = L_K
LDS_BYTES = 45056

LOG2E = 1.4426950408889634
def f32(x):
    return "0x%08x" % struct.unpack('<I', struct.pack('<f', x))[0]

a = Asm()
a.raw("; @launch grid=(256,1,1) block=(512,1,1) lds=%d" % LDS_BYTES)
a.raw('.amdgcn_target "amdgcn-amd-amdhsa--gfx950"\n.text\n.globl %s_kernel\n.p2align 8\n.type %s_kernel,@function\n%s_kernel:' % (NAME, NAME, NAME))

DPPM = " row_mask:0xf bank_mask:0xf"
def stamp(i):
    if Cfg.stamps:
        a("s_memrealtime s[%d:%d]" % (64 + 2 * i, 65 + 2 * i))

def srd(dst, ptr, nbytes):
    a("s_mov_b32 s%d, s%d" % (dst, ptr))
    a("s_and_b32 s%d, s%d, 0xffff" % (dst + 1, ptr + 1))
    a("s_mov_b32 s%d, %d" % (dst + 2, nbytes))
    a("s_mov_b32 s%d, 0x20000" % (dst + 3))

def setexec(mask):
    if mask == -1:
        a("s_mov_b64 exec, -1")
    else:
        a("s_mov_b32 exec_lo, 0x%08x" % (mask & 0xffffffff))
        a("s_mov_b32 exec_hi, 0x%08x" % (mask >> 32))

def setmask(s, mask):
    a("s_mov_b32 s%d, 0x%08x" % (s, mask & 0xffffffff))
    a("s_mov_b32 s%d, 0x%08x" % (s + 1, mask >> 32))

def bfly(op, v, t, which):
    a("v_mov_b32 v%d, v%d" % (t, v))
    a("v_permlane%d_swap_b32 v%d, v%d" % (which, v, t))
    a("%s v%d, v%d, v%d" % (op, v, v, t))

def bf16r(dst, src):
    a("v_cvt_pk_bf16_f32 v%d, v%d, v%d" % (dst, src, src))
    a("v_and_b32 v%d, 0xffff0000, v%d" % (dst, dst))

S_ODD, S_B1, S_HI = 56, 58, 60
S_M4, S_M8 = 58, 96
S_TO = 62
S_SEL = 3

S_CNT = 33
def sel_step(thr):
    a("s_sub_u32 s%d, s%d, 1" % (S_TO, S_TO))
    a("s_cbranch_scc1 L_end")
    if thr is not None and not Cfg.forceB:
        assert Cfg.pd == 1
        a("s_xor_b32 s63, s%d, %d" % (S_SEL, BOFF))
        a("s_cmp_lt_u32 s%d, s1" % S_TO)
        a("s_cselect_b32 s%d, s63, s%d" % (S_SEL, S_SEL))

def retry(loop, dual):
    sel_step(True if dual else None)
    a("s_branch %s" % loop)

def sel_init(thr=None):
    a("s_mov_b32 s%d, %d" % (S_SEL, BOFF if Cfg.forceB else 0))
    a("s_sub_u32 s1, s%d, %d" % (S_TO, Cfg.bthr if thr is None else thr))

def ln_stats(f, valid, T, fill=None):
    e = [T + k for k in range(8)]
    s1, s2, t1, t2 = T + 8, T + 9, T + 10, T + 11
    fill = list(fill or [])
    def filler():
        if fill:
            a(fill.pop(0))
    a("v_readlane_b32 s63, v%d, 0" % f[0])
    a("v_mov_b32 v%d, 0" % s1)
    a("v_mov_b32 v%d, 0" % s2)
    setexec(valid)
    for k in range(8):
        a("v_subrev_f32 v%d, s63, v%d" % (e[k], f[k]))
    a("v_add_f32 v%d, v%d, v%d" % (s1, e[0], e[1]))
    a("v_mul_f32 v%d, v%d, v%d" % (s2, e[0], e[0]))
    a("v_add_f32 v%d, v%d, v%d" % (t1, e[2], e[3]))
    a("v_mul_f32 v%d, v%d, v%d" % (t2, e[1], e[1]))
    for k in range(4, 8):
        a("v_add_f32 v%d, v%d, v%d" % (s1 if k % 2 == 0 else t1, s1 if k % 2 == 0 else t1, e[k]))
    for k in range(2, 8):
        a("v_fmac_f32 v%d, v%d, v%d" % (s2 if k % 2 == 0 else t2, e[k], e[k]))
    a("v_add_f32 v%d, v%d, v%d" % (s1, s1, t1))
    a("v_add_f32 v%d, v%d, v%d" % (s2, s2, t2))
    setexec(-1)
    for i, r in enumerate((8, 4, 2, 1)):
        a("v_add_f32_dpp v%d, v%d, v%d row_ror:%d%s" % (s1, s1, s1, r, DPPM))
        a("v_add_f32_dpp v%d, v%d, v%d row_ror:%d%s" % (s2, s2, s2, r, DPPM))
        filler()
    for which in (16, 32):
        a("v_mov_b32 v%d, v%d" % (t1, s1))
        a("v_mov_b32 v%d, v%d" % (t2, s2))
        filler()
        a("v_permlane%d_swap_b32 v%d, v%d" % (which, s1, t1))
        a("v_permlane%d_swap_b32 v%d, v%d" % (which, s2, t2))
        a("v_add_f32 v%d, v%d, v%d" % (s1, s1, t1))
        a("v_add_f32 v%d, v%d, v%d" % (s2, s2, t2))
    a("v_mul_f32 v%d, %s, v%d" % (s1, f32(1.0 / 448), s1))
    a("v_mul_f32 v%d, %s, v%d" % (s2, f32(1.0 / 448), s2))
    a("v_fma_f32 v%d, -v%d, v%d, v%d" % (s2, s1, s1, s2))
    a("v_add_f32 v%d, s63, v%d" % (s1, s1))
    a("v_max_f32 v%d, 0, v%d" % (s2, s2))
    a("v_cvt_pk_bf16_f32 v%d, v%d, v%d" % (t1, s1, s2))
    a("v_and_b32 v%d, 0xffff0000, v%d" % (s2, t1))
    a("v_lshlrev_b32 v%d, 16, v%d" % (s1, t1))
    a("v_add_f32 v%d, %s, v%d" % (s2, f32(1e-5), s2))
    bf16r(s2, s2)
    a("v_sqrt_f32 v%d, v%d" % (s2, s2))
    while fill:
        filler()
    return s1, s2

def ln_apply(f, e, pk, s1, s2):
    n = len(f)
    for k in range(n):
        a("v_sub_f32 v%d, v%d, v%d" % (e[k], f[k], s1))
    bf16r(s2, s2)
    a("v_rcp_f32 v%d, v%d" % (s2, s2))
    for k in range(n // 2):
        a("v_cvt_pk_bf16_f32 v%d, v%d, v%d" % (pk[k], e[2 * k], e[2 * k + 1]))
    for k in range(n // 2):
        a("v_lshlrev_b32 v%d, 16, v%d" % (e[2 * k], pk[k]))
        a("v_and_b32 v%d, 0xffff0000, v%d" % (e[2 * k + 1], pk[k]))
    for k in range(n):
        a("v_mul_f32 v%d, v%d, v%d" % (e[k], e[k], s2))

def layernorm(f, out, valid, T):
    e = [T + k for k in range(8)]
    pk = [T + 12 + k for k in range(4)]
    s1, s2 = ln_stats(f, valid, T, ["v_mov_b32 v%d, 0" % (out + i) for i in range(4)])
    ln_apply(f, e, pk, s1, s2)
    setexec(valid)
    for k in range(4):
        a("v_cvt_pk_bf16_f32 v%d, v%d, v%d" % (out + k, e[2 * k], e[2 * k + 1]))
    setexec(-1)

def quad_transpose_reduce(v, dst, T):
    k0, g0, k1, g1 = T, T + 1, T + 2, T + 3
    a("v_cndmask_b32 v%d, v%d, v%d, s[%d:%d]" % (g0, v[1], v[0], S_ODD, S_ODD + 1))
    a("v_cndmask_b32 v%d, v%d, v%d, s[%d:%d]" % (g1, v[3], v[2], S_ODD, S_ODD + 1))
    a("v_cndmask_b32 v%d, v%d, v%d, s[%d:%d]" % (k0, v[0], v[1], S_ODD, S_ODD + 1))
    a("v_cndmask_b32 v%d, v%d, v%d, s[%d:%d]" % (k1, v[2], v[3], S_ODD, S_ODD + 1))
    a("v_add_f32_dpp v%d, v%d, v%d quad_perm:[1,0,3,2]%s" % (k0, g0, k0, DPPM))
    a("v_add_f32_dpp v%d, v%d, v%d quad_perm:[1,0,3,2]%s" % (k1, g1, k1, DPPM))
    a("v_cndmask_b32 v%d, v%d, v%d, s[%d:%d]" % (g0, k1, k0, S_B1, S_B1 + 1))
    a("v_cndmask_b32 v%d, v%d, v%d, s[%d:%d]" % (dst, k0, k1, S_B1, S_B1 + 1))
    a("v_add_f32_dpp v%d, v%d, v%d quad_perm:[2,3,0,1]%s" % (dst, g0, dst, DPPM))

S_B2, S_B3 = S_B1, 4
def reduce16(v, dst):
    for r in range(4):
        a("v_add_f32_dpp v%d, v%d, v%d row_ror:8%s" % (v[r], v[r], v[r], DPPM))
    for r in range(4):
        a("v_add_f32_dpp v%d, v%d, v%d row_ror:4%s" % (v[r], v[r], v[r], DPPM))
    a("v_cndmask_b32 v%d, v%d, v%d, s[%d:%d]" % (v[0], v[0], v[1], S_M4, S_M4 + 1))
    a("v_cndmask_b32 v%d, v%d, v%d, s[%d:%d]" % (v[2], v[2], v[3], S_M4, S_M4 + 1))
    a("v_cndmask_b32 v%d, v%d, v%d, s[%d:%d]" % (dst, v[0], v[2], S_M8, S_M8 + 1))

def check12(n, X, oklab, G=None, T0=None, mask=0xfff):
    if G is None:
        G = V_G
    for t in range(n):
        for r in range(4):
            a("v_xor_b32 v%d, v%d, v%d" % (X + 4 * t + r, G + 4 * t + r, T0 if (r == 0 and T0 is not None) else V_T + r))
    regs = [X + i for i in range(4 * n)]
    acc = [5, 6, 7]
    cur = regs[:]
    outs = []
    i = 0
    while len(cur) >= 3 and i < 3:
        a("v_or3_b32 v%d, v%d, v%d, v%d" % (acc[i], cur[0], cur[1], cur[2])); cur = cur[3:]; outs.append(acc[i]); i += 1
    i = 0
    while len(cur) >= 2:
        o = outs[i % len(outs)]
        a("v_or3_b32 v%d, v%d, v%d, v%d" % (o, o, cur[0], cur[1])); cur = cur[2:]; i += 1
    rest = outs + cur
    while len(rest) > 1:
        if len(rest) >= 3:
            a("v_or3_b32 v%d, v%d, v%d, v%d" % (acc[0], rest[0], rest[1], rest[2])); rest = [acc[0]] + rest[3:]
        else:
            a("v_or_b32 v%d, v%d, v%d" % (acc[0], rest[0], rest[1])); rest = [acc[0]]
    a("v_and_b32 v%d, 0x%x, v%d" % (acc[0], mask, rest[0]))
    a("v_cmp_ne_u32 vcc, 0, v%d" % acc[0])
    a("s_cbranch_vccz %s" % oklab)

V_I16, V_GRP, V_LANE = 1, 2, 3
V_M, V_T = 196, 200
V_TA, V_TB, V_T8, V_ONE = 204, 205, 206, 207
V_B1, V_X = 208, 209
V_GA = 213
V_PUB = 214
V_XA = 215
V_ACC = 216
V_G = 232
V_W1A, V_LW = 248, 249
NVGPR = 252
V_K, V_V, V_QF = 32, 64, 96
V_W = 32
V_W1F = 64
V_BB = 96
V_S1 = 112
V_S2 = 144

def tag12(dst, src):
    for r in range(4):
        if Cfg.rnd:
            a("v_add_u32 v%d, 0x800, v%d" % (dst + r, src + r))
            src_r = dst + r
        else:
            src_r = src + r
    for r in range(4):
        a("v_bfi_b32 v%d, s63, v%d, v%d" % (dst + r, V_T + r, (dst if Cfg.rnd else src) + r))

def make_masks():
    a("v_and_b32 v10, 1, v%d" % V_I16)
    a("v_lshlrev_b32 v10, 4, v10")
    a("v_mov_b32 v11, 0xffff")
    a("v_lshlrev_b32 v11, v10, v11")
    a("v_bfe_u32 v10, v%d, 1, 2" % V_I16)
    for rho in range(4):
        a("v_cmp_eq_u32 vcc, %d, v10" % rho)
        a("v_cndmask_b32 v%d, 0, v11, vcc" % (V_M + rho))

def make_tags(full=True):
    a("s_waitcnt lgkmcnt(0)")
    for k in range(4):
        a("s_add_u32 s%d, s%d, 1" % (28 + k, 28 + k))
    if full:
        for k in range(4):
            a("s_and_b32 s63, s%d, 0xfff" % (28 + k))
            a("v_mov_b32 v%d, s63" % (V_T + k))
    a("v_mov_b32 v%d, s31" % V_TB)
    a("s_and_b32 s63, s30, 0xff")
    a("v_mov_b32 v%d, s63" % V_T8)

if Cfg.stamps:
    for i in range(16):
        a("s_mov_b64 s[%d:%d], 0" % (64 + 2 * i, 65 + 2 * i))
stamp(0)
a("s_load_dwordx16 s[4:19], s[0:1], 0")
a("s_load_dwordx8 s[20:27], s[0:1], 64")
a("s_cmp_ge_u32 s2, 256")
a("s_cbranch_scc1 L_exit")
a("v_lshrrev_b32 v4, 6, v0")
a("v_and_b32 v%d, 63, v0" % V_LANE)
a("v_readfirstlane_b32 s34, v4")
a("v_and_b32 v%d, 15, v0" % V_I16)
a("v_bfe_u32 v%d, v0, 4, 2" % V_GRP)
a("s_and_b32 s32, s2, 7")
a("s_lshr_b32 s33, s2, 3")
a("s_and_b32 s35, s34, 3")
a("s_cmp_ge_u32 s34, 4")
a("s_cbranch_scc1 L_tail")

a("s_lshl_b32 s48, s32, 22")
a("s_lshl_b32 s49, s33, 15")
a("s_add_u32 s48, s48, s49")
a("s_lshl_b32 s49, s34, 13")
a("s_add_u32 s48, s48, s49")
a("s_add_u32 s48, s48, %d" % (6144 * 512))
if Cfg.kdma:
    a("v_lshrrev_b32 v4, 2, v%d" % V_LANE)
    a("v_lshlrev_b32 v4, 9, v4")
    a("v_and_b32 v5, 3, v%d" % V_LANE)
    a("v_lshl_add_u32 v4, v5, 4, v4")
    a("s_add_u32 s49, s49, %d" % L_K)
else:
    a("v_lshlrev_b32 v4, 9, v%d" % V_I16)
    a("v_lshl_add_u32 v4, v%d, 4, v4" % V_GRP)
a("v_lshlrev_b32 v5, 11, v%d" % V_GRP)
a("v_lshl_add_u32 v5, v%d, 4, v5" % V_I16)
a("s_mov_b32 s42, 33554432")
a("s_mov_b32 s43, 0x20000")
a("s_mov_b32 s46, 33554432")
a("s_mov_b32 s47, 0x20000")
a("s_waitcnt lgkmcnt(0)")
a("s_mov_b32 s40, s6")
a("s_and_b32 s41, s7, 0xffff")
a("s_mov_b32 s44, s8")
a("s_and_b32 s45, s9, 0xffff")
stamp(11)
if Cfg.b0:
    a("s_barrier")
nissued = [0]
def paced(text):
    if Cfg.depth and nissued[0] >= Cfg.depth and nissued[0] < Cfg.n1:
        a("s_waitcnt vmcnt(%d)" % (Cfg.depth - 1))
    a(text)
    nissued[0] += 1
loads = []
for s in range(8):
    if Cfg.kdma:
        loads.append(["s_add_u32 m0, s49, %d" % (960 * s), "buffer_load_dwordx4 v4, s[40:43], s48 offen offset:%d%s lds" % (64 * s, NT)])
    else:
        loads.append("buffer_load_dwordx4 v[%d:%d], v4, s[40:43], s48 offen offset:%d%s" % (V_K + 4 * s, V_K + 4 * s + 3, 64 * s, NT))
def emit(t):
    for x in ([t] if isinstance(t, str) else t):
        a(x)
for r in range(4):
    for h in range(2):
        n = 2 * r + h
        loads.append("buffer_load_dwordx4 v[%d:%d], v5, s[44:47], s48 offen offset:%d%s" % (V_V + 4 * n, V_V + 4 * n + 3, 512 * r + 256 * h, NT))
nfirst = 8 + Cfg.nearly
if Cfg.pace:
    Cfg.k0 = Cfg.pace
for t in loads[:Cfg.k0]:
    emit(t)
stamp(12)
a("s_load_dwordx4 s[28:31], s[26:27], %d" % EPOCH)
srd(36, 26, WS_SIZE)
make_masks()
a("v_lshrrev_b32 v7, 3, v%d" % V_I16)
a("v_lshlrev_b32 v7, 9, v7")
a("v_lshl_add_u32 v7, v%d, 4, v7" % V_GRP)
a("s_lshl_b32 s63, s34, 11")
a("v_lshl_add_u32 v%d, v%d, 4, s63" % (V_LW, V_LANE))
a("s_lshl_b32 s63, s34, 9")
a("v_lshl_add_u32 v23, v%d, 3, s63" % V_LANE)
a("s_lshl_b32 s63, s34, 10")
a("v_lshl_add_u32 v21, v%d, 4, s63" % V_LANE)
a("v_lshlrev_b32 v22, 3, v%d" % V_LANE)
a("s_lshl_b32 s55, s32, 5")
a("s_add_u32 s55, s55, s33")
a("s_lshl_b32 s55, s55, 11")
a("s_add_u32 s50, s55, %d" % E2)
a("s_add_u32 s51, s55, %d" % (E2 + BOFF))
make_tags(False)
a("v_mov_b32 v31, v%d" % V_TB)
a("v_mov_b32 v6, 0")
a("v_mov_b32 v29, 1")
a("ds_write2_b32 v6, v6, v6 offset0:%d offset1:%d" % (L_CNT // 4 % 256, L_CNT // 4 % 256 + 1)) if False else None
a("ds_write_b32 v6, v6 offset:%d" % L_CNT)
a("ds_write_b32 v6, v6 offset:%d" % (L_CNT + 4))
a("s_waitcnt lgkmcnt(0)")
a("s_mov_b32 s%d, %d" % (S_TO, Cfg.timeout))
NPF = [0]
a("s_lshl_b32 s52, s33, 2")
a("s_add_u32 s52, s52, s34")
a("v_lshlrev_b32 v24, 7, v%d" % V_LANE)
a("s_mul_i32 s53, s32, %d" % (512 * 896))
a("s_mul_i32 s63, s52, %d" % (28 * 128))
a("s_add_u32 s53, s53, s63")
a("s_mov_b32 s14, %d" % (4096 * 896))
a("s_mov_b32 s15, 0x20000")
a("s_and_b32 s13, s13, 0xffff")
def wo_prefetch():
    if Cfg.pf:
        a("s_mov_b32 exec_hi, 0")
        a("s_mov_b32 exec_lo, 0x0fffffff")
        a("buffer_load_dword v250, v24, s[12:15], s53 offen")
        setexec(-1)
        NPF[0] = 1
SEGS = [x for x in (Cfg.ka, Cfg.kb, Cfg.kc) if x > 0]
pos = Cfg.k0
if Cfg.pace:
    for t in loads[pos:]:
        a("s_waitcnt vmcnt(%d)" % (Cfg.pace - 1))
        emit(t)
    stamp(13)
else:
    a("s_barrier")
    for n in SEGS:
        for t in loads[pos:pos + n]:
            emit(t)
        pos += n
        a("s_barrier")
        a("s_barrier")
    stamp(13)
    for t in loads[pos:]:
        emit(t)
if Cfg.pfat < 0:
    wo_prefetch()
if Cfg.kdma:
    a("v_lshlrev_b32 v25, 6, v%d" % V_I16)
    a("v_lshl_add_u32 v25, v%d, 4, v25" % V_GRP)
    a("v_add_u32 v25, s49, v25")
    a("s_waitcnt vmcnt(%d)" % (8 + NPF[0]))
    for s in range(8):
        a("ds_read_b128 v[%d:%d], v25 offset:%d" % (V_K + 4 * s, V_K + 4 * s + 3, 1024 * s))
stamp(1)
a("s_waitcnt lgkmcnt(0)")
if Cfg.prio:
    a("s_setprio 2")
a("s_barrier")
stamp(2)
for s in range(8):
    a("ds_read_b128 v[%d:%d], v7 offset:%d" % (V_QF + 4 * s, V_QF + 4 * s + 3, L_Q + 64 * s))
a("s_mov_b32 s63, %s" % f32(0.0625 * LOG2E))
a("s_waitcnt vmcnt(%d)" % (8 + NPF[0]))
S = V_ACC
for s in range(8):
    a("s_waitcnt lgkmcnt(%d)" % (0 if Cfg.stamps else 7 - s))
    a("v_mfma_f32_16x16x32_bf16 v[%d:%d], v[%d:%d], v[%d:%d], %s" % (S, S + 3, V_K + 4 * s, V_K + 4 * s + 3, V_QF + 4 * s, V_QF + 4 * s + 3, "0" if s == 0 else "v[%d:%d]" % (S, S + 3)))
a("v_cvt_pk_bf16_f32 v8, v%d, v%d" % (S, S + 1))
a("v_cvt_pk_bf16_f32 v9, v%d, v%d" % (S + 2, S + 3))
a("v_lshlrev_b32 v10, 16, v8")
a("v_and_b32 v11, 0xffff0000, v8")
a("v_lshlrev_b32 v12, 16, v9")
a("v_and_b32 v13, 0xffff0000, v9")
a("v_max3_f32 v14, v10, v11, v12")
a("v_max_f32 v14, v14, v13")
bfly("v_max_f32", 14, 15, 16)
bfly("v_max_f32", 14, 15, 32)
a("v_mul_f32 v14, s63, v14")
for r in range(4):
    a("v_fma_f32 v%d, v%d, s63, -v14" % (10 + r, 10 + r))
for r in range(4):
    a("v_exp_f32 v%d, v%d" % (10 + r, 10 + r))
for r in range(4):
    a("v_cvt_pk_bf16_f32 v%d, v%d, v%d" % (16 + r, 10 + r, 10 + r))
O = V_ACC + 4
BB = V_QF
def bbuild(r):
    for rho in range(4):
        a("v_and_b32 v%d, v%d, v%d" % (BB + 4 * r + rho, 16 + r, V_M + rho))
def pv(r):
    a("s_waitcnt vmcnt(%d)" % (6 - 2 * r + NPF[0]))
    for h in range(2):
        n = 2 * r + h
        a("v_mfma_f32_16x16x32_bf16 v[%d:%d], v[%d:%d], v[%d:%d], %s" % (O + 4 * h, O + 4 * h + 3, V_V + 4 * n, V_V + 4 * n + 3, BB + 4 * r, BB + 4 * r + 3, "0" if r == 0 else "v[%d:%d]" % (O + 4 * h, O + 4 * h + 3)))
    if r == Cfg.pfat:
        wo_prefetch()
bbuild(0)
bbuild(1)
stamp(5)
pv(0)
bbuild(2)
a("v_add_f32 v15, v10, v11")
a("v_add_f32 v20, v12, v13")
pv(1)
bbuild(3)
a("v_add_f32 v15, v15, v20")
pv(2)
bfly("v_add_f32", 15, 20, 16)
pv(3)
stamp(6)
bfly("v_add_f32", 15, 20, 32)
a("ds_write_b64 v23, v[14:15] offset:%d" % L_ML)
a("ds_write_b128 v%d, v[%d:%d] offset:%d" % (V_LW, O, O + 3, L_O))
a("ds_write_b128 v%d, v[%d:%d] offset:%d" % (V_LW, O + 4, O + 7, L_O + 1024))
setexec(1)
a("ds_add_u32 v6, v29 offset:%d" % L_CNT)
setexec(-1)
a("s_cmp_ge_u32 s34, 2")
a("s_cbranch_scc1 L_att_exit")
a.label("L_cnt")
a("ds_read_b32 v8, v6 offset:%d" % L_CNT)
a("s_sub_u32 s%d, s%d, 1" % (S_TO, S_TO))
a("s_cbranch_scc1 L_end")
a("s_waitcnt lgkmcnt(0)")
a("v_cmp_gt_u32 vcc, 4, v8")
a("s_cbranch_vccnz L_cnt")
stamp(3)
for w in range(4):
    a("ds_read_b64 v[%d:%d], v22 offset:%d" % (10 + 2 * w, 11 + 2 * w, L_ML + 512 * w))
for w in range(4):
    a("ds_read_b128 v[%d:%d], v21 offset:%d" % (V_G + 4 * w, V_G + 4 * w + 3, L_O + 2048 * w))
a("s_movk_i32 s63, 0xff")
a("s_waitcnt lgkmcnt(4)" if not Cfg.stamps else "s_waitcnt lgkmcnt(0)")
a("v_max3_f32 v18, v10, v12, v14")
a("v_max_f32 v18, v18, v16")
for w in range(4):
    a("v_sub_f32 v%d, v%d, v18" % (10 + 2 * w, 10 + 2 * w))
for w in range(4):
    a("v_exp_f32 v%d, v%d" % (10 + 2 * w, 10 + 2 * w))
a("v_mul_f32 v19, v10, v11")
for w in range(1, 4):
    a("v_fmac_f32 v19, v%d, v%d" % (10 + 2 * w, 11 + 2 * w))
a("v_rcp_f32 v20, v19")
a("v_log_f32 v9, v19")
a("s_waitcnt lgkmcnt(0)")
for r in range(4):
    a("v_mul_f32 v%d, v10, v%d" % (24 + r, V_G + r))
for w in range(1, 4):
    for r in range(4):
        a("v_fmac_f32 v%d, v%d, v%d" % (24 + r, 10 + 2 * w, V_G + 4 * w + r))
a("v_add_f32 v9, v9, v18")
for r in range(4):
    a("v_mul_f32 v%d, v%d, v20" % (24 + r, 24 + r))
a("v_bfi_b32 v30, s63, v%d, v9" % V_T8)
a("v_cvt_pk_bf16_f32 v28, v24, v25")
a("v_cvt_pk_bf16_f32 v29, v26, v27")
if not Cfg.noA:
    a("buffer_store_dwordx4 v[28:31], v21, s[36:39], s50 offen")
def bdefer():
    if Cfg.bd == 1:
        a("s_waitcnt vmcnt(0)")
    elif Cfg.bd > 1:
        a("s_sleep %d" % Cfg.bd)
a("v_mov_b32 v8, 1")
setexec(1)
a("ds_add_u32 v6, v8 offset:%d" % L_CNT)
setexec(-1)
stamp(4)
def skip_if_local(tmp, lab):
    if Cfg.xcc:
        a("v_mov_b32 v%d, 0" % tmp)
        a("ds_read_b32 v%d, v%d offset:%d" % (tmp, tmp, L_CNT + 4))
        a("s_waitcnt lgkmcnt(0)")
        a("v_cmp_eq_u32 vcc, 0, v%d" % tmp)
        a("s_cbranch_vccnz %s" % lab)
bdefer()
skip_if_local(8, "L_end")
if not Cfg.noB:
    a("buffer_store_dwordx4 v[28:31], v21, s[36:39], s51 offen sc1")
a("s_branch L_end")

a.label("L_att_exit")
if Cfg.fpf:
    a("s_cmp_lt_u32 s33, 16")
    a("s_cbranch_scc1 L_end")
    a("s_sub_u32 s52, s33, 16")
    a("s_lshl_b32 s52, s52, 1")
    a("s_add_u32 s52, s52, s34")
    a("s_sub_u32 s52, s52, 2")
    a("s_mul_i32 s54, s32, %d" % (224 * 896))
    a("s_mul_i32 s63, s52, %d" % (49 * 128))
    a("s_add_u32 s54, s54, s63")
    a("s_mul_i32 s49, s32, 448")
    a("s_mul_i32 s63, s52, %d" % (14 * 3584))
    a("s_add_u32 s49, s49, s63")
    a("v_lshrrev_b32 v25, 2, v%d" % V_LANE)
    a("v_mul_u32_u24 v25, 3584, v25")
    a("v_and_b32 v26, 3, v%d" % V_LANE)
    a("v_mul_u32_u24 v26, 148, v26")
    a("v_add_u32 v25, v25, v26")
    a("s_mov_b32 s18, %d" % (448 * 3584))
    a("s_mov_b32 s19, 0x20000")
    a("s_and_b32 s17, s17, 0xffff")
    a("s_mov_b32 s22, %d" % (1792 * 896))
    a("s_mov_b32 s23, 0x20000")
    a("s_and_b32 s21, s21, 0xffff")
    a("s_mov_b32 exec_hi, 0x00ffffff")
    a("buffer_load_dword v250, v25, s[16:19], s49 offen")
    a("s_mov_b32 exec_hi, 0x0001ffff")
    a("buffer_load_dword v250, v24, s[20:23], s54 offen")
a("s_branch L_end")

a.label("L_tail")
a.flush()
a("s_cmp_lg_u32 s34, 4")
a("s_cbranch_scc1 L_tail_common")
a("v_lshrrev_b32 v4, 3, v%d" % V_I16)
a("v_mul_u32_u24 v4, 56, v4")
a("v_mul_u32_u24 v5, 14, v%d" % V_GRP)
a("v_add_u32 v4, v4, v5")
a("v_lshlrev_b32 v5, 13, v4")
a("v_and_b32 v6, 7, v%d" % V_I16)
a("v_lshl_add_u32 v5, v6, 4, v5")
a("v_lshlrev_b32 v4, 1, v4")
a("v_lshlrev_b32 v6, 6, v%d" % V_I16)
a("v_lshl_add_u32 v6, v%d, 4, v6" % V_GRP)
a("s_lshr_b32 s50, s33, 3")
a("s_mul_i32 s52, s50, %d" % (112 * 8192))
a("s_lshl_b32 s53, s32, 10")
a("s_add_u32 s52, s52, s53")
a("s_and_b32 s53, s33, 7")
a("s_lshl_b32 s53, s53, 7")
a("s_add_u32 s52, s52, s53")
a("s_mul_i32 s51, s50, 224")
a("s_mov_b32 s42, %d" % (448 * 8192))
a("s_mov_b32 s43, 0x20000")
a("s_mov_b32 s46, 896")
a("s_mov_b32 s47, 0x20000")
a("s_setprio 3")
a("s_waitcnt lgkmcnt(0)")
a("s_mov_b32 s44, s4")
a("s_and_b32 s45, s5, 0xffff")
a("s_mov_b32 s40, s10")
a("s_and_b32 s41, s11, 0xffff")
stamp(11)
WQ, BQ, XR14 = 32, 88, 144
a("buffer_load_dwordx4 v[%d:%d], v6, s[44:47], 0 offen" % (V_G, V_G + 3))
a("buffer_load_dwordx4 v[%d:%d], v4, s[44:47], s51 offen" % (XR14, XR14 + 3))
a("buffer_load_dwordx3 v[%d:%d], v4, s[44:47], s51 offen offset:16" % (XR14 + 4, XR14 + 6))
for t in range(14):
    a("buffer_load_dwordx4 v[%d:%d], v5, s[40:43], s52 offen%s" % (WQ + 4 * t, WQ + 4 * t + 3, NTQ))
    if t < 13:
        a("s_add_u32 s52, s52, 8192")
stamp(12)
a.label("L_tail_common")
a("s_waitcnt lgkmcnt(0)")
if Cfg.tlb == 2:
    a("s_cmp_lg_u32 s34, 6")
    a("s_cbranch_scc1 L_notlb")
    a("s_mul_i32 s48, s32, %d" % (512 * 896))
    a("s_add_u32 s49, s48, %d" % (511 * 896))
    a("s_mul_i32 s50, s32, %d" % (224 * 896))
    a("s_mov_b32 s51, %d" % (447 * 3584))
    a("s_mov_b32 s54, %d" % (E4 + 2044))
    a("s_lshl_b32 s55, s32, 22")
    a("s_add_u32 s55, s55, %d" % (6144 * 512))
    a("s_load_dword s40, s[8:9], s55")
    a("s_load_dword s41, s[12:13], s48")
    a("s_load_dword s42, s[12:13], s49")
    a("s_load_dword s43, s[20:21], s50")
    a("s_load_dword s44, s[16:17], 0")
    a("s_load_dword s45, s[16:17], s51")
    a("s_load_dword s46, s[18:19], 0")
    a("s_load_dword s47, s[22:23], 0")
    a("s_load_dword s98, s[26:27], s54")
    a.label("L_notlb")
if Cfg.b0:
    a("s_barrier")
a("s_load_dwordx4 s[28:31], s[26:27], %d" % EPOCH)
srd(36, 26, WS_SIZE)
a("s_mov_b32 s%d, %d" % (S_TO, Cfg.timeout))
if Cfg.xcc:
    if Cfg.fakex:
        a("s_and_b32 s99, s33, 15")
    else:
        a("s_getreg_b32 s99, hwreg(HW_REG_XCC_ID)")
        a("s_and_b32 s99, s99, 15")
else:
    a("s_mov_b32 s99, 0")
setmask(S_ODD, 0xAAAAAAAAAAAAAAAA)
setmask(S_M4, 0xF0F0F0F0F0F0F0F0)
setmask(S_M8, 0xFF00FF00FF00FF00)
setmask(S_HI, 0xFFFFFFFF00000000)
a("v_mov_b32 v%d, 1.0" % V_ONE)
a("v_lshrrev_b32 v8, 2, v%d" % V_LANE)
a("v_lshlrev_b32 v8, 11, v8")
a("v_and_b32 v9, 3, v%d" % V_LANE)
a("v_lshl_add_u32 v%d, v9, 4, v8" % V_GA)
make_masks()
a("v_lshl_add_u32 v8, v%d, 3, v%d" % (V_GRP, V_I16))
a("v_lshlrev_b32 v%d, 4, v8" % V_PUB)
a("s_lshl_b32 s52, s32, 13")
a("s_add_u32 s52, s52, %d" % E1)
a("s_lshl_b32 s53, s33, 8")
a("s_add_u32 s53, s53, s52")
a("v_and_b32 v8, 31, v%d" % V_LANE)
a("s_lshl_b32 s63, s35, 5")
a("v_add_u32 v8, s63, v8")
a("v_lshrrev_b32 v9, 5, v%d" % V_LANE)
a("v_lshlrev_b32 v9, 12, v9")
a("v_lshl_add_u32 v24, v8, 4, v9")
a("v_and_b32 v9, 7, v8")
a("v_sub_u32 v8, v8, v9")
a("v_lshl_add_u32 v8, v8, 2, v9")
a("v_lshlrev_b32 v25, 1, v8")
a("s_cmp_lg_u32 s34, 4")
a("s_cbranch_scc1 L_notq")
a("s_add_u32 s49, s53, %d" % BOFF)
a("s_waitcnt vmcnt(14)")
stamp(1)
XF, XV, XE, XP = 152, 160, 176, 216
for k in range(4):
    a("v_lshlrev_b32 v%d, 16, v%d" % (XF + 2 * k, V_G + k))
    a("v_and_b32 v%d, 0xffff0000, v%d" % (XF + 2 * k + 1, V_G + k))
fill = []
for k in range(7):
    fill.append("v_lshlrev_b32 v%d, 16, v%d" % (XV + 2 * k, XR14 + k))
    fill.append("v_and_b32 v%d, 0xffff0000, v%d" % (XV + 2 * k + 1, XR14 + k))
s1, s2 = ln_stats([XF + k for k in range(8)], 0x3FFF3FFF3FFF3FFF, 8, fill)
ln_apply([XV + k for k in range(14)], [XE + k for k in range(14)], [XP + k for k in range(7)], s1, s2)
for t in range(14):
    a("v_cvt_pk_bf16_f32 v%d, v%d, v%d" % (XE + t, XE + t, XE + t))
make_tags()
stamp(6)
QA = V_ACC
for t in range(15):
    if t < 14:
        for rho in range(4):
            a("v_and_b32 v%d, v%d, v%d" % (BQ + 4 * t + rho, XE + t, V_M + rho))
    if t >= 1:
        u = t - 1
        a("s_waitcnt vmcnt(%d)" % (13 - u))
        a("v_mfma_f32_16x16x32_bf16 v[%d:%d], v[%d:%d], v[%d:%d], %s" % (QA, QA + 3, WQ + 4 * u, WQ + 4 * u + 3, BQ + 4 * u, BQ + 4 * u + 3, "0" if u == 0 else "v[%d:%d]" % (QA, QA + 3)))
stamp(2)
a("s_movk_i32 s63, 0xfff")
for r in range(4):
    a("v_mov_b32_dpp v%d, v%d row_ror:8%s" % (8 + r, QA + r, DPPM))
for r in range(4):
    a("v_mov_b32 v%d, v%d" % (12 + r, 8 + r))
for r in range(4):
    a("v_permlane32_swap_b32 v%d, v%d" % (8 + r, 12 + r))
for r in range(4):
    a("v_add_f32 v%d, v%d, v%d" % (12 + r, 12 + r, QA + r))
E1M = 0x3ff
for r in range(4):
    a("v_add_u32 v%d, 0x%x, v%d" % (12 + r, (E1M + 1) // 2, 12 + r))
for r in range(4):
    a("v_and_b32 v%d, 0x%x, v%d" % (12 + r, 0xffffffff ^ E1M, 12 + r))
for r in range(4):
    a("v_xor_b32 v%d, v%d, v%d" % (28 + r, 12 + r, V_T + r))
setexec(0x0000000000FF00FF)
a("v_xor_b32 v16, s99, v28")
for r in range(1, 4):
    a("v_mov_b32 v%d, v%d" % (16 + r, 28 + r))
if not Cfg.noA:
    a("buffer_store_dwordx4 v[16:19], v%d, s[36:39], s53 offen" % V_PUB)
a("buffer_store_dwordx4 v[28:31], v%d, s[36:39], s49 offen sc1" % V_PUB)
setexec(-1)
a("s_setprio 0")
stamp(3)
a("s_branch L_e1")
a.label("L_notq")
a.flush()
make_tags()
if Cfg.pretouch:
    a("s_cmp_lg_u32 s34, 5")
    a("s_cbranch_scc1 L_nopre")
    a("s_lshl_b32 s55, s32, 5")
    a("s_add_u32 s55, s55, s33")
    a("s_lshl_b32 s55, s55, 11")
    a("v_lshlrev_b32 v8, 7, v%d" % V_I16)
    a("s_add_u32 s63, s55, %d" % E2)
    a("v_add_u32 v9, s63, v8")
    a("s_add_u32 s63, s55, %d" % E3A)
    a("v_add_u32 v10, s63, v8")
    a("v_and_b32 v8, 128, v8")
    a("v_add_u32 v8, s53, v8")
    a("v_cmp_eq_u32 vcc, 1, v%d" % V_GRP)
    a("v_cndmask_b32 v9, v9, v10, vcc")
    a("v_cndmask_b32 v9, v9, v8, s[%d:%d]" % (S_HI, S_HI + 1))
    a("buffer_load_dword v26, v9, s[36:39], 0 offen sc1")
    a.label("L_nopre")
if Cfg.tlb == 1:
    a("s_cmp_lg_u32 s34, 6")
    a("s_cbranch_scc1 L_notlb")
    a("s_mul_i32 s48, s32, %d" % (512 * 896))
    a("s_add_u32 s49, s48, %d" % (511 * 896))
    a("s_mul_i32 s50, s32, %d" % (224 * 896))
    a("s_mov_b32 s51, %d" % (447 * 3584))
    a("s_mov_b32 s54, %d" % E4)
    a("v_mov_b32 v8, 0")
    setexec(1)
    srd(40, 12, 4096 * 896)
    a("buffer_load_dword v26, v8, s[40:43], s48 offen")
    a("buffer_load_dword v26, v8, s[40:43], s49 offen")
    srd(40, 20, 1792 * 896)
    a("buffer_load_dword v26, v8, s[40:43], s50 offen")
    srd(40, 16, 448 * 3584)
    a("buffer_load_dword v26, v8, s[40:43], 0 offen")
    a("buffer_load_dword v26, v8, s[40:43], s51 offen")
    srd(40, 18, 1792 * 2)
    a("buffer_load_dword v26, v8, s[40:43], 0 offen")
    srd(40, 22, 896)
    a("buffer_load_dword v26, v8, s[40:43], 0 offen")
    a("buffer_load_dword v26, v8, s[36:39], s54 offen offset:2044")
    setexec(-1)
    a.label("L_notlb")
if Cfg.cpf:
    a("s_cmp_lg_u32 s34, 7")
    a("s_cbranch_scc1 L_nocpf")
    a("s_getpc_b64 s[48:49]")
    a.label("L_pc")
    a("s_sub_u32 s48, s48, L_pc-%s_kernel" % NAME)
    a("s_subb_u32 s49, s49, 0")
    a("v_lshlrev_b32 v8, 7, v%d" % V_LANE)
    a("v_min_u32 v9, L_exit-%s_kernel-8192, v8" % NAME)
    a("global_load_dword v26, v8, s[48:49]")
    a("v_add_u32 v9, 8192, v9")
    a("global_load_dword v26, v9, s[48:49]")
    a.label("L_nocpf")
if Cfg.pace:
    a("s_sleep %d" % Cfg.e1w)
a.label("L_e1")
if not Cfg.pace:
    a("s_barrier")
sel_init(32)
P = Cfg.npipe if Cfg.pace else len(SEGS)
GS = [V_S2 + 8 * k for k in range(P)]
XC = 12
V_E0 = 27
def e1_issue(k):
    a("s_add_u32 s53, s52, s%d" % S_SEL)
    a("s_cmp_eq_u32 s%d, 0" % S_SEL)
    a("s_cselect_b32 s98, s99, 0")
    a("s_cselect_b32 s0, 0, 1")
    a("v_xor_b32 v%d, s98, v%d" % (V_E0, V_T))
    for u in range(2):
        a("buffer_load_dwordx4 v[%d:%d], v24, s[36:39], s53 offen offset:%d sc1" % (GS[k] + 4 * u, GS[k] + 4 * u + 3, 2048 * u))
    sel_step(True)
if Cfg.pace:
    for k in range(P):
        e1_issue(k)
        if k < P - 1:
            a("s_sleep %d" % Cfg.ps1)
    a.label("L_e1poll")
    for k in range(P):
        a("s_waitcnt vmcnt(%d)" % (2 * (P - 1)))
        check12(2, XC, "L_e1ok", GS[k], V_E0, E1M)
        e1_issue(k)
    a("s_branch L_e1poll")
else:
    for k in range(P):
        a("s_barrier")
        e1_issue(k)
        a("s_barrier")
    stamp(7)
    for k in range(P):
        a("s_waitcnt vmcnt(%d)" % (2 * (P - 1 - k)))
        check12(2, XC, "L_e1ok", GS[k], V_E0, E1M)
    a.label("L_e1poll")
    e1_issue(0)
    a("s_waitcnt vmcnt(0)")
    check12(2, XC, "L_e1ok", GS[0], V_E0, E1M)
    a("s_branch L_e1poll")
a.label("L_e1ok")
for r in range(4):
    a("v_add_f32 v%d, v%d, v%d" % (XC + r, XC + r, XC + 4 + r))
for r in range(4):
    a("v_mov_b32 v%d, v%d" % (XC + 4 + r, XC + r))
for r in range(4):
    a("v_permlane32_swap_b32 v%d, v%d" % (XC + r, XC + 4 + r))
for r in range(4):
    a("v_add_f32 v%d, v%d, v%d" % (XC + r, XC + r, XC + 4 + r))
a("v_cvt_pk_bf16_f32 v8, v%d, v%d" % (XC, XC + 1))
a("v_cvt_pk_bf16_f32 v9, v%d, v%d" % (XC + 2, XC + 3))
a("s_mov_b32 exec_hi, 0")
a("ds_write_b16 v25, v8 offset:%d" % (L_Q))
a("ds_write_b16_d16_hi v25, v8 offset:%d" % (L_Q + 16))
a("ds_write_b16 v25, v9 offset:%d" % (L_Q + 32))
a("ds_write_b16_d16_hi v25, v9 offset:%d" % (L_Q + 48))
setexec(-1)
if Cfg.xcc:
    a("s_cmp_eq_u32 s0, 0")
    a("s_cbranch_scc1 L_fastq")
    a("v_mov_b32 v10, 0")
    a("v_mov_b32 v11, 1")
    a("ds_write_b32 v10, v11 offset:%d" % (L_CNT + 4))
    a.label("L_fastq")
a("s_waitcnt lgkmcnt(0)")
stamp(4)
a("s_barrier")
a("s_cmp_ge_u32 s33, 30")
a("s_cbranch_scc1 L_end")
a("s_cmp_ge_u32 s33, 23")
a("s_cbranch_scc1 L_R")
a("s_cmp_ge_u32 s33, 16")
a("s_cbranch_scc1 L_F")

def poll(name, issue, nload, check, dual, sets=1, shadow=None, D=None):
    D = D or Cfg.pd
    ok = name + "_ok"
    for r in range(D):
        issue(r % sets)
        if r < D - 1 and Cfg.pds:
            a("s_sleep %d" % Cfg.pds)
    if shadow:
        shadow()
    a.label(name)
    n = sets if sets > 1 else 1
    for k in range(n):
        a("s_waitcnt vmcnt(%d)" % (nload * (D - 1)))
        check(k, ok)
        sel_step(True if dual else None)
        if not dual and Cfg.xls:
            a("s_sleep %d" % Cfg.xls)
        issue(k)
    a("s_branch %s" % name)
    a.label(ok)

def wait_cnt(n):
    lab = a.newlabel("L_wc")
    a("v_mov_b32 v5, 0")
    a.label(lab)
    a("ds_read_b32 v7, v5 offset:%d" % L_CNT)
    a("s_sub_u32 s%d, s%d, 1" % (S_TO, S_TO))
    a("s_cbranch_scc1 L_end")
    a("s_sleep 1")
    a("s_waitcnt lgkmcnt(0)")
    a("v_cmp_gt_u32 vcc, %d, v7" % n)
    a("s_cbranch_vccnz %s" % lab)

a("s_lshl_b32 s48, s33, 1")
a("s_lshr_b32 s49, s35, 1")
a("s_add_u32 s48, s48, s49")
a("s_lshl_b32 s50, s32, 9")
a("s_bfe_u32 s49, s48, 0x10001")
a("s_lshl_b32 s49, s49, 8")
a("s_add_u32 s50, s50, s49")
a("s_lshr_b32 s49, s48, 4")
a("s_lshl_b32 s49, s49, 7")
a("s_add_u32 s50, s50, s49")
a("s_bfe_u32 s49, s48, 0x20002")
a("s_lshl_b32 s49, s49, 5")
a("s_add_u32 s50, s50, s49")
a("s_and_b32 s49, s48, 1")
a("s_lshl_b32 s49, s49, 2")
a("s_add_u32 s50, s50, s49")
a("s_mul_i32 s50, s50, 896")
a("s_and_b32 s49, s35, 1")
a("s_lshl_b32 s49, s49, 9")
a("s_add_u32 s50, s50, s49")
a("v_mul_u32_u24 v6, 7168, v%d" % V_GRP)
a("v_lshl_add_u32 v6, v%d, 4, v6" % V_I16)
srd(40, 12, 4096 * 896)
a("s_lshl_b32 s54, s32, 16")
a("s_lshl_b32 s63, s48, 6")
a("s_add_u32 s54, s54, s63")
a("s_lshl_b32 s55, s32, 5")
a("s_add_u32 s55, s55, s48")
a("s_lshl_b32 s55, s55, 11")
a("s_lshl_b32 s49, s49, 1")
a("s_add_u32 s55, s55, s49")
a("s_add_u32 s52, s55, %d" % E3A)
a("s_add_u32 s53, s55, %d" % (E3A + BOFF))
a("v_cmp_lt_u32 s[6:7], 7, v%d" % V_I16)
a("v_add_u32 v4, %d, v%d" % (512 - 128, V_PUB))
a("v_cndmask_b32 v4, v%d, v4, s[6:7]" % V_PUB)
a("s_mov_b64 s[8:9], -1")
a("s_bitcmp1_b32 s35, 0")
a("s_cselect_b32 s9, 0x00ff00ff, s9")
a("s_mov_b32 s0, 0")
if Cfg.dry & 1:
    a("s_mov_b32 s0, 1")
    a("s_mov_b64 s[6:7], 0")
    a("s_branch L_e2poll_ok")
    a.label("L_odry")
    a("s_mov_b32 s0, 0")
wait_cnt(Cfg.ocnt)
if Cfg.os:
    a("s_sleep %d" % Cfg.os)
for q in range(4):
    a("buffer_load_dwordx4 v[%d:%d], v6, s[40:43], s50 offen offset:%d%s" % (V_W + 4 * q, V_W + 4 * q + 3, 896 * q, NTL))
a("s_mov_b32 exec_lo, s9")
a("s_mov_b32 exec_hi, s9")
for q in range(4):
    a("buffer_load_dwordx4 v[%d:%d], v6, s[40:43], s50 offen offset:%d%s" % (V_W + 16 + 4 * q, V_W + 16 + 4 * q + 3, 896 * q + 256, NTL))
setexec(-1)
sel_init()
stamp(1)
E2S = [V_S1 + 8 * k for k in range(Cfg.pd)]
def e2_issue(k):
    a("s_add_u32 s48, s54, s%d" % S_SEL)
    a("s_add_u32 s49, s48, %d" % (E2 + 16 * 2048))
    a("s_add_u32 s48, s48, %d" % E2)
    a("buffer_load_dwordx4 v[%d:%d], v%d, s[36:39], s48 offen sc1" % (E2S[k], E2S[k] + 3, V_GA))
    a("buffer_load_dwordx4 v[%d:%d], v%d, s[36:39], s49 offen sc1" % (E2S[k] + 4, E2S[k] + 7, V_GA))
def e2_check(k, ok):
    G = E2S[k]
    a("v_xor_b32 v10, v%d, v%d" % (G + 2, V_T8))
    a("v_xor_b32 v11, v%d, v%d" % (G + 6, V_T8))
    a("v_xor_b32 v12, v%d, v%d" % (G + 3, V_TB))
    a("v_xor_b32 v13, v%d, v%d" % (G + 7, V_TB))
    a("v_or_b32 v14, v10, v11")
    a("v_and_b32 v14, 0xff, v14")
    a("v_or3_b32 v14, v14, v12, v13")
    a("v_cmp_ne_u32 vcc, 0, v14")
    for t in range(2):
        a("v_lshlrev_b32 v%d, 16, v%d" % (16 + 4 * t, G + 4 * t))
        a("v_and_b32 v%d, 0xffff0000, v%d" % (17 + 4 * t, G + 4 * t))
        a("v_lshlrev_b32 v%d, 16, v%d" % (18 + 4 * t, G + 4 * t + 1))
        a("v_and_b32 v%d, 0xffff0000, v%d" % (19 + 4 * t, G + 4 * t + 1))
    a("s_cbranch_vccz %s" % ok)
poll("L_e2poll", e2_issue, 2, e2_check, True, sets=Cfg.pd)
stamp(5)
a("v_max_f32 v14, v10, v11")
a("v_max_f32_dpp v14, v14, v14 row_ror:8%s" % DPPM)
a("v_max_f32_dpp v14, v14, v14 row_ror:4%s" % DPPM)
bfly("v_max_f32", 14, 15, 16)
bfly("v_max_f32", 14, 15, 32)
a("v_sub_f32 v10, v10, v14")
a("v_sub_f32 v11, v11, v14")
a("v_exp_f32 v10, v10")
a("v_exp_f32 v11, v11")
a("s_movk_i32 s63, 0xfff")
for r in range(4):
    a("v_mul_f32 v%d, v%d, v10" % (16 + r, 16 + r))
a("v_add_f32 v12, v10, v11")
for r in range(4):
    a("v_fmac_f32 v%d, v%d, v11" % (16 + r, 20 + r))
a("v_add_f32_dpp v12, v12, v12 row_ror:8%s" % DPPM)
a("v_add_f32_dpp v12, v12, v12 row_ror:4%s" % DPPM)
a("v_mfma_f32_16x16x4_f32 v[%d:%d], v12, v%d, 0" % (V_ACC + 4, V_ACC + 7, V_ONE))
reduce16([16, 17, 18, 19], 13)
a("v_mfma_f32_16x16x4_f32 v[%d:%d], v13, v%d, 0" % (V_ACC, V_ACC + 3, V_ONE))
a("v_rcp_f32 v12, v%d" % (V_ACC + 4))
for r in range(4):
    a("v_mul_f32 v%d, v%d, v12" % (16 + r, V_ACC + r))
for r in range(4):
    a("v_cvt_pk_bf16_f32 v%d, v%d, v%d" % (16 + r, 16 + r, 16 + r))
A2 = V_ACC + 8
BB = V_BB
def omf(qq):
    for b in range(2):
        a("v_mfma_f32_16x16x32_bf16 v[%d:%d], v[%d:%d], v[%d:%d], %s" % (A2 + 4 * b, A2 + 4 * b + 3, V_W + 16 * b + 4 * qq, V_W + 16 * b + 4 * qq + 3, BB + 4 * qq, BB + 4 * qq + 3, "0" if qq == 0 else "v[%d:%d]" % (A2 + 4 * b, A2 + 4 * b + 3)))
for q in range(4):
    for rho in range(4):
        a("v_and_b32 v%d, v%d, v%d" % (BB + 4 * q + rho, 16 + q, V_M + rho))
    if q >= 1:
        omf(q - 1)
omf(3)
for r in range(4):
    a("v_cndmask_b32 v%d, v%d, v%d, s[6:7]" % (24 + r, A2 + r, A2 + 4 + r))
tag12(28, 24)
if Cfg.dry & 1:
    a("s_cmp_eq_u32 s0, 1")
    a("s_cbranch_scc1 L_odry")
a("s_mov_b64 exec, s[8:9]")
if not Cfg.noA:
    a("buffer_store_dwordx4 v[28:31], v4, s[36:39], s52 offen")
stamp(6)
bdefer()
skip_if_local(8, "L_end")
if not Cfg.noB:
    a("buffer_store_dwordx4 v[28:31], v4, s[36:39], s53 offen sc1")
setexec(-1)
if Cfg.w2l:
    a("s_lshl_b32 s48, s33, 2")
    a("s_add_u32 s48, s48, s35")
    a("s_mul_i32 s48, s48, %d" % (25 * 128))
    a("s_mul_i32 s63, s32, %d" % (224 * 896))
    a("s_add_u32 s48, s48, s63")
    a("v_lshlrev_b32 v24, 7, v%d" % V_LANE)
    srd(40, 20, 1792 * 896)
    setexec(0x1ffffff)
    a("buffer_load_dword v250, v24, s[40:43], s48 offen")
a("s_branch L_end")

a.label("L_R")
a.flush()
a("s_sub_u32 s50, s33, 23")
a("s_lshl_b32 s52, s50, 2")
a("s_add_u32 s52, s52, s35")
a("s_lshl_b32 s54, s32, 16")
a("s_lshl_b32 s63, s52, 6")
a("s_add_u32 s54, s54, s63")
a("s_mul_i32 s53, s52, %d" % Cfg.ss)
a("s_add_u32 s53, s53, %d" % E3X)
a("s_lshl_b32 s51, s32, 12")
a("s_add_u32 s51, s51, s53")
a("s_lshl_b32 s55, s32, 11")
a("s_lshl_b32 s63, s52, 6")
a("s_add_u32 s55, s55, s63")
a("s_add_u32 s55, s55, %d" % E3L)
a("v_lshlrev_b32 v4, 4, v%d" % V_GRP)
a("s_lshr_b32 s63, s52, 1")
a("s_lshl_b32 s63, s63, 6")
a("s_and_b32 s48, s52, 1")
a("s_lshl_b32 s48, s48, 3")
a("s_add_u32 s63, s63, s48")
a("v_lshl_add_u32 v%d, v%d, 4, s63" % (V_XA, V_GRP))
srd(44, 4, 896)
a("buffer_load_dwordx2 v[%d:%d], v%d, s[44:47], 0 offen" % (V_X + 1, V_X + 2, V_XA))
a("v_and_b32 v8, 7, v%d" % V_I16)
a("v_lshlrev_b32 v8, 12, v8")
a("v_lshl_add_u32 v%d, v%d, 4, v8" % (V_LW, V_GRP))
if Cfg.rpf:
    a("s_mul_i32 s48, s32, %d" % (224 * 896))
    a("s_mul_i32 s63, s52, %d" % (56 * 128))
    a("s_add_u32 s48, s48, s63")
    a("s_mul_i32 s49, s32, 448")
    a("s_mul_i32 s63, s52, %d" % (16 * 3584))
    a("s_add_u32 s49, s49, s63")
    a("v_lshrrev_b32 v25, 2, v%d" % V_LANE)
    a("v_mul_u32_u24 v25, 3584, v25")
    a("v_and_b32 v26, 3, v%d" % V_LANE)
    a("v_mul_u32_u24 v26, 148, v26")
    a("v_add_u32 v25, v25, v26")
    a("v_lshlrev_b32 v24, 7, v%d" % V_LANE)
    srd(40, 16, 448 * 3584)
    srd(8, 20, 1792 * 896)
wait_cnt(6)
if Cfg.rpf:
    a("buffer_load_dword v250, v25, s[40:43], s49 offen")
    a("s_mov_b32 exec_hi, 0x00ffffff")
    a("buffer_load_dword v250, v24, s[8:11], s48 offen")
    setexec(-1)
sel_init()
if Cfg.rs:
    a("s_sleep %d" % Cfg.rs)
def e3a_issue(k):
    a("s_add_u32 s48, s54, s%d" % S_SEL)
    a("s_add_u32 s49, s48, %d" % (E3A + 16 * 2048))
    a("s_add_u32 s48, s48, %d" % E3A)
    a("buffer_load_dwordx4 v[%d:%d], v%d, s[36:39], s48 offen sc1" % (V_S2, V_S2 + 3, V_GA))
    a("buffer_load_dwordx4 v[%d:%d], v%d, s[36:39], s49 offen sc1" % (V_S2 + 4, V_S2 + 7, V_GA))
poll("L_e3apoll", e3a_issue, 2, lambda k, ok: check12(2, 12, ok, V_S2), True)
stamp(7)
for r in range(4):
    a("v_add_f32 v%d, v%d, v%d" % (12 + r, 12 + r, 16 + r))
reduce16([12, 13, 14, 15], 9)
a("v_mfma_f32_16x16x4_f32 v[%d:%d], v9, v%d, 0" % (V_ACC, V_ACC + 3, V_ONE))
a("s_movk_i32 s63, 0xfff")
setexec(0x0001000100010001)
tag12(28, V_ACC)
a("buffer_store_dwordx4 v[28:31], v4, s[36:39], s51 offen sc1")
if Cfg.lh:
    a("buffer_store_dwordx4 v[28:31], v4, s[36:39], s55 offen")
setexec(-1)
stamp(8)
a("s_cmp_lg_u32 s50, s32")
a("s_cbranch_scc1 L_end")
a.label("L_hpoll")
a("s_sleep 2")
a("buffer_load_dwordx4 v[%d:%d], v%d, s[36:39], s53 offen sc1" % (V_G, V_G + 3, V_LW))
a("s_waitcnt vmcnt(0)")
check12(1, 12, "L_hok")
retry("L_hpoll", False)
a.label("L_hok")
stamp(9)
for pat in ("quad_perm:[1,0,3,2]", "quad_perm:[2,3,0,1]", "row_half_mirror"):
    for r in range(4):
        a("v_add_f32_dpp v%d, v%d, v%d %s%s" % (12 + r, 12 + r, 12 + r, pat, DPPM))
for r in range(4):
    a("v_mov_b32 v%d, v%d" % (V_ACC + r, 12 + r))
a("v_lshlrev_b32 v%d, 16, v%d" % (V_X, V_X + 1))
a("v_and_b32 v%d, 0xffff0000, v%d" % (V_X + 1, V_X + 1))
a("v_and_b32 v%d, 0xffff0000, v%d" % (V_X + 3, V_X + 2))
a("v_lshlrev_b32 v%d, 16, v%d" % (V_X + 2, V_X + 2))
def round_add_round(src, add):
    a("v_cvt_pk_bf16_f32 v10, v%d, v%d" % (src, src + 1))
    a("v_cvt_pk_bf16_f32 v11, v%d, v%d" % (src + 2, src + 3))
    a("v_lshlrev_b32 v12, 16, v10")
    a("v_and_b32 v13, 0xffff0000, v10")
    a("v_lshlrev_b32 v14, 16, v11")
    a("v_and_b32 v15, 0xffff0000, v11")
    for r in range(4):
        a("v_add_f32 v%d, v%d, v%d" % (12 + r, 12 + r, add + r))
    a("v_cvt_pk_bf16_f32 v10, v12, v13")
    a("v_cvt_pk_bf16_f32 v11, v14, v15")
round_add_round(V_ACC, V_X)
a("v_lshlrev_b32 v%d, 16, v10" % (V_X))
a("v_and_b32 v%d, 0xffff0000, v10" % (V_X + 1))
a("v_lshlrev_b32 v%d, 16, v11" % (V_X + 2))
a("v_and_b32 v%d, 0xffff0000, v11" % (V_X + 3))
a("s_lshl_b32 s48, s52, 6")
a("s_add_u32 s48, s48, %d" % E4)
for t in range(1, 4):
    a("s_add_u32 s%d, s48, %d" % (48 + t, t * 16 * 2048))
for r in range(4):
    a("v_mov_b32 v%d, v%d" % (V_G + 12 + r, V_T + r))
srd(44, 22, 896)
if Cfg.e4s:
    a("s_sleep %d" % Cfg.e4s)
XR = V_S1
def e4_issue(k):
    for t in range(4):
        if t == 3:
            a("s_mov_b32 exec_hi, 0")
        a("buffer_load_dwordx4 v[%d:%d], v%d, s[36:39], s%d offen sc1" % (V_G + 4 * t, V_G + 4 * t + 3, V_GA, 48 + t))
    setexec(-1)
poll("L_e4poll", e4_issue, 4, lambda k, ok: check12(4, XR, ok), False, D=Cfg.pd4)
stamp(10)
for r in range(4):
    a("v_add_f32 v%d, v%d, v%d" % (XR + r, XR + r, XR + 4 + r))
    a("v_add_f32 v%d, v%d, v%d" % (XR + 8 + r, XR + 8 + r, XR + 12 + r))
for r in range(4):
    a("v_add_f32 v%d, v%d, v%d" % (XR + r, XR + r, XR + 8 + r))
reduce16([XR, XR + 1, XR + 2, XR + 3], 9)
a("v_mfma_f32_16x16x4_f32 v[%d:%d], v9, v%d, 0" % (V_ACC, V_ACC + 3, V_ONE))
round_add_round(V_ACC, V_X)
setexec(0x0001000100010001)
a("buffer_store_dwordx2 v[10:11], v%d, s[44:47], 0 offen" % V_XA)
a("s_cmp_lg_u32 s52, 0")
a("s_cbranch_scc1 L_noep")
setexec(1)
a("v_mov_b32 v9, 0")
for k in range(4):
    a("v_mov_b32 v%d, s%d" % (12 + k, 28 + k))
a("buffer_store_dwordx4 v[12:15], v9, s[36:39], 0 offen offset:%d" % EPOCH)
a.label("L_noep")
setexec(-1)
stamp(14)
a("s_branch L_end")

a.label("L_F")
a.flush()
a("s_mul_i32 s50, s32, 7")
a("s_add_u32 s50, s50, s33")
a("s_sub_u32 s50, s50, 16")
a("s_lshl_b32 s51, s50, 2")
a("s_add_u32 s51, s51, s35")
a("v_lshrrev_b32 v8, 3, v%d" % V_I16)
a("v_sub_u32 v8, v%d, v8" % V_I16)
a("v_min_u32 v8, 13, v8")
a("v_lshlrev_b32 v8, 6, v8")
a("v_lshl_add_u32 v23, v%d, 4, v8" % V_GRP)
if Cfg.lin:
    setexec(0x8080808080808080)
    a("v_mov_b32 v23, 896")
    for k in range(4):
        a("v_mov_b32 v%d, 0" % (12 + k))
    a("ds_write_b128 v23, v[12:15] offset:%d" % L_H)
    setexec(-1)
a("v_bfe_u32 v8, v%d, 2, 3" % V_LANE)
a("v_min_u32 v8, 6, v8")
a("v_and_b32 v9, 3, v%d" % V_LANE)
a("v_mul_u32_u24 v10, %d, v8" % Cfg.ss)
a("v_lshl_add_u32 v10, v9, 4, v10")
a("v_lshrrev_b32 v11, 5, v%d" % V_LANE)
a("v_lshl_add_u32 v%d, v11, 12, v10" % V_XA)
a("s_mul_i32 s63, s35, 7")
a("v_add_u32 v8, s63, v8")
a("v_lshrrev_b32 v10, 1, v8")
a("v_lshlrev_b32 v10, 6, v10")
a("v_and_b32 v8, 1, v8")
a("v_lshl_add_u32 v10, v8, 3, v10")
a("v_lshl_add_u32 v24, v9, 4, v10")
a("v_and_b32 v10, 1, v%d" % V_GRP)
a("v_and_b32 v11, 1, v%d" % V_I16)
a("v_lshlrev_b32 v25, 2, v10")
a("v_and_b32 v26, 2, v%d" % V_GRP)
a("v_add_u32 v25, v25, v26")
a("v_mul_u32_u24 v26, 896, v25")
a("v_lshl_add_u32 v26, v%d, 4, v26" % V_I16)
a("v_add_u32 v25, v25, v11")
a("v_lshlrev_b32 v25, 1, v25")
a("v_bfe_u32 v27, v%d, 1, 1" % V_I16)
a("v_mul_u32_u24 v27, %d, v27" % (224 * 64))
a("v_lshl_add_u32 v27, v%d, 9, v27" % V_GRP)
a("v_lshrrev_b32 v12, 2, v%d" % V_I16)
a("v_lshl_add_u32 v27, v12, 6, v27")
a("v_lshl_add_u32 v27, v11, 3, v27")
a("s_lshl_b32 s63, s35, 4")
a("v_add_u32 v%d, s63, v27" % V_W1A)
a("v_lshrrev_b32 v27, 2, v%d" % V_LANE)
a("v_mul_u32_u24 v27, 3584, v27")
a("v_and_b32 v12, 3, v%d" % V_LANE)
a("v_lshl_add_u32 v27, v12, 4, v27")
a("s_lshl_b32 s63, s35, 11")
a("v_lshl_add_u32 v%d, v%d, 4, s63" % (V_LW, V_LANE))
srd(40, 16, 448 * 3584)
srd(44, 20, 1792 * 896)
srd(8, 4, 896)
srd(12, 18, 1792 * 2)
a("s_mul_i32 s52, s35, %d" % (112 * 3584))
a("s_lshl_b32 s63, s50, 6")
a("s_add_u32 s52, s52, s63")
a("s_mul_i32 s53, s35, 7168")
a("s_add_u32 s53, s53, %d" % L_W1)
a("s_mul_i32 s54, s51, %d" % (8 * 896))
a("s_lshl_b32 s55, s51, 4")
a("s_mul_i32 s24, s35, %d" % (7 * Cfg.ss))
a("s_add_u32 s24, s24, %d" % E3X)
a("s_add_u32 s25, s24, 8192")
a("s_add_u32 s26, s24, 16384")
a("s_add_u32 s27, s24, 24576")
a("s_mov_b32 s6, %d" % (16 * 3584))
a("s_movk_i32 s7, 1024")
if Cfg.zig:
    a("s_bitcmp1_b32 s50, 0")
    a("s_cbranch_scc0 L_nozig")
    a("s_add_u32 s52, s52, %d" % (6 * 16 * 3584))
    a("s_add_u32 s53, s53, 6144")
    a("s_mov_b32 s6, %d" % (-16 * 3584))
    a("s_movk_i32 s7, -1024")
    a.label("L_nozig")
def w1_loads():
    for t in range(7):
        a("s_mov_b32 m0, s53")
        a("buffer_load_dwordx4 v27, s[40:43], s52 offen%s lds" % NTW)
        if t < 6:
            a("s_add_u32 s52, s52, s6")
            a("s_add_u32 s53, s53, s7")
def w2_loads():
    for b in range(4):
        if b == 3:
            setexec(0x00FF00FF00FF00FF)
        for q in range(2):
            a("buffer_load_dwordx4 v[%d:%d], v26, s[44:47], s54 offen offset:%d%s" % (V_W + 8 * b + 4 * q, V_W + 8 * b + 4 * q + 3, 896 * q + 256 * b, NTL))
    setexec(-1)
def small_loads():
    a("buffer_load_dwordx2 v[%d:%d], v24, s[8:11], 0 offen" % (V_X + 1, V_X + 2))
    a("buffer_load_ushort v%d, v25, s[12:15], s55 offen" % V_B1)
if Cfg.w2e:
    w2_loads()
    small_loads()
wait_cnt(Cfg.fcnt)
if Cfg.fs:
    a("s_sleep %d" % Cfg.fs)
stamp(1)
if Cfg.w2e:
    w1_loads()
else:
    if not Cfg.w2first:
        w1_loads()
    if not Cfg.w2l:
        w2_loads()
    if Cfg.w2first:
        w1_loads()
    small_loads()
a("s_lshl_b32 s48, s50, 11")
a("s_lshl_b32 s63, s35, 10")
a("s_add_u32 s48, s48, s63")
a("s_add_u32 s48, s48, %d" % E4)
a("v_cmp_lt_u32 s[6:7], 7, v%d" % V_I16)
a("v_add_u32 v4, %d, v%d" % (512 - 128, V_PUB))
a("v_cndmask_b32 v4, v%d, v4, s[6:7]" % V_PUB)
a("s_lshl_b32 s63, s35, 10")
a("v_lshl_add_u32 v21, v%d, 4, s63" % V_LANE)
D1 = V_S2
V_CS = 251
def ffn1(AF, dst, fill=()):
    fill = list(fill)
    def f(n):
        for _ in range(n):
            if fill:
                a(fill.pop(0))
    for m in range(7):
        a("v_mfma_f32_16x16x32_bf16 v[%d:%d], v[%d:%d], v[%d:%d], 0" % (D1 + 4 * m, D1 + 4 * m + 3, AF, AF + 3, V_W1F + 4 * m, V_W1F + 4 * m + 3))
    return
def ffn1_tail(dst, t):
    a("v_mov_b32 v%d, 0" % dst)
    setexec(0x0000FF00000000FF)
    a("v_add_f32 v%d, v%d, v%d" % (dst, D1 + 0, D1 + 4 + 1))
    a("v_add_f32 v%d, v%d, v%d" % (t, D1 + 8 + 2, D1 + 12 + 3))
    a("v_add_f32 v%d, v%d, v%d" % (dst, dst, t))
    setexec(0xFF00000000FF0000)
    a("v_add_f32 v%d, v%d, v%d" % (dst, D1 + 16, D1 + 20 + 1))
    a("v_add_f32 v%d, v%d, v%d" % (dst, dst, D1 + 24 + 2))
    setexec(-1)
    a("v_add_f32_dpp v%d, v%d, v%d row_ror:8%s" % (dst, dst, dst, DPPM))
    a("v_mfma_f32_16x16x4_f32 v[%d:%d], v%d, v%d, 0" % (V_ACC, V_ACC + 3, dst, V_ONE))
def ffn1_sel(dst, t):
    a("v_cndmask_b32 v%d, v%d, v%d, s[%d:%d]" % (dst, V_ACC, V_ACC + 1, S_ODD, S_ODD + 1))
    a("v_cndmask_b32 v%d, v%d, v%d, s[%d:%d]" % (t, V_ACC + 2, V_ACC + 3, S_ODD, S_ODD + 1))
    a("v_cndmask_b32 v%d, v%d, v%d, s[%d:%d]" % (dst, dst, t, S_HI, S_HI + 1))
AF = 176
def e3x_issue(k):
    for t in range(4):
        a("buffer_load_dwordx4 v[%d:%d], v%d, s[36:39], s%d offen sc1" % (V_G + 4 * t, V_G + 4 * t + 3, V_XA, 24 + t))
a("v_min_u32 v22, 27, v%d" % V_LANE)
a("v_lshlrev_b32 v22, 4, v22")
a("s_lshl_b32 s49, s32, 11")
a("s_mul_i32 s63, s35, 448")
a("s_add_u32 s49, s49, s63")
a("s_add_u32 s49, s49, %d" % E3L)
a("s_mov_b32 s1, %d" % Cfg.bthr)
if Cfg.lh2:
    a("buffer_load_dwordx4 v[%d:%d], v22, s[36:39], s49 offen sc1" % (V_G, V_G + 3))
    a("s_waitcnt vmcnt(0)")
    stamp(5)
    check12(1, XR, "L_lh1")
    a("s_branch L_lh2")
    a.label("L_lh1")
    e3x_issue(0)
    a("s_mov_b32 s1, -1")
    a.label("L_lh2")
    a("s_barrier")
elif not Cfg.e3e:
    a("s_waitcnt vmcnt(0)")
    stamp(5)
    a("s_barrier")
def f_shadow():
    if Cfg.e3e:
        a("s_waitcnt vmcnt(%d)" % (4 * Cfg.pd))
        stamp(5)
        a("s_barrier")
    for m in range(7):
        for u in range(2):
            a("ds_read_b64_tr_b16 v[%d:%d], v%d offset:%d" % (V_W1F + 4 * m + 2 * u, V_W1F + 4 * m + 2 * u + 1, V_W1A, L_W1 + 2048 * m + 256 * u))
    a("v_lshlrev_b32 v%d, 16, v%d" % (V_B1, V_B1))
    a("v_lshlrev_b32 v%d, 16, v%d" % (V_X, V_X + 1))
    a("v_and_b32 v%d, 0xffff0000, v%d" % (V_X + 1, V_X + 1))
    a("v_and_b32 v%d, 0xffff0000, v%d" % (V_X + 3, V_X + 2))
    a("v_lshlrev_b32 v%d, 16, v%d" % (V_X + 2, V_X + 2))
    if Cfg.lin:
        for k in range(4):
            a("v_mov_b32 v%d, 0x3f803f80" % (AF + k))
        a("s_waitcnt lgkmcnt(0)")
        ffn1(AF, V_CS)
        ffn1_tail(V_CS, 9)
        ffn1_sel(V_CS, 9)
if Cfg.lh:
    f_shadow()
    if Cfg.lh2:
        a("s_cmp_eq_u32 s1, -1")
        a("s_cbranch_scc1 L_e3xpoll")
    a.label("L_lh")
    a("buffer_load_dwordx4 v[%d:%d], v22, s[36:39], s49 offen sc1" % (V_G, V_G + 3))
    a("s_sub_u32 s1, s1, 1")
    a("s_cbranch_scc1 L_lhok")
    a("s_waitcnt vmcnt(0)")
    check12(1, XR, "L_lhok")
    a("s_branch L_lh")
    a.label("L_lhok")
    if Cfg.xs:
        a("s_sleep %d" % Cfg.xs)
    assert Cfg.pdx == 1 or not Cfg.lh2
    poll("L_e3xpoll", e3x_issue, 4, lambda k, ok: check12(4, XR, ok), False, D=Cfg.pdx)
else:
    poll("L_e3xpoll", e3x_issue, 4, lambda k, ok: check12(4, XR, ok), False, shadow=f_shadow)
stamp(9)
if Cfg.w2l:
    w2_loads()
for r in range(4):
    a("v_add_f32 v%d, v%d, v%d" % (XR + r, XR + r, XR + 4 + r))
    a("v_add_f32 v%d, v%d, v%d" % (XR + 8 + r, XR + 8 + r, XR + 12 + r))
for r in range(4):
    a("v_add_f32 v%d, v%d, v%d" % (XR + r, XR + r, XR + 8 + r))
for r in range(4):
    a("v_mov_b32 v%d, v%d" % (XR + 4 + r, XR + r))
for r in range(4):
    a("v_permlane32_swap_b32 v%d, v%d" % (XR + r, XR + 4 + r))
for r in range(4):
    a("v_add_f32 v%d, v%d, v%d" % (XR + r, XR + r, XR + 4 + r))
round_add_round(XR, V_X)
a("ds_write_b64 v24, v[10:11] offset:%d" % L_H)
a("s_waitcnt lgkmcnt(0)")
a("s_barrier")
stamp(10)
PR = V_S1
if Cfg.lin:
    a("ds_read_b128 v[%d:%d], v23 offset:%d" % (AF, AF + 3, L_H))
    a("s_waitcnt lgkmcnt(0)")
    ffn1(AF, 22)
    for k in range(4):
        a("v_lshlrev_b32 v%d, 16, v%d" % (PR + 2 * k, AF + k))
        a("v_and_b32 v%d, 0xffff0000, v%d" % (PR + 2 * k + 1, AF + k))
    ffn1_tail(22, 20)
    s1, s2 = ln_stats([PR + k for k in range(8)], 0x7F7F7F7F7F7F7F7F, 5)
    ffn1_sel(22, 20)
    bf16r(s2, s2)
    a("v_rcp_f32 v%d, v%d" % (s2, s2))
    a("v_fma_f32 v8, -v%d, v%d, v22" % (s1, V_CS))
    a("s_mov_b32 s63, %s" % f32(-LOG2E))
    a("v_mul_f32 v8, v8, v%d" % s2)
else:
    a("ds_read_b128 v[%d:%d], v23 offset:%d" % (PR + 8, PR + 11, L_H))
    a("s_waitcnt lgkmcnt(0)")
    for k in range(4):
        a("v_lshlrev_b32 v%d, 16, v%d" % (PR + 2 * k, PR + 8 + k))
        a("v_and_b32 v%d, 0xffff0000, v%d" % (PR + 2 * k + 1, PR + 8 + k))
    layernorm([PR + k for k in range(8)], AF, 0x7F7F7F7F7F7F7F7F, 5)
    ffn1(AF, 8)
    ffn1_tail(8, 9)
    a("s_mov_b32 s63, %s" % f32(-LOG2E))
    ffn1_sel(8, 9)
bf16r(8, 8)
a("v_add_f32 v8, v8, v%d" % V_B1)
bf16r(8, 8)
if Cfg.fmish:
    a("v_mul_f32 v9, s63, abs(v8)")
    a("v_exp_f32 v9, v9")
    a("v_cmp_gt_f32 vcc, 0, v8")
    a("v_mul_f32 v10, v9, v9")
    a("v_cndmask_b32 v11, 1.0, v10, vcc")
    a("v_cndmask_b32 v12, v10, 1.0, vcc")
    a("v_fma_f32 v11, 2.0, v9, v11")
    a("v_fma_f32 v12, 2.0, v12, v11")
    a("v_rcp_f32 v12, v12")
    a("v_mul_f32 v14, v11, v12")
else:
    a("v_mul_f32 v9, s63, abs(v8)")
    a("v_exp_f32 v9, v9")
    a("v_max_f32 v17, 0, v8")
    bf16r(9, 9)
    a("v_add_f32 v10, 1.0, v9")
    a("v_add_f32 v11, -1.0, v10")
    a("v_log_f32 v12, v10")
    a("v_rcp_f32 v13, v11")
    a("v_cmp_eq_f32 vcc, 0, v11")
    a("v_mul_f32 v12, %s, v12" % f32(0.6931471805599453))
    a("v_mul_f32 v13, v13, v9")
    a("v_mul_f32 v12, v12, v13")
    a("v_cndmask_b32 v12, v12, v9, vcc")
    bf16r(12, 12)
    a("v_add_f32 v12, v12, v17")
    bf16r(12, 12)
    a("v_mul_f32 v13, %s, v12" % f32(-2.0 * LOG2E))
    a("v_exp_f32 v13, v13")
    a("v_mul_f32 v16, v12, v12")
    a("v_add_f32 v14, 1.0, v13")
    a("v_sub_f32 v15, 1.0, v13")
    a("v_rcp_f32 v14, v14")
    a("v_mul_f32 v16, %s, v16" % f32(-1.0 / 3.0))
    a("v_cmp_gt_f32 vcc, %s, v12" % f32(2.0 ** -6))
    a("v_fma_f32 v16, v16, v12, v12")
    a("v_mul_f32 v14, v14, v15")
    a("v_cndmask_b32 v14, v14, v16, vcc")
    bf16r(14, 14)
a("v_mul_f32 v14, v14, v8")
a("v_cvt_pk_bf16_f32 v14, v14, v14")
a("s_movk_i32 s63, 0xfff")
for q in range(2):
    for rho in range(4):
        a("v_and_b32_dpp v%d, v14, v%d quad_perm:[%d,%d,%d,%d]%s" % (BB + 4 * q + rho, V_M + rho, q, q, 2 + q, 2 + q, DPPM))
if Cfg.w2l:
    stamp(12)
    a("s_waitcnt vmcnt(0)")
for q in range(2):
    for b in range(4):
        a("v_mfma_f32_16x16x32_bf16 v[%d:%d], v[%d:%d], v[%d:%d], %s" % (V_ACC + 4 * b, V_ACC + 4 * b + 3, V_W + 8 * b + 4 * q, V_W + 8 * b + 4 * q + 3, BB + 4 * q, BB + 4 * q + 3, "0" if q == 0 else "v[%d:%d]" % (V_ACC + 4 * b, V_ACC + 4 * b + 3)))
setexec(0x00FF00FF00FF00FF)
a("ds_write_b128 v%d, v[%d:%d] offset:%d" % (V_LW, V_ACC, V_ACC + 3, L_F))
a("s_not_b64 exec, exec")
a("ds_write_b128 v%d, v[%d:%d] offset:%d" % (V_LW, V_ACC + 4, V_ACC + 7, L_F))
a("s_not_b64 exec, exec")
a("ds_write_b128 v%d, v[%d:%d] offset:%d" % (V_LW, V_ACC + 8, V_ACC + 11, L_F + 1024))
a("s_not_b64 exec, exec")
a("ds_write_b128 v%d, v[%d:%d] offset:%d" % (V_LW, V_ACC + 12, V_ACC + 15, L_F + 1024))
setexec(-1)
a("s_waitcnt lgkmcnt(0)")
stamp(13)
a("s_barrier")
a("s_cmp_ge_u32 s35, 2")
a("s_cbranch_scc1 L_end")
for w in range(4):
    a("ds_read_b128 v[%d:%d], v21 offset:%d" % (PR + 4 * w, PR + 4 * w + 3, L_F + 2048 * w))
a("s_cmp_eq_u32 s35, 1")
a("s_cselect_b32 exec_hi, 0x00ff00ff, -1")
a("s_waitcnt lgkmcnt(0)")
for r in range(4):
    a("v_add_f32 v%d, v%d, v%d" % (PR + r, PR + r, PR + 4 + r))
    a("v_add_f32 v%d, v%d, v%d" % (PR + 8 + r, PR + 8 + r, PR + 12 + r))
for r in range(4):
    a("v_add_f32 v%d, v%d, v%d" % (PR + r, PR + r, PR + 8 + r))
tag12(28, PR)
a("buffer_store_dwordx4 v[28:31], v4, s[36:39], s48 offen sc1")
setexec(-1)
stamp(14)
a.label("L_end")
if Cfg.stamps:
    setexec(-1)
    stamp(15)
    a("s_waitcnt lgkmcnt(0)")
    a("s_lshl_b32 s48, s2, 3")
    a("s_add_u32 s48, s48, s34")
    a("s_lshl_b32 s48, s48, 6")
    a("s_add_u32 s48, s48, %d" % STAMP)
    a("v_mov_b32 v9, 0")
    setexec(1)
    for i in range(0 if getattr(Cfg, "nost", False) else 16):
        a("v_mov_b32 v10, s%d" % (64 + 2 * i))
        a("buffer_store_dword v10, v9, s[36:39], s48 offen offset:%d" % (4 * i))
    if Cfg.dbgwg >= 0:
        a("s_cmp_lg_u32 s2, %d" % Cfg.dbgwg)
        a("s_cbranch_scc1 L_exit")
        a("s_cmp_lg_u32 s34, %d" % Cfg.dbgwave)
        a("s_cbranch_scc1 L_exit")
        if Cfg.spin:
            a.label("L_spin")
            a("s_memrealtime s[94:95]")
            a("s_waitcnt lgkmcnt(0)")
            a("s_sub_u32 s63, s94, s64")
            a("s_cmp_lt_u32 s63, %d" % Cfg.spin)
            a("s_cbranch_scc1 L_spin")
        srd(44, 24, 256)
        for i in range(16):
            a("s_sub_u32 s63, s%d, s64" % (64 + 2 * i))
            a("s_cmp_eq_u32 s%d, 0" % (64 + 2 * i))
            a("s_cselect_b32 s63, 0, s63")
            a("v_mov_b32 v10, s63")
            a("buffer_store_dword v10, v9, s[44:47], 0 offen offset:%d" % (4 * i))
a.label("L_exit")
a("s_endpgm")
a.raw('''.section .rodata,"a"
.p2align 6
.amdhsa_kernel %s_kernel
  .amdhsa_next_free_vgpr %d
  .amdhsa_next_free_sgpr 100
  .amdhsa_accum_offset %d
  .amdhsa_group_segment_fixed_size 0
  .amdhsa_kernarg_size 96
  .amdhsa_user_sgpr_count 2
  .amdhsa_user_sgpr_kernarg_segment_ptr 1
  .amdhsa_system_sgpr_workgroup_id_x 1
  .amdhsa_float_denorm_mode_32 3
.end_amdhsa_kernel''' % (NAME, NVGPR, NVGPR))
open(sys.argv[1], "w").write(a.text())
```

```python
import sys, struct
from asmlib import Asm
NAME = "sequential_preLN__sliding_block_cached__dense_activation_mish__decode"

class Cfg:
    stamps = False
    nt = True
    ntw = False
    timeout = 200000
    ocnt = 0
    vs = 0
    nearly = 7
    pfat = 1
    n1 = 10
    pf = False
    cpf = True
    ntl = True
    depth = 0
    ss = 128
    forceB = False
    pretouch = True
    fs = 0
    tlb = 0
    bthr = 64
    b0 = True
    npipe = 3
    ps0 = 0
    ps1 = 4
    kpat = 0
    kdma = True
    pd = 1
    pds = 2
    fpf = False
    prio = True
    xls = 0
    pace = 0
    e1w = 20
    fcnt = 6
    w2l = False
    pdx = 1
    pd4 = 1
    zig = True
    w2first = True
    w2e = True
    bd = 0
    xcc = True
    fakex = False
    fmish = True
    noA = False
    nost = False
    noB = False
    dry = 0
    lh2 = False
    lh = True
    e3e = False
    lin = True
    rpf = False
    rs = 0
    os = 0
    ka = 3
    kb = 0
    kc = 0
    p1 = 13
    p2 = 15
    bq = True
    kpre = 0
    sp = True
    k0 = 9
    xs = 0
    e4s = 0
    rnd = True
    dbgwg = -1
    dbgwave = 0
    spin = 0
for arg in sys.argv[2:]:
    k, v = arg.split('=')
    setattr(Cfg, k, type(getattr(Cfg, k))(int(v)))

NT = " nt" if Cfg.nt else ""
NTW = " nt" if Cfg.ntw else ""
NTQ = NT
NTL = " nt" if Cfg.ntl else ""
EPOCH = 0x0
E3X = 0x1000
E3L = 0x9000
E1 = 0x10000
E2 = 0x20000
E3A = 0xA0000
BOFF = 0x120000
E4 = 0x240000
STAMP = 0x300000
WS_SIZE = 0x400000
L_Q = 0
L_ML = 1024
L_CNT = 3072
L_H = 3136
L_O = 4096
L_F = L_O
L_K = 12288
L_W1 = L_K
LDS_BYTES = 45056

LOG2E = 1.4426950408889634
def f32(x):
    return "0x%08x" % struct.unpack('<I', struct.pack('<f', x))[0]

a = Asm()
a.raw("""; Single persistent launch, 256 workgroups (one per CU) x 8 waves; written with a small generator script.
; copies are written and polled, so any placement is correct.""")
a.raw("; @launch grid=(256,1,1) block=(512,1,1) lds=%d" % LDS_BYTES)
a.raw('.amdgcn_target "amdgcn-amd-amdhsa--gfx950"\n.text\n.globl %s_kernel\n.p2align 8\n.type %s_kernel,@function\n%s_kernel:' % (NAME, NAME, NAME))

DPPM = " row_mask:0xf bank_mask:0xf"
def stamp(i):
    if Cfg.stamps:
        a("s_memrealtime s[%d:%d]" % (64 + 2 * i, 65 + 2 * i))

def srd(dst, ptr, nbytes):
    a("s_mov_b32 s%d, s%d" % (dst, ptr))
    a("s_and_b32 s%d, s%d, 0xffff" % (dst + 1, ptr + 1))
    a("s_mov_b32 s%d, %d" % (dst + 2, nbytes))
    a("s_mov_b32 s%d, 0x20000" % (dst + 3))

def setexec(mask):
    if mask == -1:
        a("s_mov_b64 exec, -1")
    else:
        a("s_mov_b32 exec_lo, 0x%08x" % (mask & 0xffffffff))
        a("s_mov_b32 exec_hi, 0x%08x" % (mask >> 32))

def setmask(s, mask):
    a("s_mov_b32 s%d, 0x%08x" % (s, mask & 0xffffffff))
    a("s_mov_b32 s%d, 0x%08x" % (s + 1, mask >> 32))

def padd4(d, x, y):
    assert d % 2 == 0 and x % 2 == 0 and y % 2 == 0
    for k in (0, 2):
        a("v_pk_add_f32 v[%d:%d], v[%d:%d], v[%d:%d]" % (d + k, d + k + 1, x + k, x + k + 1, y + k, y + k + 1))

def sum16(X):
    padd4(X, X, X + 4)
    padd4(X + 8, X + 8, X + 12)
    padd4(X, X, X + 8)

def xhalf_add4(X):
    for k in (0, 2):
        a("v_pk_mov_b32 v[%d:%d], v[%d:%d], v[%d:%d] op_sel:[0,1]" % (X + 4 + k, X + 5 + k, X + k, X + k + 1, X + k, X + k + 1))
    for r in range(4):
        a("v_permlane32_swap_b32 v%d, v%d" % (X + r, X + 4 + r))
    padd4(X, X, X + 4)

def bfly(op, v, t, which):
    a("v_mov_b32 v%d, v%d" % (t, v))
    a("v_permlane%d_swap_b32 v%d, v%d" % (which, v, t))
    a("%s v%d, v%d, v%d" % (op, v, v, t))

def bf16r(dst, src):
    a("v_cvt_pk_bf16_f32 v%d, v%d, v%d" % (dst, src, src))
    a("v_and_b32 v%d, 0xffff0000, v%d" % (dst, dst))

S_ODD, S_B1, S_HI = 56, 58, 60
S_M4, S_M8 = 58, 96
S_TO = 62
S_SEL = 3

S_CNT = 33
def sel_step(thr):
    a("s_sub_u32 s%d, s%d, 1" % (S_TO, S_TO))
    a("s_cbranch_scc1 L_end")
    if thr is not None and not Cfg.forceB:
        assert Cfg.pd == 1
        a("s_xor_b32 s63, s%d, %d" % (S_SEL, BOFF))
        a("s_cmp_lt_u32 s%d, s1" % S_TO)
        a("s_cselect_b32 s%d, s63, s%d" % (S_SEL, S_SEL))

def retry(loop, dual):
    sel_step(True if dual else None)
    a("s_branch %s" % loop)

def sel_init(thr=None):
    a("s_mov_b32 s%d, %d" % (S_SEL, BOFF if Cfg.forceB else 0))
    a("s_sub_u32 s1, s%d, %d" % (S_TO, Cfg.bthr if thr is None else thr))

def ln_stats(f, valid, T, fill=None, pk=None, pre=None, mid=None):
    e = [T + k for k in range(8)]
    s1, s2, t1, t2 = T + 8, T + 9, T + 10, T + 11
    fill = list(fill or [])
    def filler():
        if fill:
            a(fill.pop(0))
    if pk is None:
        a("v_readlane_b32 s63, v%d, 0" % f[0])
        a("v_mov_b32 v%d, 0" % s1)
        a("v_mov_b32 v%d, 0" % s2)
        setexec(valid)
        for k in range(8):
            a("v_subrev_f32 v%d, s63, v%d" % (e[k], f[k]))
        a("v_add_f32 v%d, v%d, v%d" % (s1, e[0], e[1]))
        a("v_mul_f32 v%d, v%d, v%d" % (s2, e[0], e[0]))
        a("v_add_f32 v%d, v%d, v%d" % (t1, e[2], e[3]))
        a("v_mul_f32 v%d, v%d, v%d" % (t2, e[1], e[1]))
        for k in range(4, 8):
            a("v_add_f32 v%d, v%d, v%d" % (s1 if k % 2 == 0 else t1, s1 if k % 2 == 0 else t1, e[k]))
        for k in range(2, 8):
            a("v_fmac_f32 v%d, v%d, v%d" % (s2 if k % 2 == 0 else t2, e[k], e[k]))
        a("v_add_f32 v%d, v%d, v%d" % (s1, s1, t1))
        a("v_add_f32 v%d, v%d, v%d" % (s2, s2, t2))
    else:
        E, SS, QQ, TT = pk, pk + 8, pk + 10, pk + 12
        pr = lambda x: "v[%d:%d]" % (x, x + 1)
        a("v_readlane_b32 s24, v%d, 0" % f[0])
        a("v_mov_b32 v%d, 0" % s1)
        a("v_mov_b32 v%d, 0" % s2)
        if pre:
            pre()
        setexec(valid)
        a("s_mov_b32 s63, s24")
        for k in range(4):
            a("v_pk_add_f32 %s, %s, s[24:25] op_sel_hi:[1,0] neg_lo:[0,1] neg_hi:[0,1]" % (pr(E + 2 * k), pr(f[2 * k])))
        a("v_pk_add_f32 %s, %s, %s" % (pr(SS), pr(E), pr(E + 2)))
        a("v_pk_mul_f32 %s, %s, %s" % (pr(QQ), pr(E), pr(E)))
        a("v_pk_add_f32 %s, %s, %s" % (pr(TT), pr(E + 4), pr(E + 6)))
        a("v_pk_fma_f32 %s, %s, %s, %s" % (pr(QQ), pr(E + 2), pr(E + 2), pr(QQ)))
        a("v_pk_add_f32 %s, %s, %s" % (pr(SS), pr(SS), pr(TT)))
        a("v_pk_fma_f32 %s, %s, %s, %s" % (pr(QQ), pr(E + 4), pr(E + 4), pr(QQ)))
        a("v_add_f32 v%d, v%d, v%d" % (s1, SS, SS + 1))
        a("v_pk_fma_f32 %s, %s, %s, %s" % (pr(QQ), pr(E + 6), pr(E + 6), pr(QQ)))
        a("v_add_f32 v%d, v%d, v%d" % (s2, QQ, QQ + 1))
    if mid:
        mid()
    else:
        setexec(-1)
    for i, r in enumerate((8, 4, 2, 1)):
        a("v_add_f32_dpp v%d, v%d, v%d row_ror:%d%s" % (s1, s1, s1, r, DPPM))
        a("v_add_f32_dpp v%d, v%d, v%d row_ror:%d%s" % (s2, s2, s2, r, DPPM))
        filler()
    for which in (16, 32):
        a("v_mov_b32 v%d, v%d" % (t1, s1))
        a("v_mov_b32 v%d, v%d" % (t2, s2))
        filler()
        a("v_permlane%d_swap_b32 v%d, v%d" % (which, s1, t1))
        a("v_permlane%d_swap_b32 v%d, v%d" % (which, s2, t2))
        a("v_add_f32 v%d, v%d, v%d" % (s1, s1, t1))
        a("v_add_f32 v%d, v%d, v%d" % (s2, s2, t2))
    a("v_mul_f32 v%d, %s, v%d" % (s1, f32(1.0 / 448), s1))
    a("v_mul_f32 v%d, %s, v%d" % (s2, f32(1.0 / 448), s2))
    a("v_fma_f32 v%d, -v%d, v%d, v%d" % (s2, s1, s1, s2))
    a("v_add_f32 v%d, s63, v%d" % (s1, s1))
    a("v_max_f32 v%d, 0, v%d" % (s2, s2))
    a("v_cvt_pk_bf16_f32 v%d, v%d, v%d" % (t1, s1, s2))
    a("v_and_b32 v%d, 0xffff0000, v%d" % (s2, t1))
    a("v_lshlrev_b32 v%d, 16, v%d" % (s1, t1))
    a("v_add_f32 v%d, %s, v%d" % (s2, f32(1e-5), s2))
    bf16r(s2, s2)
    a("v_sqrt_f32 v%d, v%d" % (s2, s2))
    while fill:
        filler()
    return s1, s2

def ln_apply(f, e, pk, s1, s2):
    n = len(f)
    for k in range(n):
        a("v_sub_f32 v%d, v%d, v%d" % (e[k], f[k], s1))
    bf16r(s2, s2)
    a("v_rcp_f32 v%d, v%d" % (s2, s2))
    for k in range(n // 2):
        a("v_cvt_pk_bf16_f32 v%d, v%d, v%d" % (pk[k], e[2 * k], e[2 * k + 1]))
    for k in range(n // 2):
        a("v_lshlrev_b32 v%d, 16, v%d" % (e[2 * k], pk[k]))
        a("v_and_b32 v%d, 0xffff0000, v%d" % (e[2 * k + 1], pk[k]))
    for k in range(n):
        a("v_mul_f32 v%d, v%d, v%d" % (e[k], e[k], s2))

def layernorm(f, out, valid, T):
    e = [T + k for k in range(8)]
    pk = [T + 12 + k for k in range(4)]
    s1, s2 = ln_stats(f, valid, T, ["v_mov_b32 v%d, 0" % (out + i) for i in range(4)])
    ln_apply(f, e, pk, s1, s2)
    setexec(valid)
    for k in range(4):
        a("v_cvt_pk_bf16_f32 v%d, v%d, v%d" % (out + k, e[2 * k], e[2 * k + 1]))
    setexec(-1)

def quad_transpose_reduce(v, dst, T):
    k0, g0, k1, g1 = T, T + 1, T + 2, T + 3
    a("v_cndmask_b32 v%d, v%d, v%d, s[%d:%d]" % (g0, v[1], v[0], S_ODD, S_ODD + 1))
    a("v_cndmask_b32 v%d, v%d, v%d, s[%d:%d]" % (g1, v[3], v[2], S_ODD, S_ODD + 1))
    a("v_cndmask_b32 v%d, v%d, v%d, s[%d:%d]" % (k0, v[0], v[1], S_ODD, S_ODD + 1))
    a("v_cndmask_b32 v%d, v%d, v%d, s[%d:%d]" % (k1, v[2], v[3], S_ODD, S_ODD + 1))
    a("v_add_f32_dpp v%d, v%d, v%d quad_perm:[1,0,3,2]%s" % (k0, g0, k0, DPPM))
    a("v_add_f32_dpp v%d, v%d, v%d quad_perm:[1,0,3,2]%s" % (k1, g1, k1, DPPM))
    a("v_cndmask_b32 v%d, v%d, v%d, s[%d:%d]" % (g0, k1, k0, S_B1, S_B1 + 1))
    a("v_cndmask_b32 v%d, v%d, v%d, s[%d:%d]" % (dst, k0, k1, S_B1, S_B1 + 1))
    a("v_add_f32_dpp v%d, v%d, v%d quad_perm:[2,3,0,1]%s" % (dst, g0, dst, DPPM))

S_B2, S_B3 = S_B1, 4
def reduce16(v, dst):
    for r in range(4):
        a("v_add_f32_dpp v%d, v%d, v%d row_ror:8%s" % (v[r], v[r], v[r], DPPM))
    for r in range(4):
        a("v_add_f32_dpp v%d, v%d, v%d row_ror:4%s" % (v[r], v[r], v[r], DPPM))
    a("v_cndmask_b32 v%d, v%d, v%d, s[%d:%d]" % (v[0], v[0], v[1], S_M4, S_M4 + 1))
    a("v_cndmask_b32 v%d, v%d, v%d, s[%d:%d]" % (v[2], v[2], v[3], S_M4, S_M4 + 1))
    a("v_cndmask_b32 v%d, v%d, v%d, s[%d:%d]" % (dst, v[0], v[2], S_M8, S_M8 + 1))

def check12(n, X, oklab, G=None, T0=None, mask=0xfff, acc=(5, 6, 7)):
    if G is None:
        G = V_G
    for t in range(n):
        for r in range(4):
            a("v_xor_b32 v%d, v%d, v%d" % (X + 4 * t + r, G + 4 * t + r, T0 if (r == 0 and T0 is not None) else V_T + r))
    regs = [X + i for i in range(4 * n)]
    acc = list(acc)
    cur = regs[:]
    outs = []
    i = 0
    while len(cur) >= 3 and i < 3:
        a("v_or3_b32 v%d, v%d, v%d, v%d" % (acc[i], cur[0], cur[1], cur[2])); cur = cur[3:]; outs.append(acc[i]); i += 1
    i = 0
    while len(cur) >= 2:
        o = outs[i % len(outs)]
        a("v_or3_b32 v%d, v%d, v%d, v%d" % (o, o, cur[0], cur[1])); cur = cur[2:]; i += 1
    rest = outs + cur
    while len(rest) > 1:
        if len(rest) >= 3:
            a("v_or3_b32 v%d, v%d, v%d, v%d" % (acc[0], rest[0], rest[1], rest[2])); rest = [acc[0]] + rest[3:]
        else:
            a("v_or_b32 v%d, v%d, v%d" % (acc[0], rest[0], rest[1])); rest = [acc[0]]
    a("v_and_b32 v%d, 0x%x, v%d" % (acc[0], mask, rest[0]))
    a("v_cmp_ne_u32 vcc, 0, v%d" % acc[0])
    a("s_cbranch_vccz %s" % oklab)

V_I16, V_GRP, V_LANE = 1, 2, 3
V_M, V_T = 196, 200
V_TA, V_TB, V_T8, V_ONE = 204, 205, 206, 207
V_B1, V_X = 212, 208
V_GA = 213
V_PUB = 214
V_XA = 215
V_ACC = 216
V_G = 232
V_W1A, V_LW = 248, 249
NVGPR = 252
V_K, V_V, V_QF = 32, 64, 96
V_W = 32
V_W1F = 64
V_BB = 96
V_S1 = 112
V_S2 = 144

def tag12(dst, src):
    for r in range(4):
        if Cfg.rnd:
            a("v_add_u32 v%d, 0x800, v%d" % (dst + r, src + r))
            src_r = dst + r
        else:
            src_r = src + r
    for r in range(4):
        a("v_bfi_b32 v%d, s63, v%d, v%d" % (dst + r, V_T + r, (dst if Cfg.rnd else src) + r))

def get_xcc():
    if Cfg.fakex:
        a("s_and_b32 s99, s33, 15")
    else:
        a("s_getreg_b32 s99, hwreg(HW_REG_XCC_ID)")
        a("s_and_b32 s99, s99, 15")

def make_masks():
    a("v_and_b32 v10, 1, v%d" % V_I16)
    a("v_lshlrev_b32 v10, 4, v10")
    a("v_mov_b32 v11, 0xffff")
    a("v_lshlrev_b32 v11, v10, v11")
    a("v_bfe_u32 v10, v%d, 1, 2" % V_I16)
    for rho in range(4):
        a("v_cmp_eq_u32 vcc, %d, v10" % rho)
        a("v_cndmask_b32 v%d, 0, v11, vcc" % (V_M + rho))

def make_tags(full=True):
    a("s_waitcnt lgkmcnt(0)")
    for k in range(4):
        a("s_add_u32 s%d, s%d, 1" % (28 + k, 28 + k))
    if full:
        for k in range(4):
            a("s_and_b32 s63, s%d, 0xfff" % (28 + k))
            a("v_mov_b32 v%d, s63" % (V_T + k))
    a("v_mov_b32 v%d, s31" % V_TB)
    a("s_and_b32 s63, s30, 0xff")
    a("v_mov_b32 v%d, s63" % V_T8)

if Cfg.stamps:
    for i in range(16):
        a("s_mov_b64 s[%d:%d], 0" % (64 + 2 * i, 65 + 2 * i))
stamp(0)
a("s_load_dwordx16 s[4:19], s[0:1], 0")
a("s_load_dwordx8 s[20:27], s[0:1], 64")
a("s_cmp_ge_u32 s2, 256")
a("s_cbranch_scc1 L_exit")
a("v_lshrrev_b32 v4, 6, v0")
a("v_and_b32 v%d, 63, v0" % V_LANE)
a("v_readfirstlane_b32 s34, v4")
a("v_and_b32 v%d, 15, v0" % V_I16)
a("v_bfe_u32 v%d, v0, 4, 2" % V_GRP)
a("s_and_b32 s32, s2, 7")
a("s_lshr_b32 s33, s2, 3")
a("s_and_b32 s35, s34, 3")
a("s_cmp_ge_u32 s34, 4")
a("s_cbranch_scc1 L_tail")

a("s_lshl_b32 s48, s32, 22")
a("s_lshl_b32 s49, s33, 15")
a("s_add_u32 s48, s48, s49")
a("s_lshl_b32 s49, s34, 13")
a("s_add_u32 s48, s48, s49")
a("s_add_u32 s48, s48, %d" % (6144 * 512))
if Cfg.kdma:
    a("v_lshrrev_b32 v4, 2, v%d" % V_LANE)
    a("v_lshlrev_b32 v4, 9, v4")
    a("v_and_b32 v5, 3, v%d" % V_LANE)
    a("v_lshl_add_u32 v4, v5, 4, v4")
    a("s_add_u32 s49, s49, %d" % L_K)
else:
    a("v_lshlrev_b32 v4, 9, v%d" % V_I16)
    a("v_lshl_add_u32 v4, v%d, 4, v4" % V_GRP)
a("v_lshlrev_b32 v5, 11, v%d" % V_GRP)
a("v_lshl_add_u32 v5, v%d, 4, v5" % V_I16)
a("s_mov_b32 s42, 33554432")
a("s_mov_b32 s43, 0x20000")
a("s_mov_b32 s46, 33554432")
a("s_mov_b32 s47, 0x20000")
a("s_waitcnt lgkmcnt(0)")
a("s_mov_b32 s40, s6")
a("s_and_b32 s41, s7, 0xffff")
a("s_mov_b32 s44, s8")
a("s_and_b32 s45, s9, 0xffff")
stamp(11)
nissued = [0]
def paced(text):
    if Cfg.depth and nissued[0] >= Cfg.depth and nissued[0] < Cfg.n1:
        a("s_waitcnt vmcnt(%d)" % (Cfg.depth - 1))
    a(text)
    nissued[0] += 1
loads = []
for s in range(8):
    if Cfg.kdma:
        loads.append(["s_add_u32 m0, s49, %d" % (960 * s), "buffer_load_dwordx4 v4, s[40:43], s48 offen offset:%d%s lds" % (64 * s, NT)])
    else:
        loads.append("buffer_load_dwordx4 v[%d:%d], v4, s[40:43], s48 offen offset:%d%s" % (V_K + 4 * s, V_K + 4 * s + 3, 64 * s, NT))
def emit(t):
    for x in ([t] if isinstance(t, str) else t):
        a(x)
for r in range(4):
    for h in range(2):
        n = 2 * r + h
        loads.append("buffer_load_dwordx4 v[%d:%d], v5, s[44:47], s48 offen offset:%d%s" % (V_V + 4 * n, V_V + 4 * n + 3, 512 * r + 256 * h, NT))
nfirst = 8 + Cfg.nearly
for i, t in enumerate(loads[:Cfg.k0]):
    if i == Cfg.kpre and Cfg.b0:
        a("s_barrier")
    emit(t)
stamp(12)
a("s_load_dwordx4 s[28:31], s[26:27], %d" % EPOCH)
srd(36, 26, WS_SIZE)
make_masks()
a("v_lshrrev_b32 v7, 3, v%d" % V_I16)
a("v_lshlrev_b32 v7, 9, v7")
a("v_lshl_add_u32 v7, v%d, 4, v7" % V_GRP)
a("s_lshl_b32 s63, s34, 11")
a("v_lshl_add_u32 v%d, v%d, 4, s63" % (V_LW, V_LANE))
a("s_lshl_b32 s63, s34, 9")
a("v_lshl_add_u32 v23, v%d, 3, s63" % V_LANE)
a("s_lshl_b32 s63, s34, 10")
a("v_lshl_add_u32 v21, v%d, 4, s63" % V_LANE)
a("v_lshlrev_b32 v22, 3, v%d" % V_LANE)
a("s_lshl_b32 s55, s32, 5")
a("s_add_u32 s55, s55, s33")
a("s_lshl_b32 s55, s55, 11")
a("s_add_u32 s50, s55, %d" % E2)
a("s_add_u32 s51, s55, %d" % (E2 + BOFF))
make_tags(True)
a("v_mov_b32 v31, v%d" % V_TB)
a("v_mov_b32 v6, 0")
a("v_mov_b32 v29, 1")
a("ds_write_b32 v6, v6 offset:%d" % L_CNT)
a("ds_write_b32 v6, v6 offset:%d" % (L_CNT + 4))
a("s_mov_b32 s%d, %d" % (S_TO, Cfg.timeout))
get_xcc()
NPF = [0]
def wo_prefetch():
    pass
a("s_lshl_b32 s52, s32, 13")
a("s_add_u32 s52, s52, %d" % E1)
a("v_and_b32 v8, 31, v%d" % V_LANE)
a("s_lshl_b32 s63, s34, 5")
a("v_add_u32 v8, s63, v8")
a("v_lshrrev_b32 v9, 5, v%d" % V_LANE)
a("v_lshlrev_b32 v9, 12, v9")
a("v_lshl_add_u32 v24, v8, 4, v9")
a("v_and_b32 v9, 7, v8")
a("v_sub_u32 v8, v8, v9")
a("v_lshl_add_u32 v8, v8, 2, v9")
a("v_lshlrev_b32 v26, 1, v8")
a("v_lshlrev_b32 v25, 6, v%d" % V_I16)
a("v_lshl_add_u32 v25, v%d, 4, v25" % V_GRP)
a("v_add_u32 v25, s49, v25")
sel_init(32)
GS = [128, 136]
XC = 12
V_E0 = 27
E1M = 0x3ff
def e1_issue(k):
    a("s_add_u32 s53, s52, s%d" % S_SEL)
    a("s_cmp_eq_u32 s%d, 0" % S_SEL)
    a("s_cselect_b32 s98, s99, 0")
    a("s_cselect_b32 s0, 0, 1")
    a("v_xor_b32 v%d, s98, v%d" % (V_E0, V_T))
    for u in range(2):
        a("buffer_load_dwordx4 v[%d:%d], v24, s[36:39], s53 offen offset:%d sc1" % (GS[k] + 4 * u, GS[k] + 4 * u + 3, 2048 * u))
def e1_check(k):
    check12(2, XC, "L_e1ok", GS[k], V_E0, E1M, acc=(144, 145, 146))
a("s_waitcnt lgkmcnt(0)")
if Cfg.sp:
    a("s_setprio 3")
a("s_barrier")
order = [("L", i) for i in range(Cfg.k0)]
rounds = [p for p in (Cfg.p1, Cfg.p2) if p]
for i in range(Cfg.k0, 17):
    for k, p in enumerate(rounds):
        if p == i:
            e1_issue(k)
            if Cfg.sp:
                a("s_setprio %d" % (len(rounds) - 1 - k))
            order += [("P", k), ("P", k)]
    if i < 16:
        emit(loads[i])
        order.append(("L", i))
stamp(13)
def younger(item):
    last = max(i for i, x in enumerate(order) if x == item)
    return len(order) - 1 - last
a("s_waitcnt vmcnt(%d)" % younger(("L", 7)))
for s in range(8):
    a("ds_read_b128 v[%d:%d], v25 offset:%d" % (V_K + 4 * s, V_K + 4 * s + 3, 1024 * s))
for k in range(len(rounds)):
    a("s_waitcnt vmcnt(%d)" % younger(("P", k)))
    e1_check(k)
a.label("L_e1poll")
sel_step(True)
e1_issue(0)
a("s_waitcnt vmcnt(0)")
e1_check(0)
a("s_branch L_e1poll")
a.label("L_e1ok")
stamp(7)
padd4(XC, XC, XC + 4)
xhalf_add4(XC)
a("v_cvt_pk_bf16_f32 v8, v%d, v%d" % (XC, XC + 1))
a("v_cvt_pk_bf16_f32 v9, v%d, v%d" % (XC + 2, XC + 3))
a("s_mov_b32 exec_hi, 0")
a("ds_write_b16 v26, v8 offset:%d" % (L_Q))
a("ds_write_b16_d16_hi v26, v8 offset:%d" % (L_Q + 16))
a("ds_write_b16 v26, v9 offset:%d" % (L_Q + 32))
a("ds_write_b16_d16_hi v26, v9 offset:%d" % (L_Q + 48))
setexec(-1)
a("s_cmp_eq_u32 s0, 0")
a("s_cbranch_scc1 L_fastq")
a("ds_write_b32 v6, v29 offset:%d" % (L_CNT + 4))
a.label("L_fastq")
stamp(1)
a("s_waitcnt lgkmcnt(0)")
if Cfg.prio:
    a("s_setprio 2")
a("s_barrier")
stamp(2)
for s in range(8):
    a("ds_read_b128 v[%d:%d], v7 offset:%d" % (V_QF + 4 * s, V_QF + 4 * s + 3, L_Q + 64 * s))
a("s_mov_b32 s63, %s" % f32(0.0625 * LOG2E))
S = V_ACC
for s in range(8):
    a("s_waitcnt lgkmcnt(%d)" % (0 if Cfg.stamps else 7 - s))
    a("v_mfma_f32_16x16x32_bf16 v[%d:%d], v[%d:%d], v[%d:%d], %s" % (S, S + 3, V_K + 4 * s, V_K + 4 * s + 3, V_QF + 4 * s, V_QF + 4 * s + 3, "0" if s == 0 else "v[%d:%d]" % (S, S + 3)))
a("v_cvt_pk_bf16_f32 v8, v%d, v%d" % (S, S + 1))
a("v_cvt_pk_bf16_f32 v9, v%d, v%d" % (S + 2, S + 3))
a("v_lshlrev_b32 v10, 16, v8")
a("v_and_b32 v11, 0xffff0000, v8")
a("v_lshlrev_b32 v12, 16, v9")
a("v_and_b32 v13, 0xffff0000, v9")
a("v_max3_f32 v14, v10, v11, v12")
a("v_max_f32 v14, v14, v13")
bfly("v_max_f32", 14, 15, 16)
bfly("v_max_f32", 14, 15, 32)
a("v_mul_f32 v14, s63, v14")
for r in range(4):
    a("v_fma_f32 v%d, v%d, s63, -v14" % (10 + r, 10 + r))
for r in range(4):
    a("v_exp_f32 v%d, v%d" % (10 + r, 10 + r))
for r in range(4):
    a("v_cvt_pk_bf16_f32 v%d, v%d, v%d" % (16 + r, 10 + r, 10 + r))
O = V_ACC + 4
BB = V_QF
def bbuild(r):
    for rho in range(4):
        a("v_and_b32 v%d, v%d, v%d" % (BB + 4 * r + rho, 16 + r, V_M + rho))
def pv(r):
    a("s_waitcnt vmcnt(%d)" % younger(("L", 8 + 2 * r + 1)))
    for h in range(2):
        n = 2 * r + h
        a("v_mfma_f32_16x16x32_bf16 v[%d:%d], v[%d:%d], v[%d:%d], %s" % (O + 4 * h, O + 4 * h + 3, V_V + 4 * n, V_V + 4 * n + 3, BB + 4 * r, BB + 4 * r + 3, "0" if r == 0 else "v[%d:%d]" % (O + 4 * h, O + 4 * h + 3)))
    if r == Cfg.pfat:
        wo_prefetch()
bbuild(0)
bbuild(1)
stamp(5)
pv(0)
bbuild(2)
a("v_add_f32 v15, v10, v11")
a("v_add_f32 v20, v12, v13")
pv(1)
bbuild(3)
a("v_add_f32 v15, v15, v20")
pv(2)
bfly("v_add_f32", 15, 20, 16)
pv(3)
stamp(6)
bfly("v_add_f32", 15, 20, 32)
a("ds_write_b64 v23, v[14:15] offset:%d" % L_ML)
a("ds_write_b128 v%d, v[%d:%d] offset:%d" % (V_LW, O, O + 3, L_O))
a("ds_write_b128 v%d, v[%d:%d] offset:%d" % (V_LW, O + 4, O + 7, L_O + 1024))
setexec(1)
a("ds_add_u32 v6, v29 offset:%d" % L_CNT)
setexec(-1)
a("s_cmp_ge_u32 s34, 2")
a("s_cbranch_scc1 L_att_exit")
a.label("L_cnt")
a("ds_read_b32 v8, v6 offset:%d" % L_CNT)
a("s_sub_u32 s%d, s%d, 1" % (S_TO, S_TO))
a("s_cbranch_scc1 L_end")
a("s_waitcnt lgkmcnt(0)")
a("v_cmp_gt_u32 vcc, 4, v8")
a("s_cbranch_vccnz L_cnt")
stamp(3)
for w in range(4):
    a("ds_read_b64 v[%d:%d], v22 offset:%d" % (10 + 2 * w, 11 + 2 * w, L_ML + 512 * w))
for w in range(4):
    a("ds_read_b128 v[%d:%d], v21 offset:%d" % (V_G + 4 * w, V_G + 4 * w + 3, L_O + 2048 * w))
a("s_movk_i32 s63, 0xff")
a("s_waitcnt lgkmcnt(4)" if not Cfg.stamps else "s_waitcnt lgkmcnt(0)")
a("v_max3_f32 v18, v10, v12, v14")
a("v_max_f32 v18, v18, v16")
for w in range(4):
    a("v_sub_f32 v%d, v%d, v18" % (10 + 2 * w, 10 + 2 * w))
for w in range(4):
    a("v_exp_f32 v%d, v%d" % (10 + 2 * w, 10 + 2 * w))
a("v_mul_f32 v19, v10, v11")
for w in range(1, 4):
    a("v_fmac_f32 v19, v%d, v%d" % (10 + 2 * w, 11 + 2 * w))
a("v_rcp_f32 v20, v19")
a("v_log_f32 v9, v19")
a("s_waitcnt lgkmcnt(0)")
BC = " op_sel_hi:[0,1]"
for k in (0, 2):
    a("v_pk_mul_f32 v[%d:%d], v[10:11], v[%d:%d]%s" % (24 + k, 25 + k, V_G + k, V_G + k + 1, BC))
for w in range(1, 4):
    for k in (0, 2):
        a("v_pk_fma_f32 v[%d:%d], v[%d:%d], v[%d:%d], v[%d:%d] op_sel_hi:[0,1,1]" % (24 + k, 25 + k, 10 + 2 * w, 11 + 2 * w, V_G + 4 * w + k, V_G + 4 * w + k + 1, 24 + k, 25 + k))
a("v_add_f32 v9, v9, v18")
for k in (0, 2):
    a("v_pk_mul_f32 v[%d:%d], v[20:21], v[%d:%d]%s" % (24 + k, 25 + k, 24 + k, 25 + k, BC))
a("v_bfi_b32 v30, s63, v%d, v9" % V_T8)
a("v_cvt_pk_bf16_f32 v28, v24, v25")
a("v_cvt_pk_bf16_f32 v29, v26, v27")
if not Cfg.noA:
    a("buffer_store_dwordx4 v[28:31], v21, s[36:39], s50 offen")
def bdefer():
    if Cfg.bd == 1:
        a("s_waitcnt vmcnt(0)")
    elif Cfg.bd > 1:
        a("s_sleep %d" % Cfg.bd)
a("v_mov_b32 v8, 1")
setexec(1)
a("ds_add_u32 v6, v8 offset:%d" % L_CNT)
setexec(-1)
stamp(4)
def skip_if_local(tmp, lab):
    if Cfg.xcc:
        a("v_mov_b32 v%d, 0" % tmp)
        a("ds_read_b32 v%d, v%d offset:%d" % (tmp, tmp, L_CNT + 4))
        a("s_waitcnt lgkmcnt(0)")
        a("v_cmp_eq_u32 vcc, 0, v%d" % tmp)
        a("s_cbranch_vccnz %s" % lab)
bdefer()
skip_if_local(8, "L_end")
if not Cfg.noB:
    a("buffer_store_dwordx4 v[28:31], v21, s[36:39], s51 offen sc1")
a("s_branch L_end")

a.label("L_att_exit")
if Cfg.fpf:
    a("s_cmp_lt_u32 s33, 16")
    a("s_cbranch_scc1 L_end")
    a("s_sub_u32 s52, s33, 16")
    a("s_lshl_b32 s52, s52, 1")
    a("s_add_u32 s52, s52, s34")
    a("s_sub_u32 s52, s52, 2")
    a("s_mul_i32 s54, s32, %d" % (224 * 896))
    a("s_mul_i32 s63, s52, %d" % (49 * 128))
    a("s_add_u32 s54, s54, s63")
    a("s_mul_i32 s49, s32, 448")
    a("s_mul_i32 s63, s52, %d" % (14 * 3584))
    a("s_add_u32 s49, s49, s63")
    a("v_lshrrev_b32 v25, 2, v%d" % V_LANE)
    a("v_mul_u32_u24 v25, 3584, v25")
    a("v_and_b32 v26, 3, v%d" % V_LANE)
    a("v_mul_u32_u24 v26, 148, v26")
    a("v_add_u32 v25, v25, v26")
    a("s_mov_b32 s18, %d" % (448 * 3584))
    a("s_mov_b32 s19, 0x20000")
    a("s_and_b32 s17, s17, 0xffff")
    a("s_mov_b32 s22, %d" % (1792 * 896))
    a("s_mov_b32 s23, 0x20000")
    a("s_and_b32 s21, s21, 0xffff")
    a("s_mov_b32 exec_hi, 0x00ffffff")
    a("buffer_load_dword v250, v25, s[16:19], s49 offen")
    a("s_mov_b32 exec_hi, 0x0001ffff")
    a("buffer_load_dword v250, v24, s[20:23], s54 offen")
a("s_branch L_end")

a.label("L_tail")
a.flush()
a("s_cmp_lg_u32 s34, 4")
a("s_cbranch_scc1 L_tail_common")
a("v_lshrrev_b32 v4, 3, v%d" % V_I16)
a("v_mul_u32_u24 v4, 56, v4")
a("v_mul_u32_u24 v5, 14, v%d" % V_GRP)
a("v_add_u32 v4, v4, v5")
a("v_lshlrev_b32 v5, 13, v4")
a("v_and_b32 v6, 7, v%d" % V_I16)
a("v_lshl_add_u32 v5, v6, 4, v5")
a("v_lshlrev_b32 v4, 1, v4")
a("v_lshlrev_b32 v6, 6, v%d" % V_I16)
a("v_lshl_add_u32 v6, v%d, 4, v6" % V_GRP)
a("s_lshr_b32 s50, s33, 3")
a("s_mul_i32 s52, s50, %d" % (112 * 8192))
a("s_lshl_b32 s53, s32, 10")
a("s_add_u32 s52, s52, s53")
a("s_and_b32 s53, s33, 7")
a("s_lshl_b32 s53, s53, 7")
a("s_add_u32 s52, s52, s53")
a("s_mul_i32 s51, s50, 224")
a("s_mov_b32 s42, %d" % (448 * 8192))
a("s_mov_b32 s43, 0x20000")
a("s_mov_b32 s46, 896")
a("s_mov_b32 s47, 0x20000")
a("s_setprio 3")
a("s_waitcnt lgkmcnt(0)")
a("s_mov_b32 s44, s4")
a("s_and_b32 s45, s5, 0xffff")
a("s_mov_b32 s40, s10")
a("s_and_b32 s41, s11, 0xffff")
stamp(11)
WQ, BQ, XR14 = 32, 88, 144
a("buffer_load_dwordx4 v[%d:%d], v6, s[44:47], 0 offen" % (V_G, V_G + 3))
a("buffer_load_dwordx4 v[%d:%d], v4, s[44:47], s51 offen" % (XR14, XR14 + 3))
a("buffer_load_dwordx3 v[%d:%d], v4, s[44:47], s51 offen offset:16" % (XR14 + 4, XR14 + 6))
for t in range(14):
    a("buffer_load_dwordx4 v[%d:%d], v5, s[40:43], s52 offen%s" % (WQ + 4 * t, WQ + 4 * t + 3, NTQ))
    if t < 13:
        a("s_add_u32 s52, s52, 8192")
stamp(12)
a.label("L_tail_common")
a("s_waitcnt lgkmcnt(0)")
if Cfg.tlb == 2:
    a("s_cmp_lg_u32 s34, 6")
    a("s_cbranch_scc1 L_notlb")
    a("s_mul_i32 s48, s32, %d" % (512 * 896))
    a("s_add_u32 s49, s48, %d" % (511 * 896))
    a("s_mul_i32 s50, s32, %d" % (224 * 896))
    a("s_mov_b32 s51, %d" % (447 * 3584))
    a("s_mov_b32 s54, %d" % (E4 + 2044))
    a("s_lshl_b32 s55, s32, 22")
    a("s_add_u32 s55, s55, %d" % (6144 * 512))
    a("s_load_dword s40, s[8:9], s55")
    a("s_load_dword s41, s[12:13], s48")
    a("s_load_dword s42, s[12:13], s49")
    a("s_load_dword s43, s[20:21], s50")
    a("s_load_dword s44, s[16:17], 0")
    a("s_load_dword s45, s[16:17], s51")
    a("s_load_dword s46, s[18:19], 0")
    a("s_load_dword s47, s[22:23], 0")
    a("s_load_dword s98, s[26:27], s54")
    a.label("L_notlb")
if Cfg.b0:
    a("s_barrier")
a("s_load_dwordx4 s[28:31], s[26:27], %d" % EPOCH)
srd(36, 26, WS_SIZE)
a("s_mov_b32 s%d, %d" % (S_TO, Cfg.timeout))
get_xcc()
setmask(S_ODD, 0xAAAAAAAAAAAAAAAA)
setmask(S_M4, 0xF0F0F0F0F0F0F0F0)
setmask(S_M8, 0xFF00FF00FF00FF00)
setmask(S_HI, 0xFFFFFFFF00000000)
a("v_mov_b32 v%d, 1.0" % V_ONE)
a("v_lshrrev_b32 v8, 2, v%d" % V_LANE)
a("v_lshlrev_b32 v8, 11, v8")
a("v_and_b32 v9, 3, v%d" % V_LANE)
a("v_lshl_add_u32 v%d, v9, 4, v8" % V_GA)
make_masks()
a("v_lshl_add_u32 v8, v%d, 3, v%d" % (V_GRP, V_I16))
a("v_lshlrev_b32 v%d, 4, v8" % V_PUB)
a("s_lshl_b32 s52, s32, 13")
a("s_add_u32 s52, s52, %d" % E1)
a("s_lshl_b32 s53, s33, 8")
a("s_add_u32 s53, s53, s52")
a("s_cmp_lg_u32 s34, 4")
a("s_cbranch_scc1 L_notq")
a("s_add_u32 s49, s53, %d" % BOFF)
a("s_waitcnt vmcnt(14)")
stamp(1)
XF, XV, XE, XP = 152, 160, 176, 216
for k in range(4):
    a("v_lshlrev_b32 v%d, 16, v%d" % (XF + 2 * k, V_G + k))
    a("v_and_b32 v%d, 0xffff0000, v%d" % (XF + 2 * k + 1, V_G + k))
fill = []
for k in range(7):
    fill.append("v_lshlrev_b32 v%d, 16, v%d" % (XV + 2 * k, XR14 + k))
    fill.append("v_and_b32 v%d, 0xffff0000, v%d" % (XV + 2 * k + 1, XR14 + k))
s1, s2 = ln_stats([XF + k for k in range(8)], 0x3FFF3FFF3FFF3FFF, 8, fill)
ln_apply([XV + k for k in range(14)], [XE + k for k in range(14)], [XP + k for k in range(7)], s1, s2)
for t in range(14):
    a("v_cvt_pk_bf16_f32 v%d, v%d, v%d" % (XE + t, XE + t, XE + t))
make_tags()
stamp(6)
QA = V_ACC
for t in range(15):
    if t < 14:
        for rho in range(4):
            a("v_and_b32 v%d, v%d, v%d" % (BQ + 4 * t + rho, XE + t, V_M + rho))
    if t >= 1:
        u = t - 1
        a("s_waitcnt vmcnt(%d)" % (13 - u))
        a("v_mfma_f32_16x16x32_bf16 v[%d:%d], v[%d:%d], v[%d:%d], %s" % (QA, QA + 3, WQ + 4 * u, WQ + 4 * u + 3, BQ + 4 * u, BQ + 4 * u + 3, "0" if u == 0 else "v[%d:%d]" % (QA, QA + 3)))
stamp(2)
a("s_movk_i32 s63, 0xfff")
for r in range(4):
    a("v_mov_b32_dpp v%d, v%d row_ror:8%s" % (8 + r, QA + r, DPPM))
for r in range(4):
    a("v_mov_b32 v%d, v%d" % (12 + r, 8 + r))
for r in range(4):
    a("v_permlane32_swap_b32 v%d, v%d" % (8 + r, 12 + r))
for r in range(4):
    a("v_add_f32 v%d, v%d, v%d" % (12 + r, 12 + r, QA + r))
for r in range(4):
    a("v_add_u32 v%d, 0x%x, v%d" % (12 + r, (E1M + 1) // 2, 12 + r))
for r in range(4):
    a("v_and_b32 v%d, 0x%x, v%d" % (12 + r, 0xffffffff ^ E1M, 12 + r))
for r in range(4):
    a("v_xor_b32 v%d, v%d, v%d" % (28 + r, 12 + r, V_T + r))
setexec(0x0000000000FF00FF)
a("v_xor_b32 v16, s99, v28")
for r in range(1, 4):
    a("v_mov_b32 v%d, v%d" % (16 + r, 28 + r))
if not Cfg.noA:
    a("buffer_store_dwordx4 v[16:19], v%d, s[36:39], s53 offen" % V_PUB)
a("buffer_store_dwordx4 v[28:31], v%d, s[36:39], s49 offen sc1" % V_PUB)
setexec(-1)
a("s_setprio 0")
stamp(3)
a("s_branch L_e1")
a.label("L_notq")
a.flush()
make_tags()
if Cfg.pretouch:
    a("s_cmp_lg_u32 s34, 5")
    a("s_cbranch_scc1 L_nopre")
    a("s_lshl_b32 s55, s32, 5")
    a("s_add_u32 s55, s55, s33")
    a("s_lshl_b32 s55, s55, 11")
    a("v_lshlrev_b32 v8, 7, v%d" % V_I16)
    a("s_add_u32 s63, s55, %d" % E2)
    a("v_add_u32 v9, s63, v8")
    a("s_add_u32 s63, s55, %d" % E3A)
    a("v_add_u32 v10, s63, v8")
    a("v_and_b32 v8, 128, v8")
    a("v_add_u32 v8, s53, v8")
    a("v_cmp_eq_u32 vcc, 1, v%d" % V_GRP)
    a("v_cndmask_b32 v9, v9, v10, vcc")
    a("v_cndmask_b32 v9, v9, v8, s[%d:%d]" % (S_HI, S_HI + 1))
    a("buffer_load_dword v250, v9, s[36:39], 0 offen sc1")
    a.label("L_nopre")
if Cfg.tlb == 1:
    a("s_cmp_lg_u32 s34, 6")
    a("s_cbranch_scc1 L_notlb")
    a("s_mul_i32 s48, s32, %d" % (512 * 896))
    a("s_add_u32 s49, s48, %d" % (511 * 896))
    a("s_mul_i32 s50, s32, %d" % (224 * 896))
    a("s_mov_b32 s51, %d" % (447 * 3584))
    a("s_mov_b32 s54, %d" % E4)
    a("v_mov_b32 v8, 0")
    setexec(1)
    srd(40, 12, 4096 * 896)
    a("buffer_load_dword v250, v8, s[40:43], s48 offen")
    a("buffer_load_dword v250, v8, s[40:43], s49 offen")
    srd(40, 20, 1792 * 896)
    a("buffer_load_dword v250, v8, s[40:43], s50 offen")
    srd(40, 16, 448 * 3584)
    a("buffer_load_dword v250, v8, s[40:43], 0 offen")
    a("buffer_load_dword v250, v8, s[40:43], s51 offen")
    srd(40, 18, 1792 * 2)
    a("buffer_load_dword v250, v8, s[40:43], 0 offen")
    srd(40, 22, 896)
    a("buffer_load_dword v250, v8, s[40:43], 0 offen")
    a("buffer_load_dword v250, v8, s[36:39], s54 offen offset:2044")
    setexec(-1)
    a.label("L_notlb")
if Cfg.cpf:
    a("s_cmp_lg_u32 s34, 7")
    a("s_cbranch_scc1 L_nocpf")
    a("s_getpc_b64 s[48:49]")
    a.label("L_pc")
    a("s_sub_u32 s48, s48, L_pc-%s_kernel" % NAME)
    a("s_subb_u32 s49, s49, 0")
    a("v_lshlrev_b32 v8, 7, v%d" % V_LANE)
    a("v_min_u32 v9, L_exit-%s_kernel-8192, v8" % NAME)
    a("global_load_dword v250, v8, s[48:49]")
    a("v_add_u32 v9, 8192, v9")
    a("global_load_dword v250, v9, s[48:49]")
    a.label("L_nocpf")
a.label("L_e1")
a("s_barrier")
a("s_cmp_lt_u32 s33, 30")
a("s_cbranch_scc1 L_roles")
a("s_barrier")
a("s_branch L_end")
a.label("L_roles")
a("s_cmp_ge_u32 s33, 23")
a("s_cbranch_scc1 L_R")
a("s_cmp_ge_u32 s33, 16")
a("s_cbranch_scc1 L_F")

def poll(name, issue, nload, check, dual, sets=1, shadow=None, D=None):
    D = D or Cfg.pd
    ok = name + "_ok"
    for r in range(D):
        issue(r % sets)
        if r < D - 1 and Cfg.pds:
            a("s_sleep %d" % Cfg.pds)
    if shadow:
        shadow()
    a.label(name)
    n = sets if sets > 1 else 1
    for k in range(n):
        a("s_waitcnt vmcnt(%d)" % (nload * (D - 1)))
        check(k, ok)
        sel_step(True if dual else None)
        if not dual and Cfg.xls:
            a("s_sleep %d" % Cfg.xls)
        issue(k)
    a("s_branch %s" % name)
    a.label(ok)

def wait_cnt(n):
    lab = a.newlabel("L_wc")
    a("v_mov_b32 v5, 0")
    a.label(lab)
    a("ds_read_b32 v7, v5 offset:%d" % L_CNT)
    a("s_sub_u32 s%d, s%d, 1" % (S_TO, S_TO))
    a("s_cbranch_scc1 L_end")
    a("s_sleep 1")
    a("s_waitcnt lgkmcnt(0)")
    a("v_cmp_gt_u32 vcc, %d, v7" % n)
    a("s_cbranch_vccnz %s" % lab)

a("s_lshl_b32 s48, s33, 1")
a("s_lshr_b32 s49, s35, 1")
a("s_add_u32 s48, s48, s49")
a("s_lshl_b32 s50, s32, 9")
a("s_bfe_u32 s49, s48, 0x10001")
a("s_lshl_b32 s49, s49, 8")
a("s_add_u32 s50, s50, s49")
a("s_lshr_b32 s49, s48, 4")
a("s_lshl_b32 s49, s49, 7")
a("s_add_u32 s50, s50, s49")
a("s_bfe_u32 s49, s48, 0x20002")
a("s_lshl_b32 s49, s49, 5")
a("s_add_u32 s50, s50, s49")
a("s_and_b32 s49, s48, 1")
a("s_lshl_b32 s49, s49, 2")
a("s_add_u32 s50, s50, s49")
a("s_mul_i32 s50, s50, 896")
a("s_and_b32 s49, s35, 1")
a("s_lshl_b32 s49, s49, 9")
a("s_add_u32 s50, s50, s49")
a("v_mul_u32_u24 v6, 7168, v%d" % V_GRP)
a("v_lshl_add_u32 v6, v%d, 4, v6" % V_I16)
srd(40, 12, 4096 * 896)
a("s_lshl_b32 s54, s32, 16")
a("s_lshl_b32 s63, s48, 6")
a("s_add_u32 s54, s54, s63")
a("s_lshl_b32 s55, s32, 5")
a("s_add_u32 s55, s55, s48")
a("s_lshl_b32 s55, s55, 11")
a("s_lshl_b32 s49, s49, 1")
a("s_add_u32 s55, s55, s49")
a("s_add_u32 s52, s55, %d" % E3A)
a("s_add_u32 s53, s55, %d" % (E3A + BOFF))
a("v_cmp_lt_u32 s[6:7], 7, v%d" % V_I16)
a("v_add_u32 v4, %d, v%d" % (512 - 128, V_PUB))
a("v_cndmask_b32 v4, v%d, v4, s[6:7]" % V_PUB)
a("s_mov_b64 s[8:9], -1")
a("s_bitcmp1_b32 s35, 0")
a("s_cselect_b32 s9, 0x00ff00ff, s9")
a("s_mov_b32 s0, 0")
if Cfg.dry & 1:
    a("s_mov_b32 s0, 1")
    a("s_mov_b64 s[6:7], 0")
    a("s_branch L_e2poll_ok")
    a.label("L_odry")
    a("s_mov_b32 s0, 0")
a("s_barrier")
if Cfg.ocnt:
    wait_cnt(Cfg.ocnt)
if Cfg.os:
    a("s_sleep %d" % Cfg.os)
for q in range(4):
    a("buffer_load_dwordx4 v[%d:%d], v6, s[40:43], s50 offen offset:%d%s" % (V_W + 4 * q, V_W + 4 * q + 3, 896 * q, NTL))
a("s_mov_b32 exec_lo, s9")
a("s_mov_b32 exec_hi, s9")
for q in range(4):
    a("buffer_load_dwordx4 v[%d:%d], v6, s[40:43], s50 offen offset:%d%s" % (V_W + 16 + 4 * q, V_W + 16 + 4 * q + 3, 896 * q + 256, NTL))
setexec(-1)
sel_init()
stamp(1)
E2S = [V_S1 + 8 * k for k in range(Cfg.pd)]
def e2_issue(k):
    a("s_add_u32 s48, s54, s%d" % S_SEL)
    a("s_add_u32 s49, s48, %d" % (E2 + 16 * 2048))
    a("s_add_u32 s48, s48, %d" % E2)
    a("buffer_load_dwordx4 v[%d:%d], v%d, s[36:39], s48 offen sc1" % (E2S[k], E2S[k] + 3, V_GA))
    a("buffer_load_dwordx4 v[%d:%d], v%d, s[36:39], s49 offen sc1" % (E2S[k] + 4, E2S[k] + 7, V_GA))
def e2_check(k, ok):
    G = E2S[k]
    a("v_xor_b32 v10, v%d, v%d" % (G + 2, V_T8))
    a("v_xor_b32 v11, v%d, v%d" % (G + 6, V_T8))
    a("v_xor_b32 v12, v%d, v%d" % (G + 3, V_TB))
    a("v_xor_b32 v13, v%d, v%d" % (G + 7, V_TB))
    a("v_or_b32 v14, v10, v11")
    a("v_and_b32 v14, 0xff, v14")
    a("v_or3_b32 v14, v14, v12, v13")
    a("v_cmp_ne_u32 vcc, 0, v14")
    for t in range(2):
        a("v_lshlrev_b32 v%d, 16, v%d" % (16 + 4 * t, G + 4 * t))
        a("v_and_b32 v%d, 0xffff0000, v%d" % (17 + 4 * t, G + 4 * t))
        a("v_lshlrev_b32 v%d, 16, v%d" % (18 + 4 * t, G + 4 * t + 1))
        a("v_and_b32 v%d, 0xffff0000, v%d" % (19 + 4 * t, G + 4 * t + 1))
    a("s_cbranch_vccz %s" % ok)
poll("L_e2poll", e2_issue, 2, e2_check, True, sets=Cfg.pd)
stamp(5)
a("v_max_f32 v14, v10, v11")
a("v_max_f32_dpp v14, v14, v14 row_ror:8%s" % DPPM)
a("v_max_f32_dpp v14, v14, v14 row_ror:4%s" % DPPM)
bfly("v_max_f32", 14, 15, 16)
bfly("v_max_f32", 14, 15, 32)
a("v_sub_f32 v10, v10, v14")
a("v_sub_f32 v11, v11, v14")
a("v_exp_f32 v10, v10")
a("v_exp_f32 v11, v11")
a("s_movk_i32 s63, 0xfff")
for k in (0, 2):
    a("v_pk_mul_f32 v[%d:%d], v[10:11], v[%d:%d]%s" % (16 + k, 17 + k, 16 + k, 17 + k, BC))
a("v_add_f32 v12, v10, v11")
for k in (0, 2):
    a("v_pk_fma_f32 v[%d:%d], v[10:11], v[%d:%d], v[%d:%d] op_sel:[1,0,0] op_sel_hi:[1,1,1]" % (16 + k, 17 + k, 20 + k, 21 + k, 16 + k, 17 + k))
a("v_add_f32_dpp v12, v12, v12 row_ror:8%s" % DPPM)
a("v_add_f32_dpp v12, v12, v12 row_ror:4%s" % DPPM)
a("v_mfma_f32_16x16x4_f32 v[%d:%d], v12, v%d, 0" % (V_ACC + 4, V_ACC + 7, V_ONE))
reduce16([16, 17, 18, 19], 13)
a("v_mfma_f32_16x16x4_f32 v[%d:%d], v13, v%d, 0" % (V_ACC, V_ACC + 3, V_ONE))
a("v_rcp_f32 v12, v%d" % (V_ACC + 4))
for k in (0, 2):
    a("v_pk_mul_f32 v[%d:%d], v[12:13], v[%d:%d]%s" % (16 + k, 17 + k, V_ACC + k, V_ACC + k + 1, BC))
for r in range(4):
    a("v_cvt_pk_bf16_f32 v%d, v%d, v%d" % (16 + r, 16 + r, 16 + r))
A2 = V_ACC + 8
BB = V_BB
def omf(qq):
    for b in range(2):
        a("v_mfma_f32_16x16x32_bf16 v[%d:%d], v[%d:%d], v[%d:%d], %s" % (A2 + 4 * b, A2 + 4 * b + 3, V_W + 16 * b + 4 * qq, V_W + 16 * b + 4 * qq + 3, BB + 4 * qq, BB + 4 * qq + 3, "0" if qq == 0 else "v[%d:%d]" % (A2 + 4 * b, A2 + 4 * b + 3)))
for q in range(4):
    for rho in range(4):
        a("v_and_b32 v%d, v%d, v%d" % (BB + 4 * q + rho, 16 + q, V_M + rho))
    if q >= 1:
        omf(q - 1)
omf(3)
for r in range(4):
    a("v_cndmask_b32 v%d, v%d, v%d, s[6:7]" % (24 + r, A2 + r, A2 + 4 + r))
tag12(28, 24)
if Cfg.dry & 1:
    a("s_cmp_eq_u32 s0, 1")
    a("s_cbranch_scc1 L_odry")
a("s_mov_b64 exec, s[8:9]")
if not Cfg.noA:
    a("buffer_store_dwordx4 v[28:31], v4, s[36:39], s52 offen")
stamp(6)
bdefer()
skip_if_local(8, "L_end")
if not Cfg.noB:
    a("buffer_store_dwordx4 v[28:31], v4, s[36:39], s53 offen sc1")
setexec(-1)
if Cfg.w2l:
    a("s_lshl_b32 s48, s33, 2")
    a("s_add_u32 s48, s48, s35")
    a("s_mul_i32 s48, s48, %d" % (25 * 128))
    a("s_mul_i32 s63, s32, %d" % (224 * 896))
    a("s_add_u32 s48, s48, s63")
    a("v_lshlrev_b32 v24, 7, v%d" % V_LANE)
    srd(40, 20, 1792 * 896)
    setexec(0x1ffffff)
    a("buffer_load_dword v250, v24, s[40:43], s48 offen")
a("s_branch L_end")

a.label("L_R")
a.flush()
a("s_sub_u32 s50, s33, 23")
a("s_lshl_b32 s52, s50, 2")
a("s_add_u32 s52, s52, s35")
a("s_lshl_b32 s54, s32, 16")
a("s_lshl_b32 s63, s52, 6")
a("s_add_u32 s54, s54, s63")
a("s_mul_i32 s53, s52, %d" % Cfg.ss)
a("s_add_u32 s53, s53, %d" % E3X)
a("s_lshl_b32 s51, s32, 12")
a("s_add_u32 s51, s51, s53")
a("s_lshl_b32 s55, s32, 11")
a("s_lshl_b32 s63, s52, 6")
a("s_add_u32 s55, s55, s63")
a("s_add_u32 s55, s55, %d" % E3L)
a("v_lshlrev_b32 v4, 4, v%d" % V_GRP)
a("s_lshr_b32 s63, s52, 1")
a("s_lshl_b32 s63, s63, 6")
a("s_and_b32 s48, s52, 1")
a("s_lshl_b32 s48, s48, 3")
a("s_add_u32 s63, s63, s48")
a("v_lshl_add_u32 v%d, v%d, 4, s63" % (V_XA, V_GRP))
srd(44, 4, 896)
a("buffer_load_dwordx2 v[%d:%d], v%d, s[44:47], 0 offen" % (V_X + 2, V_X + 3, V_XA))
a("v_and_b32 v8, 7, v%d" % V_I16)
a("v_lshlrev_b32 v8, 12, v8")
a("v_lshl_add_u32 v%d, v%d, 4, v8" % (V_LW, V_GRP))
if Cfg.rpf:
    a("s_mul_i32 s48, s32, %d" % (224 * 896))
    a("s_mul_i32 s63, s52, %d" % (56 * 128))
    a("s_add_u32 s48, s48, s63")
    a("s_mul_i32 s49, s32, 448")
    a("s_mul_i32 s63, s52, %d" % (16 * 3584))
    a("s_add_u32 s49, s49, s63")
    a("v_lshrrev_b32 v25, 2, v%d" % V_LANE)
    a("v_mul_u32_u24 v25, 3584, v25")
    a("v_and_b32 v26, 3, v%d" % V_LANE)
    a("v_mul_u32_u24 v26, 148, v26")
    a("v_add_u32 v25, v25, v26")
    a("v_lshlrev_b32 v24, 7, v%d" % V_LANE)
    srd(40, 16, 448 * 3584)
    srd(8, 20, 1792 * 896)
a("s_barrier")
wait_cnt(6)
if Cfg.rpf:
    a("buffer_load_dword v250, v25, s[40:43], s49 offen")
    a("s_mov_b32 exec_hi, 0x00ffffff")
    a("buffer_load_dword v250, v24, s[8:11], s48 offen")
    setexec(-1)
sel_init()
if Cfg.rs:
    a("s_sleep %d" % Cfg.rs)
def e3a_issue(k):
    a("s_add_u32 s48, s54, s%d" % S_SEL)
    a("s_add_u32 s49, s48, %d" % (E3A + 16 * 2048))
    a("s_add_u32 s48, s48, %d" % E3A)
    a("buffer_load_dwordx4 v[%d:%d], v%d, s[36:39], s48 offen sc1" % (V_S2, V_S2 + 3, V_GA))
    a("buffer_load_dwordx4 v[%d:%d], v%d, s[36:39], s49 offen sc1" % (V_S2 + 4, V_S2 + 7, V_GA))
poll("L_e3apoll", e3a_issue, 2, lambda k, ok: check12(2, 12, ok, V_S2), True)
stamp(7)
padd4(12, 12, 16)
reduce16([12, 13, 14, 15], 9)
a("v_mfma_f32_16x16x4_f32 v[%d:%d], v9, v%d, 0" % (V_ACC, V_ACC + 3, V_ONE))
a("s_movk_i32 s63, 0xfff")
setexec(0x0001000100010001)
tag12(28, V_ACC)
a("buffer_store_dwordx4 v[28:31], v4, s[36:39], s51 offen sc1")
if Cfg.lh:
    a("buffer_store_dwordx4 v[28:31], v4, s[36:39], s55 offen")
setexec(-1)
stamp(8)
a("s_cmp_lg_u32 s50, s32")
a("s_cbranch_scc1 L_end")
a.label("L_hpoll")
a("s_sleep 2")
a("buffer_load_dwordx4 v[%d:%d], v%d, s[36:39], s53 offen sc1" % (V_G, V_G + 3, V_LW))
a("s_waitcnt vmcnt(0)")
check12(1, 12, "L_hok")
retry("L_hpoll", False)
a.label("L_hok")
stamp(9)
for pat in ("quad_perm:[1,0,3,2]", "quad_perm:[2,3,0,1]", "row_half_mirror"):
    for r in range(4):
        a("v_add_f32_dpp v%d, v%d, v%d %s%s" % (12 + r, 12 + r, 12 + r, pat, DPPM))
for r in range(4):
    a("v_mov_b32 v%d, v%d" % (V_ACC + r, 12 + r))
a("v_lshlrev_b32 v%d, 16, v%d" % (V_X, V_X + 2))
a("v_and_b32 v%d, 0xffff0000, v%d" % (V_X + 1, V_X + 2))
a("v_lshlrev_b32 v%d, 16, v%d" % (V_X + 2, V_X + 3))
a("v_and_b32 v%d, 0xffff0000, v%d" % (V_X + 3, V_X + 3))
def round_add_round(src, add):
    a("v_cvt_pk_bf16_f32 v10, v%d, v%d" % (src, src + 1))
    a("v_cvt_pk_bf16_f32 v11, v%d, v%d" % (src + 2, src + 3))
    a("v_lshlrev_b32 v12, 16, v10")
    a("v_and_b32 v13, 0xffff0000, v10")
    a("v_lshlrev_b32 v14, 16, v11")
    a("v_and_b32 v15, 0xffff0000, v11")
    padd4(12, 12, add)
    a("v_cvt_pk_bf16_f32 v10, v12, v13")
    a("v_cvt_pk_bf16_f32 v11, v14, v15")
round_add_round(V_ACC, V_X)
a("v_lshlrev_b32 v%d, 16, v10" % (V_X))
a("v_and_b32 v%d, 0xffff0000, v10" % (V_X + 1))
a("v_lshlrev_b32 v%d, 16, v11" % (V_X + 2))
a("v_and_b32 v%d, 0xffff0000, v11" % (V_X + 3))
a("s_lshl_b32 s48, s52, 6")
a("s_add_u32 s48, s48, %d" % E4)
for t in range(1, 4):
    a("s_add_u32 s%d, s48, %d" % (48 + t, t * 16 * 2048))
for r in range(4):
    a("v_mov_b32 v%d, v%d" % (V_G + 12 + r, V_T + r))
srd(44, 22, 896)
if Cfg.e4s:
    a("s_sleep %d" % Cfg.e4s)
XR = V_S1
def e4_issue(k):
    for t in range(4):
        if t == 3:
            a("s_mov_b32 exec_hi, 0")
        a("buffer_load_dwordx4 v[%d:%d], v%d, s[36:39], s%d offen sc1" % (V_G + 4 * t, V_G + 4 * t + 3, V_GA, 48 + t))
    setexec(-1)
poll("L_e4poll", e4_issue, 4, lambda k, ok: check12(4, XR, ok), False, D=Cfg.pd4)
stamp(10)
sum16(XR)
reduce16([XR, XR + 1, XR + 2, XR + 3], 9)
a("v_mfma_f32_16x16x4_f32 v[%d:%d], v9, v%d, 0" % (V_ACC, V_ACC + 3, V_ONE))
round_add_round(V_ACC, V_X)
setexec(0x0001000100010001)
a("buffer_store_dwordx2 v[10:11], v%d, s[44:47], 0 offen" % V_XA)
a("s_cmp_lg_u32 s52, 0")
a("s_cbranch_scc1 L_noep")
setexec(1)
a("v_mov_b32 v9, 0")
for k in range(4):
    a("v_mov_b32 v%d, s%d" % (12 + k, 28 + k))
a("buffer_store_dwordx4 v[12:15], v9, s[36:39], 0 offen offset:%d" % EPOCH)
a.label("L_noep")
setexec(-1)
stamp(14)
a("s_branch L_end")

a.label("L_F")
a.flush()
a("s_mul_i32 s50, s32, 7")
a("s_add_u32 s50, s50, s33")
a("s_sub_u32 s50, s50, 16")
a("s_lshl_b32 s51, s50, 2")
a("s_add_u32 s51, s51, s35")
a("v_lshrrev_b32 v8, 3, v%d" % V_I16)
a("v_sub_u32 v8, v%d, v8" % V_I16)
a("v_min_u32 v8, 13, v8")
a("v_lshlrev_b32 v8, 6, v8")
a("v_lshl_add_u32 v23, v%d, 4, v8" % V_GRP)
if Cfg.lin:
    setexec(0x8080808080808080)
    a("v_mov_b32 v23, 896")
    for k in range(4):
        a("v_mov_b32 v%d, 0" % (12 + k))
    a("ds_write_b128 v23, v[12:15] offset:%d" % L_H)
    setexec(-1)
a("v_bfe_u32 v8, v%d, 2, 3" % V_LANE)
a("v_min_u32 v8, 6, v8")
a("v_and_b32 v9, 3, v%d" % V_LANE)
a("v_mul_u32_u24 v10, %d, v8" % Cfg.ss)
a("v_lshl_add_u32 v10, v9, 4, v10")
a("v_lshrrev_b32 v11, 5, v%d" % V_LANE)
a("v_lshl_add_u32 v%d, v11, 12, v10" % V_XA)
a("s_mul_i32 s63, s35, 7")
a("v_add_u32 v8, s63, v8")
a("v_lshrrev_b32 v10, 1, v8")
a("v_lshlrev_b32 v10, 6, v10")
a("v_and_b32 v8, 1, v8")
a("v_lshl_add_u32 v10, v8, 3, v10")
a("v_lshl_add_u32 v24, v9, 4, v10")
a("v_and_b32 v10, 1, v%d" % V_GRP)
a("v_and_b32 v11, 1, v%d" % V_I16)
a("v_lshlrev_b32 v25, 2, v10")
a("v_and_b32 v26, 2, v%d" % V_GRP)
a("v_add_u32 v25, v25, v26")
a("v_mul_u32_u24 v26, 896, v25")
a("v_lshl_add_u32 v26, v%d, 4, v26" % V_I16)
a("v_add_u32 v25, v25, v11")
a("v_lshlrev_b32 v25, 1, v25")
a("v_bfe_u32 v27, v%d, 1, 1" % V_I16)
a("v_mul_u32_u24 v27, %d, v27" % (224 * 64))
a("v_lshl_add_u32 v27, v%d, 9, v27" % V_GRP)
a("v_lshrrev_b32 v12, 2, v%d" % V_I16)
a("v_lshl_add_u32 v27, v12, 6, v27")
a("v_lshl_add_u32 v27, v11, 3, v27")
a("s_lshl_b32 s63, s35, 4")
a("v_add_u32 v%d, s63, v27" % V_W1A)
a("v_lshrrev_b32 v27, 2, v%d" % V_LANE)
a("v_mul_u32_u24 v27, 3584, v27")
a("v_and_b32 v12, 3, v%d" % V_LANE)
a("v_lshl_add_u32 v27, v12, 4, v27")
a("s_lshl_b32 s63, s35, 11")
a("v_lshl_add_u32 v%d, v%d, 4, s63" % (V_LW, V_LANE))
srd(40, 16, 448 * 3584)
srd(44, 20, 1792 * 896)
srd(8, 4, 896)
srd(12, 18, 1792 * 2)
a("s_mul_i32 s52, s35, %d" % (112 * 3584))
a("s_lshl_b32 s63, s50, 6")
a("s_add_u32 s52, s52, s63")
a("s_mul_i32 s53, s35, 7168")
a("s_add_u32 s53, s53, %d" % L_W1)
a("s_mul_i32 s54, s51, %d" % (8 * 896))
a("s_lshl_b32 s55, s51, 4")
a("s_mul_i32 s24, s35, %d" % (7 * Cfg.ss))
a("s_add_u32 s24, s24, %d" % E3X)
a("s_add_u32 s25, s24, 8192")
a("s_add_u32 s26, s24, 16384")
a("s_add_u32 s27, s24, 24576")
a("s_mov_b32 s6, %d" % (16 * 3584))
a("s_movk_i32 s7, 1024")
if Cfg.zig:
    a("s_bitcmp1_b32 s50, 0")
    a("s_cbranch_scc0 L_nozig")
    a("s_add_u32 s52, s52, %d" % (6 * 16 * 3584))
    a("s_add_u32 s53, s53, 6144")
    a("s_mov_b32 s6, %d" % (-16 * 3584))
    a("s_movk_i32 s7, -1024")
    a.label("L_nozig")
def w1_loads():
    for t in range(7):
        a("s_mov_b32 m0, s53")
        a("buffer_load_dwordx4 v27, s[40:43], s52 offen%s lds" % NTW)
        if t < 6:
            a("s_add_u32 s52, s52, s6")
            a("s_add_u32 s53, s53, s7")
def w2_loads():
    for b in range(4):
        if b == 3:
            setexec(0x00FF00FF00FF00FF)
        for q in range(2):
            a("buffer_load_dwordx4 v[%d:%d], v26, s[44:47], s54 offen offset:%d%s" % (V_W + 8 * b + 4 * q, V_W + 8 * b + 4 * q + 3, 896 * q + 256 * b, NTL))
    setexec(-1)
def small_loads():
    a("buffer_load_dwordx2 v[%d:%d], v24, s[8:11], 0 offen" % (V_X + 2, V_X + 3))
    a("buffer_load_ushort v%d, v25, s[12:15], s55 offen" % V_B1)
a("s_barrier")
if Cfg.w2e:
    w2_loads()
    small_loads()
wait_cnt(Cfg.fcnt)
if Cfg.fs:
    a("s_sleep %d" % Cfg.fs)
stamp(1)
if Cfg.w2e:
    w1_loads()
else:
    if not Cfg.w2first:
        w1_loads()
    if not Cfg.w2l:
        w2_loads()
    if Cfg.w2first:
        w1_loads()
    small_loads()
a("s_lshl_b32 s48, s50, 11")
a("s_lshl_b32 s63, s35, 10")
a("s_add_u32 s48, s48, s63")
a("s_add_u32 s48, s48, %d" % E4)
a("v_cmp_lt_u32 s[6:7], 7, v%d" % V_I16)
a("v_add_u32 v4, %d, v%d" % (512 - 128, V_PUB))
a("v_cndmask_b32 v4, v%d, v4, s[6:7]" % V_PUB)
a("s_lshl_b32 s63, s35, 10")
a("v_lshl_add_u32 v21, v%d, 4, s63" % V_LANE)
D1 = V_S2
V_CS = 251
def ffn1(AF, dst, fill=()):
    fill = list(fill)
    def f(n):
        for _ in range(n):
            if fill:
                a(fill.pop(0))
    for m in range(7):
        a("v_mfma_f32_16x16x32_bf16 v[%d:%d], v[%d:%d], v[%d:%d], 0" % (D1 + 4 * m, D1 + 4 * m + 3, AF, AF + 3, V_W1F + 4 * m, V_W1F + 4 * m + 3))
    return
def ffn1_tail(dst, t, zero=True):
    if zero:
        a("v_mov_b32 v%d, 0" % dst)
    setexec(0x0000FF00000000FF)
    a("v_add_f32 v%d, v%d, v%d" % (dst, D1 + 0, D1 + 4 + 1))
    a("v_add_f32 v%d, v%d, v%d" % (t, D1 + 8 + 2, D1 + 12 + 3))
    a("v_add_f32 v%d, v%d, v%d" % (dst, dst, t))
    setexec(0xFF00000000FF0000)
    a("v_add_f32 v%d, v%d, v%d" % (dst, D1 + 16, D1 + 20 + 1))
    a("v_add_f32 v%d, v%d, v%d" % (dst, dst, D1 + 24 + 2))
    setexec(-1)
    a("v_add_f32_dpp v%d, v%d, v%d row_ror:8%s" % (dst, dst, dst, DPPM))
    a("v_mfma_f32_16x16x4_f32 v[%d:%d], v%d, v%d, 0" % (V_ACC, V_ACC + 3, dst, V_ONE))
def ffn1_sel(dst, t):
    a("v_cndmask_b32 v%d, v%d, v%d, s[%d:%d]" % (dst, V_ACC, V_ACC + 1, S_ODD, S_ODD + 1))
    a("v_cndmask_b32 v%d, v%d, v%d, s[%d:%d]" % (t, V_ACC + 2, V_ACC + 3, S_ODD, S_ODD + 1))
    a("v_cndmask_b32 v%d, v%d, v%d, s[%d:%d]" % (dst, dst, t, S_HI, S_HI + 1))
AF = 176
def e3x_issue(k):
    for t in range(4):
        a("buffer_load_dwordx4 v[%d:%d], v%d, s[36:39], s%d offen sc1" % (V_G + 4 * t, V_G + 4 * t + 3, V_XA, 24 + t))
a("v_min_u32 v22, 27, v%d" % V_LANE)
a("v_lshlrev_b32 v22, 4, v22")
a("s_lshl_b32 s49, s32, 11")
a("s_mul_i32 s63, s35, 448")
a("s_add_u32 s49, s49, s63")
a("s_add_u32 s49, s49, %d" % E3L)
a("s_mov_b32 s1, %d" % Cfg.bthr)
if Cfg.lh2:
    a("buffer_load_dwordx4 v[%d:%d], v22, s[36:39], s49 offen sc1" % (V_G, V_G + 3))
    a("s_waitcnt vmcnt(0)")
    stamp(5)
    check12(1, XR, "L_lh1")
    a("s_branch L_lh2")
    a.label("L_lh1")
    e3x_issue(0)
    a("s_mov_b32 s1, -1")
    a.label("L_lh2")
    a("s_barrier")
elif not Cfg.e3e:
    a("s_waitcnt vmcnt(0)")
    stamp(5)
    a("s_barrier")
def f_shadow():
    if Cfg.e3e:
        a("s_waitcnt vmcnt(%d)" % (4 * Cfg.pd))
        stamp(5)
        a("s_barrier")
    for m in range(7):
        for u in range(2):
            a("ds_read_b64_tr_b16 v[%d:%d], v%d offset:%d" % (V_W1F + 4 * m + 2 * u, V_W1F + 4 * m + 2 * u + 1, V_W1A, L_W1 + 2048 * m + 256 * u))
    a("v_lshlrev_b32 v%d, 16, v%d" % (V_B1, V_B1))
    a("v_lshlrev_b32 v%d, 16, v%d" % (V_X, V_X + 2))
    a("v_and_b32 v%d, 0xffff0000, v%d" % (V_X + 1, V_X + 2))
    a("v_lshlrev_b32 v%d, 16, v%d" % (V_X + 2, V_X + 3))
    a("v_and_b32 v%d, 0xffff0000, v%d" % (V_X + 3, V_X + 3))
    if Cfg.lin:
        for k in range(4):
            a("v_mov_b32 v%d, 0x3f803f80" % (AF + k))
        a("s_waitcnt lgkmcnt(0)")
        ffn1(AF, V_CS)
        ffn1_tail(V_CS, 9)
        ffn1_sel(V_CS, 9)
if Cfg.lh:
    f_shadow()
    if Cfg.lh2:
        a("s_cmp_eq_u32 s1, -1")
        a("s_cbranch_scc1 L_e3xpoll")
    a.label("L_lh")
    a("buffer_load_dwordx4 v[%d:%d], v22, s[36:39], s49 offen sc1" % (V_G, V_G + 3))
    a("s_sub_u32 s1, s1, 1")
    a("s_cbranch_scc1 L_lhok")
    a("s_waitcnt vmcnt(0)")
    check12(1, XR, "L_lhok")
    a("s_branch L_lh")
    a.label("L_lhok")
    if Cfg.xs:
        a("s_sleep %d" % Cfg.xs)
    assert Cfg.pdx == 1 or not Cfg.lh2
    poll("L_e3xpoll", e3x_issue, 4, lambda k, ok: check12(4, XR, ok), False, D=Cfg.pdx)
else:
    poll("L_e3xpoll", e3x_issue, 4, lambda k, ok: check12(4, XR, ok), False, shadow=f_shadow)
stamp(9)
if Cfg.w2l:
    w2_loads()
sum16(XR)
xhalf_add4(XR)
round_add_round(XR, V_X)
a("ds_write_b64 v24, v[10:11] offset:%d" % L_H)
a("s_waitcnt lgkmcnt(0)")
a("s_barrier")
stamp(10)
PR = V_S1
if Cfg.lin:
    a("ds_read_b128 v[%d:%d], v23 offset:%d" % (AF, AF + 3, L_H))
    a("s_waitcnt lgkmcnt(0)")
    unp = []
    for k in range(4):
        unp.append("v_lshlrev_b32 v%d, 16, v%d" % (PR + 2 * k, AF + k))
        unp.append("v_and_b32 v%d, 0xffff0000, v%d" % (PR + 2 * k + 1, AF + k))
    def mf(m):
        a("v_mfma_f32_16x16x32_bf16 v[%d:%d], v[%d:%d], v[%d:%d], 0" % (D1 + 4 * m, D1 + 4 * m + 3, AF, AF + 3, V_W1F + 4 * m, V_W1F + 4 * m + 3))
    for m in range(4):
        mf(m)
        a(unp[2 * m]); a(unp[2 * m + 1])
    mf(4)
    def pre():
        mf(5)
        a("v_mov_b32 v22, 0")
        mf(6)
    fl = ["v_mov_b32 v22, 0"]
    s1, s2 = ln_stats([PR + k for k in range(8)], 0x7F7F7F7F7F7F7F7F, 5, pk=PR + 8, pre=pre, fill=None, mid=lambda: ffn1_tail(22, 20, False))
    ffn1_sel(22, 20)
    bf16r(s2, s2)
    a("v_rcp_f32 v%d, v%d" % (s2, s2))
    a("v_fma_f32 v8, -v%d, v%d, v22" % (s1, V_CS))
    a("s_mov_b32 s63, %s" % f32(-LOG2E))
    a("v_mul_f32 v8, v8, v%d" % s2)
else:
    a("ds_read_b128 v[%d:%d], v23 offset:%d" % (PR + 8, PR + 11, L_H))
    a("s_waitcnt lgkmcnt(0)")
    for k in range(4):
        a("v_lshlrev_b32 v%d, 16, v%d" % (PR + 2 * k, PR + 8 + k))
        a("v_and_b32 v%d, 0xffff0000, v%d" % (PR + 2 * k + 1, PR + 8 + k))
    layernorm([PR + k for k in range(8)], AF, 0x7F7F7F7F7F7F7F7F, 5)
    ffn1(AF, 8)
    ffn1_tail(8, 9)
    a("s_mov_b32 s63, %s" % f32(-LOG2E))
    ffn1_sel(8, 9)
bf16r(8, 8)
a("v_add_f32 v8, v8, v%d" % V_B1)
bf16r(8, 8)
if Cfg.fmish:
    a("v_mul_f32 v9, s63, abs(v8)")
    a("v_exp_f32 v9, v9")
    a("v_cmp_gt_f32 vcc, 0, v8")
    a("v_mul_f32 v10, v9, v9")
    a("v_cndmask_b32 v11, 1.0, v10, vcc")
    a("v_cndmask_b32 v12, v10, 1.0, vcc")
    a("v_fma_f32 v11, 2.0, v9, v11")
    a("v_fma_f32 v12, 2.0, v12, v11")
    a("v_rcp_f32 v12, v12")
    a("v_mul_f32 v14, v11, v12")
else:
    a("v_mul_f32 v9, s63, abs(v8)")
    a("v_exp_f32 v9, v9")
    a("v_max_f32 v17, 0, v8")
    bf16r(9, 9)
    a("v_add_f32 v10, 1.0, v9")
    a("v_add_f32 v11, -1.0, v10")
    a("v_log_f32 v12, v10")
    a("v_rcp_f32 v13, v11")
    a("v_cmp_eq_f32 vcc, 0, v11")
    a("v_mul_f32 v12, %s, v12" % f32(0.6931471805599453))
    a("v_mul_f32 v13, v13, v9")
    a("v_mul_f32 v12, v12, v13")
    a("v_cndmask_b32 v12, v12, v9, vcc")
    bf16r(12, 12)
    a("v_add_f32 v12, v12, v17")
    bf16r(12, 12)
    a("v_mul_f32 v13, %s, v12" % f32(-2.0 * LOG2E))
    a("v_exp_f32 v13, v13")
    a("v_mul_f32 v16, v12, v12")
    a("v_add_f32 v14, 1.0, v13")
    a("v_sub_f32 v15, 1.0, v13")
    a("v_rcp_f32 v14, v14")
    a("v_mul_f32 v16, %s, v16" % f32(-1.0 / 3.0))
    a("v_cmp_gt_f32 vcc, %s, v12" % f32(2.0 ** -6))
    a("v_fma_f32 v16, v16, v12, v12")
    a("v_mul_f32 v14, v14, v15")
    a("v_cndmask_b32 v14, v14, v16, vcc")
    bf16r(14, 14)
a("v_mul_f32 v14, v14, v8")
a("v_cvt_pk_bf16_f32 v14, v14, v14")
a("s_movk_i32 s63, 0xfff")
for q in range(2):
    for rho in range(4):
        a("v_and_b32_dpp v%d, v14, v%d quad_perm:[%d,%d,%d,%d]%s" % (BB + 4 * q + rho, V_M + rho, q, q, 2 + q, 2 + q, DPPM))
if Cfg.w2l:
    stamp(12)
    a("s_waitcnt vmcnt(0)")
for q in range(2):
    for b in range(4):
        a("v_mfma_f32_16x16x32_bf16 v[%d:%d], v[%d:%d], v[%d:%d], %s" % (V_ACC + 4 * b, V_ACC + 4 * b + 3, V_W + 8 * b + 4 * q, V_W + 8 * b + 4 * q + 3, BB + 4 * q, BB + 4 * q + 3, "0" if q == 0 else "v[%d:%d]" % (V_ACC + 4 * b, V_ACC + 4 * b + 3)))
setexec(0x00FF00FF00FF00FF)
a("ds_write_b128 v%d, v[%d:%d] offset:%d" % (V_LW, V_ACC, V_ACC + 3, L_F))
a("s_not_b64 exec, exec")
a("ds_write_b128 v%d, v[%d:%d] offset:%d" % (V_LW, V_ACC + 4, V_ACC + 7, L_F))
a("s_not_b64 exec, exec")
a("ds_write_b128 v%d, v[%d:%d] offset:%d" % (V_LW, V_ACC + 8, V_ACC + 11, L_F + 1024))
a("s_not_b64 exec, exec")
a("ds_write_b128 v%d, v[%d:%d] offset:%d" % (V_LW, V_ACC + 12, V_ACC + 15, L_F + 1024))
setexec(-1)
a("s_waitcnt lgkmcnt(0)")
stamp(13)
a("s_barrier")
a("s_cmp_ge_u32 s35, 2")
a("s_cbranch_scc1 L_end")
for w in range(4):
    a("ds_read_b128 v[%d:%d], v21 offset:%d" % (PR + 4 * w, PR + 4 * w + 3, L_F + 2048 * w))
a("s_cmp_eq_u32 s35, 1")
a("s_cselect_b32 exec_hi, 0x00ff00ff, -1")
a("s_waitcnt lgkmcnt(0)")
sum16(PR)
tag12(28, PR)
a("buffer_store_dwordx4 v[28:31], v4, s[36:39], s48 offen sc1")
setexec(-1)
stamp(14)
a.label("L_end")
if Cfg.stamps:
    setexec(-1)
    stamp(15)
    a("s_waitcnt lgkmcnt(0)")
    a("s_lshl_b32 s48, s2, 3")
    a("s_add_u32 s48, s48, s34")
    a("s_lshl_b32 s48, s48, 6")
    a("s_add_u32 s48, s48, %d" % STAMP)
    a("v_mov_b32 v9, 0")
    setexec(1)
    for i in range(0 if getattr(Cfg, "nost", False) else 16):
        a("v_mov_b32 v10, s%d" % (64 + 2 * i))
        a("buffer_store_dword v10, v9, s[36:39], s48 offen offset:%d" % (4 * i))
    if Cfg.dbgwg >= 0:
        a("s_cmp_lg_u32 s2, %d" % Cfg.dbgwg)
        a("s_cbranch_scc1 L_exit")
        a("s_cmp_lg_u32 s34, %d" % Cfg.dbgwave)
        a("s_cbranch_scc1 L_exit")
        if Cfg.spin:
            a.label("L_spin")
            a("s_memrealtime s[94:95]")
            a("s_waitcnt lgkmcnt(0)")
            a("s_sub_u32 s63, s94, s64")
            a("s_cmp_lt_u32 s63, %d" % Cfg.spin)
            a("s_cbranch_scc1 L_spin")
        srd(44, 24, 256)
        for i in range(16):
            a("s_sub_u32 s63, s%d, s64" % (64 + 2 * i))
            a("s_cmp_eq_u32 s%d, 0" % (64 + 2 * i))
            a("s_cselect_b32 s63, 0, s63")
            a("v_mov_b32 v10, s63")
            a("buffer_store_dword v10, v9, s[44:47], 0 offen offset:%d" % (4 * i))
a.label("L_exit")
a("s_endpgm")
a.raw('''.section .rodata,"a"
.p2align 6
.amdhsa_kernel %s_kernel
  .amdhsa_next_free_vgpr %d
  .amdhsa_next_free_sgpr 100
  .amdhsa_accum_offset %d
  .amdhsa_group_segment_fixed_size 0
  .amdhsa_kernarg_size 96
  .amdhsa_user_sgpr_count 2
  .amdhsa_user_sgpr_kernarg_segment_ptr 1
  .amdhsa_system_sgpr_workgroup_id_x 1
  .amdhsa_float_denorm_mode_32 3
.end_amdhsa_kernel''' % (NAME, NVGPR, NVGPR))
open(sys.argv[1], "w").write(a.text())
```

```python
import sys, struct
from asmlib import Asm
NAME = "sequential_preLN__sliding_block_cached__dense_activation_mish__decode"

class Cfg:
    stamps = False
    nt = True
    ntw = False
    timeout = 200000
    ocnt = 0
    vs = 0
    nearly = 7
    pfat = 1
    n1 = 10
    pf = False
    cpf = True
    ntl = True
    depth = 0
    ss = 128
    forceB = False
    pretouch = True
    fs = 0
    tlb = 0
    bthr = 64
    b0 = True
    npipe = 3
    ps0 = 0
    ps1 = 4
    kpat = 0
    kdma = True
    pd = 1
    pds = 2
    fpf = False
    prio = True
    xls = 0
    pace = 0
    e1w = 20
    fcnt = 6
    w2l = False
    pdx = 1
    pd4 = 1
    zig = True
    w2first = True
    w2e = True
    bd = 0
    xcc = True
    fakex = False
    fmish = True
    noA = False
    nost = False
    noB = False
    dry = 0
    lh2 = False
    lh = True
    e3e = False
    lin = True
    rpf = False
    rs = 0
    os = 0
    ka = 3
    kb = 0
    kc = 0
    p1 = 13
    p2 = 15
    bq = True
    hack = 0
    vdma = False
    kpre = 0
    sp = True
    k0 = 9
    xs = 0
    e4s = 0
    rnd = True
    dbgwg = -1
    dbgwave = 0
    spin = 0
for arg in sys.argv[2:]:
    k, v = arg.split('=')
    setattr(Cfg, k, type(getattr(Cfg, k))(int(v)))

NT = " nt" if Cfg.nt else ""
NTW = " nt" if Cfg.ntw else ""
NTQ = NT
NTL = " nt" if Cfg.ntl else ""
EPOCH = 0x0
E3X = 0x1000
E3L = 0x9000
E1 = 0x10000
E2 = 0x20000
E3A = 0xA0000
BOFF = 0x120000
E4 = 0x240000
STAMP = 0x300000
WS_SIZE = 0x400000
L_Q = 0
L_ML = 1024
L_CNT = 3072
L_H = 3136
L_O = 4096
L_F = L_O
L_K = 12288
L_W1 = L_K
L_V = 45056
LDS_BYTES = 77824 if Cfg.vdma else 45056

LOG2E = 1.4426950408889634
def f32(x):
    return "0x%08x" % struct.unpack('<I', struct.pack('<f', x))[0]

a = Asm()
a.raw("""; Single persistent launch, 256 workgroups (one per CU) x 8 waves; written with a small generator script.
; copies are written and polled, so any placement is correct.""")
a.raw("; @launch grid=(256,1,1) block=(512,1,1) lds=%d" % LDS_BYTES)
a.raw('.amdgcn_target "amdgcn-amd-amdhsa--gfx950"\n.text\n.globl %s_kernel\n.p2align 8\n.type %s_kernel,@function\n%s_kernel:' % (NAME, NAME, NAME))

DPPM = " row_mask:0xf bank_mask:0xf"
def stamp(i):
    if Cfg.stamps:
        a("s_memrealtime s[%d:%d]" % (64 + 2 * i, 65 + 2 * i))

def srd(dst, ptr, nbytes):
    a("s_mov_b32 s%d, s%d" % (dst, ptr))
    a("s_and_b32 s%d, s%d, 0xffff" % (dst + 1, ptr + 1))
    a("s_mov_b32 s%d, %d" % (dst + 2, nbytes))
    a("s_mov_b32 s%d, 0x20000" % (dst + 3))

def setexec(mask):
    if mask == -1:
        a("s_mov_b64 exec, -1")
    else:
        a("s_mov_b32 exec_lo, 0x%08x" % (mask & 0xffffffff))
        a("s_mov_b32 exec_hi, 0x%08x" % (mask >> 32))

def setmask(s, mask):
    a("s_mov_b32 s%d, 0x%08x" % (s, mask & 0xffffffff))
    a("s_mov_b32 s%d, 0x%08x" % (s + 1, mask >> 32))

def padd4(d, x, y):
    assert d % 2 == 0 and x % 2 == 0 and y % 2 == 0
    for k in (0, 2):
        a("v_pk_add_f32 v[%d:%d], v[%d:%d], v[%d:%d]" % (d + k, d + k + 1, x + k, x + k + 1, y + k, y + k + 1))

def sum16(X):
    padd4(X, X, X + 4)
    padd4(X + 8, X + 8, X + 12)
    padd4(X, X, X + 8)

def xhalf_add4(X):
    for k in (0, 2):
        a("v_pk_mov_b32 v[%d:%d], v[%d:%d], v[%d:%d] op_sel:[0,1]" % (X + 4 + k, X + 5 + k, X + k, X + k + 1, X + k, X + k + 1))
    for r in range(4):
        a("v_permlane32_swap_b32 v%d, v%d" % (X + r, X + 4 + r))
    padd4(X, X, X + 4)

def bfly(op, v, t, which):
    a("v_mov_b32 v%d, v%d" % (t, v))
    a("v_permlane%d_swap_b32 v%d, v%d" % (which, v, t))
    a("%s v%d, v%d, v%d" % (op, v, v, t))

def bf16r(dst, src):
    a("v_cvt_pk_bf16_f32 v%d, v%d, v%d" % (dst, src, src))
    a("v_and_b32 v%d, 0xffff0000, v%d" % (dst, dst))

S_ODD, S_B1, S_HI = 56, 58, 60
S_M4, S_M8 = 58, 96
S_TO = 62
S_SEL = 3

S_CNT = 33
def sel_step(thr):
    a("s_sub_u32 s%d, s%d, 1" % (S_TO, S_TO))
    a("s_cbranch_scc1 L_end")
    if thr is not None and not Cfg.forceB:
        assert Cfg.pd == 1
        a("s_xor_b32 s63, s%d, %d" % (S_SEL, BOFF))
        a("s_cmp_lt_u32 s%d, s1" % S_TO)
        a("s_cselect_b32 s%d, s63, s%d" % (S_SEL, S_SEL))

def retry(loop, dual):
    sel_step(True if dual else None)
    a("s_branch %s" % loop)

def sel_init(thr=None):
    a("s_mov_b32 s%d, %d" % (S_SEL, BOFF if Cfg.forceB else 0))
    a("s_sub_u32 s1, s%d, %d" % (S_TO, Cfg.bthr if thr is None else thr))

def ln_stats(f, valid, T, fill=None, pk=None, pre=None, mid=None):
    e = [T + k for k in range(8)]
    s1, s2, t1, t2 = T + 8, T + 9, T + 10, T + 11
    fill = list(fill or [])
    def filler():
        if fill:
            a(fill.pop(0))
    if pk is None:
        a("v_readlane_b32 s63, v%d, 0" % f[0])
        a("v_mov_b32 v%d, 0" % s1)
        a("v_mov_b32 v%d, 0" % s2)
        setexec(valid)
        for k in range(8):
            a("v_subrev_f32 v%d, s63, v%d" % (e[k], f[k]))
        a("v_add_f32 v%d, v%d, v%d" % (s1, e[0], e[1]))
        a("v_mul_f32 v%d, v%d, v%d" % (s2, e[0], e[0]))
        a("v_add_f32 v%d, v%d, v%d" % (t1, e[2], e[3]))
        a("v_mul_f32 v%d, v%d, v%d" % (t2, e[1], e[1]))
        for k in range(4, 8):
            a("v_add_f32 v%d, v%d, v%d" % (s1 if k % 2 == 0 else t1, s1 if k % 2 == 0 else t1, e[k]))
        for k in range(2, 8):
            a("v_fmac_f32 v%d, v%d, v%d" % (s2 if k % 2 == 0 else t2, e[k], e[k]))
        a("v_add_f32 v%d, v%d, v%d" % (s1, s1, t1))
        a("v_add_f32 v%d, v%d, v%d" % (s2, s2, t2))
    else:
        E, SS, QQ, TT = pk, pk + 8, pk + 10, pk + 12
        pr = lambda x: "v[%d:%d]" % (x, x + 1)
        a("v_readlane_b32 s24, v%d, 0" % f[0])
        a("v_mov_b32 v%d, 0" % s1)
        a("v_mov_b32 v%d, 0" % s2)
        if pre:
            pre()
        setexec(valid)
        a("s_mov_b32 s63, s24")
        for k in range(4):
            a("v_pk_add_f32 %s, %s, s[24:25] op_sel_hi:[1,0] neg_lo:[0,1] neg_hi:[0,1]" % (pr(E + 2 * k), pr(f[2 * k])))
        a("v_pk_add_f32 %s, %s, %s" % (pr(SS), pr(E), pr(E + 2)))
        a("v_pk_mul_f32 %s, %s, %s" % (pr(QQ), pr(E), pr(E)))
        a("v_pk_add_f32 %s, %s, %s" % (pr(TT), pr(E + 4), pr(E + 6)))
        a("v_pk_fma_f32 %s, %s, %s, %s" % (pr(QQ), pr(E + 2), pr(E + 2), pr(QQ)))
        a("v_pk_add_f32 %s, %s, %s" % (pr(SS), pr(SS), pr(TT)))
        a("v_pk_fma_f32 %s, %s, %s, %s" % (pr(QQ), pr(E + 4), pr(E + 4), pr(QQ)))
        a("v_add_f32 v%d, v%d, v%d" % (s1, SS, SS + 1))
        a("v_pk_fma_f32 %s, %s, %s, %s" % (pr(QQ), pr(E + 6), pr(E + 6), pr(QQ)))
        a("v_add_f32 v%d, v%d, v%d" % (s2, QQ, QQ + 1))
    if mid:
        mid()
    else:
        setexec(-1)
    for i, r in enumerate((8, 4, 2, 1)):
        a("v_add_f32_dpp v%d, v%d, v%d row_ror:%d%s" % (s1, s1, s1, r, DPPM))
        a("v_add_f32_dpp v%d, v%d, v%d row_ror:%d%s" % (s2, s2, s2, r, DPPM))
        filler()
    for which in (16, 32):
        a("v_mov_b32 v%d, v%d" % (t1, s1))
        a("v_mov_b32 v%d, v%d" % (t2, s2))
        filler()
        a("v_permlane%d_swap_b32 v%d, v%d" % (which, s1, t1))
        a("v_permlane%d_swap_b32 v%d, v%d" % (which, s2, t2))
        a("v_add_f32 v%d, v%d, v%d" % (s1, s1, t1))
        a("v_add_f32 v%d, v%d, v%d" % (s2, s2, t2))
    a("v_mul_f32 v%d, %s, v%d" % (s1, f32(1.0 / 448), s1))
    a("v_mul_f32 v%d, %s, v%d" % (s2, f32(1.0 / 448), s2))
    a("v_fma_f32 v%d, -v%d, v%d, v%d" % (s2, s1, s1, s2))
    a("v_add_f32 v%d, s63, v%d" % (s1, s1))
    a("v_max_f32 v%d, 0, v%d" % (s2, s2))
    a("v_cvt_pk_bf16_f32 v%d, v%d, v%d" % (t1, s1, s2))
    a("v_and_b32 v%d, 0xffff0000, v%d" % (s2, t1))
    a("v_lshlrev_b32 v%d, 16, v%d" % (s1, t1))
    a("v_add_f32 v%d, %s, v%d" % (s2, f32(1e-5), s2))
    bf16r(s2, s2)
    a("v_sqrt_f32 v%d, v%d" % (s2, s2))
    while fill:
        filler()
    return s1, s2

def ln_apply(f, e, pk, s1, s2):
    n = len(f)
    for k in range(n):
        a("v_sub_f32 v%d, v%d, v%d" % (e[k], f[k], s1))
    bf16r(s2, s2)
    a("v_rcp_f32 v%d, v%d" % (s2, s2))
    for k in range(n // 2):
        a("v_cvt_pk_bf16_f32 v%d, v%d, v%d" % (pk[k], e[2 * k], e[2 * k + 1]))
    for k in range(n // 2):
        a("v_lshlrev_b32 v%d, 16, v%d" % (e[2 * k], pk[k]))
        a("v_and_b32 v%d, 0xffff0000, v%d" % (e[2 * k + 1], pk[k]))
    for k in range(n):
        a("v_mul_f32 v%d, v%d, v%d" % (e[k], e[k], s2))

def layernorm(f, out, valid, T):
    e = [T + k for k in range(8)]
    pk = [T + 12 + k for k in range(4)]
    s1, s2 = ln_stats(f, valid, T, ["v_mov_b32 v%d, 0" % (out + i) for i in range(4)])
    ln_apply(f, e, pk, s1, s2)
    setexec(valid)
    for k in range(4):
        a("v_cvt_pk_bf16_f32 v%d, v%d, v%d" % (out + k, e[2 * k], e[2 * k + 1]))
    setexec(-1)

def quad_transpose_reduce(v, dst, T):
    k0, g0, k1, g1 = T, T + 1, T + 2, T + 3
    a("v_cndmask_b32 v%d, v%d, v%d, s[%d:%d]" % (g0, v[1], v[0], S_ODD, S_ODD + 1))
    a("v_cndmask_b32 v%d, v%d, v%d, s[%d:%d]" % (g1, v[3], v[2], S_ODD, S_ODD + 1))
    a("v_cndmask_b32 v%d, v%d, v%d, s[%d:%d]" % (k0, v[0], v[1], S_ODD, S_ODD + 1))
    a("v_cndmask_b32 v%d, v%d, v%d, s[%d:%d]" % (k1, v[2], v[3], S_ODD, S_ODD + 1))
    a("v_add_f32_dpp v%d, v%d, v%d quad_perm:[1,0,3,2]%s" % (k0, g0, k0, DPPM))
    a("v_add_f32_dpp v%d, v%d, v%d quad_perm:[1,0,3,2]%s" % (k1, g1, k1, DPPM))
    a("v_cndmask_b32 v%d, v%d, v%d, s[%d:%d]" % (g0, k1, k0, S_B1, S_B1 + 1))
    a("v_cndmask_b32 v%d, v%d, v%d, s[%d:%d]" % (dst, k0, k1, S_B1, S_B1 + 1))
    a("v_add_f32_dpp v%d, v%d, v%d quad_perm:[2,3,0,1]%s" % (dst, g0, dst, DPPM))

S_B2, S_B3 = S_B1, 4
def reduce16(v, dst):
    for r in range(4):
        a("v_add_f32_dpp v%d, v%d, v%d row_ror:8%s" % (v[r], v[r], v[r], DPPM))
    for r in range(4):
        a("v_add_f32_dpp v%d, v%d, v%d row_ror:4%s" % (v[r], v[r], v[r], DPPM))
    a("v_cndmask_b32 v%d, v%d, v%d, s[%d:%d]" % (v[0], v[0], v[1], S_M4, S_M4 + 1))
    a("v_cndmask_b32 v%d, v%d, v%d, s[%d:%d]" % (v[2], v[2], v[3], S_M4, S_M4 + 1))
    a("v_cndmask_b32 v%d, v%d, v%d, s[%d:%d]" % (dst, v[0], v[2], S_M8, S_M8 + 1))

def check12(n, X, oklab, G=None, T0=None, mask=0xfff, acc=(5, 6, 7)):
    if G is None:
        G = V_G
    for t in range(n):
        for r in range(4):
            a("v_xor_b32 v%d, v%d, v%d" % (X + 4 * t + r, G + 4 * t + r, T0 if (r == 0 and T0 is not None) else V_T + r))
    regs = [X + i for i in range(4 * n)]
    acc = list(acc)
    cur = regs[:]
    outs = []
    i = 0
    while len(cur) >= 3 and i < 3:
        a("v_or3_b32 v%d, v%d, v%d, v%d" % (acc[i], cur[0], cur[1], cur[2])); cur = cur[3:]; outs.append(acc[i]); i += 1
    i = 0
    while len(cur) >= 2:
        o = outs[i % len(outs)]
        a("v_or3_b32 v%d, v%d, v%d, v%d" % (o, o, cur[0], cur[1])); cur = cur[2:]; i += 1
    rest = outs + cur
    while len(rest) > 1:
        if len(rest) >= 3:
            a("v_or3_b32 v%d, v%d, v%d, v%d" % (acc[0], rest[0], rest[1], rest[2])); rest = [acc[0]] + rest[3:]
        else:
            a("v_or_b32 v%d, v%d, v%d" % (acc[0], rest[0], rest[1])); rest = [acc[0]]
    a("v_and_b32 v%d, 0x%x, v%d" % (acc[0], mask, rest[0]))
    a("v_cmp_ne_u32 vcc, 0, v%d" % acc[0])
    a("s_cbranch_vccz %s" % oklab)

V_I16, V_GRP, V_LANE = 1, 2, 3
V_M, V_T = 196, 200
V_TA, V_TB, V_T8, V_ONE = 204, 205, 206, 207
V_B1, V_X = 212, 208
V_GA = 213
V_PUB = 214
V_XA = 215
V_ACC = 216
V_G = 232
V_W1A, V_LW = 248, 249
NVGPR = 252
V_K, V_V, V_QF = 32, 64, 96
V_W = 32
V_W1F = 64
V_BB = 96
V_S1 = 112
V_S2 = 144

def tag12(dst, src):
    for r in range(4):
        if Cfg.rnd:
            a("v_add_u32 v%d, 0x800, v%d" % (dst + r, src + r))
            src_r = dst + r
        else:
            src_r = src + r
    for r in range(4):
        a("v_bfi_b32 v%d, s63, v%d, v%d" % (dst + r, V_T + r, (dst if Cfg.rnd else src) + r))

def get_xcc():
    if Cfg.fakex:
        a("s_and_b32 s99, s33, 15")
    else:
        a("s_getreg_b32 s99, hwreg(HW_REG_XCC_ID)")
        a("s_and_b32 s99, s99, 15")

def make_masks():
    a("v_and_b32 v10, 1, v%d" % V_I16)
    a("v_lshlrev_b32 v10, 4, v10")
    a("v_mov_b32 v11, 0xffff")
    a("v_lshlrev_b32 v11, v10, v11")
    a("v_bfe_u32 v10, v%d, 1, 2" % V_I16)
    for rho in range(4):
        a("v_cmp_eq_u32 vcc, %d, v10" % rho)
        a("v_cndmask_b32 v%d, 0, v11, vcc" % (V_M + rho))

def make_tags(full=True):
    a("s_waitcnt lgkmcnt(0)")
    for k in range(4):
        a("s_add_u32 s%d, s%d, 1" % (28 + k, 28 + k))
    if full:
        for k in range(4):
            if k in (1, 3):
                a("s_lshr_b32 s63, s%d, %d" % (28 + k, 12 if k == 1 else 20))
                a("s_xor_b32 s63, s63, s%d" % (28 + k))
                a("s_and_b32 s63, s63, 0xfff")
            else:
                a("s_and_b32 s63, s%d, 0xfff" % (28 + k))
            a("v_mov_b32 v%d, s63" % (V_T + k))
    a("v_mov_b32 v%d, s31" % V_TB)
    a("s_and_b32 s63, s30, 0xff")
    a("v_mov_b32 v%d, s63" % V_T8)

if Cfg.stamps:
    for i in range(16):
        a("s_mov_b64 s[%d:%d], 0" % (64 + 2 * i, 65 + 2 * i))
stamp(0)
a("s_load_dwordx16 s[4:19], s[0:1], 0")
a("s_load_dwordx8 s[20:27], s[0:1], 64")
a("s_cmp_ge_u32 s2, 256")
a("s_cbranch_scc1 L_exit")
a("v_lshrrev_b32 v4, 6, v0")
a("v_and_b32 v%d, 63, v0" % V_LANE)
a("v_readfirstlane_b32 s34, v4")
a("v_and_b32 v%d, 15, v0" % V_I16)
a("v_bfe_u32 v%d, v0, 4, 2" % V_GRP)
a("s_and_b32 s32, s2, 7")
a("s_lshr_b32 s33, s2, 3")
a("s_and_b32 s35, s34, 3")
a("s_cmp_ge_u32 s34, 4")
a("s_cbranch_scc1 L_tail")

a("s_lshl_b32 s48, s32, 22")
a("s_lshl_b32 s49, s33, 15")
a("s_add_u32 s48, s48, s49")
a("s_lshl_b32 s49, s34, 13")
a("s_add_u32 s48, s48, s49")
a("s_add_u32 s48, s48, %d" % (6144 * 512))
if Cfg.kdma:
    a("v_lshrrev_b32 v4, 2, v%d" % V_LANE)
    a("v_lshlrev_b32 v4, 9, v4")
    a("v_and_b32 v5, 3, v%d" % V_LANE)
    a("v_lshl_add_u32 v4, v5, 4, v4")
    a("s_add_u32 s49, s49, %d" % L_K)
else:
    a("v_lshlrev_b32 v4, 9, v%d" % V_I16)
    a("v_lshl_add_u32 v4, v%d, 4, v4" % V_GRP)
a("v_lshlrev_b32 v5, 11, v%d" % V_GRP)
a("v_lshl_add_u32 v5, v%d, 4, v5" % V_I16)
a("s_mov_b32 s42, 33554432")
a("s_mov_b32 s43, 0x20000")
a("s_mov_b32 s46, 33554432")
a("s_mov_b32 s47, 0x20000")
a("s_waitcnt lgkmcnt(0)")
a("s_mov_b32 s40, s6")
a("s_and_b32 s41, s7, 0xffff")
a("s_mov_b32 s44, s8")
a("s_and_b32 s45, s9, 0xffff")
stamp(11)
nissued = [0]
def paced(text):
    if Cfg.depth and nissued[0] >= Cfg.depth and nissued[0] < Cfg.n1:
        a("s_waitcnt vmcnt(%d)" % (Cfg.depth - 1))
    a(text)
    nissued[0] += 1
loads = []
for s in range(8):
    if Cfg.kdma:
        loads.append(["s_add_u32 m0, s49, %d" % (960 * s), "buffer_load_dwordx4 v4, s[40:43], s48 offen offset:%d%s lds" % (64 * s, NT)])
    else:
        loads.append("buffer_load_dwordx4 v[%d:%d], v4, s[40:43], s48 offen offset:%d%s" % (V_K + 4 * s, V_K + 4 * s + 3, 64 * s, NT))
def emit(t):
    for x in ([t] if isinstance(t, str) else t):
        a(x)
for r in range(4):
    for h in range(2):
        n = 2 * r + h
        if Cfg.vdma:
            loads.append(["s_add_u32 m0, s49, %d" % (L_V - L_K + 1024 * n - 256 * n), "buffer_load_dwordx4 v5, s[44:47], s48 offen offset:%d%s lds" % (256 * n, NT)])
        else:
            loads.append("buffer_load_dwordx4 v[%d:%d], v5, s[44:47], s48 offen offset:%d%s" % (V_V + 4 * n, V_V + 4 * n + 3, 512 * r + 256 * h, NT))
nfirst = 8 + Cfg.nearly
for i, t in enumerate(loads[:Cfg.k0]):
    if i == Cfg.kpre and Cfg.b0:
        a("s_barrier")
    emit(t)
stamp(12)
a("s_load_dwordx4 s[28:31], s[26:27], %d" % EPOCH)
srd(36, 26, WS_SIZE)
make_masks()
a("v_lshrrev_b32 v7, 3, v%d" % V_I16)
a("v_lshlrev_b32 v7, 9, v7")
a("v_lshl_add_u32 v7, v%d, 4, v7" % V_GRP)
a("s_lshl_b32 s63, s34, 11")
a("v_lshl_add_u32 v%d, v%d, 4, s63" % (V_LW, V_LANE))
a("s_lshl_b32 s63, s34, 9")
a("v_lshl_add_u32 v23, v%d, 3, s63" % V_LANE)
a("s_lshl_b32 s63, s34, 10")
a("v_lshl_add_u32 v21, v%d, 4, s63" % V_LANE)
a("v_lshlrev_b32 v22, 3, v%d" % V_LANE)
a("s_lshl_b32 s55, s32, 5")
a("s_add_u32 s55, s55, s33")
a("s_lshl_b32 s55, s55, 11")
a("s_add_u32 s50, s55, %d" % E2)
a("s_add_u32 s51, s55, %d" % (E2 + BOFF))
make_tags(True)
a("v_mov_b32 v31, v%d" % V_TB)
a("v_mov_b32 v6, 0")
a("v_mov_b32 v29, 1")
a("ds_write_b32 v6, v6 offset:%d" % L_CNT)
a("ds_write_b32 v6, v6 offset:%d" % (L_CNT + 4))
a("s_mov_b32 s%d, %d" % (S_TO, Cfg.timeout))
get_xcc()
NPF = [0]
def wo_prefetch():
    pass
a("s_lshl_b32 s52, s32, 13")
a("s_add_u32 s52, s52, %d" % E1)
a("v_and_b32 v8, 31, v%d" % V_LANE)
a("s_lshl_b32 s63, s34, 5")
a("v_add_u32 v8, s63, v8")
a("v_lshrrev_b32 v9, 5, v%d" % V_LANE)
a("v_lshlrev_b32 v9, 12, v9")
a("v_lshl_add_u32 v24, v8, 4, v9")
a("v_and_b32 v9, 7, v8")
a("v_sub_u32 v8, v8, v9")
a("v_lshl_add_u32 v8, v8, 2, v9")
a("v_lshlrev_b32 v26, 1, v8")
a("v_lshlrev_b32 v25, 6, v%d" % V_I16)
a("v_lshl_add_u32 v25, v%d, 4, v25" % V_GRP)
a("v_add_u32 v25, s49, v25")
if Cfg.vdma:
    a("v_lshl_add_u32 v28, v%d, 4, s49" % V_LANE)
sel_init(32)
GS = [128, 136]
XC = 12
V_E0 = 27
E1M = 0x3ff
def e1_issue(k):
    a("s_add_u32 s53, s52, s%d" % S_SEL)
    a("s_cmp_eq_u32 s%d, 0" % S_SEL)
    a("s_cselect_b32 s98, s99, 0")
    a("s_cselect_b32 s0, 0, 1")
    a("v_xor_b32 v%d, s98, v%d" % (V_E0, V_T))
    for u in range(2):
        a("buffer_load_dwordx4 v[%d:%d], v24, s[36:39], s53 offen offset:%d sc1" % (GS[k] + 4 * u, GS[k] + 4 * u + 3, 2048 * u))
def e1_check(k):
    check12(2, XC, "L_e1ok", GS[k], V_E0, E1M, acc=(144, 145, 146))
a("s_waitcnt lgkmcnt(0)")
if Cfg.sp:
    a("s_setprio 3")
a("s_barrier")
order = [("L", i) for i in range(Cfg.k0)]
rounds = [p for p in (Cfg.p1, Cfg.p2) if p]
for i in range(Cfg.k0, 17):
    for k, p in enumerate(rounds):
        if p == i:
            e1_issue(k)
            if Cfg.sp:
                a("s_setprio %d" % (len(rounds) - 1 - k))
            order += [("P", k), ("P", k)]
    if i < 16:
        emit(loads[i])
        order.append(("L", i))
stamp(13)
def younger(item):
    last = max(i for i, x in enumerate(order) if x == item)
    return len(order) - 1 - last
a("s_waitcnt vmcnt(%d)" % younger(("L", 7)))
for s in range(8):
    a("ds_read_b128 v[%d:%d], v25 offset:%d" % (V_K + 4 * s, V_K + 4 * s + 3, 1024 * s))
for k in range(len(rounds)):
    a("s_waitcnt vmcnt(%d)" % younger(("P", k)))
    e1_check(k)
a.label("L_e1poll")
sel_step(True)
e1_issue(0)
a("s_waitcnt vmcnt(0)")
e1_check(0)
a("s_branch L_e1poll")
a.label("L_e1ok")
stamp(7)
padd4(XC, XC, XC + 4)
xhalf_add4(XC)
a("v_cvt_pk_bf16_f32 v8, v%d, v%d" % (XC, XC + 1))
a("v_cvt_pk_bf16_f32 v9, v%d, v%d" % (XC + 2, XC + 3))
a("s_mov_b32 exec_hi, 0")
a("ds_write_b16 v26, v8 offset:%d" % (L_Q))
a("ds_write_b16_d16_hi v26, v8 offset:%d" % (L_Q + 16))
a("ds_write_b16 v26, v9 offset:%d" % (L_Q + 32))
a("ds_write_b16_d16_hi v26, v9 offset:%d" % (L_Q + 48))
setexec(-1)
a("s_cmp_eq_u32 s0, 0")
a("s_cbranch_scc1 L_fastq")
a("ds_write_b32 v6, v29 offset:%d" % (L_CNT + 4))
a.label("L_fastq")
stamp(1)
a("s_waitcnt lgkmcnt(0)")
if Cfg.prio:
    a("s_setprio 2")
a("s_barrier")
stamp(2)
for s in range(8):
    a("ds_read_b128 v[%d:%d], v7 offset:%d" % (V_QF + 4 * s, V_QF + 4 * s + 3, L_Q + 64 * s))
a("s_mov_b32 s63, %s" % f32(0.0625 * LOG2E))
S = V_ACC
for s in range(8):
    a("s_waitcnt lgkmcnt(%d)" % (0 if Cfg.stamps else 7 - s))
    a("v_mfma_f32_16x16x32_bf16 v[%d:%d], v[%d:%d], v[%d:%d], %s" % (S, S + 3, V_K + 4 * s, V_K + 4 * s + 3, V_QF + 4 * s, V_QF + 4 * s + 3, "0" if s == 0 else "v[%d:%d]" % (S, S + 3)))
def vread(lo, hi):
    a("s_waitcnt vmcnt(%d)" % younger(("L", 8 + hi - 1)))
    for n in range(lo, hi):
        a("ds_read_b128 v[%d:%d], v28 offset:%d" % (V_V + 4 * n, V_V + 4 * n + 3, L_V - L_K + 1024 * n))
if Cfg.vdma:
    vread(0, Cfg.p1 - 8)
a("v_cvt_pk_bf16_f32 v8, v%d, v%d" % (S, S + 1))
a("v_cvt_pk_bf16_f32 v9, v%d, v%d" % (S + 2, S + 3))
a("v_lshlrev_b32 v10, 16, v8")
a("v_and_b32 v11, 0xffff0000, v8")
a("v_lshlrev_b32 v12, 16, v9")
a("v_and_b32 v13, 0xffff0000, v9")
a("v_max3_f32 v14, v10, v11, v12")
a("v_max_f32 v14, v14, v13")
bfly("v_max_f32", 14, 15, 16)
bfly("v_max_f32", 14, 15, 32)
a("v_mul_f32 v14, s63, v14")
for r in range(4):
    a("v_fma_f32 v%d, v%d, s63, -v14" % (10 + r, 10 + r))
for r in range(4):
    a("v_exp_f32 v%d, v%d" % (10 + r, 10 + r))
for r in range(4):
    a("v_cvt_pk_bf16_f32 v%d, v%d, v%d" % (16 + r, 10 + r, 10 + r))
O = V_ACC + 4
BB = V_QF
def bbuild(r):
    for rho in range(4):
        a("v_and_b32 v%d, v%d, v%d" % (BB + 4 * r + rho, 16 + r, V_M + rho))
def pv(r):
    if not Cfg.vdma:
        a("s_waitcnt vmcnt(%d)" % younger(("L", 8 + 2 * r + 1)))
    else:
        a("s_waitcnt lgkmcnt(%d)" % (0 if Cfg.stamps else 6 - 2 * r))
    for h in range(2):
        n = 2 * r + h
        a("v_mfma_f32_16x16x32_bf16 v[%d:%d], v[%d:%d], v[%d:%d], %s" % (O + 4 * h, O + 4 * h + 3, V_V + 4 * n, V_V + 4 * n + 3, BB + 4 * r, BB + 4 * r + 3, "0" if r == 0 else "v[%d:%d]" % (O + 4 * h, O + 4 * h + 3)))
    if r == Cfg.pfat:
        wo_prefetch()
if Cfg.vdma:
    vread(Cfg.p1 - 8, 8)
bbuild(0)
bbuild(1)
stamp(5)
pv(0)
bbuild(2)
a("v_add_f32 v15, v10, v11")
a("v_add_f32 v20, v12, v13")
pv(1)
bbuild(3)
a("v_add_f32 v15, v15, v20")
pv(2)
bfly("v_add_f32", 15, 20, 16)
pv(3)
stamp(6)
bfly("v_add_f32", 15, 20, 32)
a("ds_write_b64 v23, v[14:15] offset:%d" % L_ML)
a("ds_write_b128 v%d, v[%d:%d] offset:%d" % (V_LW, O, O + 3, L_O))
a("ds_write_b128 v%d, v[%d:%d] offset:%d" % (V_LW, O + 4, O + 7, L_O + 1024))
setexec(1)
a("ds_add_u32 v6, v29 offset:%d" % L_CNT)
setexec(-1)
a("s_cmp_ge_u32 s34, 2")
a("s_cbranch_scc1 L_att_exit")
a.label("L_cnt")
a("ds_read_b32 v8, v6 offset:%d" % L_CNT)
a("s_sub_u32 s%d, s%d, 1" % (S_TO, S_TO))
a("s_cbranch_scc1 L_end")
a("s_waitcnt lgkmcnt(0)")
a("v_cmp_gt_u32 vcc, 4, v8")
a("s_cbranch_vccnz L_cnt")
stamp(3)
for w in range(4):
    a("ds_read_b64 v[%d:%d], v22 offset:%d" % (10 + 2 * w, 11 + 2 * w, L_ML + 512 * w))
for w in range(4):
    a("ds_read_b128 v[%d:%d], v21 offset:%d" % (V_G + 4 * w, V_G + 4 * w + 3, L_O + 2048 * w))
a("s_movk_i32 s63, 0xff")
a("s_waitcnt lgkmcnt(4)" if not Cfg.stamps else "s_waitcnt lgkmcnt(0)")
a("v_max3_f32 v18, v10, v12, v14")
a("v_max_f32 v18, v18, v16")
for w in range(4):
    a("v_sub_f32 v%d, v%d, v18" % (10 + 2 * w, 10 + 2 * w))
for w in range(4):
    a("v_exp_f32 v%d, v%d" % (10 + 2 * w, 10 + 2 * w))
a("v_mul_f32 v19, v10, v11")
for w in range(1, 4):
    a("v_fmac_f32 v19, v%d, v%d" % (10 + 2 * w, 11 + 2 * w))
a("v_rcp_f32 v20, v19")
a("v_log_f32 v9, v19")
a("s_waitcnt lgkmcnt(0)")
BC = " op_sel_hi:[0,1]"
for k in (0, 2):
    a("v_pk_mul_f32 v[%d:%d], v[10:11], v[%d:%d]%s" % (24 + k, 25 + k, V_G + k, V_G + k + 1, BC))
for w in range(1, 4):
    for k in (0, 2):
        a("v_pk_fma_f32 v[%d:%d], v[%d:%d], v[%d:%d], v[%d:%d] op_sel_hi:[0,1,1]" % (24 + k, 25 + k, 10 + 2 * w, 11 + 2 * w, V_G + 4 * w + k, V_G + 4 * w + k + 1, 24 + k, 25 + k))
a("v_add_f32 v9, v9, v18")
for k in (0, 2):
    a("v_pk_mul_f32 v[%d:%d], v[20:21], v[%d:%d]%s" % (24 + k, 25 + k, 24 + k, 25 + k, BC))
a("v_bfi_b32 v30, s63, v%d, v9" % V_T8)
a("v_cvt_pk_bf16_f32 v28, v24, v25")
a("v_cvt_pk_bf16_f32 v29, v26, v27")
if not Cfg.noA:
    a("buffer_store_dwordx4 v[28:31], v21, s[36:39], s50 offen")
def bdefer():
    if Cfg.bd == 1:
        a("s_waitcnt vmcnt(0)")
    elif Cfg.bd > 1:
        a("s_sleep %d" % Cfg.bd)
a("v_mov_b32 v8, 1")
setexec(1)
a("ds_add_u32 v6, v8 offset:%d" % L_CNT)
setexec(-1)
stamp(4)
def skip_if_local(tmp, lab):
    if Cfg.xcc:
        a("v_mov_b32 v%d, 0" % tmp)
        a("ds_read_b32 v%d, v%d offset:%d" % (tmp, tmp, L_CNT + 4))
        a("s_waitcnt lgkmcnt(0)")
        a("v_cmp_eq_u32 vcc, 0, v%d" % tmp)
        a("s_cbranch_vccnz %s" % lab)
bdefer()
skip_if_local(8, "L_end")
if not Cfg.noB:
    a("buffer_store_dwordx4 v[28:31], v21, s[36:39], s51 offen sc1")
a("s_branch L_end")

a.label("L_att_exit")
if Cfg.fpf:
    a("s_cmp_lt_u32 s33, 16")
    a("s_cbranch_scc1 L_end")
    a("s_sub_u32 s52, s33, 16")
    a("s_lshl_b32 s52, s52, 1")
    a("s_add_u32 s52, s52, s34")
    a("s_sub_u32 s52, s52, 2")
    a("s_mul_i32 s54, s32, %d" % (224 * 896))
    a("s_mul_i32 s63, s52, %d" % (49 * 128))
    a("s_add_u32 s54, s54, s63")
    a("s_mul_i32 s49, s32, 448")
    a("s_mul_i32 s63, s52, %d" % (14 * 3584))
    a("s_add_u32 s49, s49, s63")
    a("v_lshrrev_b32 v25, 2, v%d" % V_LANE)
    a("v_mul_u32_u24 v25, 3584, v25")
    a("v_and_b32 v26, 3, v%d" % V_LANE)
    a("v_mul_u32_u24 v26, 148, v26")
    a("v_add_u32 v25, v25, v26")
    a("s_mov_b32 s18, %d" % (448 * 3584))
    a("s_mov_b32 s19, 0x20000")
    a("s_and_b32 s17, s17, 0xffff")
    a("s_mov_b32 s22, %d" % (1792 * 896))
    a("s_mov_b32 s23, 0x20000")
    a("s_and_b32 s21, s21, 0xffff")
    a("s_mov_b32 exec_hi, 0x00ffffff")
    a("buffer_load_dword v250, v25, s[16:19], s49 offen")
    a("s_mov_b32 exec_hi, 0x0001ffff")
    a("buffer_load_dword v250, v24, s[20:23], s54 offen")
a("s_branch L_end")

a.label("L_tail")
a.flush()
a("s_cmp_lg_u32 s34, 4")
a("s_cbranch_scc1 L_tail_common")
a("v_lshrrev_b32 v4, 3, v%d" % V_I16)
a("v_mul_u32_u24 v4, 56, v4")
a("v_mul_u32_u24 v5, 14, v%d" % V_GRP)
a("v_add_u32 v4, v4, v5")
a("v_lshlrev_b32 v5, 13, v4")
a("v_and_b32 v6, 7, v%d" % V_I16)
a("v_lshl_add_u32 v5, v6, 4, v5")
a("v_lshlrev_b32 v4, 1, v4")
a("v_lshlrev_b32 v6, 6, v%d" % V_I16)
a("v_lshl_add_u32 v6, v%d, 4, v6" % V_GRP)
a("s_lshr_b32 s50, s33, 3")
a("s_mul_i32 s52, s50, %d" % (112 * 8192))
a("s_lshl_b32 s53, s32, 10")
a("s_add_u32 s52, s52, s53")
a("s_and_b32 s53, s33, 7")
a("s_lshl_b32 s53, s53, 7")
a("s_add_u32 s52, s52, s53")
a("s_mul_i32 s51, s50, 224")
a("s_mov_b32 s42, %d" % (448 * 8192))
a("s_mov_b32 s43, 0x20000")
a("s_mov_b32 s46, 896")
a("s_mov_b32 s47, 0x20000")
a("s_setprio 3")
a("s_waitcnt lgkmcnt(0)")
a("s_mov_b32 s44, s4")
a("s_and_b32 s45, s5, 0xffff")
a("s_mov_b32 s40, s10")
a("s_and_b32 s41, s11, 0xffff")
stamp(11)
WQ, BQ, XR14 = 32, 88, 144
a("buffer_load_dwordx4 v[%d:%d], v6, s[44:47], 0 offen" % (V_G, V_G + 3))
a("buffer_load_dwordx4 v[%d:%d], v4, s[44:47], s51 offen" % (XR14, XR14 + 3))
a("buffer_load_dwordx3 v[%d:%d], v4, s[44:47], s51 offen offset:16" % (XR14 + 4, XR14 + 6))
for t in range(14):
    a("buffer_load_dwordx4 v[%d:%d], v5, s[40:43], s52 offen%s" % (WQ + 4 * t, WQ + 4 * t + 3, NTQ))
    if t < 13:
        a("s_add_u32 s52, s52, 8192")
stamp(12)
a.label("L_tail_common")
a("s_waitcnt lgkmcnt(0)")
if Cfg.tlb == 2:
    a("s_cmp_lg_u32 s34, 6")
    a("s_cbranch_scc1 L_notlb")
    a("s_mul_i32 s48, s32, %d" % (512 * 896))
    a("s_add_u32 s49, s48, %d" % (511 * 896))
    a("s_mul_i32 s50, s32, %d" % (224 * 896))
    a("s_mov_b32 s51, %d" % (447 * 3584))
    a("s_mov_b32 s54, %d" % (E4 + 2044))
    a("s_lshl_b32 s55, s32, 22")
    a("s_add_u32 s55, s55, %d" % (6144 * 512))
    a("s_load_dword s40, s[8:9], s55")
    a("s_load_dword s41, s[12:13], s48")
    a("s_load_dword s42, s[12:13], s49")
    a("s_load_dword s43, s[20:21], s50")
    a("s_load_dword s44, s[16:17], 0")
    a("s_load_dword s45, s[16:17], s51")
    a("s_load_dword s46, s[18:19], 0")
    a("s_load_dword s47, s[22:23], 0")
    a("s_load_dword s98, s[26:27], s54")
    a.label("L_notlb")
if Cfg.b0:
    a("s_barrier")
a("s_load_dwordx4 s[28:31], s[26:27], %d" % EPOCH)
srd(36, 26, WS_SIZE)
a("s_mov_b32 s%d, %d" % (S_TO, Cfg.timeout))
get_xcc()
setmask(S_ODD, 0xAAAAAAAAAAAAAAAA)
setmask(S_M4, 0xF0F0F0F0F0F0F0F0)
setmask(S_M8, 0xFF00FF00FF00FF00)
setmask(S_HI, 0xFFFFFFFF00000000)
a("v_mov_b32 v%d, 1.0" % V_ONE)
a("v_lshrrev_b32 v8, 2, v%d" % V_LANE)
a("v_lshlrev_b32 v8, 11, v8")
a("v_and_b32 v9, 3, v%d" % V_LANE)
a("v_lshl_add_u32 v%d, v9, 4, v8" % V_GA)
make_masks()
a("v_lshl_add_u32 v8, v%d, 3, v%d" % (V_GRP, V_I16))
a("v_lshlrev_b32 v%d, 4, v8" % V_PUB)
a("s_lshl_b32 s52, s32, 13")
a("s_add_u32 s52, s52, %d" % E1)
a("s_lshl_b32 s53, s33, 8")
a("s_add_u32 s53, s53, s52")
a("s_cmp_lg_u32 s34, 4")
a("s_cbranch_scc1 L_notq")
a("s_add_u32 s49, s53, %d" % BOFF)
a("s_waitcnt vmcnt(14)")
stamp(1)
XF, XV, XE, XP = 152, 160, 176, 216
for k in range(4):
    a("v_lshlrev_b32 v%d, 16, v%d" % (XF + 2 * k, V_G + k))
    a("v_and_b32 v%d, 0xffff0000, v%d" % (XF + 2 * k + 1, V_G + k))
fill = []
for k in range(7):
    fill.append("v_lshlrev_b32 v%d, 16, v%d" % (XV + 2 * k, XR14 + k))
    fill.append("v_and_b32 v%d, 0xffff0000, v%d" % (XV + 2 * k + 1, XR14 + k))
s1, s2 = ln_stats([XF + k for k in range(8)], 0x3FFF3FFF3FFF3FFF, 8, fill)
ln_apply([XV + k for k in range(14)], [XE + k for k in range(14)], [XP + k for k in range(7)], s1, s2)
for t in range(14):
    a("v_cvt_pk_bf16_f32 v%d, v%d, v%d" % (XE + t, XE + t, XE + t))
make_tags()
stamp(6)
QA = V_ACC
for t in range(15):
    if t < 14:
        for rho in range(4):
            a("v_and_b32 v%d, v%d, v%d" % (BQ + 4 * t + rho, XE + t, V_M + rho))
    if t >= 1:
        u = t - 1
        a("s_waitcnt vmcnt(%d)" % (13 - u))
        a("v_mfma_f32_16x16x32_bf16 v[%d:%d], v[%d:%d], v[%d:%d], %s" % (QA, QA + 3, WQ + 4 * u, WQ + 4 * u + 3, BQ + 4 * u, BQ + 4 * u + 3, "0" if u == 0 else "v[%d:%d]" % (QA, QA + 3)))
stamp(2)
a("s_movk_i32 s63, 0xfff")
for r in range(4):
    a("v_mov_b32_dpp v%d, v%d row_ror:8%s" % (8 + r, QA + r, DPPM))
for r in range(4):
    a("v_mov_b32 v%d, v%d" % (12 + r, 8 + r))
for r in range(4):
    a("v_permlane32_swap_b32 v%d, v%d" % (8 + r, 12 + r))
for r in range(4):
    a("v_add_f32 v%d, v%d, v%d" % (12 + r, 12 + r, QA + r))
for r in range(4):
    a("v_add_u32 v%d, 0x%x, v%d" % (12 + r, (E1M + 1) // 2, 12 + r))
for r in range(4):
    a("v_and_b32 v%d, 0x%x, v%d" % (12 + r, 0xffffffff ^ E1M, 12 + r))
for r in range(4):
    a("v_xor_b32 v%d, v%d, v%d" % (28 + r, 12 + r, V_T + r))
setexec(0x0000000000FF00FF)
a("v_xor_b32 v16, s99, v28")
for r in range(1, 4):
    a("v_mov_b32 v%d, v%d" % (16 + r, 28 + r))
if not Cfg.noA:
    a("buffer_store_dwordx4 v[16:19], v%d, s[36:39], s53 offen" % V_PUB)
a("buffer_store_dwordx4 v[28:31], v%d, s[36:39], s49 offen sc1" % V_PUB)
setexec(-1)
a("s_setprio 0")
stamp(3)
a("s_branch L_e1")
a.label("L_notq")
a.flush()
make_tags()
if Cfg.pretouch:
    a("s_cmp_lg_u32 s34, 5")
    a("s_cbranch_scc1 L_nopre")
    a("s_lshl_b32 s55, s32, 5")
    a("s_add_u32 s55, s55, s33")
    a("s_lshl_b32 s55, s55, 11")
    a("v_lshlrev_b32 v8, 7, v%d" % V_I16)
    a("s_add_u32 s63, s55, %d" % E2)
    a("v_add_u32 v9, s63, v8")
    a("s_add_u32 s63, s55, %d" % E3A)
    a("v_add_u32 v10, s63, v8")
    a("v_and_b32 v8, 128, v8")
    a("v_add_u32 v8, s53, v8")
    a("v_cmp_eq_u32 vcc, 1, v%d" % V_GRP)
    a("v_cndmask_b32 v9, v9, v10, vcc")
    a("v_cndmask_b32 v9, v9, v8, s[%d:%d]" % (S_HI, S_HI + 1))
    a("buffer_load_dword v250, v9, s[36:39], 0 offen sc1")
    a.label("L_nopre")
if Cfg.tlb == 1:
    a("s_cmp_lg_u32 s34, 6")
    a("s_cbranch_scc1 L_notlb")
    a("s_mul_i32 s48, s32, %d" % (512 * 896))
    a("s_add_u32 s49, s48, %d" % (511 * 896))
    a("s_mul_i32 s50, s32, %d" % (224 * 896))
    a("s_mov_b32 s51, %d" % (447 * 3584))
    a("s_mov_b32 s54, %d" % E4)
    a("v_mov_b32 v8, 0")
    setexec(1)
    srd(40, 12, 4096 * 896)
    a("buffer_load_dword v250, v8, s[40:43], s48 offen")
    a("buffer_load_dword v250, v8, s[40:43], s49 offen")
    srd(40, 20, 1792 * 896)
    a("buffer_load_dword v250, v8, s[40:43], s50 offen")
    srd(40, 16, 448 * 3584)
    a("buffer_load_dword v250, v8, s[40:43], 0 offen")
    a("buffer_load_dword v250, v8, s[40:43], s51 offen")
    srd(40, 18, 1792 * 2)
    a("buffer_load_dword v250, v8, s[40:43], 0 offen")
    srd(40, 22, 896)
    a("buffer_load_dword v250, v8, s[40:43], 0 offen")
    a("buffer_load_dword v250, v8, s[36:39], s54 offen offset:2044")
    setexec(-1)
    a.label("L_notlb")
if Cfg.cpf:
    a("s_cmp_lg_u32 s34, 7")
    a("s_cbranch_scc1 L_nocpf")
    a("s_getpc_b64 s[48:49]")
    a.label("L_pc")
    a("s_sub_u32 s48, s48, L_pc-%s_kernel" % NAME)
    a("s_subb_u32 s49, s49, 0")
    a("v_lshlrev_b32 v8, 7, v%d" % V_LANE)
    a("v_min_u32 v9, L_exit-%s_kernel-8192, v8" % NAME)
    a("global_load_dword v250, v8, s[48:49]")
    a("v_add_u32 v9, 8192, v9")
    a("global_load_dword v250, v9, s[48:49]")
    a.label("L_nocpf")
a.label("L_e1")
a("s_barrier")
a("s_cmp_lt_u32 s33, 30")
a("s_cbranch_scc1 L_roles")
a("s_barrier")
a("s_branch L_end")
a.label("L_roles")
a("s_cmp_ge_u32 s33, 23")
a("s_cbranch_scc1 L_R")
a("s_cmp_ge_u32 s33, 16")
a("s_cbranch_scc1 L_F")

def poll(name, issue, nload, check, dual, sets=1, shadow=None, D=None):
    D = D or Cfg.pd
    ok = name + "_ok"
    for r in range(D):
        issue(r % sets)
        if r < D - 1 and Cfg.pds:
            a("s_sleep %d" % Cfg.pds)
    if shadow:
        shadow()
    a.label(name)
    n = sets if sets > 1 else 1
    for k in range(n):
        a("s_waitcnt vmcnt(%d)" % (nload * (D - 1)))
        check(k, ok)
        sel_step(True if dual else None)
        if not dual and Cfg.xls:
            a("s_sleep %d" % Cfg.xls)
        issue(k)
    a("s_branch %s" % name)
    a.label(ok)

def wait_cnt(n):
    lab = a.newlabel("L_wc")
    a("v_mov_b32 v5, 0")
    a.label(lab)
    a("ds_read_b32 v7, v5 offset:%d" % L_CNT)
    a("s_sub_u32 s%d, s%d, 1" % (S_TO, S_TO))
    a("s_cbranch_scc1 L_end")
    a("s_sleep 1")
    a("s_waitcnt lgkmcnt(0)")
    a("v_cmp_gt_u32 vcc, %d, v7" % n)
    a("s_cbranch_vccnz %s" % lab)

a("s_lshl_b32 s48, s33, 1")
a("s_lshr_b32 s49, s35, 1")
a("s_add_u32 s48, s48, s49")
a("s_lshl_b32 s50, s32, 9")
a("s_bfe_u32 s49, s48, 0x10001")
a("s_lshl_b32 s49, s49, 8")
a("s_add_u32 s50, s50, s49")
a("s_lshr_b32 s49, s48, 4")
a("s_lshl_b32 s49, s49, 7")
a("s_add_u32 s50, s50, s49")
a("s_bfe_u32 s49, s48, 0x20002")
a("s_lshl_b32 s49, s49, 5")
a("s_add_u32 s50, s50, s49")
a("s_and_b32 s49, s48, 1")
a("s_lshl_b32 s49, s49, 2")
a("s_add_u32 s50, s50, s49")
a("s_mul_i32 s50, s50, 896")
a("s_and_b32 s49, s35, 1")
a("s_lshl_b32 s49, s49, 9")
a("s_add_u32 s50, s50, s49")
a("v_mul_u32_u24 v6, 7168, v%d" % V_GRP)
a("v_lshl_add_u32 v6, v%d, 4, v6" % V_I16)
srd(40, 12, 4096 * 896)
a("s_lshl_b32 s54, s32, 16")
a("s_lshl_b32 s63, s48, 6")
a("s_add_u32 s54, s54, s63")
a("s_lshl_b32 s55, s32, 5")
a("s_add_u32 s55, s55, s48")
a("s_lshl_b32 s55, s55, 11")
a("s_lshl_b32 s49, s49, 1")
a("s_add_u32 s55, s55, s49")
a("s_add_u32 s52, s55, %d" % E3A)
a("s_add_u32 s53, s55, %d" % (E3A + BOFF))
a("v_cmp_lt_u32 s[6:7], 7, v%d" % V_I16)
a("v_add_u32 v4, %d, v%d" % (512 - 128, V_PUB))
a("v_cndmask_b32 v4, v%d, v4, s[6:7]" % V_PUB)
a("s_mov_b64 s[8:9], -1")
a("s_bitcmp1_b32 s35, 0")
a("s_cselect_b32 s9, 0x00ff00ff, s9")
a("s_mov_b32 s0, 0")
if Cfg.dry & 1:
    a("s_mov_b32 s0, 1")
    a("s_mov_b64 s[6:7], 0")
    a("s_branch L_e2poll_ok")
    a.label("L_odry")
    a("s_mov_b32 s0, 0")
a("s_barrier")
if Cfg.hack:
    _l = a.newlabel("L_hk")
    a("s_cmp_ge_u32 s32, 4")
    a("s_cbranch_scc1 %s" % _l)
    a("s_sleep %d" % Cfg.hack)
    a.label(_l)
if Cfg.ocnt:
    wait_cnt(Cfg.ocnt)
if Cfg.os:
    a("s_sleep %d" % Cfg.os)
for q in range(4):
    a("buffer_load_dwordx4 v[%d:%d], v6, s[40:43], s50 offen offset:%d%s" % (V_W + 4 * q, V_W + 4 * q + 3, 896 * q, NTL))
a("s_mov_b32 exec_lo, s9")
a("s_mov_b32 exec_hi, s9")
for q in range(4):
    a("buffer_load_dwordx4 v[%d:%d], v6, s[40:43], s50 offen offset:%d%s" % (V_W + 16 + 4 * q, V_W + 16 + 4 * q + 3, 896 * q + 256, NTL))
setexec(-1)
sel_init()
stamp(1)
E2S = [V_S1 + 8 * k for k in range(Cfg.pd)]
def e2_issue(k):
    a("s_add_u32 s48, s54, s%d" % S_SEL)
    a("s_add_u32 s49, s48, %d" % (E2 + 16 * 2048))
    a("s_add_u32 s48, s48, %d" % E2)
    a("buffer_load_dwordx4 v[%d:%d], v%d, s[36:39], s48 offen sc1" % (E2S[k], E2S[k] + 3, V_GA))
    a("buffer_load_dwordx4 v[%d:%d], v%d, s[36:39], s49 offen sc1" % (E2S[k] + 4, E2S[k] + 7, V_GA))
def e2_check(k, ok):
    G = E2S[k]
    a("v_xor_b32 v10, v%d, v%d" % (G + 2, V_T8))
    a("v_xor_b32 v11, v%d, v%d" % (G + 6, V_T8))
    a("v_xor_b32 v12, v%d, v%d" % (G + 3, V_TB))
    a("v_xor_b32 v13, v%d, v%d" % (G + 7, V_TB))
    a("v_or_b32 v14, v10, v11")
    a("v_and_b32 v14, 0xff, v14")
    a("v_or3_b32 v14, v14, v12, v13")
    a("v_cmp_ne_u32 vcc, 0, v14")
    for t in range(2):
        a("v_lshlrev_b32 v%d, 16, v%d" % (16 + 4 * t, G + 4 * t))
        a("v_and_b32 v%d, 0xffff0000, v%d" % (17 + 4 * t, G + 4 * t))
        a("v_lshlrev_b32 v%d, 16, v%d" % (18 + 4 * t, G + 4 * t + 1))
        a("v_and_b32 v%d, 0xffff0000, v%d" % (19 + 4 * t, G + 4 * t + 1))
    a("s_cbranch_vccz %s" % ok)
poll("L_e2poll", e2_issue, 2, e2_check, True, sets=Cfg.pd)
stamp(5)
a("v_max_f32 v14, v10, v11")
a("v_max_f32_dpp v14, v14, v14 row_ror:8%s" % DPPM)
a("v_max_f32_dpp v14, v14, v14 row_ror:4%s" % DPPM)
bfly("v_max_f32", 14, 15, 16)
bfly("v_max_f32", 14, 15, 32)
a("v_sub_f32 v10, v10, v14")
a("v_sub_f32 v11, v11, v14")
a("v_exp_f32 v10, v10")
a("v_exp_f32 v11, v11")
a("s_movk_i32 s63, 0xfff")
for k in (0, 2):
    a("v_pk_mul_f32 v[%d:%d], v[10:11], v[%d:%d]%s" % (16 + k, 17 + k, 16 + k, 17 + k, BC))
a("v_add_f32 v12, v10, v11")
for k in (0, 2):
    a("v_pk_fma_f32 v[%d:%d], v[10:11], v[%d:%d], v[%d:%d] op_sel:[1,0,0] op_sel_hi:[1,1,1]" % (16 + k, 17 + k, 20 + k, 21 + k, 16 + k, 17 + k))
a("v_add_f32_dpp v12, v12, v12 row_ror:8%s" % DPPM)
a("v_add_f32_dpp v12, v12, v12 row_ror:4%s" % DPPM)
a("v_mfma_f32_16x16x4_f32 v[%d:%d], v12, v%d, 0" % (V_ACC + 4, V_ACC + 7, V_ONE))
reduce16([16, 17, 18, 19], 13)
a("v_mfma_f32_16x16x4_f32 v[%d:%d], v13, v%d, 0" % (V_ACC, V_ACC + 3, V_ONE))
a("v_rcp_f32 v12, v%d" % (V_ACC + 4))
for k in (0, 2):
    a("v_pk_mul_f32 v[%d:%d], v[12:13], v[%d:%d]%s" % (16 + k, 17 + k, V_ACC + k, V_ACC + k + 1, BC))
for r in range(4):
    a("v_cvt_pk_bf16_f32 v%d, v%d, v%d" % (16 + r, 16 + r, 16 + r))
A2 = V_ACC + 8
BB = V_BB
def omf(qq):
    for b in range(2):
        a("v_mfma_f32_16x16x32_bf16 v[%d:%d], v[%d:%d], v[%d:%d], %s" % (A2 + 4 * b, A2 + 4 * b + 3, V_W + 16 * b + 4 * qq, V_W + 16 * b + 4 * qq + 3, BB + 4 * qq, BB + 4 * qq + 3, "0" if qq == 0 else "v[%d:%d]" % (A2 + 4 * b, A2 + 4 * b + 3)))
for q in range(4):
    for rho in range(4):
        a("v_and_b32 v%d, v%d, v%d" % (BB + 4 * q + rho, 16 + q, V_M + rho))
    if q >= 1:
        omf(q - 1)
omf(3)
for r in range(4):
    a("v_cndmask_b32 v%d, v%d, v%d, s[6:7]" % (24 + r, A2 + r, A2 + 4 + r))
tag12(28, 24)
if Cfg.dry & 1:
    a("s_cmp_eq_u32 s0, 1")
    a("s_cbranch_scc1 L_odry")
a("s_mov_b64 exec, s[8:9]")
if not Cfg.noA:
    a("buffer_store_dwordx4 v[28:31], v4, s[36:39], s52 offen")
stamp(6)
bdefer()
skip_if_local(8, "L_end")
if not Cfg.noB:
    a("buffer_store_dwordx4 v[28:31], v4, s[36:39], s53 offen sc1")
setexec(-1)
if Cfg.w2l:
    a("s_lshl_b32 s48, s33, 2")
    a("s_add_u32 s48, s48, s35")
    a("s_mul_i32 s48, s48, %d" % (25 * 128))
    a("s_mul_i32 s63, s32, %d" % (224 * 896))
    a("s_add_u32 s48, s48, s63")
    a("v_lshlrev_b32 v24, 7, v%d" % V_LANE)
    srd(40, 20, 1792 * 896)
    setexec(0x1ffffff)
    a("buffer_load_dword v250, v24, s[40:43], s48 offen")
a("s_branch L_end")

a.label("L_R")
a.flush()
a("s_sub_u32 s50, s33, 23")
a("s_lshl_b32 s52, s50, 2")
a("s_add_u32 s52, s52, s35")
a("s_lshl_b32 s54, s32, 16")
a("s_lshl_b32 s63, s52, 6")
a("s_add_u32 s54, s54, s63")
a("s_mul_i32 s53, s52, %d" % Cfg.ss)
a("s_add_u32 s53, s53, %d" % E3X)
a("s_lshl_b32 s51, s32, 12")
a("s_add_u32 s51, s51, s53")
a("s_lshl_b32 s55, s32, 11")
a("s_lshl_b32 s63, s52, 6")
a("s_add_u32 s55, s55, s63")
a("s_add_u32 s55, s55, %d" % E3L)
a("v_lshlrev_b32 v4, 4, v%d" % V_GRP)
a("s_lshr_b32 s63, s52, 1")
a("s_lshl_b32 s63, s63, 6")
a("s_and_b32 s48, s52, 1")
a("s_lshl_b32 s48, s48, 3")
a("s_add_u32 s63, s63, s48")
a("v_lshl_add_u32 v%d, v%d, 4, s63" % (V_XA, V_GRP))
srd(44, 4, 896)
a("buffer_load_dwordx2 v[%d:%d], v%d, s[44:47], 0 offen" % (V_X + 2, V_X + 3, V_XA))
a("v_and_b32 v8, 7, v%d" % V_I16)
a("v_lshlrev_b32 v8, 12, v8")
a("v_lshl_add_u32 v%d, v%d, 4, v8" % (V_LW, V_GRP))
if Cfg.rpf:
    a("s_mul_i32 s48, s32, %d" % (224 * 896))
    a("s_mul_i32 s63, s52, %d" % (56 * 128))
    a("s_add_u32 s48, s48, s63")
    a("s_mul_i32 s49, s32, 448")
    a("s_mul_i32 s63, s52, %d" % (16 * 3584))
    a("s_add_u32 s49, s49, s63")
    a("v_lshrrev_b32 v25, 2, v%d" % V_LANE)
    a("v_mul_u32_u24 v25, 3584, v25")
    a("v_and_b32 v26, 3, v%d" % V_LANE)
    a("v_mul_u32_u24 v26, 148, v26")
    a("v_add_u32 v25, v25, v26")
    a("v_lshlrev_b32 v24, 7, v%d" % V_LANE)
    srd(40, 16, 448 * 3584)
    srd(8, 20, 1792 * 896)
a("s_barrier")
wait_cnt(6)
if Cfg.rpf:
    a("buffer_load_dword v250, v25, s[40:43], s49 offen")
    a("s_mov_b32 exec_hi, 0x00ffffff")
    a("buffer_load_dword v250, v24, s[8:11], s48 offen")
    setexec(-1)
sel_init()
if Cfg.rs:
    a("s_sleep %d" % Cfg.rs)
def e3a_issue(k):
    a("s_add_u32 s48, s54, s%d" % S_SEL)
    a("s_add_u32 s49, s48, %d" % (E3A + 16 * 2048))
    a("s_add_u32 s48, s48, %d" % E3A)
    a("buffer_load_dwordx4 v[%d:%d], v%d, s[36:39], s48 offen sc1" % (V_S2, V_S2 + 3, V_GA))
    a("buffer_load_dwordx4 v[%d:%d], v%d, s[36:39], s49 offen sc1" % (V_S2 + 4, V_S2 + 7, V_GA))
poll("L_e3apoll", e3a_issue, 2, lambda k, ok: check12(2, 12, ok, V_S2), True)
stamp(7)
padd4(12, 12, 16)
reduce16([12, 13, 14, 15], 9)
a("v_mfma_f32_16x16x4_f32 v[%d:%d], v9, v%d, 0" % (V_ACC, V_ACC + 3, V_ONE))
a("s_movk_i32 s63, 0xfff")
setexec(0x0001000100010001)
tag12(28, V_ACC)
a("buffer_store_dwordx4 v[28:31], v4, s[36:39], s51 offen sc1")
if Cfg.lh:
    a("buffer_store_dwordx4 v[28:31], v4, s[36:39], s55 offen")
setexec(-1)
stamp(8)
a("s_cmp_lg_u32 s50, s32")
a("s_cbranch_scc1 L_end")
a.label("L_hpoll")
a("s_sleep 2")
a("buffer_load_dwordx4 v[%d:%d], v%d, s[36:39], s53 offen sc1" % (V_G, V_G + 3, V_LW))
a("s_waitcnt vmcnt(0)")
check12(1, 12, "L_hok")
retry("L_hpoll", False)
a.label("L_hok")
stamp(9)
for pat in ("quad_perm:[1,0,3,2]", "quad_perm:[2,3,0,1]", "row_half_mirror"):
    for r in range(4):
        a("v_add_f32_dpp v%d, v%d, v%d %s%s" % (12 + r, 12 + r, 12 + r, pat, DPPM))
for r in range(4):
    a("v_mov_b32 v%d, v%d" % (V_ACC + r, 12 + r))
a("v_lshlrev_b32 v%d, 16, v%d" % (V_X, V_X + 2))
a("v_and_b32 v%d, 0xffff0000, v%d" % (V_X + 1, V_X + 2))
a("v_lshlrev_b32 v%d, 16, v%d" % (V_X + 2, V_X + 3))
a("v_and_b32 v%d, 0xffff0000, v%d" % (V_X + 3, V_X + 3))
def round_add_round(src, add):
    a("v_cvt_pk_bf16_f32 v10, v%d, v%d" % (src, src + 1))
    a("v_cvt_pk_bf16_f32 v11, v%d, v%d" % (src + 2, src + 3))
    a("v_lshlrev_b32 v12, 16, v10")
    a("v_and_b32 v13, 0xffff0000, v10")
    a("v_lshlrev_b32 v14, 16, v11")
    a("v_and_b32 v15, 0xffff0000, v11")
    padd4(12, 12, add)
    a("v_cvt_pk_bf16_f32 v10, v12, v13")
    a("v_cvt_pk_bf16_f32 v11, v14, v15")
round_add_round(V_ACC, V_X)
a("v_lshlrev_b32 v%d, 16, v10" % (V_X))
a("v_and_b32 v%d, 0xffff0000, v10" % (V_X + 1))
a("v_lshlrev_b32 v%d, 16, v11" % (V_X + 2))
a("v_and_b32 v%d, 0xffff0000, v11" % (V_X + 3))
a("s_lshl_b32 s48, s52, 6")
a("s_add_u32 s48, s48, %d" % E4)
for t in range(1, 4):
    a("s_add_u32 s%d, s48, %d" % (48 + t, t * 16 * 2048))
for r in range(4):
    a("v_mov_b32 v%d, v%d" % (V_G + 12 + r, V_T + r))
srd(44, 22, 896)
if Cfg.e4s:
    a("s_sleep %d" % Cfg.e4s)
XR = V_S1
def e4_issue(k):
    for t in range(4):
        if t == 3:
            a("s_mov_b32 exec_hi, 0")
        a("buffer_load_dwordx4 v[%d:%d], v%d, s[36:39], s%d offen sc1" % (V_G + 4 * t, V_G + 4 * t + 3, V_GA, 48 + t))
    setexec(-1)
poll("L_e4poll", e4_issue, 4, lambda k, ok: check12(4, XR, ok), False, D=Cfg.pd4)
stamp(10)
sum16(XR)
reduce16([XR, XR + 1, XR + 2, XR + 3], 9)
a("v_mfma_f32_16x16x4_f32 v[%d:%d], v9, v%d, 0" % (V_ACC, V_ACC + 3, V_ONE))
round_add_round(V_ACC, V_X)
setexec(0x0001000100010001)
a("buffer_store_dwordx2 v[10:11], v%d, s[44:47], 0 offen" % V_XA)
a("s_cmp_lg_u32 s52, 0")
a("s_cbranch_scc1 L_noep")
setexec(1)
a("v_mov_b32 v9, 0")
for k in range(4):
    a("v_mov_b32 v%d, s%d" % (12 + k, 28 + k))
a("buffer_store_dwordx4 v[12:15], v9, s[36:39], 0 offen offset:%d" % EPOCH)
a.label("L_noep")
setexec(-1)
stamp(14)
a("s_branch L_end")

a.label("L_F")
a.flush()
a("s_mul_i32 s50, s32, 7")
a("s_add_u32 s50, s50, s33")
a("s_sub_u32 s50, s50, 16")
a("s_lshl_b32 s51, s50, 2")
a("s_add_u32 s51, s51, s35")
a("v_lshrrev_b32 v8, 3, v%d" % V_I16)
a("v_sub_u32 v8, v%d, v8" % V_I16)
a("v_min_u32 v8, 13, v8")
a("v_lshlrev_b32 v8, 6, v8")
a("v_lshl_add_u32 v23, v%d, 4, v8" % V_GRP)
if Cfg.lin:
    setexec(0x8080808080808080)
    a("v_mov_b32 v23, 896")
    for k in range(4):
        a("v_mov_b32 v%d, 0" % (12 + k))
    a("ds_write_b128 v23, v[12:15] offset:%d" % L_H)
    setexec(-1)
a("v_bfe_u32 v8, v%d, 2, 3" % V_LANE)
a("v_min_u32 v8, 6, v8")
a("v_and_b32 v9, 3, v%d" % V_LANE)
a("v_mul_u32_u24 v10, %d, v8" % Cfg.ss)
a("v_lshl_add_u32 v10, v9, 4, v10")
a("v_lshrrev_b32 v11, 5, v%d" % V_LANE)
a("v_lshl_add_u32 v%d, v11, 12, v10" % V_XA)
a("s_mul_i32 s63, s35, 7")
a("v_add_u32 v8, s63, v8")
a("v_lshrrev_b32 v10, 1, v8")
a("v_lshlrev_b32 v10, 6, v10")
a("v_and_b32 v8, 1, v8")
a("v_lshl_add_u32 v10, v8, 3, v10")
a("v_lshl_add_u32 v24, v9, 4, v10")
a("v_and_b32 v10, 1, v%d" % V_GRP)
a("v_and_b32 v11, 1, v%d" % V_I16)
a("v_lshlrev_b32 v25, 2, v10")
a("v_and_b32 v26, 2, v%d" % V_GRP)
a("v_add_u32 v25, v25, v26")
a("v_mul_u32_u24 v26, 896, v25")
a("v_lshl_add_u32 v26, v%d, 4, v26" % V_I16)
a("v_add_u32 v25, v25, v11")
a("v_lshlrev_b32 v25, 1, v25")
a("v_bfe_u32 v27, v%d, 1, 1" % V_I16)
a("v_mul_u32_u24 v27, %d, v27" % (224 * 64))
a("v_lshl_add_u32 v27, v%d, 9, v27" % V_GRP)
a("v_lshrrev_b32 v12, 2, v%d" % V_I16)
a("v_lshl_add_u32 v27, v12, 6, v27")
a("v_lshl_add_u32 v27, v11, 3, v27")
a("s_lshl_b32 s63, s35, 4")
a("v_add_u32 v%d, s63, v27" % V_W1A)
a("v_lshrrev_b32 v27, 2, v%d" % V_LANE)
a("v_mul_u32_u24 v27, 3584, v27")
a("v_and_b32 v12, 3, v%d" % V_LANE)
a("v_lshl_add_u32 v27, v12, 4, v27")
a("s_lshl_b32 s63, s35, 11")
a("v_lshl_add_u32 v%d, v%d, 4, s63" % (V_LW, V_LANE))
srd(40, 16, 448 * 3584)
srd(44, 20, 1792 * 896)
srd(8, 4, 896)
srd(12, 18, 1792 * 2)
a("s_mul_i32 s52, s35, %d" % (112 * 3584))
a("s_lshl_b32 s63, s50, 6")
a("s_add_u32 s52, s52, s63")
a("s_mul_i32 s53, s35, 7168")
a("s_add_u32 s53, s53, %d" % L_W1)
a("s_mul_i32 s54, s51, %d" % (8 * 896))
a("s_lshl_b32 s55, s51, 4")
a("s_mul_i32 s24, s35, %d" % (7 * Cfg.ss))
a("s_add_u32 s24, s24, %d" % E3X)
a("s_add_u32 s25, s24, 8192")
a("s_add_u32 s26, s24, 16384")
a("s_add_u32 s27, s24, 24576")
a("s_mov_b32 s6, %d" % (16 * 3584))
a("s_movk_i32 s7, 1024")
if Cfg.zig:
    a("s_bitcmp1_b32 s50, 0")
    a("s_cbranch_scc0 L_nozig")
    a("s_add_u32 s52, s52, %d" % (6 * 16 * 3584))
    a("s_add_u32 s53, s53, 6144")
    a("s_mov_b32 s6, %d" % (-16 * 3584))
    a("s_movk_i32 s7, -1024")
    a.label("L_nozig")
def w1_loads():
    for t in range(7):
        a("s_mov_b32 m0, s53")
        a("buffer_load_dwordx4 v27, s[40:43], s52 offen%s lds" % NTW)
        if t < 6:
            a("s_add_u32 s52, s52, s6")
            a("s_add_u32 s53, s53, s7")
def w2_loads():
    for b in range(4):
        if b == 3:
            setexec(0x00FF00FF00FF00FF)
        for q in range(2):
            a("buffer_load_dwordx4 v[%d:%d], v26, s[44:47], s54 offen offset:%d%s" % (V_W + 8 * b + 4 * q, V_W + 8 * b + 4 * q + 3, 896 * q + 256 * b, NTL))
    setexec(-1)
def small_loads():
    a("buffer_load_dwordx2 v[%d:%d], v24, s[8:11], 0 offen" % (V_X + 2, V_X + 3))
    a("buffer_load_ushort v%d, v25, s[12:15], s55 offen" % V_B1)
a("s_barrier")
if Cfg.hack:
    _l = a.newlabel("L_hk")
    a("s_cmp_ge_u32 s32, 4")
    a("s_cbranch_scc1 %s" % _l)
    a("s_sleep %d" % Cfg.hack)
    a.label(_l)
if Cfg.w2e:
    w2_loads()
    small_loads()
wait_cnt(Cfg.fcnt)
if Cfg.fs:
    a("s_sleep %d" % Cfg.fs)
stamp(1)
if Cfg.w2e:
    w1_loads()
else:
    if not Cfg.w2first:
        w1_loads()
    if not Cfg.w2l:
        w2_loads()
    if Cfg.w2first:
        w1_loads()
    small_loads()
a("s_lshl_b32 s48, s50, 11")
a("s_lshl_b32 s63, s35, 10")
a("s_add_u32 s48, s48, s63")
a("s_add_u32 s48, s48, %d" % E4)
a("v_cmp_lt_u32 s[6:7], 7, v%d" % V_I16)
a("v_add_u32 v4, %d, v%d" % (512 - 128, V_PUB))
a("v_cndmask_b32 v4, v%d, v4, s[6:7]" % V_PUB)
a("s_lshl_b32 s63, s35, 10")
a("v_lshl_add_u32 v21, v%d, 4, s63" % V_LANE)
D1 = V_S2
V_CS = 251
def ffn1(AF, dst, fill=()):
    fill = list(fill)
    def f(n):
        for _ in range(n):
            if fill:
                a(fill.pop(0))
    for m in range(7):
        a("v_mfma_f32_16x16x32_bf16 v[%d:%d], v[%d:%d], v[%d:%d], 0" % (D1 + 4 * m, D1 + 4 * m + 3, AF, AF + 3, V_W1F + 4 * m, V_W1F + 4 * m + 3))
    return
def ffn1_tail(dst, t, zero=True):
    if zero:
        a("v_mov_b32 v%d, 0" % dst)
    setexec(0x0000FF00000000FF)
    a("v_add_f32 v%d, v%d, v%d" % (dst, D1 + 0, D1 + 4 + 1))
    a("v_add_f32 v%d, v%d, v%d" % (t, D1 + 8 + 2, D1 + 12 + 3))
    a("v_add_f32 v%d, v%d, v%d" % (dst, dst, t))
    setexec(0xFF00000000FF0000)
    a("v_add_f32 v%d, v%d, v%d" % (dst, D1 + 16, D1 + 20 + 1))
    a("v_add_f32 v%d, v%d, v%d" % (dst, dst, D1 + 24 + 2))
    setexec(-1)
    a("v_add_f32_dpp v%d, v%d, v%d row_ror:8%s" % (dst, dst, dst, DPPM))
    a("v_mfma_f32_16x16x4_f32 v[%d:%d], v%d, v%d, 0" % (V_ACC, V_ACC + 3, dst, V_ONE))
def ffn1_sel(dst, t):
    a("v_cndmask_b32 v%d, v%d, v%d, s[%d:%d]" % (dst, V_ACC, V_ACC + 1, S_ODD, S_ODD + 1))
    a("v_cndmask_b32 v%d, v%d, v%d, s[%d:%d]" % (t, V_ACC + 2, V_ACC + 3, S_ODD, S_ODD + 1))
    a("v_cndmask_b32 v%d, v%d, v%d, s[%d:%d]" % (dst, dst, t, S_HI, S_HI + 1))
AF = 176
def e3x_issue(k):
    for t in range(4):
        a("buffer_load_dwordx4 v[%d:%d], v%d, s[36:39], s%d offen sc1" % (V_G + 4 * t, V_G + 4 * t + 3, V_XA, 24 + t))
a("v_min_u32 v22, 27, v%d" % V_LANE)
a("v_lshlrev_b32 v22, 4, v22")
a("s_lshl_b32 s49, s32, 11")
a("s_mul_i32 s63, s35, 448")
a("s_add_u32 s49, s49, s63")
a("s_add_u32 s49, s49, %d" % E3L)
a("s_mov_b32 s1, %d" % Cfg.bthr)
if Cfg.lh2:
    a("buffer_load_dwordx4 v[%d:%d], v22, s[36:39], s49 offen sc1" % (V_G, V_G + 3))
    a("s_waitcnt vmcnt(0)")
    stamp(5)
    check12(1, XR, "L_lh1")
    a("s_branch L_lh2")
    a.label("L_lh1")
    e3x_issue(0)
    a("s_mov_b32 s1, -1")
    a.label("L_lh2")
    a("s_barrier")
elif not Cfg.e3e:
    a("s_waitcnt vmcnt(0)")
    stamp(5)
    a("s_barrier")
def f_shadow():
    if Cfg.e3e:
        a("s_waitcnt vmcnt(%d)" % (4 * Cfg.pd))
        stamp(5)
        a("s_barrier")
    for m in range(7):
        for u in range(2):
            a("ds_read_b64_tr_b16 v[%d:%d], v%d offset:%d" % (V_W1F + 4 * m + 2 * u, V_W1F + 4 * m + 2 * u + 1, V_W1A, L_W1 + 2048 * m + 256 * u))
    a("v_lshlrev_b32 v%d, 16, v%d" % (V_B1, V_B1))
    a("v_lshlrev_b32 v%d, 16, v%d" % (V_X, V_X + 2))
    a("v_and_b32 v%d, 0xffff0000, v%d" % (V_X + 1, V_X + 2))
    a("v_lshlrev_b32 v%d, 16, v%d" % (V_X + 2, V_X + 3))
    a("v_and_b32 v%d, 0xffff0000, v%d" % (V_X + 3, V_X + 3))
    if Cfg.lin:
        for k in range(4):
            a("v_mov_b32 v%d, 0x3f803f80" % (AF + k))
        a("s_waitcnt lgkmcnt(0)")
        ffn1(AF, V_CS)
        ffn1_tail(V_CS, 9)
        ffn1_sel(V_CS, 9)
if Cfg.lh:
    f_shadow()
    if Cfg.lh2:
        a("s_cmp_eq_u32 s1, -1")
        a("s_cbranch_scc1 L_e3xpoll")
    a.label("L_lh")
    a("buffer_load_dwordx4 v[%d:%d], v22, s[36:39], s49 offen sc1" % (V_G, V_G + 3))
    a("s_sub_u32 s1, s1, 1")
    a("s_cbranch_scc1 L_lhok")
    a("s_waitcnt vmcnt(0)")
    check12(1, XR, "L_lhok")
    a("s_branch L_lh")
    a.label("L_lhok")
    if Cfg.xs:
        a("s_sleep %d" % Cfg.xs)
    assert Cfg.pdx == 1 or not Cfg.lh2
    poll("L_e3xpoll", e3x_issue, 4, lambda k, ok: check12(4, XR, ok), False, D=Cfg.pdx)
else:
    poll("L_e3xpoll", e3x_issue, 4, lambda k, ok: check12(4, XR, ok), False, shadow=f_shadow)
stamp(9)
if Cfg.w2l:
    w2_loads()
sum16(XR)
xhalf_add4(XR)
round_add_round(XR, V_X)
a("ds_write_b64 v24, v[10:11] offset:%d" % L_H)
a("s_waitcnt lgkmcnt(0)")
a("s_barrier")
stamp(10)
PR = V_S1
if Cfg.lin:
    a("ds_read_b128 v[%d:%d], v23 offset:%d" % (AF, AF + 3, L_H))
    a("s_waitcnt lgkmcnt(0)")
    unp = []
    for k in range(4):
        unp.append("v_lshlrev_b32 v%d, 16, v%d" % (PR + 2 * k, AF + k))
        unp.append("v_and_b32 v%d, 0xffff0000, v%d" % (PR + 2 * k + 1, AF + k))
    def mf(m):
        a("v_mfma_f32_16x16x32_bf16 v[%d:%d], v[%d:%d], v[%d:%d], 0" % (D1 + 4 * m, D1 + 4 * m + 3, AF, AF + 3, V_W1F + 4 * m, V_W1F + 4 * m + 3))
    for m in range(4):
        mf(m)
        a(unp[2 * m]); a(unp[2 * m + 1])
    mf(4)
    def pre():
        mf(5)
        a("v_mov_b32 v22, 0")
        mf(6)
    fl = ["v_mov_b32 v22, 0"]
    s1, s2 = ln_stats([PR + k for k in range(8)], 0x7F7F7F7F7F7F7F7F, 5, pk=PR + 8, pre=pre, fill=None, mid=lambda: ffn1_tail(22, 20, False))
    ffn1_sel(22, 20)
    bf16r(s2, s2)
    a("v_rcp_f32 v%d, v%d" % (s2, s2))
    a("v_fma_f32 v8, -v%d, v%d, v22" % (s1, V_CS))
    a("s_mov_b32 s63, %s" % f32(-LOG2E))
    a("v_mul_f32 v8, v8, v%d" % s2)
else:
    a("ds_read_b128 v[%d:%d], v23 offset:%d" % (PR + 8, PR + 11, L_H))
    a("s_waitcnt lgkmcnt(0)")
    for k in range(4):
        a("v_lshlrev_b32 v%d, 16, v%d" % (PR + 2 * k, PR + 8 + k))
        a("v_and_b32 v%d, 0xffff0000, v%d" % (PR + 2 * k + 1, PR + 8 + k))
    layernorm([PR + k for k in range(8)], AF, 0x7F7F7F7F7F7F7F7F, 5)
    ffn1(AF, 8)
    ffn1_tail(8, 9)
    a("s_mov_b32 s63, %s" % f32(-LOG2E))
    ffn1_sel(8, 9)
bf16r(8, 8)
a("v_add_f32 v8, v8, v%d" % V_B1)
bf16r(8, 8)
if Cfg.fmish:
    a("v_mul_f32 v9, s63, abs(v8)")
    a("v_exp_f32 v9, v9")
    a("v_cmp_gt_f32 vcc, 0, v8")
    a("v_mul_f32 v10, v9, v9")
    a("v_cndmask_b32 v11, 1.0, v10, vcc")
    a("v_cndmask_b32 v12, v10, 1.0, vcc")
    a("v_fma_f32 v11, 2.0, v9, v11")
    a("v_fma_f32 v12, 2.0, v12, v11")
    a("v_rcp_f32 v12, v12")
    a("v_mul_f32 v14, v11, v12")
else:
    a("v_mul_f32 v9, s63, abs(v8)")
    a("v_exp_f32 v9, v9")
    a("v_max_f32 v17, 0, v8")
    bf16r(9, 9)
    a("v_add_f32 v10, 1.0, v9")
    a("v_add_f32 v11, -1.0, v10")
    a("v_log_f32 v12, v10")
    a("v_rcp_f32 v13, v11")
    a("v_cmp_eq_f32 vcc, 0, v11")
    a("v_mul_f32 v12, %s, v12" % f32(0.6931471805599453))
    a("v_mul_f32 v13, v13, v9")
    a("v_mul_f32 v12, v12, v13")
    a("v_cndmask_b32 v12, v12, v9, vcc")
    bf16r(12, 12)
    a("v_add_f32 v12, v12, v17")
    bf16r(12, 12)
    a("v_mul_f32 v13, %s, v12" % f32(-2.0 * LOG2E))
    a("v_exp_f32 v13, v13")
    a("v_mul_f32 v16, v12, v12")
    a("v_add_f32 v14, 1.0, v13")
    a("v_sub_f32 v15, 1.0, v13")
    a("v_rcp_f32 v14, v14")
    a("v_mul_f32 v16, %s, v16" % f32(-1.0 / 3.0))
    a("v_cmp_gt_f32 vcc, %s, v12" % f32(2.0 ** -6))
    a("v_fma_f32 v16, v16, v12, v12")
    a("v_mul_f32 v14, v14, v15")
    a("v_cndmask_b32 v14, v14, v16, vcc")
    bf16r(14, 14)
a("v_mul_f32 v14, v14, v8")
a("v_cvt_pk_bf16_f32 v14, v14, v14")
a("s_movk_i32 s63, 0xfff")
for q in range(2):
    for rho in range(4):
        a("v_and_b32_dpp v%d, v14, v%d quad_perm:[%d,%d,%d,%d]%s" % (BB + 4 * q + rho, V_M + rho, q, q, 2 + q, 2 + q, DPPM))
if Cfg.w2l:
    stamp(12)
    a("s_waitcnt vmcnt(0)")
for q in range(2):
    for b in range(4):
        a("v_mfma_f32_16x16x32_bf16 v[%d:%d], v[%d:%d], v[%d:%d], %s" % (V_ACC + 4 * b, V_ACC + 4 * b + 3, V_W + 8 * b + 4 * q, V_W + 8 * b + 4 * q + 3, BB + 4 * q, BB + 4 * q + 3, "0" if q == 0 else "v[%d:%d]" % (V_ACC + 4 * b, V_ACC + 4 * b + 3)))
setexec(0x00FF00FF00FF00FF)
a("ds_write_b128 v%d, v[%d:%d] offset:%d" % (V_LW, V_ACC, V_ACC + 3, L_F))
a("s_not_b64 exec, exec")
a("ds_write_b128 v%d, v[%d:%d] offset:%d" % (V_LW, V_ACC + 4, V_ACC + 7, L_F))
a("s_not_b64 exec, exec")
a("ds_write_b128 v%d, v[%d:%d] offset:%d" % (V_LW, V_ACC + 8, V_ACC + 11, L_F + 1024))
a("s_not_b64 exec, exec")
a("ds_write_b128 v%d, v[%d:%d] offset:%d" % (V_LW, V_ACC + 12, V_ACC + 15, L_F + 1024))
setexec(-1)
a("s_waitcnt lgkmcnt(0)")
stamp(13)
a("s_barrier")
a("s_cmp_ge_u32 s35, 2")
a("s_cbranch_scc1 L_end")
for w in range(4):
    a("ds_read_b128 v[%d:%d], v21 offset:%d" % (PR + 4 * w, PR + 4 * w + 3, L_F + 2048 * w))
a("s_cmp_eq_u32 s35, 1")
a("s_cselect_b32 exec_hi, 0x00ff00ff, -1")
a("s_waitcnt lgkmcnt(0)")
sum16(PR)
tag12(28, PR)
a("buffer_store_dwordx4 v[28:31], v4, s[36:39], s48 offen sc1")
setexec(-1)
stamp(14)
a.label("L_end")
if Cfg.stamps:
    setexec(-1)
    stamp(15)
    a("s_waitcnt lgkmcnt(0)")
    a("s_lshl_b32 s48, s2, 3")
    a("s_add_u32 s48, s48, s34")
    a("s_lshl_b32 s48, s48, 6")
    a("s_add_u32 s48, s48, %d" % STAMP)
    a("v_mov_b32 v9, 0")
    setexec(1)
    for i in range(0 if getattr(Cfg, "nost", False) else 16):
        a("v_mov_b32 v10, s%d" % (64 + 2 * i))
        a("buffer_store_dword v10, v9, s[36:39], s48 offen offset:%d" % (4 * i))
    if Cfg.dbgwg >= 0:
        a("s_cmp_lg_u32 s2, %d" % Cfg.dbgwg)
        a("s_cbranch_scc1 L_exit")
        a("s_cmp_lg_u32 s34, %d" % Cfg.dbgwave)
        a("s_cbranch_scc1 L_exit")
        if Cfg.spin:
            a.label("L_spin")
            a("s_memrealtime s[94:95]")
            a("s_waitcnt lgkmcnt(0)")
            a("s_sub_u32 s63, s94, s64")
            a("s_cmp_lt_u32 s63, %d" % Cfg.spin)
            a("s_cbranch_scc1 L_spin")
        srd(44, 24, 256)
        for i in range(16):
            a("s_sub_u32 s63, s%d, s64" % (64 + 2 * i))
            a("s_cmp_eq_u32 s%d, 0" % (64 + 2 * i))
            a("s_cselect_b32 s63, 0, s63")
            a("v_mov_b32 v10, s63")
            a("buffer_store_dword v10, v9, s[44:47], 0 offen offset:%d" % (4 * i))
a.label("L_exit")
a("s_endpgm")
a.raw('''.section .rodata,"a"
.p2align 6
.amdhsa_kernel %s_kernel
  .amdhsa_next_free_vgpr %d
  .amdhsa_next_free_sgpr 100
  .amdhsa_accum_offset %d
  .amdhsa_group_segment_fixed_size 0
  .amdhsa_kernarg_size 96
  .amdhsa_user_sgpr_count 2
  .amdhsa_user_sgpr_kernarg_segment_ptr 1
  .amdhsa_system_sgpr_workgroup_id_x 1
  .amdhsa_float_denorm_mode_32 3
.end_amdhsa_kernel''' % (NAME, NVGPR, NVGPR))
open(sys.argv[1], "w").write(a.text())
```

```python
import sys, struct
from asmlib import Asm
NAME = "sequential_preLN__sliding_block_cached__dense_activation_mish__decode"

class Cfg:
    stamps = False
    nt = True
    ntw = False
    timeout = 200000
    ocnt = 0
    vs = 0
    nearly = 7
    pfat = 1
    n1 = 10
    pf = False
    cpf = 2
    ntl = True
    depth = 0
    ss = 128
    forceB = False
    pretouch = 2
    fs = 0
    tlb = 0
    bthr = 64
    b0 = True
    npipe = 3
    ps0 = 0
    ps1 = 4
    kpat = 0
    kdma = True
    pd = 1
    pds = 2
    fpf = False
    prio = True
    xls = 0
    pace = 0
    e1w = 20
    fcnt = 6
    w2l = False
    pdx = 1
    pd4 = 1
    zig = True
    w2first = True
    w2e = True
    bd = 0
    xcc = True
    fakex = False
    fmish = True
    noA = False
    nost = False
    noB = False
    dry = 0
    lh2 = False
    lh = True
    e3e = False
    lin = True
    rpf = False
    rs = 0
    os = 0
    ka = 3
    kb = 0
    kc = 0
    p1 = 13
    p2 = 15
    bq = True
    trgo = True
    trg = -1
    hack = 0
    vdma = False
    kpre = 0
    sp = True
    k0 = 9
    xs = 0
    e4s = 0
    rnd = True
    dbgwg = -1
    dbgwave = 0
    spin = 0
for arg in sys.argv[2:]:
    k, v = arg.split('=')
    setattr(Cfg, k, type(getattr(Cfg, k))(int(v)))

NT = " nt" if Cfg.nt else ""
NTW = " nt" if Cfg.ntw else ""
NTQ = NT
NTL = " nt" if Cfg.ntl else ""
EPOCH = 0x0
E3X = 0x1000
E3L = 0x9000
E1 = 0x10000
E2 = 0x20000
E3A = 0xA0000
BOFF = 0x120000
E4 = 0x240000
STAMP = 0x300000
WS_SIZE = 0x400000
L_Q = 0
L_ML = 1024
L_CNT = 3072
L_H = 3136
L_O = 4096
L_F = L_O
L_K = 12288
L_W1 = L_K
L_V = 45056
LDS_BYTES = 77824 if Cfg.vdma else 45056

LOG2E = 1.4426950408889634
def f32(x):
    return "0x%08x" % struct.unpack('<I', struct.pack('<f', x))[0]

a = Asm()
a.raw("""; Single persistent launch, 256 workgroups (one per CU) x 8 waves; written with a small generator script.
; copies are written and polled, so any placement is correct.""")
a.raw("; @launch grid=(256,1,1) block=(512,1,1) lds=%d" % LDS_BYTES)
a.raw('.amdgcn_target "amdgcn-amd-amdhsa--gfx950"\n.text\n.globl %s_kernel\n.p2align 8\n.type %s_kernel,@function\n%s_kernel:' % (NAME, NAME, NAME))

DPPM = " row_mask:0xf bank_mask:0xf"
def stamp(i):
    if Cfg.stamps:
        a("s_memrealtime s[%d:%d]" % (64 + 2 * i, 65 + 2 * i))

def srd(dst, ptr, nbytes):
    a("s_mov_b32 s%d, s%d" % (dst, ptr))
    a("s_and_b32 s%d, s%d, 0xffff" % (dst + 1, ptr + 1))
    a("s_mov_b32 s%d, %d" % (dst + 2, nbytes))
    a("s_mov_b32 s%d, 0x20000" % (dst + 3))

def setexec(mask):
    if mask == -1:
        a("s_mov_b64 exec, -1")
    else:
        a("s_mov_b32 exec_lo, 0x%08x" % (mask & 0xffffffff))
        a("s_mov_b32 exec_hi, 0x%08x" % (mask >> 32))

def setmask(s, mask):
    a("s_mov_b32 s%d, 0x%08x" % (s, mask & 0xffffffff))
    a("s_mov_b32 s%d, 0x%08x" % (s + 1, mask >> 32))

def padd4(d, x, y):
    assert d % 2 == 0 and x % 2 == 0 and y % 2 == 0
    for k in (0, 2):
        a("v_pk_add_f32 v[%d:%d], v[%d:%d], v[%d:%d]" % (d + k, d + k + 1, x + k, x + k + 1, y + k, y + k + 1))

def sum16(X):
    padd4(X, X, X + 4)
    padd4(X + 8, X + 8, X + 12)
    padd4(X, X, X + 8)

def xhalf_add4(X):
    for k in (0, 2):
        a("v_pk_mov_b32 v[%d:%d], v[%d:%d], v[%d:%d] op_sel:[0,1]" % (X + 4 + k, X + 5 + k, X + k, X + k + 1, X + k, X + k + 1))
    for r in range(4):
        a("v_permlane32_swap_b32 v%d, v%d" % (X + r, X + 4 + r))
    padd4(X, X, X + 4)

def bfly(op, v, t, which):
    a("v_mov_b32 v%d, v%d" % (t, v))
    a("v_permlane%d_swap_b32 v%d, v%d" % (which, v, t))
    a("%s v%d, v%d, v%d" % (op, v, v, t))

def bf16r(dst, src):
    a("v_cvt_pk_bf16_f32 v%d, v%d, v%d" % (dst, src, src))
    a("v_and_b32 v%d, 0xffff0000, v%d" % (dst, dst))

S_ODD, S_B1, S_HI = 56, 58, 60
S_M4, S_M8 = 58, 96
S_TO = 62
S_SEL = 3

S_CNT = 33
def sel_step(thr):
    a("s_sub_u32 s%d, s%d, 1" % (S_TO, S_TO))
    a("s_cbranch_scc1 L_end")
    if thr is not None and not Cfg.forceB:
        assert Cfg.pd == 1
        a("s_xor_b32 s63, s%d, %d" % (S_SEL, BOFF))
        a("s_cmp_lt_u32 s%d, s1" % S_TO)
        a("s_cselect_b32 s%d, s63, s%d" % (S_SEL, S_SEL))

def retry(loop, dual):
    sel_step(True if dual else None)
    a("s_branch %s" % loop)

def sel_init(thr=None):
    a("s_mov_b32 s%d, %d" % (S_SEL, BOFF if Cfg.forceB else 0))
    a("s_sub_u32 s1, s%d, %d" % (S_TO, Cfg.bthr if thr is None else thr))

def ln_stats(f, valid, T, fill=None, pk=None, pre=None, mid=None):
    e = [T + k for k in range(8)]
    s1, s2, t1, t2 = T + 8, T + 9, T + 10, T + 11
    fill = list(fill or [])
    def filler():
        if fill:
            a(fill.pop(0))
    if pk is None:
        a("v_readlane_b32 s63, v%d, 0" % f[0])
        a("v_mov_b32 v%d, 0" % s1)
        a("v_mov_b32 v%d, 0" % s2)
        setexec(valid)
        for k in range(8):
            a("v_subrev_f32 v%d, s63, v%d" % (e[k], f[k]))
        a("v_add_f32 v%d, v%d, v%d" % (s1, e[0], e[1]))
        a("v_mul_f32 v%d, v%d, v%d" % (s2, e[0], e[0]))
        a("v_add_f32 v%d, v%d, v%d" % (t1, e[2], e[3]))
        a("v_mul_f32 v%d, v%d, v%d" % (t2, e[1], e[1]))
        for k in range(4, 8):
            a("v_add_f32 v%d, v%d, v%d" % (s1 if k % 2 == 0 else t1, s1 if k % 2 == 0 else t1, e[k]))
        for k in range(2, 8):
            a("v_fmac_f32 v%d, v%d, v%d" % (s2 if k % 2 == 0 else t2, e[k], e[k]))
        a("v_add_f32 v%d, v%d, v%d" % (s1, s1, t1))
        a("v_add_f32 v%d, v%d, v%d" % (s2, s2, t2))
    else:
        E, SS, QQ, TT = pk, pk + 8, pk + 10, pk + 12
        pr = lambda x: "v[%d:%d]" % (x, x + 1)
        a("v_readlane_b32 s24, v%d, 0" % f[0])
        a("v_mov_b32 v%d, 0" % s1)
        a("v_mov_b32 v%d, 0" % s2)
        if pre:
            pre()
        setexec(valid)
        a("s_mov_b32 s63, s24")
        for k in range(4):
            a("v_pk_add_f32 %s, %s, s[24:25] op_sel_hi:[1,0] neg_lo:[0,1] neg_hi:[0,1]" % (pr(E + 2 * k), pr(f[2 * k])))
        a("v_pk_add_f32 %s, %s, %s" % (pr(SS), pr(E), pr(E + 2)))
        a("v_pk_mul_f32 %s, %s, %s" % (pr(QQ), pr(E), pr(E)))
        a("v_pk_add_f32 %s, %s, %s" % (pr(TT), pr(E + 4), pr(E + 6)))
        a("v_pk_fma_f32 %s, %s, %s, %s" % (pr(QQ), pr(E + 2), pr(E + 2), pr(QQ)))
        a("v_pk_add_f32 %s, %s, %s" % (pr(SS), pr(SS), pr(TT)))
        a("v_pk_fma_f32 %s, %s, %s, %s" % (pr(QQ), pr(E + 4), pr(E + 4), pr(QQ)))
        a("v_add_f32 v%d, v%d, v%d" % (s1, SS, SS + 1))
        a("v_pk_fma_f32 %s, %s, %s, %s" % (pr(QQ), pr(E + 6), pr(E + 6), pr(QQ)))
        a("v_add_f32 v%d, v%d, v%d" % (s2, QQ, QQ + 1))
    if mid:
        mid()
    else:
        setexec(-1)
    for i, r in enumerate((8, 4, 2, 1)):
        a("v_add_f32_dpp v%d, v%d, v%d row_ror:%d%s" % (s1, s1, s1, r, DPPM))
        a("v_add_f32_dpp v%d, v%d, v%d row_ror:%d%s" % (s2, s2, s2, r, DPPM))
        filler()
    for which in (16, 32):
        a("v_mov_b32 v%d, v%d" % (t1, s1))
        a("v_mov_b32 v%d, v%d" % (t2, s2))
        filler()
        a("v_permlane%d_swap_b32 v%d, v%d" % (which, s1, t1))
        a("v_permlane%d_swap_b32 v%d, v%d" % (which, s2, t2))
        a("v_add_f32 v%d, v%d, v%d" % (s1, s1, t1))
        a("v_add_f32 v%d, v%d, v%d" % (s2, s2, t2))
    a("v_mul_f32 v%d, %s, v%d" % (s1, f32(1.0 / 448), s1))
    a("v_mul_f32 v%d, %s, v%d" % (s2, f32(1.0 / 448), s2))
    a("v_fma_f32 v%d, -v%d, v%d, v%d" % (s2, s1, s1, s2))
    a("v_add_f32 v%d, s63, v%d" % (s1, s1))
    a("v_max_f32 v%d, 0, v%d" % (s2, s2))
    a("v_cvt_pk_bf16_f32 v%d, v%d, v%d" % (t1, s1, s2))
    a("v_and_b32 v%d, 0xffff0000, v%d" % (s2, t1))
    a("v_lshlrev_b32 v%d, 16, v%d" % (s1, t1))
    a("v_add_f32 v%d, %s, v%d" % (s2, f32(1e-5), s2))
    bf16r(s2, s2)
    a("v_sqrt_f32 v%d, v%d" % (s2, s2))
    while fill:
        filler()
    return s1, s2

def ln_apply(f, e, pk, s1, s2):
    n = len(f)
    for k in range(n):
        a("v_sub_f32 v%d, v%d, v%d" % (e[k], f[k], s1))
    bf16r(s2, s2)
    a("v_rcp_f32 v%d, v%d" % (s2, s2))
    for k in range(n // 2):
        a("v_cvt_pk_bf16_f32 v%d, v%d, v%d" % (pk[k], e[2 * k], e[2 * k + 1]))
    for k in range(n // 2):
        a("v_lshlrev_b32 v%d, 16, v%d" % (e[2 * k], pk[k]))
        a("v_and_b32 v%d, 0xffff0000, v%d" % (e[2 * k + 1], pk[k]))
    for k in range(n):
        a("v_mul_f32 v%d, v%d, v%d" % (e[k], e[k], s2))

def layernorm(f, out, valid, T):
    e = [T + k for k in range(8)]
    pk = [T + 12 + k for k in range(4)]
    s1, s2 = ln_stats(f, valid, T, ["v_mov_b32 v%d, 0" % (out + i) for i in range(4)])
    ln_apply(f, e, pk, s1, s2)
    setexec(valid)
    for k in range(4):
        a("v_cvt_pk_bf16_f32 v%d, v%d, v%d" % (out + k, e[2 * k], e[2 * k + 1]))
    setexec(-1)

def quad_transpose_reduce(v, dst, T):
    k0, g0, k1, g1 = T, T + 1, T + 2, T + 3
    a("v_cndmask_b32 v%d, v%d, v%d, s[%d:%d]" % (g0, v[1], v[0], S_ODD, S_ODD + 1))
    a("v_cndmask_b32 v%d, v%d, v%d, s[%d:%d]" % (g1, v[3], v[2], S_ODD, S_ODD + 1))
    a("v_cndmask_b32 v%d, v%d, v%d, s[%d:%d]" % (k0, v[0], v[1], S_ODD, S_ODD + 1))
    a("v_cndmask_b32 v%d, v%d, v%d, s[%d:%d]" % (k1, v[2], v[3], S_ODD, S_ODD + 1))
    a("v_add_f32_dpp v%d, v%d, v%d quad_perm:[1,0,3,2]%s" % (k0, g0, k0, DPPM))
    a("v_add_f32_dpp v%d, v%d, v%d quad_perm:[1,0,3,2]%s" % (k1, g1, k1, DPPM))
    a("v_cndmask_b32 v%d, v%d, v%d, s[%d:%d]" % (g0, k1, k0, S_B1, S_B1 + 1))
    a("v_cndmask_b32 v%d, v%d, v%d, s[%d:%d]" % (dst, k0, k1, S_B1, S_B1 + 1))
    a("v_add_f32_dpp v%d, v%d, v%d quad_perm:[2,3,0,1]%s" % (dst, g0, dst, DPPM))

S_B2, S_B3 = S_B1, 4
def reduce16(v, dst):
    for r in range(4):
        a("v_add_f32_dpp v%d, v%d, v%d row_ror:8%s" % (v[r], v[r], v[r], DPPM))
    for r in range(4):
        a("v_add_f32_dpp v%d, v%d, v%d row_ror:4%s" % (v[r], v[r], v[r], DPPM))
    a("v_cndmask_b32 v%d, v%d, v%d, s[%d:%d]" % (v[0], v[0], v[1], S_M4, S_M4 + 1))
    a("v_cndmask_b32 v%d, v%d, v%d, s[%d:%d]" % (v[2], v[2], v[3], S_M4, S_M4 + 1))
    a("v_cndmask_b32 v%d, v%d, v%d, s[%d:%d]" % (dst, v[0], v[2], S_M8, S_M8 + 1))

def check12(n, X, oklab, G=None, T0=None, mask=0xfff, acc=(5, 6, 7)):
    if G is None:
        G = V_G
    for t in range(n):
        for r in range(4):
            a("v_xor_b32 v%d, v%d, v%d" % (X + 4 * t + r, G + 4 * t + r, T0 if (r == 0 and T0 is not None) else V_T + r))
    regs = [X + i for i in range(4 * n)]
    acc = list(acc)
    cur = regs[:]
    outs = []
    i = 0
    while len(cur) >= 3 and i < 3:
        a("v_or3_b32 v%d, v%d, v%d, v%d" % (acc[i], cur[0], cur[1], cur[2])); cur = cur[3:]; outs.append(acc[i]); i += 1
    i = 0
    while len(cur) >= 2:
        o = outs[i % len(outs)]
        a("v_or3_b32 v%d, v%d, v%d, v%d" % (o, o, cur[0], cur[1])); cur = cur[2:]; i += 1
    rest = outs + cur
    while len(rest) > 1:
        if len(rest) >= 3:
            a("v_or3_b32 v%d, v%d, v%d, v%d" % (acc[0], rest[0], rest[1], rest[2])); rest = [acc[0]] + rest[3:]
        else:
            a("v_or_b32 v%d, v%d, v%d" % (acc[0], rest[0], rest[1])); rest = [acc[0]]
    a("v_and_b32 v%d, 0x%x, v%d" % (acc[0], mask, rest[0]))
    a("v_cmp_ne_u32 vcc, 0, v%d" % acc[0])
    a("s_cbranch_vccz %s" % oklab)

V_I16, V_GRP, V_LANE = 1, 2, 3
V_M, V_T = 196, 200
V_TA, V_TB, V_T8, V_ONE = 204, 205, 206, 207
V_B1, V_X = 212, 208
V_GA = 213
V_PUB = 214
V_XA = 215
V_ACC = 216
V_G = 232
V_W1A, V_LW = 248, 249
NVGPR = 252
V_K, V_V, V_QF = 32, 64, 96
V_W = 32
V_W1F = 64
V_BB = 96
V_S1 = 112
V_S2 = 144

def tag12(dst, src):
    for r in range(4):
        if Cfg.rnd:
            a("v_add_u32 v%d, 0x800, v%d" % (dst + r, src + r))
            src_r = dst + r
        else:
            src_r = src + r
    for r in range(4):
        a("v_bfi_b32 v%d, s63, v%d, v%d" % (dst + r, V_T + r, (dst if Cfg.rnd else src) + r))

def get_xcc():
    if Cfg.fakex:
        a("s_and_b32 s99, s33, 15")
    else:
        a("s_getreg_b32 s99, hwreg(HW_REG_XCC_ID)")
        a("s_and_b32 s99, s99, 15")

def make_masks():
    a("v_and_b32 v10, 1, v%d" % V_I16)
    a("v_lshlrev_b32 v10, 4, v10")
    a("v_mov_b32 v11, 0xffff")
    a("v_lshlrev_b32 v11, v10, v11")
    a("v_bfe_u32 v10, v%d, 1, 2" % V_I16)
    for rho in range(4):
        a("v_cmp_eq_u32 vcc, %d, v10" % rho)
        a("v_cndmask_b32 v%d, 0, v11, vcc" % (V_M + rho))

def make_tags(full=True):
    a("s_waitcnt lgkmcnt(0)")
    for k in range(4):
        a("s_add_u32 s%d, s%d, 1" % (28 + k, 28 + k))
    if full:
        for k in range(4):
            if k in (1, 3):
                a("s_lshr_b32 s63, s%d, %d" % (28 + k, 12 if k == 1 else 20))
                a("s_xor_b32 s63, s63, s%d" % (28 + k))
                a("s_and_b32 s63, s63, 0xfff")
            else:
                a("s_and_b32 s63, s%d, 0xfff" % (28 + k))
            a("v_mov_b32 v%d, s63" % (V_T + k))
    a("v_mov_b32 v%d, s31" % V_TB)
    a("s_and_b32 s63, s30, 0xff")
    a("v_mov_b32 v%d, s63" % V_T8)

if Cfg.stamps:
    for i in range(16):
        a("s_mov_b64 s[%d:%d], 0" % (64 + 2 * i, 65 + 2 * i))
stamp(0)
a("s_load_dwordx16 s[4:19], s[0:1], 0")
a("s_load_dwordx8 s[20:27], s[0:1], 64")
a("s_cmp_ge_u32 s2, 256")
a("s_cbranch_scc1 L_exit")
a("v_lshrrev_b32 v4, 6, v0")
a("v_and_b32 v%d, 63, v0" % V_LANE)
a("v_readfirstlane_b32 s34, v4")
a("v_and_b32 v%d, 15, v0" % V_I16)
a("v_bfe_u32 v%d, v0, 4, 2" % V_GRP)
a("s_and_b32 s32, s2, 7")
a("s_lshr_b32 s33, s2, 3")
a("s_and_b32 s35, s34, 3")
a("s_cmp_ge_u32 s34, 4")
a("s_cbranch_scc1 L_tail")

a("s_lshl_b32 s48, s32, 22")
a("s_lshl_b32 s49, s33, 15")
a("s_add_u32 s48, s48, s49")
a("s_lshl_b32 s49, s34, 13")
a("s_add_u32 s48, s48, s49")
a("s_add_u32 s48, s48, %d" % (6144 * 512))
if Cfg.kdma:
    a("v_lshrrev_b32 v4, 2, v%d" % V_LANE)
    a("v_lshlrev_b32 v4, 9, v4")
    a("v_and_b32 v5, 3, v%d" % V_LANE)
    a("v_lshl_add_u32 v4, v5, 4, v4")
    a("s_add_u32 s49, s49, %d" % L_K)
else:
    a("v_lshlrev_b32 v4, 9, v%d" % V_I16)
    a("v_lshl_add_u32 v4, v%d, 4, v4" % V_GRP)
a("v_lshlrev_b32 v5, 11, v%d" % V_GRP)
a("v_lshl_add_u32 v5, v%d, 4, v5" % V_I16)
a("s_mov_b32 s42, 33554432")
a("s_mov_b32 s43, 0x20000")
a("s_mov_b32 s46, 33554432")
a("s_mov_b32 s47, 0x20000")
a("s_waitcnt lgkmcnt(0)")
a("s_mov_b32 s40, s6")
a("s_and_b32 s41, s7, 0xffff")
a("s_mov_b32 s44, s8")
a("s_and_b32 s45, s9, 0xffff")
stamp(11)
nissued = [0]
def paced(text):
    if Cfg.depth and nissued[0] >= Cfg.depth and nissued[0] < Cfg.n1:
        a("s_waitcnt vmcnt(%d)" % (Cfg.depth - 1))
    a(text)
    nissued[0] += 1
loads = []
for s in range(8):
    if Cfg.kdma:
        loads.append(["s_add_u32 m0, s49, %d" % (960 * s), "buffer_load_dwordx4 v4, s[40:43], s48 offen offset:%d%s lds" % (64 * s, NT)])
    else:
        loads.append("buffer_load_dwordx4 v[%d:%d], v4, s[40:43], s48 offen offset:%d%s" % (V_K + 4 * s, V_K + 4 * s + 3, 64 * s, NT))
def emit(t):
    for x in ([t] if isinstance(t, str) else t):
        a(x)
for r in range(4):
    for h in range(2):
        n = 2 * r + h
        if Cfg.vdma:
            loads.append(["s_add_u32 m0, s49, %d" % (L_V - L_K + 1024 * n - 256 * n), "buffer_load_dwordx4 v5, s[44:47], s48 offen offset:%d%s lds" % (256 * n, NT)])
        else:
            loads.append("buffer_load_dwordx4 v[%d:%d], v5, s[44:47], s48 offen offset:%d%s" % (V_V + 4 * n, V_V + 4 * n + 3, 512 * r + 256 * h, NT))
nfirst = 8 + Cfg.nearly
for i, t in enumerate(loads[:Cfg.k0]):
    if i == Cfg.kpre and Cfg.b0:
        a("s_barrier")
    emit(t)
stamp(12)
a("s_load_dwordx4 s[28:31], s[26:27], %d" % EPOCH)
srd(36, 26, WS_SIZE)
make_masks()
a("v_lshrrev_b32 v7, 3, v%d" % V_I16)
a("v_lshlrev_b32 v7, 9, v7")
a("v_lshl_add_u32 v7, v%d, 4, v7" % V_GRP)
a("s_lshl_b32 s63, s34, 11")
a("v_lshl_add_u32 v%d, v%d, 4, s63" % (V_LW, V_LANE))
a("s_lshl_b32 s63, s34, 9")
a("v_lshl_add_u32 v23, v%d, 3, s63" % V_LANE)
a("s_lshl_b32 s63, s34, 10")
a("v_lshl_add_u32 v21, v%d, 4, s63" % V_LANE)
a("v_lshlrev_b32 v22, 3, v%d" % V_LANE)
a("s_lshl_b32 s55, s32, 5")
a("s_add_u32 s55, s55, s33")
a("s_lshl_b32 s55, s55, 11")
a("s_add_u32 s50, s55, %d" % E2)
a("s_add_u32 s51, s55, %d" % (E2 + BOFF))
make_tags(True)
a("v_mov_b32 v31, v%d" % V_TB)
a("v_mov_b32 v6, 0")
a("v_mov_b32 v29, 1")
a("ds_write_b32 v6, v6 offset:%d" % L_CNT)
a("ds_write_b32 v6, v6 offset:%d" % (L_CNT + 4))
if Cfg.trg >= 0:
    a("ds_write_b32 v6, v6 offset:%d" % (L_CNT + 8))
a("s_mov_b32 s%d, %d" % (S_TO, Cfg.timeout))
get_xcc()
NPF = [0]
def wo_prefetch():
    pass
a("s_lshl_b32 s52, s32, 13")
a("s_add_u32 s52, s52, %d" % E1)
a("v_and_b32 v8, 31, v%d" % V_LANE)
a("s_lshl_b32 s63, s34, 5")
a("v_add_u32 v8, s63, v8")
a("v_lshrrev_b32 v9, 5, v%d" % V_LANE)
a("v_lshlrev_b32 v9, 12, v9")
a("v_lshl_add_u32 v24, v8, 4, v9")
a("v_and_b32 v9, 7, v8")
a("v_sub_u32 v8, v8, v9")
a("v_lshl_add_u32 v8, v8, 2, v9")
a("v_lshlrev_b32 v26, 1, v8")
a("v_lshlrev_b32 v25, 6, v%d" % V_I16)
a("v_lshl_add_u32 v25, v%d, 4, v25" % V_GRP)
a("v_add_u32 v25, s49, v25")
if Cfg.vdma:
    a("v_lshl_add_u32 v28, v%d, 4, s49" % V_LANE)
sel_init(32)
GS = [128, 136]
XC = 12
V_E0 = 27
E1M = 0x3ff
def e1_issue(k):
    a("s_add_u32 s53, s52, s%d" % S_SEL)
    a("s_cmp_eq_u32 s%d, 0" % S_SEL)
    a("s_cselect_b32 s98, s99, 0")
    a("s_cselect_b32 s0, 0, 1")
    a("v_xor_b32 v%d, s98, v%d" % (V_E0, V_T))
    for u in range(2):
        a("buffer_load_dwordx4 v[%d:%d], v24, s[36:39], s53 offen offset:%d sc1" % (GS[k] + 4 * u, GS[k] + 4 * u + 3, 2048 * u))
def e1_check(k):
    check12(2, XC, "L_e1ok", GS[k], V_E0, E1M, acc=(144, 145, 146))
a("s_waitcnt lgkmcnt(0)")
if Cfg.sp:
    a("s_setprio 3")
if Cfg.bq:
    a("s_barrier")
order = [("L", i) for i in range(Cfg.k0)]
rounds = [p for p in (Cfg.p1, Cfg.p2) if p]
for i in range(Cfg.k0, 17):
    for k, p in enumerate(rounds):
        if p == i:
            e1_issue(k)
            if Cfg.sp:
                a("s_setprio %d" % (len(rounds) - 1 - k))
            order += [("P", k), ("P", k)]
    if i < 16:
        emit(loads[i])
        order.append(("L", i))
stamp(13)
def younger(item):
    last = max(i for i, x in enumerate(order) if x == item)
    return len(order) - 1 - last
a("s_waitcnt vmcnt(%d)" % younger(("L", 7)))
for s in range(8):
    a("ds_read_b128 v[%d:%d], v25 offset:%d" % (V_K + 4 * s, V_K + 4 * s + 3, 1024 * s))
for k in range(len(rounds)):
    a("s_waitcnt vmcnt(%d)" % younger(("P", k)))
    e1_check(k)
a.label("L_e1poll")
sel_step(True)
e1_issue(0)
a("s_waitcnt vmcnt(0)")
e1_check(0)
a("s_branch L_e1poll")
a.label("L_e1ok")
stamp(7)
padd4(XC, XC, XC + 4)
xhalf_add4(XC)
a("v_cvt_pk_bf16_f32 v8, v%d, v%d" % (XC, XC + 1))
a("v_cvt_pk_bf16_f32 v9, v%d, v%d" % (XC + 2, XC + 3))
a("s_mov_b32 exec_hi, 0")
a("ds_write_b16 v26, v8 offset:%d" % (L_Q))
a("ds_write_b16_d16_hi v26, v8 offset:%d" % (L_Q + 16))
a("ds_write_b16 v26, v9 offset:%d" % (L_Q + 32))
a("ds_write_b16_d16_hi v26, v9 offset:%d" % (L_Q + 48))
setexec(-1)
a("s_cmp_eq_u32 s0, 0")
a("s_cbranch_scc1 L_fastq")
a("ds_write_b32 v6, v29 offset:%d" % (L_CNT + 4))
a.label("L_fastq")
stamp(1)
a("s_waitcnt lgkmcnt(0)")
if Cfg.prio:
    a("s_setprio 2")
a("s_barrier")
stamp(2)
for s in range(8):
    a("ds_read_b128 v[%d:%d], v7 offset:%d" % (V_QF + 4 * s, V_QF + 4 * s + 3, L_Q + 64 * s))
a("s_mov_b32 s63, %s" % f32(0.0625 * LOG2E))
S = V_ACC
for s in range(8):
    a("s_waitcnt lgkmcnt(%d)" % (0 if Cfg.stamps else 7 - s))
    a("v_mfma_f32_16x16x32_bf16 v[%d:%d], v[%d:%d], v[%d:%d], %s" % (S, S + 3, V_K + 4 * s, V_K + 4 * s + 3, V_QF + 4 * s, V_QF + 4 * s + 3, "0" if s == 0 else "v[%d:%d]" % (S, S + 3)))
def vread(lo, hi):
    a("s_waitcnt vmcnt(%d)" % younger(("L", 8 + hi - 1)))
    for n in range(lo, hi):
        a("ds_read_b128 v[%d:%d], v28 offset:%d" % (V_V + 4 * n, V_V + 4 * n + 3, L_V - L_K + 1024 * n))
if Cfg.vdma:
    vread(0, Cfg.p1 - 8)
a("v_cvt_pk_bf16_f32 v8, v%d, v%d" % (S, S + 1))
a("v_cvt_pk_bf16_f32 v9, v%d, v%d" % (S + 2, S + 3))
a("v_lshlrev_b32 v10, 16, v8")
a("v_and_b32 v11, 0xffff0000, v8")
a("v_lshlrev_b32 v12, 16, v9")
a("v_and_b32 v13, 0xffff0000, v9")
a("v_max3_f32 v14, v10, v11, v12")
a("v_max_f32 v14, v14, v13")
bfly("v_max_f32", 14, 15, 16)
bfly("v_max_f32", 14, 15, 32)
a("v_mul_f32 v14, s63, v14")
for r in range(4):
    a("v_fma_f32 v%d, v%d, s63, -v14" % (10 + r, 10 + r))
for r in range(4):
    a("v_exp_f32 v%d, v%d" % (10 + r, 10 + r))
for r in range(4):
    a("v_cvt_pk_bf16_f32 v%d, v%d, v%d" % (16 + r, 10 + r, 10 + r))
O = V_ACC + 4
BB = V_QF
def bbuild(r):
    for rho in range(4):
        a("v_and_b32 v%d, v%d, v%d" % (BB + 4 * r + rho, 16 + r, V_M + rho))
def pv(r):
    if not Cfg.vdma:
        a("s_waitcnt vmcnt(%d)" % younger(("L", 8 + 2 * r + 1)))
    else:
        a("s_waitcnt lgkmcnt(%d)" % (0 if Cfg.stamps else 6 - 2 * r))
    for h in range(2):
        n = 2 * r + h
        a("v_mfma_f32_16x16x32_bf16 v[%d:%d], v[%d:%d], v[%d:%d], %s" % (O + 4 * h, O + 4 * h + 3, V_V + 4 * n, V_V + 4 * n + 3, BB + 4 * r, BB + 4 * r + 3, "0" if r == 0 else "v[%d:%d]" % (O + 4 * h, O + 4 * h + 3)))
    if r == Cfg.trg:
        setexec(1)
        a("ds_add_u32 v6, v29 offset:%d" % (L_CNT + 8))
        setexec(-1)
if Cfg.vdma:
    vread(Cfg.p1 - 8, 8)
bbuild(0)
bbuild(1)
stamp(5)
pv(0)
bbuild(2)
a("v_add_f32 v15, v10, v11")
a("v_add_f32 v20, v12, v13")
pv(1)
bbuild(3)
a("v_add_f32 v15, v15, v20")
pv(2)
bfly("v_add_f32", 15, 20, 16)
pv(3)
stamp(6)
bfly("v_add_f32", 15, 20, 32)
a("ds_write_b64 v23, v[14:15] offset:%d" % L_ML)
a("ds_write_b128 v%d, v[%d:%d] offset:%d" % (V_LW, O, O + 3, L_O))
a("ds_write_b128 v%d, v[%d:%d] offset:%d" % (V_LW, O + 4, O + 7, L_O + 1024))
setexec(1)
a("ds_add_u32 v6, v29 offset:%d" % L_CNT)
setexec(-1)
a("s_cmp_ge_u32 s34, 2")
a("s_cbranch_scc1 L_att_exit")
a.label("L_cnt")
a("ds_read_b32 v8, v6 offset:%d" % L_CNT)
a("s_sub_u32 s%d, s%d, 1" % (S_TO, S_TO))
a("s_cbranch_scc1 L_end")
a("s_waitcnt lgkmcnt(0)")
a("v_cmp_gt_u32 vcc, 4, v8")
a("s_cbranch_vccnz L_cnt")
stamp(3)
for w in range(4):
    a("ds_read_b64 v[%d:%d], v22 offset:%d" % (10 + 2 * w, 11 + 2 * w, L_ML + 512 * w))
for w in range(4):
    a("ds_read_b128 v[%d:%d], v21 offset:%d" % (V_G + 4 * w, V_G + 4 * w + 3, L_O + 2048 * w))
a("s_movk_i32 s63, 0xff")
a("s_waitcnt lgkmcnt(4)" if not Cfg.stamps else "s_waitcnt lgkmcnt(0)")
a("v_max3_f32 v18, v10, v12, v14")
a("v_max_f32 v18, v18, v16")
for w in range(4):
    a("v_sub_f32 v%d, v%d, v18" % (10 + 2 * w, 10 + 2 * w))
for w in range(4):
    a("v_exp_f32 v%d, v%d" % (10 + 2 * w, 10 + 2 * w))
a("v_mul_f32 v19, v10, v11")
for w in range(1, 4):
    a("v_fmac_f32 v19, v%d, v%d" % (10 + 2 * w, 11 + 2 * w))
a("v_rcp_f32 v20, v19")
a("v_log_f32 v9, v19")
a("s_waitcnt lgkmcnt(0)")
BC = " op_sel_hi:[0,1]"
for k in (0, 2):
    a("v_pk_mul_f32 v[%d:%d], v[10:11], v[%d:%d]%s" % (24 + k, 25 + k, V_G + k, V_G + k + 1, BC))
for w in range(1, 4):
    for k in (0, 2):
        a("v_pk_fma_f32 v[%d:%d], v[%d:%d], v[%d:%d], v[%d:%d] op_sel_hi:[0,1,1]" % (24 + k, 25 + k, 10 + 2 * w, 11 + 2 * w, V_G + 4 * w + k, V_G + 4 * w + k + 1, 24 + k, 25 + k))
a("v_add_f32 v9, v9, v18")
for k in (0, 2):
    a("v_pk_mul_f32 v[%d:%d], v[20:21], v[%d:%d]%s" % (24 + k, 25 + k, 24 + k, 25 + k, BC))
a("v_bfi_b32 v30, s63, v%d, v9" % V_T8)
a("v_cvt_pk_bf16_f32 v28, v24, v25")
a("v_cvt_pk_bf16_f32 v29, v26, v27")
if not Cfg.noA:
    a("buffer_store_dwordx4 v[28:31], v21, s[36:39], s50 offen")
def bdefer():
    if Cfg.bd == 1:
        a("s_waitcnt vmcnt(0)")
    elif Cfg.bd > 1:
        a("s_sleep %d" % Cfg.bd)
a("v_mov_b32 v8, 1")
setexec(1)
a("ds_add_u32 v6, v8 offset:%d" % L_CNT)
setexec(-1)
stamp(4)
def skip_if_local(tmp, lab):
    if Cfg.xcc:
        a("v_mov_b32 v%d, 0" % tmp)
        a("ds_read_b32 v%d, v%d offset:%d" % (tmp, tmp, L_CNT + 4))
        a("s_waitcnt lgkmcnt(0)")
        a("v_cmp_eq_u32 vcc, 0, v%d" % tmp)
        a("s_cbranch_vccnz %s" % lab)
bdefer()
skip_if_local(8, "L_end")
if not Cfg.noB:
    a("buffer_store_dwordx4 v[28:31], v21, s[36:39], s51 offen sc1")
a("s_branch L_end")

a.label("L_att_exit")
if Cfg.fpf:
    a("s_cmp_lt_u32 s33, 16")
    a("s_cbranch_scc1 L_end")
    a("s_sub_u32 s52, s33, 16")
    a("s_lshl_b32 s52, s52, 1")
    a("s_add_u32 s52, s52, s34")
    a("s_sub_u32 s52, s52, 2")
    a("s_mul_i32 s54, s32, %d" % (224 * 896))
    a("s_mul_i32 s63, s52, %d" % (49 * 128))
    a("s_add_u32 s54, s54, s63")
    a("s_mul_i32 s49, s32, 448")
    a("s_mul_i32 s63, s52, %d" % (14 * 3584))
    a("s_add_u32 s49, s49, s63")
    a("v_lshrrev_b32 v25, 2, v%d" % V_LANE)
    a("v_mul_u32_u24 v25, 3584, v25")
    a("v_and_b32 v26, 3, v%d" % V_LANE)
    a("v_mul_u32_u24 v26, 148, v26")
    a("v_add_u32 v25, v25, v26")
    a("s_mov_b32 s18, %d" % (448 * 3584))
    a("s_mov_b32 s19, 0x20000")
    a("s_and_b32 s17, s17, 0xffff")
    a("s_mov_b32 s22, %d" % (1792 * 896))
    a("s_mov_b32 s23, 0x20000")
    a("s_and_b32 s21, s21, 0xffff")
    a("s_mov_b32 exec_hi, 0x00ffffff")
    a("buffer_load_dword v250, v25, s[16:19], s49 offen")
    a("s_mov_b32 exec_hi, 0x0001ffff")
    a("buffer_load_dword v250, v24, s[20:23], s54 offen")
a("s_branch L_end")

a.label("L_tail")
a.flush()
a("s_cmp_lg_u32 s34, 4")
a("s_cbranch_scc1 L_tail_common")
a("v_lshrrev_b32 v4, 3, v%d" % V_I16)
a("v_mul_u32_u24 v4, 56, v4")
a("v_mul_u32_u24 v5, 14, v%d" % V_GRP)
a("v_add_u32 v4, v4, v5")
a("v_lshlrev_b32 v5, 13, v4")
a("v_and_b32 v6, 7, v%d" % V_I16)
a("v_lshl_add_u32 v5, v6, 4, v5")
a("v_lshlrev_b32 v4, 1, v4")
a("v_lshlrev_b32 v6, 4, v%d" % V_LANE)
a("s_lshr_b32 s50, s33, 3")
a("s_mul_i32 s52, s50, %d" % (112 * 8192))
a("s_lshl_b32 s53, s32, 10")
a("s_add_u32 s52, s52, s53")
a("s_and_b32 s53, s33, 7")
a("s_lshl_b32 s53, s53, 7")
a("s_add_u32 s52, s52, s53")
a("s_mul_i32 s51, s50, 224")
a("s_mov_b32 s42, %d" % (448 * 8192))
a("s_mov_b32 s43, 0x20000")
a("s_mov_b32 s46, 896")
a("s_mov_b32 s47, 0x20000")
a("s_setprio 3")
a("s_waitcnt lgkmcnt(0)")
a("s_mov_b32 s44, s4")
a("s_and_b32 s45, s5, 0xffff")
a("s_mov_b32 s40, s10")
a("s_and_b32 s41, s11, 0xffff")
stamp(11)
WQ, BQ, XR14 = 32, 88, 144
a("buffer_load_dwordx4 v[%d:%d], v6, s[44:47], 0 offen" % (V_G, V_G + 3))
a("buffer_load_dwordx4 v[%d:%d], v4, s[44:47], s51 offen" % (XR14, XR14 + 3))
a("buffer_load_dwordx3 v[%d:%d], v4, s[44:47], s51 offen offset:16" % (XR14 + 4, XR14 + 6))
for t in range(14):
    a("buffer_load_dwordx4 v[%d:%d], v5, s[40:43], s52 offen%s" % (WQ + 4 * t, WQ + 4 * t + 3, NTQ))
    if t < 13:
        a("s_add_u32 s52, s52, 8192")
stamp(12)
a.label("L_tail_common")
a("s_waitcnt lgkmcnt(0)")
if Cfg.tlb == 2:
    a("s_cmp_lg_u32 s34, 6")
    a("s_cbranch_scc1 L_notlb")
    a("s_mul_i32 s48, s32, %d" % (512 * 896))
    a("s_add_u32 s49, s48, %d" % (511 * 896))
    a("s_mul_i32 s50, s32, %d" % (224 * 896))
    a("s_mov_b32 s51, %d" % (447 * 3584))
    a("s_mov_b32 s54, %d" % (E4 + 2044))
    a("s_lshl_b32 s55, s32, 22")
    a("s_add_u32 s55, s55, %d" % (6144 * 512))
    a("s_load_dword s40, s[8:9], s55")
    a("s_load_dword s41, s[12:13], s48")
    a("s_load_dword s42, s[12:13], s49")
    a("s_load_dword s43, s[20:21], s50")
    a("s_load_dword s44, s[16:17], 0")
    a("s_load_dword s45, s[16:17], s51")
    a("s_load_dword s46, s[18:19], 0")
    a("s_load_dword s47, s[22:23], 0")
    a("s_load_dword s98, s[26:27], s54")
    a.label("L_notlb")
if Cfg.b0:
    a("s_barrier")
a("s_load_dwordx4 s[28:31], s[26:27], %d" % EPOCH)
srd(36, 26, WS_SIZE)
a("s_mov_b32 s%d, %d" % (S_TO, Cfg.timeout))
get_xcc()
setmask(S_ODD, 0xAAAAAAAAAAAAAAAA)
setmask(S_M4, 0xF0F0F0F0F0F0F0F0)
setmask(S_M8, 0xFF00FF00FF00FF00)
setmask(S_HI, 0xFFFFFFFF00000000)
a("v_mov_b32 v%d, 1.0" % V_ONE)
a("v_lshrrev_b32 v8, 2, v%d" % V_LANE)
a("v_lshlrev_b32 v8, 11, v8")
a("v_and_b32 v9, 3, v%d" % V_LANE)
a("v_lshl_add_u32 v%d, v9, 4, v8" % V_GA)
make_masks()
a("v_lshl_add_u32 v8, v%d, 3, v%d" % (V_GRP, V_I16))
a("v_lshlrev_b32 v%d, 4, v8" % V_PUB)
a("s_lshl_b32 s52, s32, 13")
a("s_add_u32 s52, s52, %d" % E1)
a("s_lshl_b32 s53, s33, 8")
a("s_add_u32 s53, s53, s52")
a("s_cmp_lg_u32 s34, 4")
a("s_cbranch_scc1 L_notq")
a("s_add_u32 s49, s53, %d" % BOFF)
a("s_waitcnt vmcnt(14)")
stamp(1)
XF, XV, XE, XP = 152, 160, 176, 216
for k in range(4):
    a("v_lshlrev_b32 v%d, 16, v%d" % (XF + 2 * k, V_G + k))
    a("v_and_b32 v%d, 0xffff0000, v%d" % (XF + 2 * k + 1, V_G + k))
fill = []
for k in range(7):
    fill.append("v_lshlrev_b32 v%d, 16, v%d" % (XV + 2 * k, XR14 + k))
    fill.append("v_and_b32 v%d, 0xffff0000, v%d" % (XV + 2 * k + 1, XR14 + k))
s1, s2 = ln_stats([XF + k for k in range(8)], 0x00FFFFFFFFFFFFFF, 8, fill)
ln_apply([XV + k for k in range(14)], [XE + k for k in range(14)], [XP + k for k in range(7)], s1, s2)
for t in range(14):
    a("v_cvt_pk_bf16_f32 v%d, v%d, v%d" % (XE + t, XE + t, XE + t))
make_tags()
stamp(6)
QA = V_ACC
for t in range(15):
    if t < 14:
        for rho in range(4):
            a("v_and_b32 v%d, v%d, v%d" % (BQ + 4 * t + rho, XE + t, V_M + rho))
    if t >= 1:
        u = t - 1
        a("s_waitcnt vmcnt(%d)" % (13 - u))
        a("v_mfma_f32_16x16x32_bf16 v[%d:%d], v[%d:%d], v[%d:%d], %s" % (QA, QA + 3, WQ + 4 * u, WQ + 4 * u + 3, BQ + 4 * u, BQ + 4 * u + 3, "0" if u == 0 else "v[%d:%d]" % (QA, QA + 3)))
stamp(2)
a("s_movk_i32 s63, 0xfff")
for r in range(4):
    a("v_mov_b32_dpp v%d, v%d row_ror:8%s" % (8 + r, QA + r, DPPM))
for r in range(4):
    a("v_mov_b32 v%d, v%d" % (12 + r, 8 + r))
for r in range(4):
    a("v_permlane32_swap_b32 v%d, v%d" % (8 + r, 12 + r))
for r in range(4):
    a("v_add_f32 v%d, v%d, v%d" % (12 + r, 12 + r, QA + r))
for r in range(4):
    a("v_add_u32 v%d, 0x%x, v%d" % (12 + r, (E1M + 1) // 2, 12 + r))
for r in range(4):
    a("v_and_b32 v%d, 0x%x, v%d" % (12 + r, 0xffffffff ^ E1M, 12 + r))
for r in range(4):
    a("v_xor_b32 v%d, v%d, v%d" % (28 + r, 12 + r, V_T + r))
setexec(0x0000000000FF00FF)
a("v_xor_b32 v16, s99, v28")
for r in range(1, 4):
    a("v_mov_b32 v%d, v%d" % (16 + r, 28 + r))
if not Cfg.noA:
    a("buffer_store_dwordx4 v[16:19], v%d, s[36:39], s53 offen" % V_PUB)
a("buffer_store_dwordx4 v[28:31], v%d, s[36:39], s49 offen sc1" % V_PUB)
setexec(-1)
a("s_setprio 0")
stamp(3)
a("s_branch L_e1")
a.label("L_notq")
a.flush()
make_tags()
if Cfg.pretouch == 1:
    a("s_cmp_lg_u32 s34, 5")
    a("s_cbranch_scc1 L_nopre")
    a("s_lshl_b32 s55, s32, 5")
    a("s_add_u32 s55, s55, s33")
    a("s_lshl_b32 s55, s55, 11")
    a("v_lshlrev_b32 v8, 7, v%d" % V_I16)
    a("s_add_u32 s63, s55, %d" % E2)
    a("v_add_u32 v9, s63, v8")
    a("s_add_u32 s63, s55, %d" % E3A)
    a("v_add_u32 v10, s63, v8")
    a("v_and_b32 v8, 128, v8")
    a("v_add_u32 v8, s53, v8")
    a("v_cmp_eq_u32 vcc, 1, v%d" % V_GRP)
    a("v_cndmask_b32 v9, v9, v10, vcc")
    a("v_cndmask_b32 v9, v9, v8, s[%d:%d]" % (S_HI, S_HI + 1))
    a("buffer_load_dword v250, v9, s[36:39], 0 offen sc1")
    a.label("L_nopre")
if Cfg.tlb == 1:
    a("s_cmp_lg_u32 s34, 6")
    a("s_cbranch_scc1 L_notlb")
    a("s_mul_i32 s48, s32, %d" % (512 * 896))
    a("s_add_u32 s49, s48, %d" % (511 * 896))
    a("s_mul_i32 s50, s32, %d" % (224 * 896))
    a("s_mov_b32 s51, %d" % (447 * 3584))
    a("s_mov_b32 s54, %d" % E4)
    a("v_mov_b32 v8, 0")
    setexec(1)
    srd(40, 12, 4096 * 896)
    a("buffer_load_dword v250, v8, s[40:43], s48 offen")
    a("buffer_load_dword v250, v8, s[40:43], s49 offen")
    srd(40, 20, 1792 * 896)
    a("buffer_load_dword v250, v8, s[40:43], s50 offen")
    srd(40, 16, 448 * 3584)
    a("buffer_load_dword v250, v8, s[40:43], 0 offen")
    a("buffer_load_dword v250, v8, s[40:43], s51 offen")
    srd(40, 18, 1792 * 2)
    a("buffer_load_dword v250, v8, s[40:43], 0 offen")
    srd(40, 22, 896)
    a("buffer_load_dword v250, v8, s[40:43], 0 offen")
    a("buffer_load_dword v250, v8, s[36:39], s54 offen offset:2044")
    setexec(-1)
    a.label("L_notlb")
if Cfg.cpf:
    a("s_cmp_lg_u32 s34, 7")
    a("s_cbranch_scc1 L_nocpf")
    if Cfg.cpf == 2:
        a("s_cmp_lg_u32 s33, 31")
        a("s_cbranch_scc1 L_nocpf")
    a("s_getpc_b64 s[48:49]")
    a.label("L_pc")
    a("s_sub_u32 s48, s48, L_pc-%s_kernel" % NAME)
    a("s_subb_u32 s49, s49, 0")
    a("v_lshlrev_b32 v8, 7, v%d" % V_LANE)
    a("v_min_u32 v9, L_exit-%s_kernel-8192, v8" % NAME)
    a("global_load_dword v250, v8, s[48:49]")
    a("v_add_u32 v9, 8192, v9")
    a("global_load_dword v250, v9, s[48:49]")
    a.label("L_nocpf")
def pre2():
    a("s_cmp_lg_u32 s34, 5")
    a("s_cbranch_scc1 L_nopre2")
    a("s_lshl_b32 s55, s32, 5")
    a("s_add_u32 s55, s55, s33")
    a("s_lshl_b32 s55, s55, 11")
    a("s_add_u32 s63, s55, %d" % E2)
    a("v_lshlrev_b32 v8, 7, v%d" % V_LANE)
    setexec(0xffff)
    a("buffer_load_dword v250, v8, s[36:39], s63 offen sc1")
    setexec(-1)
    a.label("L_nopre2")
if Cfg.pretouch == 3:
    pre2()
a.label("L_e1")
if Cfg.bq:
    a("s_barrier")
if Cfg.pretouch == 2:
    pre2()
a("s_cmp_lt_u32 s33, 30")
a("s_cbranch_scc1 L_roles")
a("s_barrier")
a("s_branch L_end")
a.label("L_roles")
a("s_cmp_ge_u32 s33, 23")
a("s_cbranch_scc1 L_R")
a("s_cmp_ge_u32 s33, 16")
a("s_cbranch_scc1 L_F")

def poll(name, issue, nload, check, dual, sets=1, shadow=None, D=None):
    D = D or Cfg.pd
    ok = name + "_ok"
    for r in range(D):
        issue(r % sets)
        if r < D - 1 and Cfg.pds:
            a("s_sleep %d" % Cfg.pds)
    if shadow:
        shadow()
    a.label(name)
    n = sets if sets > 1 else 1
    for k in range(n):
        a("s_waitcnt vmcnt(%d)" % (nload * (D - 1)))
        check(k, ok)
        sel_step(True if dual else None)
        if not dual and Cfg.xls:
            a("s_sleep %d" % Cfg.xls)
        issue(k)
    a("s_branch %s" % name)
    a.label(ok)

def wait_cnt(n, off=0):
    lab = a.newlabel("L_wc")
    a("v_mov_b32 v5, 0")
    a.label(lab)
    a("ds_read_b32 v7, v5 offset:%d" % (L_CNT + off))
    a("s_sub_u32 s%d, s%d, 1" % (S_TO, S_TO))
    a("s_cbranch_scc1 L_end")
    a("s_sleep 1")
    a("s_waitcnt lgkmcnt(0)")
    a("v_cmp_gt_u32 vcc, %d, v7" % n)
    a("s_cbranch_vccnz %s" % lab)

a("s_lshl_b32 s48, s33, 1")
a("s_lshr_b32 s49, s35, 1")
a("s_add_u32 s48, s48, s49")
a("s_lshl_b32 s50, s32, 9")
a("s_bfe_u32 s49, s48, 0x10001")
a("s_lshl_b32 s49, s49, 8")
a("s_add_u32 s50, s50, s49")
a("s_lshr_b32 s49, s48, 4")
a("s_lshl_b32 s49, s49, 7")
a("s_add_u32 s50, s50, s49")
a("s_bfe_u32 s49, s48, 0x20002")
a("s_lshl_b32 s49, s49, 5")
a("s_add_u32 s50, s50, s49")
a("s_and_b32 s49, s48, 1")
a("s_lshl_b32 s49, s49, 2")
a("s_add_u32 s50, s50, s49")
a("s_mul_i32 s50, s50, 896")
a("s_and_b32 s49, s35, 1")
a("s_lshl_b32 s49, s49, 9")
a("s_add_u32 s50, s50, s49")
a("v_mul_u32_u24 v6, 7168, v%d" % V_GRP)
a("v_lshl_add_u32 v6, v%d, 4, v6" % V_I16)
srd(40, 12, 4096 * 896)
a("s_lshl_b32 s54, s32, 16")
a("s_lshl_b32 s63, s48, 6")
a("s_add_u32 s54, s54, s63")
a("s_lshl_b32 s55, s32, 5")
a("s_add_u32 s55, s55, s48")
a("s_lshl_b32 s55, s55, 11")
a("s_lshl_b32 s49, s49, 1")
a("s_add_u32 s55, s55, s49")
a("s_add_u32 s52, s55, %d" % E3A)
a("s_add_u32 s53, s55, %d" % (E3A + BOFF))
a("v_cmp_lt_u32 s[6:7], 7, v%d" % V_I16)
a("v_add_u32 v4, %d, v%d" % (512 - 128, V_PUB))
a("v_cndmask_b32 v4, v%d, v4, s[6:7]" % V_PUB)
a("s_mov_b64 s[8:9], -1")
a("s_bitcmp1_b32 s35, 0")
a("s_cselect_b32 s9, 0x00ff00ff, s9")
a("s_mov_b32 s0, 0")
if Cfg.dry & 1:
    a("s_mov_b32 s0, 1")
    a("s_mov_b64 s[6:7], 0")
    a("s_branch L_e2poll_ok")
    a.label("L_odry")
    a("s_mov_b32 s0, 0")
a("s_barrier")
if Cfg.trg >= 0 and Cfg.trgo:
    wait_cnt(4, 8)
if Cfg.hack:
    _l = a.newlabel("L_hk")
    a("s_cmp_ge_u32 s32, 4")
    a("s_cbranch_scc1 %s" % _l)
    a("s_sleep %d" % Cfg.hack)
    a.label(_l)
if Cfg.ocnt:
    wait_cnt(Cfg.ocnt)
if Cfg.os:
    a("s_sleep %d" % Cfg.os)
for q in range(4):
    a("buffer_load_dwordx4 v[%d:%d], v6, s[40:43], s50 offen offset:%d%s" % (V_W + 4 * q, V_W + 4 * q + 3, 896 * q, NTL))
a("s_mov_b32 exec_lo, s9")
a("s_mov_b32 exec_hi, s9")
for q in range(4):
    a("buffer_load_dwordx4 v[%d:%d], v6, s[40:43], s50 offen offset:%d%s" % (V_W + 16 + 4 * q, V_W + 16 + 4 * q + 3, 896 * q + 256, NTL))
setexec(-1)
sel_init()
stamp(1)
E2S = [V_S1 + 8 * k for k in range(Cfg.pd)]
def e2_issue(k):
    a("s_add_u32 s48, s54, s%d" % S_SEL)
    a("s_add_u32 s49, s48, %d" % (E2 + 16 * 2048))
    a("s_add_u32 s48, s48, %d" % E2)
    a("buffer_load_dwordx4 v[%d:%d], v%d, s[36:39], s48 offen sc1" % (E2S[k], E2S[k] + 3, V_GA))
    a("buffer_load_dwordx4 v[%d:%d], v%d, s[36:39], s49 offen sc1" % (E2S[k] + 4, E2S[k] + 7, V_GA))
def e2_check(k, ok):
    G = E2S[k]
    a("v_xor_b32 v10, v%d, v%d" % (G + 2, V_T8))
    a("v_xor_b32 v11, v%d, v%d" % (G + 6, V_T8))
    a("v_xor_b32 v12, v%d, v%d" % (G + 3, V_TB))
    a("v_xor_b32 v13, v%d, v%d" % (G + 7, V_TB))
    a("v_or_b32 v14, v10, v11")
    a("v_and_b32 v14, 0xff, v14")
    a("v_or3_b32 v14, v14, v12, v13")
    a("v_cmp_ne_u32 vcc, 0, v14")
    for t in range(2):
        a("v_lshlrev_b32 v%d, 16, v%d" % (16 + 4 * t, G + 4 * t))
        a("v_and_b32 v%d, 0xffff0000, v%d" % (17 + 4 * t, G + 4 * t))
        a("v_lshlrev_b32 v%d, 16, v%d" % (18 + 4 * t, G + 4 * t + 1))
        a("v_and_b32 v%d, 0xffff0000, v%d" % (19 + 4 * t, G + 4 * t + 1))
    a("s_cbranch_vccz %s" % ok)
poll("L_e2poll", e2_issue, 2, e2_check, True, sets=Cfg.pd)
stamp(5)
a("v_max_f32 v14, v10, v11")
a("v_max_f32_dpp v14, v14, v14 row_ror:8%s" % DPPM)
a("v_max_f32_dpp v14, v14, v14 row_ror:4%s" % DPPM)
bfly("v_max_f32", 14, 15, 16)
bfly("v_max_f32", 14, 15, 32)
a("v_sub_f32 v10, v10, v14")
a("v_sub_f32 v11, v11, v14")
a("v_exp_f32 v10, v10")
a("v_exp_f32 v11, v11")
a("s_movk_i32 s63, 0xfff")
for k in (0, 2):
    a("v_pk_mul_f32 v[%d:%d], v[10:11], v[%d:%d]%s" % (16 + k, 17 + k, 16 + k, 17 + k, BC))
a("v_add_f32 v12, v10, v11")
for k in (0, 2):
    a("v_pk_fma_f32 v[%d:%d], v[10:11], v[%d:%d], v[%d:%d] op_sel:[1,0,0] op_sel_hi:[1,1,1]" % (16 + k, 17 + k, 20 + k, 21 + k, 16 + k, 17 + k))
a("v_add_f32_dpp v12, v12, v12 row_ror:8%s" % DPPM)
a("v_add_f32_dpp v12, v12, v12 row_ror:4%s" % DPPM)
a("v_mfma_f32_16x16x4_f32 v[%d:%d], v12, v%d, 0" % (V_ACC + 4, V_ACC + 7, V_ONE))
reduce16([16, 17, 18, 19], 13)
a("v_mfma_f32_16x16x4_f32 v[%d:%d], v13, v%d, 0" % (V_ACC, V_ACC + 3, V_ONE))
a("v_rcp_f32 v12, v%d" % (V_ACC + 4))
for k in (0, 2):
    a("v_pk_mul_f32 v[%d:%d], v[12:13], v[%d:%d]%s" % (16 + k, 17 + k, V_ACC + k, V_ACC + k + 1, BC))
for r in range(4):
    a("v_cvt_pk_bf16_f32 v%d, v%d, v%d" % (16 + r, 16 + r, 16 + r))
A2 = V_ACC + 8
BB = V_BB
def omf(qq):
    for b in range(2):
        a("v_mfma_f32_16x16x32_bf16 v[%d:%d], v[%d:%d], v[%d:%d], %s" % (A2 + 4 * b, A2 + 4 * b + 3, V_W + 16 * b + 4 * qq, V_W + 16 * b + 4 * qq + 3, BB + 4 * qq, BB + 4 * qq + 3, "0" if qq == 0 else "v[%d:%d]" % (A2 + 4 * b, A2 + 4 * b + 3)))
for q in range(4):
    for rho in range(4):
        a("v_and_b32 v%d, v%d, v%d" % (BB + 4 * q + rho, 16 + q, V_M + rho))
    if q >= 1:
        omf(q - 1)
omf(3)
for r in range(4):
    a("v_cndmask_b32 v%d, v%d, v%d, s[6:7]" % (24 + r, A2 + r, A2 + 4 + r))
tag12(28, 24)
if Cfg.dry & 1:
    a("s_cmp_eq_u32 s0, 1")
    a("s_cbranch_scc1 L_odry")
a("s_mov_b64 exec, s[8:9]")
if not Cfg.noA:
    a("buffer_store_dwordx4 v[28:31], v4, s[36:39], s52 offen")
stamp(6)
bdefer()
skip_if_local(8, "L_end")
if not Cfg.noB:
    a("buffer_store_dwordx4 v[28:31], v4, s[36:39], s53 offen sc1")
setexec(-1)
if Cfg.w2l:
    a("s_lshl_b32 s48, s33, 2")
    a("s_add_u32 s48, s48, s35")
    a("s_mul_i32 s48, s48, %d" % (25 * 128))
    a("s_mul_i32 s63, s32, %d" % (224 * 896))
    a("s_add_u32 s48, s48, s63")
    a("v_lshlrev_b32 v24, 7, v%d" % V_LANE)
    srd(40, 20, 1792 * 896)
    setexec(0x1ffffff)
    a("buffer_load_dword v250, v24, s[40:43], s48 offen")
a("s_branch L_end")

a.label("L_R")
a.flush()
a("s_sub_u32 s50, s33, 23")
a("s_lshl_b32 s52, s50, 2")
a("s_add_u32 s52, s52, s35")
a("s_lshl_b32 s54, s32, 16")
a("s_lshl_b32 s63, s52, 6")
a("s_add_u32 s54, s54, s63")
a("s_mul_i32 s53, s52, %d" % Cfg.ss)
a("s_add_u32 s53, s53, %d" % E3X)
a("s_lshl_b32 s51, s32, 12")
a("s_add_u32 s51, s51, s53")
a("s_lshl_b32 s55, s32, 11")
a("s_lshl_b32 s63, s52, 6")
a("s_add_u32 s55, s55, s63")
a("s_add_u32 s55, s55, %d" % E3L)
a("v_lshlrev_b32 v4, 4, v%d" % V_GRP)
a("s_lshr_b32 s63, s52, 1")
a("s_lshl_b32 s63, s63, 6")
a("s_and_b32 s48, s52, 1")
a("s_lshl_b32 s48, s48, 3")
a("s_add_u32 s63, s63, s48")
a("v_lshl_add_u32 v%d, v%d, 4, s63" % (V_XA, V_GRP))
srd(44, 4, 896)
a("buffer_load_dwordx2 v[%d:%d], v%d, s[44:47], 0 offen" % (V_X + 2, V_X + 3, V_XA))
a("v_and_b32 v8, 7, v%d" % V_I16)
a("v_lshlrev_b32 v8, 12, v8")
a("v_lshl_add_u32 v%d, v%d, 4, v8" % (V_LW, V_GRP))
if Cfg.rpf:
    a("s_mul_i32 s48, s32, %d" % (224 * 896))
    a("s_mul_i32 s63, s52, %d" % (56 * 128))
    a("s_add_u32 s48, s48, s63")
    a("s_mul_i32 s49, s32, 448")
    a("s_mul_i32 s63, s52, %d" % (16 * 3584))
    a("s_add_u32 s49, s49, s63")
    a("v_lshrrev_b32 v25, 2, v%d" % V_LANE)
    a("v_mul_u32_u24 v25, 3584, v25")
    a("v_and_b32 v26, 3, v%d" % V_LANE)
    a("v_mul_u32_u24 v26, 148, v26")
    a("v_add_u32 v25, v25, v26")
    a("v_lshlrev_b32 v24, 7, v%d" % V_LANE)
    srd(40, 16, 448 * 3584)
    srd(8, 20, 1792 * 896)
a("s_barrier")
wait_cnt(6)
if Cfg.rpf:
    a("buffer_load_dword v250, v25, s[40:43], s49 offen")
    a("s_mov_b32 exec_hi, 0x00ffffff")
    a("buffer_load_dword v250, v24, s[8:11], s48 offen")
    setexec(-1)
sel_init()
if Cfg.rs:
    a("s_sleep %d" % Cfg.rs)
def e3a_issue(k):
    a("s_add_u32 s48, s54, s%d" % S_SEL)
    a("s_add_u32 s49, s48, %d" % (E3A + 16 * 2048))
    a("s_add_u32 s48, s48, %d" % E3A)
    a("buffer_load_dwordx4 v[%d:%d], v%d, s[36:39], s48 offen sc1" % (V_S2, V_S2 + 3, V_GA))
    a("buffer_load_dwordx4 v[%d:%d], v%d, s[36:39], s49 offen sc1" % (V_S2 + 4, V_S2 + 7, V_GA))
poll("L_e3apoll", e3a_issue, 2, lambda k, ok: check12(2, 12, ok, V_S2), True)
stamp(7)
padd4(12, 12, 16)
reduce16([12, 13, 14, 15], 9)
a("v_mfma_f32_16x16x4_f32 v[%d:%d], v9, v%d, 0" % (V_ACC, V_ACC + 3, V_ONE))
a("s_movk_i32 s63, 0xfff")
setexec(0x0001000100010001)
tag12(28, V_ACC)
a("buffer_store_dwordx4 v[28:31], v4, s[36:39], s51 offen sc1")
if Cfg.lh:
    a("buffer_store_dwordx4 v[28:31], v4, s[36:39], s55 offen")
setexec(-1)
stamp(8)
a("s_cmp_lg_u32 s50, s32")
a("s_cbranch_scc1 L_end")
a.label("L_hpoll")
a("s_sleep 2")
a("buffer_load_dwordx4 v[%d:%d], v%d, s[36:39], s53 offen sc1" % (V_G, V_G + 3, V_LW))
a("s_waitcnt vmcnt(0)")
check12(1, 12, "L_hok")
retry("L_hpoll", False)
a.label("L_hok")
stamp(9)
for pat in ("quad_perm:[1,0,3,2]", "quad_perm:[2,3,0,1]", "row_half_mirror"):
    for r in range(4):
        a("v_add_f32_dpp v%d, v%d, v%d %s%s" % (12 + r, 12 + r, 12 + r, pat, DPPM))
for r in range(4):
    a("v_mov_b32 v%d, v%d" % (V_ACC + r, 12 + r))
a("v_lshlrev_b32 v%d, 16, v%d" % (V_X, V_X + 2))
a("v_and_b32 v%d, 0xffff0000, v%d" % (V_X + 1, V_X + 2))
a("v_lshlrev_b32 v%d, 16, v%d" % (V_X + 2, V_X + 3))
a("v_and_b32 v%d, 0xffff0000, v%d" % (V_X + 3, V_X + 3))
def round_add_round(src, add):
    a("v_cvt_pk_bf16_f32 v10, v%d, v%d" % (src, src + 1))
    a("v_cvt_pk_bf16_f32 v11, v%d, v%d" % (src + 2, src + 3))
    a("v_lshlrev_b32 v12, 16, v10")
    a("v_and_b32 v13, 0xffff0000, v10")
    a("v_lshlrev_b32 v14, 16, v11")
    a("v_and_b32 v15, 0xffff0000, v11")
    padd4(12, 12, add)
    a("v_cvt_pk_bf16_f32 v10, v12, v13")
    a("v_cvt_pk_bf16_f32 v11, v14, v15")
round_add_round(V_ACC, V_X)
a("v_lshlrev_b32 v%d, 16, v10" % (V_X))
a("v_and_b32 v%d, 0xffff0000, v10" % (V_X + 1))
a("v_lshlrev_b32 v%d, 16, v11" % (V_X + 2))
a("v_and_b32 v%d, 0xffff0000, v11" % (V_X + 3))
a("s_lshl_b32 s48, s52, 6")
a("s_add_u32 s48, s48, %d" % E4)
for t in range(1, 4):
    a("s_add_u32 s%d, s48, %d" % (48 + t, t * 16 * 2048))
for r in range(4):
    a("v_mov_b32 v%d, v%d" % (V_G + 12 + r, V_T + r))
srd(44, 22, 896)
if Cfg.e4s:
    a("s_sleep %d" % Cfg.e4s)
XR = V_S1
def e4_issue(k):
    for t in range(4):
        if t == 3:
            a("s_mov_b32 exec_hi, 0")
        a("buffer_load_dwordx4 v[%d:%d], v%d, s[36:39], s%d offen sc1" % (V_G + 4 * t, V_G + 4 * t + 3, V_GA, 48 + t))
    setexec(-1)
poll("L_e4poll", e4_issue, 4, lambda k, ok: check12(4, XR, ok), False, D=Cfg.pd4)
stamp(10)
sum16(XR)
reduce16([XR, XR + 1, XR + 2, XR + 3], 9)
a("v_mfma_f32_16x16x4_f32 v[%d:%d], v9, v%d, 0" % (V_ACC, V_ACC + 3, V_ONE))
round_add_round(V_ACC, V_X)
setexec(0x0001000100010001)
a("buffer_store_dwordx2 v[10:11], v%d, s[44:47], 0 offen" % V_XA)
a("s_cmp_lg_u32 s52, 0")
a("s_cbranch_scc1 L_noep")
setexec(1)
a("v_mov_b32 v9, 0")
for k in range(4):
    a("v_mov_b32 v%d, s%d" % (12 + k, 28 + k))
a("buffer_store_dwordx4 v[12:15], v9, s[36:39], 0 offen offset:%d" % EPOCH)
a.label("L_noep")
setexec(-1)
stamp(14)
a("s_branch L_end")

a.label("L_F")
a.flush()
a("s_mul_i32 s50, s32, 7")
a("s_add_u32 s50, s50, s33")
a("s_sub_u32 s50, s50, 16")
a("s_lshl_b32 s51, s50, 2")
a("s_add_u32 s51, s51, s35")
a("v_lshrrev_b32 v8, 3, v%d" % V_I16)
a("v_sub_u32 v8, v%d, v8" % V_I16)
a("v_min_u32 v8, 13, v8")
a("v_lshlrev_b32 v8, 6, v8")
a("v_lshl_add_u32 v23, v%d, 4, v8" % V_GRP)
if Cfg.lin:
    setexec(0x8080808080808080)
    a("v_mov_b32 v23, 896")
    for k in range(4):
        a("v_mov_b32 v%d, 0" % (12 + k))
    a("ds_write_b128 v23, v[12:15] offset:%d" % L_H)
    setexec(-1)
a("v_bfe_u32 v8, v%d, 2, 3" % V_LANE)
a("v_min_u32 v8, 6, v8")
a("v_and_b32 v9, 3, v%d" % V_LANE)
a("v_mul_u32_u24 v10, %d, v8" % Cfg.ss)
a("v_lshl_add_u32 v10, v9, 4, v10")
a("v_lshrrev_b32 v11, 5, v%d" % V_LANE)
a("v_lshl_add_u32 v%d, v11, 12, v10" % V_XA)
a("s_mul_i32 s63, s35, 7")
a("v_add_u32 v8, s63, v8")
a("v_lshrrev_b32 v10, 1, v8")
a("v_lshlrev_b32 v10, 6, v10")
a("v_and_b32 v8, 1, v8")
a("v_lshl_add_u32 v10, v8, 3, v10")
a("v_lshl_add_u32 v24, v9, 4, v10")
a("v_and_b32 v10, 1, v%d" % V_GRP)
a("v_and_b32 v11, 1, v%d" % V_I16)
a("v_lshlrev_b32 v25, 2, v10")
a("v_and_b32 v26, 2, v%d" % V_GRP)
a("v_add_u32 v25, v25, v26")
a("v_mul_u32_u24 v26, 896, v25")
a("v_lshl_add_u32 v26, v%d, 4, v26" % V_I16)
a("v_add_u32 v25, v25, v11")
a("v_lshlrev_b32 v25, 1, v25")
a("v_bfe_u32 v27, v%d, 1, 1" % V_I16)
a("v_mul_u32_u24 v27, %d, v27" % (224 * 64))
a("v_lshl_add_u32 v27, v%d, 9, v27" % V_GRP)
a("v_lshrrev_b32 v12, 2, v%d" % V_I16)
a("v_lshl_add_u32 v27, v12, 6, v27")
a("v_lshl_add_u32 v27, v11, 3, v27")
a("s_lshl_b32 s63, s35, 4")
a("v_add_u32 v%d, s63, v27" % V_W1A)
a("v_lshrrev_b32 v27, 2, v%d" % V_LANE)
a("v_mul_u32_u24 v27, 3584, v27")
a("v_and_b32 v12, 3, v%d" % V_LANE)
a("v_lshl_add_u32 v27, v12, 4, v27")
a("s_lshl_b32 s63, s35, 11")
a("v_lshl_add_u32 v%d, v%d, 4, s63" % (V_LW, V_LANE))
srd(40, 16, 448 * 3584)
srd(44, 20, 1792 * 896)
srd(8, 4, 896)
srd(12, 18, 1792 * 2)
a("s_mul_i32 s52, s35, %d" % (112 * 3584))
a("s_lshl_b32 s63, s50, 6")
a("s_add_u32 s52, s52, s63")
a("s_mul_i32 s53, s35, 7168")
a("s_add_u32 s53, s53, %d" % L_W1)
a("s_mul_i32 s54, s51, %d" % (8 * 896))
a("s_lshl_b32 s55, s51, 4")
a("s_mul_i32 s24, s35, %d" % (7 * Cfg.ss))
a("s_add_u32 s24, s24, %d" % E3X)
a("s_add_u32 s25, s24, 8192")
a("s_add_u32 s26, s24, 16384")
a("s_add_u32 s27, s24, 24576")
a("s_mov_b32 s6, %d" % (16 * 3584))
a("s_movk_i32 s7, 1024")
if Cfg.zig:
    a("s_bitcmp1_b32 s50, 0")
    a("s_cbranch_scc0 L_nozig")
    a("s_add_u32 s52, s52, %d" % (6 * 16 * 3584))
    a("s_add_u32 s53, s53, 6144")
    a("s_mov_b32 s6, %d" % (-16 * 3584))
    a("s_movk_i32 s7, -1024")
    a.label("L_nozig")
def w1_loads():
    for t in range(7):
        a("s_mov_b32 m0, s53")
        a("buffer_load_dwordx4 v27, s[40:43], s52 offen%s lds" % NTW)
        if t < 6:
            a("s_add_u32 s52, s52, s6")
            a("s_add_u32 s53, s53, s7")
def w2_loads():
    for b in range(4):
        if b == 3:
            setexec(0x00FF00FF00FF00FF)
        for q in range(2):
            a("buffer_load_dwordx4 v[%d:%d], v26, s[44:47], s54 offen offset:%d%s" % (V_W + 8 * b + 4 * q, V_W + 8 * b + 4 * q + 3, 896 * q + 256 * b, NTL))
    setexec(-1)
def small_loads():
    a("buffer_load_dwordx2 v[%d:%d], v24, s[8:11], 0 offen" % (V_X + 2, V_X + 3))
    a("buffer_load_ushort v%d, v25, s[12:15], s55 offen" % V_B1)
a("s_barrier")
if Cfg.trg >= 0:
    wait_cnt(4, 8)
if Cfg.hack:
    _l = a.newlabel("L_hk")
    a("s_cmp_ge_u32 s32, 4")
    a("s_cbranch_scc1 %s" % _l)
    a("s_sleep %d" % Cfg.hack)
    a.label(_l)
if Cfg.w2e:
    w2_loads()
    small_loads()
wait_cnt(Cfg.fcnt)
if Cfg.fs:
    a("s_sleep %d" % Cfg.fs)
stamp(1)
if Cfg.w2e:
    w1_loads()
else:
    if not Cfg.w2first:
        w1_loads()
    if not Cfg.w2l:
        w2_loads()
    if Cfg.w2first:
        w1_loads()
    small_loads()
a("s_lshl_b32 s48, s50, 11")
a("s_lshl_b32 s63, s35, 10")
a("s_add_u32 s48, s48, s63")
a("s_add_u32 s48, s48, %d" % E4)
a("v_cmp_lt_u32 s[6:7], 7, v%d" % V_I16)
a("v_add_u32 v4, %d, v%d" % (512 - 128, V_PUB))
a("v_cndmask_b32 v4, v%d, v4, s[6:7]" % V_PUB)
a("s_lshl_b32 s63, s35, 10")
a("v_lshl_add_u32 v21, v%d, 4, s63" % V_LANE)
D1 = V_S2
V_CS = 251
def ffn1(AF, dst, fill=()):
    fill = list(fill)
    def f(n):
        for _ in range(n):
            if fill:
                a(fill.pop(0))
    for m in range(7):
        a("v_mfma_f32_16x16x32_bf16 v[%d:%d], v[%d:%d], v[%d:%d], 0" % (D1 + 4 * m, D1 + 4 * m + 3, AF, AF + 3, V_W1F + 4 * m, V_W1F + 4 * m + 3))
    return
def ffn1_tail(dst, t, zero=True):
    if zero:
        a("v_mov_b32 v%d, 0" % dst)
    setexec(0x0000FF00000000FF)
    a("v_add_f32 v%d, v%d, v%d" % (dst, D1 + 0, D1 + 4 + 1))
    a("v_add_f32 v%d, v%d, v%d" % (t, D1 + 8 + 2, D1 + 12 + 3))
    a("v_add_f32 v%d, v%d, v%d" % (dst, dst, t))
    setexec(0xFF00000000FF0000)
    a("v_add_f32 v%d, v%d, v%d" % (dst, D1 + 16, D1 + 20 + 1))
    a("v_add_f32 v%d, v%d, v%d" % (dst, dst, D1 + 24 + 2))
    setexec(-1)
    a("v_add_f32_dpp v%d, v%d, v%d row_ror:8%s" % (dst, dst, dst, DPPM))
    a("v_mfma_f32_16x16x4_f32 v[%d:%d], v%d, v%d, 0" % (V_ACC, V_ACC + 3, dst, V_ONE))
def ffn1_sel(dst, t):
    a("v_cndmask_b32 v%d, v%d, v%d, s[%d:%d]" % (dst, V_ACC, V_ACC + 1, S_ODD, S_ODD + 1))
    a("v_cndmask_b32 v%d, v%d, v%d, s[%d:%d]" % (t, V_ACC + 2, V_ACC + 3, S_ODD, S_ODD + 1))
    a("v_cndmask_b32 v%d, v%d, v%d, s[%d:%d]" % (dst, dst, t, S_HI, S_HI + 1))
AF = 176
def e3x_issue(k):
    for t in range(4):
        a("buffer_load_dwordx4 v[%d:%d], v%d, s[36:39], s%d offen sc1" % (V_G + 4 * t, V_G + 4 * t + 3, V_XA, 24 + t))
a("v_min_u32 v22, 27, v%d" % V_LANE)
a("v_lshlrev_b32 v22, 4, v22")
a("s_lshl_b32 s49, s32, 11")
a("s_mul_i32 s63, s35, 448")
a("s_add_u32 s49, s49, s63")
a("s_add_u32 s49, s49, %d" % E3L)
a("s_mov_b32 s1, %d" % Cfg.bthr)
if Cfg.lh2:
    a("buffer_load_dwordx4 v[%d:%d], v22, s[36:39], s49 offen sc1" % (V_G, V_G + 3))
    a("s_waitcnt vmcnt(0)")
    stamp(5)
    check12(1, XR, "L_lh1")
    a("s_branch L_lh2")
    a.label("L_lh1")
    e3x_issue(0)
    a("s_mov_b32 s1, -1")
    a.label("L_lh2")
    a("s_barrier")
elif not Cfg.e3e:
    a("s_waitcnt vmcnt(0)")
    stamp(5)
    a("s_barrier")
def f_shadow():
    if Cfg.e3e:
        a("s_waitcnt vmcnt(%d)" % (4 * Cfg.pd))
        stamp(5)
        a("s_barrier")
    for m in range(7):
        for u in range(2):
            a("ds_read_b64_tr_b16 v[%d:%d], v%d offset:%d" % (V_W1F + 4 * m + 2 * u, V_W1F + 4 * m + 2 * u + 1, V_W1A, L_W1 + 2048 * m + 256 * u))
    a("v_lshlrev_b32 v%d, 16, v%d" % (V_B1, V_B1))
    a("v_lshlrev_b32 v%d, 16, v%d" % (V_X, V_X + 2))
    a("v_and_b32 v%d, 0xffff0000, v%d" % (V_X + 1, V_X + 2))
    a("v_lshlrev_b32 v%d, 16, v%d" % (V_X + 2, V_X + 3))
    a("v_and_b32 v%d, 0xffff0000, v%d" % (V_X + 3, V_X + 3))
    if Cfg.lin:
        for k in range(4):
            a("v_mov_b32 v%d, 0x3f803f80" % (AF + k))
        a("s_waitcnt lgkmcnt(0)")
        ffn1(AF, V_CS)
        ffn1_tail(V_CS, 9)
        ffn1_sel(V_CS, 9)
if Cfg.lh:
    f_shadow()
    if Cfg.lh2:
        a("s_cmp_eq_u32 s1, -1")
        a("s_cbranch_scc1 L_e3xpoll")
    a.label("L_lh")
    a("buffer_load_dwordx4 v[%d:%d], v22, s[36:39], s49 offen sc1" % (V_G, V_G + 3))
    a("s_sub_u32 s1, s1, 1")
    a("s_cbranch_scc1 L_lhok")
    a("s_waitcnt vmcnt(0)")
    check12(1, XR, "L_lhok")
    a("s_branch L_lh")
    a.label("L_lhok")
    if Cfg.xs:
        a("s_sleep %d" % Cfg.xs)
    assert Cfg.pdx == 1 or not Cfg.lh2
    poll("L_e3xpoll", e3x_issue, 4, lambda k, ok: check12(4, XR, ok), False, D=Cfg.pdx)
else:
    poll("L_e3xpoll", e3x_issue, 4, lambda k, ok: check12(4, XR, ok), False, shadow=f_shadow)
stamp(9)
if Cfg.w2l:
    w2_loads()
sum16(XR)
xhalf_add4(XR)
round_add_round(XR, V_X)
a("ds_write_b64 v24, v[10:11] offset:%d" % L_H)
a("s_waitcnt lgkmcnt(0)")
a("s_barrier")
stamp(10)
PR = V_S1
if Cfg.lin:
    a("ds_read_b128 v[%d:%d], v23 offset:%d" % (AF, AF + 3, L_H))
    a("s_waitcnt lgkmcnt(0)")
    unp = []
    for k in range(4):
        unp.append("v_lshlrev_b32 v%d, 16, v%d" % (PR + 2 * k, AF + k))
        unp.append("v_and_b32 v%d, 0xffff0000, v%d" % (PR + 2 * k + 1, AF + k))
    def mf(m):
        a("v_mfma_f32_16x16x32_bf16 v[%d:%d], v[%d:%d], v[%d:%d], 0" % (D1 + 4 * m, D1 + 4 * m + 3, AF, AF + 3, V_W1F + 4 * m, V_W1F + 4 * m + 3))
    for m in range(4):
        mf(m)
        a(unp[2 * m]); a(unp[2 * m + 1])
    mf(4)
    def pre():
        mf(5)
        a("v_mov_b32 v22, 0")
        mf(6)
    fl = ["v_mov_b32 v22, 0"]
    s1, s2 = ln_stats([PR + k for k in range(8)], 0x7F7F7F7F7F7F7F7F, 5, pk=PR + 8, pre=pre, fill=None, mid=lambda: ffn1_tail(22, 20, False))
    ffn1_sel(22, 20)
    bf16r(s2, s2)
    a("v_rcp_f32 v%d, v%d" % (s2, s2))
    a("v_fma_f32 v8, -v%d, v%d, v22" % (s1, V_CS))
    a("s_mov_b32 s63, %s" % f32(-LOG2E))
    a("v_mul_f32 v8, v8, v%d" % s2)
else:
    a("ds_read_b128 v[%d:%d], v23 offset:%d" % (PR + 8, PR + 11, L_H))
    a("s_waitcnt lgkmcnt(0)")
    for k in range(4):
        a("v_lshlrev_b32 v%d, 16, v%d" % (PR + 2 * k, PR + 8 + k))
        a("v_and_b32 v%d, 0xffff0000, v%d" % (PR + 2 * k + 1, PR + 8 + k))
    layernorm([PR + k for k in range(8)], AF, 0x7F7F7F7F7F7F7F7F, 5)
    ffn1(AF, 8)
    ffn1_tail(8, 9)
    a("s_mov_b32 s63, %s" % f32(-LOG2E))
    ffn1_sel(8, 9)
bf16r(8, 8)
a("v_add_f32 v8, v8, v%d" % V_B1)
bf16r(8, 8)
if Cfg.fmish:
    a("v_mul_f32 v9, s63, abs(v8)")
    a("v_exp_f32 v9, v9")
    a("v_cmp_gt_f32 vcc, 0, v8")
    a("v_mul_f32 v10, v9, v9")
    a("v_cndmask_b32 v11, 1.0, v10, vcc")
    a("v_cndmask_b32 v12, v10, 1.0, vcc")
    a("v_fma_f32 v11, 2.0, v9, v11")
    a("v_fma_f32 v12, 2.0, v12, v11")
    a("v_rcp_f32 v12, v12")
    a("v_mul_f32 v14, v11, v12")
else:
    a("v_mul_f32 v9, s63, abs(v8)")
    a("v_exp_f32 v9, v9")
    a("v_max_f32 v17, 0, v8")
    bf16r(9, 9)
    a("v_add_f32 v10, 1.0, v9")
    a("v_add_f32 v11, -1.0, v10")
    a("v_log_f32 v12, v10")
    a("v_rcp_f32 v13, v11")
    a("v_cmp_eq_f32 vcc, 0, v11")
    a("v_mul_f32 v12, %s, v12" % f32(0.6931471805599453))
    a("v_mul_f32 v13, v13, v9")
    a("v_mul_f32 v12, v12, v13")
    a("v_cndmask_b32 v12, v12, v9, vcc")
    bf16r(12, 12)
    a("v_add_f32 v12, v12, v17")
    bf16r(12, 12)
    a("v_mul_f32 v13, %s, v12" % f32(-2.0 * LOG2E))
    a("v_exp_f32 v13, v13")
    a("v_mul_f32 v16, v12, v12")
    a("v_add_f32 v14, 1.0, v13")
    a("v_sub_f32 v15, 1.0, v13")
    a("v_rcp_f32 v14, v14")
    a("v_mul_f32 v16, %s, v16" % f32(-1.0 / 3.0))
    a("v_cmp_gt_f32 vcc, %s, v12" % f32(2.0 ** -6))
    a("v_fma_f32 v16, v16, v12, v12")
    a("v_mul_f32 v14, v14, v15")
    a("v_cndmask_b32 v14, v14, v16, vcc")
    bf16r(14, 14)
a("v_mul_f32 v14, v14, v8")
a("v_cvt_pk_bf16_f32 v14, v14, v14")
a("s_movk_i32 s63, 0xfff")
for q in range(2):
    for rho in range(4):
        a("v_and_b32_dpp v%d, v14, v%d quad_perm:[%d,%d,%d,%d]%s" % (BB + 4 * q + rho, V_M + rho, q, q, 2 + q, 2 + q, DPPM))
if Cfg.w2l:
    stamp(12)
    a("s_waitcnt vmcnt(0)")
for q in range(2):
    for b in range(4):
        a("v_mfma_f32_16x16x32_bf16 v[%d:%d], v[%d:%d], v[%d:%d], %s" % (V_ACC + 4 * b, V_ACC + 4 * b + 3, V_W + 8 * b + 4 * q, V_W + 8 * b + 4 * q + 3, BB + 4 * q, BB + 4 * q + 3, "0" if q == 0 else "v[%d:%d]" % (V_ACC + 4 * b, V_ACC + 4 * b + 3)))
setexec(0x00FF00FF00FF00FF)
a("ds_write_b128 v%d, v[%d:%d] offset:%d" % (V_LW, V_ACC, V_ACC + 3, L_F))
a("s_not_b64 exec, exec")
a("ds_write_b128 v%d, v[%d:%d] offset:%d" % (V_LW, V_ACC + 4, V_ACC + 7, L_F))
a("s_not_b64 exec, exec")
a("ds_write_b128 v%d, v[%d:%d] offset:%d" % (V_LW, V_ACC + 8, V_ACC + 11, L_F + 1024))
a("s_not_b64 exec, exec")
a("ds_write_b128 v%d, v[%d:%d] offset:%d" % (V_LW, V_ACC + 12, V_ACC + 15, L_F + 1024))
setexec(-1)
a("s_waitcnt lgkmcnt(0)")
stamp(13)
a("s_barrier")
a("s_cmp_ge_u32 s35, 2")
a("s_cbranch_scc1 L_end")
for w in range(4):
    a("ds_read_b128 v[%d:%d], v21 offset:%d" % (PR + 4 * w, PR + 4 * w + 3, L_F + 2048 * w))
a("s_cmp_eq_u32 s35, 1")
a("s_cselect_b32 exec_hi, 0x00ff00ff, -1")
a("s_waitcnt lgkmcnt(0)")
sum16(PR)
tag12(28, PR)
a("buffer_store_dwordx4 v[28:31], v4, s[36:39], s48 offen sc1")
setexec(-1)
stamp(14)
a.label("L_end")
if Cfg.stamps:
    setexec(-1)
    stamp(15)
    a("s_waitcnt lgkmcnt(0)")
    a("s_lshl_b32 s48, s2, 3")
    a("s_add_u32 s48, s48, s34")
    a("s_lshl_b32 s48, s48, 6")
    a("s_add_u32 s48, s48, %d" % STAMP)
    a("v_mov_b32 v9, 0")
    setexec(1)
    for i in range(0 if getattr(Cfg, "nost", False) else 16):
        a("v_mov_b32 v10, s%d" % (64 + 2 * i))
        a("buffer_store_dword v10, v9, s[36:39], s48 offen offset:%d" % (4 * i))
    if Cfg.dbgwg >= 0:
        a("s_cmp_lg_u32 s2, %d" % Cfg.dbgwg)
        a("s_cbranch_scc1 L_exit")
        a("s_cmp_lg_u32 s34, %d" % Cfg.dbgwave)
        a("s_cbranch_scc1 L_exit")
        if Cfg.spin:
            a.label("L_spin")
            a("s_memrealtime s[94:95]")
            a("s_waitcnt lgkmcnt(0)")
            a("s_sub_u32 s63, s94, s64")
            a("s_cmp_lt_u32 s63, %d" % Cfg.spin)
            a("s_cbranch_scc1 L_spin")
        srd(44, 24, 256)
        for i in range(16):
            a("s_sub_u32 s63, s%d, s64" % (64 + 2 * i))
            a("s_cmp_eq_u32 s%d, 0" % (64 + 2 * i))
            a("s_cselect_b32 s63, 0, s63")
            a("v_mov_b32 v10, s63")
            a("buffer_store_dword v10, v9, s[44:47], 0 offen offset:%d" % (4 * i))
a.label("L_exit")
a("s_endpgm")
a.raw('''.section .rodata,"a"
.p2align 6
.amdhsa_kernel %s_kernel
  .amdhsa_next_free_vgpr %d
  .amdhsa_next_free_sgpr 100
  .amdhsa_accum_offset %d
  .amdhsa_group_segment_fixed_size 0
  .amdhsa_kernarg_size 96
  .amdhsa_user_sgpr_count 2
  .amdhsa_user_sgpr_kernarg_segment_ptr 1
  .amdhsa_system_sgpr_workgroup_id_x 1
  .amdhsa_float_denorm_mode_32 3
.end_amdhsa_kernel''' % (NAME, NVGPR, NVGPR))
open(sys.argv[1], "w").write(a.text())
```

```python
import sys, struct
from asmlib import Asm
NAME = "sequential_preLN__sliding_block_cached__dense_activation_mish__decode"

class Cfg:
    stamps = False
    nt = True
    ntw = False
    timeout = 200000
    ocnt = 0
    vs = 0
    nearly = 7
    pfat = 1
    n1 = 10
    pf = False
    cpf = 2
    ntl = True
    depth = 0
    ss = 128
    forceB = False
    pretouch = 2
    fs = 0
    tlb = 0
    bthr = 64
    b0 = True
    npipe = 3
    ps0 = 0
    ps1 = 4
    kpat = 0
    kdma = True
    pd = 1
    pds = 2
    fpf = False
    prio = True
    xls = 0
    pace = 0
    e1w = 20
    fcnt = 6
    w2l = False
    pdx = 1
    pd4 = 1
    zig = True
    w2first = True
    w2e = True
    bd = 0
    xcc = True
    fakex = False
    fmish = True
    noA = False
    nost = False
    noB = False
    dry = 0
    lh2 = False
    lh = True
    e3e = False
    lin = True
    rpf = False
    rs = 0
    os = 0
    ka = 3
    kb = 0
    kc = 0
    p1 = 13
    p2 = 15
    bq = True
    opoll = 4
    lls = 0
    trgo = True
    trg = -1
    hack = 0
    vdma = False
    kpre = 0
    sp = True
    k0 = 9
    xs = 0
    e4s = 0
    rnd = True
    dbgwg = -1
    dbgwave = 0
    spin = 0
for arg in sys.argv[2:]:
    k, v = arg.split('=')
    setattr(Cfg, k, type(getattr(Cfg, k))(int(v)))

NT = " nt" if Cfg.nt else ""
NTW = " nt" if Cfg.ntw else ""
NTQ = NT
NTL = " nt" if Cfg.ntl else ""
EPOCH = 0x0
E3X = 0x1000
E3L = 0x9000
E1 = 0x10000
E2 = 0x20000
E3A = 0xA0000
BOFF = 0x120000
E4 = 0x240000
STAMP = 0x300000
WS_SIZE = 0x400000
L_Q = 0
L_ML = 1024
L_CNT = 3072
L_H = 3136
L_O = 4096
L_F = L_O
L_K = 12288
L_W1 = L_K
L_V = 45056
LDS_BYTES = 77824 if Cfg.vdma else 45056

LOG2E = 1.4426950408889634
def f32(x):
    return "0x%08x" % struct.unpack('<I', struct.pack('<f', x))[0]

a = Asm()
a.raw("""; Single persistent launch, 256 workgroups (one per CU) x 8 waves; written with a small generator script.
; copies are written and polled, so any placement is correct.""")
a.raw("; @launch grid=(256,1,1) block=(512,1,1) lds=%d" % LDS_BYTES)
a.raw('.amdgcn_target "amdgcn-amd-amdhsa--gfx950"\n.text\n.globl %s_kernel\n.p2align 8\n.type %s_kernel,@function\n%s_kernel:' % (NAME, NAME, NAME))

DPPM = " row_mask:0xf bank_mask:0xf"
def stamp(i):
    if Cfg.stamps:
        a("s_memrealtime s[%d:%d]" % (64 + 2 * i, 65 + 2 * i))

def srd(dst, ptr, nbytes):
    a("s_mov_b32 s%d, s%d" % (dst, ptr))
    a("s_and_b32 s%d, s%d, 0xffff" % (dst + 1, ptr + 1))
    a("s_mov_b32 s%d, %d" % (dst + 2, nbytes))
    a("s_mov_b32 s%d, 0x20000" % (dst + 3))

def setexec(mask):
    if mask == -1:
        a("s_mov_b64 exec, -1")
    else:
        a("s_mov_b32 exec_lo, 0x%08x" % (mask & 0xffffffff))
        a("s_mov_b32 exec_hi, 0x%08x" % (mask >> 32))

def setmask(s, mask):
    a("s_mov_b32 s%d, 0x%08x" % (s, mask & 0xffffffff))
    a("s_mov_b32 s%d, 0x%08x" % (s + 1, mask >> 32))

def padd4(d, x, y):
    assert d % 2 == 0 and x % 2 == 0 and y % 2 == 0
    for k in (0, 2):
        a("v_pk_add_f32 v[%d:%d], v[%d:%d], v[%d:%d]" % (d + k, d + k + 1, x + k, x + k + 1, y + k, y + k + 1))

def sum16(X):
    padd4(X, X, X + 4)
    padd4(X + 8, X + 8, X + 12)
    padd4(X, X, X + 8)

def xhalf_add4(X):
    for k in (0, 2):
        a("v_pk_mov_b32 v[%d:%d], v[%d:%d], v[%d:%d] op_sel:[0,1]" % (X + 4 + k, X + 5 + k, X + k, X + k + 1, X + k, X + k + 1))
    for r in range(4):
        a("v_permlane32_swap_b32 v%d, v%d" % (X + r, X + 4 + r))
    padd4(X, X, X + 4)

def bfly(op, v, t, which):
    a("v_mov_b32 v%d, v%d" % (t, v))
    a("v_permlane%d_swap_b32 v%d, v%d" % (which, v, t))
    a("%s v%d, v%d, v%d" % (op, v, v, t))

def bf16r(dst, src):
    a("v_cvt_pk_bf16_f32 v%d, v%d, v%d" % (dst, src, src))
    a("v_and_b32 v%d, 0xffff0000, v%d" % (dst, dst))

S_ODD, S_B1, S_HI = 56, 58, 60
S_M4, S_M8 = 58, 96
S_TO = 62
S_SEL = 3

S_CNT = 33
def sel_step(thr):
    a("s_sub_u32 s%d, s%d, 1" % (S_TO, S_TO))
    a("s_cbranch_scc1 L_end")
    if thr is not None and not Cfg.forceB:
        assert Cfg.pd == 1
        a("s_xor_b32 s63, s%d, %d" % (S_SEL, BOFF))
        a("s_cmp_lt_u32 s%d, s1" % S_TO)
        a("s_cselect_b32 s%d, s63, s%d" % (S_SEL, S_SEL))

def retry(loop, dual):
    sel_step(True if dual else None)
    a("s_branch %s" % loop)

def sel_init(thr=None):
    a("s_mov_b32 s%d, %d" % (S_SEL, BOFF if Cfg.forceB else 0))
    a("s_sub_u32 s1, s%d, %d" % (S_TO, Cfg.bthr if thr is None else thr))

def ln_stats(f, valid, T, fill=None, pk=None, pre=None, mid=None):
    e = [T + k for k in range(8)]
    s1, s2, t1, t2 = T + 8, T + 9, T + 10, T + 11
    fill = list(fill or [])
    def filler():
        if fill:
            a(fill.pop(0))
    if pk is None:
        a("v_readlane_b32 s63, v%d, 0" % f[0])
        a("v_mov_b32 v%d, 0" % s1)
        a("v_mov_b32 v%d, 0" % s2)
        setexec(valid)
        for k in range(8):
            a("v_subrev_f32 v%d, s63, v%d" % (e[k], f[k]))
        a("v_add_f32 v%d, v%d, v%d" % (s1, e[0], e[1]))
        a("v_mul_f32 v%d, v%d, v%d" % (s2, e[0], e[0]))
        a("v_add_f32 v%d, v%d, v%d" % (t1, e[2], e[3]))
        a("v_mul_f32 v%d, v%d, v%d" % (t2, e[1], e[1]))
        for k in range(4, 8):
            a("v_add_f32 v%d, v%d, v%d" % (s1 if k % 2 == 0 else t1, s1 if k % 2 == 0 else t1, e[k]))
        for k in range(2, 8):
            a("v_fmac_f32 v%d, v%d, v%d" % (s2 if k % 2 == 0 else t2, e[k], e[k]))
        a("v_add_f32 v%d, v%d, v%d" % (s1, s1, t1))
        a("v_add_f32 v%d, v%d, v%d" % (s2, s2, t2))
    else:
        E, SS, QQ, TT = pk, pk + 8, pk + 10, pk + 12
        pr = lambda x: "v[%d:%d]" % (x, x + 1)
        a("v_readlane_b32 s24, v%d, 0" % f[0])
        a("v_mov_b32 v%d, 0" % s1)
        a("v_mov_b32 v%d, 0" % s2)
        if pre:
            pre()
        setexec(valid)
        a("s_mov_b32 s63, s24")
        for k in range(4):
            a("v_pk_add_f32 %s, %s, s[24:25] op_sel_hi:[1,0] neg_lo:[0,1] neg_hi:[0,1]" % (pr(E + 2 * k), pr(f[2 * k])))
        a("v_pk_add_f32 %s, %s, %s" % (pr(SS), pr(E), pr(E + 2)))
        a("v_pk_mul_f32 %s, %s, %s" % (pr(QQ), pr(E), pr(E)))
        a("v_pk_add_f32 %s, %s, %s" % (pr(TT), pr(E + 4), pr(E + 6)))
        a("v_pk_fma_f32 %s, %s, %s, %s" % (pr(QQ), pr(E + 2), pr(E + 2), pr(QQ)))
        a("v_pk_add_f32 %s, %s, %s" % (pr(SS), pr(SS), pr(TT)))
        a("v_pk_fma_f32 %s, %s, %s, %s" % (pr(QQ), pr(E + 4), pr(E + 4), pr(QQ)))
        a("v_add_f32 v%d, v%d, v%d" % (s1, SS, SS + 1))
        a("v_pk_fma_f32 %s, %s, %s, %s" % (pr(QQ), pr(E + 6), pr(E + 6), pr(QQ)))
        a("v_add_f32 v%d, v%d, v%d" % (s2, QQ, QQ + 1))
    if mid:
        mid()
    else:
        setexec(-1)
    for i, r in enumerate((8, 4, 2, 1)):
        a("v_add_f32_dpp v%d, v%d, v%d row_ror:%d%s" % (s1, s1, s1, r, DPPM))
        a("v_add_f32_dpp v%d, v%d, v%d row_ror:%d%s" % (s2, s2, s2, r, DPPM))
        filler()
    for which in (16, 32):
        a("v_mov_b32 v%d, v%d" % (t1, s1))
        a("v_mov_b32 v%d, v%d" % (t2, s2))
        filler()
        a("v_permlane%d_swap_b32 v%d, v%d" % (which, s1, t1))
        a("v_permlane%d_swap_b32 v%d, v%d" % (which, s2, t2))
        a("v_add_f32 v%d, v%d, v%d" % (s1, s1, t1))
        a("v_add_f32 v%d, v%d, v%d" % (s2, s2, t2))
    a("v_mul_f32 v%d, %s, v%d" % (s1, f32(1.0 / 448), s1))
    a("v_mul_f32 v%d, %s, v%d" % (s2, f32(1.0 / 448), s2))
    a("v_fma_f32 v%d, -v%d, v%d, v%d" % (s2, s1, s1, s2))
    a("v_add_f32 v%d, s63, v%d" % (s1, s1))
    a("v_max_f32 v%d, 0, v%d" % (s2, s2))
    a("v_cvt_pk_bf16_f32 v%d, v%d, v%d" % (t1, s1, s2))
    a("v_and_b32 v%d, 0xffff0000, v%d" % (s2, t1))
    a("v_lshlrev_b32 v%d, 16, v%d" % (s1, t1))
    a("v_add_f32 v%d, %s, v%d" % (s2, f32(1e-5), s2))
    bf16r(s2, s2)
    a("v_sqrt_f32 v%d, v%d" % (s2, s2))
    while fill:
        filler()
    return s1, s2

def ln_apply(f, e, pk, s1, s2):
    n = len(f)
    for k in range(n):
        a("v_sub_f32 v%d, v%d, v%d" % (e[k], f[k], s1))
    bf16r(s2, s2)
    a("v_rcp_f32 v%d, v%d" % (s2, s2))
    for k in range(n // 2):
        a("v_cvt_pk_bf16_f32 v%d, v%d, v%d" % (pk[k], e[2 * k], e[2 * k + 1]))
    for k in range(n // 2):
        a("v_lshlrev_b32 v%d, 16, v%d" % (e[2 * k], pk[k]))
        a("v_and_b32 v%d, 0xffff0000, v%d" % (e[2 * k + 1], pk[k]))
    for k in range(n):
        a("v_mul_f32 v%d, v%d, v%d" % (e[k], e[k], s2))

def layernorm(f, out, valid, T):
    e = [T + k for k in range(8)]
    pk = [T + 12 + k for k in range(4)]
    s1, s2 = ln_stats(f, valid, T, ["v_mov_b32 v%d, 0" % (out + i) for i in range(4)])
    ln_apply(f, e, pk, s1, s2)
    setexec(valid)
    for k in range(4):
        a("v_cvt_pk_bf16_f32 v%d, v%d, v%d" % (out + k, e[2 * k], e[2 * k + 1]))
    setexec(-1)

def quad_transpose_reduce(v, dst, T):
    k0, g0, k1, g1 = T, T + 1, T + 2, T + 3
    a("v_cndmask_b32 v%d, v%d, v%d, s[%d:%d]" % (g0, v[1], v[0], S_ODD, S_ODD + 1))
    a("v_cndmask_b32 v%d, v%d, v%d, s[%d:%d]" % (g1, v[3], v[2], S_ODD, S_ODD + 1))
    a("v_cndmask_b32 v%d, v%d, v%d, s[%d:%d]" % (k0, v[0], v[1], S_ODD, S_ODD + 1))
    a("v_cndmask_b32 v%d, v%d, v%d, s[%d:%d]" % (k1, v[2], v[3], S_ODD, S_ODD + 1))
    a("v_add_f32_dpp v%d, v%d, v%d quad_perm:[1,0,3,2]%s" % (k0, g0, k0, DPPM))
    a("v_add_f32_dpp v%d, v%d, v%d quad_perm:[1,0,3,2]%s" % (k1, g1, k1, DPPM))
    a("v_cndmask_b32 v%d, v%d, v%d, s[%d:%d]" % (g0, k1, k0, S_B1, S_B1 + 1))
    a("v_cndmask_b32 v%d, v%d, v%d, s[%d:%d]" % (dst, k0, k1, S_B1, S_B1 + 1))
    a("v_add_f32_dpp v%d, v%d, v%d quad_perm:[2,3,0,1]%s" % (dst, g0, dst, DPPM))

S_B2, S_B3 = S_B1, 4
def reduce16(v, dst):
    for r in range(4):
        a("v_add_f32_dpp v%d, v%d, v%d row_ror:8%s" % (v[r], v[r], v[r], DPPM))
    for r in range(4):
        a("v_add_f32_dpp v%d, v%d, v%d row_ror:4%s" % (v[r], v[r], v[r], DPPM))
    a("v_cndmask_b32 v%d, v%d, v%d, s[%d:%d]" % (v[0], v[0], v[1], S_M4, S_M4 + 1))
    a("v_cndmask_b32 v%d, v%d, v%d, s[%d:%d]" % (v[2], v[2], v[3], S_M4, S_M4 + 1))
    a("v_cndmask_b32 v%d, v%d, v%d, s[%d:%d]" % (dst, v[0], v[2], S_M8, S_M8 + 1))

def check12(n, X, oklab, G=None, T0=None, mask=0xfff, acc=(5, 6, 7)):
    if G is None:
        G = V_G
    for t in range(n):
        for r in range(4):
            a("v_xor_b32 v%d, v%d, v%d" % (X + 4 * t + r, G + 4 * t + r, T0 if (r == 0 and T0 is not None) else V_T + r))
    regs = [X + i for i in range(4 * n)]
    acc = list(acc)
    cur = regs[:]
    outs = []
    i = 0
    while len(cur) >= 3 and i < 3:
        a("v_or3_b32 v%d, v%d, v%d, v%d" % (acc[i], cur[0], cur[1], cur[2])); cur = cur[3:]; outs.append(acc[i]); i += 1
    i = 0
    while len(cur) >= 2:
        o = outs[i % len(outs)]
        a("v_or3_b32 v%d, v%d, v%d, v%d" % (o, o, cur[0], cur[1])); cur = cur[2:]; i += 1
    rest = outs + cur
    while len(rest) > 1:
        if len(rest) >= 3:
            a("v_or3_b32 v%d, v%d, v%d, v%d" % (acc[0], rest[0], rest[1], rest[2])); rest = [acc[0]] + rest[3:]
        else:
            a("v_or_b32 v%d, v%d, v%d" % (acc[0], rest[0], rest[1])); rest = [acc[0]]
    a("v_and_b32 v%d, 0x%x, v%d" % (acc[0], mask, rest[0]))
    a("v_cmp_ne_u32 vcc, 0, v%d" % acc[0])
    a("s_cbranch_vccz %s" % oklab)

V_I16, V_GRP, V_LANE = 1, 2, 3
V_M, V_T = 196, 200
V_TA, V_TB, V_T8, V_ONE = 204, 205, 206, 207
V_B1, V_X = 212, 208
V_GA = 213
V_PUB = 214
V_XA = 215
V_ACC = 216
V_G = 232
V_W1A, V_LW = 248, 249
NVGPR = 252
V_K, V_V, V_QF = 32, 64, 96
V_W = 32
V_W1F = 64
V_BB = 96
V_S1 = 112
V_S2 = 144

def tag12(dst, src):
    for r in range(4):
        if Cfg.rnd:
            a("v_add_u32 v%d, 0x800, v%d" % (dst + r, src + r))
            src_r = dst + r
        else:
            src_r = src + r
    for r in range(4):
        a("v_bfi_b32 v%d, s63, v%d, v%d" % (dst + r, V_T + r, (dst if Cfg.rnd else src) + r))

def get_xcc():
    if Cfg.fakex:
        a("s_and_b32 s99, s33, 15")
    else:
        a("s_getreg_b32 s99, hwreg(HW_REG_XCC_ID)")
        a("s_and_b32 s99, s99, 15")

def make_masks():
    a("v_and_b32 v10, 1, v%d" % V_I16)
    a("v_lshlrev_b32 v10, 4, v10")
    a("v_mov_b32 v11, 0xffff")
    a("v_lshlrev_b32 v11, v10, v11")
    a("v_bfe_u32 v10, v%d, 1, 2" % V_I16)
    for rho in range(4):
        a("v_cmp_eq_u32 vcc, %d, v10" % rho)
        a("v_cndmask_b32 v%d, 0, v11, vcc" % (V_M + rho))

def make_tags(full=True):
    a("s_waitcnt lgkmcnt(0)")
    for k in range(4):
        a("s_add_u32 s%d, s%d, 1" % (28 + k, 28 + k))
    if full:
        for k in range(4):
            if k in (1, 3):
                a("s_lshr_b32 s63, s%d, %d" % (28 + k, 12 if k == 1 else 20))
                a("s_xor_b32 s63, s63, s%d" % (28 + k))
                a("s_and_b32 s63, s63, 0xfff")
            else:
                a("s_and_b32 s63, s%d, 0xfff" % (28 + k))
            a("v_mov_b32 v%d, s63" % (V_T + k))
    a("v_mov_b32 v%d, s31" % V_TB)
    a("s_and_b32 s63, s30, 0xff")
    a("v_mov_b32 v%d, s63" % V_T8)

if Cfg.stamps:
    for i in range(16):
        a("s_mov_b64 s[%d:%d], 0" % (64 + 2 * i, 65 + 2 * i))
stamp(0)
a("s_load_dwordx16 s[4:19], s[0:1], 0")
a("s_load_dwordx8 s[20:27], s[0:1], 64")
a("s_cmp_ge_u32 s2, 256")
a("s_cbranch_scc1 L_exit")
a("v_lshrrev_b32 v4, 6, v0")
a("v_and_b32 v%d, 63, v0" % V_LANE)
a("v_readfirstlane_b32 s34, v4")
a("v_and_b32 v%d, 15, v0" % V_I16)
a("v_bfe_u32 v%d, v0, 4, 2" % V_GRP)
a("s_and_b32 s32, s2, 7")
a("s_lshr_b32 s33, s2, 3")
a("s_and_b32 s35, s34, 3")
a("s_cmp_ge_u32 s34, 4")
a("s_cbranch_scc1 L_tail")

a("s_lshl_b32 s48, s32, 22")
a("s_lshl_b32 s49, s33, 15")
a("s_add_u32 s48, s48, s49")
a("s_lshl_b32 s49, s34, 13")
a("s_add_u32 s48, s48, s49")
a("s_add_u32 s48, s48, %d" % (6144 * 512))
if Cfg.kdma:
    a("v_lshrrev_b32 v4, 2, v%d" % V_LANE)
    a("v_lshlrev_b32 v4, 9, v4")
    a("v_and_b32 v5, 3, v%d" % V_LANE)
    a("v_lshl_add_u32 v4, v5, 4, v4")
    a("s_add_u32 s49, s49, %d" % L_K)
else:
    a("v_lshlrev_b32 v4, 9, v%d" % V_I16)
    a("v_lshl_add_u32 v4, v%d, 4, v4" % V_GRP)
a("v_lshlrev_b32 v5, 11, v%d" % V_GRP)
a("v_lshl_add_u32 v5, v%d, 4, v5" % V_I16)
a("s_mov_b32 s42, 33554432")
a("s_mov_b32 s43, 0x20000")
a("s_mov_b32 s46, 33554432")
a("s_mov_b32 s47, 0x20000")
a("s_waitcnt lgkmcnt(0)")
a("s_mov_b32 s40, s6")
a("s_and_b32 s41, s7, 0xffff")
a("s_mov_b32 s44, s8")
a("s_and_b32 s45, s9, 0xffff")
stamp(11)
nissued = [0]
def paced(text):
    if Cfg.depth and nissued[0] >= Cfg.depth and nissued[0] < Cfg.n1:
        a("s_waitcnt vmcnt(%d)" % (Cfg.depth - 1))
    a(text)
    nissued[0] += 1
loads = []
for s in range(8):
    if Cfg.kdma:
        loads.append(["s_add_u32 m0, s49, %d" % (960 * s), "buffer_load_dwordx4 v4, s[40:43], s48 offen offset:%d%s lds" % (64 * s, NT)])
    else:
        loads.append("buffer_load_dwordx4 v[%d:%d], v4, s[40:43], s48 offen offset:%d%s" % (V_K + 4 * s, V_K + 4 * s + 3, 64 * s, NT))
def emit(t):
    for x in ([t] if isinstance(t, str) else t):
        a(x)
for r in range(4):
    for h in range(2):
        n = 2 * r + h
        if Cfg.vdma:
            loads.append(["s_add_u32 m0, s49, %d" % (L_V - L_K + 1024 * n - 256 * n), "buffer_load_dwordx4 v5, s[44:47], s48 offen offset:%d%s lds" % (256 * n, NT)])
        else:
            loads.append("buffer_load_dwordx4 v[%d:%d], v5, s[44:47], s48 offen offset:%d%s" % (V_V + 4 * n, V_V + 4 * n + 3, 512 * r + 256 * h, NT))
nfirst = 8 + Cfg.nearly
for i, t in enumerate(loads[:Cfg.k0]):
    if i == Cfg.kpre and Cfg.b0:
        a("s_barrier")
    emit(t)
stamp(12)
a("s_load_dwordx4 s[28:31], s[26:27], %d" % EPOCH)
srd(36, 26, WS_SIZE)
make_masks()
a("v_lshrrev_b32 v7, 3, v%d" % V_I16)
a("v_lshlrev_b32 v7, 9, v7")
a("v_lshl_add_u32 v7, v%d, 4, v7" % V_GRP)
a("s_lshl_b32 s63, s34, 11")
a("v_lshl_add_u32 v%d, v%d, 4, s63" % (V_LW, V_LANE))
a("s_lshl_b32 s63, s34, 9")
a("v_lshl_add_u32 v23, v%d, 3, s63" % V_LANE)
a("s_lshl_b32 s63, s34, 10")
a("v_lshl_add_u32 v21, v%d, 4, s63" % V_LANE)
a("v_lshlrev_b32 v22, 3, v%d" % V_LANE)
a("s_lshl_b32 s55, s32, 5")
a("s_add_u32 s55, s55, s33")
a("s_lshl_b32 s55, s55, 11")
a("s_add_u32 s50, s55, %d" % E2)
a("s_add_u32 s51, s55, %d" % (E2 + BOFF))
make_tags(True)
a("v_mov_b32 v31, v%d" % V_TB)
a("v_mov_b32 v6, 0")
a("v_mov_b32 v29, 1")
a("ds_write_b32 v6, v6 offset:%d" % L_CNT)
a("ds_write_b32 v6, v6 offset:%d" % (L_CNT + 4))
if Cfg.trg >= 0:
    a("ds_write_b32 v6, v6 offset:%d" % (L_CNT + 8))
a("s_mov_b32 s%d, %d" % (S_TO, Cfg.timeout))
get_xcc()
NPF = [0]
def wo_prefetch():
    pass
a("s_lshl_b32 s52, s32, 13")
a("s_add_u32 s52, s52, %d" % E1)
a("v_and_b32 v8, 31, v%d" % V_LANE)
a("s_lshl_b32 s63, s34, 5")
a("v_add_u32 v8, s63, v8")
a("v_lshrrev_b32 v9, 5, v%d" % V_LANE)
a("v_lshlrev_b32 v9, 12, v9")
a("v_lshl_add_u32 v24, v8, 4, v9")
a("v_and_b32 v9, 7, v8")
a("v_sub_u32 v8, v8, v9")
a("v_lshl_add_u32 v8, v8, 2, v9")
a("v_lshlrev_b32 v26, 1, v8")
a("v_lshlrev_b32 v25, 6, v%d" % V_I16)
a("v_lshl_add_u32 v25, v%d, 4, v25" % V_GRP)
a("v_add_u32 v25, s49, v25")
if Cfg.vdma:
    a("v_lshl_add_u32 v28, v%d, 4, s49" % V_LANE)
sel_init(32)
GS = [128, 136]
XC = 12
V_E0 = 27
E1M = 0x3ff
def e1_issue(k):
    a("s_add_u32 s53, s52, s%d" % S_SEL)
    a("s_cmp_eq_u32 s%d, 0" % S_SEL)
    a("s_cselect_b32 s98, s99, 0")
    a("s_cselect_b32 s0, 0, 1")
    a("v_xor_b32 v%d, s98, v%d" % (V_E0, V_T))
    for u in range(2):
        a("buffer_load_dwordx4 v[%d:%d], v24, s[36:39], s53 offen offset:%d sc1" % (GS[k] + 4 * u, GS[k] + 4 * u + 3, 2048 * u))
def e1_check(k):
    check12(2, XC, "L_e1ok", GS[k], V_E0, E1M, acc=(144, 145, 146))
a("s_waitcnt lgkmcnt(0)")
if Cfg.sp:
    a("s_setprio 3")
if Cfg.bq:
    a("s_barrier")
order = [("L", i) for i in range(Cfg.k0)]
rounds = [p for p in (Cfg.p1, Cfg.p2) if p]
for i in range(Cfg.k0, 17):
    for k, p in enumerate(rounds):
        if p == i:
            e1_issue(k)
            if Cfg.sp:
                a("s_setprio %d" % (len(rounds) - 1 - k))
            order += [("P", k), ("P", k)]
    if i < 16:
        emit(loads[i])
        order.append(("L", i))
stamp(13)
def younger(item):
    last = max(i for i, x in enumerate(order) if x == item)
    return len(order) - 1 - last
a("s_waitcnt vmcnt(%d)" % younger(("L", 7)))
for s in range(8):
    a("ds_read_b128 v[%d:%d], v25 offset:%d" % (V_K + 4 * s, V_K + 4 * s + 3, 1024 * s))
for k in range(len(rounds)):
    a("s_waitcnt vmcnt(%d)" % younger(("P", k)))
    e1_check(k)
a.label("L_e1poll")
sel_step(True)
e1_issue(0)
a("s_waitcnt vmcnt(0)")
e1_check(0)
a("s_branch L_e1poll")
a.label("L_e1ok")
stamp(7)
padd4(XC, XC, XC + 4)
xhalf_add4(XC)
a("v_cvt_pk_bf16_f32 v8, v%d, v%d" % (XC, XC + 1))
a("v_cvt_pk_bf16_f32 v9, v%d, v%d" % (XC + 2, XC + 3))
a("s_mov_b32 exec_hi, 0")
a("ds_write_b16 v26, v8 offset:%d" % (L_Q))
a("ds_write_b16_d16_hi v26, v8 offset:%d" % (L_Q + 16))
a("ds_write_b16 v26, v9 offset:%d" % (L_Q + 32))
a("ds_write_b16_d16_hi v26, v9 offset:%d" % (L_Q + 48))
setexec(-1)
a("s_cmp_eq_u32 s0, 0")
a("s_cbranch_scc1 L_fastq")
a("ds_write_b32 v6, v29 offset:%d" % (L_CNT + 4))
a.label("L_fastq")
stamp(1)
a("s_waitcnt lgkmcnt(0)")
if Cfg.prio:
    a("s_setprio 2")
a("s_barrier")
stamp(2)
for s in range(8):
    a("ds_read_b128 v[%d:%d], v7 offset:%d" % (V_QF + 4 * s, V_QF + 4 * s + 3, L_Q + 64 * s))
a("s_mov_b32 s63, %s" % f32(0.0625 * LOG2E))
S = V_ACC
for s in range(8):
    a("s_waitcnt lgkmcnt(%d)" % (0 if Cfg.stamps else 7 - s))
    a("v_mfma_f32_16x16x32_bf16 v[%d:%d], v[%d:%d], v[%d:%d], %s" % (S, S + 3, V_K + 4 * s, V_K + 4 * s + 3, V_QF + 4 * s, V_QF + 4 * s + 3, "0" if s == 0 else "v[%d:%d]" % (S, S + 3)))
def vread(lo, hi):
    a("s_waitcnt vmcnt(%d)" % younger(("L", 8 + hi - 1)))
    for n in range(lo, hi):
        a("ds_read_b128 v[%d:%d], v28 offset:%d" % (V_V + 4 * n, V_V + 4 * n + 3, L_V - L_K + 1024 * n))
if Cfg.vdma:
    vread(0, Cfg.p1 - 8)
a("v_cvt_pk_bf16_f32 v8, v%d, v%d" % (S, S + 1))
a("v_cvt_pk_bf16_f32 v9, v%d, v%d" % (S + 2, S + 3))
a("v_lshlrev_b32 v10, 16, v8")
a("v_and_b32 v11, 0xffff0000, v8")
a("v_lshlrev_b32 v12, 16, v9")
a("v_and_b32 v13, 0xffff0000, v9")
a("v_max3_f32 v14, v10, v11, v12")
a("v_max_f32 v14, v14, v13")
bfly("v_max_f32", 14, 15, 16)
bfly("v_max_f32", 14, 15, 32)
a("v_mul_f32 v14, s63, v14")
for r in range(4):
    a("v_fma_f32 v%d, v%d, s63, -v14" % (10 + r, 10 + r))
for r in range(4):
    a("v_exp_f32 v%d, v%d" % (10 + r, 10 + r))
for r in range(4):
    a("v_cvt_pk_bf16_f32 v%d, v%d, v%d" % (16 + r, 10 + r, 10 + r))
O = V_ACC + 4
BB = V_QF
def bbuild(r):
    for rho in range(4):
        a("v_and_b32 v%d, v%d, v%d" % (BB + 4 * r + rho, 16 + r, V_M + rho))
def pv(r):
    if not Cfg.vdma:
        a("s_waitcnt vmcnt(%d)" % younger(("L", 8 + 2 * r + 1)))
    else:
        a("s_waitcnt lgkmcnt(%d)" % (0 if Cfg.stamps else 6 - 2 * r))
    for h in range(2):
        n = 2 * r + h
        a("v_mfma_f32_16x16x32_bf16 v[%d:%d], v[%d:%d], v[%d:%d], %s" % (O + 4 * h, O + 4 * h + 3, V_V + 4 * n, V_V + 4 * n + 3, BB + 4 * r, BB + 4 * r + 3, "0" if r == 0 else "v[%d:%d]" % (O + 4 * h, O + 4 * h + 3)))
    if r == Cfg.trg:
        setexec(1)
        a("ds_add_u32 v6, v29 offset:%d" % (L_CNT + 8))
        setexec(-1)
if Cfg.vdma:
    vread(Cfg.p1 - 8, 8)
bbuild(0)
bbuild(1)
stamp(5)
pv(0)
bbuild(2)
a("v_add_f32 v15, v10, v11")
a("v_add_f32 v20, v12, v13")
pv(1)
bbuild(3)
a("v_add_f32 v15, v15, v20")
pv(2)
bfly("v_add_f32", 15, 20, 16)
pv(3)
stamp(6)
bfly("v_add_f32", 15, 20, 32)
a("ds_write_b64 v23, v[14:15] offset:%d" % L_ML)
a("ds_write_b128 v%d, v[%d:%d] offset:%d" % (V_LW, O, O + 3, L_O))
a("ds_write_b128 v%d, v[%d:%d] offset:%d" % (V_LW, O + 4, O + 7, L_O + 1024))
setexec(1)
a("ds_add_u32 v6, v29 offset:%d" % L_CNT)
setexec(-1)
a("s_cmp_ge_u32 s34, 2")
a("s_cbranch_scc1 L_att_exit")
a.label("L_cnt")
a("ds_read_b32 v8, v6 offset:%d" % L_CNT)
a("s_sub_u32 s%d, s%d, 1" % (S_TO, S_TO))
a("s_cbranch_scc1 L_end")
a("s_waitcnt lgkmcnt(0)")
a("v_cmp_gt_u32 vcc, 4, v8")
a("s_cbranch_vccnz L_cnt")
stamp(3)
for w in range(4):
    a("ds_read_b64 v[%d:%d], v22 offset:%d" % (10 + 2 * w, 11 + 2 * w, L_ML + 512 * w))
for w in range(4):
    a("ds_read_b128 v[%d:%d], v21 offset:%d" % (V_G + 4 * w, V_G + 4 * w + 3, L_O + 2048 * w))
a("s_movk_i32 s63, 0xff")
a("s_waitcnt lgkmcnt(4)" if not Cfg.stamps else "s_waitcnt lgkmcnt(0)")
a("v_max3_f32 v18, v10, v12, v14")
a("v_max_f32 v18, v18, v16")
for w in range(4):
    a("v_sub_f32 v%d, v%d, v18" % (10 + 2 * w, 10 + 2 * w))
for w in range(4):
    a("v_exp_f32 v%d, v%d" % (10 + 2 * w, 10 + 2 * w))
a("v_mul_f32 v19, v10, v11")
for w in range(1, 4):
    a("v_fmac_f32 v19, v%d, v%d" % (10 + 2 * w, 11 + 2 * w))
a("v_rcp_f32 v20, v19")
a("v_log_f32 v9, v19")
a("s_waitcnt lgkmcnt(0)")
BC = " op_sel_hi:[0,1]"
for k in (0, 2):
    a("v_pk_mul_f32 v[%d:%d], v[10:11], v[%d:%d]%s" % (24 + k, 25 + k, V_G + k, V_G + k + 1, BC))
for w in range(1, 4):
    for k in (0, 2):
        a("v_pk_fma_f32 v[%d:%d], v[%d:%d], v[%d:%d], v[%d:%d] op_sel_hi:[0,1,1]" % (24 + k, 25 + k, 10 + 2 * w, 11 + 2 * w, V_G + 4 * w + k, V_G + 4 * w + k + 1, 24 + k, 25 + k))
a("v_add_f32 v9, v9, v18")
for k in (0, 2):
    a("v_pk_mul_f32 v[%d:%d], v[20:21], v[%d:%d]%s" % (24 + k, 25 + k, 24 + k, 25 + k, BC))
a("v_bfi_b32 v30, s63, v%d, v9" % V_T8)
a("v_cvt_pk_bf16_f32 v28, v24, v25")
a("v_cvt_pk_bf16_f32 v29, v26, v27")
if not Cfg.noA:
    a("buffer_store_dwordx4 v[28:31], v21, s[36:39], s50 offen")
def bdefer():
    if Cfg.bd == 1:
        a("s_waitcnt vmcnt(0)")
    elif Cfg.bd > 1:
        a("s_sleep %d" % Cfg.bd)
a("v_mov_b32 v8, 1")
setexec(1)
a("ds_add_u32 v6, v8 offset:%d" % L_CNT)
setexec(-1)
stamp(4)
def skip_if_local(tmp, lab):
    if Cfg.xcc:
        a("v_mov_b32 v%d, 0" % tmp)
        a("ds_read_b32 v%d, v%d offset:%d" % (tmp, tmp, L_CNT + 4))
        a("s_waitcnt lgkmcnt(0)")
        a("v_cmp_eq_u32 vcc, 0, v%d" % tmp)
        a("s_cbranch_vccnz %s" % lab)
bdefer()
skip_if_local(8, "L_end")
if not Cfg.noB:
    a("buffer_store_dwordx4 v[28:31], v21, s[36:39], s51 offen sc1")
a("s_branch L_end")

a.label("L_att_exit")
if Cfg.fpf:
    a("s_cmp_lt_u32 s33, 16")
    a("s_cbranch_scc1 L_end")
    a("s_sub_u32 s52, s33, 16")
    a("s_lshl_b32 s52, s52, 1")
    a("s_add_u32 s52, s52, s34")
    a("s_sub_u32 s52, s52, 2")
    a("s_mul_i32 s54, s32, %d" % (224 * 896))
    a("s_mul_i32 s63, s52, %d" % (49 * 128))
    a("s_add_u32 s54, s54, s63")
    a("s_mul_i32 s49, s32, 448")
    a("s_mul_i32 s63, s52, %d" % (14 * 3584))
    a("s_add_u32 s49, s49, s63")
    a("v_lshrrev_b32 v25, 2, v%d" % V_LANE)
    a("v_mul_u32_u24 v25, 3584, v25")
    a("v_and_b32 v26, 3, v%d" % V_LANE)
    a("v_mul_u32_u24 v26, 148, v26")
    a("v_add_u32 v25, v25, v26")
    a("s_mov_b32 s18, %d" % (448 * 3584))
    a("s_mov_b32 s19, 0x20000")
    a("s_and_b32 s17, s17, 0xffff")
    a("s_mov_b32 s22, %d" % (1792 * 896))
    a("s_mov_b32 s23, 0x20000")
    a("s_and_b32 s21, s21, 0xffff")
    a("s_mov_b32 exec_hi, 0x00ffffff")
    a("buffer_load_dword v250, v25, s[16:19], s49 offen")
    a("s_mov_b32 exec_hi, 0x0001ffff")
    a("buffer_load_dword v250, v24, s[20:23], s54 offen")
a("s_branch L_end")

a.label("L_tail")
a.flush()
a("s_cmp_lg_u32 s34, 4")
a("s_cbranch_scc1 L_tail_common")
a("v_lshrrev_b32 v4, 3, v%d" % V_I16)
a("v_mul_u32_u24 v4, 56, v4")
a("v_mul_u32_u24 v5, 14, v%d" % V_GRP)
a("v_add_u32 v4, v4, v5")
a("v_lshlrev_b32 v5, 13, v4")
a("v_and_b32 v6, 7, v%d" % V_I16)
a("v_lshl_add_u32 v5, v6, 4, v5")
a("v_lshlrev_b32 v4, 1, v4")
a("v_lshlrev_b32 v6, 4, v%d" % V_LANE)
a("s_lshr_b32 s50, s33, 3")
a("s_mul_i32 s52, s50, %d" % (112 * 8192))
a("s_lshl_b32 s53, s32, 10")
a("s_add_u32 s52, s52, s53")
a("s_and_b32 s53, s33, 7")
a("s_lshl_b32 s53, s53, 7")
a("s_add_u32 s52, s52, s53")
a("s_mul_i32 s51, s50, 224")
a("s_mov_b32 s42, %d" % (448 * 8192))
a("s_mov_b32 s43, 0x20000")
a("s_mov_b32 s46, 896")
a("s_mov_b32 s47, 0x20000")
a("s_setprio 3")
a("s_waitcnt lgkmcnt(0)")
a("s_mov_b32 s44, s4")
a("s_and_b32 s45, s5, 0xffff")
a("s_mov_b32 s40, s10")
a("s_and_b32 s41, s11, 0xffff")
stamp(11)
WQ, BQ, XR14 = 32, 88, 144
a("buffer_load_dwordx4 v[%d:%d], v6, s[44:47], 0 offen" % (V_G, V_G + 3))
a("buffer_load_dwordx4 v[%d:%d], v4, s[44:47], s51 offen" % (XR14, XR14 + 3))
a("buffer_load_dwordx3 v[%d:%d], v4, s[44:47], s51 offen offset:16" % (XR14 + 4, XR14 + 6))
for t in range(14):
    a("buffer_load_dwordx4 v[%d:%d], v5, s[40:43], s52 offen%s" % (WQ + 4 * t, WQ + 4 * t + 3, NTQ))
    if t < 13:
        a("s_add_u32 s52, s52, 8192")
stamp(12)
a.label("L_tail_common")
a("s_waitcnt lgkmcnt(0)")
if Cfg.tlb == 2:
    a("s_cmp_lg_u32 s34, 6")
    a("s_cbranch_scc1 L_notlb")
    a("s_mul_i32 s48, s32, %d" % (512 * 896))
    a("s_add_u32 s49, s48, %d" % (511 * 896))
    a("s_mul_i32 s50, s32, %d" % (224 * 896))
    a("s_mov_b32 s51, %d" % (447 * 3584))
    a("s_mov_b32 s54, %d" % (E4 + 2044))
    a("s_lshl_b32 s55, s32, 22")
    a("s_add_u32 s55, s55, %d" % (6144 * 512))
    a("s_load_dword s40, s[8:9], s55")
    a("s_load_dword s41, s[12:13], s48")
    a("s_load_dword s42, s[12:13], s49")
    a("s_load_dword s43, s[20:21], s50")
    a("s_load_dword s44, s[16:17], 0")
    a("s_load_dword s45, s[16:17], s51")
    a("s_load_dword s46, s[18:19], 0")
    a("s_load_dword s47, s[22:23], 0")
    a("s_load_dword s98, s[26:27], s54")
    a.label("L_notlb")
if Cfg.b0:
    a("s_barrier")
a("s_load_dwordx4 s[28:31], s[26:27], %d" % EPOCH)
srd(36, 26, WS_SIZE)
a("s_mov_b32 s%d, %d" % (S_TO, Cfg.timeout))
get_xcc()
setmask(S_ODD, 0xAAAAAAAAAAAAAAAA)
setmask(S_M4, 0xF0F0F0F0F0F0F0F0)
setmask(S_M8, 0xFF00FF00FF00FF00)
setmask(S_HI, 0xFFFFFFFF00000000)
a("v_mov_b32 v%d, 1.0" % V_ONE)
a("v_lshrrev_b32 v8, 2, v%d" % V_LANE)
a("v_lshlrev_b32 v8, 11, v8")
a("v_and_b32 v9, 3, v%d" % V_LANE)
a("v_lshl_add_u32 v%d, v9, 4, v8" % V_GA)
make_masks()
a("v_lshl_add_u32 v8, v%d, 3, v%d" % (V_GRP, V_I16))
a("v_lshlrev_b32 v%d, 4, v8" % V_PUB)
a("s_lshl_b32 s52, s32, 13")
a("s_add_u32 s52, s52, %d" % E1)
a("s_lshl_b32 s53, s33, 8")
a("s_add_u32 s53, s53, s52")
a("s_cmp_lg_u32 s34, 4")
a("s_cbranch_scc1 L_notq")
a("s_add_u32 s49, s53, %d" % BOFF)
a("s_waitcnt vmcnt(14)")
stamp(1)
XF, XV, XE, XP = 152, 160, 176, 216
for k in range(4):
    a("v_lshlrev_b32 v%d, 16, v%d" % (XF + 2 * k, V_G + k))
    a("v_and_b32 v%d, 0xffff0000, v%d" % (XF + 2 * k + 1, V_G + k))
fill = []
for k in range(7):
    fill.append("v_lshlrev_b32 v%d, 16, v%d" % (XV + 2 * k, XR14 + k))
    fill.append("v_and_b32 v%d, 0xffff0000, v%d" % (XV + 2 * k + 1, XR14 + k))
s1, s2 = ln_stats([XF + k for k in range(8)], 0x00FFFFFFFFFFFFFF, 8, fill)
ln_apply([XV + k for k in range(14)], [XE + k for k in range(14)], [XP + k for k in range(7)], s1, s2)
for t in range(14):
    a("v_cvt_pk_bf16_f32 v%d, v%d, v%d" % (XE + t, XE + t, XE + t))
make_tags()
stamp(6)
QA = V_ACC
for t in range(15):
    if t < 14:
        for rho in range(4):
            a("v_and_b32 v%d, v%d, v%d" % (BQ + 4 * t + rho, XE + t, V_M + rho))
    if t >= 1:
        u = t - 1
        a("s_waitcnt vmcnt(%d)" % (13 - u))
        a("v_mfma_f32_16x16x32_bf16 v[%d:%d], v[%d:%d], v[%d:%d], %s" % (QA, QA + 3, WQ + 4 * u, WQ + 4 * u + 3, BQ + 4 * u, BQ + 4 * u + 3, "0" if u == 0 else "v[%d:%d]" % (QA, QA + 3)))
stamp(2)
a("s_movk_i32 s63, 0xfff")
for r in range(4):
    a("v_mov_b32_dpp v%d, v%d row_ror:8%s" % (8 + r, QA + r, DPPM))
for r in range(4):
    a("v_mov_b32 v%d, v%d" % (12 + r, 8 + r))
for r in range(4):
    a("v_permlane32_swap_b32 v%d, v%d" % (8 + r, 12 + r))
for r in range(4):
    a("v_add_f32 v%d, v%d, v%d" % (12 + r, 12 + r, QA + r))
for r in range(4):
    a("v_add_u32 v%d, 0x%x, v%d" % (12 + r, (E1M + 1) // 2, 12 + r))
for r in range(4):
    a("v_and_b32 v%d, 0x%x, v%d" % (12 + r, 0xffffffff ^ E1M, 12 + r))
for r in range(4):
    a("v_xor_b32 v%d, v%d, v%d" % (28 + r, 12 + r, V_T + r))
setexec(0x0000000000FF00FF)
a("v_xor_b32 v16, s99, v28")
for r in range(1, 4):
    a("v_mov_b32 v%d, v%d" % (16 + r, 28 + r))
if not Cfg.noA:
    a("buffer_store_dwordx4 v[16:19], v%d, s[36:39], s53 offen" % V_PUB)
a("buffer_store_dwordx4 v[28:31], v%d, s[36:39], s49 offen sc1" % V_PUB)
setexec(-1)
a("s_setprio 0")
stamp(3)
a("s_branch L_e1")
a.label("L_notq")
a.flush()
make_tags()
if Cfg.pretouch == 1:
    a("s_cmp_lg_u32 s34, 5")
    a("s_cbranch_scc1 L_nopre")
    a("s_lshl_b32 s55, s32, 5")
    a("s_add_u32 s55, s55, s33")
    a("s_lshl_b32 s55, s55, 11")
    a("v_lshlrev_b32 v8, 7, v%d" % V_I16)
    a("s_add_u32 s63, s55, %d" % E2)
    a("v_add_u32 v9, s63, v8")
    a("s_add_u32 s63, s55, %d" % E3A)
    a("v_add_u32 v10, s63, v8")
    a("v_and_b32 v8, 128, v8")
    a("v_add_u32 v8, s53, v8")
    a("v_cmp_eq_u32 vcc, 1, v%d" % V_GRP)
    a("v_cndmask_b32 v9, v9, v10, vcc")
    a("v_cndmask_b32 v9, v9, v8, s[%d:%d]" % (S_HI, S_HI + 1))
    a("buffer_load_dword v250, v9, s[36:39], 0 offen sc1")
    a.label("L_nopre")
if Cfg.tlb == 1:
    a("s_cmp_lg_u32 s34, 6")
    a("s_cbranch_scc1 L_notlb")
    a("s_mul_i32 s48, s32, %d" % (512 * 896))
    a("s_add_u32 s49, s48, %d" % (511 * 896))
    a("s_mul_i32 s50, s32, %d" % (224 * 896))
    a("s_mov_b32 s51, %d" % (447 * 3584))
    a("s_mov_b32 s54, %d" % E4)
    a("v_mov_b32 v8, 0")
    setexec(1)
    srd(40, 12, 4096 * 896)
    a("buffer_load_dword v250, v8, s[40:43], s48 offen")
    a("buffer_load_dword v250, v8, s[40:43], s49 offen")
    srd(40, 20, 1792 * 896)
    a("buffer_load_dword v250, v8, s[40:43], s50 offen")
    srd(40, 16, 448 * 3584)
    a("buffer_load_dword v250, v8, s[40:43], 0 offen")
    a("buffer_load_dword v250, v8, s[40:43], s51 offen")
    srd(40, 18, 1792 * 2)
    a("buffer_load_dword v250, v8, s[40:43], 0 offen")
    srd(40, 22, 896)
    a("buffer_load_dword v250, v8, s[40:43], 0 offen")
    a("buffer_load_dword v250, v8, s[36:39], s54 offen offset:2044")
    setexec(-1)
    a.label("L_notlb")
if Cfg.cpf:
    a("s_cmp_lg_u32 s34, 7")
    a("s_cbranch_scc1 L_nocpf")
    if Cfg.cpf == 2:
        a("s_cmp_lg_u32 s33, 31")
        a("s_cbranch_scc1 L_nocpf")
    a("s_getpc_b64 s[48:49]")
    a.label("L_pc")
    a("s_sub_u32 s48, s48, L_pc-%s_kernel" % NAME)
    a("s_subb_u32 s49, s49, 0")
    a("v_lshlrev_b32 v8, 7, v%d" % V_LANE)
    a("v_min_u32 v9, L_exit-%s_kernel-8192, v8" % NAME)
    a("global_load_dword v250, v8, s[48:49]")
    a("v_add_u32 v9, 8192, v9")
    a("global_load_dword v250, v9, s[48:49]")
    a.label("L_nocpf")
def pre2():
    a("s_cmp_lg_u32 s34, 5")
    a("s_cbranch_scc1 L_nopre2")
    a("s_lshl_b32 s55, s32, 5")
    a("s_add_u32 s55, s55, s33")
    a("s_lshl_b32 s55, s55, 11")
    a("s_add_u32 s63, s55, %d" % E2)
    a("v_lshlrev_b32 v8, 7, v%d" % V_LANE)
    setexec(0xffff)
    a("buffer_load_dword v250, v8, s[36:39], s63 offen sc1")
    setexec(-1)
    a.label("L_nopre2")
if Cfg.pretouch == 3:
    pre2()
if Cfg.pretouch >= 4:
    a("s_sub_u32 s63, s34, 5")
    a("s_cmp_gt_u32 s63, %d" % (1 if Cfg.pretouch == 5 else 0))
    a("s_cbranch_scc1 L_nopre4")
    a("s_lshl_b32 s55, s32, 5")
    a("s_add_u32 s55, s55, s33")
    a("s_lshl_b32 s55, s55, 11")
    a("s_cmp_eq_u32 s34, 5")
    a("s_cselect_b32 s63, 0, %d" % (E3A - E2))
    a("s_add_u32 s63, s63, s55")
    a("s_add_u32 s63, s63, %d" % E2)
    a("v_lshlrev_b32 v8, 4, v%d" % V_LANE)
    for r in range(3):
        a("v_not_b32 v%d, v%d" % (12 + r, V_T + r))
    a("v_not_b32 v15, v%d" % V_TB)
    a("buffer_store_dwordx4 v[12:15], v8, s[36:39], s63 offen")
    a("buffer_store_dwordx4 v[12:15], v8, s[36:39], s63 offen offset:1024")
    a("s_nop 1")
    a.label("L_nopre4")
a.label("L_e1")
if Cfg.bq:
    a("s_barrier")
if Cfg.pretouch == 2:
    pre2()
a("s_cmp_lt_u32 s33, 30")
a("s_cbranch_scc1 L_roles")
if Cfg.pretouch >= 4:
    a("s_waitcnt vmcnt(0)")
a("s_barrier")
a("s_branch L_end")
a.label("L_roles")
a("s_cmp_ge_u32 s33, 23")
a("s_cbranch_scc1 L_R")
a("s_cmp_ge_u32 s33, 16")
a("s_cbranch_scc1 L_F")

def poll(name, issue, nload, check, dual, sets=1, shadow=None, D=None):
    D = D or Cfg.pd
    ok = name + "_ok"
    for r in range(D):
        issue(r % sets)
        if r < D - 1 and Cfg.pds:
            a("s_sleep %d" % Cfg.pds)
    if shadow:
        shadow()
    a.label(name)
    n = sets if sets > 1 else 1
    for k in range(n):
        a("s_waitcnt vmcnt(%d)" % (nload * (D - 1)))
        check(k, ok)
        sel_step(True if dual else None)
        if not dual and Cfg.xls:
            a("s_sleep %d" % Cfg.xls)
        if dual and Cfg.lls:
            a("s_sleep %d" % Cfg.lls)
        issue(k)
    a("s_branch %s" % name)
    a.label(ok)

def wait_cnt(n, off=0):
    lab = a.newlabel("L_wc")
    a("v_mov_b32 v5, 0")
    a.label(lab)
    a("ds_read_b32 v7, v5 offset:%d" % (L_CNT + off))
    a("s_sub_u32 s%d, s%d, 1" % (S_TO, S_TO))
    a("s_cbranch_scc1 L_end")
    a("s_sleep 1")
    a("s_waitcnt lgkmcnt(0)")
    a("v_cmp_gt_u32 vcc, %d, v7" % n)
    a("s_cbranch_vccnz %s" % lab)

a("s_lshl_b32 s48, s33, 1")
a("s_lshr_b32 s49, s35, 1")
a("s_add_u32 s48, s48, s49")
a("s_lshl_b32 s50, s32, 9")
a("s_bfe_u32 s49, s48, 0x10001")
a("s_lshl_b32 s49, s49, 8")
a("s_add_u32 s50, s50, s49")
a("s_lshr_b32 s49, s48, 4")
a("s_lshl_b32 s49, s49, 7")
a("s_add_u32 s50, s50, s49")
a("s_bfe_u32 s49, s48, 0x20002")
a("s_lshl_b32 s49, s49, 5")
a("s_add_u32 s50, s50, s49")
a("s_and_b32 s49, s48, 1")
a("s_lshl_b32 s49, s49, 2")
a("s_add_u32 s50, s50, s49")
a("s_mul_i32 s50, s50, 896")
a("s_and_b32 s49, s35, 1")
a("s_lshl_b32 s49, s49, 9")
a("s_add_u32 s50, s50, s49")
a("v_mul_u32_u24 v6, 7168, v%d" % V_GRP)
a("v_lshl_add_u32 v6, v%d, 4, v6" % V_I16)
srd(40, 12, 4096 * 896)
a("s_lshl_b32 s54, s32, 16")
a("s_lshl_b32 s63, s48, 6")
a("s_add_u32 s54, s54, s63")
a("s_lshl_b32 s55, s32, 5")
a("s_add_u32 s55, s55, s48")
a("s_lshl_b32 s55, s55, 11")
a("s_lshl_b32 s49, s49, 1")
a("s_add_u32 s55, s55, s49")
a("s_add_u32 s52, s55, %d" % E3A)
a("s_add_u32 s53, s55, %d" % (E3A + BOFF))
a("v_cmp_lt_u32 s[6:7], 7, v%d" % V_I16)
a("v_add_u32 v4, %d, v%d" % (512 - 128, V_PUB))
a("v_cndmask_b32 v4, v%d, v4, s[6:7]" % V_PUB)
a("s_mov_b64 s[8:9], -1")
a("s_bitcmp1_b32 s35, 0")
a("s_cselect_b32 s9, 0x00ff00ff, s9")
a("s_mov_b32 s0, 0")
if Cfg.dry & 1:
    a("s_mov_b32 s0, 1")
    a("s_mov_b64 s[6:7], 0")
    a("s_branch L_e2poll_ok")
    a.label("L_odry")
    a("s_mov_b32 s0, 0")
if Cfg.pretouch >= 4:
    a("s_waitcnt vmcnt(0)")
a("s_barrier")
if Cfg.trg >= 0 and Cfg.trgo:
    wait_cnt(4, 8)
if Cfg.hack:
    _l = a.newlabel("L_hk")
    a("s_cmp_ge_u32 s32, 4")
    a("s_cbranch_scc1 %s" % _l)
    a("s_sleep %d" % Cfg.hack)
    a.label(_l)
if Cfg.ocnt:
    wait_cnt(Cfg.ocnt)
if Cfg.os:
    a("s_sleep %d" % Cfg.os)
for q in range(4):
    a("buffer_load_dwordx4 v[%d:%d], v6, s[40:43], s50 offen offset:%d%s" % (V_W + 4 * q, V_W + 4 * q + 3, 896 * q, NTL))
a("s_mov_b32 exec_lo, s9")
a("s_mov_b32 exec_hi, s9")
for q in range(4):
    a("buffer_load_dwordx4 v[%d:%d], v6, s[40:43], s50 offen offset:%d%s" % (V_W + 16 + 4 * q, V_W + 16 + 4 * q + 3, 896 * q + 256, NTL))
setexec(-1)
if Cfg.opoll:
    wait_cnt(Cfg.opoll)
sel_init()
stamp(1)
E2S = [V_S1 + 8 * k for k in range(Cfg.pd)]
def e2_issue(k):
    a("s_add_u32 s48, s54, s%d" % S_SEL)
    a("s_add_u32 s49, s48, %d" % (E2 + 16 * 2048))
    a("s_add_u32 s48, s48, %d" % E2)
    a("buffer_load_dwordx4 v[%d:%d], v%d, s[36:39], s48 offen sc1" % (E2S[k], E2S[k] + 3, V_GA))
    a("buffer_load_dwordx4 v[%d:%d], v%d, s[36:39], s49 offen sc1" % (E2S[k] + 4, E2S[k] + 7, V_GA))
def e2_check(k, ok):
    G = E2S[k]
    a("v_xor_b32 v10, v%d, v%d" % (G + 2, V_T8))
    a("v_xor_b32 v11, v%d, v%d" % (G + 6, V_T8))
    a("v_xor_b32 v12, v%d, v%d" % (G + 3, V_TB))
    a("v_xor_b32 v13, v%d, v%d" % (G + 7, V_TB))
    a("v_or_b32 v14, v10, v11")
    a("v_and_b32 v14, 0xff, v14")
    a("v_or3_b32 v14, v14, v12, v13")
    a("v_cmp_ne_u32 vcc, 0, v14")
    for t in range(2):
        a("v_lshlrev_b32 v%d, 16, v%d" % (16 + 4 * t, G + 4 * t))
        a("v_and_b32 v%d, 0xffff0000, v%d" % (17 + 4 * t, G + 4 * t))
        a("v_lshlrev_b32 v%d, 16, v%d" % (18 + 4 * t, G + 4 * t + 1))
        a("v_and_b32 v%d, 0xffff0000, v%d" % (19 + 4 * t, G + 4 * t + 1))
    a("s_cbranch_vccz %s" % ok)
poll("L_e2poll", e2_issue, 2, e2_check, True, sets=Cfg.pd)
stamp(5)
a("v_max_f32 v14, v10, v11")
a("v_max_f32_dpp v14, v14, v14 row_ror:8%s" % DPPM)
a("v_max_f32_dpp v14, v14, v14 row_ror:4%s" % DPPM)
bfly("v_max_f32", 14, 15, 16)
bfly("v_max_f32", 14, 15, 32)
a("v_sub_f32 v10, v10, v14")
a("v_sub_f32 v11, v11, v14")
a("v_exp_f32 v10, v10")
a("v_exp_f32 v11, v11")
a("s_movk_i32 s63, 0xfff")
for k in (0, 2):
    a("v_pk_mul_f32 v[%d:%d], v[10:11], v[%d:%d]%s" % (16 + k, 17 + k, 16 + k, 17 + k, BC))
a("v_add_f32 v12, v10, v11")
for k in (0, 2):
    a("v_pk_fma_f32 v[%d:%d], v[10:11], v[%d:%d], v[%d:%d] op_sel:[1,0,0] op_sel_hi:[1,1,1]" % (16 + k, 17 + k, 20 + k, 21 + k, 16 + k, 17 + k))
a("v_add_f32_dpp v12, v12, v12 row_ror:8%s" % DPPM)
a("v_add_f32_dpp v12, v12, v12 row_ror:4%s" % DPPM)
a("v_mfma_f32_16x16x4_f32 v[%d:%d], v12, v%d, 0" % (V_ACC + 4, V_ACC + 7, V_ONE))
reduce16([16, 17, 18, 19], 13)
a("v_mfma_f32_16x16x4_f32 v[%d:%d], v13, v%d, 0" % (V_ACC, V_ACC + 3, V_ONE))
a("v_rcp_f32 v12, v%d" % (V_ACC + 4))
for k in (0, 2):
    a("v_pk_mul_f32 v[%d:%d], v[12:13], v[%d:%d]%s" % (16 + k, 17 + k, V_ACC + k, V_ACC + k + 1, BC))
for r in range(4):
    a("v_cvt_pk_bf16_f32 v%d, v%d, v%d" % (16 + r, 16 + r, 16 + r))
A2 = V_ACC + 8
BB = V_BB
def omf(qq):
    for b in range(2):
        a("v_mfma_f32_16x16x32_bf16 v[%d:%d], v[%d:%d], v[%d:%d], %s" % (A2 + 4 * b, A2 + 4 * b + 3, V_W + 16 * b + 4 * qq, V_W + 16 * b + 4 * qq + 3, BB + 4 * qq, BB + 4 * qq + 3, "0" if qq == 0 else "v[%d:%d]" % (A2 + 4 * b, A2 + 4 * b + 3)))
for q in range(4):
    for rho in range(4):
        a("v_and_b32 v%d, v%d, v%d" % (BB + 4 * q + rho, 16 + q, V_M + rho))
    if q >= 1:
        omf(q - 1)
omf(3)
for r in range(4):
    a("v_cndmask_b32 v%d, v%d, v%d, s[6:7]" % (24 + r, A2 + r, A2 + 4 + r))
tag12(28, 24)
if Cfg.dry & 1:
    a("s_cmp_eq_u32 s0, 1")
    a("s_cbranch_scc1 L_odry")
a("s_mov_b64 exec, s[8:9]")
if not Cfg.noA:
    a("buffer_store_dwordx4 v[28:31], v4, s[36:39], s52 offen")
stamp(6)
bdefer()
skip_if_local(8, "L_end")
if not Cfg.noB:
    a("buffer_store_dwordx4 v[28:31], v4, s[36:39], s53 offen sc1")
setexec(-1)
if Cfg.w2l:
    a("s_lshl_b32 s48, s33, 2")
    a("s_add_u32 s48, s48, s35")
    a("s_mul_i32 s48, s48, %d" % (25 * 128))
    a("s_mul_i32 s63, s32, %d" % (224 * 896))
    a("s_add_u32 s48, s48, s63")
    a("v_lshlrev_b32 v24, 7, v%d" % V_LANE)
    srd(40, 20, 1792 * 896)
    setexec(0x1ffffff)
    a("buffer_load_dword v250, v24, s[40:43], s48 offen")
a("s_branch L_end")

a.label("L_R")
a.flush()
a("s_sub_u32 s50, s33, 23")
a("s_lshl_b32 s52, s50, 2")
a("s_add_u32 s52, s52, s35")
a("s_lshl_b32 s54, s32, 16")
a("s_lshl_b32 s63, s52, 6")
a("s_add_u32 s54, s54, s63")
a("s_mul_i32 s53, s52, %d" % Cfg.ss)
a("s_add_u32 s53, s53, %d" % E3X)
a("s_lshl_b32 s51, s32, 12")
a("s_add_u32 s51, s51, s53")
a("s_lshl_b32 s55, s32, 11")
a("s_lshl_b32 s63, s52, 6")
a("s_add_u32 s55, s55, s63")
a("s_add_u32 s55, s55, %d" % E3L)
a("v_lshlrev_b32 v4, 4, v%d" % V_GRP)
a("s_lshr_b32 s63, s52, 1")
a("s_lshl_b32 s63, s63, 6")
a("s_and_b32 s48, s52, 1")
a("s_lshl_b32 s48, s48, 3")
a("s_add_u32 s63, s63, s48")
a("v_lshl_add_u32 v%d, v%d, 4, s63" % (V_XA, V_GRP))
srd(44, 4, 896)
a("buffer_load_dwordx2 v[%d:%d], v%d, s[44:47], 0 offen" % (V_X + 2, V_X + 3, V_XA))
a("v_and_b32 v8, 7, v%d" % V_I16)
a("v_lshlrev_b32 v8, 12, v8")
a("v_lshl_add_u32 v%d, v%d, 4, v8" % (V_LW, V_GRP))
if Cfg.rpf:
    a("s_mul_i32 s48, s32, %d" % (224 * 896))
    a("s_mul_i32 s63, s52, %d" % (56 * 128))
    a("s_add_u32 s48, s48, s63")
    a("s_mul_i32 s49, s32, 448")
    a("s_mul_i32 s63, s52, %d" % (16 * 3584))
    a("s_add_u32 s49, s49, s63")
    a("v_lshrrev_b32 v25, 2, v%d" % V_LANE)
    a("v_mul_u32_u24 v25, 3584, v25")
    a("v_and_b32 v26, 3, v%d" % V_LANE)
    a("v_mul_u32_u24 v26, 148, v26")
    a("v_add_u32 v25, v25, v26")
    a("v_lshlrev_b32 v24, 7, v%d" % V_LANE)
    srd(40, 16, 448 * 3584)
    srd(8, 20, 1792 * 896)
if Cfg.pretouch >= 4:
    a("s_waitcnt vmcnt(0)")
a("s_barrier")
wait_cnt(6)
if Cfg.rpf:
    a("buffer_load_dword v250, v25, s[40:43], s49 offen")
    a("s_mov_b32 exec_hi, 0x00ffffff")
    a("buffer_load_dword v250, v24, s[8:11], s48 offen")
    setexec(-1)
sel_init()
if Cfg.rs:
    a("s_sleep %d" % Cfg.rs)
def e3a_issue(k):
    a("s_add_u32 s48, s54, s%d" % S_SEL)
    a("s_add_u32 s49, s48, %d" % (E3A + 16 * 2048))
    a("s_add_u32 s48, s48, %d" % E3A)
    a("buffer_load_dwordx4 v[%d:%d], v%d, s[36:39], s48 offen sc1" % (V_S2, V_S2 + 3, V_GA))
    a("buffer_load_dwordx4 v[%d:%d], v%d, s[36:39], s49 offen sc1" % (V_S2 + 4, V_S2 + 7, V_GA))
poll("L_e3apoll", e3a_issue, 2, lambda k, ok: check12(2, 12, ok, V_S2), True)
stamp(7)
padd4(12, 12, 16)
reduce16([12, 13, 14, 15], 9)
a("v_mfma_f32_16x16x4_f32 v[%d:%d], v9, v%d, 0" % (V_ACC, V_ACC + 3, V_ONE))
a("s_movk_i32 s63, 0xfff")
setexec(0x0001000100010001)
tag12(28, V_ACC)
a("buffer_store_dwordx4 v[28:31], v4, s[36:39], s51 offen sc1")
if Cfg.lh:
    a("buffer_store_dwordx4 v[28:31], v4, s[36:39], s55 offen")
setexec(-1)
stamp(8)
a("s_cmp_lg_u32 s50, s32")
a("s_cbranch_scc1 L_end")
a.label("L_hpoll")
a("s_sleep 2")
a("buffer_load_dwordx4 v[%d:%d], v%d, s[36:39], s53 offen sc1" % (V_G, V_G + 3, V_LW))
a("s_waitcnt vmcnt(0)")
check12(1, 12, "L_hok")
retry("L_hpoll", False)
a.label("L_hok")
stamp(9)
for pat in ("quad_perm:[1,0,3,2]", "quad_perm:[2,3,0,1]", "row_half_mirror"):
    for r in range(4):
        a("v_add_f32_dpp v%d, v%d, v%d %s%s" % (12 + r, 12 + r, 12 + r, pat, DPPM))
for r in range(4):
    a("v_mov_b32 v%d, v%d" % (V_ACC + r, 12 + r))
a("v_lshlrev_b32 v%d, 16, v%d" % (V_X, V_X + 2))
a("v_and_b32 v%d, 0xffff0000, v%d" % (V_X + 1, V_X + 2))
a("v_lshlrev_b32 v%d, 16, v%d" % (V_X + 2, V_X + 3))
a("v_and_b32 v%d, 0xffff0000, v%d" % (V_X + 3, V_X + 3))
def round_add_round(src, add):
    a("v_cvt_pk_bf16_f32 v10, v%d, v%d" % (src, src + 1))
    a("v_cvt_pk_bf16_f32 v11, v%d, v%d" % (src + 2, src + 3))
    a("v_lshlrev_b32 v12, 16, v10")
    a("v_and_b32 v13, 0xffff0000, v10")
    a("v_lshlrev_b32 v14, 16, v11")
    a("v_and_b32 v15, 0xffff0000, v11")
    padd4(12, 12, add)
    a("v_cvt_pk_bf16_f32 v10, v12, v13")
    a("v_cvt_pk_bf16_f32 v11, v14, v15")
round_add_round(V_ACC, V_X)
a("v_lshlrev_b32 v%d, 16, v10" % (V_X))
a("v_and_b32 v%d, 0xffff0000, v10" % (V_X + 1))
a("v_lshlrev_b32 v%d, 16, v11" % (V_X + 2))
a("v_and_b32 v%d, 0xffff0000, v11" % (V_X + 3))
a("s_lshl_b32 s48, s52, 6")
a("s_add_u32 s48, s48, %d" % E4)
for t in range(1, 4):
    a("s_add_u32 s%d, s48, %d" % (48 + t, t * 16 * 2048))
for r in range(4):
    a("v_mov_b32 v%d, v%d" % (V_G + 12 + r, V_T + r))
srd(44, 22, 896)
if Cfg.e4s:
    a("s_sleep %d" % Cfg.e4s)
XR = V_S1
def e4_issue(k):
    for t in range(4):
        if t == 3:
            a("s_mov_b32 exec_hi, 0")
        a("buffer_load_dwordx4 v[%d:%d], v%d, s[36:39], s%d offen sc1" % (V_G + 4 * t, V_G + 4 * t + 3, V_GA, 48 + t))
    setexec(-1)
poll("L_e4poll", e4_issue, 4, lambda k, ok: check12(4, XR, ok), False, D=Cfg.pd4)
stamp(10)
sum16(XR)
reduce16([XR, XR + 1, XR + 2, XR + 3], 9)
a("v_mfma_f32_16x16x4_f32 v[%d:%d], v9, v%d, 0" % (V_ACC, V_ACC + 3, V_ONE))
round_add_round(V_ACC, V_X)
setexec(0x0001000100010001)
a("buffer_store_dwordx2 v[10:11], v%d, s[44:47], 0 offen" % V_XA)
a("s_cmp_lg_u32 s52, 0")
a("s_cbranch_scc1 L_noep")
setexec(1)
a("v_mov_b32 v9, 0")
for k in range(4):
    a("v_mov_b32 v%d, s%d" % (12 + k, 28 + k))
a("buffer_store_dwordx4 v[12:15], v9, s[36:39], 0 offen offset:%d" % EPOCH)
a.label("L_noep")
setexec(-1)
stamp(14)
a("s_branch L_end")

a.label("L_F")
a.flush()
a("s_mul_i32 s50, s32, 7")
a("s_add_u32 s50, s50, s33")
a("s_sub_u32 s50, s50, 16")
a("s_lshl_b32 s51, s50, 2")
a("s_add_u32 s51, s51, s35")
a("v_lshrrev_b32 v8, 3, v%d" % V_I16)
a("v_sub_u32 v8, v%d, v8" % V_I16)
a("v_min_u32 v8, 13, v8")
a("v_lshlrev_b32 v8, 6, v8")
a("v_lshl_add_u32 v23, v%d, 4, v8" % V_GRP)
if Cfg.lin:
    setexec(0x8080808080808080)
    a("v_mov_b32 v23, 896")
    for k in range(4):
        a("v_mov_b32 v%d, 0" % (12 + k))
    a("ds_write_b128 v23, v[12:15] offset:%d" % L_H)
    setexec(-1)
a("v_bfe_u32 v8, v%d, 2, 3" % V_LANE)
a("v_min_u32 v8, 6, v8")
a("v_and_b32 v9, 3, v%d" % V_LANE)
a("v_mul_u32_u24 v10, %d, v8" % Cfg.ss)
a("v_lshl_add_u32 v10, v9, 4, v10")
a("v_lshrrev_b32 v11, 5, v%d" % V_LANE)
a("v_lshl_add_u32 v%d, v11, 12, v10" % V_XA)
a("s_mul_i32 s63, s35, 7")
a("v_add_u32 v8, s63, v8")
a("v_lshrrev_b32 v10, 1, v8")
a("v_lshlrev_b32 v10, 6, v10")
a("v_and_b32 v8, 1, v8")
a("v_lshl_add_u32 v10, v8, 3, v10")
a("v_lshl_add_u32 v24, v9, 4, v10")
a("v_and_b32 v10, 1, v%d" % V_GRP)
a("v_and_b32 v11, 1, v%d" % V_I16)
a("v_lshlrev_b32 v25, 2, v10")
a("v_and_b32 v26, 2, v%d" % V_GRP)
a("v_add_u32 v25, v25, v26")
a("v_mul_u32_u24 v26, 896, v25")
a("v_lshl_add_u32 v26, v%d, 4, v26" % V_I16)
a("v_add_u32 v25, v25, v11")
a("v_lshlrev_b32 v25, 1, v25")
a("v_bfe_u32 v27, v%d, 1, 1" % V_I16)
a("v_mul_u32_u24 v27, %d, v27" % (224 * 64))
a("v_lshl_add_u32 v27, v%d, 9, v27" % V_GRP)
a("v_lshrrev_b32 v12, 2, v%d" % V_I16)
a("v_lshl_add_u32 v27, v12, 6, v27")
a("v_lshl_add_u32 v27, v11, 3, v27")
a("s_lshl_b32 s63, s35, 4")
a("v_add_u32 v%d, s63, v27" % V_W1A)
a("v_lshrrev_b32 v27, 2, v%d" % V_LANE)
a("v_mul_u32_u24 v27, 3584, v27")
a("v_and_b32 v12, 3, v%d" % V_LANE)
a("v_lshl_add_u32 v27, v12, 4, v27")
a("s_lshl_b32 s63, s35, 11")
a("v_lshl_add_u32 v%d, v%d, 4, s63" % (V_LW, V_LANE))
srd(40, 16, 448 * 3584)
srd(44, 20, 1792 * 896)
srd(8, 4, 896)
srd(12, 18, 1792 * 2)
a("s_mul_i32 s52, s35, %d" % (112 * 3584))
a("s_lshl_b32 s63, s50, 6")
a("s_add_u32 s52, s52, s63")
a("s_mul_i32 s53, s35, 7168")
a("s_add_u32 s53, s53, %d" % L_W1)
a("s_mul_i32 s54, s51, %d" % (8 * 896))
a("s_lshl_b32 s55, s51, 4")
a("s_mul_i32 s24, s35, %d" % (7 * Cfg.ss))
a("s_add_u32 s24, s24, %d" % E3X)
a("s_add_u32 s25, s24, 8192")
a("s_add_u32 s26, s24, 16384")
a("s_add_u32 s27, s24, 24576")
a("s_mov_b32 s6, %d" % (16 * 3584))
a("s_movk_i32 s7, 1024")
if Cfg.zig:
    a("s_bitcmp1_b32 s50, 0")
    a("s_cbranch_scc0 L_nozig")
    a("s_add_u32 s52, s52, %d" % (6 * 16 * 3584))
    a("s_add_u32 s53, s53, 6144")
    a("s_mov_b32 s6, %d" % (-16 * 3584))
    a("s_movk_i32 s7, -1024")
    a.label("L_nozig")
def w1_loads():
    for t in range(7):
        a("s_mov_b32 m0, s53")
        a("buffer_load_dwordx4 v27, s[40:43], s52 offen%s lds" % NTW)
        if t < 6:
            a("s_add_u32 s52, s52, s6")
            a("s_add_u32 s53, s53, s7")
def w2_loads():
    for b in range(4):
        if b == 3:
            setexec(0x00FF00FF00FF00FF)
        for q in range(2):
            a("buffer_load_dwordx4 v[%d:%d], v26, s[44:47], s54 offen offset:%d%s" % (V_W + 8 * b + 4 * q, V_W + 8 * b + 4 * q + 3, 896 * q + 256 * b, NTL))
    setexec(-1)
def small_loads():
    a("buffer_load_dwordx2 v[%d:%d], v24, s[8:11], 0 offen" % (V_X + 2, V_X + 3))
    a("buffer_load_ushort v%d, v25, s[12:15], s55 offen" % V_B1)
if Cfg.pretouch >= 4:
    a("s_waitcnt vmcnt(0)")
a("s_barrier")
if Cfg.trg >= 0:
    wait_cnt(4, 8)
if Cfg.hack:
    _l = a.newlabel("L_hk")
    a("s_cmp_ge_u32 s32, 4")
    a("s_cbranch_scc1 %s" % _l)
    a("s_sleep %d" % Cfg.hack)
    a.label(_l)
if Cfg.w2e:
    w2_loads()
    small_loads()
wait_cnt(Cfg.fcnt)
if Cfg.fs:
    a("s_sleep %d" % Cfg.fs)
stamp(1)
if Cfg.w2e:
    w1_loads()
else:
    if not Cfg.w2first:
        w1_loads()
    if not Cfg.w2l:
        w2_loads()
    if Cfg.w2first:
        w1_loads()
    small_loads()
a("s_lshl_b32 s48, s50, 11")
a("s_lshl_b32 s63, s35, 10")
a("s_add_u32 s48, s48, s63")
a("s_add_u32 s48, s48, %d" % E4)
a("v_cmp_lt_u32 s[6:7], 7, v%d" % V_I16)
a("v_add_u32 v4, %d, v%d" % (512 - 128, V_PUB))
a("v_cndmask_b32 v4, v%d, v4, s[6:7]" % V_PUB)
a("s_lshl_b32 s63, s35, 10")
a("v_lshl_add_u32 v21, v%d, 4, s63" % V_LANE)
D1 = V_S2
V_CS = 251
def ffn1(AF, dst, fill=()):
    fill = list(fill)
    def f(n):
        for _ in range(n):
            if fill:
                a(fill.pop(0))
    for m in range(7):
        a("v_mfma_f32_16x16x32_bf16 v[%d:%d], v[%d:%d], v[%d:%d], 0" % (D1 + 4 * m, D1 + 4 * m + 3, AF, AF + 3, V_W1F + 4 * m, V_W1F + 4 * m + 3))
    return
def ffn1_tail(dst, t, zero=True):
    if zero:
        a("v_mov_b32 v%d, 0" % dst)
    setexec(0x0000FF00000000FF)
    a("v_add_f32 v%d, v%d, v%d" % (dst, D1 + 0, D1 + 4 + 1))
    a("v_add_f32 v%d, v%d, v%d" % (t, D1 + 8 + 2, D1 + 12 + 3))
    a("v_add_f32 v%d, v%d, v%d" % (dst, dst, t))
    setexec(0xFF00000000FF0000)
    a("v_add_f32 v%d, v%d, v%d" % (dst, D1 + 16, D1 + 20 + 1))
    a("v_add_f32 v%d, v%d, v%d" % (dst, dst, D1 + 24 + 2))
    setexec(-1)
    a("v_add_f32_dpp v%d, v%d, v%d row_ror:8%s" % (dst, dst, dst, DPPM))
    a("v_mfma_f32_16x16x4_f32 v[%d:%d], v%d, v%d, 0" % (V_ACC, V_ACC + 3, dst, V_ONE))
def ffn1_sel(dst, t):
    a("v_cndmask_b32 v%d, v%d, v%d, s[%d:%d]" % (dst, V_ACC, V_ACC + 1, S_ODD, S_ODD + 1))
    a("v_cndmask_b32 v%d, v%d, v%d, s[%d:%d]" % (t, V_ACC + 2, V_ACC + 3, S_ODD, S_ODD + 1))
    a("v_cndmask_b32 v%d, v%d, v%d, s[%d:%d]" % (dst, dst, t, S_HI, S_HI + 1))
AF = 176
def e3x_issue(k):
    for t in range(4):
        a("buffer_load_dwordx4 v[%d:%d], v%d, s[36:39], s%d offen sc1" % (V_G + 4 * t, V_G + 4 * t + 3, V_XA, 24 + t))
a("v_min_u32 v22, 27, v%d" % V_LANE)
a("v_lshlrev_b32 v22, 4, v22")
a("s_lshl_b32 s49, s32, 11")
a("s_mul_i32 s63, s35, 448")
a("s_add_u32 s49, s49, s63")
a("s_add_u32 s49, s49, %d" % E3L)
a("s_mov_b32 s1, %d" % Cfg.bthr)
if Cfg.lh2:
    a("buffer_load_dwordx4 v[%d:%d], v22, s[36:39], s49 offen sc1" % (V_G, V_G + 3))
    a("s_waitcnt vmcnt(0)")
    stamp(5)
    check12(1, XR, "L_lh1")
    a("s_branch L_lh2")
    a.label("L_lh1")
    e3x_issue(0)
    a("s_mov_b32 s1, -1")
    a.label("L_lh2")
    a("s_barrier")
elif not Cfg.e3e:
    a("s_waitcnt vmcnt(0)")
    stamp(5)
    a("s_barrier")
def f_shadow():
    if Cfg.e3e:
        a("s_waitcnt vmcnt(%d)" % (4 * Cfg.pd))
        stamp(5)
        a("s_barrier")
    for m in range(7):
        for u in range(2):
            a("ds_read_b64_tr_b16 v[%d:%d], v%d offset:%d" % (V_W1F + 4 * m + 2 * u, V_W1F + 4 * m + 2 * u + 1, V_W1A, L_W1 + 2048 * m + 256 * u))
    a("v_lshlrev_b32 v%d, 16, v%d" % (V_B1, V_B1))
    a("v_lshlrev_b32 v%d, 16, v%d" % (V_X, V_X + 2))
    a("v_and_b32 v%d, 0xffff0000, v%d" % (V_X + 1, V_X + 2))
    a("v_lshlrev_b32 v%d, 16, v%d" % (V_X + 2, V_X + 3))
    a("v_and_b32 v%d, 0xffff0000, v%d" % (V_X + 3, V_X + 3))
    if Cfg.lin:
        for k in range(4):
            a("v_mov_b32 v%d, 0x3f803f80" % (AF + k))
        a("s_waitcnt lgkmcnt(0)")
        ffn1(AF, V_CS)
        ffn1_tail(V_CS, 9)
        ffn1_sel(V_CS, 9)
if Cfg.lh:
    f_shadow()
    if Cfg.lh2:
        a("s_cmp_eq_u32 s1, -1")
        a("s_cbranch_scc1 L_e3xpoll")
    a.label("L_lh")
    a("buffer_load_dwordx4 v[%d:%d], v22, s[36:39], s49 offen sc1" % (V_G, V_G + 3))
    a("s_sub_u32 s1, s1, 1")
    a("s_cbranch_scc1 L_lhok")
    a("s_waitcnt vmcnt(0)")
    check12(1, XR, "L_lhok")
    a("s_branch L_lh")
    a.label("L_lhok")
    if Cfg.xs:
        a("s_sleep %d" % Cfg.xs)
    assert Cfg.pdx == 1 or not Cfg.lh2
    poll("L_e3xpoll", e3x_issue, 4, lambda k, ok: check12(4, XR, ok), False, D=Cfg.pdx)
else:
    poll("L_e3xpoll", e3x_issue, 4, lambda k, ok: check12(4, XR, ok), False, shadow=f_shadow)
stamp(9)
if Cfg.w2l:
    w2_loads()
sum16(XR)
xhalf_add4(XR)
round_add_round(XR, V_X)
a("ds_write_b64 v24, v[10:11] offset:%d" % L_H)
a("s_waitcnt lgkmcnt(0)")
a("s_barrier")
stamp(10)
PR = V_S1
if Cfg.lin:
    a("ds_read_b128 v[%d:%d], v23 offset:%d" % (AF, AF + 3, L_H))
    a("s_waitcnt lgkmcnt(0)")
    unp = []
    for k in range(4):
        unp.append("v_lshlrev_b32 v%d, 16, v%d" % (PR + 2 * k, AF + k))
        unp.append("v_and_b32 v%d, 0xffff0000, v%d" % (PR + 2 * k + 1, AF + k))
    def mf(m):
        a("v_mfma_f32_16x16x32_bf16 v[%d:%d], v[%d:%d], v[%d:%d], 0" % (D1 + 4 * m, D1 + 4 * m + 3, AF, AF + 3, V_W1F + 4 * m, V_W1F + 4 * m + 3))
    for m in range(4):
        mf(m)
        a(unp[2 * m]); a(unp[2 * m + 1])
    mf(4)
    def pre():
        mf(5)
        a("v_mov_b32 v22, 0")
        mf(6)
    fl = ["v_mov_b32 v22, 0"]
    s1, s2 = ln_stats([PR + k for k in range(8)], 0x7F7F7F7F7F7F7F7F, 5, pk=PR + 8, pre=pre, fill=None, mid=lambda: ffn1_tail(22, 20, False))
    ffn1_sel(22, 20)
    bf16r(s2, s2)
    a("v_rcp_f32 v%d, v%d" % (s2, s2))
    a("v_fma_f32 v8, -v%d, v%d, v22" % (s1, V_CS))
    a("s_mov_b32 s63, %s" % f32(-LOG2E))
    a("v_mul_f32 v8, v8, v%d" % s2)
else:
    a("ds_read_b128 v[%d:%d], v23 offset:%d" % (PR + 8, PR + 11, L_H))
    a("s_waitcnt lgkmcnt(0)")
    for k in range(4):
        a("v_lshlrev_b32 v%d, 16, v%d" % (PR + 2 * k, PR + 8 + k))
        a("v_and_b32 v%d, 0xffff0000, v%d" % (PR + 2 * k + 1, PR + 8 + k))
    layernorm([PR + k for k in range(8)], AF, 0x7F7F7F7F7F7F7F7F, 5)
    ffn1(AF, 8)
    ffn1_tail(8, 9)
    a("s_mov_b32 s63, %s" % f32(-LOG2E))
    ffn1_sel(8, 9)
bf16r(8, 8)
a("v_add_f32 v8, v8, v%d" % V_B1)
bf16r(8, 8)
if Cfg.fmish:
    a("v_mul_f32 v9, s63, abs(v8)")
    a("v_exp_f32 v9, v9")
    a("v_cmp_gt_f32 vcc, 0, v8")
    a("v_mul_f32 v10, v9, v9")
    a("v_cndmask_b32 v11, 1.0, v10, vcc")
    a("v_cndmask_b32 v12, v10, 1.0, vcc")
    a("v_fma_f32 v11, 2.0, v9, v11")
    a("v_fma_f32 v12, 2.0, v12, v11")
    a("v_rcp_f32 v12, v12")
    a("v_mul_f32 v14, v11, v12")
else:
    a("v_mul_f32 v9, s63, abs(v8)")
    a("v_exp_f32 v9, v9")
    a("v_max_f32 v17, 0, v8")
    bf16r(9, 9)
    a("v_add_f32 v10, 1.0, v9")
    a("v_add_f32 v11, -1.0, v10")
    a("v_log_f32 v12, v10")
    a("v_rcp_f32 v13, v11")
    a("v_cmp_eq_f32 vcc, 0, v11")
    a("v_mul_f32 v12, %s, v12" % f32(0.6931471805599453))
    a("v_mul_f32 v13, v13, v9")
    a("v_mul_f32 v12, v12, v13")
    a("v_cndmask_b32 v12, v12, v9, vcc")
    bf16r(12, 12)
    a("v_add_f32 v12, v12, v17")
    bf16r(12, 12)
    a("v_mul_f32 v13, %s, v12" % f32(-2.0 * LOG2E))
    a("v_exp_f32 v13, v13")
    a("v_mul_f32 v16, v12, v12")
    a("v_add_f32 v14, 1.0, v13")
    a("v_sub_f32 v15, 1.0, v13")
    a("v_rcp_f32 v14, v14")
    a("v_mul_f32 v16, %s, v16" % f32(-1.0 / 3.0))
    a("v_cmp_gt_f32 vcc, %s, v12" % f32(2.0 ** -6))
    a("v_fma_f32 v16, v16, v12, v12")
    a("v_mul_f32 v14, v14, v15")
    a("v_cndmask_b32 v14, v14, v16, vcc")
    bf16r(14, 14)
a("v_mul_f32 v14, v14, v8")
a("v_cvt_pk_bf16_f32 v14, v14, v14")
a("s_movk_i32 s63, 0xfff")
for q in range(2):
    for rho in range(4):
        a("v_and_b32_dpp v%d, v14, v%d quad_perm:[%d,%d,%d,%d]%s" % (BB + 4 * q + rho, V_M + rho, q, q, 2 + q, 2 + q, DPPM))
if Cfg.w2l:
    stamp(12)
    a("s_waitcnt vmcnt(0)")
for q in range(2):
    for b in range(4):
        a("v_mfma_f32_16x16x32_bf16 v[%d:%d], v[%d:%d], v[%d:%d], %s" % (V_ACC + 4 * b, V_ACC + 4 * b + 3, V_W + 8 * b + 4 * q, V_W + 8 * b + 4 * q + 3, BB + 4 * q, BB + 4 * q + 3, "0" if q == 0 else "v[%d:%d]" % (V_ACC + 4 * b, V_ACC + 4 * b + 3)))
setexec(0x00FF00FF00FF00FF)
a("ds_write_b128 v%d, v[%d:%d] offset:%d" % (V_LW, V_ACC, V_ACC + 3, L_F))
a("s_not_b64 exec, exec")
a("ds_write_b128 v%d, v[%d:%d] offset:%d" % (V_LW, V_ACC + 4, V_ACC + 7, L_F))
a("s_not_b64 exec, exec")
a("ds_write_b128 v%d, v[%d:%d] offset:%d" % (V_LW, V_ACC + 8, V_ACC + 11, L_F + 1024))
a("s_not_b64 exec, exec")
a("ds_write_b128 v%d, v[%d:%d] offset:%d" % (V_LW, V_ACC + 12, V_ACC + 15, L_F + 1024))
setexec(-1)
a("s_waitcnt lgkmcnt(0)")
stamp(13)
a("s_barrier")
a("s_cmp_ge_u32 s35, 2")
a("s_cbranch_scc1 L_end")
for w in range(4):
    a("ds_read_b128 v[%d:%d], v21 offset:%d" % (PR + 4 * w, PR + 4 * w + 3, L_F + 2048 * w))
a("s_cmp_eq_u32 s35, 1")
a("s_cselect_b32 exec_hi, 0x00ff00ff, -1")
a("s_waitcnt lgkmcnt(0)")
sum16(PR)
tag12(28, PR)
a("buffer_store_dwordx4 v[28:31], v4, s[36:39], s48 offen sc1")
setexec(-1)
stamp(14)
a.label("L_end")
if Cfg.stamps:
    setexec(-1)
    stamp(15)
    a("s_waitcnt lgkmcnt(0)")
    a("s_lshl_b32 s48, s2, 3")
    a("s_add_u32 s48, s48, s34")
    a("s_lshl_b32 s48, s48, 6")
    a("s_add_u32 s48, s48, %d" % STAMP)
    a("v_mov_b32 v9, 0")
    setexec(1)
    for i in range(0 if getattr(Cfg, "nost", False) else 16):
        a("v_mov_b32 v10, s%d" % (64 + 2 * i))
        a("buffer_store_dword v10, v9, s[36:39], s48 offen offset:%d" % (4 * i))
    if Cfg.dbgwg >= 0:
        a("s_cmp_lg_u32 s2, %d" % Cfg.dbgwg)
        a("s_cbranch_scc1 L_exit")
        a("s_cmp_lg_u32 s34, %d" % Cfg.dbgwave)
        a("s_cbranch_scc1 L_exit")
        if Cfg.spin:
            a.label("L_spin")
            a("s_memrealtime s[94:95]")
            a("s_waitcnt lgkmcnt(0)")
            a("s_sub_u32 s63, s94, s64")
            a("s_cmp_lt_u32 s63, %d" % Cfg.spin)
            a("s_cbranch_scc1 L_spin")
        srd(44, 24, 256)
        for i in range(16):
            a("s_sub_u32 s63, s%d, s64" % (64 + 2 * i))
            a("s_cmp_eq_u32 s%d, 0" % (64 + 2 * i))
            a("s_cselect_b32 s63, 0, s63")
            a("v_mov_b32 v10, s63")
            a("buffer_store_dword v10, v9, s[44:47], 0 offen offset:%d" % (4 * i))
a.label("L_exit")
a("s_endpgm")
a.raw('''.section .rodata,"a"
.p2align 6
.amdhsa_kernel %s_kernel
  .amdhsa_next_free_vgpr %d
  .amdhsa_next_free_sgpr 100
  .amdhsa_accum_offset %d
  .amdhsa_group_segment_fixed_size 0
  .amdhsa_kernarg_size 96
  .amdhsa_user_sgpr_count 2
  .amdhsa_user_sgpr_kernarg_segment_ptr 1
  .amdhsa_system_sgpr_workgroup_id_x 1
  .amdhsa_float_denorm_mode_32 3
.end_amdhsa_kernel''' % (NAME, NVGPR, NVGPR))
open(sys.argv[1], "w").write(a.text())
```

```python
import sys, struct
from asmlib import Asm
NAME = "sequential_preLN__sliding_block_cached__dense_activation_mish__decode"

class Cfg:
    stamps = False
    nt = True
    ntw = False
    timeout = 200000
    ocnt = 0
    vs = 0
    nearly = 7
    pfat = 1
    n1 = 10
    pf = False
    cpf = 2
    ntl = True
    depth = 0
    ss = 128
    forceB = False
    pretouch = 2
    fs = 0
    tlb = 0
    bthr = 64
    b0 = True
    npipe = 3
    ps0 = 0
    ps1 = 4
    kpat = 0
    kdma = True
    pd = 1
    pds = 2
    fpf = False
    prio = True
    xls = 0
    pace = 0
    e1w = 20
    fcnt = 6
    w2l = False
    pdx = 1
    pd4 = 1
    zig = True
    w2first = True
    w2e = True
    bd = 0
    xcc = True
    fakex = False
    fmish = True
    noA = False
    nost = False
    noB = False
    dry = 0
    lh2 = False
    lh = True
    e3e = False
    lin = True
    rpf = False
    rs = 0
    os = 0
    ka = 3
    kb = 0
    kc = 0
    p1 = 12
    p2 = 15
    bq = True
    k128 = True
    opoll = 4
    lls = 0
    trgo = True
    trg = -1
    hack = 0
    vdma = False
    kpre = 0
    sp = True
    k0 = 7
    xs = 0
    e4s = 0
    rnd = True
    dbgwg = -1
    dbgwave = 0
    spin = 0
for arg in sys.argv[2:]:
    k, v = arg.split('=')
    setattr(Cfg, k, type(getattr(Cfg, k))(int(v)))

NT = " nt" if Cfg.nt else ""
NTW = " nt" if Cfg.ntw else ""
NTQ = NT
NTL = " nt" if Cfg.ntl else ""
EPOCH = 0x0
E3X = 0x1000
E3L = 0x9000
E1 = 0x10000
E2 = 0x20000
E3A = 0xA0000
BOFF = 0x120000
E4 = 0x240000
STAMP = 0x300000
WS_SIZE = 0x400000
L_Q = 0
L_ML = 1024
L_CNT = 3072
L_H = 3136
L_O = 4096
L_F = L_O
L_K = 12288
L_W1 = L_K
L_V = 45056
LDS_BYTES = 77824 if Cfg.vdma else 45056

LOG2E = 1.4426950408889634
def f32(x):
    return "0x%08x" % struct.unpack('<I', struct.pack('<f', x))[0]

a = Asm()
a.raw("""; Single persistent launch, 256 workgroups (one per CU) x 8 waves; written with a small generator script.
; copies are written and polled, so any placement is correct.""")
a.raw("; @launch grid=(256,1,1) block=(512,1,1) lds=%d" % LDS_BYTES)
a.raw('.amdgcn_target "amdgcn-amd-amdhsa--gfx950"\n.text\n.globl %s_kernel\n.p2align 8\n.type %s_kernel,@function\n%s_kernel:' % (NAME, NAME, NAME))

DPPM = " row_mask:0xf bank_mask:0xf"
def stamp(i):
    if Cfg.stamps:
        a("s_memrealtime s[%d:%d]" % (64 + 2 * i, 65 + 2 * i))

def srd(dst, ptr, nbytes):
    a("s_mov_b32 s%d, s%d" % (dst, ptr))
    a("s_and_b32 s%d, s%d, 0xffff" % (dst + 1, ptr + 1))
    a("s_mov_b32 s%d, %d" % (dst + 2, nbytes))
    a("s_mov_b32 s%d, 0x20000" % (dst + 3))

def setexec(mask):
    if mask == -1:
        a("s_mov_b64 exec, -1")
    else:
        a("s_mov_b32 exec_lo, 0x%08x" % (mask & 0xffffffff))
        a("s_mov_b32 exec_hi, 0x%08x" % (mask >> 32))

def setmask(s, mask):
    a("s_mov_b32 s%d, 0x%08x" % (s, mask & 0xffffffff))
    a("s_mov_b32 s%d, 0x%08x" % (s + 1, mask >> 32))

def padd4(d, x, y):
    assert d % 2 == 0 and x % 2 == 0 and y % 2 == 0
    for k in (0, 2):
        a("v_pk_add_f32 v[%d:%d], v[%d:%d], v[%d:%d]" % (d + k, d + k + 1, x + k, x + k + 1, y + k, y + k + 1))

def sum16(X):
    padd4(X, X, X + 4)
    padd4(X + 8, X + 8, X + 12)
    padd4(X, X, X + 8)

def xhalf_add4(X):
    for k in (0, 2):
        a("v_pk_mov_b32 v[%d:%d], v[%d:%d], v[%d:%d] op_sel:[0,1]" % (X + 4 + k, X + 5 + k, X + k, X + k + 1, X + k, X + k + 1))
    for r in range(4):
        a("v_permlane32_swap_b32 v%d, v%d" % (X + r, X + 4 + r))
    padd4(X, X, X + 4)

def bfly(op, v, t, which):
    a("v_mov_b32 v%d, v%d" % (t, v))
    a("v_permlane%d_swap_b32 v%d, v%d" % (which, v, t))
    a("%s v%d, v%d, v%d" % (op, v, v, t))

def bf16r(dst, src):
    a("v_cvt_pk_bf16_f32 v%d, v%d, v%d" % (dst, src, src))
    a("v_and_b32 v%d, 0xffff0000, v%d" % (dst, dst))

S_ODD, S_B1, S_HI = 56, 58, 60
S_M4, S_M8 = 58, 96
S_TO = 62
S_SEL = 3

S_CNT = 33
def sel_step(thr):
    a("s_sub_u32 s%d, s%d, 1" % (S_TO, S_TO))
    a("s_cbranch_scc1 L_end")
    if thr is not None and not Cfg.forceB:
        assert Cfg.pd == 1
        a("s_xor_b32 s63, s%d, %d" % (S_SEL, BOFF))
        a("s_cmp_lt_u32 s%d, s1" % S_TO)
        a("s_cselect_b32 s%d, s63, s%d" % (S_SEL, S_SEL))

def retry(loop, dual):
    sel_step(True if dual else None)
    a("s_branch %s" % loop)

def sel_init(thr=None):
    a("s_mov_b32 s%d, %d" % (S_SEL, BOFF if Cfg.forceB else 0))
    a("s_sub_u32 s1, s%d, %d" % (S_TO, Cfg.bthr if thr is None else thr))

def ln_stats(f, valid, T, fill=None, pk=None, pre=None, mid=None):
    e = [T + k for k in range(8)]
    s1, s2, t1, t2 = T + 8, T + 9, T + 10, T + 11
    fill = list(fill or [])
    def filler():
        if fill:
            a(fill.pop(0))
    if pk is None:
        a("v_readlane_b32 s63, v%d, 0" % f[0])
        a("v_mov_b32 v%d, 0" % s1)
        a("v_mov_b32 v%d, 0" % s2)
        setexec(valid)
        for k in range(8):
            a("v_subrev_f32 v%d, s63, v%d" % (e[k], f[k]))
        a("v_add_f32 v%d, v%d, v%d" % (s1, e[0], e[1]))
        a("v_mul_f32 v%d, v%d, v%d" % (s2, e[0], e[0]))
        a("v_add_f32 v%d, v%d, v%d" % (t1, e[2], e[3]))
        a("v_mul_f32 v%d, v%d, v%d" % (t2, e[1], e[1]))
        for k in range(4, 8):
            a("v_add_f32 v%d, v%d, v%d" % (s1 if k % 2 == 0 else t1, s1 if k % 2 == 0 else t1, e[k]))
        for k in range(2, 8):
            a("v_fmac_f32 v%d, v%d, v%d" % (s2 if k % 2 == 0 else t2, e[k], e[k]))
        a("v_add_f32 v%d, v%d, v%d" % (s1, s1, t1))
        a("v_add_f32 v%d, v%d, v%d" % (s2, s2, t2))
    else:
        E, SS, QQ, TT = pk, pk + 8, pk + 10, pk + 12
        pr = lambda x: "v[%d:%d]" % (x, x + 1)
        a("v_readlane_b32 s24, v%d, 0" % f[0])
        a("v_mov_b32 v%d, 0" % s1)
        a("v_mov_b32 v%d, 0" % s2)
        if pre:
            pre()
        setexec(valid)
        a("s_mov_b32 s63, s24")
        for k in range(4):
            a("v_pk_add_f32 %s, %s, s[24:25] op_sel_hi:[1,0] neg_lo:[0,1] neg_hi:[0,1]" % (pr(E + 2 * k), pr(f[2 * k])))
        a("v_pk_add_f32 %s, %s, %s" % (pr(SS), pr(E), pr(E + 2)))
        a("v_pk_mul_f32 %s, %s, %s" % (pr(QQ), pr(E), pr(E)))
        a("v_pk_add_f32 %s, %s, %s" % (pr(TT), pr(E + 4), pr(E + 6)))
        a("v_pk_fma_f32 %s, %s, %s, %s" % (pr(QQ), pr(E + 2), pr(E + 2), pr(QQ)))
        a("v_pk_add_f32 %s, %s, %s" % (pr(SS), pr(SS), pr(TT)))
        a("v_pk_fma_f32 %s, %s, %s, %s" % (pr(QQ), pr(E + 4), pr(E + 4), pr(QQ)))
        a("v_add_f32 v%d, v%d, v%d" % (s1, SS, SS + 1))
        a("v_pk_fma_f32 %s, %s, %s, %s" % (pr(QQ), pr(E + 6), pr(E + 6), pr(QQ)))
        a("v_add_f32 v%d, v%d, v%d" % (s2, QQ, QQ + 1))
    if mid:
        mid()
    else:
        setexec(-1)
    for i, r in enumerate((8, 4, 2, 1)):
        a("v_add_f32_dpp v%d, v%d, v%d row_ror:%d%s" % (s1, s1, s1, r, DPPM))
        a("v_add_f32_dpp v%d, v%d, v%d row_ror:%d%s" % (s2, s2, s2, r, DPPM))
        filler()
    for which in (16, 32):
        a("v_mov_b32 v%d, v%d" % (t1, s1))
        a("v_mov_b32 v%d, v%d" % (t2, s2))
        filler()
        a("v_permlane%d_swap_b32 v%d, v%d" % (which, s1, t1))
        a("v_permlane%d_swap_b32 v%d, v%d" % (which, s2, t2))
        a("v_add_f32 v%d, v%d, v%d" % (s1, s1, t1))
        a("v_add_f32 v%d, v%d, v%d" % (s2, s2, t2))
    a("v_mul_f32 v%d, %s, v%d" % (s1, f32(1.0 / 448), s1))
    a("v_mul_f32 v%d, %s, v%d" % (s2, f32(1.0 / 448), s2))
    a("v_fma_f32 v%d, -v%d, v%d, v%d" % (s2, s1, s1, s2))
    a("v_add_f32 v%d, s63, v%d" % (s1, s1))
    a("v_max_f32 v%d, 0, v%d" % (s2, s2))
    a("v_cvt_pk_bf16_f32 v%d, v%d, v%d" % (t1, s1, s2))
    a("v_and_b32 v%d, 0xffff0000, v%d" % (s2, t1))
    a("v_lshlrev_b32 v%d, 16, v%d" % (s1, t1))
    a("v_add_f32 v%d, %s, v%d" % (s2, f32(1e-5), s2))
    bf16r(s2, s2)
    a("v_sqrt_f32 v%d, v%d" % (s2, s2))
    while fill:
        filler()
    return s1, s2

def ln_apply(f, e, pk, s1, s2):
    n = len(f)
    for k in range(n):
        a("v_sub_f32 v%d, v%d, v%d" % (e[k], f[k], s1))
    bf16r(s2, s2)
    a("v_rcp_f32 v%d, v%d" % (s2, s2))
    for k in range(n // 2):
        a("v_cvt_pk_bf16_f32 v%d, v%d, v%d" % (pk[k], e[2 * k], e[2 * k + 1]))
    for k in range(n // 2):
        a("v_lshlrev_b32 v%d, 16, v%d" % (e[2 * k], pk[k]))
        a("v_and_b32 v%d, 0xffff0000, v%d" % (e[2 * k + 1], pk[k]))
    for k in range(n):
        a("v_mul_f32 v%d, v%d, v%d" % (e[k], e[k], s2))

def layernorm(f, out, valid, T):
    e = [T + k for k in range(8)]
    pk = [T + 12 + k for k in range(4)]
    s1, s2 = ln_stats(f, valid, T, ["v_mov_b32 v%d, 0" % (out + i) for i in range(4)])
    ln_apply(f, e, pk, s1, s2)
    setexec(valid)
    for k in range(4):
        a("v_cvt_pk_bf16_f32 v%d, v%d, v%d" % (out + k, e[2 * k], e[2 * k + 1]))
    setexec(-1)

def quad_transpose_reduce(v, dst, T):
    k0, g0, k1, g1 = T, T + 1, T + 2, T + 3
    a("v_cndmask_b32 v%d, v%d, v%d, s[%d:%d]" % (g0, v[1], v[0], S_ODD, S_ODD + 1))
    a("v_cndmask_b32 v%d, v%d, v%d, s[%d:%d]" % (g1, v[3], v[2], S_ODD, S_ODD + 1))
    a("v_cndmask_b32 v%d, v%d, v%d, s[%d:%d]" % (k0, v[0], v[1], S_ODD, S_ODD + 1))
    a("v_cndmask_b32 v%d, v%d, v%d, s[%d:%d]" % (k1, v[2], v[3], S_ODD, S_ODD + 1))
    a("v_add_f32_dpp v%d, v%d, v%d quad_perm:[1,0,3,2]%s" % (k0, g0, k0, DPPM))
    a("v_add_f32_dpp v%d, v%d, v%d quad_perm:[1,0,3,2]%s" % (k1, g1, k1, DPPM))
    a("v_cndmask_b32 v%d, v%d, v%d, s[%d:%d]" % (g0, k1, k0, S_B1, S_B1 + 1))
    a("v_cndmask_b32 v%d, v%d, v%d, s[%d:%d]" % (dst, k0, k1, S_B1, S_B1 + 1))
    a("v_add_f32_dpp v%d, v%d, v%d quad_perm:[2,3,0,1]%s" % (dst, g0, dst, DPPM))

S_B2, S_B3 = S_B1, 4
def reduce16(v, dst):
    for r in range(4):
        a("v_add_f32_dpp v%d, v%d, v%d row_ror:8%s" % (v[r], v[r], v[r], DPPM))
    for r in range(4):
        a("v_add_f32_dpp v%d, v%d, v%d row_ror:4%s" % (v[r], v[r], v[r], DPPM))
    a("v_cndmask_b32 v%d, v%d, v%d, s[%d:%d]" % (v[0], v[0], v[1], S_M4, S_M4 + 1))
    a("v_cndmask_b32 v%d, v%d, v%d, s[%d:%d]" % (v[2], v[2], v[3], S_M4, S_M4 + 1))
    a("v_cndmask_b32 v%d, v%d, v%d, s[%d:%d]" % (dst, v[0], v[2], S_M8, S_M8 + 1))

def check12(n, X, oklab, G=None, T0=None, mask=0xfff, acc=(5, 6, 7)):
    if G is None:
        G = V_G
    for t in range(n):
        for r in range(4):
            a("v_xor_b32 v%d, v%d, v%d" % (X + 4 * t + r, G + 4 * t + r, T0 if (r == 0 and T0 is not None) else V_T + r))
    regs = [X + i for i in range(4 * n)]
    acc = list(acc)
    cur = regs[:]
    outs = []
    i = 0
    while len(cur) >= 3 and i < 3:
        a("v_or3_b32 v%d, v%d, v%d, v%d" % (acc[i], cur[0], cur[1], cur[2])); cur = cur[3:]; outs.append(acc[i]); i += 1
    i = 0
    while len(cur) >= 2:
        o = outs[i % len(outs)]
        a("v_or3_b32 v%d, v%d, v%d, v%d" % (o, o, cur[0], cur[1])); cur = cur[2:]; i += 1
    rest = outs + cur
    while len(rest) > 1:
        if len(rest) >= 3:
            a("v_or3_b32 v%d, v%d, v%d, v%d" % (acc[0], rest[0], rest[1], rest[2])); rest = [acc[0]] + rest[3:]
        else:
            a("v_or_b32 v%d, v%d, v%d" % (acc[0], rest[0], rest[1])); rest = [acc[0]]
    a("v_and_b32 v%d, 0x%x, v%d" % (acc[0], mask, rest[0]))
    a("v_cmp_ne_u32 vcc, 0, v%d" % acc[0])
    a("s_cbranch_vccz %s" % oklab)

V_I16, V_GRP, V_LANE = 1, 2, 3
V_M, V_T = 196, 200
V_TA, V_TB, V_T8, V_ONE = 204, 205, 206, 207
V_B1, V_X = 212, 208
V_GA = 213
V_PUB = 214
V_XA = 215
V_ACC = 216
V_G = 232
V_W1A, V_LW = 248, 249
NVGPR = 252
V_K, V_V, V_QF = 32, 64, 96
V_W = 32
V_W1F = 64
V_BB = 96
V_S1 = 112
V_S2 = 144

def tag12(dst, src):
    for r in range(4):
        if Cfg.rnd:
            a("v_add_u32 v%d, 0x800, v%d" % (dst + r, src + r))
            src_r = dst + r
        else:
            src_r = src + r
    for r in range(4):
        a("v_bfi_b32 v%d, s63, v%d, v%d" % (dst + r, V_T + r, (dst if Cfg.rnd else src) + r))

def get_xcc():
    if Cfg.fakex:
        a("s_and_b32 s99, s33, 15")
    else:
        a("s_getreg_b32 s99, hwreg(HW_REG_XCC_ID)")
        a("s_and_b32 s99, s99, 15")

def make_masks():
    a("v_and_b32 v10, 1, v%d" % V_I16)
    a("v_lshlrev_b32 v10, 4, v10")
    a("v_mov_b32 v11, 0xffff")
    a("v_lshlrev_b32 v11, v10, v11")
    a("v_bfe_u32 v10, v%d, 1, 2" % V_I16)
    for rho in range(4):
        a("v_cmp_eq_u32 vcc, %d, v10" % rho)
        a("v_cndmask_b32 v%d, 0, v11, vcc" % (V_M + rho))

def make_tags(full=True):
    a("s_waitcnt lgkmcnt(0)")
    for k in range(4):
        a("s_add_u32 s%d, s%d, 1" % (28 + k, 28 + k))
    if full:
        for k in range(4):
            if k in (1, 3):
                a("s_lshr_b32 s63, s%d, %d" % (28 + k, 12 if k == 1 else 20))
                a("s_xor_b32 s63, s63, s%d" % (28 + k))
                a("s_and_b32 s63, s63, 0xfff")
            else:
                a("s_and_b32 s63, s%d, 0xfff" % (28 + k))
            a("v_mov_b32 v%d, s63" % (V_T + k))
    a("v_mov_b32 v%d, s31" % V_TB)
    a("s_and_b32 s63, s30, 0xff")
    a("v_mov_b32 v%d, s63" % V_T8)

if Cfg.stamps:
    for i in range(16):
        a("s_mov_b64 s[%d:%d], 0" % (64 + 2 * i, 65 + 2 * i))
stamp(0)
a("s_load_dwordx16 s[4:19], s[0:1], 0")
a("s_load_dwordx8 s[20:27], s[0:1], 64")
a("s_cmp_ge_u32 s2, 256")
a("s_cbranch_scc1 L_exit")
a("v_lshrrev_b32 v4, 6, v0")
a("v_and_b32 v%d, 63, v0" % V_LANE)
a("v_readfirstlane_b32 s34, v4")
a("v_and_b32 v%d, 15, v0" % V_I16)
a("v_bfe_u32 v%d, v0, 4, 2" % V_GRP)
a("s_and_b32 s32, s2, 7")
a("s_lshr_b32 s33, s2, 3")
a("s_and_b32 s35, s34, 3")
a("s_cmp_ge_u32 s34, 4")
a("s_cbranch_scc1 L_tail")

a("s_lshl_b32 s48, s32, 22")
a("s_lshl_b32 s49, s33, 15")
a("s_add_u32 s48, s48, s49")
a("s_lshl_b32 s49, s34, 13")
a("s_add_u32 s48, s48, s49")
a("s_add_u32 s48, s48, %d" % (6144 * 512))
if Cfg.kdma:
    a("v_lshrrev_b32 v4, %d, v%d" % (3 if Cfg.k128 else 2, V_LANE))
    a("v_lshlrev_b32 v4, 9, v4")
    a("v_and_b32 v5, %d, v%d" % (7 if Cfg.k128 else 3, V_LANE))
    a("v_lshl_add_u32 v4, v5, 4, v4")
    a("s_add_u32 s54, s48, 4096")
    a("s_add_u32 s49, s49, %d" % L_K)
else:
    a("v_lshlrev_b32 v4, 9, v%d" % V_I16)
    a("v_lshl_add_u32 v4, v%d, 4, v4" % V_GRP)
a("v_lshlrev_b32 v5, 11, v%d" % V_GRP)
a("v_lshl_add_u32 v5, v%d, 4, v5" % V_I16)
a("s_mov_b32 s42, 33554432")
a("s_mov_b32 s43, 0x20000")
a("s_mov_b32 s46, 33554432")
a("s_mov_b32 s47, 0x20000")
a("s_waitcnt lgkmcnt(0)")
a("s_mov_b32 s40, s6")
a("s_and_b32 s41, s7, 0xffff")
a("s_mov_b32 s44, s8")
a("s_and_b32 s45, s9, 0xffff")
stamp(11)
nissued = [0]
def paced(text):
    if Cfg.depth and nissued[0] >= Cfg.depth and nissued[0] < Cfg.n1:
        a("s_waitcnt vmcnt(%d)" % (Cfg.depth - 1))
    a(text)
    nissued[0] += 1
loads = []
for s in range(8):
    if Cfg.kdma:
        if Cfg.k128:
            u, hf = s >> 1, s & 1
            loads.append(["s_add_u32 m0, s49, %d" % (1024 * s - 128 * u), "buffer_load_dwordx4 v4, s[40:43], s%d offen offset:%d%s lds" % (54 if hf else 48, 128 * u, NT)])
        else:
            loads.append(["s_add_u32 m0, s49, %d" % (960 * s), "buffer_load_dwordx4 v4, s[40:43], s48 offen offset:%d%s lds" % (64 * s, NT)])
    else:
        loads.append("buffer_load_dwordx4 v[%d:%d], v4, s[40:43], s48 offen offset:%d%s" % (V_K + 4 * s, V_K + 4 * s + 3, 64 * s, NT))
def emit(t):
    for x in ([t] if isinstance(t, str) else t):
        a(x)
for r in range(4):
    for h in range(2):
        n = 2 * r + h
        if Cfg.vdma:
            loads.append(["s_add_u32 m0, s49, %d" % (L_V - L_K + 1024 * n - 256 * n), "buffer_load_dwordx4 v5, s[44:47], s48 offen offset:%d%s lds" % (256 * n, NT)])
        else:
            loads.append("buffer_load_dwordx4 v[%d:%d], v5, s[44:47], s48 offen offset:%d%s" % (V_V + 4 * n, V_V + 4 * n + 3, 512 * r + 256 * h, NT))
nfirst = 8 + Cfg.nearly
for i, t in enumerate(loads[:Cfg.k0]):
    if i == Cfg.kpre and Cfg.b0:
        a("s_barrier")
    emit(t)
stamp(12)
a("s_load_dwordx4 s[28:31], s[26:27], %d" % EPOCH)
srd(36, 26, WS_SIZE)
make_masks()
a("v_lshrrev_b32 v7, 3, v%d" % V_I16)
a("v_lshlrev_b32 v7, 9, v7")
a("v_lshl_add_u32 v7, v%d, 4, v7" % V_GRP)
a("s_lshl_b32 s63, s34, 11")
a("v_lshl_add_u32 v%d, v%d, 4, s63" % (V_LW, V_LANE))
a("s_lshl_b32 s63, s34, 9")
a("v_lshl_add_u32 v23, v%d, 3, s63" % V_LANE)
a("s_lshl_b32 s63, s34, 10")
a("v_lshl_add_u32 v21, v%d, 4, s63" % V_LANE)
a("v_lshlrev_b32 v22, 3, v%d" % V_LANE)
a("s_lshl_b32 s55, s32, 5")
a("s_add_u32 s55, s55, s33")
a("s_lshl_b32 s55, s55, 11")
a("s_add_u32 s50, s55, %d" % E2)
a("s_add_u32 s51, s55, %d" % (E2 + BOFF))
make_tags(True)
a("v_mov_b32 v31, v%d" % V_TB)
a("v_mov_b32 v6, 0")
a("v_mov_b32 v29, 1")
a("ds_write_b32 v6, v6 offset:%d" % L_CNT)
a("ds_write_b32 v6, v6 offset:%d" % (L_CNT + 4))
if Cfg.trg >= 0:
    a("ds_write_b32 v6, v6 offset:%d" % (L_CNT + 8))
a("s_mov_b32 s%d, %d" % (S_TO, Cfg.timeout))
get_xcc()
NPF = [0]
def wo_prefetch():
    pass
a("s_lshl_b32 s52, s32, 13")
a("s_add_u32 s52, s52, %d" % E1)
a("v_and_b32 v8, 31, v%d" % V_LANE)
a("s_lshl_b32 s63, s34, 5")
a("v_add_u32 v8, s63, v8")
a("v_lshrrev_b32 v9, 5, v%d" % V_LANE)
a("v_lshlrev_b32 v9, 12, v9")
a("v_lshl_add_u32 v24, v8, 4, v9")
a("v_and_b32 v9, 7, v8")
a("v_sub_u32 v8, v8, v9")
a("v_lshl_add_u32 v8, v8, 2, v9")
a("v_lshlrev_b32 v26, 1, v8")
a("v_lshlrev_b32 v25, %d, v%d" % (7 if Cfg.k128 else 6, V_I16))
a("v_lshl_add_u32 v25, v%d, 4, v25" % V_GRP)
a("v_add_u32 v25, s49, v25")
if Cfg.vdma:
    a("v_lshl_add_u32 v28, v%d, 4, s49" % V_LANE)
sel_init(32)
GS = [128, 136]
XC = 12
V_E0 = 27
E1M = 0x3ff
def e1_issue(k):
    a("s_add_u32 s53, s52, s%d" % S_SEL)
    a("s_cmp_eq_u32 s%d, 0" % S_SEL)
    a("s_cselect_b32 s98, s99, 0")
    a("s_cselect_b32 s0, 0, 1")
    a("v_xor_b32 v%d, s98, v%d" % (V_E0, V_T))
    for u in range(2):
        a("buffer_load_dwordx4 v[%d:%d], v24, s[36:39], s53 offen offset:%d sc1" % (GS[k] + 4 * u, GS[k] + 4 * u + 3, 2048 * u))
def e1_check(k):
    check12(2, XC, "L_e1ok", GS[k], V_E0, E1M, acc=(144, 145, 146))
a("s_waitcnt lgkmcnt(0)")
if Cfg.sp:
    a("s_setprio 3")
if Cfg.bq:
    a("s_barrier")
order = [("L", i) for i in range(Cfg.k0)]
rounds = [p for p in (Cfg.p1, Cfg.p2) if p]
for i in range(Cfg.k0, 17):
    for k, p in enumerate(rounds):
        if p == i:
            e1_issue(k)
            if Cfg.sp:
                a("s_setprio %d" % (len(rounds) - 1 - k))
            order += [("P", k), ("P", k)]
    if i < 16:
        emit(loads[i])
        order.append(("L", i))
stamp(13)
def younger(item):
    last = max(i for i, x in enumerate(order) if x == item)
    return len(order) - 1 - last
a("s_waitcnt vmcnt(%d)" % younger(("L", 7)))
for s in range(8):
    a("ds_read_b128 v[%d:%d], v25 offset:%d" % (V_K + 4 * s, V_K + 4 * s + 3, (2048 * (s >> 1) + 64 * (s & 1)) if Cfg.k128 else 1024 * s))
for k in range(len(rounds)):
    a("s_waitcnt vmcnt(%d)" % younger(("P", k)))
    e1_check(k)
a.label("L_e1poll")
sel_step(True)
e1_issue(0)
a("s_waitcnt vmcnt(0)")
e1_check(0)
a("s_branch L_e1poll")
a.label("L_e1ok")
stamp(7)
padd4(XC, XC, XC + 4)
xhalf_add4(XC)
a("v_cvt_pk_bf16_f32 v8, v%d, v%d" % (XC, XC + 1))
a("v_cvt_pk_bf16_f32 v9, v%d, v%d" % (XC + 2, XC + 3))
a("s_mov_b32 exec_hi, 0")
a("ds_write_b16 v26, v8 offset:%d" % (L_Q))
a("ds_write_b16_d16_hi v26, v8 offset:%d" % (L_Q + 16))
a("ds_write_b16 v26, v9 offset:%d" % (L_Q + 32))
a("ds_write_b16_d16_hi v26, v9 offset:%d" % (L_Q + 48))
setexec(-1)
a("s_cmp_eq_u32 s0, 0")
a("s_cbranch_scc1 L_fastq")
a("ds_write_b32 v6, v29 offset:%d" % (L_CNT + 4))
a.label("L_fastq")
stamp(1)
a("s_waitcnt lgkmcnt(0)")
if Cfg.prio:
    a("s_setprio 2")
a("s_barrier")
stamp(2)
for s in range(8):
    a("ds_read_b128 v[%d:%d], v7 offset:%d" % (V_QF + 4 * s, V_QF + 4 * s + 3, L_Q + 64 * s))
a("s_mov_b32 s63, %s" % f32(0.0625 * LOG2E))
S = V_ACC
for s in range(8):
    a("s_waitcnt lgkmcnt(%d)" % (0 if Cfg.stamps else 7 - s))
    a("v_mfma_f32_16x16x32_bf16 v[%d:%d], v[%d:%d], v[%d:%d], %s" % (S, S + 3, V_K + 4 * s, V_K + 4 * s + 3, V_QF + 4 * s, V_QF + 4 * s + 3, "0" if s == 0 else "v[%d:%d]" % (S, S + 3)))
def vread(lo, hi):
    a("s_waitcnt vmcnt(%d)" % younger(("L", 8 + hi - 1)))
    for n in range(lo, hi):
        a("ds_read_b128 v[%d:%d], v28 offset:%d" % (V_V + 4 * n, V_V + 4 * n + 3, L_V - L_K + 1024 * n))
if Cfg.vdma:
    vread(0, Cfg.p1 - 8)
a("v_cvt_pk_bf16_f32 v8, v%d, v%d" % (S, S + 1))
a("v_cvt_pk_bf16_f32 v9, v%d, v%d" % (S + 2, S + 3))
a("v_lshlrev_b32 v10, 16, v8")
a("v_and_b32 v11, 0xffff0000, v8")
a("v_lshlrev_b32 v12, 16, v9")
a("v_and_b32 v13, 0xffff0000, v9")
a("v_max3_f32 v14, v10, v11, v12")
a("v_max_f32 v14, v14, v13")
bfly("v_max_f32", 14, 15, 16)
bfly("v_max_f32", 14, 15, 32)
a("v_mul_f32 v14, s63, v14")
for r in range(4):
    a("v_fma_f32 v%d, v%d, s63, -v14" % (10 + r, 10 + r))
for r in range(4):
    a("v_exp_f32 v%d, v%d" % (10 + r, 10 + r))
for r in range(4):
    a("v_cvt_pk_bf16_f32 v%d, v%d, v%d" % (16 + r, 10 + r, 10 + r))
O = V_ACC + 4
BB = V_QF
def bbuild(r):
    for rho in range(4):
        a("v_and_b32 v%d, v%d, v%d" % (BB + 4 * r + rho, 16 + r, V_M + rho))
def pv(r):
    if not Cfg.vdma:
        a("s_waitcnt vmcnt(%d)" % younger(("L", 8 + 2 * r + 1)))
    else:
        a("s_waitcnt lgkmcnt(%d)" % (0 if Cfg.stamps else 6 - 2 * r))
    for h in range(2):
        n = 2 * r + h
        a("v_mfma_f32_16x16x32_bf16 v[%d:%d], v[%d:%d], v[%d:%d], %s" % (O + 4 * h, O + 4 * h + 3, V_V + 4 * n, V_V + 4 * n + 3, BB + 4 * r, BB + 4 * r + 3, "0" if r == 0 else "v[%d:%d]" % (O + 4 * h, O + 4 * h + 3)))
    if r == Cfg.trg:
        setexec(1)
        a("ds_add_u32 v6, v29 offset:%d" % (L_CNT + 8))
        setexec(-1)
if Cfg.vdma:
    vread(Cfg.p1 - 8, 8)
bbuild(0)
bbuild(1)
stamp(5)
pv(0)
bbuild(2)
a("v_add_f32 v15, v10, v11")
a("v_add_f32 v20, v12, v13")
pv(1)
bbuild(3)
a("v_add_f32 v15, v15, v20")
pv(2)
bfly("v_add_f32", 15, 20, 16)
pv(3)
stamp(6)
bfly("v_add_f32", 15, 20, 32)
a("ds_write_b64 v23, v[14:15] offset:%d" % L_ML)
a("ds_write_b128 v%d, v[%d:%d] offset:%d" % (V_LW, O, O + 3, L_O))
a("ds_write_b128 v%d, v[%d:%d] offset:%d" % (V_LW, O + 4, O + 7, L_O + 1024))
setexec(1)
a("ds_add_u32 v6, v29 offset:%d" % L_CNT)
setexec(-1)
a("s_cmp_ge_u32 s34, 2")
a("s_cbranch_scc1 L_att_exit")
a.label("L_cnt")
a("ds_read_b32 v8, v6 offset:%d" % L_CNT)
a("s_sub_u32 s%d, s%d, 1" % (S_TO, S_TO))
a("s_cbranch_scc1 L_end")
a("s_waitcnt lgkmcnt(0)")
a("v_cmp_gt_u32 vcc, 4, v8")
a("s_cbranch_vccnz L_cnt")
stamp(3)
for w in range(4):
    a("ds_read_b64 v[%d:%d], v22 offset:%d" % (10 + 2 * w, 11 + 2 * w, L_ML + 512 * w))
for w in range(4):
    a("ds_read_b128 v[%d:%d], v21 offset:%d" % (V_G + 4 * w, V_G + 4 * w + 3, L_O + 2048 * w))
a("s_movk_i32 s63, 0xff")
a("s_waitcnt lgkmcnt(4)" if not Cfg.stamps else "s_waitcnt lgkmcnt(0)")
a("v_max3_f32 v18, v10, v12, v14")
a("v_max_f32 v18, v18, v16")
for w in range(4):
    a("v_sub_f32 v%d, v%d, v18" % (10 + 2 * w, 10 + 2 * w))
for w in range(4):
    a("v_exp_f32 v%d, v%d" % (10 + 2 * w, 10 + 2 * w))
a("v_mul_f32 v19, v10, v11")
for w in range(1, 4):
    a("v_fmac_f32 v19, v%d, v%d" % (10 + 2 * w, 11 + 2 * w))
a("v_rcp_f32 v20, v19")
a("v_log_f32 v9, v19")
a("s_waitcnt lgkmcnt(0)")
BC = " op_sel_hi:[0,1]"
for k in (0, 2):
    a("v_pk_mul_f32 v[%d:%d], v[10:11], v[%d:%d]%s" % (24 + k, 25 + k, V_G + k, V_G + k + 1, BC))
for w in range(1, 4):
    for k in (0, 2):
        a("v_pk_fma_f32 v[%d:%d], v[%d:%d], v[%d:%d], v[%d:%d] op_sel_hi:[0,1,1]" % (24 + k, 25 + k, 10 + 2 * w, 11 + 2 * w, V_G + 4 * w + k, V_G + 4 * w + k + 1, 24 + k, 25 + k))
a("v_add_f32 v9, v9, v18")
for k in (0, 2):
    a("v_pk_mul_f32 v[%d:%d], v[20:21], v[%d:%d]%s" % (24 + k, 25 + k, 24 + k, 25 + k, BC))
a("v_bfi_b32 v30, s63, v%d, v9" % V_T8)
a("v_cvt_pk_bf16_f32 v28, v24, v25")
a("v_cvt_pk_bf16_f32 v29, v26, v27")
if not Cfg.noA:
    a("buffer_store_dwordx4 v[28:31], v21, s[36:39], s50 offen")
def bdefer():
    if Cfg.bd == 1:
        a("s_waitcnt vmcnt(0)")
    elif Cfg.bd > 1:
        a("s_sleep %d" % Cfg.bd)
a("v_mov_b32 v8, 1")
setexec(1)
a("ds_add_u32 v6, v8 offset:%d" % L_CNT)
setexec(-1)
stamp(4)
def skip_if_local(tmp, lab):
    if Cfg.xcc:
        a("v_mov_b32 v%d, 0" % tmp)
        a("ds_read_b32 v%d, v%d offset:%d" % (tmp, tmp, L_CNT + 4))
        a("s_waitcnt lgkmcnt(0)")
        a("v_cmp_eq_u32 vcc, 0, v%d" % tmp)
        a("s_cbranch_vccnz %s" % lab)
bdefer()
skip_if_local(8, "L_end")
if not Cfg.noB:
    a("buffer_store_dwordx4 v[28:31], v21, s[36:39], s51 offen sc1")
a("s_branch L_end")

a.label("L_att_exit")
if Cfg.fpf:
    a("s_cmp_lt_u32 s33, 16")
    a("s_cbranch_scc1 L_end")
    a("s_sub_u32 s52, s33, 16")
    a("s_lshl_b32 s52, s52, 1")
    a("s_add_u32 s52, s52, s34")
    a("s_sub_u32 s52, s52, 2")
    a("s_mul_i32 s54, s32, %d" % (224 * 896))
    a("s_mul_i32 s63, s52, %d" % (49 * 128))
    a("s_add_u32 s54, s54, s63")
    a("s_mul_i32 s49, s32, 448")
    a("s_mul_i32 s63, s52, %d" % (14 * 3584))
    a("s_add_u32 s49, s49, s63")
    a("v_lshrrev_b32 v25, 2, v%d" % V_LANE)
    a("v_mul_u32_u24 v25, 3584, v25")
    a("v_and_b32 v26, 3, v%d" % V_LANE)
    a("v_mul_u32_u24 v26, 148, v26")
    a("v_add_u32 v25, v25, v26")
    a("s_mov_b32 s18, %d" % (448 * 3584))
    a("s_mov_b32 s19, 0x20000")
    a("s_and_b32 s17, s17, 0xffff")
    a("s_mov_b32 s22, %d" % (1792 * 896))
    a("s_mov_b32 s23, 0x20000")
    a("s_and_b32 s21, s21, 0xffff")
    a("s_mov_b32 exec_hi, 0x00ffffff")
    a("buffer_load_dword v250, v25, s[16:19], s49 offen")
    a("s_mov_b32 exec_hi, 0x0001ffff")
    a("buffer_load_dword v250, v24, s[20:23], s54 offen")
a("s_branch L_end")

a.label("L_tail")
a.flush()
a("s_cmp_lg_u32 s34, 4")
a("s_cbranch_scc1 L_tail_common")
a("v_lshrrev_b32 v4, 3, v%d" % V_I16)
a("v_mul_u32_u24 v4, 56, v4")
a("v_mul_u32_u24 v5, 14, v%d" % V_GRP)
a("v_add_u32 v4, v4, v5")
a("v_lshlrev_b32 v5, 13, v4")
a("v_and_b32 v6, 7, v%d" % V_I16)
a("v_lshl_add_u32 v5, v6, 4, v5")
a("v_lshlrev_b32 v4, 1, v4")
a("v_lshlrev_b32 v6, 4, v%d" % V_LANE)
a("s_lshr_b32 s50, s33, 3")
a("s_mul_i32 s52, s50, %d" % (112 * 8192))
a("s_lshl_b32 s53, s32, 10")
a("s_add_u32 s52, s52, s53")
a("s_and_b32 s53, s33, 7")
a("s_lshl_b32 s53, s53, 7")
a("s_add_u32 s52, s52, s53")
a("s_mul_i32 s51, s50, 224")
a("s_mov_b32 s42, %d" % (448 * 8192))
a("s_mov_b32 s43, 0x20000")
a("s_mov_b32 s46, 896")
a("s_mov_b32 s47, 0x20000")
a("s_setprio 3")
a("s_waitcnt lgkmcnt(0)")
a("s_mov_b32 s44, s4")
a("s_and_b32 s45, s5, 0xffff")
a("s_mov_b32 s40, s10")
a("s_and_b32 s41, s11, 0xffff")
stamp(11)
WQ, BQ, XR14 = 32, 88, 144
a("buffer_load_dwordx4 v[%d:%d], v6, s[44:47], 0 offen" % (V_G, V_G + 3))
a("buffer_load_dwordx4 v[%d:%d], v4, s[44:47], s51 offen" % (XR14, XR14 + 3))
a("buffer_load_dwordx3 v[%d:%d], v4, s[44:47], s51 offen offset:16" % (XR14 + 4, XR14 + 6))
for t in range(14):
    a("buffer_load_dwordx4 v[%d:%d], v5, s[40:43], s52 offen%s" % (WQ + 4 * t, WQ + 4 * t + 3, NTQ))
    if t < 13:
        a("s_add_u32 s52, s52, 8192")
stamp(12)
a.label("L_tail_common")
a("s_waitcnt lgkmcnt(0)")
if Cfg.tlb == 2:
    a("s_cmp_lg_u32 s34, 6")
    a("s_cbranch_scc1 L_notlb")
    a("s_mul_i32 s48, s32, %d" % (512 * 896))
    a("s_add_u32 s49, s48, %d" % (511 * 896))
    a("s_mul_i32 s50, s32, %d" % (224 * 896))
    a("s_mov_b32 s51, %d" % (447 * 3584))
    a("s_mov_b32 s54, %d" % (E4 + 2044))
    a("s_lshl_b32 s55, s32, 22")
    a("s_add_u32 s55, s55, %d" % (6144 * 512))
    a("s_load_dword s40, s[8:9], s55")
    a("s_load_dword s41, s[12:13], s48")
    a("s_load_dword s42, s[12:13], s49")
    a("s_load_dword s43, s[20:21], s50")
    a("s_load_dword s44, s[16:17], 0")
    a("s_load_dword s45, s[16:17], s51")
    a("s_load_dword s46, s[18:19], 0")
    a("s_load_dword s47, s[22:23], 0")
    a("s_load_dword s98, s[26:27], s54")
    a.label("L_notlb")
if Cfg.b0:
    a("s_barrier")
a("s_load_dwordx4 s[28:31], s[26:27], %d" % EPOCH)
srd(36, 26, WS_SIZE)
a("s_mov_b32 s%d, %d" % (S_TO, Cfg.timeout))
get_xcc()
setmask(S_ODD, 0xAAAAAAAAAAAAAAAA)
setmask(S_M4, 0xF0F0F0F0F0F0F0F0)
setmask(S_M8, 0xFF00FF00FF00FF00)
setmask(S_HI, 0xFFFFFFFF00000000)
a("v_mov_b32 v%d, 1.0" % V_ONE)
a("v_lshrrev_b32 v8, 2, v%d" % V_LANE)
a("v_lshlrev_b32 v8, 11, v8")
a("v_and_b32 v9, 3, v%d" % V_LANE)
a("v_lshl_add_u32 v%d, v9, 4, v8" % V_GA)
make_masks()
a("v_lshl_add_u32 v8, v%d, 3, v%d" % (V_GRP, V_I16))
a("v_lshlrev_b32 v%d, 4, v8" % V_PUB)
a("s_lshl_b32 s52, s32, 13")
a("s_add_u32 s52, s52, %d" % E1)
a("s_lshl_b32 s53, s33, 8")
a("s_add_u32 s53, s53, s52")
a("s_cmp_lg_u32 s34, 4")
a("s_cbranch_scc1 L_notq")
a("s_add_u32 s49, s53, %d" % BOFF)
a("s_waitcnt vmcnt(14)")
stamp(1)
XF, XV, XE, XP = 152, 160, 176, 216
for k in range(4):
    a("v_lshlrev_b32 v%d, 16, v%d" % (XF + 2 * k, V_G + k))
    a("v_and_b32 v%d, 0xffff0000, v%d" % (XF + 2 * k + 1, V_G + k))
fill = []
for k in range(7):
    fill.append("v_lshlrev_b32 v%d, 16, v%d" % (XV + 2 * k, XR14 + k))
    fill.append("v_and_b32 v%d, 0xffff0000, v%d" % (XV + 2 * k + 1, XR14 + k))
s1, s2 = ln_stats([XF + k for k in range(8)], 0x00FFFFFFFFFFFFFF, 8, fill)
ln_apply([XV + k for k in range(14)], [XE + k for k in range(14)], [XP + k for k in range(7)], s1, s2)
for t in range(14):
    a("v_cvt_pk_bf16_f32 v%d, v%d, v%d" % (XE + t, XE + t, XE + t))
make_tags()
stamp(6)
QA = V_ACC
for t in range(15):
    if t < 14:
        for rho in range(4):
            a("v_and_b32 v%d, v%d, v%d" % (BQ + 4 * t + rho, XE + t, V_M + rho))
    if t >= 1:
        u = t - 1
        a("s_waitcnt vmcnt(%d)" % (13 - u))
        a("v_mfma_f32_16x16x32_bf16 v[%d:%d], v[%d:%d], v[%d:%d], %s" % (QA, QA + 3, WQ + 4 * u, WQ + 4 * u + 3, BQ + 4 * u, BQ + 4 * u + 3, "0" if u == 0 else "v[%d:%d]" % (QA, QA + 3)))
stamp(2)
a("s_movk_i32 s63, 0xfff")
for r in range(4):
    a("v_mov_b32_dpp v%d, v%d row_ror:8%s" % (8 + r, QA + r, DPPM))
for r in range(4):
    a("v_mov_b32 v%d, v%d" % (12 + r, 8 + r))
for r in range(4):
    a("v_permlane32_swap_b32 v%d, v%d" % (8 + r, 12 + r))
for r in range(4):
    a("v_add_f32 v%d, v%d, v%d" % (12 + r, 12 + r, QA + r))
for r in range(4):
    a("v_add_u32 v%d, 0x%x, v%d" % (12 + r, (E1M + 1) // 2, 12 + r))
for r in range(4):
    a("v_and_b32 v%d, 0x%x, v%d" % (12 + r, 0xffffffff ^ E1M, 12 + r))
for r in range(4):
    a("v_xor_b32 v%d, v%d, v%d" % (28 + r, 12 + r, V_T + r))
setexec(0x0000000000FF00FF)
a("v_xor_b32 v16, s99, v28")
for r in range(1, 4):
    a("v_mov_b32 v%d, v%d" % (16 + r, 28 + r))
if not Cfg.noA:
    a("buffer_store_dwordx4 v[16:19], v%d, s[36:39], s53 offen" % V_PUB)
a("buffer_store_dwordx4 v[28:31], v%d, s[36:39], s49 offen sc1" % V_PUB)
setexec(-1)
a("s_setprio 0")
stamp(3)
a("s_branch L_e1")
a.label("L_notq")
a.flush()
make_tags()
if Cfg.pretouch == 1:
    a("s_cmp_lg_u32 s34, 5")
    a("s_cbranch_scc1 L_nopre")
    a("s_lshl_b32 s55, s32, 5")
    a("s_add_u32 s55, s55, s33")
    a("s_lshl_b32 s55, s55, 11")
    a("v_lshlrev_b32 v8, 7, v%d" % V_I16)
    a("s_add_u32 s63, s55, %d" % E2)
    a("v_add_u32 v9, s63, v8")
    a("s_add_u32 s63, s55, %d" % E3A)
    a("v_add_u32 v10, s63, v8")
    a("v_and_b32 v8, 128, v8")
    a("v_add_u32 v8, s53, v8")
    a("v_cmp_eq_u32 vcc, 1, v%d" % V_GRP)
    a("v_cndmask_b32 v9, v9, v10, vcc")
    a("v_cndmask_b32 v9, v9, v8, s[%d:%d]" % (S_HI, S_HI + 1))
    a("buffer_load_dword v250, v9, s[36:39], 0 offen sc1")
    a.label("L_nopre")
if Cfg.tlb == 1:
    a("s_cmp_lg_u32 s34, 6")
    a("s_cbranch_scc1 L_notlb")
    a("s_mul_i32 s48, s32, %d" % (512 * 896))
    a("s_add_u32 s49, s48, %d" % (511 * 896))
    a("s_mul_i32 s50, s32, %d" % (224 * 896))
    a("s_mov_b32 s51, %d" % (447 * 3584))
    a("s_mov_b32 s54, %d" % E4)
    a("v_mov_b32 v8, 0")
    setexec(1)
    srd(40, 12, 4096 * 896)
    a("buffer_load_dword v250, v8, s[40:43], s48 offen")
    a("buffer_load_dword v250, v8, s[40:43], s49 offen")
    srd(40, 20, 1792 * 896)
    a("buffer_load_dword v250, v8, s[40:43], s50 offen")
    srd(40, 16, 448 * 3584)
    a("buffer_load_dword v250, v8, s[40:43], 0 offen")
    a("buffer_load_dword v250, v8, s[40:43], s51 offen")
    srd(40, 18, 1792 * 2)
    a("buffer_load_dword v250, v8, s[40:43], 0 offen")
    srd(40, 22, 896)
    a("buffer_load_dword v250, v8, s[40:43], 0 offen")
    a("buffer_load_dword v250, v8, s[36:39], s54 offen offset:2044")
    setexec(-1)
    a.label("L_notlb")
if Cfg.cpf:
    a("s_cmp_lg_u32 s34, 7")
    a("s_cbranch_scc1 L_nocpf")
    if Cfg.cpf == 2:
        a("s_cmp_lg_u32 s33, 31")
        a("s_cbranch_scc1 L_nocpf")
    a("s_getpc_b64 s[48:49]")
    a.label("L_pc")
    a("s_sub_u32 s48, s48, L_pc-%s_kernel" % NAME)
    a("s_subb_u32 s49, s49, 0")
    a("v_lshlrev_b32 v8, 7, v%d" % V_LANE)
    a("v_min_u32 v9, L_exit-%s_kernel-8192, v8" % NAME)
    a("global_load_dword v250, v8, s[48:49]")
    a("v_add_u32 v9, 8192, v9")
    a("global_load_dword v250, v9, s[48:49]")
    a.label("L_nocpf")
def pre2():
    a("s_cmp_lg_u32 s34, 5")
    a("s_cbranch_scc1 L_nopre2")
    a("s_lshl_b32 s55, s32, 5")
    a("s_add_u32 s55, s55, s33")
    a("s_lshl_b32 s55, s55, 11")
    a("s_add_u32 s63, s55, %d" % E2)
    a("v_lshlrev_b32 v8, 7, v%d" % V_LANE)
    setexec(0xffff)
    a("buffer_load_dword v250, v8, s[36:39], s63 offen sc1")
    setexec(-1)
    a.label("L_nopre2")
if Cfg.pretouch == 3:
    pre2()
if Cfg.pretouch >= 4:
    a("s_sub_u32 s63, s34, 5")
    a("s_cmp_gt_u32 s63, %d" % (1 if Cfg.pretouch == 5 else 0))
    a("s_cbranch_scc1 L_nopre4")
    a("s_lshl_b32 s55, s32, 5")
    a("s_add_u32 s55, s55, s33")
    a("s_lshl_b32 s55, s55, 11")
    a("s_cmp_eq_u32 s34, 5")
    a("s_cselect_b32 s63, 0, %d" % (E3A - E2))
    a("s_add_u32 s63, s63, s55")
    a("s_add_u32 s63, s63, %d" % E2)
    a("v_lshlrev_b32 v8, 4, v%d" % V_LANE)
    for r in range(3):
        a("v_not_b32 v%d, v%d" % (12 + r, V_T + r))
    a("v_not_b32 v15, v%d" % V_TB)
    a("buffer_store_dwordx4 v[12:15], v8, s[36:39], s63 offen")
    a("buffer_store_dwordx4 v[12:15], v8, s[36:39], s63 offen offset:1024")
    a("s_nop 1")
    a.label("L_nopre4")
a.label("L_e1")
if Cfg.bq:
    a("s_barrier")
if Cfg.pretouch == 2:
    pre2()
a("s_cmp_lt_u32 s33, 30")
a("s_cbranch_scc1 L_roles")
if Cfg.pretouch >= 4:
    a("s_waitcnt vmcnt(0)")
a("s_barrier")
a("s_branch L_end")
a.label("L_roles")
a("s_cmp_ge_u32 s33, 23")
a("s_cbranch_scc1 L_R")
a("s_cmp_ge_u32 s33, 16")
a("s_cbranch_scc1 L_F")

def poll(name, issue, nload, check, dual, sets=1, shadow=None, D=None):
    D = D or Cfg.pd
    ok = name + "_ok"
    for r in range(D):
        issue(r % sets)
        if r < D - 1 and Cfg.pds:
            a("s_sleep %d" % Cfg.pds)
    if shadow:
        shadow()
    a.label(name)
    n = sets if sets > 1 else 1
    for k in range(n):
        a("s_waitcnt vmcnt(%d)" % (nload * (D - 1)))
        check(k, ok)
        sel_step(True if dual else None)
        if not dual and Cfg.xls:
            a("s_sleep %d" % Cfg.xls)
        if dual and Cfg.lls:
            a("s_sleep %d" % Cfg.lls)
        issue(k)
    a("s_branch %s" % name)
    a.label(ok)

def wait_cnt(n, off=0):
    lab = a.newlabel("L_wc")
    a("v_mov_b32 v5, 0")
    a.label(lab)
    a("ds_read_b32 v7, v5 offset:%d" % (L_CNT + off))
    a("s_sub_u32 s%d, s%d, 1" % (S_TO, S_TO))
    a("s_cbranch_scc1 L_end")
    a("s_sleep 1")
    a("s_waitcnt lgkmcnt(0)")
    a("v_cmp_gt_u32 vcc, %d, v7" % n)
    a("s_cbranch_vccnz %s" % lab)

a("s_lshl_b32 s48, s33, 1")
a("s_lshr_b32 s49, s35, 1")
a("s_add_u32 s48, s48, s49")
a("s_lshl_b32 s50, s32, 9")
a("s_bfe_u32 s49, s48, 0x10001")
a("s_lshl_b32 s49, s49, 8")
a("s_add_u32 s50, s50, s49")
a("s_lshr_b32 s49, s48, 4")
a("s_lshl_b32 s49, s49, 7")
a("s_add_u32 s50, s50, s49")
a("s_bfe_u32 s49, s48, 0x20002")
a("s_lshl_b32 s49, s49, 5")
a("s_add_u32 s50, s50, s49")
a("s_and_b32 s49, s48, 1")
a("s_lshl_b32 s49, s49, 2")
a("s_add_u32 s50, s50, s49")
a("s_mul_i32 s50, s50, 896")
a("s_and_b32 s49, s35, 1")
a("s_lshl_b32 s49, s49, 9")
a("s_add_u32 s50, s50, s49")
a("v_mul_u32_u24 v6, 7168, v%d" % V_GRP)
a("v_lshl_add_u32 v6, v%d, 4, v6" % V_I16)
srd(40, 12, 4096 * 896)
a("s_lshl_b32 s54, s32, 16")
a("s_lshl_b32 s63, s48, 6")
a("s_add_u32 s54, s54, s63")
a("s_lshl_b32 s55, s32, 5")
a("s_add_u32 s55, s55, s48")
a("s_lshl_b32 s55, s55, 11")
a("s_lshl_b32 s49, s49, 1")
a("s_add_u32 s55, s55, s49")
a("s_add_u32 s52, s55, %d" % E3A)
a("s_add_u32 s53, s55, %d" % (E3A + BOFF))
a("v_cmp_lt_u32 s[6:7], 7, v%d" % V_I16)
a("v_add_u32 v4, %d, v%d" % (512 - 128, V_PUB))
a("v_cndmask_b32 v4, v%d, v4, s[6:7]" % V_PUB)
a("s_mov_b64 s[8:9], -1")
a("s_bitcmp1_b32 s35, 0")
a("s_cselect_b32 s9, 0x00ff00ff, s9")
a("s_mov_b32 s0, 0")
if Cfg.dry & 1:
    a("s_mov_b32 s0, 1")
    a("s_mov_b64 s[6:7], 0")
    a("s_branch L_e2poll_ok")
    a.label("L_odry")
    a("s_mov_b32 s0, 0")
if Cfg.pretouch >= 4:
    a("s_waitcnt vmcnt(0)")
a("s_barrier")
if Cfg.trg >= 0 and Cfg.trgo:
    wait_cnt(4, 8)
if Cfg.hack:
    _l = a.newlabel("L_hk")
    a("s_cmp_ge_u32 s32, 4")
    a("s_cbranch_scc1 %s" % _l)
    a("s_sleep %d" % Cfg.hack)
    a.label(_l)
if Cfg.ocnt:
    wait_cnt(Cfg.ocnt)
if Cfg.os:
    a("s_sleep %d" % Cfg.os)
for q in range(4):
    a("buffer_load_dwordx4 v[%d:%d], v6, s[40:43], s50 offen offset:%d%s" % (V_W + 4 * q, V_W + 4 * q + 3, 896 * q, NTL))
a("s_mov_b32 exec_lo, s9")
a("s_mov_b32 exec_hi, s9")
for q in range(4):
    a("buffer_load_dwordx4 v[%d:%d], v6, s[40:43], s50 offen offset:%d%s" % (V_W + 16 + 4 * q, V_W + 16 + 4 * q + 3, 896 * q + 256, NTL))
setexec(-1)
if Cfg.opoll:
    wait_cnt(Cfg.opoll)
sel_init()
stamp(1)
E2S = [V_S1 + 8 * k for k in range(Cfg.pd)]
def e2_issue(k):
    a("s_add_u32 s48, s54, s%d" % S_SEL)
    a("s_add_u32 s49, s48, %d" % (E2 + 16 * 2048))
    a("s_add_u32 s48, s48, %d" % E2)
    a("buffer_load_dwordx4 v[%d:%d], v%d, s[36:39], s48 offen sc1" % (E2S[k], E2S[k] + 3, V_GA))
    a("buffer_load_dwordx4 v[%d:%d], v%d, s[36:39], s49 offen sc1" % (E2S[k] + 4, E2S[k] + 7, V_GA))
def e2_check(k, ok):
    G = E2S[k]
    a("v_xor_b32 v10, v%d, v%d" % (G + 2, V_T8))
    a("v_xor_b32 v11, v%d, v%d" % (G + 6, V_T8))
    a("v_xor_b32 v12, v%d, v%d" % (G + 3, V_TB))
    a("v_xor_b32 v13, v%d, v%d" % (G + 7, V_TB))
    a("v_or_b32 v14, v10, v11")
    a("v_and_b32 v14, 0xff, v14")
    a("v_or3_b32 v14, v14, v12, v13")
    a("v_cmp_ne_u32 vcc, 0, v14")
    for t in range(2):
        a("v_lshlrev_b32 v%d, 16, v%d" % (16 + 4 * t, G + 4 * t))
        a("v_and_b32 v%d, 0xffff0000, v%d" % (17 + 4 * t, G + 4 * t))
        a("v_lshlrev_b32 v%d, 16, v%d" % (18 + 4 * t, G + 4 * t + 1))
        a("v_and_b32 v%d, 0xffff0000, v%d" % (19 + 4 * t, G + 4 * t + 1))
    a("s_cbranch_vccz %s" % ok)
poll("L_e2poll", e2_issue, 2, e2_check, True, sets=Cfg.pd)
stamp(5)
a("v_max_f32 v14, v10, v11")
a("v_max_f32_dpp v14, v14, v14 row_ror:8%s" % DPPM)
a("v_max_f32_dpp v14, v14, v14 row_ror:4%s" % DPPM)
bfly("v_max_f32", 14, 15, 16)
bfly("v_max_f32", 14, 15, 32)
a("v_sub_f32 v10, v10, v14")
a("v_sub_f32 v11, v11, v14")
a("v_exp_f32 v10, v10")
a("v_exp_f32 v11, v11")
a("s_movk_i32 s63, 0xfff")
for k in (0, 2):
    a("v_pk_mul_f32 v[%d:%d], v[10:11], v[%d:%d]%s" % (16 + k, 17 + k, 16 + k, 17 + k, BC))
a("v_add_f32 v12, v10, v11")
for k in (0, 2):
    a("v_pk_fma_f32 v[%d:%d], v[10:11], v[%d:%d], v[%d:%d] op_sel:[1,0,0] op_sel_hi:[1,1,1]" % (16 + k, 17 + k, 20 + k, 21 + k, 16 + k, 17 + k))
a("v_add_f32_dpp v12, v12, v12 row_ror:8%s" % DPPM)
a("v_add_f32_dpp v12, v12, v12 row_ror:4%s" % DPPM)
a("v_mfma_f32_16x16x4_f32 v[%d:%d], v12, v%d, 0" % (V_ACC + 4, V_ACC + 7, V_ONE))
reduce16([16, 17, 18, 19], 13)
a("v_mfma_f32_16x16x4_f32 v[%d:%d], v13, v%d, 0" % (V_ACC, V_ACC + 3, V_ONE))
a("v_rcp_f32 v12, v%d" % (V_ACC + 4))
for k in (0, 2):
    a("v_pk_mul_f32 v[%d:%d], v[12:13], v[%d:%d]%s" % (16 + k, 17 + k, V_ACC + k, V_ACC + k + 1, BC))
for r in range(4):
    a("v_cvt_pk_bf16_f32 v%d, v%d, v%d" % (16 + r, 16 + r, 16 + r))
A2 = V_ACC + 8
BB = V_BB
def omf(qq):
    for b in range(2):
        a("v_mfma_f32_16x16x32_bf16 v[%d:%d], v[%d:%d], v[%d:%d], %s" % (A2 + 4 * b, A2 + 4 * b + 3, V_W + 16 * b + 4 * qq, V_W + 16 * b + 4 * qq + 3, BB + 4 * qq, BB + 4 * qq + 3, "0" if qq == 0 else "v[%d:%d]" % (A2 + 4 * b, A2 + 4 * b + 3)))
for q in range(4):
    for rho in range(4):
        a("v_and_b32 v%d, v%d, v%d" % (BB + 4 * q + rho, 16 + q, V_M + rho))
    if q >= 1:
        omf(q - 1)
omf(3)
for r in range(4):
    a("v_cndmask_b32 v%d, v%d, v%d, s[6:7]" % (24 + r, A2 + r, A2 + 4 + r))
tag12(28, 24)
if Cfg.dry & 1:
    a("s_cmp_eq_u32 s0, 1")
    a("s_cbranch_scc1 L_odry")
a("s_mov_b64 exec, s[8:9]")
if not Cfg.noA:
    a("buffer_store_dwordx4 v[28:31], v4, s[36:39], s52 offen")
stamp(6)
bdefer()
skip_if_local(8, "L_end")
if not Cfg.noB:
    a("buffer_store_dwordx4 v[28:31], v4, s[36:39], s53 offen sc1")
setexec(-1)
if Cfg.w2l:
    a("s_lshl_b32 s48, s33, 2")
    a("s_add_u32 s48, s48, s35")
    a("s_mul_i32 s48, s48, %d" % (25 * 128))
    a("s_mul_i32 s63, s32, %d" % (224 * 896))
    a("s_add_u32 s48, s48, s63")
    a("v_lshlrev_b32 v24, 7, v%d" % V_LANE)
    srd(40, 20, 1792 * 896)
    setexec(0x1ffffff)
    a("buffer_load_dword v250, v24, s[40:43], s48 offen")
a("s_branch L_end")

a.label("L_R")
a.flush()
a("s_sub_u32 s50, s33, 23")
a("s_lshl_b32 s52, s50, 2")
a("s_add_u32 s52, s52, s35")
a("s_lshl_b32 s54, s32, 16")
a("s_lshl_b32 s63, s52, 6")
a("s_add_u32 s54, s54, s63")
a("s_mul_i32 s53, s52, %d" % Cfg.ss)
a("s_add_u32 s53, s53, %d" % E3X)
a("s_lshl_b32 s51, s32, 12")
a("s_add_u32 s51, s51, s53")
a("s_lshl_b32 s55, s32, 11")
a("s_lshl_b32 s63, s52, 6")
a("s_add_u32 s55, s55, s63")
a("s_add_u32 s55, s55, %d" % E3L)
a("v_lshlrev_b32 v4, 4, v%d" % V_GRP)
a("s_lshr_b32 s63, s52, 1")
a("s_lshl_b32 s63, s63, 6")
a("s_and_b32 s48, s52, 1")
a("s_lshl_b32 s48, s48, 3")
a("s_add_u32 s63, s63, s48")
a("v_lshl_add_u32 v%d, v%d, 4, s63" % (V_XA, V_GRP))
srd(44, 4, 896)
a("buffer_load_dwordx2 v[%d:%d], v%d, s[44:47], 0 offen" % (V_X + 2, V_X + 3, V_XA))
a("v_and_b32 v8, 7, v%d" % V_I16)
a("v_lshlrev_b32 v8, 12, v8")
a("v_lshl_add_u32 v%d, v%d, 4, v8" % (V_LW, V_GRP))
if Cfg.rpf:
    a("s_mul_i32 s48, s32, %d" % (224 * 896))
    a("s_mul_i32 s63, s52, %d" % (56 * 128))
    a("s_add_u32 s48, s48, s63")
    a("s_mul_i32 s49, s32, 448")
    a("s_mul_i32 s63, s52, %d" % (16 * 3584))
    a("s_add_u32 s49, s49, s63")
    a("v_lshrrev_b32 v25, 2, v%d" % V_LANE)
    a("v_mul_u32_u24 v25, 3584, v25")
    a("v_and_b32 v26, 3, v%d" % V_LANE)
    a("v_mul_u32_u24 v26, 148, v26")
    a("v_add_u32 v25, v25, v26")
    a("v_lshlrev_b32 v24, 7, v%d" % V_LANE)
    srd(40, 16, 448 * 3584)
    srd(8, 20, 1792 * 896)
if Cfg.pretouch >= 4:
    a("s_waitcnt vmcnt(0)")
a("s_barrier")
wait_cnt(6)
if Cfg.rpf:
    a("buffer_load_dword v250, v25, s[40:43], s49 offen")
    a("s_mov_b32 exec_hi, 0x00ffffff")
    a("buffer_load_dword v250, v24, s[8:11], s48 offen")
    setexec(-1)
sel_init()
if Cfg.rs:
    a("s_sleep %d" % Cfg.rs)
def e3a_issue(k):
    a("s_add_u32 s48, s54, s%d" % S_SEL)
    a("s_add_u32 s49, s48, %d" % (E3A + 16 * 2048))
    a("s_add_u32 s48, s48, %d" % E3A)
    a("buffer_load_dwordx4 v[%d:%d], v%d, s[36:39], s48 offen sc1" % (V_S2, V_S2 + 3, V_GA))
    a("buffer_load_dwordx4 v[%d:%d], v%d, s[36:39], s49 offen sc1" % (V_S2 + 4, V_S2 + 7, V_GA))
poll("L_e3apoll", e3a_issue, 2, lambda k, ok: check12(2, 12, ok, V_S2), True)
stamp(7)
padd4(12, 12, 16)
reduce16([12, 13, 14, 15], 9)
a("v_mfma_f32_16x16x4_f32 v[%d:%d], v9, v%d, 0" % (V_ACC, V_ACC + 3, V_ONE))
a("s_movk_i32 s63, 0xfff")
setexec(0x0001000100010001)
tag12(28, V_ACC)
a("buffer_store_dwordx4 v[28:31], v4, s[36:39], s51 offen sc1")
if Cfg.lh:
    a("buffer_store_dwordx4 v[28:31], v4, s[36:39], s55 offen")
setexec(-1)
stamp(8)
a("s_cmp_lg_u32 s50, s32")
a("s_cbranch_scc1 L_end")
a.label("L_hpoll")
a("s_sleep 2")
a("buffer_load_dwordx4 v[%d:%d], v%d, s[36:39], s53 offen sc1" % (V_G, V_G + 3, V_LW))
a("s_waitcnt vmcnt(0)")
check12(1, 12, "L_hok")
retry("L_hpoll", False)
a.label("L_hok")
stamp(9)
for pat in ("quad_perm:[1,0,3,2]", "quad_perm:[2,3,0,1]", "row_half_mirror"):
    for r in range(4):
        a("v_add_f32_dpp v%d, v%d, v%d %s%s" % (12 + r, 12 + r, 12 + r, pat, DPPM))
for r in range(4):
    a("v_mov_b32 v%d, v%d" % (V_ACC + r, 12 + r))
a("v_lshlrev_b32 v%d, 16, v%d" % (V_X, V_X + 2))
a("v_and_b32 v%d, 0xffff0000, v%d" % (V_X + 1, V_X + 2))
a("v_lshlrev_b32 v%d, 16, v%d" % (V_X + 2, V_X + 3))
a("v_and_b32 v%d, 0xffff0000, v%d" % (V_X + 3, V_X + 3))
def round_add_round(src, add):
    a("v_cvt_pk_bf16_f32 v10, v%d, v%d" % (src, src + 1))
    a("v_cvt_pk_bf16_f32 v11, v%d, v%d" % (src + 2, src + 3))
    a("v_lshlrev_b32 v12, 16, v10")
    a("v_and_b32 v13, 0xffff0000, v10")
    a("v_lshlrev_b32 v14, 16, v11")
    a("v_and_b32 v15, 0xffff0000, v11")
    padd4(12, 12, add)
    a("v_cvt_pk_bf16_f32 v10, v12, v13")
    a("v_cvt_pk_bf16_f32 v11, v14, v15")
round_add_round(V_ACC, V_X)
a("v_lshlrev_b32 v%d, 16, v10" % (V_X))
a("v_and_b32 v%d, 0xffff0000, v10" % (V_X + 1))
a("v_lshlrev_b32 v%d, 16, v11" % (V_X + 2))
a("v_and_b32 v%d, 0xffff0000, v11" % (V_X + 3))
a("s_lshl_b32 s48, s52, 6")
a("s_add_u32 s48, s48, %d" % E4)
for t in range(1, 4):
    a("s_add_u32 s%d, s48, %d" % (48 + t, t * 16 * 2048))
for r in range(4):
    a("v_mov_b32 v%d, v%d" % (V_G + 12 + r, V_T + r))
srd(44, 22, 896)
if Cfg.e4s:
    a("s_sleep %d" % Cfg.e4s)
XR = V_S1
def e4_issue(k):
    for t in range(4):
        if t == 3:
            a("s_mov_b32 exec_hi, 0")
        a("buffer_load_dwordx4 v[%d:%d], v%d, s[36:39], s%d offen sc1" % (V_G + 4 * t, V_G + 4 * t + 3, V_GA, 48 + t))
    setexec(-1)
poll("L_e4poll", e4_issue, 4, lambda k, ok: check12(4, XR, ok), False, D=Cfg.pd4)
stamp(10)
sum16(XR)
reduce16([XR, XR + 1, XR + 2, XR + 3], 9)
a("v_mfma_f32_16x16x4_f32 v[%d:%d], v9, v%d, 0" % (V_ACC, V_ACC + 3, V_ONE))
round_add_round(V_ACC, V_X)
setexec(0x0001000100010001)
a("buffer_store_dwordx2 v[10:11], v%d, s[44:47], 0 offen" % V_XA)
a("s_cmp_lg_u32 s52, 0")
a("s_cbranch_scc1 L_noep")
setexec(1)
a("v_mov_b32 v9, 0")
for k in range(4):
    a("v_mov_b32 v%d, s%d" % (12 + k, 28 + k))
a("buffer_store_dwordx4 v[12:15], v9, s[36:39], 0 offen offset:%d" % EPOCH)
a.label("L_noep")
setexec(-1)
stamp(14)
a("s_branch L_end")

a.label("L_F")
a.flush()
a("s_mul_i32 s50, s32, 7")
a("s_add_u32 s50, s50, s33")
a("s_sub_u32 s50, s50, 16")
a("s_lshl_b32 s51, s50, 2")
a("s_add_u32 s51, s51, s35")
a("v_lshrrev_b32 v8, 3, v%d" % V_I16)
a("v_sub_u32 v8, v%d, v8" % V_I16)
a("v_min_u32 v8, 13, v8")
a("v_lshlrev_b32 v8, 6, v8")
a("v_lshl_add_u32 v23, v%d, 4, v8" % V_GRP)
if Cfg.lin:
    setexec(0x8080808080808080)
    a("v_mov_b32 v23, 896")
    for k in range(4):
        a("v_mov_b32 v%d, 0" % (12 + k))
    a("ds_write_b128 v23, v[12:15] offset:%d" % L_H)
    setexec(-1)
a("v_bfe_u32 v8, v%d, 2, 3" % V_LANE)
a("v_min_u32 v8, 6, v8")
a("v_and_b32 v9, 3, v%d" % V_LANE)
a("v_mul_u32_u24 v10, %d, v8" % Cfg.ss)
a("v_lshl_add_u32 v10, v9, 4, v10")
a("v_lshrrev_b32 v11, 5, v%d" % V_LANE)
a("v_lshl_add_u32 v%d, v11, 12, v10" % V_XA)
a("s_mul_i32 s63, s35, 7")
a("v_add_u32 v8, s63, v8")
a("v_lshrrev_b32 v10, 1, v8")
a("v_lshlrev_b32 v10, 6, v10")
a("v_and_b32 v8, 1, v8")
a("v_lshl_add_u32 v10, v8, 3, v10")
a("v_lshl_add_u32 v24, v9, 4, v10")
a("v_and_b32 v10, 1, v%d" % V_GRP)
a("v_and_b32 v11, 1, v%d" % V_I16)
a("v_lshlrev_b32 v25, 2, v10")
a("v_and_b32 v26, 2, v%d" % V_GRP)
a("v_add_u32 v25, v25, v26")
a("v_mul_u32_u24 v26, 896, v25")
a("v_lshl_add_u32 v26, v%d, 4, v26" % V_I16)
a("v_add_u32 v25, v25, v11")
a("v_lshlrev_b32 v25, 1, v25")
a("v_bfe_u32 v27, v%d, 1, 1" % V_I16)
a("v_mul_u32_u24 v27, %d, v27" % (224 * 64))
a("v_lshl_add_u32 v27, v%d, 9, v27" % V_GRP)
a("v_lshrrev_b32 v12, 2, v%d" % V_I16)
a("v_lshl_add_u32 v27, v12, 6, v27")
a("v_lshl_add_u32 v27, v11, 3, v27")
a("s_lshl_b32 s63, s35, 4")
a("v_add_u32 v%d, s63, v27" % V_W1A)
a("v_lshrrev_b32 v27, 2, v%d" % V_LANE)
a("v_mul_u32_u24 v27, 3584, v27")
a("v_and_b32 v12, 3, v%d" % V_LANE)
a("v_lshl_add_u32 v27, v12, 4, v27")
a("s_lshl_b32 s63, s35, 11")
a("v_lshl_add_u32 v%d, v%d, 4, s63" % (V_LW, V_LANE))
srd(40, 16, 448 * 3584)
srd(44, 20, 1792 * 896)
srd(8, 4, 896)
srd(12, 18, 1792 * 2)
a("s_mul_i32 s52, s35, %d" % (112 * 3584))
a("s_lshl_b32 s63, s50, 6")
a("s_add_u32 s52, s52, s63")
a("s_mul_i32 s53, s35, 7168")
a("s_add_u32 s53, s53, %d" % L_W1)
a("s_mul_i32 s54, s51, %d" % (8 * 896))
a("s_lshl_b32 s55, s51, 4")
a("s_mul_i32 s24, s35, %d" % (7 * Cfg.ss))
a("s_add_u32 s24, s24, %d" % E3X)
a("s_add_u32 s25, s24, 8192")
a("s_add_u32 s26, s24, 16384")
a("s_add_u32 s27, s24, 24576")
a("s_mov_b32 s6, %d" % (16 * 3584))
a("s_movk_i32 s7, 1024")
if Cfg.zig:
    a("s_bitcmp1_b32 s50, 0")
    a("s_cbranch_scc0 L_nozig")
    a("s_add_u32 s52, s52, %d" % (6 * 16 * 3584))
    a("s_add_u32 s53, s53, 6144")
    a("s_mov_b32 s6, %d" % (-16 * 3584))
    a("s_movk_i32 s7, -1024")
    a.label("L_nozig")
def w1_loads():
    for t in range(7):
        a("s_mov_b32 m0, s53")
        a("buffer_load_dwordx4 v27, s[40:43], s52 offen%s lds" % NTW)
        if t < 6:
            a("s_add_u32 s52, s52, s6")
            a("s_add_u32 s53, s53, s7")
def w2_loads():
    for b in range(4):
        if b == 3:
            setexec(0x00FF00FF00FF00FF)
        for q in range(2):
            a("buffer_load_dwordx4 v[%d:%d], v26, s[44:47], s54 offen offset:%d%s" % (V_W + 8 * b + 4 * q, V_W + 8 * b + 4 * q + 3, 896 * q + 256 * b, NTL))
    setexec(-1)
def small_loads():
    a("buffer_load_dwordx2 v[%d:%d], v24, s[8:11], 0 offen" % (V_X + 2, V_X + 3))
    a("buffer_load_ushort v%d, v25, s[12:15], s55 offen" % V_B1)
if Cfg.pretouch >= 4:
    a("s_waitcnt vmcnt(0)")
a("s_barrier")
if Cfg.trg >= 0:
    wait_cnt(4, 8)
if Cfg.hack:
    _l = a.newlabel("L_hk")
    a("s_cmp_ge_u32 s32, 4")
    a("s_cbranch_scc1 %s" % _l)
    a("s_sleep %d" % Cfg.hack)
    a.label(_l)
if Cfg.w2e:
    w2_loads()
    small_loads()
wait_cnt(Cfg.fcnt)
if Cfg.fs:
    a("s_sleep %d" % Cfg.fs)
stamp(1)
if Cfg.w2e:
    w1_loads()
else:
    if not Cfg.w2first:
        w1_loads()
    if not Cfg.w2l:
        w2_loads()
    if Cfg.w2first:
        w1_loads()
    small_loads()
a("s_lshl_b32 s48, s50, 11")
a("s_lshl_b32 s63, s35, 10")
a("s_add_u32 s48, s48, s63")
a("s_add_u32 s48, s48, %d" % E4)
a("v_cmp_lt_u32 s[6:7], 7, v%d" % V_I16)
a("v_add_u32 v4, %d, v%d" % (512 - 128, V_PUB))
a("v_cndmask_b32 v4, v%d, v4, s[6:7]" % V_PUB)
a("s_lshl_b32 s63, s35, 10")
a("v_lshl_add_u32 v21, v%d, 4, s63" % V_LANE)
D1 = V_S2
V_CS = 251
def ffn1(AF, dst, fill=()):
    fill = list(fill)
    def f(n):
        for _ in range(n):
            if fill:
                a(fill.pop(0))
    for m in range(7):
        a("v_mfma_f32_16x16x32_bf16 v[%d:%d], v[%d:%d], v[%d:%d], 0" % (D1 + 4 * m, D1 + 4 * m + 3, AF, AF + 3, V_W1F + 4 * m, V_W1F + 4 * m + 3))
    return
def ffn1_tail(dst, t, zero=True):
    if zero:
        a("v_mov_b32 v%d, 0" % dst)
    setexec(0x0000FF00000000FF)
    a("v_add_f32 v%d, v%d, v%d" % (dst, D1 + 0, D1 + 4 + 1))
    a("v_add_f32 v%d, v%d, v%d" % (t, D1 + 8 + 2, D1 + 12 + 3))
    a("v_add_f32 v%d, v%d, v%d" % (dst, dst, t))
    setexec(0xFF00000000FF0000)
    a("v_add_f32 v%d, v%d, v%d" % (dst, D1 + 16, D1 + 20 + 1))
    a("v_add_f32 v%d, v%d, v%d" % (dst, dst, D1 + 24 + 2))
    setexec(-1)
    a("v_add_f32_dpp v%d, v%d, v%d row_ror:8%s" % (dst, dst, dst, DPPM))
    a("v_mfma_f32_16x16x4_f32 v[%d:%d], v%d, v%d, 0" % (V_ACC, V_ACC + 3, dst, V_ONE))
def ffn1_sel(dst, t):
    a("v_cndmask_b32 v%d, v%d, v%d, s[%d:%d]" % (dst, V_ACC, V_ACC + 1, S_ODD, S_ODD + 1))
    a("v_cndmask_b32 v%d, v%d, v%d, s[%d:%d]" % (t, V_ACC + 2, V_ACC + 3, S_ODD, S_ODD + 1))
    a("v_cndmask_b32 v%d, v%d, v%d, s[%d:%d]" % (dst, dst, t, S_HI, S_HI + 1))
AF = 176
def e3x_issue(k):
    for t in range(4):
        a("buffer_load_dwordx4 v[%d:%d], v%d, s[36:39], s%d offen sc1" % (V_G + 4 * t, V_G + 4 * t + 3, V_XA, 24 + t))
a("v_min_u32 v22, 27, v%d" % V_LANE)
a("v_lshlrev_b32 v22, 4, v22")
a("s_lshl_b32 s49, s32, 11")
a("s_mul_i32 s63, s35, 448")
a("s_add_u32 s49, s49, s63")
a("s_add_u32 s49, s49, %d" % E3L)
a("s_mov_b32 s1, %d" % Cfg.bthr)
if Cfg.lh2:
    a("buffer_load_dwordx4 v[%d:%d], v22, s[36:39], s49 offen sc1" % (V_G, V_G + 3))
    a("s_waitcnt vmcnt(0)")
    stamp(5)
    check12(1, XR, "L_lh1")
    a("s_branch L_lh2")
    a.label("L_lh1")
    e3x_issue(0)
    a("s_mov_b32 s1, -1")
    a.label("L_lh2")
    a("s_barrier")
elif not Cfg.e3e:
    a("s_waitcnt vmcnt(0)")
    stamp(5)
    a("s_barrier")
def f_shadow():
    if Cfg.e3e:
        a("s_waitcnt vmcnt(%d)" % (4 * Cfg.pd))
        stamp(5)
        a("s_barrier")
    for m in range(7):
        for u in range(2):
            a("ds_read_b64_tr_b16 v[%d:%d], v%d offset:%d" % (V_W1F + 4 * m + 2 * u, V_W1F + 4 * m + 2 * u + 1, V_W1A, L_W1 + 2048 * m + 256 * u))
    a("v_lshlrev_b32 v%d, 16, v%d" % (V_B1, V_B1))
    a("v_lshlrev_b32 v%d, 16, v%d" % (V_X, V_X + 2))
    a("v_and_b32 v%d, 0xffff0000, v%d" % (V_X + 1, V_X + 2))
    a("v_lshlrev_b32 v%d, 16, v%d" % (V_X + 2, V_X + 3))
    a("v_and_b32 v%d, 0xffff0000, v%d" % (V_X + 3, V_X + 3))
    if Cfg.lin:
        for k in range(4):
            a("v_mov_b32 v%d, 0x3f803f80" % (AF + k))
        a("s_waitcnt lgkmcnt(0)")
        ffn1(AF, V_CS)
        ffn1_tail(V_CS, 9)
        ffn1_sel(V_CS, 9)
if Cfg.lh:
    f_shadow()
    if Cfg.lh2:
        a("s_cmp_eq_u32 s1, -1")
        a("s_cbranch_scc1 L_e3xpoll")
    a.label("L_lh")
    a("buffer_load_dwordx4 v[%d:%d], v22, s[36:39], s49 offen sc1" % (V_G, V_G + 3))
    a("s_sub_u32 s1, s1, 1")
    a("s_cbranch_scc1 L_lhok")
    a("s_waitcnt vmcnt(0)")
    check12(1, XR, "L_lhok")
    a("s_branch L_lh")
    a.label("L_lhok")
    if Cfg.xs:
        a("s_sleep %d" % Cfg.xs)
    assert Cfg.pdx == 1 or not Cfg.lh2
    poll("L_e3xpoll", e3x_issue, 4, lambda k, ok: check12(4, XR, ok), False, D=Cfg.pdx)
else:
    poll("L_e3xpoll", e3x_issue, 4, lambda k, ok: check12(4, XR, ok), False, shadow=f_shadow)
stamp(9)
if Cfg.w2l:
    w2_loads()
sum16(XR)
xhalf_add4(XR)
round_add_round(XR, V_X)
a("ds_write_b64 v24, v[10:11] offset:%d" % L_H)
a("s_waitcnt lgkmcnt(0)")
a("s_barrier")
stamp(10)
PR = V_S1
if Cfg.lin:
    a("ds_read_b128 v[%d:%d], v23 offset:%d" % (AF, AF + 3, L_H))
    a("s_waitcnt lgkmcnt(0)")
    unp = []
    for k in range(4):
        unp.append("v_lshlrev_b32 v%d, 16, v%d" % (PR + 2 * k, AF + k))
        unp.append("v_and_b32 v%d, 0xffff0000, v%d" % (PR + 2 * k + 1, AF + k))
    def mf(m):
        a("v_mfma_f32_16x16x32_bf16 v[%d:%d], v[%d:%d], v[%d:%d], 0" % (D1 + 4 * m, D1 + 4 * m + 3, AF, AF + 3, V_W1F + 4 * m, V_W1F + 4 * m + 3))
    for m in range(4):
        mf(m)
        a(unp[2 * m]); a(unp[2 * m + 1])
    mf(4)
    def pre():
        mf(5)
        a("v_mov_b32 v22, 0")
        mf(6)
    fl = ["v_mov_b32 v22, 0"]
    s1, s2 = ln_stats([PR + k for k in range(8)], 0x7F7F7F7F7F7F7F7F, 5, pk=PR + 8, pre=pre, fill=None, mid=lambda: ffn1_tail(22, 20, False))
    ffn1_sel(22, 20)
    bf16r(s2, s2)
    a("v_rcp_f32 v%d, v%d" % (s2, s2))
    a("v_fma_f32 v8, -v%d, v%d, v22" % (s1, V_CS))
    a("s_mov_b32 s63, %s" % f32(-LOG2E))
    a("v_mul_f32 v8, v8, v%d" % s2)
else:
    a("ds_read_b128 v[%d:%d], v23 offset:%d" % (PR + 8, PR + 11, L_H))
    a("s_waitcnt lgkmcnt(0)")
    for k in range(4):
        a("v_lshlrev_b32 v%d, 16, v%d" % (PR + 2 * k, PR + 8 + k))
        a("v_and_b32 v%d, 0xffff0000, v%d" % (PR + 2 * k + 1, PR + 8 + k))
    layernorm([PR + k for k in range(8)], AF, 0x7F7F7F7F7F7F7F7F, 5)
    ffn1(AF, 8)
    ffn1_tail(8, 9)
    a("s_mov_b32 s63, %s" % f32(-LOG2E))
    ffn1_sel(8, 9)
bf16r(8, 8)
a("v_add_f32 v8, v8, v%d" % V_B1)
bf16r(8, 8)
if Cfg.fmish:
    a("v_mul_f32 v9, s63, abs(v8)")
    a("v_exp_f32 v9, v9")
    a("v_cmp_gt_f32 vcc, 0, v8")
    a("v_mul_f32 v10, v9, v9")
    a("v_cndmask_b32 v11, 1.0, v10, vcc")
    a("v_cndmask_b32 v12, v10, 1.0, vcc")
    a("v_fma_f32 v11, 2.0, v9, v11")
    a("v_fma_f32 v12, 2.0, v12, v11")
    a("v_rcp_f32 v12, v12")
    a("v_mul_f32 v14, v11, v12")
else:
    a("v_mul_f32 v9, s63, abs(v8)")
    a("v_exp_f32 v9, v9")
    a("v_max_f32 v17, 0, v8")
    bf16r(9, 9)
    a("v_add_f32 v10, 1.0, v9")
    a("v_add_f32 v11, -1.0, v10")
    a("v_log_f32 v12, v10")
    a("v_rcp_f32 v13, v11")
    a("v_cmp_eq_f32 vcc, 0, v11")
    a("v_mul_f32 v12, %s, v12" % f32(0.6931471805599453))
    a("v_mul_f32 v13, v13, v9")
    a("v_mul_f32 v12, v12, v13")
    a("v_cndmask_b32 v12, v12, v9, vcc")
    bf16r(12, 12)
    a("v_add_f32 v12, v12, v17")
    bf16r(12, 12)
    a("v_mul_f32 v13, %s, v12" % f32(-2.0 * LOG2E))
    a("v_exp_f32 v13, v13")
    a("v_mul_f32 v16, v12, v12")
    a("v_add_f32 v14, 1.0, v13")
    a("v_sub_f32 v15, 1.0, v13")
    a("v_rcp_f32 v14, v14")
    a("v_mul_f32 v16, %s, v16" % f32(-1.0 / 3.0))
    a("v_cmp_gt_f32 vcc, %s, v12" % f32(2.0 ** -6))
    a("v_fma_f32 v16, v16, v12, v12")
    a("v_mul_f32 v14, v14, v15")
    a("v_cndmask_b32 v14, v14, v16, vcc")
    bf16r(14, 14)
a("v_mul_f32 v14, v14, v8")
a("v_cvt_pk_bf16_f32 v14, v14, v14")
a("s_movk_i32 s63, 0xfff")
for q in range(2):
    for rho in range(4):
        a("v_and_b32_dpp v%d, v14, v%d quad_perm:[%d,%d,%d,%d]%s" % (BB + 4 * q + rho, V_M + rho, q, q, 2 + q, 2 + q, DPPM))
if Cfg.w2l:
    stamp(12)
    a("s_waitcnt vmcnt(0)")
for q in range(2):
    for b in range(4):
        a("v_mfma_f32_16x16x32_bf16 v[%d:%d], v[%d:%d], v[%d:%d], %s" % (V_ACC + 4 * b, V_ACC + 4 * b + 3, V_W + 8 * b + 4 * q, V_W + 8 * b + 4 * q + 3, BB + 4 * q, BB + 4 * q + 3, "0" if q == 0 else "v[%d:%d]" % (V_ACC + 4 * b, V_ACC + 4 * b + 3)))
setexec(0x00FF00FF00FF00FF)
a("ds_write_b128 v%d, v[%d:%d] offset:%d" % (V_LW, V_ACC, V_ACC + 3, L_F))
a("s_not_b64 exec, exec")
a("ds_write_b128 v%d, v[%d:%d] offset:%d" % (V_LW, V_ACC + 4, V_ACC + 7, L_F))
a("s_not_b64 exec, exec")
a("ds_write_b128 v%d, v[%d:%d] offset:%d" % (V_LW, V_ACC + 8, V_ACC + 11, L_F + 1024))
a("s_not_b64 exec, exec")
a("ds_write_b128 v%d, v[%d:%d] offset:%d" % (V_LW, V_ACC + 12, V_ACC + 15, L_F + 1024))
setexec(-1)
a("s_waitcnt lgkmcnt(0)")
stamp(13)
a("s_barrier")
a("s_cmp_ge_u32 s35, 2")
a("s_cbranch_scc1 L_end")
for w in range(4):
    a("ds_read_b128 v[%d:%d], v21 offset:%d" % (PR + 4 * w, PR + 4 * w + 3, L_F + 2048 * w))
a("s_cmp_eq_u32 s35, 1")
a("s_cselect_b32 exec_hi, 0x00ff00ff, -1")
a("s_waitcnt lgkmcnt(0)")
sum16(PR)
tag12(28, PR)
a("buffer_store_dwordx4 v[28:31], v4, s[36:39], s48 offen sc1")
setexec(-1)
stamp(14)
a.label("L_end")
if Cfg.stamps:
    setexec(-1)
    stamp(15)
    a("s_waitcnt lgkmcnt(0)")
    a("s_lshl_b32 s48, s2, 3")
    a("s_add_u32 s48, s48, s34")
    a("s_lshl_b32 s48, s48, 6")
    a("s_add_u32 s48, s48, %d" % STAMP)
    a("v_mov_b32 v9, 0")
    setexec(1)
    for i in range(0 if getattr(Cfg, "nost", False) else 16):
        a("v_mov_b32 v10, s%d" % (64 + 2 * i))
        a("buffer_store_dword v10, v9, s[36:39], s48 offen offset:%d" % (4 * i))
    if Cfg.dbgwg >= 0:
        a("s_cmp_lg_u32 s2, %d" % Cfg.dbgwg)
        a("s_cbranch_scc1 L_exit")
        a("s_cmp_lg_u32 s34, %d" % Cfg.dbgwave)
        a("s_cbranch_scc1 L_exit")
        if Cfg.spin:
            a.label("L_spin")
            a("s_memrealtime s[94:95]")
            a("s_waitcnt lgkmcnt(0)")
            a("s_sub_u32 s63, s94, s64")
            a("s_cmp_lt_u32 s63, %d" % Cfg.spin)
            a("s_cbranch_scc1 L_spin")
        srd(44, 24, 256)
        for i in range(16):
            a("s_sub_u32 s63, s%d, s64" % (64 + 2 * i))
            a("s_cmp_eq_u32 s%d, 0" % (64 + 2 * i))
            a("s_cselect_b32 s63, 0, s63")
            a("v_mov_b32 v10, s63")
            a("buffer_store_dword v10, v9, s[44:47], 0 offen offset:%d" % (4 * i))
a.label("L_exit")
a("s_endpgm")
a.raw('''.section .rodata,"a"
.p2align 6
.amdhsa_kernel %s_kernel
  .amdhsa_next_free_vgpr %d
  .amdhsa_next_free_sgpr 100
  .amdhsa_accum_offset %d
  .amdhsa_group_segment_fixed_size 0
  .amdhsa_kernarg_size 96
  .amdhsa_user_sgpr_count 2
  .amdhsa_user_sgpr_kernarg_segment_ptr 1
  .amdhsa_system_sgpr_workgroup_id_x 1
  .amdhsa_float_denorm_mode_32 3
.end_amdhsa_kernel''' % (NAME, NVGPR, NVGPR))
open(sys.argv[1], "w").write(a.text())
```
